```python
import torch

def _softmax(x, axis=-1):
    return torch.softmax(x, dim=axis)

def _gelu(x):
    return torch.nn.functional.gelu(x, approximate='tanh')

def _silu(x):
    return torch.nn.functional.silu(x)

def _sigmoid(x):
    return torch.sigmoid(x)

def _layernorm(x, axis=-1, eps=1e-05):
    m = x.mean(dim=axis, keepdim=True)
    v = x.var(dim=axis, keepdim=True, unbiased=False)
    return (x - m) / torch.sqrt(v + eps)

def _scatter_add(tgt, idx, src, axis=0):
    return tgt.clone().index_add_(axis, idx, src)

def _segment_sum(src, seg, n):
    out = torch.zeros((n,) + src.shape[1:], dtype=src.dtype)
    return out.index_add_(0, seg, src)

def _pad(x, pw):
    flat = tuple((v for pair in reversed(pw) for v in pair))
    return torch.nn.functional.pad(x, flat)
kernel_name = 'adaLN_cond__ssm_conv_s4__dense_activation_silu__prompt'

def setup_inputs():

    _w = lambda a: (lambda t: t.to(torch.bfloat16) if t.is_floating_point() else t)(torch.as_tensor(a))

    def _A_setup():
        B, L, D, N = (1, 2048, 512, 128)
        A_re = -(lambda _x: torch.exp(torch.as_tensor(_x)))((lambda *s: torch.randn(*s, dtype=torch.bfloat16) * 3.2)(D, N))
        A_im = torch.pi * (lambda *s: torch.randn(*s, dtype=torch.bfloat16) * 0.05)(D, N)
        B_re = (lambda *s: torch.randn(*s, dtype=torch.bfloat16) * 0.1)(D, N)
        B_im = (lambda *s: torch.randn(*s, dtype=torch.bfloat16) * 0.1)(D, N)
        C_re = (lambda *s: torch.randn(*s, dtype=torch.bfloat16) * 0.1)(D, N)
        C_im = (lambda *s: torch.randn(*s, dtype=torch.bfloat16) * 0.1)(D, N)
        log_dt = (lambda *s: torch.randn(*s, dtype=torch.bfloat16) * 0.05)(D) * 0.5 - 4.0
        Dskip = (lambda *s: torch.randn(*s, dtype=torch.bfloat16) * 0.05)(D)
        return {'u': _w((lambda *s: torch.randn(*s, dtype=torch.bfloat16) * 0.05)(B, L, D)), 'A_re': _w(A_re), 'A_im': _w(A_im), 'B_re': _w(B_re), 'B_im': _w(B_im), 'C_re': _w(C_re), 'C_im': _w(C_im), 'log_dt': _w(log_dt), 'Dskip': _w(Dskip)}
    _A_in = _A_setup()

    def _B_setup():
        B, S, D, F = (1, 2048, 512, 1792)
        return {'x': _w((lambda *s: torch.randn(*s, dtype=torch.bfloat16) * 0.05)(B, S, D)), 'w1': _w((lambda *s: torch.randn(*s, dtype=torch.bfloat16) * 3.2)(D, F) * D ** (-0.5)), 'w2': _w((lambda *s: torch.randn(*s, dtype=torch.bfloat16) * 0.4)(F, D) * F ** (-0.5))}
    _B_in = _B_setup()
    return {'A_u': _A_in['u'], 'A_A_re': _A_in['A_re'], 'A_A_im': _A_in['A_im'], 'A_B_re': _A_in['B_re'], 'A_B_im': _A_in['B_im'], 'A_C_re': _A_in['C_re'], 'A_C_im': _A_in['C_im'], 'A_log_dt': _A_in['log_dt'], 'A_Dskip': _A_in['Dskip'], 'B_x': _B_in['x'], 'B_w1': _B_in['w1'], 'B_w2': _B_in['w2'], 'c': _w((lambda *s: torch.randn(*s, dtype=torch.bfloat16) * 0.2)(1, 512) * 8.0), 'w_mod': _w((lambda *s: torch.randn(*s, dtype=torch.bfloat16) * 0.2)(512, 6 * 512) * 512 ** (-0.5) * 8.0)}

def reference(A_u, A_A_re, A_A_im, A_B_re, A_B_im, A_C_re, A_C_im, A_log_dt, A_Dskip, B_x, B_w1, B_w2, c, w_mod):

    def _A_ref(u, A_re, A_im, B_re, B_im, C_re, C_im, log_dt, Dskip):
        Bsz, L, D = u.shape
        dt = torch.exp(log_dt)[:, None]
        A = A_re + 1j * A_im
        Bc = B_re + 1j * B_im
        Cc = C_re + 1j * C_im
        logdA = dt * A
        dB = dt * Bc
        l = (lambda x, dt: x.to(dt))(torch.arange(L), A_re.dtype)
        P = torch.exp(logdA[:, :, None] * l[None, None, :])
        K = torch.einsum('dn,dnl,dn->dl', Cc, P, dB).real
        L2 = 2 * L
        Kp = _pad(K, ((0, 0), (0, L)))
        up = (lambda x, *d: x.permute(*d))(u, 0, 2, 1)
        up = _pad(up, ((0, 0), (0, 0), (0, L)))
        Kf = (lambda x, axes=(-2, -1): torch.fft.rfft2(x.float(), dim=axes))(Kp[:, None, :], axes=(-2, -1))
        Uf = (lambda x, axes=(-2, -1): torch.fft.rfft2(x.float(), dim=axes))(up[:, :, None, :], axes=(-2, -1))
        Yf = Uf * Kf[None, :, :, :]
        y = (lambda x, s, axes=(-2, -1): torch.fft.irfft2(x, s=s, dim=axes).to(torch.bfloat16))(Yf, (1, L2), axes=(-2, -1))[:, :, 0, :L]
        y = (lambda x, *d: x.permute(*d))(y, 0, 2, 1) + u * Dskip[None, None, :]
        return y

    def _B_ref(x, w1, w2):
        h = torch.einsum('bsd,df->bsf', x, w1)
        h = _silu(h)
        out = torch.einsum('bsf,fd->bsd', h, w2)
        return out
    x = A_u
    mod = (_silu(c) @ w_mod).reshape(c.shape[0], 6, 1, -1)
    sa, ca, ga, sb, cb, gb = (mod[:, 0].clone(), mod[:, 1].clone(), mod[:, 2].clone(), mod[:, 3].clone(), mod[:, 4].clone(), mod[:, 5].clone())
    h = _layernorm(x, axis=-1) * (1 + ca) + sa
    x = x + ga * _A_ref(h, A_A_re, A_A_im, A_B_re, A_B_im, A_C_re, A_C_im, A_log_dt, A_Dskip)
    h = _layernorm(x, axis=-1) * (1 + cb) + sb
    x = x + gb * _B_ref(h, B_w1, B_w2)
    return x
```

```python
import re

REG_RE = re.compile(r'^(-|abs\()?\|?([vas])(?:(\d+)|\[(\d+):(\d+)\])\|?\)?$')
TRANS = ('v_exp_f32', 'v_log_f32', 'v_rcp_f32', 'v_rsq_f32', 'v_sqrt_f32', 'v_sin_f32', 'v_cos_f32')

def regs_of(tok):
    tok = tok.strip()
    if tok in ('vcc',): return {('s', 106), ('s', 107)}
    if tok == 'vcc_lo': return {('s', 106)}
    if tok == 'exec': return {('s', 126), ('s', 127)}
    if tok == 'm0': return {('s', 124)}
    m = REG_RE.match(tok)
    if not m: return set()
    f = m.group(2)
    if m.group(3) is not None: return {(f, int(m.group(3)))}
    return {(f, i) for i in range(int(m.group(4)), int(m.group(5)) + 1)}

def split_ops(s):
    ops, depth, cur = [], 0, ''
    for ch in s:
        if ch in '[(': depth += 1
        if ch in '])': depth -= 1
        if ch == ',' and depth == 0:
            ops.append(cur.strip()); cur = ''
        else: cur += ch
    if cur.strip(): ops.append(cur.strip())
    return ops

class Ins:
    def __init__(self, text):
        self.text = text
        t = text.split(';')[0].strip()
        parts = t.split(None, 1)
        self.mn = parts[0]
        rest = parts[1] if len(parts) > 1 else ''
        ops = split_ops(rest)
        mods = ''
        if ops:
            lp = ops[-1].split(None, 1)
            if len(lp) > 1 and not lp[0].endswith(':'):
                ops[-1] = lp[0]; mods = lp[1]
        self.ops, self.mods = ops, mods
        mn = self.mn
        self.mfma = mn.startswith('v_mfma')
        self.valu = mn.startswith('v_') and not self.mfma
        self.trans = any(mn.startswith(x) for x in TRANS)
        self.dot = mn.startswith('v_dot')
        self.vmem = mn.startswith('buffer_') or mn.startswith('global_')
        self.ds = mn.startswith('ds_')
        self.salu = mn.startswith('s_')
        self.dpp = '_dpp' in mn or 'quad_perm' in mods or 'row_' in mods
        self.perml = mn.startswith('v_permlane')
        self.rdlane = mn.startswith('v_readfirstlane') or mn.startswith('v_readlane')
        self.ldsdma = self.vmem and (' lds' in (' ' + mods) or '_lds_' in mn)
        self.passes = 0
        R = [regs_of(o) for o in ops]
        w, r = set(), set()
        self.srcc = set(); self.ab = set()
        if self.mfma:
            self.passes = 8 if '32x32x16' in mn else 4 if '16x16x32' in mn else None
            assert self.passes, mn
            w = R[0]; self.ab = R[1] | R[2]; self.srcc = R[3]; r = self.ab | self.srcc
        elif self.valu:
            if self.perml and 'swap' in mn:
                w = R[0] | R[1]; r = R[0] | R[1]
            elif mn.startswith('v_cmp'):
                w = R[0]; r = set().union(*R[1:])
            elif mn.startswith(('v_add_co', 'v_sub_co', 'v_addc_co', 'v_subb_co', 'v_subrev_co')):
                w = R[0] | R[1]; r = set().union(*R[2:])
            else:
                w = R[0]; r = set().union(*R[1:]) if len(R) > 1 else set()
                if mn.startswith(('v_fmac', 'v_dot2c', 'v_pk_fmac', 'v_writelane')) or self.dpp or 'sdwa' in mn: r = r | R[0]
        elif self.ds:
            if mn.startswith(('ds_read', 'ds_bpermute', 'ds_permute', 'ds_swizzle')):
                w = R[0]; r = set().union(*R[1:])
            else:
                r = set().union(*R)
        elif self.vmem:
            if 'load' in mn and not self.ldsdma:
                w = R[0]; r = set().union(*R[1:])
            else:
                r = set().union(*R) if R else set()
            if self.ldsdma: r = r | {('s', 124)}
        elif self.salu:
            if mn.startswith(('s_cmp', 's_cbranch', 's_branch', 's_waitcnt', 's_barrier', 's_nop', 's_endpgm', 's_setprio', 's_sleep', 's_bitcmp')):
                r = set().union(*R) if R else set()
            else:
                w = R[0] if R else set(); r = set().union(*R[1:]) if len(R) > 1 else set()
                if 'saveexec' in mn: w = w | regs_of('exec')
        self.w, self.r = w, r
        self.widestore = self.vmem and 'store' in mn and ('x4' in mn or 'x3' in mn)
        self.storedata = set()
        if self.widestore:
            self.storedata = R[0] if mn.startswith('buffer_') else R[1]
        self.states = 1
        if mn == 's_nop': self.states = int(ops[0], 0) + 1

def vg(s): return {x for x in s if x[0] in 'va'}
def sg(s): return {x for x in s if x[0] == 's'}

def need(p, c):
    n = 0
    pw, cw, cr = p.w, c.w, c.r
    if p.valu:
        if c.mfma and vg(pw) & cr: n = max(n, 2)
        if p.trans and (vg(pw) & cr) and not c.trans: n = max(n, 1)
        if sg(pw):
            if (c.valu or c.mfma) and sg(pw) & cr: n = max(n, 4 if c.rdlane else 2)
            if c.vmem and sg(pw) & cr: n = max(n, 5)
            if c.salu and sg(pw) & cr: n = max(n, 1)
        if c.rdlane and vg(pw) & cr: n = max(n, 1)
        if (c.dpp or c.perml) and vg(pw) & cr: n = max(n, 2)
        if p.dot and (vg(pw) & (cr | cw)):
            same = c.mn == p.mn
            if same:
                others = set()
                Rr = [regs_of(o) for o in c.ops]
                others = Rr[1] | Rr[2]
                if vg(pw) & others: n = max(n, 3)
            else: n = max(n, 3)
        if 'sdwa' in p.mn and c.valu and vg(pw) & (cr | cw): n = max(n, 1)
    if p.mfma:
        big = {4: 8, 8: 12}[p.passes]
        if c.mfma:
            if pw & c.ab: n = max(n, big)
            if pw & c.srcc:
                if not (c.srcc == pw and c.passes == p.passes): n = max(n, p.passes + 2)
            elif pw & cw and not (cw == pw and c.passes == p.passes): n = max(n, p.passes + 2)
        elif c.valu or c.vmem or c.ds:
            if pw & (cr | cw): n = max(n, big)
        if c.valu and p.srcc & cw: n = max(n, p.passes - 1)
        if (c.vmem or c.ds) and p.srcc & cw: n = max(n, p.passes - 1)
    if p.salu and ('s', 124) in pw and (c.ldsdma): n = max(n, 1)
    if p.widestore and p.storedata & cw: n = max(n, 2)
    return n

def fix_hazards(lines):
    out = []
    hist = []
    for ln in lines:
        s = ln.split(';')[0].strip()
        if not s or s.startswith('.') :
            out.append(ln); continue
        if s.endswith(':'):
            out.append(ln); continue
        c = Ins(ln)
        dist = 0; pad = 0
        for p in reversed(hist):
            nd = need(p, c)
            if nd > dist: pad = max(pad, nd - dist)
            dist += p.states
            if dist > 20: break
        while pad > 0:
            k = min(pad, 16)
            nop = Ins('s_nop %d' % (k - 1)); out.append('    s_nop %d' % (k - 1)); hist.append(nop); pad -= k
        out.append(ln); hist.append(c)
        if c.mn in ('s_endpgm', 's_branch'): hist = []
        if len(hist) > 40: hist = hist[-30:]
    return out

class Kern:
    def __init__(self, name):
        self.name = name; self.lines = []
        self.nvm = 0; self.nds = 0; self.vm_done = 0; self.ds_done = 0
    def __call__(self, s):
        for l in s.split('\n'):
            l = l.strip()
            if not l: continue
            if l.endswith(':') or l.startswith('.'): self.lines.append(l)
            else:
                mn = l.split()[0]
                assert not (mn.startswith('buffer_') or mn.startswith('global_') or mn.startswith('ds_')), 'use vm()/ds(): ' + l
                self.lines.append('    ' + l)
    def reset_counters(self):
        self.nvm = self.nds = self.vm_done = self.ds_done = 0
    def vm(self, s):
        self.lines.append('    ' + s); self.nvm += 1; return self.nvm
    def ds(self, s):
        self.lines.append('    ' + s); self.nds += 1; return self.nds
    def wait(self, vm=None, ds=None):
        parts = []
        if vm is not None and vm > self.vm_done:
            n = min(self.nvm - vm, 63); parts.append('vmcnt(%d)' % n); self.vm_done = self.nvm - n
        if ds is not None and ds > self.ds_done:
            n = min(self.nds - ds, 15); parts.append('lgkmcnt(%d)' % n); self.ds_done = self.nds - n
        if parts: self.lines.append('    s_waitcnt ' + ' '.join(parts))
    def wait_all(self, vm=True, ds=True):
        parts = []
        if vm: parts.append('vmcnt(0)'); self.vm_done = self.nvm
        if ds: parts.append('lgkmcnt(0)'); self.ds_done = self.nds
        self.lines.append('    s_waitcnt ' + ' '.join(parts))
    def smem_wait(self):
        self.lines.append('    s_waitcnt lgkmcnt(0)'); self.ds_done = self.nds
    def barrier(self):
        self.lines.append('    s_barrier')
    def text(self, vgpr, sgpr, accum):
        body = fix_hazards(self.lines)
        head = ['.text', '.globl %s' % self.name, '.p2align 8', '.type %s,@function' % self.name, '%s:' % self.name]
        desc = ['.section .rodata,"a"', '.p2align 6', '.amdhsa_kernel %s' % self.name,
                '  .amdhsa_next_free_vgpr %d' % vgpr, '  .amdhsa_next_free_sgpr %d' % sgpr, '  .amdhsa_accum_offset %d' % accum,
                '  .amdhsa_group_segment_fixed_size 0', '  .amdhsa_kernarg_size 136', '  .amdhsa_user_sgpr_count 2',
                '  .amdhsa_user_sgpr_kernarg_segment_ptr 1', '  .amdhsa_system_sgpr_workgroup_id_x 1', '.end_amdhsa_kernel']
        mv = ma = ms = -1
        for ln in body:
            s = ln.split(';')[0].strip()
            if not s or s.startswith('.') or s.endswith(':'): continue
            i = Ins(ln)
            for f, n in i.w | i.r:
                if f == 'v': mv = max(mv, n)
                elif f == 'a': ma = max(ma, n)
                elif n < 102: ms = max(ms, n)
        assert mv < accum, (self.name, mv, accum)
        assert accum + ma + 1 <= vgpr or ma < 0, (self.name, ma, accum, vgpr)
        assert mv < vgpr and ms < sgpr, (self.name, mv, ms)
        self.stats = (mv, ma, ms, len(body))
        return '\n'.join(head + body + desc)

def v(n, c=1): return 'v%d' % n if c == 1 else 'v[%d:%d]' % (n, n + c - 1)
def a(n, c=1): return 'a%d' % n if c == 1 else 'a[%d:%d]' % (n, n + c - 1)
def s(n, c=1): return 's%d' % n if c == 1 else 's[%d:%d]' % (n, n + c - 1)
import struct
def f32(x): return '0x%08x' % struct.unpack('<I', struct.pack('<f', x))[0]
```

```python
from gen import *

K2_CONV, K2_W1P = 256, 56
CH_STRIDE = 21120
K2_LDS = 67584

def k2_conv(k):
    k.reset_counters()
    wave_id(k, 50, 1)
    k('v_and_b32 v1, 63, v0')
    k('s_lshr_b32 s52, s50, 1')
    k('s_and_b32 s53, s50, 1')
    k('s_lshl_b32 s54, s2, 1')
    k('s_add_u32 s54, s54, s52')
    k('s_mul_i32 s55, s52, %d' % CH_STRIDE)
    k('v_lshlrev_b32 v2, 4, v1')
    k('v_lshrrev_b32 v3, 2, v1')
    k('v_lshlrev_b32 v3, 15, v3')
    k('v_and_b32 v4, 3, v1')
    k('v_lshl_add_u32 v3, v4, 4, v3')
    k('s_lshl_b32 s56, s53, 20')
    k('s_lshl_b32 s57, s54, 6')
    k('s_add_u32 s56, s56, s57')
    k('v_add_u32 v4, 0x80000, v3')
    k('v_and_b32 v5, 15, v1')
    k('v_lshrrev_b32 v6, 4, v1')
    k('v_lshrrev_b32 v7, 1, v5')
    k('v_lshlrev_b32 v7, 15, v7')
    k('v_and_b32 v8, 1, v5')
    k('v_lshl_add_u32 v7, v8, 5, v7')
    k('v_lshl_add_u32 v8, v6, 3, v7')
    for j in range(1, 4): k('v_add_u32 v%d, 0x%x, v8' % (8 + j, j * 8 * 32768))
    k('s_lshl_b32 s58, s54, 13')
    k('s_lshl_b32 s59, s53, 12')
    k('s_add_u32 s58, s58, s59')
    k('s_mul_i32 s59, s53, 4160')
    k('s_add_u32 s59, s59, s55')
    k('s_lshl_b32 s72, s54, 2')
    k('s_lshl_b32 s73, s2, 2')
    k.smem_wait()
    ws_ptr(k, 62, WS_XN, 56)
    xt = [k.vm('global_load_dwordx4 %s, v%d, s[62:63]' % (v(16 + 4 * i, 4), 3 + i)) for i in range(2)]
    ws_ptr(k, 70, WS_MODF)
    k('s_load_dword s61, s[70:71], s72')
    k('s_load_dword s60, s[70:71], s72 offset:2048')
    k('s_load_dword s75, s[70:71], s72 offset:4096')
    k('s_load_dword s74, s[%d:%d], s73' % (P_DSK, P_DSK + 1))
    ws_ptr(k, 64, WS_KR, 58)
    k('s_mov_b32 m0, s59')
    for i in range(4): kt = k.vm('global_load_lds_dwordx4 v2, s[64:65] offset:%d' % (i * 1024))
    ws_ptr(k, 66, WS_XT, 56)
    xr = [k.vm('global_load_dwordx2 %s, v%d, s[66:67]' % (v(24 + 2 * j, 2), 8 + j)) for j in range(4)]
    ws_ptr(k, 68, WS_X1T, 56)
    k('v_mov_b32 v12, 0\nv_mov_b32 v13, 0')
    k('v_lshl_add_u32 v14, v5, 2, s59')
    k.ds('ds_write_b32 v14, v12 offset:4096')
    k('v_lshl_add_u32 v14, v1, 3, s55')
    k.ds('ds_write_b64 v14, v[12:13] offset:8320')
    k('s_lshl_b32 s76, s53, 11')
    k('s_add_u32 s76, s76, s55')
    k('v_add_u32 v14, s76, v2')
    k('v_lshlrev_b32 v15, 5, v5')
    k('v_lshl_add_u32 v15, v6, 4, v15')
    k('s_lshl_b32 s77, s53, 8')
    k('s_sub_u32 s77, s55, s77')
    k('s_add_u32 s77, s77, %d' % (8320 + 512 - 32 - 192))
    k('v_add_u32 v192, s77, v15')
    k('v_lshlrev_b32 v15, 5, v5')
    k('v_lshl_add_u32 v15, v6, 3, v15')
    k('v_add_u32 v193, s76, v15')
    k('v_lshlrev_b32 v15, 3, v6')
    k('v_sub_u32 v15, v15, v5')
    k('v_add_u32 v15, 15, v15')
    k('v_and_b32 v194, 1, v15')
    k('v_mul_u32_u24 v194, 4160, v194')
    k('v_and_b32 v15, -2, v15')
    k('v_lshl_add_u32 v15, v15, 1, v194')
    k('s_lshl_b32 s77, s53, 8')
    k('s_sub_u32 s77, s55, s77')
    k('s_add_u32 s77, s77, %d' % (2 * (2016 - 256 - 96 - 1536)))
    k('v_add_u32 v197, s77, v15')
    for ip in range(3): k('v_add_u32 v%d, %d, v197' % (194 + ip, 1024 * (3 - ip)))
    k('s_lshl_b32 s77, s53, 12')
    k('s_add_u32 s78, s77, s55')
    k('v_add_u32 v198, s78, v2')
    k('s_xor_b32 s77, s77, 0x1000')
    k('s_add_u32 s78, s77, s55')
    k('v_add_u32 v199, s78, v2')
    k('s_mov_b32 s79, 0xffff0000')
    k.smem_wait()
    k('s_lshl_b32 s77, s74, 16')
    k('s_and_b32 s74, s74, 0xffff0000')
    k('s_cmp_eq_u32 s52, 0')
    k('s_cselect_b32 s74, s77, s74')
    for i in range(2):
        k.wait(vm=xt[i])
        for j in range(4):
            r = 16 + 4 * i + j
            tt = 200 + 2 * (j & 1)
            k('v_lshlrev_b32 v%d, 16, v%d' % (tt, r))
            k('v_and_b32 v%d, s79, v%d' % (tt + 1, r))
            k('v_pk_fma_f32 %s, %s, s[60:61], s[60:61] op_sel:[0,0,1] op_sel_hi:[1,0,1]' % (v(tt, 2), v(tt, 2)))
            k('v_cvt_pk_bf16_f32 v%d, v%d, v%d' % (r, tt, tt + 1))
        k.ds('ds_write_b128 v14, %s offset:%d' % (v(16 + 4 * i, 4), 8320 + 512 + 1024 * i))
    k.wait(vm=kt)
    k.wait_all(vm=False)
    k.barrier()
    ACC = 32
    def areg(st, p): return 64 + 64 * st + 4 * p
    def breg(st, q): return 96 + 64 * st + 4 * q
    def loads(cc):
        st = cc & 1
        L = []
        for p in range(8):
            off = 128 * (1 - (p & 1)) + 16 * (3 - cc)
            L.append('ds_read2_b32 %s, v%d offset0:%d offset1:%d' % (v(areg(st, p), 2), 194 + (p >> 1), off, off + 1))
            L.append('ds_read2_b32 %s, v%d offset0:%d offset1:%d' % (v(areg(st, p) + 2, 2), 194 + (p >> 1), off + 2, off + 3))
            L.append('ds_read_b128 %s, v192 offset:%d' % (v(breg(st, p), 4), 512 * p + 64 * (3 - cc)))
        return L
    pairs = []
    for lv in range(8):
        for p in range(lv + 1):
            for q in range(lv + 1):
                if max(p, q) == lv and p + q <= 7: pairs.append((p, q))
    toks = [k.ds(x) for x in loads(0)]
    seen = set()
    for cc in range(4):
        st = cc & 1
        nxt = loads(cc + 1) if cc < 3 else ['ds_read_b64 %s, v193 offset:%d' % (v(16 + 2 * j, 2), 8320 + 512 + 512 * j) for j in range(4)]
        if cc > 0: k.wait_all(vm=False)
        for n, (p, q) in enumerate(pairs):
            if cc == 0: k.wait(ds=toks[3 * max(p, q) + 2])
            nt = p + q
            c = v(ACC + 4 * nt, 4) if nt in seen else '0'
            seen.add(nt)
            k('v_mfma_f32_16x16x32_bf16 %s, %s, %s, %s' % (v(ACC + 4 * nt, 4), v(areg(st, p), 4), v(breg(st, q), 4), c))
            start = 12 if cc == 0 else 2
            if n >= start and nxt: k.ds(nxt.pop(0))
        assert not nxt
    k('s_nop 7')
    k('s_cmp_eq_u32 s53, 0')
    k('s_cbranch_scc0 L_k2_w1')
    for j in range(4): k.ds('ds_write_b128 v198, %s offset:%d' % (v(ACC + 16 + 4 * j, 4), 12928 + 1024 * j))
    k('s_branch L_k2_j1')
    k('L_k2_w1:')
    k.nds -= 4
    for j in range(4): k.ds('ds_write_b128 v198, %s offset:%d' % (v(ACC + 4 * j, 4), 12928 + 1024 * j))
    for j in range(16): k('v_mov_b32 v%d, v%d' % (64 + j, ACC + 16 + j))
    k('s_branch L_k2_j2')
    k('L_k2_j1:')
    for j in range(16): k('v_mov_b32 v%d, v%d' % (64 + j, ACC + j))
    k('L_k2_j2:')
    k.wait_all(vm=False)
    k.barrier()
    rt_ = [k.ds('ds_read_b128 %s, v199 offset:%d' % (v(80 + 4 * j, 4), 12928 + 1024 * j)) for j in range(4)]
    k.wait(vm=xr[-1])
    for i in range(8):
        k('v_lshlrev_b32 v%d, 16, v%d' % (96 + 2 * i, 16 + i))
        k('v_and_b32 v%d, s79, v%d' % (97 + 2 * i, 16 + i))
        k('v_pk_fma_f32 %s, %s, s[74:75], %s op_sel_hi:[1,0,1]' % (v(64 + 2 * i, 2), v(96 + 2 * i, 2), v(64 + 2 * i, 2)))
        k('v_lshlrev_b32 v%d, 16, v%d' % (112 + 2 * i, 24 + i))
        k('v_and_b32 v%d, s79, v%d' % (113 + 2 * i, 24 + i))
    for j in range(4):
        k.wait(ds=rt_[j])
        for i in (2 * j, 2 * j + 1):
            k('v_pk_add_f32 %s, %s, %s' % (v(64 + 2 * i, 2), v(64 + 2 * i, 2), v(80 + 2 * i, 2)))
            k('v_pk_fma_f32 %s, %s, s[74:75], %s op_sel:[0,1,0] op_sel_hi:[1,1,1]' % (v(64 + 2 * i, 2), v(64 + 2 * i, 2), v(112 + 2 * i, 2)))
            k('v_cvt_pk_bf16_f32 v%d, v%d, v%d' % (128 + i, 64 + 2 * i, 65 + 2 * i))
        k.vm('global_store_dwordx2 v%d, %s, s[68:69]' % (8 + j, v(128 + 2 * j, 2)))
    k('s_endpgm')

def k2_w1p(k):
    k.reset_counters()
    k('s_sub_u32 s51, s2, %d' % K2_CONV)
    wave_id(k, 50, 1)
    k('v_and_b32 v1, 63, v0')
    k('v_lshrrev_b32 v2, 2, v1')
    k('v_lshlrev_b32 v4, 2, v2')
    k('v_mul_u32_u24 v2, 3584, v2')
    k('v_and_b32 v3, 3, v1')
    k('v_lshl_add_u32 v2, v3, 4, v2')
    k('s_mul_i32 s52, s50, %d' % (128 * 3584))
    k('s_lshl_b32 s53, s51, 6')
    k('s_add_u32 s52, s52, s53')
    k('v_lshrrev_b32 v5, 5, v1')
    k('v_lshlrev_b32 v5, 4, v5')
    k('s_lshl_b32 s54, s50, 9')
    k('s_lshl_b32 s55, s50, 8')
    k.smem_wait()
    add_ptr(k, 56, P_W1, 52)
    wt = []
    for i in range(8):
        wt.append(k.vm('global_load_dwordx4 %s, v2, s[56:57]' % v(16 + 4 * i, 4)))
        if i < 7:
            k('s_add_u32 s56, s56, %d' % (16 * 3584))
            k('s_addc_u32 s57, s57, 0')
    ws_ptr(k, 58, WS_MODF + 2048 * 4, 54)
    gt = [k.vm('global_load_dword v%d, v4, s[58:59] offset:%d' % (48 + i, 64 * i)) for i in range(8)]
    ws_ptr(k, 60, WS_MODH + 1536 * 2, 55)
    st = [k.vm('global_load_dwordx4 %s, v5, s[60:61] offset:%d' % (v(64 + 4 * i, 4), 32 * i)) for i in range(8)]
    k('s_lshl_b32 s62, s50, 13')
    k('v_lshlrev_b32 v6, 4, v1')
    k('v_add_u32 v7, s62, v6')
    tr_addr32(k, 10, 1, 11, 12, 6, 8)
    k('v_add_u32 v10, s62, v10')
    k('s_lshl_b32 s63, s51, 15')
    k('s_add_u32 s63, s63, s62')
    ws_ptr(k, 64, WS_W1P, 63)
    k('v_add_u32 v8, 0x1000, v6')
    k('s_mov_b32 s66, 0xffff0000')
    for i in range(4): k('v_mov_b32 v%d, 0x3f803f80' % (12 + i))
    for i in range(8):
        k.wait(vm=wt[i])
        k.ds('ds_write_b128 v7, %s offset:%d' % (v(16 + 4 * i, 4), i * 1024))
    for i in range(8):
        k.wait(vm=gt[i])
        for j in range(4):
            r = 16 + 4 * i + j
            tt = 56 + 2 * (j & 1)
            k('v_lshlrev_b32 v%d, 16, v%d' % (tt, r))
            k('v_and_b32 v%d, s66, v%d' % (tt + 1, r))
            g = 48 + (i & ~1)
            k('v_pk_mul_f32 %s, %s, %s op_sel:[0,%d] op_sel_hi:[1,%d]' % (v(tt, 2), v(tt, 2), v(g, 2), i & 1, i & 1))
            k('v_cvt_pk_bf16_f32 v%d, v%d, v%d' % (96 + 4 * i + j, tt, tt + 1))
        k.ds('ds_write_b128 v7, %s offset:%d' % (v(96 + 4 * i, 4), 32768 + i * 1024))
    k.wait_all(vm=False)
    ts, tu = [], []
    for ks in range(8):
        k.ds('ds_read_b64_tr_b16 %s, v10 offset:%d' % (v(96 + 4 * ks, 2), 32768 + ks * 1024))
        ts.append(k.ds('ds_read_b64_tr_b16 %s, v10 offset:%d' % (v(98 + 4 * ks, 2), 32768 + ks * 1024 + 256)))
    for ks in range(8):
        k.ds('ds_read_b64_tr_b16 %s, v10 offset:%d' % (v(16 + 4 * ks, 2), ks * 1024))
        tu.append(k.ds('ds_read_b64_tr_b16 %s, v10 offset:%d' % (v(18 + 4 * ks, 2), ks * 1024 + 256)))
    for ks in range(8):
        k.wait(ds=ts[ks])
        k.vm('global_store_dwordx4 v%d, %s, s[64:65] offset:%d' % (6 + 2 * (ks >> 2), v(96 + 4 * ks, 4), (ks & 3) * 1024))
        k('v_mfma_f32_32x32x16_bf16 v[128:143], v[12:15], %s, %s' % (v(96 + 4 * ks, 4), '0' if ks == 0 else 'v[128:143]'))
    k.wait(vm=st[-1])
    for ks in range(8):
        k.wait(ds=tu[ks])
        k('v_mfma_f32_32x32x16_bf16 v[144:159], %s, %s, %s' % (v(64 + 4 * ks, 4), v(16 + 4 * ks, 4), '0' if ks == 0 else 'v[144:159]'))
    k('v_lshlrev_b32 v4, 2, v0')
    k('v_add_u32 v4, 0x10000, v4')
    k.ds('ds_write_b32 v4, v128')
    k.ds('ds_write_b32 v4, v144 offset:1024')
    k.wait_all(vm=False)
    k.barrier()
    k('s_cmp_lg_u32 s50, 0')
    k('s_cbranch_scc1 L_k2_end')
    for i in range(8): t = k.ds('ds_read_b32 v%d, v4 offset:%d' % (16 + i, 256 * i))
    k('s_lshl_b32 s52, s51, 7')
    ws_ptr(k, 68, WS_C12, 52)
    ws_ptr(k, 70, WS_C12 + 8192, 52)
    k('v_lshlrev_b32 v5, 2, v0')
    k.wait(ds=t)
    k('v_add_f32 v16, v16, v17\nv_add_f32 v18, v18, v19\nv_add_f32 v16, v16, v18')
    k('v_add_f32 v20, v20, v21\nv_add_f32 v22, v22, v23\nv_add_f32 v20, v20, v22')
    k('v_mul_f32 v20, %s, v20' % f32(-LOG2E))
    k('v_cmp_gt_u32 vcc, 32, v0')
    k('s_and_saveexec_b64 s[72:73], vcc')
    k.vm('global_store_dword v5, v16, s[68:69]')
    k.vm('global_store_dword v5, v20, s[70:71]')
    k('s_endpgm')

def gen_k2():
    k = Kern('k2_conv_kernel')
    load_ptrs(k)
    k('s_cmp_lt_u32 s2, %d' % K2_CONV)
    k('s_cbranch_scc1 L_k2_conv')
    k('s_cmp_lt_u32 s2, %d' % (K2_CONV + K2_W1P))
    k('s_cbranch_scc1 L_k2_w1p')
    k('L_k2_end:')
    k('s_endpgm')
    k('L_k2_conv:'); k2_conv(k)
    k('L_k2_w1p:'); k2_w1p(k)
    return k, 'grid=(%d,1,1) block=(256,1,1) lds=%d' % (K2_CONV + K2_W1P, K2_LDS), (208, 88, 208)

def all_kernels():
    import gen3
    return [gen_k1(), gen_k2()] + gen3.kernels()
```

```python
from gen import *

def gen_k3():
    k = Kern('k3_gemm1_kernel')
    k('s_load_dwordx2 s[48:49], s[0:1], 128')
    k('s_cmp_ge_u32 s2, 224')
    k('s_cbranch_scc1 L_k3_end')
    wave_id(k, 50, 1)
    k('v_and_b32 v1, 63, v0')
    k('v_lshlrev_b32 v2, 4, v1')
    k('s_and_b32 s51, s2, 7')
    k('s_lshr_b32 s52, s2, 3')
    k('s_lshl_b32 s51, s51, 1')
    k('s_cmp_ge_u32 s52, 14')
    k('s_cselect_b32 s53, 1, 0')
    k('s_cselect_b32 s54, 14, 0')
    k('s_add_u32 s51, s51, s53')
    k('s_sub_u32 s52, s52, s54')
    k('s_lshl_b32 s53, s52, 2')
    k('s_add_u32 s53, s53, s50')
    k('s_lshl_b32 s54, s53, 15')
    k('s_lshl_b32 s55, s51, 17')
    k('s_lshl_b32 s56, s50, 15')
    k('s_add_u32 s55, s55, s56')
    k.smem_wait()
    ws_ptr(k, 58, WS_X1T, 55)
    ws_ptr(k, 60, WS_W1P, 54)
    ctok = {}
    def issue_chunk(c):
        k('s_add_u32 m0, s56, %d' % (c * 4096))
        for i in range(4): k.vm('global_load_lds_dwordx4 v2, s[58:59] offset:%d' % (i * 1024))
        for i in range(4): t = k.vm('global_load_dwordx4 %s, v2, s[60:61] offset:%d' % (a(16 * c + 4 * i, 4), i * 1024))
        ctok[c] = t
        if c < 7:
            k('s_add_u32 s58, s58, 4096\ns_addc_u32 s59, s59, 0')
            k('s_add_u32 s60, s60, 4096\ns_addc_u32 s61, s61, 0')
    for c in range(7): issue_chunk(c)
    tr_addr32(k, 3, 1, 8, 9, 6, 8)
    for j in range(4):
        k('s_add_u32 s62, s50, %d' % j)
        k('s_and_b32 s62, s62, 3')
        k('s_lshl_b32 s63, s62, 15')
        k('v_add_u32 v%d, s63, v3' % (4 + j))
        k('s_mul_i32 s63, s62, 114688')
        k('v_add_u32 v%d, s63, v2' % (8 + j))
        k('s_lshl_b32 s63, s62, 9')
        k('v_and_b32 v12, 31, v1')
        k('v_lshlrev_b32 v12, 3, v12')
        k('v_add_u32 v12, s63, v12')
        k('v_add_u32 v%d, 0x20000, v12' % (160 + j))
    k('v_lshlrev_b32 v12, 3, v0')
    k('v_add_u32 v164, 0x20000, v12')
    k('v_lshrrev_b32 v13, 5, v1')
    k('v_lshlrev_b32 v13, 4, v13')
    k('s_lshl_b32 s62, s53, 7')
    ws_ptr(k, 64, WS_C12, 62)
    ws_ptr(k, 66, WS_C12 + 8192, 62)
    k('s_mul_i32 s62, s51, %d' % (4 * 114688))
    k('s_lshl_b32 s63, s53, 11')
    k('s_add_u32 s62, s62, s63')
    ws_ptr(k, 68, WS_HID, 62)
    k('s_mov_b32 s70, 0x3f803f80')
    for i in range(4): k('v_mov_b32 v%d, 0' % (168 + i))
    ACC = 16
    def breg(s_, j): return 80 + 16 * (s_ % 3) + 4 * j
    rtok = {}
    def reads(s_):
        if s_ % 4 == 0:
            k.wait(vm=ctok[s_ // 4])
            k.barrier()
        for j in range(4):
            k.ds('ds_read_b64_tr_b16 %s, v%d offset:%d' % (v(breg(s_, j), 2), 4 + j, s_ * 1024))
            t = k.ds('ds_read_b64_tr_b16 %s, v%d offset:%d' % (v(breg(s_, j) + 2, 2), 4 + j, s_ * 1024 + 256))
        rtok[s_] = t
    reads(0); reads(1)
    for s_ in range(32):
        if s_ == 2:
            issue_chunk(7)
        if s_ == 6:
            for q in range(4): k.vm('global_load_dwordx4 %s, v13, s[64:65] offset:%d' % (v(128 + 4 * q, 4), 32 * q))
            for q in range(4): cst = k.vm('global_load_dwordx4 %s, v13, s[66:67] offset:%d' % (v(144 + 4 * q, 4), 32 * q))
        if s_ + 2 < 32: reads(s_ + 2)
        k.wait(ds=rtok[s_])
        for j in range(4):
            k('v_mfma_f32_32x32x16_bf16 %s, %s, %s, %s' % (v(ACC + 16 * j, 16), a(4 * s_, 4), v(breg(s_, j), 4), '0' if s_ == 0 else v(ACC + 16 * j, 16)))
            r = breg(s_, 0) + j
            k('v_dot2c_f32_bf16 v%d, s70, v%d' % (168 + 2 * (j & 1), r))
            k('v_dot2c_f32_bf16 v%d, v%d, v%d' % (169 + 2 * (j & 1), r, r))
    k('v_pk_add_f32 v[168:169], v[168:169], v[170:171]')
    k.ds('ds_write_b64 v164, v[168:169]')
    k.wait_all(vm=False)
    k.barrier()
    st = [k.ds('ds_read2_b64 %s, v%d offset0:0 offset1:32' % (v(172 + 4 * j, 4), 160 + j)) for j in range(4)]
    k.wait(vm=cst)
    for j in range(4):
        b = 172 + 4 * j
        k.wait(ds=st[j])
        k('v_pk_add_f32 %s, %s, %s' % (v(b, 2), v(b, 2), v(b + 2, 2)))
        k('v_mul_f32 v%d, %s, v%d' % (b, f32(1.0 / 512), b))
        k('v_mul_f32 v%d, %s, v%d' % (b + 1, f32(1.0 / 512), b + 1))
        k('v_fma_f32 v%d, -v%d, v%d, v%d' % (b + 1, b, b, b + 1))
        k('v_max_f32 v%d, 0, v%d' % (b + 1, b + 1))
        k('v_add_f32 v%d, %s, v%d' % (b + 1, f32(1e-5), b + 1))
        k('v_rsq_f32 v%d, v%d' % (b + 1, b + 1))
        k('v_mul_f32 v%d, %s, v%d' % (b + 1, f32(-LOG2E), b + 1))
    for j in range(4):
        b = 172 + 4 * j
        A_ = ACC + 16 * j
        for p in range(8):
            x = v(A_ + 2 * p, 2)
            k('v_pk_fma_f32 %s, %s, %s, %s op_sel_hi:[1,0,1] neg_lo:[0,1,0] neg_hi:[0,1,0]' % (x, v(128 + 2 * p, 2), v(b, 2), x))
        for p in range(8):
            x = v(A_ + 2 * p, 2)
            k('v_pk_fma_f32 %s, %s, %s, %s op_sel:[0,1,0] op_sel_hi:[1,1,1]' % (x, x, v(b, 2), v(144 + 2 * p, 2)))
        for r in range(16): k('v_exp_f32 v%d, v%d' % (80 + r, A_ + r))
        for p in range(8): k('v_pk_add_f32 %s, %s, 1.0 op_sel_hi:[1,0]' % (v(80 + 2 * p, 2), v(80 + 2 * p, 2)))
        for r in range(16): k('v_rcp_f32 v%d, v%d' % (80 + r, 80 + r))
        for p in range(8): k('v_pk_mul_f32 %s, %s, %s' % (v(A_ + 2 * p, 2), v(A_ + 2 * p, 2), v(80 + 2 * p, 2)))
        O = 96 + 8 * j
        for p in range(8): k('v_cvt_pk_bf16_f32 v%d, v%d, v%d' % (O + p, A_ + 2 * p, A_ + 2 * p + 1))
        k.vm('global_store_dwordx4 v%d, %s, s[68:69]' % (8 + j, v(O, 4)))
        k.vm('global_store_dwordx4 v%d, %s, s[68:69] offset:1024' % (8 + j, v(O + 4, 4)))
    k('L_k3_end:')
    k('s_endpgm')
    return k, 'grid=(224,1,1) block=(256,1,1) lds=%d' % (131072 + 2048), (192 + 128, 80, 192)

def gen_k4():
    k = Kern('k4_gemm2_kernel')
    k('s_load_dwordx2 s[48:49], s[0:1], 128')
    k('s_load_dwordx2 s[44:45], s[0:1], 112')
    k('s_cmp_ge_u32 s2, 256')
    k('s_cbranch_scc1 L_k4_end')
    wave_id(k, 50, 1)
    k('v_and_b32 v1, 63, v0')
    k('v_lshlrev_b32 v2, 4, v1')
    k('s_and_b32 s51, s2, 7')
    k('s_lshl_b32 s51, s51, 2')
    k('s_lshr_b32 s52, s2, 6')
    k('s_add_u32 s51, s51, s52')
    k('s_bfe_u32 s52, s2, 0x30003')
    k('s_lshr_b32 s53, s50, 1')
    k('s_and_b32 s54, s50, 1')
    k('s_mul_i32 s55, s53, 114688')
    k('v_add_u32 v4, s55, v2')
    k('s_sub_u32 s55, 114688, s55')
    k('v_add_u32 v5, s55, v2')
    k('s_mul_i32 s55, s54, 114688')
    k('v_add_u32 v6, s55, v2')
    k('s_sub_u32 s55, 114688, s55')
    k('v_add_u32 v7, s55, v2')
    k('s_mul_i32 s55, s50, %d' % (28 * 1024))
    k('s_mul_i32 s56, s52, %d' % (2 * 114688))
    k('s_add_u32 s56, s56, s55')
    k('s_mul_i32 s57, s51, %d' % (2 * 114688))
    k('s_add_u32 s57, s57, s55')
    k.smem_wait()
    ws_ptr(k, 58, WS_W2P, 56)
    ws_ptr(k, 60, WS_HID, 57)
    NS = 15
    tok = {}
    def issue(s_):
        b = 16 * (s_ % NS)
        off = (s_ & 3) * 1024
        k.vm('global_load_dwordx4 %s, v4, s[58:59] offset:%d' % (a(b, 4), off))
        k.vm('global_load_dwordx4 %s, v6, s[60:61] offset:%d' % (a(b + 8, 4), off))
        k.vm('global_load_dwordx4 %s, v5, s[58:59] offset:%d' % (a(b + 4, 4), off))
        tok[s_] = k.vm('global_load_dwordx4 %s, v7, s[60:61] offset:%d' % (a(b + 12, 4), off))
        if (s_ & 3) == 3 and s_ < 27:
            k('s_add_u32 s58, s58, 4096\ns_addc_u32 s59, s59, 0')
            k('s_add_u32 s60, s60, 4096\ns_addc_u32 s61, s61, 0')
    for s_ in range(NS): issue(s_)
    k('v_lshrrev_b32 v8, 5, v1')
    k('v_and_b32 v9, 31, v1')
    k('v_lshlrev_b32 v10, 8, v8')
    k('v_lshl_add_u32 v10, v9, 1, v10')
    k('v_lshlrev_b32 v11, 4, v8')
    k('v_lshl_add_u32 v12, v9, 10, v11')
    k('s_lshl_b32 s62, s51, 1')
    k('s_add_u32 s62, s62, s54')
    k('s_lshl_b32 s63, s52, 1')
    k('s_add_u32 s63, s63, s53')
    k('s_lshl_b32 s64, s62, 15')
    k('s_lshl_b32 s65, s63, 11')
    k('s_add_u32 s65, s65, s64')
    ws_ptr(k, 66, WS_X1T, 65)
    k('s_lshl_b32 s65, s63, 7')
    ws_ptr(k, 68, WS_MODF + 2560 * 4, 65)
    k('s_lshl_b32 s65, s63, 6')
    k('s_add_u32 s65, s65, s64')
    add_ptr(k, 70, 44, 65)
    for j in range(1, 4):
        k('s_xor_b32 s72, s50, %d' % j)
        k('s_mul_i32 s72, s72, 12288')
        k('v_add_u32 v%d, s72, v2' % (12 + j))
    k('s_mul_i32 s72, s50, 12288')
    k('v_add_u32 v3, s72, v2')
    for r in range(16): k('v_mov_b32 v%d, 0' % (80 + r))
    ACC = 16
    for s_ in range(28):
        k.wait(vm=tok[s_])
        b = 16 * (s_ % NS)
        for j in range(4):
            k('v_mfma_f32_32x32x16_bf16 %s, %s, %s, %s' % (v(ACC + 16 * j, 16), a(b + 4 * (j >> 1), 4), a(b + 8 + 4 * (j & 1), 4), '0' if s_ == 0 else v(ACC + 16 * j, 16)))
        if s_ + NS < 28: issue(s_ + NS)
        if s_ == 13:
            for q in range(4): k.vm('global_load_dwordx4 %s, v11, s[68:69] offset:%d' % (v(96 + 4 * q, 4), 32 * q))
        if 14 <= s_ < 18:
            q = s_ - 14
            for r in range(4): xt = k.vm('global_load_short_d16_hi v%d, v10, s[66:67] offset:%d' % (80 + 4 * q + r, (8 * q + r) * 64))
    for j in range(1, 4):
        for q in range(4):
            k.ds('ds_write_b128 v%d, %s offset:%d' % (12 + j, v(ACC + 16 * j + 4 * q, 4), (j - 1) * 4096 + q * 1024))
    k.wait(vm=xt)
    k('s_mov_b32 s72, %s' % f32(-math.log(2.0)))
    for r in range(16): k('v_mul_f32 v%d, s72, v%d' % (96 + r, 96 + r))
    k.wait_all(vm=False)
    k.barrier()
    rt_ = []
    for j in range(3):
        for q in range(4): t = k.ds('ds_read_b128 %s, v3 offset:%d' % (v(32 + 16 * j + 4 * q, 4), j * 4096 + q * 1024))
        rt_.append(t)
    for j in range(3):
        k.wait(ds=rt_[j])
        for p in range(8): k('v_pk_add_f32 %s, %s, %s' % (v(ACC + 2 * p, 2), v(ACC + 2 * p, 2), v(32 + 16 * j + 2 * p, 2)))
    for p in range(8):
        k('v_pk_fma_f32 %s, %s, %s, %s' % (v(ACC + 2 * p, 2), v(ACC + 2 * p, 2), v(96 + 2 * p, 2), v(80 + 2 * p, 2)))
        k('v_cvt_pk_bf16_f32 v%d, v%d, v%d' % (112 + p, ACC + 2 * p, ACC + 2 * p + 1))
    for qq in range(2):
        b = 112 + 4 * qq
        k('v_permlane32_swap_b32 v%d, v%d' % (b, b + 2))
        k('v_permlane32_swap_b32 v%d, v%d' % (b + 1, b + 3))
        k.vm('global_store_dwordx4 v12, %s, s[70:71] offset:%d' % (v(b, 4), 32 * qq))
    k('L_k4_end:')
    k('s_endpgm')
    return k, 'grid=(256,1,1) block=(256,1,1) lds=49152', (120 + 240, 80, 120)

def kernels(): return [gen_k3(), gen_k4()]
```

```python
import sys, math
sys.path.insert(0, 'work')
from asmlib import *

NAME = 'adaLN_cond__ssm_conv_s4__dense_activation_silu__prompt'
WS_XN = 0x000000; WS_XT = 0x200000; WS_KR = 0x400000; WS_MODF = 0x800000; WS_MODH = 0x804000
WS_C12 = 0x808000; WS_W2P = 0x900000; WS_W1P = 0xB00000; WS_X1T = 0xD00000; WS_HID = 0x1000000
LOG2E = 1.4426950408889634
P_U, P_ARE, P_AIM, P_BRE, P_BIM, P_CRE, P_CIM, P_LDT = 16, 18, 20, 22, 24, 26, 28, 30
P_DSK, P_BX, P_W1, P_W2, P_C, P_WMOD, P_OUT, P_DBG = 32, 34, 36, 38, 40, 42, 44, 46
P_WS = 48

def load_ptrs(k):
    k('s_load_dwordx16 s[16:31], s[0:1], 0')
    k('s_load_dwordx16 s[32:47], s[0:1], 64')
    k('s_load_dwordx2 s[48:49], s[0:1], 128')

def ws_ptr(k, dst, off, extra=None):
    k('s_add_u32 s%d, s48, 0x%x' % (dst, off))
    k('s_addc_u32 s%d, s49, 0' % (dst + 1))
    if extra is not None:
        k('s_add_u32 s%d, s%d, s%d' % (dst, dst, extra))
        k('s_addc_u32 s%d, s%d, 0' % (dst + 1, dst + 1))

def add_ptr(k, dst, src, extra):
    k('s_add_u32 s%d, s%d, s%d' % (dst, src, extra))
    k('s_addc_u32 s%d, s%d, 0' % (dst + 1, src + 1))

def wave_id(k, sdst, vtmp):
    k('v_lshrrev_b32 v%d, 6, v0' % vtmp)
    k('v_readfirstlane_b32 s%d, v%d' % (sdst, vtmp))

def cmul1(k, d, x, z): k('v_pk_mul_f32 %s, %s, %s op_sel:[0,0] op_sel_hi:[1,0]' % (v(d, 2), v(x, 2), v(z, 2)))
def cmul2(k, d, x, z): k('v_pk_fma_f32 %s, %s, %s, %s op_sel:[1,1,0] op_sel_hi:[0,1,1] neg_lo:[1,0,0]' % (v(d, 2), v(x, 2), v(z, 2), v(d, 2)))

K1_KGEN, K1_STATS, K1_MOD, K1_W2P = 256, 64, 96, 56
K1_LDS = 81920

def k1_kgen(k):
    k.reset_counters()
    wave_id(k, 50, 1)
    k('v_and_b32 v1, 63, v0')
    k('s_lshl_b32 s51, s2, 9')
    k('v_lshl_add_u32 v2, v0, 1, s51')
    for i in range(4, 11): k('v_mov_b32 v%d, 0' % i)
    k('s_lshr_b32 s52, s50, 1')
    k('s_lshl_b32 s53, s2, 1')
    k('s_add_u32 s53, s53, s52')
    k('s_lshl_b32 s54, s53, 1')
    k('v_mov_b32 v3, s54')
    k.smem_wait()
    toks = []
    toks.append(k.vm('global_load_short_d16_hi v10, v3, s[%d:%d]' % (P_LDT, P_LDT + 1)))
    for i, p in enumerate((P_ARE, P_AIM, P_BRE, P_BIM, P_CRE, P_CIM)):
        toks.append(k.vm('global_load_short_d16_hi v%d, v2, s[%d:%d]' % (4 + i, p, p + 1)))
    k('v_mov_b32 v12, 0\nv_mov_b32 v13, 0\nv_mov_b32 v14, 0\nv_mov_b32 v15, 0')
    k('v_lshlrev_b32 v11, 4, v0')
    k('v_add_u32 v11, 0x10000, v11')
    for i in range(4): k.ds('ds_write_b128 v11, v[12:15] offset:%d' % (i * 4096))
    k('s_lshl_b32 s55, s50, 14')
    k('v_lshl_add_u32 v16, v1, 2, s55')
    for r in range(1, 16): k('v_xor_b32 v%d, %d, v16' % (16 + r, r << 4))
    k('v_and_b32 v40, 31, v1')
    k('v_lshrrev_b32 v41, 5, v1')
    k('v_and_b32 v42, 15, v1')
    k('v_xor_b32 v42, v42, v41')
    k('v_lshlrev_b32 v42, 4, v42')
    k('v_lshl_add_u32 v42, v40, 8, v42')
    k('v_add_u32 v32, s55, v42')
    for ks in range(1, 8): k('v_xor_b32 v%d, %d, v32' % (32 + ks, ks << 5))
    k('s_mul_i32 s56, s52, 6912')
    k('s_add_u32 s56, s56, %d' % (65536 - 0x3F00 * 4))
    k('v_lshlrev_b32 v42, 3, v40')
    k('v_cvt_f32_u32 v42, v42')
    k('v_cvt_f32_u32 v43, v41')
    c0 = [0, 1, 2, 3, 256, 258, 260, 262]
    c1 = [4, 5, 6, 7, 512, 516, 768, 772]
    for r in range(8):
        k('v_fmamk_f32 v56, v43, %s, v42' % f32(c1[r] - c0[r]))
        if c0[r]: k('v_add_f32 v56, %s, v56' % f32(c0[r]))
        else: k('v_max_f32 v56, 0.5, v56')
        k('v_cvt_pk_bf16_f32 v56, v56, 0')
        k('v_lshl_add_u32 v%d, v56, 2, s56' % (44 + r))
    k('v_cmp_eq_u32 vcc, 32, v1')
    k('v_mov_b32 v57, %s' % f32(4096.0))
    k('v_mov_b32 v58, %s' % f32(2048.0))
    k('v_cndmask_b32 v58, v57, v58, vcc')
    k('v_cmp_lt_u32 vcc, 31, v1')
    for r in range(8, 12):
        k('v_add_f32 v56, %s, v42' % f32(1024 + 256 * (r - 8)))
        k('v_cndmask_b32 v56, v56, v%d, vcc' % (58 if r == 8 else 57))
        k('v_cvt_pk_bf16_f32 v56, v56, 0')
        k('v_lshl_add_u32 v%d, v56, 2, s56' % (44 + r))
    k('v_and_b32 v59, 127, v0')
    k('v_lshlrev_b32 v56, 4, v59')
    k('v_sub_u32 v56, 2047, v56')
    k('v_cvt_f32_u32 v57, v56')
    for i in range(17):
        if i: k('v_add_f32 v56, %s, v57' % f32(-float(i)))
        else: k('v_mov_b32 v56, v57')
        if i >= 15: k('v_max_f32 v56, 0.5, v56')
        k('v_cvt_pk_bf16_f32 v56, v56, 0')
        k('v_lshl_add_u32 v%d, v56, 2, s56' % (60 + i))
    k('s_mov_b32 s57, 0x07060302')
    k('s_mov_b32 s58, 0xffff0000')
    k('s_mov_b32 s59, %s' % f32(LOG2E))
    lo_log2e = LOG2E - struct.unpack('<f', struct.pack('<f', LOG2E))[0]
    inv2pi = 1.0 / (2 * math.pi)
    inv2pi_f = struct.unpack('<f', struct.pack('<f', inv2pi))[0]
    k('s_mov_b32 s60, %s' % f32(inv2pi_f))
    k('s_mov_b32 s61, %s' % f32(inv2pi - inv2pi_f))
    k('s_mov_b32 s62, %s' % f32(lo_log2e))
    k.wait(vm=toks[0])
    k('v_mul_f32 v78, s59, v10')
    k('v_fma_f32 v79, v10, s59, -v78')
    k('v_fma_f32 v79, v10, s62, v79')
    k('v_exp_f32 v78, v78')
    k('v_mul_f32 v79, %s, v79' % f32(math.log(2.0)))
    k('v_fma_f32 v78, v78, v79, v78')
    k('v_cvt_pk_bf16_f32 v78, v78, v78')
    k('v_and_b32 v78, s58, v78')
    k.wait(vm=toks[-1])
    k('v_mul_f32 v4, v78, v4')
    k('v_mul_f32 v5, v78, v5')
    k('v_mul_f32 v6, v78, v6')
    k('v_mul_f32 v7, v78, v7')
    E0 = 96
    cmul1(k, E0, 8, 6); cmul2(k, E0, 8, 6)
    k('v_mul_f32 v4, s59, v4')
    Z1, Z256, Z8, Z128 = 80, 82, 84, 86
    def zpow(dst, p, conj, t):
        pf = f32(float(p))
        k('v_mul_f32 v%d, %s, v4' % (t, pf))
        k('v_mul_f32 v%d, %s, v5' % (t + 1, pf))
        k('v_exp_f32 v%d, v%d' % (t, t))
        k('v_mul_f32 v%d, s60, v%d' % (t + 2, t + 1))
        k('v_fma_f32 v%d, v%d, s60, -v%d' % (t + 3, t + 1, t + 2))
        k('v_fma_f32 v%d, v%d, s61, v%d' % (t + 3, t + 1, t + 3))
        k('v_fract_f32 v%d, v%d' % (t + 2, t + 2))
        k('v_add_f32 v%d, v%d, v%d' % (t + 2, t + 2, t + 3))
        k('v_cos_f32 v%d, v%d' % (t + 3, t + 2))
        k('v_sin_f32 v%d, v%d' % (t + 2, t + 2))
        k('v_mul_f32 v%d, v%d, v%d' % (dst, t, t + 3))
        k('v_mul_f32 v%d, v%d, %sv%d' % (dst + 1, t, '-' if conj else '', t + 2))
    zpow(Z1, 1, False, 88); zpow(Z256, 256, False, 92); zpow(Z8, 8, True, 88); zpow(Z128, 128, True, 92)
    T0 = 140
    def split_a(e, i):
        t = T0 + 6 * (i & 1)
        k('v_perm_b32 v%d, v%d, v%d, s57' % (t + 4, e + 1, e))
        k('v_and_b32 v%d, s58, v%d' % (t, e))
        k('v_and_b32 v%d, s58, v%d' % (t + 1, e + 1))
    def split_b(e, i, row):
        t = T0 + 6 * (i & 1)
        k('v_pk_add_f32 %s, %s, %s neg_lo:[0,1] neg_hi:[0,1]' % (v(t + 2, 2), v(e, 2), v(t, 2)))
        k('v_cvt_pk_bf16_f32 v%d, v%d, v%d' % (t + 5, t + 2, t + 3))
        return k.ds('ds_write2st64_b32 v%d, v%d, v%d offset0:%d offset1:%d' % (16 + (row & 15), t + 4, t + 5, row, 32 + row))
    hi = {r: (r - 1, Z1) for r in range(1, 8)}
    hi.update({8: (0, Z256), 9: (2, Z256), 10: (4, Z256), 11: (6, Z256), 12: (8, Z256), 13: (10, Z256), 14: (12, Z256), 15: (13, Z256),
               16: (14, Z256), 17: (16, Z256), 18: (17, Z256), 19: (18, Z256), 20: (19, Z256)})
    order = [0, 1, 8, 2, 12, 3, 14, 4, 16, 5, 17, 6, 18, 7, 19, 9, 20, 10, 11, 13, 15]
    for i, r in enumerate(order):
        nxt = order[i + 1] if i + 1 < len(order) else None
        if nxt is not None: cmul1(k, E0 + 2 * nxt, E0 + 2 * hi[nxt][0], hi[nxt][1])
        split_a(E0 + 2 * r, i)
        if nxt is not None: cmul2(k, E0 + 2 * nxt, E0 + 2 * hi[nxt][0], hi[nxt][1])
        split_b(E0 + 2 * r, i, r)
    AH, AL = 160, 192
    for ks in range(8):
        k.ds('ds_read_b128 %s, v%d' % (v(AH + 4 * ks, 4), 32 + ks))
        k.ds('ds_read_b128 %s, v%d offset:8192' % (v(AL + 4 * ks, 4), 32 + ks))
    L0 = 96
    k('v_mov_b32 v%d, 1.0' % L0)
    k('v_mov_b32 v%d, 0' % (L0 + 1))
    lo_order = []
    for m in range(16): lo_order += [m, 16 + m]
    def lreg(m): return L0 + 2 * m if m < 16 else 128 + 2 * (m & 1)
    def lsrc(m): return (lreg(m - 1), Z8) if m < 16 else (lreg(m - 16), Z128)
    for i, m in enumerate(lo_order):
        nxt = lo_order[i + 1] if i + 1 < len(lo_order) else None
        if nxt is not None: cmul1(k, lreg(nxt), *lsrc(nxt))
        split_a(lreg(m), i)
        if nxt is not None: cmul2(k, lreg(nxt), *lsrc(nxt))
        split_b(lreg(m), i, m)
    k.barrier_after_zero = True
    ACC = 224
    bt = []
    k.wait_all(vm=False, ds=True)
    k.barrier()
    for ks in range(8):
        k.ds('ds_read_b128 %s, v%d' % (v(96 + 8 * ks, 4), 32 + ks))
        bt.append(k.ds('ds_read_b128 %s, v%d offset:8192' % (v(100 + 8 * ks, 4), 32 + ks)))
    for ks in range(8):
        k.wait(ds=bt[ks])
        c = '0' if ks == 0 else v(ACC, 16)
        k('v_mfma_f32_32x32x16_bf16 %s, %s, %s, %s' % (v(ACC, 16), v(AH + 4 * ks, 4), v(96 + 8 * ks, 4), c))
        k('v_mfma_f32_32x32x16_bf16 %s, %s, %s, %s' % (v(ACC, 16), v(AH + 4 * ks, 4), v(100 + 8 * ks, 4), v(ACC, 16)))
        k('v_mfma_f32_32x32x16_bf16 %s, %s, %s, %s' % (v(ACC, 16), v(AL + 4 * ks, 4), v(96 + 8 * ks, 4), v(ACC, 16)))
    for r in range(12): k.ds('ds_add_f32 v%d, v%d' % (44 + r, ACC + r))
    k('s_lshl_b32 s54, s53, 13')
    ws_ptr(k, 64, WS_KR, 54)
    k('v_lshlrev_b32 v2, 5, v59')
    k('v_cmp_eq_u32 vcc, 127, v59')
    k.wait_all(vm=False, ds=True)
    k.barrier()
    G = 96
    gt = [k.ds('ds_read_b32 v%d, v%d' % (G + i, 60 + i)) for i in range(17)]
    k.wait(ds=gt[-1])
    k('v_cndmask_b32 v%d, v%d, v12, vcc' % (G + 16, G + 16))
    for i in range(8): k('v_cvt_pk_bf16_f32 v%d, v%d, v%d' % (120 + i, G + 2 * i, G + 2 * i + 1))
    for i in range(8): k('v_cvt_pk_bf16_f32 v%d, v%d, v%d' % (128 + i, G + 2 * i + 1, G + 2 * i + 2))
    k('v_add_u32 v3, 0x1000, v2')
    k.vm('global_store_dwordx4 v2, v[120:123], s[64:65]')
    k.vm('global_store_dwordx4 v2, v[124:127], s[64:65] offset:16')
    k.vm('global_store_dwordx4 v3, v[128:131], s[64:65]')
    k.vm('global_store_dwordx4 v3, v[132:135], s[64:65] offset:16')
    k('s_endpgm')

def k1_stats(k):
    k.reset_counters()
    k('s_sub_u32 s51, s2, %d' % K1_KGEN)
    k('s_lshl_b32 s52, s51, 15')
    k('v_lshrrev_b32 v1, 3, v0')
    k('v_and_b32 v2, 7, v0')
    k('v_lshlrev_b32 v2, 4, v2')
    k('v_lshl_add_u32 v3, v1, 10, v2')
    k.smem_wait()
    add_ptr(k, 54, P_U, 52)
    X = 16
    t = [k.vm('global_load_dwordx4 %s, v3, s[54:55] offset:%d' % (v(X + 4 * i, 4), 128 * i)) for i in range(8)]
    k('v_and_b32 v4, 3, v1')
    k('v_bfe_u32 v5, v1, 3, 1')
    k('v_lshl_or_b32 v4, v5, 2, v4')
    k('v_lshlrev_b32 v4, 5, v4')
    k('v_xor_b32 v5, v3, v4')
    k('v_xor_b32 v6, 0x80, v5')
    wave_id(k, 50, 7)
    k('v_and_b32 v7, 63, v0')
    k('v_and_b32 v8, 15, v7')
    k('v_lshrrev_b32 v9, 4, v7')
    k('v_lshrrev_b32 v10, 2, v8')
    k('v_lshl_add_u32 v11, v9, 3, v10')
    k('v_and_b32 v12, 1, v9')
    k('v_lshl_or_b32 v12, v12, 2, v10')
    k('v_lshlrev_b32 v12, 5, v12')
    k('v_and_b32 v13, 3, v8')
    k('v_lshlrev_b32 v13, 3, v13')
    k('v_lshl_add_u32 v13, v11, 10, v13')
    k('s_lshl_b32 s53, s50, 8')
    k('v_add_u32 v13, s53, v13')
    k('v_xor_b32 v13, v13, v12')
    k('v_lshlrev_b32 v14, 6, v8')
    k('v_lshl_add_u32 v14, v9, 4, v14')
    k('s_lshl_b32 s53, s50, 13')
    k('v_add_u32 v14, s53, v14')
    ws_ptr(k, 56, WS_XN, 52)
    ws_ptr(k, 58, WS_XT, 52)
    k('s_mov_b32 s60, 0x3f803f80')
    k('s_mov_b32 s61, 0xffff0000')
    for i in range(4): k('v_mov_b32 v%d, 0' % (48 + i))
    for i in range(8):
        k.wait(vm=t[i])
        k.ds('ds_write_b128 v%d, %s offset:%d' % (5 + (i & 1), v(X + 4 * i, 4), 32768 + (i >> 1) * 256))
        for j in range(4):
            r = X + 4 * i + j
            k('v_dot2c_f32_bf16 v%d, s60, v%d' % (48 + (j & 1), r))
            k('v_dot2c_f32_bf16 v%d, v%d, v%d' % (50 + (j & 1), r, r))
    k('v_add_f32 v48, v48, v49')
    k('v_add_f32 v50, v50, v51')
    for pat in ('quad_perm:[1,0,3,2]', 'quad_perm:[2,3,0,1]', 'row_half_mirror'):
        k('v_add_f32_dpp v48, v48, v48 %s row_mask:0xf bank_mask:0xf' % pat)
        k('v_add_f32_dpp v50, v50, v50 %s row_mask:0xf bank_mask:0xf' % pat)
    k('v_mul_f32 v48, %s, v48' % f32(1.0 / 512))
    k('v_mul_f32 v50, %s, v50' % f32(1.0 / 512))
    k('v_fma_f32 v50, -v48, v48, v50')
    k('v_max_f32 v50, 0, v50')
    k('v_add_f32 v50, %s, v50' % f32(1e-5))
    k('v_rsq_f32 v52, v50')
    k('v_mul_f32 v53, v48, v52')
    for i in range(8):
        for j in range(4):
            r = X + 4 * i + j
            tt = 56 + 2 * (j & 1)
            k('v_lshlrev_b32 v%d, 16, v%d' % (tt, r))
            k('v_and_b32 v%d, s61, v%d' % (tt + 1, r))
            k('v_pk_fma_f32 %s, %s, v[52:53], v[52:53] op_sel:[0,0,1] op_sel_hi:[1,0,1] neg_lo:[0,0,1] neg_hi:[0,0,1]' % (v(tt, 2), v(tt, 2)))
            k('v_cvt_pk_bf16_f32 v%d, v%d, v%d' % (64 + 4 * i + j, tt, tt + 1))
        k.ds('ds_write_b128 v%d, %s offset:%d' % (5 + (i & 1), v(64 + 4 * i, 4), (i >> 1) * 256))
    for j in range(1, 8): k('v_xor_b32 v%d, %d, v13' % (100 + j, j << 5))
    k('v_mov_b32 v100, v13')
    k.wait_all(vm=False, ds=True)
    k.barrier()
    toks = []
    for arr in range(2):
        for j in range(8):
            d = 16 + 4 * (8 * arr + j)
            k.ds('ds_read_b64_tr_b16 %s, v%d offset:%d' % (v(d, 2), 100 + j, 32768 * arr))
            toks.append(k.ds('ds_read_b64_tr_b16 %s, v%d offset:%d' % (v(d + 2, 2), 100 + j, 32768 * arr + 4096)))
    k('v_add_u32 v15, 0x1000, v14')
    for arr in range(2):
        for j in range(8):
            d = 16 + 4 * (8 * arr + j)
            k.wait(ds=toks[8 * arr + j])
            k.vm('global_store_dwordx4 v%d, %s, s[%d:%d] offset:%d' % (14 + (j >> 2), v(d, 4), 56 + 2 * arr, 57 + 2 * arr, (j & 3) * 1024))
    k('s_endpgm')

def tr_addr32(k, dst, vlane, t1, t2, rowstride_log2, h_rows):
    k('v_lshrrev_b32 v%d, 5, v%d' % (t1, vlane))
    k('v_mul_u32_u24 v%d, %d, v%d' % (t1, h_rows, t1))
    k('v_bfe_u32 v%d, v%d, 2, 2' % (t2, vlane))
    k('v_add_u32 v%d, v%d, v%d' % (t1, t1, t2))
    k('v_lshlrev_b32 v%d, %d, v%d' % (dst, rowstride_log2, t1))
    k('v_bfe_u32 v%d, v%d, 4, 1' % (t1, vlane))
    k('v_lshl_add_u32 v%d, v%d, 5, v%d' % (dst, t1, dst))
    k('v_and_b32 v%d, 3, v%d' % (t1, vlane))
    k('v_lshl_add_u32 v%d, v%d, 3, v%d' % (dst, t1, dst))

def k1_mod(k):
    k.reset_counters()
    k('s_sub_u32 s51, s2, %d' % (K1_KGEN + K1_STATS))
    wave_id(k, 50, 1)
    k('v_and_b32 v1, 63, v0')
    k('v_lshrrev_b32 v2, 2, v1')
    k('v_mul_u32_u24 v2, 6144, v2')
    k('v_and_b32 v3, 3, v1')
    k('v_lshl_add_u32 v2, v3, 4, v2')
    k('s_mul_i32 s52, s50, %d' % (128 * 6144))
    k('s_lshl_b32 s53, s51, 6')
    k('s_add_u32 s52, s52, s53')
    k('s_lshl_b32 s54, s50, 13')
    k('v_lshlrev_b32 v4, 2, v0')
    k.smem_wait()
    tc = k.vm('global_load_dword v5, v4, s[%d:%d]' % (P_C, P_C + 1))
    add_ptr(k, 56, P_WMOD, 52)
    for i in range(8):
        k('s_add_u32 m0, s54, %d' % (i * 1024))
        tw = k.vm('global_load_lds_dwordx4 v2, s[56:57]')
        if i < 7:
            k('s_add_u32 s56, s56, %d' % (16 * 6144))
            k('s_addc_u32 s57, s57, 0')
    tr_addr32(k, 10, 1, 11, 12, 6, 8)
    k('v_add_u32 v10, s54, v10')
    k('v_lshrrev_b32 v11, 5, v1')
    k('v_lshlrev_b32 v11, 4, v11')
    k('s_lshl_b32 s55, s50, 8')
    k('v_add_u32 v11, s55, v11')
    k.wait(vm=tc)
    k('v_lshlrev_b32 v6, 16, v5')
    k('v_and_b32 v7, 0xffff0000, v5')
    for r in (6, 7):
        k('v_mul_f32 v%d, %s, v%d' % (r + 2, f32(-LOG2E), r))
        k('v_exp_f32 v%d, v%d' % (r + 2, r + 2))
        k('v_add_f32 v%d, 1.0, v%d' % (r + 2, r + 2))
        k('v_rcp_f32 v%d, v%d' % (r + 2, r + 2))
        k('v_mul_f32 v%d, v%d, v%d' % (r, r, r + 2))
    k('v_cvt_pk_bf16_f32 v6, v6, v7')
    k.ds('ds_write_b32 v4, v6 offset:32768')
    st = [k.ds('ds_read_b128 %s, v11 offset:%d' % (v(16 + 4 * ks, 4), 32768 + 32 * ks)) for ks in range(8)]
    k.wait(vm=tw)
    wt = []
    for ks in range(8):
        k.ds('ds_read_b64_tr_b16 %s, v10 offset:%d' % (v(48 + 4 * ks, 2), ks * 1024))
        wt.append(k.ds('ds_read_b64_tr_b16 %s, v10 offset:%d' % (v(50 + 4 * ks, 2), ks * 1024 + 256)))
    for ks in range(8):
        k.wait(ds=wt[ks])
        k('v_mfma_f32_32x32x16_bf16 v[80:95], %s, %s, %s' % (v(16 + 4 * ks, 4), v(48 + 4 * ks, 4), '0' if ks == 0 else 'v[80:95]'))
    k.ds('ds_write_b32 v4, v80 offset:36864')
    k.wait_all(vm=False)
    k.barrier()
    k('s_cmp_lg_u32 s50, 0')
    k('s_cbranch_scc1 L_k1_end')
    rt = [k.ds('ds_read_b32 v%d, v4 offset:%d' % (16 + i, 36864 + 256 * i)) for i in range(4)]
    k('s_lshr_b32 s55, s51, 4')
    k('s_cmp_eq_u32 s55, 1')
    k('s_cselect_b32 s60, 1.0, 0')
    k('s_cmp_eq_u32 s55, 4')
    k('s_cselect_b32 s60, 1.0, s60')
    k('s_lshl_b32 s52, s51, 7')
    ws_ptr(k, 62, WS_MODF, 52)
    ws_ptr(k, 64, WS_MODH, 53)
    k('v_lshlrev_b32 v8, 1, v0')
    k.wait(ds=rt[-1])
    k('v_add_f32 v16, v16, v17')
    k('v_add_f32 v18, v18, v19')
    k('v_add_f32 v16, v16, v18')
    k('v_cvt_pk_bf16_f32 v16, v16, v16')
    k('v_and_b32 v16, 0xffff0000, v16')
    k('v_add_f32 v16, s60, v16')
    k('v_cvt_pk_bf16_f32 v16, v16, v16')
    k('v_and_b32 v17, 0xffff0000, v16')
    k('v_cmp_gt_u32 vcc, 32, v0')
    k('s_and_saveexec_b64 s[66:67], vcc')
    k.vm('global_store_dword v4, v17, s[62:63]')
    k.vm('global_store_short v8, v16, s[64:65]')
    k('s_endpgm')

def k1_w2p(k):
    k.reset_counters()
    k('s_sub_u32 s51, s2, %d' % (K1_KGEN + K1_STATS + K1_MOD))
    wave_id(k, 50, 1)
    k('v_and_b32 v1, 63, v0')
    for r in range(4):
        k('v_xor_b32 v%d, %d, v1' % (2 + r, r << 2))
        k('v_lshlrev_b32 v%d, 4, v%d' % (2 + r, 2 + r))
    k('s_lshl_b32 s52, s51, 15')
    k('s_lshl_b32 s53, s50, 13')
    k('s_add_u32 s52, s52, s53')
    k.smem_wait()
    add_ptr(k, 56, P_W2, 52)
    k('s_add_u32 s58, s56, 4096')
    k('s_addc_u32 s59, s57, 0')
    for half in range(2):
        k('s_add_u32 m0, s53, %d' % (half * 4096))
        for r in range(4):
            k.vm('global_load_lds_dwordx4 v%d, s[%d:%d] offset:%d' % (2 + r, 56 + 2 * half, 57 + 2 * half, r * 1024))
    tr_addr32(k, 10, 1, 11, 12, 10, 4)
    k('s_lshl_b32 s54, s50, 8')
    k('v_add_u32 v10, s54, v10')
    k('v_bfe_u32 v11, v1, 2, 2')
    k('v_lshlrev_b32 v11, 6, v11')
    k('v_xor_b32 v10, v10, v11')
    for q in range(1, 4): k('v_xor_b32 v%d, %d, v10' % (10 + q, q << 6))
    k('s_mul_i32 s54, s50, %d' % (4 * 112 * 1024))
    k('s_lshl_b32 s55, s51, 11')
    k('s_add_u32 s54, s54, s55')
    ws_ptr(k, 60, WS_W2P, 54)
    k('v_lshlrev_b32 v6, 4, v1')
    for q in range(1, 4): k('v_add_u32 v%d, %d, v6' % (6 + q, q * 112 * 1024))
    k.wait_all()
    k.barrier()
    t = []
    for q in range(4):
        for ks in range(2):
            d = 16 + 4 * (2 * q + ks)
            k.ds('ds_read_b64_tr_b16 %s, v%d offset:%d' % (v(d, 2), 10 + q, ks * 16384))
            t.append(k.ds('ds_read_b64_tr_b16 %s, v%d offset:%d' % (v(d + 2, 2), 10 + q, ks * 16384 + 8192)))
    for q in range(4):
        for ks in range(2):
            d = 16 + 4 * (2 * q + ks)
            k.wait(ds=t[2 * q + ks])
            k.vm('global_store_dwordx4 v%d, %s, s[60:61] offset:%d' % (6 + q, v(d, 4), ks * 1024))
    k('s_endpgm')

def gen_k1():
    k = Kern('k1_prep_kernel')
    load_ptrs(k)
    k('s_cmp_lt_u32 s2, %d' % K1_KGEN)
    k('s_cbranch_scc1 L_k1_kgen')
    k('s_cmp_lt_u32 s2, %d' % (K1_KGEN + K1_STATS))
    k('s_cbranch_scc1 L_k1_stats')
    k('s_cmp_lt_u32 s2, %d' % (K1_KGEN + K1_STATS + K1_MOD))
    k('s_cbranch_scc1 L_k1_mod')
    k('s_cmp_lt_u32 s2, %d' % (K1_KGEN + K1_STATS + K1_MOD + K1_W2P))
    k('s_cbranch_scc1 L_k1_w2p')
    k('L_k1_end:')
    k('s_endpgm')
    k('L_k1_kgen:'); k1_kgen(k)
    k('L_k1_stats:'); k1_stats(k)
    k('L_k1_mod:'); k1_mod(k)
    k('L_k1_w2p:'); k1_w2p(k)
    grid = K1_KGEN + K1_STATS + K1_MOD + K1_W2P
    return k, 'grid=(%d,1,1) block=(256,1,1) lds=%d' % (grid, K1_LDS), (240, 72, 240)

HEADER = open('cdna_kernels/%s.s.ref' % NAME).read().split('; Override launch')[0]

def build(kernels, path):
    out = [HEADER.rstrip()]
    for k, launch, _ in kernels: out.append('; @launch kernel=%s %s' % (k.name, launch))
    out.append('.amdgcn_target "amdgcn-amd-amdhsa--gfx950"')
    for k, launch, (vg_, sg_, ac) in kernels:
        out.append(k.text(vg_, sg_, ac))
        print(k.name, 'maxv,maxa,maxs,lines', k.stats)
    open(path, 'w').write('\n'.join(out) + '\n')

if __name__ == '__main__':
    import gen2
    build(gen2.all_kernels(), 'cdna_kernels/%s.s' % NAME)
```

```python
import re, os
DIAG = int(os.environ.get('DIAG', '0'))

REG_RE = re.compile(r'^(-|abs\()?\|?([vas])(?:(\d+)|\[(\d+):(\d+)\])\|?\)?$')
TRANS = ('v_exp_f32', 'v_log_f32', 'v_rcp_f32', 'v_rsq_f32', 'v_sqrt_f32', 'v_sin_f32', 'v_cos_f32')

def regs_of(tok):
    tok = tok.strip()
    if tok in ('vcc',): return {('s', 106), ('s', 107)}
    if tok == 'vcc_lo': return {('s', 106)}
    if tok == 'exec': return {('s', 126), ('s', 127)}
    if tok == 'm0': return {('s', 124)}
    m = REG_RE.match(tok)
    if not m: return set()
    f = m.group(2)
    if m.group(3) is not None: return {(f, int(m.group(3)))}
    return {(f, i) for i in range(int(m.group(4)), int(m.group(5)) + 1)}

def split_ops(s):
    ops, depth, cur = [], 0, ''
    for ch in s:
        if ch in '[(': depth += 1
        if ch in '])': depth -= 1
        if ch == ',' and depth == 0:
            ops.append(cur.strip()); cur = ''
        else: cur += ch
    if cur.strip(): ops.append(cur.strip())
    return ops

class Ins:
    def __init__(self, text):
        self.text = text
        t = text.split(';')[0].strip()
        parts = t.split(None, 1)
        self.mn = parts[0]
        rest = parts[1] if len(parts) > 1 else ''
        ops = split_ops(rest)
        mods = ''
        if ops:
            lp = ops[-1].split(None, 1)
            if len(lp) > 1 and not lp[0].endswith(':'):
                ops[-1] = lp[0]; mods = lp[1]
        self.ops, self.mods = ops, mods
        mn = self.mn
        self.mfma = mn.startswith('v_mfma')
        self.valu = mn.startswith('v_') and not self.mfma
        self.trans = any(mn.startswith(x) for x in TRANS)
        self.dot = mn.startswith('v_dot')
        self.vmem = mn.startswith('buffer_') or mn.startswith('global_')
        self.ds = mn.startswith('ds_')
        self.salu = mn.startswith('s_')
        self.dpp = '_dpp' in mn or 'quad_perm' in mods or 'row_' in mods
        self.perml = mn.startswith('v_permlane')
        self.rdlane = mn.startswith('v_readfirstlane') or mn.startswith('v_readlane')
        self.ldsdma = self.vmem and (' lds' in (' ' + mods) or '_lds_' in mn)
        self.passes = 0
        R = [regs_of(o) for o in ops]
        w, r = set(), set()
        self.srcc = set(); self.ab = set()
        if self.mfma:
            self.passes = 8 if '32x32x16' in mn else 4 if '16x16x32' in mn else None
            assert self.passes, mn
            w = R[0]; self.ab = R[1] | R[2]; self.srcc = R[3]; r = self.ab | self.srcc
        elif self.valu:
            if self.perml and 'swap' in mn:
                w = R[0] | R[1]; r = R[0] | R[1]
            elif mn.startswith('v_cmp'):
                w = R[0]; r = set().union(*R[1:])
            elif mn.startswith(('v_add_co', 'v_sub_co', 'v_addc_co', 'v_subb_co', 'v_subrev_co')):
                w = R[0] | R[1]; r = set().union(*R[2:])
            else:
                w = R[0]; r = set().union(*R[1:]) if len(R) > 1 else set()
                if mn.startswith(('v_fmac', 'v_dot2c', 'v_pk_fmac', 'v_writelane')) or self.dpp or 'sdwa' in mn: r = r | R[0]
        elif self.ds:
            if mn.startswith(('ds_read', 'ds_bpermute', 'ds_permute', 'ds_swizzle')):
                w = R[0]; r = set().union(*R[1:])
            else:
                r = set().union(*R)
        elif self.vmem:
            if 'load' in mn and not self.ldsdma:
                w = R[0]; r = set().union(*R[1:])
            else:
                r = set().union(*R) if R else set()
            if self.ldsdma: r = r | {('s', 124)}
        elif self.salu:
            if mn.startswith(('s_cmp', 's_cbranch', 's_branch', 's_waitcnt', 's_barrier', 's_nop', 's_endpgm', 's_setprio', 's_sleep', 's_bitcmp')):
                r = set().union(*R) if R else set()
            else:
                w = R[0] if R else set(); r = set().union(*R[1:]) if len(R) > 1 else set()
                if 'saveexec' in mn: w = w | regs_of('exec')
        self.w, self.r = w, r
        if mn.startswith('v_pk_') and 'f32' in mn:
            m_ = re.search(r'op_sel:\[(\d),(\d)', mods)
            assert not (m_ and m_.group(2) == '1' and ops[2].startswith('v')), 'erratum: op_sel[1]=1 on VGPR src1: ' + text
        self.widestore = self.vmem and 'store' in mn and ('x4' in mn or 'x3' in mn)
        self.storedata = set()
        if self.widestore:
            self.storedata = R[0] if mn.startswith('buffer_') else R[1]
        self.states = 1
        if mn == 's_nop': self.states = int(ops[0], 0) + 1

def vg(s): return {x for x in s if x[0] in 'va'}
def sg(s): return {x for x in s if x[0] == 's'}

def need(p, c):
    n = 0
    pw, cw, cr = p.w, c.w, c.r
    if p.valu:
        if c.mfma and vg(pw) & cr: n = max(n, 2)
        if p.trans and (vg(pw) & cr) and not c.trans: n = max(n, 1)
        if sg(pw):
            if (c.valu or c.mfma) and sg(pw) & cr: n = max(n, 4 if c.rdlane else 2)
            if c.vmem and sg(pw) & cr: n = max(n, 5)
            if c.salu and sg(pw) & cr: n = max(n, 1)
        if c.rdlane and vg(pw) & cr: n = max(n, 1)
        if (c.dpp or c.perml) and vg(pw) & cr: n = max(n, 2)
        if p.dot and (vg(pw) & (cr | cw)):
            same = c.mn == p.mn
            if same:
                others = set()
                Rr = [regs_of(o) for o in c.ops]
                others = Rr[1] | Rr[2]
                if vg(pw) & others: n = max(n, 3)
            else: n = max(n, 3)
        if 'sdwa' in p.mn and c.valu and vg(pw) & (cr | cw): n = max(n, 1)
    if p.mfma:
        big = {4: 8, 8: 12}[p.passes]
        if c.mfma:
            if pw & c.ab: n = max(n, big)
            if pw & c.srcc:
                if not (c.srcc == pw and c.passes == p.passes): n = max(n, p.passes + 2)
            elif pw & cw and not (cw == pw and c.passes == p.passes): n = max(n, p.passes + 2)
        elif c.valu or c.vmem or c.ds:
            if pw & (cr | cw): n = max(n, big)
        if c.valu and p.srcc & cw: n = max(n, p.passes - 1)
        if (c.vmem or c.ds) and p.srcc & cw: n = max(n, p.passes - 1)
    if p.salu and ('s', 124) in pw and (c.ldsdma): n = max(n, 1)
    if p.widestore and p.storedata & cw: n = max(n, 2)
    return n

def fix_hazards(lines):
    out = []
    hist = []
    for ln in lines:
        s = ln.split(';')[0].strip()
        if not s or s.startswith('.') :
            out.append(ln); continue
        if s.endswith(':'):
            out.append(ln); continue
        c = Ins(ln)
        dist = 0; pad = 0
        for p in reversed(hist):
            nd = need(p, c)
            if nd > dist: pad = max(pad, nd - dist)
            dist += p.states
            if dist > 20: break
        while pad > 0:
            k = min(pad, 16)
            nop = Ins('s_nop %d' % (k - 1)); out.append('    s_nop %d' % (k - 1)); hist.append(nop); pad -= k
        out.append(ln); hist.append(c)
        if c.mn in ('s_endpgm', 's_branch'): hist = []
        if len(hist) > 40: hist = hist[-30:]
    return out

class Kern:
    def __init__(self, name):
        self.name = name; self.lines = []; self.kidx = int(name[1]) - 1
        if DIAG:
            for i in range(8): self.lines.append('    s_mov_b64 s[%d:%d], 0' % (84 + 2 * i, 85 + 2 * i))
            self.stamp(0)
        self.nvm = 0; self.nds = 0; self.vm_done = 0; self.ds_done = 0
    def __call__(self, s):
        for l in s.split('\n'):
            l = l.strip()
            if not l: continue
            if l.endswith(':') or l.startswith('.'): self.lines.append(l)
            else:
                mn = l.split()[0]
                assert not (mn.startswith('buffer_') or mn.startswith('global_') or mn.startswith('ds_')), 'use vm()/ds(): ' + l
                self.lines.append('    ' + l)
    def stamp(self, i):
        if DIAG: self.lines.append('    s_memrealtime s[%d:%d]' % (84 + 2 * i, 85 + 2 * i))
    def end(self):
        if DIAG:
            L = self.lines
            L.append('    s_waitcnt vmcnt(0) lgkmcnt(0)')
            L.append('    s_memrealtime s[98:99]')
            L.append('    s_mov_b64 exec, -1')
            L.append('    v_lshrrev_b32 v1, 6, v0')
            L.append('    v_lshl_add_u32 v1, s2, 3, v1')
            L.append('    v_lshlrev_b32 v1, 6, v1')
            L.append('    v_add_u32 v1, 0x%x, v1' % (0x4000000 + self.kidx * 0x100000))
            L.append('    s_waitcnt lgkmcnt(0)')
            for i in range(8):
                L.append('    v_mov_b32 v2, s%d' % (84 + 2 * i))
                L.append('    s_nop 1')
                L.append('    global_store_dword v1, v2, s[48:49] offset:%d' % (4 * i))
                L.append('    s_nop 1')
        self.lines.append('    s_endpgm')
    def reset_counters(self):
        self.nvm = self.nds = self.vm_done = self.ds_done = 0
    def vm(self, s):
        self.lines.append('    ' + s); self.nvm += 1; return self.nvm
    def ds(self, s):
        self.lines.append('    ' + s); self.nds += 1; return self.nds
    def wait(self, vm=None, ds=None):
        parts = []
        if vm is not None and vm > self.vm_done:
            n = min(self.nvm - vm, 63); parts.append('vmcnt(%d)' % n); self.vm_done = self.nvm - n
        if ds is not None and ds > self.ds_done:
            n = min(self.nds - ds, 15); parts.append('lgkmcnt(%d)' % n); self.ds_done = self.nds - n
        if parts: self.lines.append('    s_waitcnt ' + ' '.join(parts))
    def wait_all(self, vm=True, ds=True):
        parts = []
        if vm: parts.append('vmcnt(0)'); self.vm_done = self.nvm
        if ds: parts.append('lgkmcnt(0)'); self.ds_done = self.nds
        self.lines.append('    s_waitcnt ' + ' '.join(parts))
    def smem_wait(self):
        self.lines.append('    s_waitcnt lgkmcnt(0)'); self.ds_done = self.nds
    def barrier(self):
        self.lines.append('    s_barrier')
    def text(self, vgpr, sgpr, accum):
        if DIAG: sgpr = 102
        body = fix_hazards(self.lines)
        head = ['.text', '.globl %s' % self.name, '.p2align 8', '.type %s,@function' % self.name, '%s:' % self.name]
        desc = ['.section .rodata,"a"', '.p2align 6', '.amdhsa_kernel %s' % self.name,
                '  .amdhsa_next_free_vgpr %d' % vgpr, '  .amdhsa_next_free_sgpr %d' % sgpr, '  .amdhsa_accum_offset %d' % accum,
                '  .amdhsa_group_segment_fixed_size 0', '  .amdhsa_kernarg_size 136', '  .amdhsa_user_sgpr_count 2',
                '  .amdhsa_user_sgpr_kernarg_segment_ptr 1', '  .amdhsa_system_sgpr_workgroup_id_x 1', '.end_amdhsa_kernel']
        mv = ma = ms = -1
        for ln in body:
            s = ln.split(';')[0].strip()
            if not s or s.startswith('.') or s.endswith(':'): continue
            i = Ins(ln)
            for f, n in i.w | i.r:
                if f == 'v': mv = max(mv, n)
                elif f == 'a': ma = max(ma, n)
                elif n < 102: ms = max(ms, n)
        assert mv < accum, (self.name, mv, accum)
        assert accum + ma + 1 <= vgpr or ma < 0, (self.name, ma, accum, vgpr)
        assert mv < vgpr and ms < sgpr, (self.name, mv, ms)
        self.stats = (mv, ma, ms, len(body))
        return '\n'.join(head + body + desc)

def v(n, c=1): return 'v%d' % n if c == 1 else 'v[%d:%d]' % (n, n + c - 1)
def a(n, c=1): return 'a%d' % n if c == 1 else 'a[%d:%d]' % (n, n + c - 1)
def s(n, c=1): return 's%d' % n if c == 1 else 's[%d:%d]' % (n, n + c - 1)
import struct
def f32(x): return '0x%08x' % struct.unpack('<I', struct.pack('<f', x))[0]
```

```python
from gen import *

K2_CONV, K2_W1P = 256, 56
CH_STRIDE = 21120
K2_LDS = 67584

def k2_conv(k):
    k.reset_counters()
    wave_id(k, 50, 1)
    k('v_and_b32 v1, 63, v0')
    k('s_lshr_b32 s52, s50, 1')
    k('s_and_b32 s53, s50, 1')
    k('s_lshl_b32 s54, s2, 1')
    k('s_add_u32 s54, s54, s52')
    k('s_mul_i32 s55, s52, %d' % CH_STRIDE)
    k('v_lshlrev_b32 v2, 4, v1')
    k('v_lshrrev_b32 v3, 2, v1')
    k('v_lshlrev_b32 v3, 15, v3')
    k('v_and_b32 v4, 3, v1')
    k('v_lshl_add_u32 v3, v4, 4, v3')
    k('s_lshl_b32 s56, s53, 20')
    k('s_lshl_b32 s57, s54, 6')
    k('s_add_u32 s56, s56, s57')
    k('v_add_u32 v4, 0x80000, v3')
    k('v_and_b32 v5, 15, v1')
    k('v_lshrrev_b32 v6, 4, v1')
    k('v_lshrrev_b32 v7, 1, v5')
    k('v_lshlrev_b32 v7, 15, v7')
    k('v_and_b32 v8, 1, v5')
    k('v_lshl_add_u32 v7, v8, 5, v7')
    k('v_lshl_add_u32 v8, v6, 3, v7')
    for j in range(1, 4): k('v_add_u32 v%d, 0x%x, v8' % (8 + j, j * 8 * 32768))
    k('s_lshl_b32 s58, s54, 13')
    k('s_lshl_b32 s59, s53, 12')
    k('s_add_u32 s58, s58, s59')
    k('s_mul_i32 s59, s53, 4160')
    k('s_add_u32 s59, s59, s55')
    k('s_lshl_b32 s72, s54, 2')
    k('s_lshl_b32 s73, s2, 2')
    k.smem_wait()
    ws_ptr(k, 62, WS_XN, 56)
    xt = [k.vm('global_load_dwordx4 %s, v%d, s[62:63]' % (v(16 + 4 * i, 4), 3 + i)) for i in range(2)]
    ws_ptr(k, 70, WS_MODF)
    k('s_load_dword s61, s[70:71], s72')
    k('s_load_dword s60, s[70:71], s72 offset:2048')
    k('s_load_dword s75, s[70:71], s72 offset:4096')
    k('s_load_dword s74, s[%d:%d], s73' % (P_DSK, P_DSK + 1))
    ws_ptr(k, 64, WS_KR, 58)
    k('s_mov_b32 m0, s59')
    for i in range(4): kt = k.vm('global_load_lds_dwordx4 v2, s[64:65] offset:%d' % (i * 1024))
    ws_ptr(k, 66, WS_XT, 56)
    xr = [k.vm('global_load_dwordx2 %s, v%d, s[66:67]' % (v(24 + 2 * j, 2), 8 + j)) for j in range(4)]
    ws_ptr(k, 68, WS_X1T, 56)
    k('v_mov_b32 v12, 0\nv_mov_b32 v13, 0')
    k('s_lshl_b32 s76, s2, 7')
    ws_ptr(k, 76, 0xF00000, 76)
    k('v_and_b32 v14, 31, v1')
    k('v_lshlrev_b32 v14, 2, v14')
    k.vm('global_store_dword v14, v12, s[76:77]')
    k('v_lshl_add_u32 v14, v5, 2, s59')
    k.ds('ds_write_b32 v14, v12 offset:4096')
    k('v_lshl_add_u32 v14, v1, 3, s55')
    k.ds('ds_write_b64 v14, v[12:13] offset:8320')
    k('s_lshl_b32 s76, s53, 11')
    k('s_add_u32 s76, s76, s55')
    k('v_add_u32 v14, s76, v2')
    k('v_lshlrev_b32 v15, 5, v5')
    k('v_lshl_add_u32 v15, v6, 4, v15')
    k('s_lshl_b32 s77, s53, 8')
    k('s_sub_u32 s77, s55, s77')
    k('s_add_u32 s77, s77, %d' % (8320 + 512 - 32 - 192))
    k('v_add_u32 v192, s77, v15')
    k('v_lshlrev_b32 v15, 5, v5')
    k('v_lshl_add_u32 v15, v6, 3, v15')
    k('v_add_u32 v193, s76, v15')
    k('v_lshlrev_b32 v15, 3, v6')
    k('v_sub_u32 v15, v15, v5')
    k('v_add_u32 v15, 15, v15')
    k('v_and_b32 v194, 1, v15')
    k('v_mul_u32_u24 v194, 4160, v194')
    k('v_and_b32 v15, -2, v15')
    k('v_lshl_add_u32 v15, v15, 1, v194')
    k('s_lshl_b32 s77, s53, 8')
    k('s_sub_u32 s77, s55, s77')
    k('s_add_u32 s77, s77, %d' % (2 * (2016 - 256 - 96 - 1536)))
    k('v_add_u32 v197, s77, v15')
    for ip in range(3): k('v_add_u32 v%d, %d, v197' % (194 + ip, 1024 * (3 - ip)))
    k('s_lshl_b32 s77, s53, 12')
    k('s_add_u32 s78, s77, s55')
    k('v_add_u32 v198, s78, v2')
    k('s_xor_b32 s77, s77, 0x1000')
    k('s_add_u32 s78, s77, s55')
    k('v_add_u32 v199, s78, v2')
    k('s_mov_b32 s79, 0xffff0000')
    k.smem_wait()
    k('s_lshl_b32 s77, s74, 16')
    k('s_and_b32 s74, s74, 0xffff0000')
    k('s_cmp_eq_u32 s52, 0')
    k('s_cselect_b32 s74, s77, s74')
    k.stamp(1)
    for i in range(2):
        k.wait(vm=xt[i])
        for j in range(4):
            r = 16 + 4 * i + j
            tt = 200 + 2 * (j & 1)
            k('v_lshlrev_b32 v%d, 16, v%d' % (tt, r))
            k('v_and_b32 v%d, s79, v%d' % (tt + 1, r))
            k('v_pk_fma_f32 %s, %s, s[60:61], s[60:61] op_sel:[0,0,1] op_sel_hi:[1,0,1]' % (v(tt, 2), v(tt, 2)))
            k('v_cvt_pk_bf16_f32 v%d, v%d, v%d' % (r, tt, tt + 1))
        k.ds('ds_write_b128 v14, %s offset:%d' % (v(16 + 4 * i, 4), 8320 + 512 + 1024 * i))
    k.stamp(2)
    k.wait(vm=kt)
    k.wait_all(vm=False)
    k.barrier()
    k.stamp(3)
    k.smem_wait()
    ACC = 32
    def areg(st, p): return 64 + 64 * st + 4 * p
    def breg(st, q): return 96 + 64 * st + 4 * q
    def loads(cc):
        st = cc & 1
        L = []
        for p in range(8):
            off = 128 * (1 - (p & 1)) + 16 * (3 - cc)
            L.append('ds_read2_b32 %s, v%d offset0:%d offset1:%d' % (v(areg(st, p), 2), 194 + (p >> 1), off, off + 1))
            L.append('ds_read2_b32 %s, v%d offset0:%d offset1:%d' % (v(areg(st, p) + 2, 2), 194 + (p >> 1), off + 2, off + 3))
            L.append('ds_read_b128 %s, v192 offset:%d' % (v(breg(st, p), 4), 512 * p + 64 * (3 - cc)))
        return L
    pairs = []
    for lv in range(8):
        for p in range(lv + 1):
            for q in range(lv + 1):
                if max(p, q) == lv and p + q <= 7: pairs.append((p, q))
    toks = [k.ds(x) for x in loads(0)]
    seen = set()
    for cc in range(4):
        st = cc & 1
        nxt = loads(cc + 1) if cc < 3 else ['ds_read_b64 %s, v193 offset:%d' % (v(16 + 2 * j, 2), 8320 + 512 + 512 * j) for j in range(4)]
        if cc > 0: k.wait_all(vm=False)
        for n, (p, q) in enumerate(pairs):
            if cc == 0: k.wait(ds=toks[3 * max(p, q) + 2])
            nt = p + q
            c = v(ACC + 4 * nt, 4) if nt in seen else '0'
            seen.add(nt)
            k('v_mfma_f32_16x16x32_bf16 %s, %s, %s, %s' % (v(ACC + 4 * nt, 4), v(areg(st, p), 4), v(breg(st, q), 4), c))
            start = 12 if cc == 0 else 2
            if n >= start and nxt: k.ds(nxt.pop(0))
        assert not nxt
    k('s_nop 7')
    k.stamp(4)
    k('s_cmp_eq_u32 s53, 0')
    k('s_cbranch_scc0 L_k2_w1')
    for j in range(4): k.ds('ds_write_b128 v198, %s offset:%d' % (v(ACC + 16 + 4 * j, 4), 12928 + 1024 * j))
    k('s_branch L_k2_j1')
    k('L_k2_w1:')
    k.nds -= 4
    for j in range(4): k.ds('ds_write_b128 v198, %s offset:%d' % (v(ACC + 4 * j, 4), 12928 + 1024 * j))
    for j in range(16): k('v_mov_b32 v%d, v%d' % (64 + j, ACC + 16 + j))
    k('s_branch L_k2_j2')
    k('L_k2_j1:')
    for j in range(16): k('v_mov_b32 v%d, v%d' % (64 + j, ACC + j))
    k('L_k2_j2:')
    k.wait_all(vm=False)
    k.barrier()
    rt_ = [k.ds('ds_read_b128 %s, v199 offset:%d' % (v(80 + 4 * j, 4), 12928 + 1024 * j)) for j in range(4)]
    k.wait(vm=xr[-1])
    k.wait_all(vm=False)
    k.stamp(5)
    for i in range(8):
        k('v_lshlrev_b32 v%d, 16, v%d' % (96 + 2 * i, 16 + i))
        k('v_and_b32 v%d, s79, v%d' % (97 + 2 * i, 16 + i))
        k('v_pk_fma_f32 %s, %s, s[74:75], %s op_sel_hi:[1,0,1]' % (v(64 + 2 * i, 2), v(96 + 2 * i, 2), v(64 + 2 * i, 2)))
        k('v_lshlrev_b32 v%d, 16, v%d' % (112 + 2 * i, 24 + i))
        k('v_and_b32 v%d, s79, v%d' % (113 + 2 * i, 24 + i))
    for j in range(4):
        k.wait(ds=rt_[j])
        for i in (2 * j, 2 * j + 1):
            k('v_pk_add_f32 %s, %s, %s' % (v(64 + 2 * i, 2), v(64 + 2 * i, 2), v(80 + 2 * i, 2)))
            k('v_pk_fma_f32 %s, %s, s[74:75], %s op_sel:[0,1,0] op_sel_hi:[1,1,1]' % (v(64 + 2 * i, 2), v(64 + 2 * i, 2), v(112 + 2 * i, 2)))
            k('v_cvt_pk_bf16_f32 v%d, v%d, v%d' % (128 + i, 64 + 2 * i, 65 + 2 * i))
        k.vm('global_store_dwordx2 v%d, %s, s[68:69]' % (8 + j, v(128 + 2 * j, 2)))
    k.end()

def k2_w1p(k):
    k.reset_counters()
    k('s_sub_u32 s51, s2, %d' % K2_CONV)
    wave_id(k, 50, 1)
    k('v_and_b32 v1, 63, v0')
    k('v_lshrrev_b32 v2, 2, v1')
    k('v_lshlrev_b32 v4, 2, v2')
    k('v_mul_u32_u24 v2, 3584, v2')
    k('v_and_b32 v3, 3, v1')
    k('v_lshl_add_u32 v2, v3, 4, v2')
    k('s_mul_i32 s52, s50, %d' % (128 * 3584))
    k('s_lshl_b32 s53, s51, 6')
    k('s_add_u32 s52, s52, s53')
    k('v_lshrrev_b32 v5, 5, v1')
    k('v_lshlrev_b32 v5, 4, v5')
    k('s_lshl_b32 s54, s50, 9')
    k('s_lshl_b32 s55, s50, 8')
    k.smem_wait()
    add_ptr(k, 56, P_W1, 52)
    wt = []
    for i in range(8):
        wt.append(k.vm('global_load_dwordx4 %s, v2, s[56:57]' % v(16 + 4 * i, 4)))
        if i < 7:
            k('s_add_u32 s56, s56, %d' % (16 * 3584))
            k('s_addc_u32 s57, s57, 0')
    ws_ptr(k, 58, WS_MODF + 2048 * 4, 54)
    gt = [k.vm('global_load_dword v%d, v4, s[58:59] offset:%d' % (48 + i, 64 * i)) for i in range(8)]
    ws_ptr(k, 60, WS_MODH + 1536 * 2, 55)
    st = [k.vm('global_load_dwordx4 %s, v5, s[60:61] offset:%d' % (v(64 + 4 * i, 4), 32 * i)) for i in range(8)]
    k('s_lshl_b32 s62, s50, 13')
    k('v_lshlrev_b32 v6, 4, v1')
    k('v_add_u32 v7, s62, v6')
    tr_addr32(k, 10, 1, 11, 12, 6, 8)
    k('v_add_u32 v10, s62, v10')
    k('s_lshl_b32 s63, s51, 15')
    k('s_add_u32 s63, s63, s62')
    ws_ptr(k, 64, WS_W1P, 63)
    k('v_add_u32 v8, 0x1000, v6')
    k('s_mov_b32 s66, 0xffff0000')
    for i in range(4): k('v_mov_b32 v%d, 0x3f803f80' % (12 + i))
    for i in range(8):
        k.wait(vm=wt[i])
        k.ds('ds_write_b128 v7, %s offset:%d' % (v(16 + 4 * i, 4), i * 1024))
    for i in range(8):
        k.wait(vm=gt[i | 1])
        for j in range(4):
            r = 16 + 4 * i + j
            tt = 56 + 2 * (j & 1)
            k('v_lshlrev_b32 v%d, 16, v%d' % (tt, r))
            k('v_and_b32 v%d, s66, v%d' % (tt + 1, r))
            g = 48 + (i & ~1)
            k('v_pk_mul_f32 %s, %s, %s op_sel:[%d,0] op_sel_hi:[%d,1]' % (v(tt, 2), v(g, 2), v(tt, 2), i & 1, i & 1))
            k('v_cvt_pk_bf16_f32 v%d, v%d, v%d' % (96 + 4 * i + j, tt, tt + 1))
        k.ds('ds_write_b128 v7, %s offset:%d' % (v(96 + 4 * i, 4), 32768 + i * 1024))
    k.wait_all(vm=False)
    ts, tu = [], []
    for ks in range(8):
        k.ds('ds_read_b64_tr_b16 %s, v10 offset:%d' % (v(96 + 4 * ks, 2), 32768 + ks * 1024))
        ts.append(k.ds('ds_read_b64_tr_b16 %s, v10 offset:%d' % (v(98 + 4 * ks, 2), 32768 + ks * 1024 + 256)))
    for ks in range(8):
        k.ds('ds_read_b64_tr_b16 %s, v10 offset:%d' % (v(16 + 4 * ks, 2), ks * 1024))
        tu.append(k.ds('ds_read_b64_tr_b16 %s, v10 offset:%d' % (v(18 + 4 * ks, 2), ks * 1024 + 256)))
    for ks in range(8):
        k.wait(ds=ts[ks])
        k.vm('global_store_dwordx4 v%d, %s, s[64:65] offset:%d' % (6 + 2 * (ks >> 2), v(96 + 4 * ks, 4), (ks & 3) * 1024))
        k('v_mfma_f32_32x32x16_bf16 v[128:143], v[12:15], %s, %s' % (v(96 + 4 * ks, 4), '0' if ks == 0 else 'v[128:143]'))
    k.wait(vm=st[-1])
    for ks in range(8):
        k.wait(ds=tu[ks])
        k('v_mfma_f32_32x32x16_bf16 v[144:159], %s, %s, %s' % (v(64 + 4 * ks, 4), v(16 + 4 * ks, 4), '0' if ks == 0 else 'v[144:159]'))
    k('v_lshlrev_b32 v4, 2, v0')
    k('v_add_u32 v4, 0x10000, v4')
    k.ds('ds_write_b32 v4, v128')
    k.ds('ds_write_b32 v4, v144 offset:1024')
    k.wait_all(vm=False)
    k.barrier()
    k('s_cmp_lg_u32 s50, 0')
    k('s_cbranch_scc1 L_k2_end')
    for i in range(8): t = k.ds('ds_read_b32 v%d, v4 offset:%d' % (16 + i, 256 * i))
    k('s_lshl_b32 s52, s51, 7')
    ws_ptr(k, 68, WS_C12, 52)
    ws_ptr(k, 70, WS_C12 + 8192, 52)
    k('v_lshlrev_b32 v5, 2, v0')
    k.wait(ds=t)
    k('v_add_f32 v16, v16, v17\nv_add_f32 v18, v18, v19\nv_add_f32 v16, v16, v18')
    k('v_add_f32 v20, v20, v21\nv_add_f32 v22, v22, v23\nv_add_f32 v20, v20, v22')
    k('v_mul_f32 v20, %s, v20' % f32(-LOG2E))
    k('v_cmp_gt_u32 vcc, 32, v0')
    k('s_and_saveexec_b64 s[72:73], vcc')
    k.vm('global_store_dword v5, v16, s[68:69]')
    k.vm('global_store_dword v5, v20, s[70:71]')
    k.end()

def gen_k2():
    k = Kern('k2_conv_kernel')
    load_ptrs(k)
    code_prefetch(k, 190)
    k('s_cmp_lt_u32 s2, %d' % K2_CONV)
    k('s_cbranch_scc1 L_k2_conv')
    k('s_cmp_lt_u32 s2, %d' % (K2_CONV + K2_W1P))
    k('s_cbranch_scc1 L_k2_w1p')
    k('L_k2_end:')
    k('s_endpgm')
    k('L_k2_conv:'); k2_conv(k)
    k('L_k2_w1p:'); k2_w1p(k)
    return k, 'grid=(%d,1,1) block=(256,1,1) lds=%d' % (K2_CONV + K2_W1P, K2_LDS), (208, 88, 208)

def all_kernels():
    import gen4
    return [gen_k1(), gen_k2()] + gen4.kernels()
```

```python
from gen import *
WS_SYNC = 0xF00000
PRE = 3
W2_EARLY = 14

def gen_k34():
    k = Kern('k3_mlp_kernel')
    k('s_load_dwordx2 s[48:49], s[0:1], 128')
    k('s_load_dwordx2 s[44:45], s[0:1], 112')
    code_prefetch(k, 127)
    k('s_cmp_ge_u32 s2, 256')
    k('s_cbranch_scc1 L_k3_end')
    wave_id(k, 50, 1)
    k('v_and_b32 v1, 63, v0')
    k('v_lshlrev_b32 v2, 4, v1')
    k('s_and_b32 s3, s2, 7')
    k('s_lshr_b32 s4, s2, 3')
    k('s_cmp_ge_u32 s4, 28')
    k('s_cbranch_scc1 L_k3_stats')
    k('s_lshl_b32 s51, s3, 1')
    k('s_cmp_ge_u32 s4, 14')
    k('s_cselect_b32 s53, 1, 0')
    k('s_cselect_b32 s54, 14, 0')
    k('s_add_u32 s51, s51, s53')
    k('s_sub_u32 s52, s4, s54')
    k('s_lshl_b32 s53, s52, 2')
    k('s_add_u32 s53, s53, s50')
    k('s_lshl_b32 s54, s53, 15')
    k('s_lshl_b32 s55, s51, 17')
    k('s_lshl_b32 s56, s50, 15')
    k('s_add_u32 s55, s55, s56')
    k.smem_wait()
    ws_ptr(k, 58, WS_X1T, 55)
    ws_ptr(k, 60, WS_W1P, 54)
    AW = 128
    ctok = {}
    def chunk_ops(c):
        ops = []
        ops.append(lambda: k('s_add_u32 m0, s56, %d' % (c * 4096)))
        for i in range(4): ops.append(lambda i=i: k.vm('global_load_lds_dwordx4 v2, s[58:59] offset:%d' % (i * 1024)))
        def ld(i):
            ctok[c] = k.vm('global_load_dwordx4 %s, v2, s[60:61] offset:%d' % (v(AW + 16 * c + 4 * i, 4), i * 1024))
        for i in range(4): ops.append(lambda i=i: ld(i))
        if c < 7: ops.append(lambda: k('s_add_u32 s58, s58, 4096\ns_addc_u32 s59, s59, 0\ns_add_u32 s60, s60, 4096\ns_addc_u32 s61, s61, 0'))
        return ops
    for c in range(PRE):
        for op in chunk_ops(c): op()
    phaseb_setup(k)
    tr_addr32(k, 3, 1, 8, 9, 6, 8)
    k('v_and_b32 v12, 31, v1')
    k('v_lshlrev_b32 v12, 3, v12')
    for j in range(4):
        k('s_add_u32 s62, s50, %d' % j)
        k('s_and_b32 s62, s62, 3')
        k('s_lshl_b32 s63, s62, 15')
        k('v_add_u32 v%d, s63, v3' % (4 + j))
        k('s_mul_i32 s63, s62, 114688')
        k('v_add_u32 v%d, s63, v2' % (8 + j))
        k('s_lshl_b32 s63, s62, 8')
        k('v_add_u32 v%d, s63, v12' % (124 + j if j < 3 else 14))
    SG = [124, 125, 126, 14]
    k('v_lshrrev_b32 v13, 5, v1')
    k('v_lshlrev_b32 v13, 4, v13')
    k('s_lshl_b32 s62, s53, 7')
    ws_ptr(k, 64, WS_C12, 62)
    ws_ptr(k, 66, WS_C12 + 8192, 62)
    k('s_mul_i32 s62, s51, %d' % (4 * 114688))
    k('s_lshl_b32 s63, s53, 11')
    k('s_add_u32 s62, s62, s63')
    ws_ptr(k, 68, WS_HID, 62)
    k('s_lshl_b32 s62, s51, 10')
    ws_ptr(k, 70, WS_SYNC, 62)
    k('s_lshl_b32 s62, s51, 8')
    ws_ptr(k, 72, WS_SYNC + 16384, 62)
    ACC = 16
    def breg(s_, j): return 80 + 16 * (s_ & 1) + 4 * j
    rtok = {}
    def rd(s_, j):
        k.ds('ds_read_b64_tr_b16 %s, v%d offset:%d' % (v(breg(s_, j), 2), 4 + j, s_ * 1024))
        rtok[s_, j] = k.ds('ds_read_b64_tr_b16 %s, v%d offset:%d' % (v(breg(s_, j) + 2, 2), 4 + j, s_ * 1024 + 256))
    k.stamp(1)
    if DIAG: k.smem_wait()
    k.wait(vm=ctok[0]); k.barrier()
    if DIAG: k.stamp(2); k.smem_wait()
    for j in range(4): rd(0, j)
    pend = []
    w2n = [0]
    for s_ in range(32):
        c = s_ // 4
        if s_ % 4 == 0 and c + PRE < 8: pend += chunk_ops(c + PRE)
        if s_ == 20:
            for q in range(4): pend.append(lambda q=q: k.vm('global_load_dwordx4 %s, v13, s[64:65] offset:%d' % (v(128 + 4 * q, 4), 32 * q)))
            for q in range(4): pend.append(lambda q=q: k.vm('global_load_dwordx4 %s, v13, s[66:67] offset:%d' % (v(144 + 4 * q, 4), 32 * q)))
        if s_ == 23:
            def sl(j): ctok['st'] = k.vm('global_load_dwordx2 %s, v%d, s[70:71] sc1' % (v(160 + 2 * j, 2), SG[j]))
            for j in range(4): pend.append(lambda j=j: sl(j))
        if s_ == 25:
            for ks in range(W2_EARLY): pend += w2_ops(k, ks)
        if s_ % 4 == 3 and s_ < 31:
            k.wait(vm=ctok[c + 1]); k.barrier()
        for j in range(4):
            k.wait(ds=rtok[s_, j])
            k('v_mfma_f32_32x32x16_bf16 %s, %s, %s, %s' % (v(ACC + 16 * j, 16), v(AW + 4 * s_, 4), v(breg(s_, j), 4), '0' if s_ == 0 else v(ACC + 16 * j, 16)))
            if s_ < 31: rd(s_ + 1, j)
            for _ in range(2 if s_ >= 25 else 1):
                if pend: pend.pop(0)()
    while pend: pend.pop(0)()
    k.stamp(3)
    k.wait(vm=ctok['st'])
    k('s_mov_b32 s62, 0')
    k('L_k3_chk:')
    k('v_min_u32 v168, v161, v163')
    k('v_min_u32 v169, v165, v167')
    k('v_min_u32 v168, v168, v169')
    k('v_cmp_eq_u32 vcc, 0, v168')
    k('s_cbranch_vccz L_k3_ok')
    k('s_add_u32 s62, s62, 1')
    k('s_cmp_gt_u32 s62, 0x40000')
    k('s_cbranch_scc1 L_k3_ok')
    k('s_sleep 2')
    for j in range(4): k.lines.append('    global_load_dwordx2 %s, v%d, s[70:71] sc1' % (v(160 + 2 * j, 2), SG[j]))
    k('s_waitcnt vmcnt(0)')
    k('s_branch L_k3_chk')
    k('L_k3_ok:')
    k('s_nop 7')
    k.stamp(4)
    for j in range(4):
        b = 160 + 2 * j
        A_ = ACC + 16 * j
        for p in range(8):
            x = v(A_ + 2 * p, 2)
            k('v_pk_fma_f32 %s, %s, %s, %s op_sel_hi:[1,0,1] neg_lo:[0,1,0] neg_hi:[0,1,0]' % (x, v(128 + 2 * p, 2), v(b, 2), x))
        for p in range(8):
            x = v(A_ + 2 * p, 2)
            k('v_pk_fma_f32 %s, %s, %s, %s op_sel:[1,0,0] op_sel_hi:[1,1,1]' % (x, v(b, 2), x, v(144 + 2 * p, 2)))
        for r in range(16): k('v_exp_f32 v%d, v%d' % (80 + r, A_ + r))
        for p in range(8): k('v_pk_add_f32 %s, %s, 1.0 op_sel_hi:[1,0]' % (v(80 + 2 * p, 2), v(80 + 2 * p, 2)))
        for r in range(16): k('v_rcp_f32 v%d, v%d' % (80 + r, 80 + r))
        for p in range(8): k('v_pk_mul_f32 %s, %s, %s' % (v(A_ + 2 * p, 2), v(A_ + 2 * p, 2), v(80 + 2 * p, 2)))
        O = 168 + 8 * j
        for p in range(8): k('v_cvt_pk_bf16_f32 v%d, v%d, v%d' % (O + p, A_ + 2 * p, A_ + 2 * p + 1))
        k.vm('global_store_dwordx4 v%d, %s, s[68:69] sc1' % (8 + j, v(O, 4)))
        lst = k.vm('global_store_dwordx4 v%d, %s, s[68:69] offset:1024 sc1' % (8 + j, v(O + 4, 4)))
    for ks in range(W2_EARLY, 28):
        for op in w2_ops(k, ks): op()
    resid_loads(k)
    k.wait(vm=lst)
    k.barrier()
    k.stamp(5)
    k('s_cmp_lg_u32 s50, 0')
    k('s_cbranch_scc1 L_k3_wait')
    k('s_mov_b64 exec, 1')
    k('v_mov_b32 v3, 0')
    k('v_mov_b32 v4, 1')
    k.lines.append('    global_atomic_add v3, v4, s[72:73]')
    k('s_branch L_k3_poll0')
    k('L_k3_stats:')
    k.reset_counters()
    k('s_sub_u32 s51, s4, 28')
    k('s_lshl_b32 s51, s51, 1')
    k('s_lshl_b32 s52, s3, 3')
    k('s_add_u32 s51, s51, s52')
    k('s_lshl_b32 s52, s51, 15')
    k('s_lshl_b32 s53, s50, 14')
    k('s_add_u32 s52, s52, s53')
    k.smem_wait()
    ws_ptr(k, 58, WS_X1T, 52)
    xt = []
    for i in range(16):
        xt.append(k.vm('global_load_dwordx4 %s, v2, s[58:59] offset:%d' % (v(128 + 4 * i, 4), (i & 3) * 1024)))
        if (i & 3) == 3 and i < 15: k('s_add_u32 s58, s58, 4096\ns_addc_u32 s59, s59, 0')
    phaseb_setup(k)
    k('s_mov_b32 s62, 0xffff0000')
    for r in range(16): k('v_mov_b32 v%d, 0' % (16 + r))
    for i in range(16):
        k.wait(vm=xt[i])
        for j in range(4):
            r = 128 + 4 * i + j
            tt = 32 + 2 * (j & 1)
            k('v_lshlrev_b32 v%d, 16, v%d' % (tt, r))
            k('v_and_b32 v%d, s62, v%d' % (tt + 1, r))
            k('v_pk_add_f32 %s, %s, %s' % (v(16 + 2 * j, 2), v(16 + 2 * j, 2), v(tt, 2)))
            k('v_pk_fma_f32 %s, %s, %s, %s' % (v(24 + 2 * j, 2), v(tt, 2), v(tt, 2), v(24 + 2 * j, 2)))
    for ks in range(28):
        for op in w2_ops(k, ks): op()
    for pat in ('row_ror:4', 'row_ror:8'):
        for r in range(16): k('v_add_f32_dpp v%d, v%d, v%d %s row_mask:0xf bank_mask:0xf' % (16 + r, 16 + r, 16 + r, pat))
    k('v_lshlrev_b32 v3, 6, v0')
    for i in range(4): k.ds('ds_write_b128 v3, %s offset:%d' % (v(16 + 4 * i, 4), 16 * i))
    k.wait_all(vm=False)
    k.barrier()
    k('s_cmp_lg_u32 s50, 0')
    k('s_cbranch_scc1 L_k3_st2')
    k('v_lshrrev_b32 v3, 5, v1')
    k('v_lshlrev_b32 v3, 13, v3')
    k('v_bfe_u32 v4, v1, 3, 2')
    k('v_lshl_add_u32 v3, v4, 6, v3')
    k('v_and_b32 v4, 7, v1')
    k('v_lshl_add_u32 v3, v4, 2, v3')
    for q in range(8): t = k.ds('ds_read2_b32 %s, v3 offset0:%d offset1:%d' % (v(16 + 2 * q, 2), 0, 8)); k('v_add_u32 v3, 1024, v3')
    k('s_lshl_b32 s62, s51, 8')
    ws_ptr(k, 70, WS_SYNC, 62)
    k('v_lshlrev_b32 v4, 3, v1')
    k.wait(ds=t)
    for q in range(1, 8): k('v_pk_add_f32 v[16:17], v[16:17], %s' % v(16 + 2 * q, 2))
    k('v_mul_f32 v16, %s, v16' % f32(1.0 / 512))
    k('v_mul_f32 v17, %s, v17' % f32(1.0 / 512))
    k('v_fma_f32 v17, -v16, v16, v17')
    k('v_max_f32 v17, 0, v17')
    k('v_add_f32 v17, %s, v17' % f32(1e-5))
    k('v_rsq_f32 v17, v17')
    k('v_mul_f32 v17, %s, v17' % f32(-LOG2E))
    k.vm('global_store_dwordx2 v4, v[16:17], s[70:71] sc1')
    k('L_k3_st2:')
    resid_loads(k)
    k.stamp(5)
    k('s_cmp_lg_u32 s50, 0')
    k('s_cbranch_scc1 L_k3_wait')
    k('s_mov_b64 exec, 1')
    k('v_mov_b32 v3, 0')
    k('L_k3_poll0:')
    k('s_mov_b32 s62, 0')
    k('L_k3_poll:')
    k.lines.append('    global_load_dword v5, v3, s[74:75] sc1')
    k('s_waitcnt vmcnt(0)')
    k('v_readfirstlane_b32 s63, v5')
    k('s_cmp_ge_u32 s63, 14')
    k('s_cbranch_scc1 L_k3_pd')
    k('s_add_u32 s62, s62, 1')
    k('s_cmp_gt_u32 s62, 0x40000')
    k('s_cbranch_scc1 L_k3_pd')
    k('s_sleep 1')
    k('s_branch L_k3_poll')
    k('L_k3_pd:')
    k('s_mov_b64 exec, -1')
    k('L_k3_wait:')
    k.barrier()
    k.stamp(6)
    k.reset_counters()
    NS = 16
    tok = {}
    def issue(s_):
        b = 128 + 8 * (s_ % NS)
        off = (s_ & 3) * 1024
        k.vm('global_load_dwordx4 %s, v114, s[78:79] offset:%d sc1' % (v(b, 4), off))
        tok[s_] = k.vm('global_load_dwordx4 %s, v115, s[78:79] offset:%d sc1' % (v(b + 4, 4), off))
        if (s_ & 3) == 3 and s_ < 27: k('s_add_u32 s78, s78, 4096\ns_addc_u32 s79, s79, 0')
    for s_ in range(NS): issue(s_)
    for s_ in range(28):
        k.wait(vm=tok[s_])
        b = 128 + 8 * (s_ % NS)
        for j in range(4):
            k('v_mfma_f32_32x32x16_bf16 %s, %s, %s, %s' % (v(ACC + 16 * j, 16), a(8 * s_ + 4 * (j >> 1), 4), v(b + 4 * (j & 1), 4), '0' if s_ == 0 else v(ACC + 16 * j, 16)))
        if s_ + NS < 28: issue(s_ + NS)
        if s_ == 2:
            k('s_mov_b32 s62, %s' % f32(-math.log(2.0)))
        if 2 <= s_ < 10:
            for r in (2 * (s_ - 2), 2 * (s_ - 2) + 1): k('v_mul_f32 v%d, s62, v%d' % (96 + r, 96 + r))
    for j in range(1, 4):
        for q in range(4):
            k.ds('ds_write_b128 v%d, %s offset:%d' % (119 + j, v(ACC + 16 * j + 4 * q, 4), (j - 1) * 4096 + q * 1024))
    k.wait_all(vm=False)
    k.barrier()
    rt_ = []
    for j in range(3):
        for q in range(4): t = k.ds('ds_read_b128 %s, v123 offset:%d' % (v(32 + 16 * j + 4 * q, 4), j * 4096 + q * 1024))
        rt_.append(t)
    for j in range(3):
        k.wait(ds=rt_[j])
        for p in range(8): k('v_pk_add_f32 %s, %s, %s' % (v(ACC + 2 * p, 2), v(ACC + 2 * p, 2), v(32 + 16 * j + 2 * p, 2)))
    for p in range(8):
        k('v_pk_fma_f32 %s, %s, %s, %s' % (v(ACC + 2 * p, 2), v(ACC + 2 * p, 2), v(96 + 2 * p, 2), v(80 + 2 * p, 2)))
        k('v_cvt_pk_bf16_f32 v%d, v%d, v%d' % (128 + p, ACC + 2 * p, ACC + 2 * p + 1))
    for qq in range(2):
        b = 128 + 4 * qq
        k('v_permlane32_swap_b32 v%d, v%d' % (b, b + 2))
        k('v_permlane32_swap_b32 v%d, v%d' % (b + 1, b + 3))
        k.vm('global_store_dwordx4 v118, %s, s[24:25] offset:%d' % (v(b, 4), 32 * qq))
    k.end()
    k('L_k3_end:')
    k('s_endpgm')
    return k, 'grid=(256,1,1) block=(256,1,1) lds=131072', (256 + 224, 84, 256)

def phaseb_setup(k):
    k('s_lshl_b32 s5, s3, 2')
    k('s_lshr_b32 s6, s4, 3')
    k('s_add_u32 s5, s5, s6')
    k('s_and_b32 s6, s4, 7')
    k('s_lshr_b32 s7, s50, 1')
    k('s_and_b32 s8, s50, 1')
    k('s_mul_i32 s9, s7, 114688')
    k('v_add_u32 v112, s9, v2')
    k('s_sub_u32 s9, 114688, s9')
    k('v_add_u32 v113, s9, v2')
    k('s_mul_i32 s9, s8, 114688')
    k('v_add_u32 v114, s9, v2')
    k('s_sub_u32 s9, 114688, s9')
    k('v_add_u32 v115, s9, v2')
    k('s_mul_i32 s9, s50, %d' % (28 * 1024))
    k('s_mul_i32 s10, s6, %d' % (2 * 114688))
    k('s_add_u32 s10, s10, s9')
    ws_ptr(k, 76, WS_W2P, 10)
    k('s_mul_i32 s10, s5, %d' % (2 * 114688))
    k('s_add_u32 s10, s10, s9')
    ws_ptr(k, 78, WS_HID, 10)
    k('s_lshr_b32 s10, s5, 1')
    k('s_lshl_b32 s10, s10, 8')
    ws_ptr(k, 74, WS_SYNC + 16384, 10)
    k('v_lshrrev_b32 v119, 5, v1')
    k('v_and_b32 v118, 31, v1')
    k('v_lshlrev_b32 v116, 8, v119')
    k('v_lshl_add_u32 v116, v118, 1, v116')
    k('v_lshlrev_b32 v117, 4, v119')
    k('v_lshl_add_u32 v118, v118, 10, v117')
    k('s_lshl_b32 s11, s5, 1')
    k('s_add_u32 s11, s11, s8')
    k('s_lshl_b32 s12, s6, 1')
    k('s_add_u32 s12, s12, s7')
    k('s_lshl_b32 s13, s11, 15')
    k('s_lshl_b32 s14, s12, 11')
    k('s_add_u32 s14, s14, s13')
    ws_ptr(k, 20, WS_X1T, 14)
    k('s_lshl_b32 s14, s12, 7')
    ws_ptr(k, 22, WS_MODF + 2560 * 4, 14)
    k('s_lshl_b32 s14, s12, 6')
    k('s_add_u32 s14, s14, s13')
    add_ptr(k, 24, 44, 14)
    for j in range(1, 4):
        k('s_xor_b32 s14, s50, %d' % j)
        k('s_mul_i32 s14, s14, 12288')
        k('v_add_u32 v%d, s14, v2' % (119 + j))
    k('s_mul_i32 s14, s50, 12288')
    k('v_add_u32 v123, s14, v2')

def w2_ops(k, ks):
    ops = []
    off = (ks & 3) * 1024
    ops.append(lambda: k.vm('global_load_dwordx4 %s, v112, s[76:77] offset:%d' % (a(8 * ks, 4), off)))
    ops.append(lambda: k.vm('global_load_dwordx4 %s, v113, s[76:77] offset:%d' % (a(8 * ks + 4, 4), off)))
    if (ks & 3) == 3 and ks < 27: ops.append(lambda: k('s_add_u32 s76, s76, 4096\ns_addc_u32 s77, s77, 0'))
    return ops

def resid_loads(k):
    for r in range(16): k('v_mov_b32 v%d, 0' % (80 + r))
    for q in range(4): k.vm('global_load_dwordx4 %s, v117, s[22:23] offset:%d' % (v(96 + 4 * q, 4), 32 * q))
    for q in range(4):
        for r in range(4): k.vm('global_load_short_d16_hi v%d, v116, s[20:21] offset:%d' % (80 + 4 * q + r, (8 * q + r) * 64))

def kernels(): return [gen_k34()]
```

```python
import sys, math
sys.path.insert(0, 'work')
from asmlib import *

NAME = 'adaLN_cond__ssm_conv_s4__dense_activation_silu__prompt'
WS_XN = 0x000000; WS_XT = 0x200000; WS_KR = 0x400000; WS_MODF = 0x800000; WS_MODH = 0x804000
WS_C12 = 0x808000; WS_W2P = 0x900000; WS_W1P = 0xB00000; WS_X1T = 0xD00000; WS_HID = 0x1000000
LOG2E = 1.4426950408889634
P_U, P_ARE, P_AIM, P_BRE, P_BIM, P_CRE, P_CIM, P_LDT = 16, 18, 20, 22, 24, 26, 28, 30
P_DSK, P_BX, P_W1, P_W2, P_C, P_WMOD, P_OUT, P_DBG = 32, 34, 36, 38, 40, 42, 44, 46
P_WS = 48

def load_ptrs(k):
    k('s_load_dwordx16 s[16:31], s[0:1], 0')
    k('s_load_dwordx16 s[32:47], s[0:1], 64')
    k('s_load_dwordx2 s[48:49], s[0:1], 128')

def code_prefetch(k, vd):
    k('s_getpc_b64 s[82:83]')
    k('L_pf_%s:' % k.name)
    k('v_lshlrev_b32 v%d, 7, v0' % vd)
    k('v_min_u32 v%d, L_text_end-L_pf_%s-4, v%d' % (vd, k.name, vd))
    k.lines.append('    global_load_dword v%d, v%d, s[82:83]' % (vd, vd))

def ws_ptr(k, dst, off, extra=None):
    if extra is not None:
        k('s_add_u32 s%d, s%d, 0x%x' % (dst, extra, off))
        k('s_add_u32 s%d, s48, s%d' % (dst, dst))
    else:
        k('s_add_u32 s%d, s48, 0x%x' % (dst, off))
    k('s_addc_u32 s%d, s49, 0' % (dst + 1))

def add_ptr(k, dst, src, extra):
    k('s_add_u32 s%d, s%d, s%d' % (dst, src, extra))
    k('s_addc_u32 s%d, s%d, 0' % (dst + 1, src + 1))

def wave_id(k, sdst, vtmp):
    k('v_lshrrev_b32 v%d, 6, v0' % vtmp)
    k('v_readfirstlane_b32 s%d, v%d' % (sdst, vtmp))

def cmul1(k, d, x, z): k('v_pk_mul_f32 %s, %s, %s op_sel:[0,0] op_sel_hi:[1,0]' % (v(d, 2), v(x, 2), v(z, 2)))
def cmul2(k, d, x, z): k('v_pk_fma_f32 %s, %s, %s, %s op_sel:[1,0,0] op_sel_hi:[0,0,1] neg_lo:[1,0,0]' % (v(d, 2), v(x, 2), v(z + 2, 2), v(d, 2)))

K1_KGEN, K1_STATS, K1_MOD, K1_W2P = 256, 64, 96, 56
K1_LDS = 81920

def k1_kgen(k):
    k.reset_counters()
    wave_id(k, 50, 1)
    k('v_and_b32 v1, 63, v0')
    k('s_lshl_b32 s51, s2, 9')
    k('v_lshl_add_u32 v2, v0, 1, s51')
    for i in range(4, 11): k('v_mov_b32 v%d, 0' % i)
    k('s_lshr_b32 s52, s50, 1')
    k('s_lshl_b32 s53, s2, 1')
    k('s_add_u32 s53, s53, s52')
    k('s_lshl_b32 s54, s53, 1')
    k('v_mov_b32 v3, s54')
    k.smem_wait()
    toks = []
    toks.append(k.vm('global_load_short_d16_hi v10, v3, s[%d:%d]' % (P_LDT, P_LDT + 1)))
    for i, p in enumerate((P_ARE, P_AIM, P_BRE, P_BIM, P_CRE, P_CIM)):
        toks.append(k.vm('global_load_short_d16_hi v%d, v2, s[%d:%d]' % (4 + i, p, p + 1)))
    k('v_mov_b32 v12, 0\nv_mov_b32 v13, 0\nv_mov_b32 v14, 0\nv_mov_b32 v15, 0')
    k('s_lshl_b32 s55, s50, 14')
    k('v_lshl_add_u32 v16, v1, 2, s55')
    for r in range(1, 16): k('v_xor_b32 v%d, %d, v16' % (16 + r, r << 4))
    k('v_and_b32 v40, 31, v1')
    k('v_lshrrev_b32 v41, 5, v1')
    k('v_and_b32 v42, 15, v1')
    k('v_xor_b32 v42, v42, v41')
    k('v_lshlrev_b32 v42, 4, v42')
    k('v_lshl_add_u32 v42, v40, 8, v42')
    k('v_add_u32 v32, s55, v42')
    for ks in range(1, 8): k('v_xor_b32 v%d, %d, v32' % (32 + ks, ks << 5))
    k('s_mul_i32 s56, s52, 6912')
    k('s_add_u32 s56, s56, %d' % (65536 - 0x3F00 * 4))
    k('v_lshlrev_b32 v42, 3, v40')
    k('v_cvt_f32_u32 v42, v42')
    k('v_cvt_f32_u32 v43, v41')
    c0 = [0, 1, 2, 3, 256, 258, 260, 262]
    c1 = [4, 5, 6, 7, 512, 516, 768, 772]
    for r in range(8):
        k('v_fmamk_f32 v56, v43, %s, v42' % f32(c1[r] - c0[r]))
        if c0[r]: k('v_add_f32 v56, %s, v56' % f32(c0[r]))
        else: k('v_max_f32 v56, 0.5, v56')
        k('v_cvt_pk_bf16_f32 v56, v56, 0')
        k('v_lshl_add_u32 v%d, v56, 2, s56' % (44 + r))
    k('v_cmp_eq_u32 vcc, 32, v1')
    k('v_fmaak_f32 v57, 4.0, v42, %s' % f32(4096.0))
    k('v_mov_b32 v58, %s' % f32(2048.0))
    k('v_cndmask_b32 v58, v57, v58, vcc')
    k('v_cmp_lt_u32 vcc, 31, v1')
    for r in range(8, 12):
        k('v_add_f32 v56, %s, v42' % f32(1024 + 256 * (r - 8)))
        k('v_cndmask_b32 v56, v56, v%d, vcc' % (58 if r == 8 else 57))
        k('v_cvt_pk_bf16_f32 v56, v56, 0')
        k('v_lshl_add_u32 v%d, v56, 2, s56' % (44 + r))
    k('v_and_b32 v59, 127, v0')
    k('v_lshlrev_b32 v56, 4, v59')
    k('v_sub_u32 v56, 2047, v56')
    k('v_cvt_f32_u32 v57, v56')
    for i in range(17):
        if i: k('v_add_f32 v56, %s, v57' % f32(-float(i)))
        else: k('v_mov_b32 v56, v57')
        if i >= 15: k('v_max_f32 v56, 0.5, v56')
        k('v_cvt_pk_bf16_f32 v56, v56, 0')
        k('v_lshl_add_u32 v%d, v56, 2, s56' % (60 + i))
    k('s_mov_b32 s57, 0x07060302')
    k('s_mov_b32 s58, 0xffff0000')
    k('s_mov_b32 s59, %s' % f32(LOG2E))
    lo_log2e = LOG2E - struct.unpack('<f', struct.pack('<f', LOG2E))[0]
    inv2pi = 1.0 / (2 * math.pi)
    inv2pi_f = struct.unpack('<f', struct.pack('<f', inv2pi))[0]
    k('s_mov_b32 s60, %s' % f32(inv2pi_f))
    k('s_mov_b32 s61, %s' % f32(inv2pi - inv2pi_f))
    k('s_mov_b32 s62, %s' % f32(lo_log2e))
    k.stamp(1)
    k.wait(vm=toks[0])
    k('v_mul_f32 v78, s59, v10')
    k('v_fma_f32 v79, v10, s59, -v78')
    k('v_fma_f32 v79, v10, s62, v79')
    k('v_exp_f32 v78, v78')
    k('v_mul_f32 v79, %s, v79' % f32(math.log(2.0)))
    k('v_fma_f32 v78, v78, v79, v78')
    k('v_cvt_pk_bf16_f32 v78, v78, v78')
    k('v_and_b32 v78, s58, v78')
    k.wait(vm=toks[-1])
    k.stamp(2)
    k('v_mul_f32 v4, v78, v4')
    k('v_mul_f32 v5, v78, v5')
    k('v_mul_f32 v152, v78, v6')
    k('v_mul_f32 v154, v78, v7')
    E0 = 96
    cmul1(k, E0, 8, 152); cmul2(k, E0, 8, 152)
    k('v_mul_f32 v4, s59, v4')
    Z1, Z256, Z8, Z128 = 80, 84, 152, 156
    def zpow(dst, p, conj, t):
        pf = f32(float(p))
        k('v_mul_f32 v%d, %s, v4' % (t, pf))
        k('v_mul_f32 v%d, %s, v5' % (t + 1, pf))
        k('v_exp_f32 v%d, v%d' % (t, t))
        k('v_mul_f32 v%d, s60, v%d' % (t + 2, t + 1))
        k('v_fma_f32 v%d, v%d, s60, -v%d' % (t + 3, t + 1, t + 2))
        k('v_fma_f32 v%d, v%d, s61, v%d' % (t + 3, t + 1, t + 3))
        k('v_fract_f32 v%d, v%d' % (t + 2, t + 2))
        k('v_add_f32 v%d, v%d, v%d' % (t + 2, t + 2, t + 3))
        k('v_cos_f32 v%d, v%d' % (t + 3, t + 2))
        k('v_sin_f32 v%d, v%d' % (t + 2, t + 2))
        k('v_mul_f32 v%d, v%d, v%d' % (dst, t, t + 3))
        k('v_mul_f32 v%d, v%d, %sv%d' % (dst + 2, t, '-' if conj else '', t + 2))
    zpow(Z1, 1, False, 88); zpow(Z256, 256, False, 92); zpow(Z8, 8, True, 88); zpow(Z128, 128, True, 92)
    T0 = 140
    def split_a(e, i):
        t = T0 + 6 * (i & 1)
        k('v_perm_b32 v%d, v%d, v%d, s57' % (t + 4, e + 1, e))
        k('v_and_b32 v%d, s58, v%d' % (t, e))
        k('v_and_b32 v%d, s58, v%d' % (t + 1, e + 1))
    def split_b(e, i, row):
        t = T0 + 6 * (i & 1)
        k('v_pk_add_f32 %s, %s, %s neg_lo:[0,1] neg_hi:[0,1]' % (v(t + 2, 2), v(e, 2), v(t, 2)))
        k('v_cvt_pk_bf16_f32 v%d, v%d, v%d' % (t + 5, t + 2, t + 3))
        return k.ds('ds_write2st64_b32 v%d, v%d, v%d offset0:%d offset1:%d' % (16 + (row & 15), t + 4, t + 5, row, 32 + row))
    hi = {r: (r - 1, Z1) for r in range(1, 8)}
    hi.update({8: (0, Z256), 9: (2, Z256), 10: (4, Z256), 11: (6, Z256), 12: (8, Z256), 13: (10, Z256), 14: (12, Z256), 15: (13, Z256),
               16: (14, Z256), 17: (16, Z256), 18: (17, Z256), 19: (18, Z256), 20: (19, Z256)})
    order = [0, 1, 8, 2, 12, 3, 14, 4, 16, 5, 17, 6, 18, 7, 19, 9, 20, 10, 11, 13, 15]
    for i, r in enumerate(order):
        nxt = order[i + 1] if i + 1 < len(order) else None
        if nxt is not None: cmul1(k, E0 + 2 * nxt, E0 + 2 * hi[nxt][0], hi[nxt][1])
        split_a(E0 + 2 * r, i)
        if nxt is not None: cmul2(k, E0 + 2 * nxt, E0 + 2 * hi[nxt][0], hi[nxt][1])
        split_b(E0 + 2 * r, i, r)
    AH, AL = 160, 192
    for ks in range(8):
        k.ds('ds_read_b128 %s, v%d' % (v(AH + 4 * ks, 4), 32 + ks))
        k.ds('ds_read_b128 %s, v%d offset:8192' % (v(AL + 4 * ks, 4), 32 + ks))
    L0 = 96
    k('v_mov_b32 v%d, 1.0' % L0)
    k('v_mov_b32 v%d, 0' % (L0 + 1))
    lo_order = []
    for m in range(16): lo_order += [m, 16 + m]
    def lreg(m): return L0 + 2 * m if m < 16 else 128 + 2 * (m & 1)
    def lsrc(m): return (lreg(m - 1), Z8) if m < 16 else (lreg(m - 16), Z128)
    for i, m in enumerate(lo_order):
        nxt = lo_order[i + 1] if i + 1 < len(lo_order) else None
        if nxt is not None: cmul1(k, lreg(nxt), *lsrc(nxt))
        split_a(lreg(m), i)
        if nxt is not None: cmul2(k, lreg(nxt), *lsrc(nxt))
        split_b(lreg(m), i, m)
    k.barrier_after_zero = True
    ACC = 224
    bt = []
    k.wait_all(vm=False, ds=True)
    k.stamp(3)
    k.smem_wait()
    for ks in range(8):
        k.ds('ds_read_b128 %s, v%d' % (v(96 + 8 * ks, 4), 32 + ks))
        bt.append(k.ds('ds_read_b128 %s, v%d offset:8192' % (v(100 + 8 * ks, 4), 32 + ks)))
    for ks in range(8):
        k.wait(ds=bt[ks])
        c = '0' if ks == 0 else v(ACC, 16)
        k('v_mfma_f32_32x32x16_bf16 %s, %s, %s, %s' % (v(ACC, 16), v(AH + 4 * ks, 4), v(96 + 8 * ks, 4), c))
        k('v_mfma_f32_32x32x16_bf16 %s, %s, %s, %s' % (v(ACC, 16), v(AH + 4 * ks, 4), v(100 + 8 * ks, 4), v(ACC, 16)))
        k('v_mfma_f32_32x32x16_bf16 %s, %s, %s, %s' % (v(ACC, 16), v(AL + 4 * ks, 4), v(96 + 8 * ks, 4), v(ACC, 16)))
    k('s_lshl_b32 s54, s53, 13')
    ws_ptr(k, 64, WS_KR, 54)
    k('v_lshlrev_b32 v2, 5, v59')
    k('s_or_b32 s66, s55, 0x4000')
    k('v_lshl_add_u32 v3, v1, 4, s66')
    k('s_nop 7')
    k('s_bitcmp1_b32 s50, 0')
    k('s_cbranch_scc0 L_k1_kg_a')
    for i in range(3): k.ds('ds_write_b128 v3, %s offset:%d' % (v(ACC + 4 * i, 4), 1024 * i))
    k.wait_all(vm=False)
    k('L_k1_kg_a:')
    k.stamp(4)
    k.barrier()
    k('s_cbranch_scc1 L_k1_kg_b')
    for i in range(3): k.ds('ds_read_b128 %s, v3 offset:%d' % (v(96 + 4 * i, 4), 1024 * i))
    k.wait_all(vm=False)
    for i in range(6): k('v_pk_add_f32 %s, %s, %s' % (v(96 + 2 * i, 2), v(96 + 2 * i, 2), v(ACC + 2 * i, 2)))
    for r in range(12): k.ds('ds_write_b32 v%d, v%d' % (44 + r, 96 + r))
    k.wait_all(vm=False)
    k('L_k1_kg_b:')
    k('v_cmp_eq_u32 vcc, 127, v59')
    k.barrier()
    G = 96
    gt = [k.ds('ds_read_b32 v%d, v%d' % (G + i, 60 + i)) for i in range(17)]
    k.wait(ds=gt[-1])
    k('v_cndmask_b32 v%d, v%d, v12, vcc' % (G + 16, G + 16))
    for i in range(8): k('v_cvt_pk_bf16_f32 v%d, v%d, v%d' % (120 + i, G + 2 * i, G + 2 * i + 1))
    for i in range(8): k('v_cvt_pk_bf16_f32 v%d, v%d, v%d' % (128 + i, G + 2 * i + 1, G + 2 * i + 2))
    k.stamp(5)
    k('v_add_u32 v3, 0x1000, v2')
    k.vm('global_store_dwordx4 v2, v[120:123], s[64:65]')
    k.vm('global_store_dwordx4 v2, v[124:127], s[64:65] offset:16')
    k.vm('global_store_dwordx4 v3, v[128:131], s[64:65]')
    k.vm('global_store_dwordx4 v3, v[132:135], s[64:65] offset:16')
    k.end()

def k1_stats(k):
    k.reset_counters()
    k('s_sub_u32 s51, s2, %d' % K1_KGEN)
    k('s_lshl_b32 s52, s51, 15')
    k('v_lshrrev_b32 v1, 3, v0')
    k('v_and_b32 v2, 7, v0')
    k('v_lshlrev_b32 v2, 4, v2')
    k('v_lshl_add_u32 v3, v1, 10, v2')
    k.smem_wait()
    add_ptr(k, 54, P_U, 52)
    X = 16
    t = [k.vm('global_load_dwordx4 %s, v3, s[54:55] offset:%d' % (v(X + 4 * i, 4), 128 * i)) for i in range(8)]
    k('v_and_b32 v4, 3, v1')
    k('v_bfe_u32 v5, v1, 3, 1')
    k('v_lshl_or_b32 v4, v5, 2, v4')
    k('v_lshlrev_b32 v4, 5, v4')
    k('v_xor_b32 v5, v3, v4')
    k('v_xor_b32 v6, 0x80, v5')
    wave_id(k, 50, 7)
    k('v_and_b32 v7, 63, v0')
    k('v_and_b32 v8, 15, v7')
    k('v_lshrrev_b32 v9, 4, v7')
    k('v_lshrrev_b32 v10, 2, v8')
    k('v_lshl_add_u32 v11, v9, 3, v10')
    k('v_and_b32 v12, 1, v9')
    k('v_lshl_or_b32 v12, v12, 2, v10')
    k('v_lshlrev_b32 v12, 5, v12')
    k('v_and_b32 v13, 3, v8')
    k('v_lshlrev_b32 v13, 3, v13')
    k('v_lshl_add_u32 v13, v11, 10, v13')
    k('s_lshl_b32 s53, s50, 8')
    k('v_add_u32 v13, s53, v13')
    k('v_xor_b32 v13, v13, v12')
    k('v_lshlrev_b32 v14, 6, v8')
    k('v_lshl_add_u32 v14, v9, 4, v14')
    k('s_lshl_b32 s53, s50, 13')
    k('v_add_u32 v14, s53, v14')
    ws_ptr(k, 56, WS_XN, 52)
    ws_ptr(k, 58, WS_XT, 52)
    k('s_mov_b32 s60, 0x3f803f80')
    k('s_mov_b32 s61, 0xffff0000')
    for i in range(4): k('v_mov_b32 v%d, 0' % (48 + i))
    for i in range(8):
        k.wait(vm=t[i])
        k.ds('ds_write_b128 v%d, %s offset:%d' % (5 + (i & 1), v(X + 4 * i, 4), 32768 + (i >> 1) * 256))
        for j in range(4):
            r = X + 4 * i + j
            k('v_dot2c_f32_bf16 v%d, s60, v%d' % (48 + (j & 1), r))
            k('v_dot2c_f32_bf16 v%d, v%d, v%d' % (50 + (j & 1), r, r))
    k('v_add_f32 v48, v48, v49')
    k('v_add_f32 v50, v50, v51')
    for pat in ('quad_perm:[1,0,3,2]', 'quad_perm:[2,3,0,1]', 'row_half_mirror'):
        k('v_add_f32_dpp v48, v48, v48 %s row_mask:0xf bank_mask:0xf' % pat)
        k('v_add_f32_dpp v50, v50, v50 %s row_mask:0xf bank_mask:0xf' % pat)
    k('v_mul_f32 v48, %s, v48' % f32(1.0 / 512))
    k('v_mul_f32 v50, %s, v50' % f32(1.0 / 512))
    k('v_fma_f32 v50, -v48, v48, v50')
    k('v_max_f32 v50, 0, v50')
    k('v_add_f32 v50, %s, v50' % f32(1e-5))
    k('v_rsq_f32 v52, v50')
    k('v_mul_f32 v53, v48, v52')
    for i in range(8):
        for j in range(4):
            r = X + 4 * i + j
            tt = 56 + 2 * (j & 1)
            k('v_lshlrev_b32 v%d, 16, v%d' % (tt, r))
            k('v_and_b32 v%d, s61, v%d' % (tt + 1, r))
            k('v_pk_fma_f32 %s, %s, v[52:53], v[52:53] op_sel:[0,0,1] op_sel_hi:[1,0,1] neg_lo:[0,0,1] neg_hi:[0,0,1]' % (v(tt, 2), v(tt, 2)))
            k('v_cvt_pk_bf16_f32 v%d, v%d, v%d' % (64 + 4 * i + j, tt, tt + 1))
        k.ds('ds_write_b128 v%d, %s offset:%d' % (5 + (i & 1), v(64 + 4 * i, 4), (i >> 1) * 256))
    for j in range(1, 8): k('v_xor_b32 v%d, %d, v13' % (100 + j, j << 5))
    k('v_mov_b32 v100, v13')
    k.wait_all(vm=False, ds=True)
    k.barrier()
    toks = []
    for arr in range(2):
        for j in range(8):
            d = 16 + 4 * (8 * arr + j)
            k.ds('ds_read_b64_tr_b16 %s, v%d offset:%d' % (v(d, 2), 100 + j, 32768 * arr))
            toks.append(k.ds('ds_read_b64_tr_b16 %s, v%d offset:%d' % (v(d + 2, 2), 100 + j, 32768 * arr + 4096)))
    k('v_add_u32 v15, 0x1000, v14')
    for arr in range(2):
        for j in range(8):
            d = 16 + 4 * (8 * arr + j)
            k.wait(ds=toks[8 * arr + j])
            k.vm('global_store_dwordx4 v%d, %s, s[%d:%d] offset:%d' % (14 + (j >> 2), v(d, 4), 56 + 2 * arr, 57 + 2 * arr, (j & 3) * 1024))
    k.end()

def tr_addr32(k, dst, vlane, t1, t2, rowstride_log2, h_rows):
    k('v_lshrrev_b32 v%d, 5, v%d' % (t1, vlane))
    k('v_mul_u32_u24 v%d, %d, v%d' % (t1, h_rows, t1))
    k('v_bfe_u32 v%d, v%d, 2, 2' % (t2, vlane))
    k('v_add_u32 v%d, v%d, v%d' % (t1, t1, t2))
    k('v_lshlrev_b32 v%d, %d, v%d' % (dst, rowstride_log2, t1))
    k('v_bfe_u32 v%d, v%d, 4, 1' % (t1, vlane))
    k('v_lshl_add_u32 v%d, v%d, 5, v%d' % (dst, t1, dst))
    k('v_and_b32 v%d, 3, v%d' % (t1, vlane))
    k('v_lshl_add_u32 v%d, v%d, 3, v%d' % (dst, t1, dst))

def k1_mod(k):
    k.reset_counters()
    k('s_sub_u32 s51, s2, %d' % (K1_KGEN + K1_STATS))
    wave_id(k, 50, 1)
    k('v_and_b32 v1, 63, v0')
    k('v_lshrrev_b32 v2, 2, v1')
    k('v_mul_u32_u24 v2, 6144, v2')
    k('v_and_b32 v3, 3, v1')
    k('v_lshl_add_u32 v2, v3, 4, v2')
    k('s_mul_i32 s52, s50, %d' % (128 * 6144))
    k('s_lshl_b32 s53, s51, 6')
    k('s_add_u32 s52, s52, s53')
    k('s_lshl_b32 s54, s50, 13')
    k('v_lshlrev_b32 v4, 2, v0')
    k.smem_wait()
    tc = k.vm('global_load_dword v5, v4, s[%d:%d]' % (P_C, P_C + 1))
    add_ptr(k, 56, P_WMOD, 52)
    for i in range(8):
        k('s_add_u32 m0, s54, %d' % (i * 1024))
        tw = k.vm('global_load_lds_dwordx4 v2, s[56:57]')
        if i < 7:
            k('s_add_u32 s56, s56, %d' % (16 * 6144))
            k('s_addc_u32 s57, s57, 0')
    tr_addr32(k, 10, 1, 11, 12, 6, 8)
    k('v_add_u32 v10, s54, v10')
    k('v_lshrrev_b32 v11, 5, v1')
    k('v_lshlrev_b32 v11, 4, v11')
    k('s_lshl_b32 s55, s50, 8')
    k('v_add_u32 v11, s55, v11')
    k.wait(vm=tc)
    k('v_lshlrev_b32 v6, 16, v5')
    k('v_and_b32 v7, 0xffff0000, v5')
    for r in (6, 7):
        k('v_mul_f32 v%d, %s, v%d' % (r + 2, f32(-LOG2E), r))
        k('v_exp_f32 v%d, v%d' % (r + 2, r + 2))
        k('v_add_f32 v%d, 1.0, v%d' % (r + 2, r + 2))
        k('v_rcp_f32 v%d, v%d' % (r + 2, r + 2))
        k('v_mul_f32 v%d, v%d, v%d' % (r, r, r + 2))
    k('v_cvt_pk_bf16_f32 v6, v6, v7')
    k.ds('ds_write_b32 v4, v6 offset:32768')
    st = [k.ds('ds_read_b128 %s, v11 offset:%d' % (v(16 + 4 * ks, 4), 32768 + 32 * ks)) for ks in range(8)]
    k.wait(vm=tw)
    wt = []
    for ks in range(8):
        k.ds('ds_read_b64_tr_b16 %s, v10 offset:%d' % (v(48 + 4 * ks, 2), ks * 1024))
        wt.append(k.ds('ds_read_b64_tr_b16 %s, v10 offset:%d' % (v(50 + 4 * ks, 2), ks * 1024 + 256)))
    for ks in range(8):
        k.wait(ds=wt[ks])
        k('v_mfma_f32_32x32x16_bf16 v[80:95], %s, %s, %s' % (v(16 + 4 * ks, 4), v(48 + 4 * ks, 4), '0' if ks == 0 else 'v[80:95]'))
    k.ds('ds_write_b32 v4, v80 offset:36864')
    k.wait_all(vm=False)
    k.barrier()
    k('s_cmp_lg_u32 s50, 0')
    k('s_cbranch_scc1 L_k1_end')
    rt = [k.ds('ds_read_b32 v%d, v4 offset:%d' % (16 + i, 36864 + 256 * i)) for i in range(4)]
    k('s_lshr_b32 s55, s51, 4')
    k('s_cmp_eq_u32 s55, 1')
    k('s_cselect_b32 s60, 1.0, 0')
    k('s_cmp_eq_u32 s55, 4')
    k('s_cselect_b32 s60, 1.0, s60')
    k('s_lshl_b32 s52, s51, 7')
    ws_ptr(k, 62, WS_MODF, 52)
    ws_ptr(k, 64, WS_MODH, 53)
    k('v_lshlrev_b32 v8, 1, v0')
    k.wait(ds=rt[-1])
    k('v_add_f32 v16, v16, v17')
    k('v_add_f32 v18, v18, v19')
    k('v_add_f32 v16, v16, v18')
    k('v_cvt_pk_bf16_f32 v16, v16, v16')
    k('v_and_b32 v16, 0xffff0000, v16')
    k('v_add_f32 v16, s60, v16')
    k('v_cvt_pk_bf16_f32 v16, v16, v16')
    k('v_and_b32 v17, 0xffff0000, v16')
    k('v_cmp_gt_u32 vcc, 32, v0')
    k('s_and_saveexec_b64 s[66:67], vcc')
    k.vm('global_store_dword v4, v17, s[62:63]')
    k.vm('global_store_short v8, v16, s[64:65]')
    k.end()

def k1_w2p(k):
    k.reset_counters()
    k('s_sub_u32 s51, s2, %d' % (K1_KGEN + K1_STATS + K1_MOD))
    wave_id(k, 50, 1)
    k('v_and_b32 v1, 63, v0')
    for r in range(4):
        k('v_xor_b32 v%d, %d, v1' % (2 + r, r << 2))
        k('v_lshlrev_b32 v%d, 4, v%d' % (2 + r, 2 + r))
    k('s_lshl_b32 s52, s51, 15')
    k('s_lshl_b32 s53, s50, 13')
    k('s_add_u32 s52, s52, s53')
    k.smem_wait()
    add_ptr(k, 56, P_W2, 52)
    k('s_add_u32 s58, s56, 4096')
    k('s_addc_u32 s59, s57, 0')
    for half in range(2):
        k('s_add_u32 m0, s53, %d' % (half * 4096))
        for r in range(4):
            k.vm('global_load_lds_dwordx4 v%d, s[%d:%d] offset:%d' % (2 + r, 56 + 2 * half, 57 + 2 * half, r * 1024))
    tr_addr32(k, 10, 1, 11, 12, 10, 4)
    k('s_lshl_b32 s54, s50, 8')
    k('v_add_u32 v10, s54, v10')
    k('v_bfe_u32 v11, v1, 2, 2')
    k('v_lshlrev_b32 v11, 6, v11')
    k('v_xor_b32 v10, v10, v11')
    for q in range(1, 4): k('v_xor_b32 v%d, %d, v10' % (10 + q, q << 6))
    k('s_mul_i32 s54, s50, %d' % (4 * 112 * 1024))
    k('s_lshl_b32 s55, s51, 11')
    k('s_add_u32 s54, s54, s55')
    ws_ptr(k, 60, WS_W2P, 54)
    k('v_lshlrev_b32 v6, 4, v1')
    for q in range(1, 4): k('v_add_u32 v%d, %d, v6' % (6 + q, q * 112 * 1024))
    k.wait_all()
    k.barrier()
    t = []
    for q in range(4):
        for ks in range(2):
            d = 16 + 4 * (2 * q + ks)
            k.ds('ds_read_b64_tr_b16 %s, v%d offset:%d' % (v(d, 2), 10 + q, ks * 16384))
            t.append(k.ds('ds_read_b64_tr_b16 %s, v%d offset:%d' % (v(d + 2, 2), 10 + q, ks * 16384 + 8192)))
    for q in range(4):
        for ks in range(2):
            d = 16 + 4 * (2 * q + ks)
            k.wait(ds=t[2 * q + ks])
            k.vm('global_store_dwordx4 v%d, %s, s[60:61] offset:%d' % (6 + q, v(d, 4), ks * 1024))
    k.end()

def gen_k1():
    k = Kern('k1_prep_kernel')
    load_ptrs(k)
    code_prefetch(k, 200)
    k('s_cmp_lt_u32 s2, %d' % K1_KGEN)
    k('s_cbranch_scc1 L_k1_kgen')
    k('s_cmp_lt_u32 s2, %d' % (K1_KGEN + K1_STATS))
    k('s_cbranch_scc1 L_k1_stats')
    k('s_cmp_lt_u32 s2, %d' % (K1_KGEN + K1_STATS + K1_MOD))
    k('s_cbranch_scc1 L_k1_mod')
    k('s_cmp_lt_u32 s2, %d' % (K1_KGEN + K1_STATS + K1_MOD + K1_W2P))
    k('s_cbranch_scc1 L_k1_w2p')
    k('L_k1_end:')
    k('s_endpgm')
    k('L_k1_kgen:'); k1_kgen(k)
    k('L_k1_stats:'); k1_stats(k)
    k('L_k1_mod:'); k1_mod(k)
    k('L_k1_w2p:'); k1_w2p(k)
    grid = K1_KGEN + K1_STATS + K1_MOD + K1_W2P
    return k, 'grid=(%d,1,1) block=(256,1,1) lds=%d' % (grid, K1_LDS), (240, 84, 240)

HEADER = open('cdna_kernels/%s.s.ref' % NAME).read().split('; Override launch')[0]

def build(kernels, path):
    out = [HEADER.rstrip()]
    for k, launch, _ in kernels: out.append('; @launch kernel=%s %s' % (k.name, launch))
    out.append('.amdgcn_target "amdgcn-amd-amdhsa--gfx950"')
    for k, launch, (vg_, sg_, ac) in kernels:
        out.append(k.text(vg_, sg_, ac))
        print(k.name, 'maxv,maxa,maxs,lines', k.stats)
    out.append('.text\nL_text_end:\n    s_endpgm')
    open(path, 'w').write('\n'.join(out) + '\n')

if __name__ == '__main__':
    import gen2
    build(gen2.all_kernels(), 'diag.s' if DIAG else 'cdna_kernels/%s.s' % NAME)
```

```python
import re, os
DIAG = int(os.environ.get('DIAG', '0'))

REG_RE = re.compile(r'^(-|abs\()?\|?([vas])(?:(\d+)|\[(\d+):(\d+)\])\|?\)?$')
TRANS = ('v_exp_f32', 'v_log_f32', 'v_rcp_f32', 'v_rsq_f32', 'v_sqrt_f32', 'v_sin_f32', 'v_cos_f32')

def regs_of(tok):
    tok = tok.strip()
    if tok in ('vcc',): return {('s', 106), ('s', 107)}
    if tok == 'vcc_lo': return {('s', 106)}
    if tok == 'exec': return {('s', 126), ('s', 127)}
    if tok == 'm0': return {('s', 124)}
    m = REG_RE.match(tok)
    if not m: return set()
    f = m.group(2)
    if m.group(3) is not None: return {(f, int(m.group(3)))}
    return {(f, i) for i in range(int(m.group(4)), int(m.group(5)) + 1)}

def split_ops(s):
    ops, depth, cur = [], 0, ''
    for ch in s:
        if ch in '[(': depth += 1
        if ch in '])': depth -= 1
        if ch == ',' and depth == 0:
            ops.append(cur.strip()); cur = ''
        else: cur += ch
    if cur.strip(): ops.append(cur.strip())
    return ops

class Ins:
    def __init__(self, text):
        self.text = text
        t = text.split(';')[0].strip()
        parts = t.split(None, 1)
        self.mn = parts[0]
        rest = parts[1] if len(parts) > 1 else ''
        ops = split_ops(rest)
        mods = ''
        if ops:
            lp = ops[-1].split(None, 1)
            if len(lp) > 1 and not lp[0].endswith(':'):
                ops[-1] = lp[0]; mods = lp[1]
        self.ops, self.mods = ops, mods
        mn = self.mn
        self.mfma = mn.startswith('v_mfma')
        self.valu = mn.startswith('v_') and not self.mfma
        self.trans = any(mn.startswith(x) for x in TRANS)
        self.dot = mn.startswith('v_dot')
        self.vmem = mn.startswith('buffer_') or mn.startswith('global_')
        self.ds = mn.startswith('ds_')
        self.salu = mn.startswith('s_')
        self.dpp = '_dpp' in mn or 'quad_perm' in mods or 'row_' in mods
        self.perml = mn.startswith('v_permlane')
        self.rdlane = mn.startswith('v_readfirstlane') or mn.startswith('v_readlane')
        self.ldsdma = self.vmem and (' lds' in (' ' + mods) or '_lds_' in mn)
        self.passes = 0
        R = [regs_of(o) for o in ops]
        w, r = set(), set()
        self.srcc = set(); self.ab = set()
        if self.mfma:
            self.passes = 8 if '32x32x16' in mn else 4 if '16x16x32' in mn else None
            assert self.passes, mn
            w = R[0]; self.ab = R[1] | R[2]; self.srcc = R[3]; r = self.ab | self.srcc
        elif self.valu:
            if self.perml and 'swap' in mn:
                w = R[0] | R[1]; r = R[0] | R[1]
            elif mn.startswith('v_cmp'):
                w = R[0]; r = set().union(*R[1:])
            elif mn.startswith(('v_add_co', 'v_sub_co', 'v_addc_co', 'v_subb_co', 'v_subrev_co')):
                w = R[0] | R[1]; r = set().union(*R[2:])
            else:
                w = R[0]; r = set().union(*R[1:]) if len(R) > 1 else set()
                if mn.startswith(('v_fmac', 'v_dot2c', 'v_pk_fmac', 'v_writelane')) or self.dpp or 'sdwa' in mn: r = r | R[0]
        elif self.ds:
            if mn.startswith(('ds_read', 'ds_bpermute', 'ds_permute', 'ds_swizzle')):
                w = R[0]; r = set().union(*R[1:])
            else:
                r = set().union(*R)
        elif self.vmem:
            if 'load' in mn and not self.ldsdma:
                w = R[0]; r = set().union(*R[1:])
            else:
                r = set().union(*R) if R else set()
            if self.ldsdma: r = r | {('s', 124)}
        elif self.salu:
            if mn.startswith(('s_cmp', 's_cbranch', 's_branch', 's_waitcnt', 's_barrier', 's_nop', 's_endpgm', 's_setprio', 's_sleep', 's_bitcmp')):
                r = set().union(*R) if R else set()
            else:
                w = R[0] if R else set(); r = set().union(*R[1:]) if len(R) > 1 else set()
                if 'saveexec' in mn: w = w | regs_of('exec')
        self.w, self.r = w, r
        if mn.startswith('v_pk_') and 'f32' in mn:
            m_ = re.search(r'op_sel:\[(\d),(\d)', mods)
            assert not (m_ and m_.group(2) == '1' and ops[2].startswith('v')), 'erratum: op_sel[1]=1 on VGPR src1: ' + text
        self.widestore = self.vmem and 'store' in mn and ('x4' in mn or 'x3' in mn)
        self.storedata = set()
        if self.widestore:
            self.storedata = R[0] if mn.startswith('buffer_') else R[1]
        self.states = 1
        if mn == 's_nop': self.states = int(ops[0], 0) + 1

def vg(s): return {x for x in s if x[0] in 'va'}
def sg(s): return {x for x in s if x[0] == 's'}

def need(p, c):
    n = 0
    pw, cw, cr = p.w, c.w, c.r
    if p.valu:
        if c.mfma and vg(pw) & cr: n = max(n, 2)
        if p.trans and (vg(pw) & cr) and not c.trans: n = max(n, 1)
        if sg(pw):
            if (c.valu or c.mfma) and sg(pw) & cr: n = max(n, 4 if c.rdlane else 2)
            if c.vmem and sg(pw) & cr: n = max(n, 5)
            if c.salu and sg(pw) & cr: n = max(n, 1)
        if c.rdlane and vg(pw) & cr: n = max(n, 1)
        if (c.dpp or c.perml) and vg(pw) & cr: n = max(n, 2)
        if p.dot and (vg(pw) & (cr | cw)):
            same = c.mn == p.mn
            if same:
                others = set()
                Rr = [regs_of(o) for o in c.ops]
                others = Rr[1] | Rr[2]
                if vg(pw) & others: n = max(n, 3)
            else: n = max(n, 3)
        if 'sdwa' in p.mn and c.valu and vg(pw) & (cr | cw): n = max(n, 1)
    if p.mfma:
        big = {4: 8, 8: 12}[p.passes]
        if c.mfma:
            if pw & c.ab: n = max(n, big)
            if pw & c.srcc:
                if not (c.srcc == pw and c.passes == p.passes): n = max(n, p.passes + 2)
            elif pw & cw and not (cw == pw and c.passes == p.passes): n = max(n, p.passes + 2)
        elif c.valu or c.vmem or c.ds:
            if pw & (cr | cw): n = max(n, big)
        if c.valu and p.srcc & cw: n = max(n, p.passes - 1)
        if (c.vmem or c.ds) and p.srcc & cw: n = max(n, p.passes - 1)
    if p.salu and ('s', 124) in pw and (c.ldsdma): n = max(n, 1)
    if p.widestore and p.storedata & cw: n = max(n, 2)
    return n

def fix_hazards(lines):
    out = []
    hist = []
    for ln in lines:
        s = ln.split(';')[0].strip()
        if not s or s.startswith('.') :
            out.append(ln); continue
        if s.endswith(':'):
            out.append(ln); continue
        c = Ins(ln)
        dist = 0; pad = 0
        for p in reversed(hist):
            nd = need(p, c)
            if nd > dist: pad = max(pad, nd - dist)
            dist += p.states
            if dist > 20: break
        while pad > 0:
            k = min(pad, 16)
            nop = Ins('s_nop %d' % (k - 1)); out.append('    s_nop %d' % (k - 1)); hist.append(nop); pad -= k
        out.append(ln); hist.append(c)
        if c.mn in ('s_endpgm', 's_branch'): hist = []
        if len(hist) > 40: hist = hist[-30:]
    return out

class Kern:
    def __init__(self, name):
        self.name = name; self.lines = []; self.kidx = int(name[1]) - 1 if name[1].isdigit() else 0
        self.nvm = 0; self.nds = 0; self.vm_done = 0; self.ds_done = 0
        if DIAG:
            for i in range(8): self.lines.append('    s_mov_b64 s[%d:%d], 0' % (84 + 2 * i, 85 + 2 * i))
            self.stamp(0)
        self.nvm = 0; self.nds = 0; self.vm_done = 0; self.ds_done = 0
    def __call__(self, s):
        for l in s.split('\n'):
            l = l.strip()
            if not l: continue
            if l.endswith(':') or l.startswith('.'): self.lines.append(l)
            else:
                mn = l.split()[0]
                assert not (mn.startswith('buffer_') or mn.startswith('global_') or mn.startswith('ds_')), 'use vm()/ds(): ' + l
                self.lines.append('    ' + l)
    def stamp(self, i):
        if DIAG:
            self.lines.append('    s_memrealtime s[100:101]')
            self.lines.append('    s_waitcnt lgkmcnt(0)')
            self.lines.append('    s_mov_b32 s%d, s100' % (84 + i))
            self.ds_done = self.nds
    def end(self):
        if DIAG:
            L = self.lines
            L.append('    s_waitcnt vmcnt(0) lgkmcnt(0)')
            self.stamp(15)
            L.append('    s_mov_b64 exec, -1')
            if DIAG == 2:
                L.append('    s_mov_b64 exec, 1')
                L.append('    v_mov_b32 v1, 0')
                for n, i in enumerate([2, 4, 7, 9, 10, 11, 12, 13, 14, 1, 15]):
                    L.append('    s_sub_u32 s100, s%d, s81' % (84 + i))
                    L.append('    v_mov_b32 v2, s100')
                    L.append('    s_nop 1')
                    L.append('    global_atomic_umax v1, v2, s[46:47] offset:%d' % (4 * (n + 1)))
                    L.append('    s_nop 1')
                L.append('    s_endpgm')
                return
            L.append('    v_lshrrev_b32 v1, 6, v0')
            L.append('    v_lshl_add_u32 v1, s2, 3, v1')
            L.append('    v_lshlrev_b32 v1, 6, v1')
            L.append('    v_add_u32 v1, 0x%x, v1' % (0x4000000 + self.kidx * 0x100000))
            for i in range(16):
                L.append('    v_mov_b32 v2, s%d' % (84 + i))
                L.append('    s_nop 1')
                L.append('    global_store_dword v1, v2, s[48:49] offset:%d' % (4 * i))
                L.append('    s_nop 1')
        self.lines.append('    s_endpgm')
    def reset_counters(self):
        self.nvm = self.nds = self.vm_done = self.ds_done = 0
    def vm(self, s):
        self.lines.append('    ' + s); self.nvm += 1; return self.nvm
    def ds(self, s):
        self.lines.append('    ' + s); self.nds += 1; return self.nds
    def wait(self, vm=None, ds=None):
        parts = []
        if vm is not None and vm > self.vm_done:
            n = min(self.nvm - vm, 63); parts.append('vmcnt(%d)' % n); self.vm_done = self.nvm - n
        if ds is not None and ds > self.ds_done:
            n = min(self.nds - ds, 15); parts.append('lgkmcnt(%d)' % n); self.ds_done = self.nds - n
        if parts: self.lines.append('    s_waitcnt ' + ' '.join(parts))
    def wait_all(self, vm=True, ds=True):
        parts = []
        if vm: parts.append('vmcnt(0)'); self.vm_done = self.nvm
        if ds: parts.append('lgkmcnt(0)'); self.ds_done = self.nds
        self.lines.append('    s_waitcnt ' + ' '.join(parts))
    def smem_wait(self):
        self.lines.append('    s_waitcnt lgkmcnt(0)'); self.ds_done = self.nds
    def barrier(self):
        self.lines.append('    s_barrier')
    def text(self, vgpr, sgpr, accum):
        if DIAG: sgpr = 102
        body = fix_hazards(self.lines)
        if int(os.environ.get('ALIGN', '1')): body = align_pass(body)
        head = ['.text', '.globl %s' % self.name, '.p2align 8', '.type %s,@function' % self.name, '%s:' % self.name]
        desc = ['.section .rodata,"a"', '.p2align 6', '.amdhsa_kernel %s' % self.name,
                '  .amdhsa_next_free_vgpr %d' % vgpr, '  .amdhsa_next_free_sgpr %d' % sgpr, '  .amdhsa_accum_offset %d' % accum,
                '  .amdhsa_group_segment_fixed_size 0', '  .amdhsa_kernarg_size 136', '  .amdhsa_user_sgpr_count 2',
                '  .amdhsa_user_sgpr_kernarg_segment_ptr 1', '  .amdhsa_system_sgpr_workgroup_id_x 1', '.end_amdhsa_kernel']
        lastw = {}
        for ln in body:
            t_ = ln.split(';')[0].strip()
            if not t_ or t_.startswith('.') or t_.endswith(':'): continue
            i = Ins(ln)
            if i.vmem or i.mn.startswith('s_load'):
                for o in (i.ops if i.vmem else i.ops[1:2]):
                    m = re.match(r's\[(\d+):(\d+)\]$', o)
                    if m and int(m.group(1)) > 1:
                        lo, hi = int(m.group(1)), int(m.group(2))
                        whi, wlo = lastw.get(hi, '?'), lastw.get(lo, '?')
                        okh = whi.startswith(('s_addc_u32', 's_load', 's_getpc', 's_cselect', 's_mov'))
                        okl = wlo.startswith(('s_add_u32', 's_load', 's_getpc', 's_cselect', 's_mov'))
                        assert okh and okl, ('bad base', ln, wlo, whi)
            for f, n in i.w:
                if f == 's': lastw[n] = t_
        mv = ma = ms = -1
        for ln in body:
            s = ln.split(';')[0].strip()
            if not s or s.startswith('.') or s.endswith(':'): continue
            i = Ins(ln)
            for f, n in i.w | i.r:
                if f == 'v': mv = max(mv, n)
                elif f == 'a': ma = max(ma, n)
                elif n < 102: ms = max(ms, n)
        assert mv < accum, (self.name, mv, accum)
        assert accum + ma + 1 <= vgpr or ma < 0, (self.name, ma, accum, vgpr)
        assert mv < vgpr and ms < sgpr, (self.name, mv, ms)
        self.stats = (mv, ma, ms, len(body))
        return '\n'.join(head + body + desc)

def v(n, c=1): return 'v%d' % n if c == 1 else 'v[%d:%d]' % (n, n + c - 1)
def a(n, c=1): return 'a%d' % n if c == 1 else 'a[%d:%d]' % (n, n + c - 1)
def s(n, c=1): return 's%d' % n if c == 1 else 's[%d:%d]' % (n, n + c - 1)
import struct
def f32(x): return '0x%08x' % struct.unpack('<I', struct.pack('<f', x))[0]

import subprocess, tempfile
WIDEN = ('v_mov_b32', 'v_add_u32', 'v_sub_u32', 'v_and_b32', 'v_or_b32', 'v_xor_b32', 'v_lshlrev_b32', 'v_lshrrev_b32', 'v_add_f32', 'v_mul_f32',
         'v_max_f32', 'v_min_u32', 'v_exp_f32', 'v_rcp_f32', 'v_rsq_f32', 'v_cvt_f32_u32', 'v_fract_f32', 'v_sin_f32', 'v_cos_f32', 'v_mul_u32_u24',
         'v_fmac_f32', 'v_cndmask_b32', 'v_mov_b64', 'v_sub_f32')
def align_pass(lines, nopcost=4.0):
    src = '.amdgcn_target "amdgcn-amd-amdhsa--gfx950"\n.text\n' + '\n'.join(lines) + '\nL_text_end:\n s_endpgm\n'
    d = tempfile.mkdtemp()
    open(d + '/a.s', 'w').write(src)
    r = subprocess.run(['clang', '-x', 'assembler', '-target', 'amdgcn-amd-amdhsa', '-mcpu=gfx950', '-c', d + '/a.s', '-o', d + '/a.o'], capture_output=True, text=True)
    assert r.returncode == 0, r.stderr[:2000]
    o = subprocess.run(['llvm-objdump', '-d', '--mcpu=gfx950', d + '/a.o'], capture_output=True, text=True).stdout
    sizes = []
    for l in o.split('\n'):
        m = re.search(r'// [0-9A-F]{12}: ((?:[0-9A-F]{8} ?)+)', l)
        if m: sizes.append(4 * len(m.group(1).split()))
    idx = [i for i, l in enumerate(lines) if (lambda s_: s_ and not s_.startswith('.') and not s_.endswith(':'))(l.split(';')[0].strip())]
    assert len(sizes) == len(idx) + 1, (len(sizes), len(idx))
    n = len(idx)
    INF = 1e18
    cost = [[INF, INF] for _ in range(n + 1)]; back = [[None, None] for _ in range(n + 1)]
    cost[0][0] = 0
    for i in range(n):
        mn = lines[idx[i]].split()[0]
        sz = sizes[i]
        for p in (0, 1):
            c0 = cost[i][p]
            if c0 >= INF: continue
            opts = []
            for nop in (0, 1):
                q = p ^ nop; cn = c0 + nop * nopcost
                if sz == 4:
                    opts.append((q ^ 1, cn, nop, 0))
                    if mn in WIDEN: opts.append((q, cn + (1 if q else 0) + 0.01, nop, 1))
                else:
                    opts.append((q ^ ((sz // 4) & 1), cn + (1 if q else 0), nop, 0))
            for q2, c2, nop, wd in opts:
                if c2 < cost[i + 1][q2]: cost[i + 1][q2] = c2; back[i + 1][q2] = (p, nop, wd)
    p = 0 if cost[n][0] <= cost[n][1] else 1
    dec = [None] * n
    for i in range(n, 0, -1):
        pp, nop, wd = back[i][p]; dec[i - 1] = (nop, wd); p = pp
    out = []; j = 0
    for i, l in enumerate(lines):
        if j < n and idx[j] == i:
            nop, wd = dec[j]; j += 1
            if nop: out.append('    s_nop 0')
            if wd:
                mn = l.split()[0]; l = l.replace(mn, mn + '_e64', 1)
        out.append(l)
    print('align: cost before', sum(1 for i in range(n) if sizes[i] == 8 and (sum(sizes[:i]) & 4)) if n < 6000 else '?', 'after', min(cost[n]))
    return out
```

```python
from gen import *
WS_SYNC = 0xF00000
PRE = 3
import os
HID_SC = os.environ.get('HID_SC', '')
MAP47 = int(os.environ.get('MAP47', '1'))
W2_EARLY = int(os.environ.get('W2_EARLY', '14'))

def gen_k34():
    k = Kern('k3_mlp_kernel')
    k('s_load_dwordx2 s[48:49], s[0:1], 128')
    k('s_load_dwordx2 s[44:45], s[0:1], 112')
    code_prefetch(k, 127)
    k('s_cmp_ge_u32 s2, 256')
    k('s_cbranch_scc1 L_k3_end')
    wave_id(k, 50, 1)
    k('v_and_b32 v1, 63, v0')
    k('v_lshlrev_b32 v2, 4, v1')
    k('s_and_b32 s3, s2, 7')
    k('s_lshr_b32 s4, s2, 3')
    k('s_cmp_ge_u32 s4, 28')
    k('s_cbranch_scc1 L_k3_stats')
    if MAP47:
        k('s_lshr_b32 s51, s3, 1')
        k('s_lshl_b32 s51, s51, 2')
        k('s_and_b32 s53, s4, 3')
        k('s_add_u32 s51, s51, s53')
        k('s_and_b32 s52, s3, 1')
        k('s_mul_i32 s52, s52, 7')
        k('s_lshr_b32 s53, s4, 2')
        k('s_add_u32 s52, s52, s53')
    else:
        k('s_lshl_b32 s51, s3, 1')
        k('s_cmp_ge_u32 s4, 14')
        k('s_cselect_b32 s53, 1, 0')
        k('s_cselect_b32 s54, 14, 0')
        k('s_add_u32 s51, s51, s53')
        k('s_sub_u32 s52, s4, s54')
    k('s_lshl_b32 s53, s52, 2')
    k('s_add_u32 s53, s53, s50')
    k('s_lshl_b32 s54, s53, 15')
    k('s_lshl_b32 s55, s51, 17')
    k('s_lshl_b32 s56, s50, 15')
    k('s_add_u32 s55, s55, s56')
    k.smem_wait()
    ws_ptr(k, 58, WS_X1T, 55)
    ws_ptr(k, 60, WS_W1P, 54)
    AW = 128
    ctok = {}
    def chunk_ops(c):
        ops = []
        ops.append(lambda: k('s_add_u32 m0, s56, %d' % (c * 4096)))
        for i in range(4): ops.append(lambda i=i: k.vm('global_load_lds_dwordx4 v2, s[58:59] offset:%d' % (i * 1024)))
        def ld(i):
            ctok[c] = k.vm('global_load_dwordx4 %s, v2, s[60:61] offset:%d' % (v(AW + 16 * c + 4 * i, 4), i * 1024))
        for i in range(4): ops.append(lambda i=i: ld(i))
        if c < 7: ops.append(lambda: k('s_add_u32 s58, s58, 4096\ns_addc_u32 s59, s59, 0\ns_add_u32 s60, s60, 4096\ns_addc_u32 s61, s61, 0'))
        return ops
    for c in range(PRE):
        for op in chunk_ops(c): op()
    phaseb_setup(k)
    tr_addr32(k, 3, 1, 8, 9, 6, 8)
    k('v_and_b32 v12, 31, v1')
    k('v_lshlrev_b32 v12, 3, v12')
    for j in range(4):
        k('s_add_u32 s62, s50, %d' % j)
        k('s_and_b32 s62, s62, 3')
        k('s_lshl_b32 s63, s62, 15')
        k('v_add_u32 v%d, s63, v3' % (4 + j))
        k('s_mul_i32 s63, s62, 114688')
        k('v_add_u32 v%d, s63, v2' % (8 + j))
        k('s_lshl_b32 s63, s62, 8')
        k('v_add_u32 v%d, s63, v12' % (124 + j if j < 3 else 14))
    SG = [124, 125, 126, 14]
    k('v_lshrrev_b32 v13, 5, v1')
    k('v_lshlrev_b32 v13, 4, v13')
    k('s_lshl_b32 s62, s53, 7')
    ws_ptr(k, 64, WS_C12, 62)
    ws_ptr(k, 66, WS_C12 + 8192, 62)
    k('s_mul_i32 s62, s51, %d' % (4 * 114688))
    k('s_lshl_b32 s63, s53, 11')
    k('s_add_u32 s62, s62, s63')
    ws_ptr(k, 68, WS_HID, 62)
    k('s_lshl_b32 s62, s51, 10')
    ws_ptr(k, 70, WS_SYNC, 62)
    k('s_lshl_b32 s62, s51, 8')
    ws_ptr(k, 72, WS_SYNC + 16384, 62)
    ACC = 16
    def breg(s_, j): return 80 + 16 * (s_ & 1) + 4 * j
    rtok = {}
    def rd(s_, j):
        k.ds('ds_read_b64_tr_b16 %s, v%d offset:%d' % (v(breg(s_, j), 2), 4 + j, s_ * 1024))
        rtok[s_, j] = k.ds('ds_read_b64_tr_b16 %s, v%d offset:%d' % (v(breg(s_, j) + 2, 2), 4 + j, s_ * 1024 + 256))
    k.stamp(1)
    if DIAG: k.smem_wait()
    k.wait(vm=ctok[0]); k.barrier()
    if DIAG: k.stamp(2); k.smem_wait()
    for j in range(4): rd(0, j)
    pend = []
    w2n = [0]
    for s_ in range(32):
        c = s_ // 4
        if s_ % 4 == 0 and c + PRE < 8: pend += chunk_ops(c + PRE)
        if s_ == 20:
            for q in range(4): pend.append(lambda q=q: k.vm('global_load_dwordx4 %s, v13, s[64:65] offset:%d' % (v(128 + 4 * q, 4), 32 * q)))
            for q in range(4): pend.append(lambda q=q: k.vm('global_load_dwordx4 %s, v13, s[66:67] offset:%d' % (v(144 + 4 * q, 4), 32 * q)))
        if s_ == 23:
            def sl(j): ctok['st'] = k.vm('global_load_dwordx2 %s, v%d, s[70:71] sc1' % (v(160 + 2 * j, 2), SG[j]))
            for j in range(4): pend.append(lambda j=j: sl(j))
        if s_ == 25:
            for ks in range(W2_EARLY): pend += w2_ops(k, ks)
        if s_ % 4 == 3 and s_ < 31:
            k.wait(vm=ctok[c + 1]); k.barrier()
        for j in range(4):
            k.wait(ds=rtok[s_, j])
            k('v_mfma_f32_32x32x16_bf16 %s, %s, %s, %s' % (v(ACC + 16 * j, 16), v(AW + 4 * s_, 4), v(breg(s_, j), 4), '0' if s_ == 0 else v(ACC + 16 * j, 16)))
            if s_ < 31: rd(s_ + 1, j)
            for _ in range(2 if s_ >= 25 else 1):
                if pend: pend.pop(0)()
    while pend: pend.pop(0)()
    k.stamp(3)
    k.wait(vm=ctok['st'])
    k('s_mov_b32 s62, 0')
    k('L_k3_chk:')
    k('v_min_u32 v168, v161, v163')
    k('v_min_u32 v169, v165, v167')
    k('v_min_u32 v168, v168, v169')
    k('v_cmp_eq_u32 vcc, 0, v168')
    k('s_cbranch_vccz L_k3_ok')
    k('s_add_u32 s62, s62, 1')
    k('s_cmp_gt_u32 s62, 0x40000')
    k('s_cbranch_scc1 L_k3_ok')
    k('s_sleep 2')
    for j in range(4): k.lines.append('    global_load_dwordx2 %s, v%d, s[70:71] sc1' % (v(160 + 2 * j, 2), SG[j]))
    k('s_waitcnt vmcnt(0)')
    k('s_branch L_k3_chk')
    k('L_k3_ok:')
    k('s_nop 7')
    k.stamp(4)
    for j in range(4):
        b = 160 + 2 * j
        A_ = ACC + 16 * j
        for p in range(8):
            x = v(A_ + 2 * p, 2)
            k('v_pk_fma_f32 %s, %s, %s, %s op_sel_hi:[1,0,1] neg_lo:[0,1,0] neg_hi:[0,1,0]' % (x, v(128 + 2 * p, 2), v(b, 2), x))
        for p in range(8):
            x = v(A_ + 2 * p, 2)
            k('v_pk_fma_f32 %s, %s, %s, %s op_sel:[1,0,0] op_sel_hi:[1,1,1]' % (x, v(b, 2), x, v(144 + 2 * p, 2)))
        for r in range(16): k('v_exp_f32 v%d, v%d' % (80 + r, A_ + r))
        for p in range(8): k('v_pk_add_f32 %s, %s, 1.0 op_sel_hi:[1,0]' % (v(80 + 2 * p, 2), v(80 + 2 * p, 2)))
        for r in range(16): k('v_rcp_f32 v%d, v%d' % (80 + r, 80 + r))
        for p in range(8): k('v_pk_mul_f32 %s, %s, %s' % (v(A_ + 2 * p, 2), v(A_ + 2 * p, 2), v(80 + 2 * p, 2)))
        O = 168 + 8 * j
        for p in range(8): k('v_cvt_pk_bf16_f32 v%d, v%d, v%d' % (O + p, A_ + 2 * p, A_ + 2 * p + 1))
        k.vm('global_store_dwordx4 v%d, %s, s[68:69] sc1' % (8 + j, v(O, 4)))
        lst = k.vm('global_store_dwordx4 v%d, %s, s[68:69] offset:1024 sc1' % (8 + j, v(O + 4, 4)))
    for ks in range(W2_EARLY, 28):
        for op in w2_ops(k, ks): op()
    resid_loads(k)
    k.wait(vm=lst)
    k.barrier()
    k.stamp(5)
    k('s_cmp_lg_u32 s50, 0')
    k('s_cbranch_scc1 L_k3_wait')
    k('s_mov_b64 exec, 1')
    k('v_mov_b32 v3, 0')
    k('v_mov_b32 v4, 1')
    k.lines.append('    global_atomic_add v3, v4, s[72:73]')
    k('s_branch L_k3_poll0')
    k('L_k3_stats:')
    k.reset_counters()
    k('s_sub_u32 s51, s4, 28')
    k('s_lshl_b32 s51, s51, 1')
    k('s_lshl_b32 s52, s3, 3')
    k('s_add_u32 s51, s51, s52')
    k('s_lshl_b32 s52, s51, 15')
    k('s_lshl_b32 s53, s50, 14')
    k('s_add_u32 s52, s52, s53')
    k.smem_wait()
    ws_ptr(k, 58, WS_X1T, 52)
    xt = []
    for i in range(16):
        xt.append(k.vm('global_load_dwordx4 %s, v2, s[58:59] offset:%d' % (v(128 + 4 * i, 4), (i & 3) * 1024)))
        if (i & 3) == 3 and i < 15: k('s_add_u32 s58, s58, 4096\ns_addc_u32 s59, s59, 0')
    phaseb_setup(k)
    k('s_mov_b32 s62, 0xffff0000')
    for r in range(16): k('v_mov_b32 v%d, 0' % (16 + r))
    for i in range(16):
        k.wait(vm=xt[i])
        for j in range(4):
            r = 128 + 4 * i + j
            tt = 32 + 2 * (j & 1)
            k('v_lshlrev_b32 v%d, 16, v%d' % (tt, r))
            k('v_and_b32 v%d, s62, v%d' % (tt + 1, r))
            k('v_pk_add_f32 %s, %s, %s' % (v(16 + 2 * j, 2), v(16 + 2 * j, 2), v(tt, 2)))
            k('v_pk_fma_f32 %s, %s, %s, %s' % (v(24 + 2 * j, 2), v(tt, 2), v(tt, 2), v(24 + 2 * j, 2)))
    for pat in ('row_ror:4', 'row_ror:8'):
        for r in range(16): k('v_add_f32_dpp v%d, v%d, v%d %s row_mask:0xf bank_mask:0xf' % (16 + r, 16 + r, 16 + r, pat))
    k('v_lshlrev_b32 v3, 6, v0')
    for i in range(4): k.ds('ds_write_b128 v3, %s offset:%d' % (v(16 + 4 * i, 4), 16 * i))
    k.wait_all(vm=False)
    k.barrier()
    k('s_cmp_lg_u32 s50, 0')
    k('s_cbranch_scc1 L_k3_st2')
    k('v_lshrrev_b32 v3, 5, v1')
    k('v_lshlrev_b32 v3, 13, v3')
    k('v_bfe_u32 v4, v1, 3, 2')
    k('v_lshl_add_u32 v3, v4, 6, v3')
    k('v_and_b32 v4, 7, v1')
    k('v_lshl_add_u32 v3, v4, 2, v3')
    for q in range(8): t = k.ds('ds_read2_b32 %s, v3 offset0:%d offset1:%d' % (v(16 + 2 * q, 2), 0, 8)); k('v_add_u32 v3, 1024, v3')
    k('s_lshl_b32 s62, s51, 8')
    ws_ptr(k, 70, WS_SYNC, 62)
    k('v_lshlrev_b32 v4, 3, v1')
    k.wait(ds=t)
    for q in range(1, 8): k('v_pk_add_f32 v[16:17], v[16:17], %s' % v(16 + 2 * q, 2))
    k('v_mul_f32 v16, %s, v16' % f32(1.0 / 512))
    k('v_mul_f32 v17, %s, v17' % f32(1.0 / 512))
    k('v_fma_f32 v17, -v16, v16, v17')
    k('v_max_f32 v17, 0, v17')
    k('v_add_f32 v17, %s, v17' % f32(1e-5))
    k('v_rsq_f32 v17, v17')
    k('v_mul_f32 v17, %s, v17' % f32(-LOG2E))
    k.vm('global_store_dwordx2 v4, v[16:17], s[70:71] sc1')
    k('L_k3_st2:')
    k.stamp(4)
    for ks in range(28):
        for op in w2_ops(k, ks): op()
    resid_loads(k)
    k.stamp(5)
    k('s_cmp_lg_u32 s50, 0')
    k('s_cbranch_scc1 L_k3_wait')
    k('s_mov_b64 exec, 1')
    k('v_mov_b32 v3, 0')
    k('L_k3_poll0:')
    k('s_mov_b32 s62, 0')
    k('L_k3_poll:')
    k.lines.append('    global_load_dword v5, v3, s[74:75] sc1')
    k('s_waitcnt vmcnt(0)')
    k('v_readfirstlane_b32 s63, v5')
    k('s_cmp_ge_u32 s63, 14')
    k('s_cbranch_scc1 L_k3_pd')
    k('s_add_u32 s62, s62, 1')
    k('s_cmp_gt_u32 s62, 0x40000')
    k('s_cbranch_scc1 L_k3_pd')
    k('s_sleep 1')
    k('s_branch L_k3_poll')
    k('L_k3_pd:')
    k('s_mov_b64 exec, -1')
    k('L_k3_wait:')
    k.barrier()
    k.stamp(6)
    k.reset_counters()
    NS = 16
    tok = {}
    def issue(s_):
        b = 128 + 8 * (s_ % NS)
        off = (s_ & 3) * 1024
        k.vm('global_load_dwordx4 %s, v114, s[78:79] offset:%d %s' % (v(b, 4), off, HID_SC))
        tok[s_] = k.vm('global_load_dwordx4 %s, v115, s[78:79] offset:%d %s' % (v(b + 4, 4), off, HID_SC))
        if (s_ & 3) == 3 and s_ < 27: k('s_add_u32 s78, s78, 4096\ns_addc_u32 s79, s79, 0')
    for s_ in range(NS): issue(s_)
    for s_ in range(28):
        k.wait(vm=tok[s_])
        b = 128 + 8 * (s_ % NS)
        for j in range(4):
            k('v_mfma_f32_32x32x16_bf16 %s, %s, %s, %s' % (v(ACC + 16 * j, 16), a(8 * s_ + 4 * (j >> 1), 4), v(b + 4 * (j & 1), 4), '0' if s_ == 0 else v(ACC + 16 * j, 16)))
        if s_ + NS < 28: issue(s_ + NS)
        if s_ == 2:
            k('s_mov_b32 s62, %s' % f32(-math.log(2.0)))
        if 2 <= s_ < 10:
            for r in (2 * (s_ - 2), 2 * (s_ - 2) + 1): k('v_mul_f32 v%d, s62, v%d' % (96 + r, 96 + r))
    for j in range(1, 4):
        for q in range(4):
            k.ds('ds_write_b128 v%d, %s offset:%d' % (119 + j, v(ACC + 16 * j + 4 * q, 4), (j - 1) * 4096 + q * 1024))
    k.wait_all(vm=False)
    k.barrier()
    rt_ = []
    for j in range(3):
        for q in range(4): t = k.ds('ds_read_b128 %s, v123 offset:%d' % (v(32 + 16 * j + 4 * q, 4), j * 4096 + q * 1024))
        rt_.append(t)
    for j in range(3):
        k.wait(ds=rt_[j])
        for p in range(8): k('v_pk_add_f32 %s, %s, %s' % (v(ACC + 2 * p, 2), v(ACC + 2 * p, 2), v(32 + 16 * j + 2 * p, 2)))
    for p in range(8):
        k('v_pk_fma_f32 %s, %s, %s, %s' % (v(ACC + 2 * p, 2), v(ACC + 2 * p, 2), v(96 + 2 * p, 2), v(80 + 2 * p, 2)))
        k('v_cvt_pk_bf16_f32 v%d, v%d, v%d' % (128 + p, ACC + 2 * p, ACC + 2 * p + 1))
    for qq in range(2):
        b = 128 + 4 * qq
        k('v_permlane32_swap_b32 v%d, v%d' % (b, b + 2))
        k('v_permlane32_swap_b32 v%d, v%d' % (b + 1, b + 3))
        k.vm('global_store_dwordx4 v118, %s, s[24:25] offset:%d' % (v(b, 4), 32 * qq))
    k.end()
    k('L_k3_end:')
    k('s_endpgm')
    return k, 'grid=(256,1,1) block=(256,1,1) lds=131072', (256 + 224, 84, 256)

def phaseb_setup(k):
    k('s_lshl_b32 s5, s3, 2')
    k('s_lshr_b32 s6, s4, 3')
    k('s_add_u32 s5, s5, s6')
    k('s_and_b32 s6, s4, 7')
    k('s_lshr_b32 s7, s50, 1')
    k('s_and_b32 s8, s50, 1')
    k('s_mul_i32 s9, s7, 114688')
    k('v_add_u32 v112, s9, v2')
    k('s_sub_u32 s9, 114688, s9')
    k('v_add_u32 v113, s9, v2')
    k('s_mul_i32 s9, s8, 114688')
    k('v_add_u32 v114, s9, v2')
    k('s_sub_u32 s9, 114688, s9')
    k('v_add_u32 v115, s9, v2')
    k('s_mul_i32 s9, s50, %d' % (28 * 1024))
    k('s_mul_i32 s10, s6, %d' % (2 * 114688))
    k('s_add_u32 s10, s10, s9')
    ws_ptr(k, 76, WS_W2P, 10)
    k('s_mul_i32 s10, s5, %d' % (2 * 114688))
    k('s_add_u32 s10, s10, s9')
    ws_ptr(k, 78, WS_HID, 10)
    k('s_lshr_b32 s10, s5, 1')
    k('s_lshl_b32 s10, s10, 8')
    ws_ptr(k, 74, WS_SYNC + 16384, 10)
    k('v_lshrrev_b32 v119, 5, v1')
    k('v_and_b32 v118, 31, v1')
    k('v_lshlrev_b32 v116, 8, v119')
    k('v_lshl_add_u32 v116, v118, 1, v116')
    k('v_lshlrev_b32 v117, 4, v119')
    k('v_lshl_add_u32 v118, v118, 10, v117')
    k('s_lshl_b32 s11, s5, 1')
    k('s_add_u32 s11, s11, s8')
    k('s_lshl_b32 s12, s6, 1')
    k('s_add_u32 s12, s12, s7')
    k('s_lshl_b32 s13, s11, 15')
    k('s_lshl_b32 s14, s12, 11')
    k('s_add_u32 s14, s14, s13')
    ws_ptr(k, 20, WS_X1T, 14)
    k('s_lshl_b32 s14, s12, 7')
    ws_ptr(k, 22, WS_MODF + 2560 * 4, 14)
    k('s_lshl_b32 s14, s12, 6')
    k('s_add_u32 s14, s14, s13')
    add_ptr(k, 24, 44, 14)
    for j in range(1, 4):
        k('s_xor_b32 s14, s50, %d' % j)
        k('s_mul_i32 s14, s14, 12288')
        k('v_add_u32 v%d, s14, v2' % (119 + j))
    k('s_mul_i32 s14, s50, 12288')
    k('v_add_u32 v123, s14, v2')

def w2_ops(k, ks):
    ops = []
    off = (ks & 3) * 1024
    ops.append(lambda: k.vm('global_load_dwordx4 %s, v112, s[76:77] offset:%d' % (a(8 * ks, 4), off)))
    ops.append(lambda: k.vm('global_load_dwordx4 %s, v113, s[76:77] offset:%d' % (a(8 * ks + 4, 4), off)))
    if (ks & 3) == 3 and ks < 27: ops.append(lambda: k('s_add_u32 s76, s76, 4096\ns_addc_u32 s77, s77, 0'))
    return ops

def resid_loads(k):
    for r in range(16): k('v_mov_b32 v%d, 0' % (80 + r))
    for q in range(4): k.vm('global_load_dwordx4 %s, v117, s[22:23] offset:%d' % (v(96 + 4 * q, 4), 32 * q))
    for q in range(4):
        for r in range(4): k.vm('global_load_short_d16_hi v%d, v116, s[20:21] offset:%d' % (80 + 4 * q + r, (8 * q + r) * 64))

def kernels(): return [gen_k34()]
```

```python
import os
from gen import *
E = lambda n, d: int(os.environ.get(n, str(d)))
WS_XG = 0x000000
WS_MODG = 0x820000
WS_FIN = 0x860000
WS_X1S = 0xB00000
WS_SYNC = 0xF00000
O_F2, O_F3 = 0x8000, 0xA000
L_T = 65536
L_CM = 98304; L_SC = 114688
L_STN = 118784; L_STX = 118784 + 8448 + 128
L_CV = 0; CHS = 21120
O_K1 = 4160; O_H = 8320; O_RED = 12928
L_X = 42240
L_W1 = 50432 + 768
NW1 = 22
L_GS = L_W1 + NW1 * 4096
L_SJ = L_GS + 4096
LDS_TOTAL = L_SJ + 16384
SC = ' sc1'
LD_SC = ' sc1'
TMO = 0x20000
SYNCW = 1
KSPLIT = E('KSPLIT', 1)

def raw(k, s_): k.lines.append('    ' + s_)

def retry_tail(k, name, loads, sleep=0):
    k('s_nop 0')
    k('s_cbranch_vccz L_%s_w' % name)
    k('s_add_u32 s80, s80, 1')
    k('s_cmp_gt_u32 s80, 0x%x' % TMO)
    k('s_cbranch_scc1 L_%s_w' % name)
    if sleep: k('s_sleep %d' % sleep)
    for l in loads: raw(k, l)
    k('s_branch L_%s_p' % name)
    k('L_%s_w:' % name)

def poll(k, name, loads, check):
    k('s_cmp_lg_u32 s50, %d' % SYNCW)
    k('s_cbranch_scc1 L_%s_w' % name)
    k('s_mov_b32 s80, 0')
    for l in loads: raw(k, l)
    k('L_%s_p:' % name)
    k('s_waitcnt vmcnt(0)')
    for c in check: k(c)
    retry_tail(k, name, loads, 1)
    k.barrier()

def signal(k, name, off, va, vd, nrep=8, sidx=None):
    k('s_cmp_lg_u32 s50, %d' % SYNCW)
    k('s_cbranch_scc1 L_%s_s' % name)
    if sidx is None:
        k('s_lshl_b32 s80, s2, 2')
        k('s_add_u32 s80, s80, 0x%x' % off)
    else:
        k('s_add_u32 s80, s%d, 0x%x' % (sidx, off))
    k('v_lshl_add_u32 v%d, v1, 10, s80' % va)
    k('v_mov_b32 v%d, s81' % vd)
    k('s_mov_b64 exec, %d' % ((1 << nrep) - 1))
    raw(k, 'global_store_dword v%d, v%d, s[14:15]%s' % (va, vd, SC))
    k('s_mov_b64 exec, -1')
    k('L_%s_s:' % name)

def chk_tags(regs, t):
    o = ['v_xor_b32 v%d, s81, v%d' % (t, regs[0])]
    for r in regs[1:]:
        o += ['v_xor_b32 v%d, s81, v%d' % (t + 1, r), 'v_or_b32 v%d, v%d, v%d' % (t, t, t + 1)]
    return o + ['v_cmp_ne_u32 vcc, 0, v%d' % t]

def phase0(k):
    load_ptrs(k)
    k('s_getpc_b64 s[82:83]')
    k('L_pf:')
    k('v_lshlrev_b32 v255, 7, v0')
    k('v_min_u32 v255, L_text_end-L_pf-4, v255')
    raw(k, 'global_load_dword v255, v255, s[82:83]')
    k('s_cmp_ge_u32 s2, 256')
    k('s_cbranch_scc1 L_end')
    k('s_memrealtime s[78:79]')
    wave_id(k, 50, 1)
    k('v_and_b32 v1, 63, v0')
    k('s_and_b32 s3, s2, 7')
    k('s_lshr_b32 s4, s2, 3')
    k('s_lshl_b32 s51, s2, 9')
    k('v_lshl_add_u32 v2, v0, 1, s51')
    for i in range(4, 11): k('v_mov_b32 v%d, 0' % i)
    k('s_lshr_b32 s52, s50, 1')
    k('s_lshl_b32 s53, s2, 1')
    k('s_add_u32 s53, s53, s52')
    k('s_lshl_b32 s54, s53, 1')
    k('v_mov_b32 v3, s54')
    k('v_lshrrev_b32 v77, 5, v0')
    k('v_and_b32 v78, 31, v0')
    k('v_lshlrev_b32 v78, 4, v78')
    k('v_lshl_add_u32 v79, v77, 10, v78')
    k('s_lshl_b32 s63, s2, 13')
    k('v_add_u32 v79, s63, v79')
    k.smem_wait()
    k('s_or_b32 s78, s78, 1')
    k('s_or_b32 s79, s2, s50')
    k('s_cmp_eq_u32 s79, 0')
    k('s_cbranch_scc0 L_nn')
    k('v_mov_b32 v250, s78')
    k('s_mov_b64 exec, 1')
    raw(k, 'global_store_dword v4, v250, s[%d:%d]%s' % (P_DBG, P_DBG + 1, SC))
    k('s_mov_b64 exec, -1')
    k('L_nn:')
    k.vm('global_load_short_d16_hi v10, v3, s[%d:%d]' % (P_LDT, P_LDT + 1))
    for i, p in enumerate((P_ARE, P_AIM, P_BRE, P_BIM, P_CRE, P_CIM)):
        tpar = k.vm('global_load_short_d16_hi v%d, v2, s[%d:%d]' % (4 + i, p, p + 1))
    k.vm('global_load_dwordx4 v[240:243], v79, s[%d:%d]' % (P_U, P_U + 1))
    tx = k.vm('global_load_dwordx4 v[244:247], v79, s[%d:%d] offset:512' % (P_U, P_U + 1))
    k('s_and_b32 s5, s4, 3')
    k('s_lshl_b32 s5, s5, 3')
    k('s_add_u32 s5, s5, s3')
    k('s_lshl_b32 s5, s5, 1')
    k('s_bfe_u32 s6, s4, 0x10002')
    k('s_add_u32 s5, s5, s6')
    k('s_lshr_b32 s6, s4, 3')
    k('s_cmp_ge_u32 s5, 48')
    k('s_cselect_b32 s7, 16, 0')
    k('s_add_u32 s7, s7, s5')
    k('s_lshl_b32 s7, s7, 6')
    k('s_lshl_b32 s8, s6, 2')
    k('s_add_u32 s8, s8, s50')
    k('s_mul_i32 s9, s8, %d' % (32 * 6144))
    k('s_add_u32 s7, s7, s9')
    k('v_lshrrev_b32 v250, 2, v1')
    k('v_mul_u32_u24 v254, 6144, v250')
    k('v_and_b32 v251, 3, v1')
    k('v_lshl_add_u32 v254, v251, 4, v254')
    k('s_lshl_b32 s9, s50, 12')
    k('s_add_u32 s9, s9, %d' % L_CM)
    add_ptr(k, 10, P_WMOD, 7)
    k('s_mov_b32 m0, s9')
    k.vm('global_load_lds_dwordx4 v254, s[10:11]')
    k('s_add_u32 s10, s10, %d' % (16 * 6144 - 1024))
    k('s_addc_u32 s11, s11, 0')
    k.vm('global_load_lds_dwordx4 v254, s[10:11] offset:1024')
    k('s_lshl_b32 s8, s8, 6')
    k('s_and_b32 s64, s4, 1')
    k('s_lshl_b32 s64, s64, 3')
    k('s_add_u32 s64, s64, s3')
    k('s_lshl_b32 s64, s64, 1')
    k('s_bfe_u32 s65, s4, 0x10001')
    k('s_add_u32 s64, s64, s65')
    k('s_lshr_b32 s65, s4, 2')
    k('s_cmp_ge_u32 s64, 16')
    k('s_cselect_b32 s66, 64, 48')
    k('s_add_u32 s66, s66, s64')
    k('s_lshl_b32 s66, s66, 6')
    k('s_lshl_b32 s67, s65, 2')
    k('s_add_u32 s67, s67, s50')
    k('s_mul_i32 s68, s67, %d' % (16 * 6144))
    k('s_add_u32 s66, s66, s68')
    add_ptr(k, 10, P_WMOD, 66)
    k('s_add_u32 m0, s9, 2048')
    tcm = k.vm('global_load_lds_dwordx4 v254, s[10:11]')
    k('s_lshl_b32 s67, s67, 5')
    k('s_sub_u32 s67, s67, 64')
    k('v_min_u32 v248, 23, v1')
    k('v_cmp_gt_u32 vcc, 16, v248')
    k('v_mov_b32 v250, s67')
    k('v_mov_b32 v251, s8')
    k('v_cndmask_b32 v250, v250, v251, vcc')
    k('v_lshl_add_u32 v248, v248, 2, v250')
    tc = k.vm('global_load_dword v248, v248, s[%d:%d]' % (P_C, P_C + 1))
    k('s_lshl_b32 s60, s2, 2')
    k('s_load_dword s30, s[%d:%d], s60' % (P_DSK, P_DSK + 1))
    k('s_and_b32 s75, s5, 15')
    k('s_lshl_b32 s75, s75, 13')
    k('s_lshr_b32 s76, s5, 4')
    k('s_lshl_b32 s76, s76, 6')
    k('s_add_u32 s75, s75, s76')
    k('s_lshl_b32 s76, s6, 3')
    k('s_add_u32 s75, s75, s76')
    k('s_and_b32 s76, s64, 15')
    k('s_lshl_b32 s76, s76, 13')
    k('s_lshr_b32 s77, s64, 4')
    k('s_lshl_b32 s77, s77, 7')
    k('s_add_u32 s76, s76, s77')
    k('s_lshl_b32 s77, s65, 3')
    k('s_add_u32 s76, s76, s77')
    k('s_add_u32 s76, s76, 256')
    k('s_cmp_eq_u32 s50, 0')
    k('s_cselect_b32 s75, s75, s76')
    ws_ptr(k, 16, WS_MODG, 75)
    k('v_mov_b32 v12, 0\nv_mov_b32 v13, 0\nv_mov_b32 v14, 0\nv_mov_b32 v15, 0')
    ws_ptr(k, 14, WS_SYNC)
    tr_addr32(k, 254, 1, 250, 251, 6, 8)
    k('v_add_u32 v254, s9, v254')
    k('v_and_b32 v40, 31, v1')
    k('v_lshrrev_b32 v41, 5, v1')
    k('v_lshrrev_b32 v253, 1, v40')
    k('v_lshlrev_b32 v253, 9, v253')
    k('v_and_b32 v250, 1, v40')
    k('s_add_u32 s75, s50, 5')
    k('v_lshlrev_b32 v250, s75, v250')
    k('v_add_u32 v253, v253, v250')
    k('v_mul_u32_u24 v11, 1056, v77')
    k('v_add_u32 v11, v11, v78')
    k('v_add_u32 v11, %d, v11' % L_STN)
    k('v_bfe_u32 v56, v1, 2, 3')
    k('v_mul_u32_u24 v236, 1056, v56')
    k('v_and_b32 v57, 3, v1')
    k('v_lshl_add_u32 v236, v57, 3, v236')
    k('v_mul_u32_u24 v57, %d, v41' % (L_STX - L_STN))
    k('v_add_u32 v236, v236, v57')
    k('s_lshl_b32 s75, s50, 8')
    k('s_add_u32 s75, s75, %d' % L_STN)
    k('v_add_u32 v236, s75, v236')
    k('v_and_b32 v57, 15, v1')
    k('v_lshlrev_b32 v235, 6, v57')
    k('v_lshrrev_b32 v57, 4, v1')
    k('v_lshl_add_u32 v235, v57, 4, v235')
    k('v_add_u32 v234, 0x1000, v235')
    k('s_lshl_b32 s75, s2, 15')
    k('s_lshl_b32 s76, s50, 13')
    k('s_add_u32 s75, s75, s76')
    ws_ptr(k, 12, WS_XG, 75)
    k('s_mov_b32 s58, 0xffff0000')
    k('s_mov_b32 s63, 0x3f803f80')
    k('v_lshlrev_b32 v249, 2, v0')
    k('v_add_u32 v249, %d, v249' % L_SC)
    k('v_lshlrev_b32 v233, 4, v41')
    k('s_lshl_b32 s75, s50, 8')
    k('s_add_u32 s75, s75, %d' % L_SC)
    k('v_add_u32 v233, s75, v233')
    k('s_lshl_b32 s75, s50, 10')
    k('v_lshl_add_u32 v252, v1, 2, s75')
    k('v_add_u32 v252, %d, v252' % (L_SC + 1024))
    k('s_lshl_b32 s55, s50, 14')
    k('v_lshl_add_u32 v16, v1, 2, s55')
    for r in range(1, 16): k('v_xor_b32 v%d, %d, v16' % (16 + r, r << 4))
    k('v_and_b32 v42, 15, v1')
    k('v_xor_b32 v42, v42, v41')
    k('v_lshlrev_b32 v42, 4, v42')
    k('v_lshl_add_u32 v42, v40, 8, v42')
    k('v_add_u32 v32, s55, v42')
    for ks in range(1, 8): k('v_xor_b32 v%d, %d, v32' % (32 + ks, ks << 5))
    k('s_mul_i32 s56, s52, 6912')
    k('s_add_u32 s56, s56, %d' % (L_T - 0x3F00 * 4))
    k('v_lshlrev_b32 v42, 3, v40')
    k('v_cvt_f32_u32 v42, v42')
    k('v_cvt_f32_u32 v43, v41')
    c0 = [0, 1, 2, 3, 256, 258, 260, 262]
    c1 = [4, 5, 6, 7, 512, 516, 768, 772]
    for r in range(8):
        k('v_fmamk_f32 v56, v43, %s, v42' % f32(c1[r] - c0[r]))
        if c0[r]: k('v_add_f32 v56, %s, v56' % f32(c0[r]))
        else: k('v_max_f32 v56, 0.5, v56')
        k('v_cvt_pk_bf16_f32 v56, v56, 0')
        k('v_lshl_add_u32 v%d, v56, 2, s56' % (44 + r))
    k('v_cmp_eq_u32 vcc, 32, v1')
    k('v_fmaak_f32 v57, 4.0, v42, %s' % f32(4096.0))
    k('v_mov_b32 v58, %s' % f32(2048.0))
    k('v_cndmask_b32 v58, v57, v58, vcc')
    k('v_cmp_lt_u32 vcc, 31, v1')
    for r in range(8, 12):
        k('v_add_f32 v56, %s, v42' % f32(1024 + 256 * (r - 8)))
        k('v_cndmask_b32 v56, v56, v%d, vcc' % (58 if r == 8 else 57))
        k('v_cvt_pk_bf16_f32 v56, v56, 0')
        k('v_lshl_add_u32 v%d, v56, 2, s56' % (44 + r))
    k('v_and_b32 v59, 127, v0')
    k('v_lshlrev_b32 v56, 4, v59')
    k('v_sub_u32 v56, 2047, v56')
    k('v_cvt_f32_u32 v57, v56')
    for i in range(17):
        if i: k('v_add_f32 v56, %s, v57' % f32(-float(i)))
        else: k('v_mov_b32 v56, v57')
        if i >= 15: k('v_max_f32 v56, 0.5, v56')
        k('v_cvt_pk_bf16_f32 v56, v56, 0')
        k('v_lshl_add_u32 v%d, v56, 2, s56' % (60 + i))
    k('s_mov_b32 s57, 0x07060302')
    k('s_mov_b32 s59, %s' % f32(LOG2E))
    lo_log2e = LOG2E - struct.unpack('<f', struct.pack('<f', LOG2E))[0]
    inv2pi = 1.0 / (2 * math.pi)
    inv2pi_f = struct.unpack('<f', struct.pack('<f', inv2pi))[0]
    k('s_mov_b32 s60, %s' % f32(inv2pi_f))
    k('s_mov_b32 s61, %s' % f32(inv2pi - inv2pi_f))
    k('s_mov_b32 s62, %s' % f32(lo_log2e))
    NL = 'global_load_dword v232, v12, s[%d:%d]%s' % (P_DBG, P_DBG + 1, SC)
    k.smem_wait()
    k.wait(vm=tpar)
    tn = k.vm(NL)
    k.stamp(2)
    k('v_mul_f32 v78, s59, v10')
    k('v_fma_f32 v79, v10, s59, -v78')
    k('v_fma_f32 v79, v10, s62, v79')
    k('v_exp_f32 v78, v78')
    k('v_mul_f32 v79, %s, v79' % f32(math.log(2.0)))
    k('v_fma_f32 v78, v78, v79, v78')
    k('v_cvt_pk_bf16_f32 v78, v78, v78')
    k('v_and_b32 v78, s58, v78')
    k('v_mul_f32 v4, v78, v4')
    k('v_mul_f32 v5, v78, v5')
    k('v_mul_f32 v152, v78, v6')
    k('v_mul_f32 v154, v78, v7')
    E0 = 96
    cmul1(k, E0, 8, 152); cmul2(k, E0, 8, 152)
    k('v_mul_f32 v4, s59, v4')
    Z1, Z256, Z8, Z128 = 80, 84, 152, 156
    def zpow(dst, p, conj, t):
        pf = f32(float(p))
        return ['v_mul_f32 v%d, %s, v4' % (t, pf), 'v_mul_f32 v%d, %s, v5' % (t + 1, pf), 'v_exp_f32 v%d, v%d' % (t, t),
                'v_mul_f32 v%d, s60, v%d' % (t + 2, t + 1), 'v_fma_f32 v%d, v%d, s60, -v%d' % (t + 3, t + 1, t + 2),
                'v_fma_f32 v%d, v%d, s61, v%d' % (t + 3, t + 1, t + 3), 'v_fract_f32 v%d, v%d' % (t + 2, t + 2),
                'v_add_f32 v%d, v%d, v%d' % (t + 2, t + 2, t + 3), 'v_cos_f32 v%d, v%d' % (t + 3, t + 2), 'v_sin_f32 v%d, v%d' % (t + 2, t + 2),
                'v_mul_f32 v%d, v%d, v%d' % (dst, t, t + 3), 'v_mul_f32 v%d, v%d, %sv%d' % (dst + 2, t, '-' if conj else '', t + 2)]
    for p_, q_ in ((zpow(Z1, 1, False, 88), zpow(Z256, 256, False, 92)), (zpow(Z8, 8, True, 88), zpow(Z128, 128, True, 92))):
        for x, y in zip(p_, q_): k(x); k(y)
    T0 = 140
    def split_a(e, i):
        t = T0 + 6 * (i & 1)
        if not KSPLIT:
            k('v_cvt_pk_bf16_f32 v%d, v%d, v%d' % (t + 4, e, e + 1)); return
        k('v_perm_b32 v%d, v%d, v%d, s57' % (t + 4, e + 1, e))
        k('v_and_b32 v%d, s58, v%d' % (t, e))
        k('v_and_b32 v%d, s58, v%d' % (t + 1, e + 1))
    def split_b(e, i, row):
        t = T0 + 6 * (i & 1)
        if not KSPLIT: return k.ds('ds_write_b32 v%d, v%d offset:%d' % (16 + (row & 15), t + 4, row * 256))
        k('v_pk_add_f32 %s, %s, %s neg_lo:[0,1] neg_hi:[0,1]' % (v(t + 2, 2), v(e, 2), v(t, 2)))
        k('v_cvt_pk_bf16_f32 v%d, v%d, v%d' % (t + 5, t + 2, t + 3))
        return k.ds('ds_write2st64_b32 v%d, v%d, v%d offset0:%d offset1:%d' % (16 + (row & 15), t + 4, t + 5, row, 32 + row))
    hi = {r: (r - 1, Z1) for r in range(1, 8)}
    hi.update({8: (0, Z256), 9: (2, Z256), 10: (4, Z256), 11: (6, Z256), 12: (8, Z256), 13: (10, Z256), 14: (12, Z256), 15: (13, Z256),
               16: (14, Z256), 17: (16, Z256), 18: (17, Z256), 19: (18, Z256), 20: (19, Z256)})
    order = [0, 1, 8, 2, 12, 3, 14, 4, 16, 5, 17, 6, 18, 7, 19, 9, 20, 10, 11, 13, 15]
    for i, r in enumerate(order):
        nxt = order[i + 1] if i + 1 < len(order) else None
        if nxt is not None: cmul1(k, E0 + 2 * nxt, E0 + 2 * hi[nxt][0], hi[nxt][1])
        split_a(E0 + 2 * r, i)
        if nxt is not None: cmul2(k, E0 + 2 * nxt, E0 + 2 * hi[nxt][0], hi[nxt][1])
        split_b(E0 + 2 * r, i, r)
    AH, AL = 160, 192
    for ks in range(8):
        k.ds('ds_read_b128 %s, v%d' % (v(AH + 4 * ks, 4), 32 + ks))
        if KSPLIT: k.ds('ds_read_b128 %s, v%d offset:8192' % (v(AL + 4 * ks, 4), 32 + ks))
    for i in range(4): k('v_mov_b32 v%d, 0' % (96 + i))
    k.stamp(3)
    k.wait(vm=tx)
    for i in range(2): k.ds('ds_write_b128 v11, %s offset:%d' % (v(240 + 4 * i, 4), (L_STX - L_STN) + 512 * i))
    for j in range(8):
        k('v_dot2c_f32_bf16 v%d, s63, v%d' % (96 + (j & 1), 240 + j))
        k('v_dot2c_f32_bf16 v%d, v%d, v%d' % (98 + (j & 1), 240 + j, 240 + j))
    k.wait(vm=tc)
    for ks in range(3):
        k.ds('ds_read_b64_tr_b16 %s, v254 offset:%d' % (v(128 + 4 * ks, 2), ks * 1024))
        k.ds('ds_read_b64_tr_b16 %s, v254 offset:%d' % (v(130 + 4 * ks, 2), ks * 1024 + 256))
    k('v_lshlrev_b32 v116, 16, v248')
    k('v_and_b32 v117, s58, v248')
    k('v_add_f32 v96, v96, v97')
    k('v_add_f32 v98, v98, v99')
    nm = 'v_mul_f32 v%%d, %s, v%%d' % f32(-LOG2E)
    silu = [nm % (118, 116), nm % (119, 117), 'v_exp_f32 v118, v118', 'v_exp_f32 v119, v119', 'v_add_f32 v118, 1.0, v118', 'v_add_f32 v119, 1.0, v119',
            'v_rcp_f32 v118, v118', 'v_rcp_f32 v119, v119', 'v_mul_f32 v116, v116, v118', 'v_mul_f32 v117, v117, v119', 'v_cvt_pk_bf16_f32 v116, v116, v117']
    for pat in ('quad_perm:[1,0,3,2]', 'quad_perm:[2,3,0,1]', 'row_half_mirror', 'row_mirror'):
        k(silu.pop(0)); k(silu.pop(0))
        k('v_add_f32_dpp v96, v96, v96 %s row_mask:0xf bank_mask:0xf' % pat)
        k('v_add_f32_dpp v98, v98, v98 %s row_mask:0xf bank_mask:0xf' % pat)
    k('v_mov_b32 v97, v96')
    k('v_mov_b32 v99, v98')
    while silu: k(silu.pop(0))
    k.ds('ds_write_b32 v249, v116')
    k('v_permlane16_swap_b32 v96, v97')
    k('v_permlane16_swap_b32 v98, v99')
    for ks in range(3): tsf = k.ds('ds_read_b128 %s, v233 offset:%d' % (v(116 + 4 * ks, 4), 32 * ks))
    k('v_add_f32 v96, v96, v97')
    k('v_add_f32 v98, v98, v99')
    k('v_mul_f32 v96, %s, v96' % f32(1.0 / 512))
    k('v_mul_f32 v98, %s, v98' % f32(1.0 / 512))
    k('v_fma_f32 v98, -v96, v96, v98')
    k('v_max_f32 v98, 0, v98')
    k('v_add_f32 v98, %s, v98' % f32(1e-5))
    k('v_rsq_f32 v100, v98')
    k('v_mul_f32 v101, v96, v100')
    for j in range(8):
        tt = 102 + 2 * (j & 1)
        k('v_lshlrev_b32 v%d, 16, v%d' % (tt, 240 + j))
        k('v_and_b32 v%d, s58, v%d' % (tt + 1, 240 + j))
        k('v_pk_fma_f32 %s, %s, v[100:101], v[100:101] op_sel:[0,0,1] op_sel_hi:[1,0,1] neg_lo:[0,0,1] neg_hi:[0,0,1]' % (v(tt, 2), v(tt, 2)))
        k('v_cvt_pk_bf16_f32 v%d, v%d, v%d' % (108 + j, tt, tt + 1))
    k.wait(ds=tsf)
    k('v_mfma_f32_32x32x16_bf16 a[64:79], v[116:119], v[128:131], 0')
    k('v_mfma_f32_32x32x16_bf16 a[80:95], v[124:127], v[136:139], 0')
    k('v_mfma_f32_32x32x16_bf16 a[64:79], v[120:123], v[132:135], a[64:79]')
    for i in range(2): k.ds('ds_write_b128 v11, %s offset:%d' % (v(108 + 4 * i, 4), 512 * i))
    k.wait(vm=tn)
    k('s_mov_b32 s80, 0')
    k('L_non_p:')
    k('s_waitcnt vmcnt(0)')
    k('v_cmp_eq_u32 vcc, 0, v232')
    retry_tail(k, 'non', [NL])
    k('v_readfirstlane_b32 s81, v232')
    k('s_nop 4')
    k.ds('ds_write_b32 v249, a80 offset:2048')
    k.ds('ds_write_b32 v249, a64 offset:1024')
    k.wait_all(vm=False)
    GR = [96 + 4 * q for q in range(8)]
    for q in range(8): k('v_mov_b32 v%d, v232\nv_mov_b32 v%d, v232' % (GR[q] + 2, GR[q] + 3))
    k.barrier()
    tq = [k.ds('ds_read_b64_tr_b16 %s, v236 offset:%d' % (v(GR[q], 2), 32 * q)) for q in range(8)]
    for i in range(4): tp = k.ds('ds_read_b32 v%d, v252 offset:%d' % (128 + i, 256 * i))
    for q in range(8):
        k.wait(ds=tq[q])
        k.vm('global_store_dwordx4 v%d, %s, s[12:13] offset:%d%s' % (235 - (q >> 2), v(GR[q], 4), 1024 * (q & 3), SC))
    k.wait(ds=tp)
    k('s_cmp_ge_u32 s50, 2')
    k('s_cbranch_scc1 L_cm2')
    k('v_add_f32 v128, v128, v129')
    k('v_add_f32 v130, v130, v131')
    k('v_add_f32 v128, v128, v130')
    k('v_mov_b32 v129, v232')
    raw(k, 'global_store_dwordx2 v253, v[128:129], s[16:17]' + SC)
    k('s_branch L_cm3')
    k('L_cm2:')
    k('v_and_b32 v130, 15, v1')
    k('s_lshl_b32 s75, s2, 6')
    k('v_lshl_add_u32 v130, v130, 2, s75')
    raw(k, 'global_store_dword v130, v12, s[14:15]' + SC)
    k('L_cm3:')
    k('s_nop 1')
    k.stamp(4)
    L0 = 96
    k('v_mov_b32 v%d, 1.0' % L0)
    k('v_mov_b32 v%d, 0' % (L0 + 1))
    lo_order = []
    for m in range(16): lo_order += [m, 16 + m]
    def lreg(m): return L0 + 2 * m if m < 16 else 132 + 2 * (m & 1)
    def lsrc(m): return (lreg(m - 1), Z8) if m < 16 else (lreg(m - 16), Z128)
    for i, m in enumerate(lo_order):
        nxt = lo_order[i + 1] if i + 1 < len(lo_order) else None
        if nxt is not None: cmul1(k, lreg(nxt), *lsrc(nxt))
        split_a(lreg(m), i)
        if nxt is not None: cmul2(k, lreg(nxt), *lsrc(nxt))
        split_b(lreg(m), i, m)
    ACC = 224
    bt = []
    k.wait_all(vm=False, ds=True)
    for ks in range(8):
        t = k.ds('ds_read_b128 %s, v%d' % (v(96 + 8 * ks, 4), 32 + ks))
        if KSPLIT: t = k.ds('ds_read_b128 %s, v%d offset:8192' % (v(100 + 8 * ks, 4), 32 + ks))
        bt.append(t)
    fill = []
    F = lambda x: fill.append(x)
    F('v_lshrrev_b32 v7, 3, v1'); F('v_and_b32 v8, 7, v1'); F('v_lshlrev_b32 v16, 15, v7'); F('v_lshl_add_u32 v16, v8, 4, v16')
    F('s_lshl_b32 s60, s50, 21\ns_lshl_b32 s61, s2, 7\ns_add_u32 s60, s60, s61\ns_add_u32 s62, s48, s60\ns_addc_u32 s63, s49, 0')
    assert WS_XG == 0
    for i in range(1, 8): F('v_add_u32 v%d, 0x%x, v16' % (16 + i, i * 262144) if i < 4 else 'v_add_u32 v%d, 0x%x, v16' % (20 + i, i * 262144))
    XA = [16, 17, 18, 19, 24, 25, 26, 27]
    F('v_lshlrev_b32 v21, 3, v1')
    F('s_lshl_b32 s60, s2, 9\ns_add_u32 s60, s60, 0x%x\ns_add_u32 s64, s48, s60\ns_addc_u32 s65, s49, 0' % WS_MODG)
    XD = [240, 244, 248, 252, 80, 84, 88, 92]
    k.XD = XD
    k.XL = ['global_load_dwordx4 %s, v%d, s[62:63]%s' % (v(XD[i], 4), XA[i], SC) for i in range(8)] + ['global_load_dwordx2 v[22:23], v21, s[64:65]' + SC]
    F('s_or_b32 s66, s55, 0x4000'); F('v_lshl_add_u32 v3, v1, 4, s66')
    F('s_mul_i32 s55, s52, %d\ns_add_u32 s55, s55, %d' % (CHS, L_CV)); F('v_lshl_add_u32 v2, v59, 5, s55')
    XAT = E('XAT', 0)
    if XAT == 0:
        for x in k.XL: F('VM ' + x)
    def emit_fill():
        x = fill.pop(0)
        if x.startswith('VM '): k.vm(x[3:])
        else: k(x)
    for ks in range(8):
        k.wait(ds=bt[ks])
        c = '0' if ks == 0 else v(ACC, 16)
        ms = [(AH + 4 * ks, 96 + 8 * ks)] + ([(AH + 4 * ks, 100 + 8 * ks), (AL + 4 * ks, 96 + 8 * ks)] if KSPLIT else [])
        for x, y in ms:
            k('v_mfma_f32_32x32x16_bf16 %s, %s, %s, %s' % (v(ACC, 16), v(x, 4), v(y, 4), c)); c = v(ACC, 16)
            for _ in range(2 if KSPLIT else 4):
                if fill: emit_fill()
    while fill: emit_fill()
    k('s_nop 7\ns_nop 3')
    k.stamp(5)
    k('s_bitcmp1_b32 s50, 0')
    k('s_cbranch_scc0 L_kg_a')
    for i in range(3): k.ds('ds_write_b128 v3, %s offset:%d' % (v(ACC + 4 * i, 4), 1024 * i))
    k.wait_all(vm=False)
    k('L_kg_a:')
    k.barrier()
    if XAT == 1:
        for x in k.XL: k.vm(x)
    k('s_cbranch_scc1 L_kg_b')
    for i in range(3): k.ds('ds_read_b128 %s, v3 offset:%d' % (v(96 + 4 * i, 4), 1024 * i))
    k.wait_all(vm=False)
    for i in range(6): k('v_pk_add_f32 %s, %s, %s' % (v(96 + 2 * i, 2), v(96 + 2 * i, 2), v(ACC + 2 * i, 2)))
    for r in range(12): k.ds('ds_write_b32 v%d, v%d' % (44 + r, 96 + r))
    k.wait_all(vm=False)
    k('L_kg_b:')
    k.barrier()
    k('v_cmp_eq_u32 vcc, 127, v59')
    G = 96
    gt = [k.ds('ds_read_b32 v%d, v%d' % (G + i, 60 + i)) for i in range(17)]
    conv_setup(k)
    k.wait(ds=gt[-1])
    k('v_cmp_eq_u32 vcc, 127, v59')
    k('v_cndmask_b32 v%d, v%d, v12, vcc' % (G + 16, G + 16))
    for i in range(8): k('v_cvt_pk_bf16_f32 v%d, v%d, v%d' % (120 + i, G + 2 * i, G + 2 * i + 1))
    for i in range(8): k('v_cvt_pk_bf16_f32 v%d, v%d, v%d' % (128 + i, G + 2 * i + 1, G + 2 * i + 2))
    k.ds('ds_write_b128 v2, v[120:123]')
    k.ds('ds_write_b128 v2, v[124:127] offset:16')
    k.ds('ds_write_b128 v2, v[128:131] offset:%d' % O_K1)
    k.ds('ds_write_b128 v2, v[132:135] offset:%d' % (O_K1 + 16))
    k('v_lshlrev_b32 v2, 4, v1')

def conv_setup(k):
    k('s_and_b32 s54, s50, 1')
    k('v_lshlrev_b32 v11, 4, v1')
    k('v_and_b32 v5, 15, v1')
    k('v_lshrrev_b32 v6, 4, v1')
    k('s_mul_i32 s59, s54, %d' % O_K1)
    k('s_add_u32 s59, s59, s55')
    k('v_lshl_add_u32 v14, v5, 2, s59')
    k.ds('ds_write_b32 v14, v12 offset:4096')
    k('v_lshl_add_u32 v14, v1, 3, s55')
    k.ds('ds_write_b64 v14, v[12:13] offset:%d' % O_H)
    k('v_lshrrev_b32 v9, 2, v8')
    k('v_bfe_u32 v10, v8, 1, 1')
    k('v_mul_u32_u24 v20, %d, v9' % CHS)
    k('v_add_u32 v20, %d, v20' % (L_CV + O_H + 512))
    k('v_lshlrev_b32 v14, 12, v9')
    k('v_add_u32 v14, %d, v14' % L_X)
    k('v_cmp_eq_u32 vcc, 1, v10')
    k('v_and_b32 v15, 1, v8')
    k('v_cndmask_b32 v20, v20, v14, vcc')
    k('v_lshl_add_u32 v20, v15, 3, v20')
    k('v_lshl_add_u32 v20, v7, 4, v20')
    k('s_lshl_b32 s60, s50, 10')
    k('v_add_u32 v20, s60, v20')
    k('s_lshl_b32 s76, s54, 11')
    k('s_add_u32 s77, s76, s55')
    k('v_lshlrev_b32 v15, 5, v5')
    k('v_lshl_add_u32 v15, v6, 3, v15')
    k('v_add_u32 v193, s77, v15')
    k('s_lshl_b32 s77, s52, 12')
    k('s_add_u32 s76, s76, s77')
    k('v_add_u32 v202, s76, v15')
    k('v_lshlrev_b32 v15, 5, v5')
    k('v_lshl_add_u32 v15, v6, 4, v15')
    k('s_lshl_b32 s77, s54, 8')
    k('s_sub_u32 s77, s55, s77')
    k('s_add_u32 s78, s77, %d' % (O_H + 512 - 32 - 192))
    k('v_add_u32 v192, s78, v15')
    k('v_lshlrev_b32 v15, 3, v6')
    k('v_sub_u32 v15, v15, v5')
    k('v_add_u32 v15, 15, v15')
    k('v_and_b32 v194, 1, v15')
    k('v_mul_u32_u24 v194, %d, v194' % O_K1)
    k('v_and_b32 v15, -2, v15')
    k('v_lshl_add_u32 v15, v15, 1, v194')
    k('s_add_u32 s78, s77, %d' % (2 * (2016 - 256 - 96 - 1536)))
    k('v_add_u32 v197, s78, v15')
    for ip in range(3): k('v_add_u32 v%d, %d, v197' % (194 + ip, 1024 * (3 - ip)))
    k('s_lshl_b32 s77, s54, 12')
    k('s_add_u32 s78, s77, s55')
    k('v_add_u32 v198, s78, v11')
    k('s_xor_b32 s77, s77, 0x1000')
    k('s_add_u32 s78, s77, s55')
    k('v_add_u32 v199, s78, v11')
    k('v_and_b32 v15, 1, v6')
    k('v_lshlrev_b32 v15, 3, v15')
    k('v_lshrrev_b32 v200, 1, v5')
    k('v_add_u32 v15, v15, v200')
    k('v_lshlrev_b32 v200, 15, v15')
    k('v_and_b32 v15, 1, v5')
    k('v_lshl_add_u32 v200, v15, 5, v200')
    k('v_lshrrev_b32 v15, 1, v6')
    k('v_lshl_add_u32 v200, v15, 4, v200')
    k('v_add_u32 v201, 0x80000, v200')
    k('s_lshl_b32 s60, s54, 20')
    k('s_lshl_b32 s61, s53, 6')
    k('s_add_u32 s60, s60, s61')
    ws_ptr(k, 66, WS_X1T, 60)
    ws_ptr(k, 68, WS_X1S, 60)
    k('s_lshr_b32 s5, s3, 1')
    k('s_lshl_b32 s5, s5, 2')
    k('s_and_b32 s60, s4, 3')
    k('s_add_u32 s5, s5, s60')
    k('s_and_b32 s7, s3, 1')
    k('s_mul_i32 s7, s7, 7')
    k('s_lshr_b32 s60, s4, 2')
    k('s_add_u32 s7, s7, s60')
    k('s_min_u32 s7, s7, 13')
    k('s_lshl_b32 s6, s7, 2')
    k('s_add_u32 s6, s6, s50')
    k('s_mul_i32 s60, s50, %d' % (4 * 3584))
    k('s_lshl_b32 s61, s7, 8')
    k('s_add_u32 s60, s60, s61')
    add_ptr(k, 26, P_W1, 60)
    k('v_lshlrev_b32 v15, 2, v6')
    k('v_xor_b32 v15, v15, v5')
    k('v_mul_u32_u24 v203, 3584, v6')
    k('v_lshl_add_u32 v203, v15, 4, v203')
    k('s_lshl_b32 s79, s50, 10')
    k('s_add_u32 s79, s79, %d' % L_W1)
    tr_addr32(k, 204, 1, 14, 15, 8, 8)
    k('v_bfe_u32 v15, v1, 2, 2')
    k('v_xor_b32 v15, s50, v15')
    k('v_lshl_add_u32 v204, v15, 6, v204')
    k('v_add_u32 v204, %d, v204' % L_W1)
    k('v_add_u32 v205, 0xb000, v204')
    k('s_min_u32 s60, s2, 111')
    k('s_lshl_b32 s61, s60, 14')
    k('s_lshl_b32 s70, s50, 12')
    k('s_add_u32 s61, s61, s70')
    add_ptr(k, 72, P_W2, 61)
    k('s_add_u32 s31, s70, %d' % L_SJ)
    for r in range(4):
        k('v_xor_b32 v%d, %d, v1' % (206 + r, r << 2))
        k('v_lshlrev_b32 v%d, 4, v%d' % (206 + r, 206 + r))
    tr_addr32(k, 210, 1, 14, 15, 10, 4)
    k('s_lshl_b32 s61, s50, 8')
    k('s_add_u32 s61, s61, %d' % L_SJ)
    k('v_add_u32 v210, s61, v210')
    k('v_bfe_u32 v15, v1, 2, 2')
    k('v_lshlrev_b32 v15, 6, v15')
    k('v_xor_b32 v210, v210, v15')
    for q in range(1, 4): k('v_xor_b32 v%d, %d, v210' % (210 + q, q << 6))
    k('s_mul_i32 s61, s50, %d' % (4 * 114688))
    k('s_lshl_b32 s60, s60, 10')
    k('s_add_u32 s61, s61, s60')
    ws_ptr(k, 70, WS_W2P, 61)
    for q in range(1, 4): k('v_add_u32 v%d, %d, v11' % (213 + q, q * 114688))
    k('s_lshl_b32 s77, s30, 16')
    k('s_and_b32 s74, s30, 0xffff0000')
    k('s_cmp_eq_u32 s52, 0')
    k('s_cselect_b32 s74, s77, s74')
    k('v_bfe_u32 v4, v1, 3, 1')
    k('v_cvt_f32_u32 v4, v4')
    k('v_cmp_gt_u32 vcc, 32, v1')
    k('v_cndmask_b32 v4, 0, v4, vcc')
    k('s_lshl_b32 s60, s2, 4')
    ws_ptr(k, 18, WS_FIN, 60)

def conv_phase(k):
    XD = k.XD
    k.stamp(6)
    k('s_mov_b32 s80, 0')
    k('L_xv_p:')
    k('s_waitcnt vmcnt(0)')
    for c in chk_tags([x + 2 for x in XD] + [23], 28): k(c)
    retry_tail(k, 'xv', k.XL)
    k.vm_done = k.nvm
    k.stamp(7)
    k('v_add_f32_dpp v22, v22, v22 quad_perm:[1,0,3,2] row_mask:0xf bank_mask:0xf')
    k('s_lshl_b32 s60, s52, 2')
    k('s_add_u32 s61, s60, 24')
    k('v_add_f32_dpp v22, v22, v22 quad_perm:[2,3,0,1] row_mask:0xf bank_mask:0xf')
    k('s_add_u32 s60, s60, 16')
    k('v_cmp_eq_u32 vcc, 1, v9')
    k('v_add_f32_dpp v22, v22, v22 row_half_mirror row_mask:0xc bank_mask:0xf')
    k('v_cvt_pk_bf16_f32 v22, v22, v22')
    k('v_and_b32 v22, s58, v22')
    k('v_add_f32 v22, v22, v4')
    k('v_cvt_pk_bf16_f32 v22, v22, v22')
    k('v_and_b32 v22, s58, v22')
    k('v_readlane_b32 s62, v22, 0')
    k('v_readlane_b32 s63, v22, 4')
    k('v_readlane_b32 s64, v22, 8')
    k('v_readlane_b32 s65, v22, 12')
    k('v_readlane_b32 s75, v22, s60')
    k('v_readlane_b32 s76, v22, s61')
    k('v_mov_b32 v27, s62')
    k('v_mov_b32 v29, s63')
    k('v_mov_b32 v26, s64')
    k('v_mov_b32 v28, s65')
    k('v_cndmask_b32 v27, v27, v29, vcc')
    k('v_cndmask_b32 v26, v26, v28, vcc')
    k('v_cmp_eq_u32 vcc, 1, v10')
    k('v_cndmask_b32 v27, v27, 0, vcc')
    k('v_cndmask_b32 v26, v26, 1.0, vcc')
    for i in range(8):
        for j in range(2):
            r = XD[i] + j
            tt = 48 + 2 * (j & 1)
            k('v_lshlrev_b32 v%d, 16, v%d' % (tt, r))
            k('v_and_b32 v%d, s58, v%d' % (tt + 1, r))
            k('v_pk_fma_f32 %s, %s, v[26:27], v[26:27] op_sel:[0,0,1] op_sel_hi:[1,0,1]' % (v(tt, 2), v(tt, 2)))
            k('v_cvt_pk_bf16_f32 v%d, v%d, v%d' % (r, tt, tt + 1))
        k.ds('ds_write_b64 v20, %s offset:%d' % (v(XD[i], 2), 128 * i))
    k.wait_all(vm=False)
    k.barrier()
    k.stamp(9)
    ACC = 32
    def areg(st, p): return 64 + 64 * st + 4 * p
    def breg(st, q): return 96 + 64 * st + 4 * q
    def loads(cc):
        st = cc & 1
        L = []
        for p in range(8):
            off = 128 * (1 - (p & 1)) + 16 * (3 - cc)
            L.append('ds_read2_b32 %s, v%d offset0:%d offset1:%d' % (v(areg(st, p), 2), 194 + (p >> 1), off, off + 1))
            L.append('ds_read2_b32 %s, v%d offset0:%d offset1:%d' % (v(areg(st, p) + 2, 2), 194 + (p >> 1), off + 2, off + 3))
            L.append('ds_read_b128 %s, v192 offset:%d' % (v(breg(st, p), 4), 512 * p + 64 * (3 - cc)))
        return L
    pairs = []
    for lv in range(8):
        for p in range(lv + 1):
            for q in range(lv + 1):
                if max(p, q) == lv and p + q <= 7: pairs.append((p, q))
    toks = [k.ds(x) for x in loads(0)]
    k('s_cmp_lg_u32 s50, 3')
    k('s_cbranch_scc1 L_fin')
    for i, (l0, l1) in enumerate(((32, 40), (24, 28), (48, 56))):
        k('v_readlane_b32 s60, v22, %d' % l0)
        k('v_readlane_b32 s61, v22, %d' % l1)
        k('s_lshr_b32 s60, s60, 16')
        k('s_or_b32 s60, s60, s61')
        k('v_mov_b32 v%d, s60' % (220 + i))
    k('v_mov_b32 v223, s81')
    k('s_mov_b64 exec, 1')
    raw(k, 'global_store_dwordx4 v12, v[220:223], s[18:19]' + SC)
    k('s_mov_b64 exec, -1')
    k('L_fin:')
    seen = set()
    k.tw1 = {}
    def w1dma(n):
        k('s_add_u32 m0, s79, %d' % ((n % NW1) * 4096))
        k.tw1[n] = k.vm('global_load_lds_dwordx4 v203, s[26:27]')
        if n < 31: k('s_add_u32 s26, s26, %d' % (16 * 3584)); k('s_addc_u32 s27, s27, 0')
    def w1tr(n):
        sl = n % NW1
        ar, off = (204, sl * 4096) if sl < 11 else (205, (sl - 11) * 4096)
        k.ds('ds_read_b64_tr_b16 %s, v%d offset:%d' % (a(4 * n, 2), ar, off))
        k.ds('ds_read_b64_tr_b16 %s, v%d offset:%d' % (a(4 * n + 2, 2), ar, off + 1024))
    def pkdma(r):
        if r == 0: k('s_mov_b32 m0, s31')
        k.tpk = k.vm('global_load_lds_dwordx4 v%d, s[72:73] offset:%d' % (206 + r, r * 1024))
    k.w1dma, k.w1tr = w1dma, w1tr
    gq = {0: [], 1: [], 2: [], 3: []}
    allq = [lambda n=n: w1dma(n) for n in range(NW1)]
    grp = [lambda: [pkdma(r) for r in range(4)]]
    allq = allq[:10] + grp + allq[10:]
    for i, f in enumerate(allq): gq[i // 8].append(f)
    NT3 = 10
    for n in range(NT3): gq[3].append(lambda n=n: w1tr(n))
    for cc in range(4):
        st = cc & 1
        if cc < 3: nxt = loads(cc + 1)
        else:
            nxt = ['ds_read_b64 %s, v193 offset:%d' % (v(16 + 2 * j, 2), O_H + 512 + 512 * j) for j in range(4)]
            nxt += ['ds_read_b64 %s, v202 offset:%d' % (v(24 + 2 * j, 2), L_X + 512 * j) for j in range(4)]
        if cc > 0: k.wait_all(vm=False)
        if cc == 3:
            k.wait(vm=k.tw1[NT3 - 1]); k.barrier()
        for n, (p, q) in enumerate(pairs):
            if cc == 0: k.wait(ds=toks[3 * max(p, q) + 2])
            nt = p + q
            c = v(ACC + 4 * nt, 4) if nt in seen else '0'
            seen.add(nt)
            k('v_mfma_f32_16x16x32_bf16 %s, %s, %s, %s' % (v(ACC + 4 * nt, 4), v(areg(st, p), 4), v(breg(st, q), 4), c))
            start = 12 if cc == 0 else 2
            if n >= start and nxt: k.ds(nxt.pop(0))
            if gq[cc] and ((cc < 3 and n % 4 == 1) or (cc == 3 and n >= 10 and n % 2 == 0)): gq[cc].pop(0)()
        assert not nxt and not gq[cc], (cc, len(gq[cc]))
    k('s_nop 7')
    k.stamp(10)
    k('s_cmp_eq_u32 s54, 0')
    k('s_cbranch_scc0 L_cv_w1')
    for j in range(4): k.ds('ds_write_b128 v198, %s offset:%d' % (v(ACC + 16 + 4 * j, 4), O_RED + 1024 * j))
    k('s_branch L_cv_j1')
    k('L_cv_w1:')
    k.nds -= 4
    for j in range(4): k.ds('ds_write_b128 v198, %s offset:%d' % (v(ACC + 4 * j, 4), O_RED + 1024 * j))
    for j in range(8): k('v_mov_b64 %s, %s' % (v(64 + 2 * j, 2), v(ACC + 16 + 2 * j, 2)))
    k('s_branch L_cv_j2')
    k('L_cv_j1:')
    for j in range(8): k('v_mov_b64 %s, %s' % (v(64 + 2 * j, 2), v(ACC + 2 * j, 2)))
    k('L_cv_j2:')
    k.wait(vm=k.tpk)
    k.wait_all(vm=False)
    k.barrier()
    rt_ = [k.ds('ds_read_b128 %s, v199 offset:%d' % (v(80 + 4 * j, 4), O_RED + 1024 * j)) for j in range(4)]
    pt = []
    for q in range(4):
        k.ds('ds_read_b64_tr_b16 %s, v%d' % (v(144 + 4 * q, 2), 210 + q))
        pt.append(k.ds('ds_read_b64_tr_b16 %s, v%d offset:8192' % (v(146 + 4 * q, 2), 210 + q)))
    for i in range(8):
        k('v_lshlrev_b32 v%d, 16, v%d' % (96 + 2 * i, 16 + i))
        k('v_and_b32 v%d, s58, v%d' % (97 + 2 * i, 16 + i))
        k('v_pk_fma_f32 %s, %s, s[74:75], %s op_sel_hi:[1,0,1]' % (v(64 + 2 * i, 2), v(96 + 2 * i, 2), v(64 + 2 * i, 2)))
        k('v_lshlrev_b32 v%d, 16, v%d' % (112 + 2 * i, 24 + i))
        k('v_and_b32 v%d, s58, v%d' % (113 + 2 * i, 24 + i))
    for jj in range(2):
        for j in (2 * jj, 2 * jj + 1):
            k.wait(ds=rt_[j])
            for i in (2 * j, 2 * j + 1):
                k('v_pk_add_f32 %s, %s, %s' % (v(64 + 2 * i, 2), v(64 + 2 * i, 2), v(80 + 2 * i, 2)))
                k('v_pk_fma_f32 %s, %s, s[74:75], %s op_sel:[0,1,0] op_sel_hi:[1,1,1]' % (v(64 + 2 * i, 2), v(64 + 2 * i, 2), v(112 + 2 * i, 2)))
                k('v_pk_mul_f32 %s, %s, s[76:77] op_sel_hi:[1,0]' % (v(96 + 2 * i, 2), v(64 + 2 * i, 2)))
                k('v_cvt_pk_bf16_f32 v%d, v%d, v%d' % (136 + i, 96 + 2 * i, 97 + 2 * i))
                k('v_cvt_pk_bf16_f32 v%d, v%d, v%d' % (128 + i, 64 + 2 * i, 65 + 2 * i))
        for b, sp in ((136 + 4 * jj, 68), (128 + 4 * jj, 66)):
            k('v_permlane16_swap_b32 v%d, v%d' % (b, b + 2))
            k('v_permlane16_swap_b32 v%d, v%d' % (b + 1, b + 3))
            k.vm('global_store_dwordx4 v%d, %s, s[%d:%d]%s' % (200 + jj, v(b, 4), sp, sp + 1, SC))
    k.wait(ds=pt[-1])
    k('s_cmp_ge_u32 s2, 112')
    k('s_cbranch_scc1 L_pk_no')
    for q in range(4): raw(k, 'global_store_dwordx4 v%d, %s, s[70:71]%s' % (11 if q == 0 else 213 + q, v(144 + 4 * q, 4), SC))
    k('L_pk_no:')
    k.tx1 = k.nvm
    k('v_lshlrev_b32 v160, 4, v0')
    k('v_add_u32 v160, 0x%x, v160' % WS_FIN)
    k.FL = 'global_load_dwordx4 v[164:167], v160, s[48:49]' + SC
    k.tfin = k.vm(k.FL)
    for n in range(NW1, 32): w1dma(n)
    k.NT3 = NT3

def w2reg(ks): return (a(128 + 8 * ks, 4), a(132 + 8 * ks, 4)) if ks < 16 else (v(160 + 8 * (ks - 16), 4), v(164 + 8 * (ks - 16), 4))
def w2_ops(k, ks):
    ops = []
    off = (ks & 3) * 1024
    ops.append(lambda: k.vm('global_load_dwordx4 %s, v112, s[76:77] offset:%d%s' % (w2reg(ks)[0], off, LD_SC)))
    ops.append(lambda: k.vm('global_load_dwordx4 %s, v113, s[76:77] offset:%d%s' % (w2reg(ks)[1], off, LD_SC)))
    if (ks & 3) == 3 and ks < 27: ops.append(lambda: k('s_add_u32 s76, s76, 4096\ns_addc_u32 s77, s77, 0'))
    return ops

def mlp_phase(k):
    k('s_lshl_b32 s8, s3, 2')
    k('s_lshr_b32 s9, s4, 3')
    k('s_add_u32 s8, s8, s9')
    k('s_and_b32 s9, s4, 7')
    k('s_lshr_b32 s10, s50, 1')
    k('s_and_b32 s11, s50, 1')
    k('s_mul_i32 s60, s10, 114688')
    k('v_add_u32 v112, s60, v2')
    k('s_sub_u32 s60, 114688, s60')
    k('v_add_u32 v113, s60, v2')
    k('s_mul_i32 s51, s50, %d' % (28 * 1024))
    k('s_mul_i32 s60, s9, %d' % (2 * 114688))
    k('s_add_u32 s60, s60, s51')
    ws_ptr(k, 76, WS_W2P, 60)
    k('s_lshl_b32 s60, s5, 17')
    k('s_lshl_b32 s56, s50, 15')
    k('s_add_u32 s60, s60, s56')
    ws_ptr(k, 58, WS_X1S, 60)
    tr_addr32(k, 3, 1, 8, 9, 6, 8)
    k('v_and_b32 v16, 31, v1')
    k('v_lshlrev_b32 v16, 3, v16')
    for j in range(4):
        k('s_add_u32 s62, s50, %d' % j)
        k('s_and_b32 s62, s62, 3')
        k('s_lshl_b32 s63, s62, 15')
        k('v_add_u32 v%d, s63, v3' % (4 + j))
        k('s_mul_i32 s63, s62, 114688')
        k('v_add_u32 v%d, s63, v2' % (8 + j))
        k('s_lshl_b32 s63, s62, 8')
        k('v_add_u32 v%d, s63, v16' % (12 + j))
    k('s_mul_i32 s62, s5, %d' % (4 * 114688))
    k('s_lshl_b32 s63, s6, 11')
    k('s_add_u32 s62, s62, s63')
    ws_ptr(k, 68, WS_HID, 62)
    k('s_lshl_b32 s62, s5, 10')
    add_ptr(k, 70, 14, 62)
    k('v_bfe_u32 v16, v1, 4, 1')
    k('v_xor_b32 v16, 1, v16')
    k('v_lshlrev_b32 v16, 10, v16')
    k('v_lshrrev_b32 v17, 5, v1')
    k('v_lshl_add_u32 v16, v17, 4, v16')
    k('v_add_u32 v16, %d, v16' % L_GS)
    k('s_lshl_b32 s60, s3, 10')
    k('s_add_u32 s60, s60, 0x%x' % O_F2)
    k('v_add_u32 v124, s60, v2')
    k('v_lshlrev_b32 v17, 2, v0')
    k('v_add_u32 v17, %d, v17' % L_GS)
    k('v_lshlrev_b32 v18, 3, v0')
    k('v_add_u32 v18, %d, v18' % (L_GS + 2048))
    k('s_waitcnt vmcnt(%d)' % (k.nvm - k.tx1))
    k.vm_done = k.tx1
    k.barrier()
    signal(k, 'f2', O_F2, 122, 123)
    k.stamp(11)
    for n in range(k.NT3, NW1): k.w1tr(n)
    k('s_mov_b32 s80, 0')
    k('L_fin_p:')
    k('s_waitcnt vmcnt(0)')
    k('v_cmp_ne_u32 vcc, s81, v167')
    retry_tail(k, 'fin', [k.FL])
    k.vm_done = k.nvm
    k('v_lshlrev_b32 v168, 16, v166')
    k('v_and_b32 v169, 0xffff0000, v166')
    k('v_mul_f32 v168, %s, v168' % f32(-math.log(2.0)))
    k('v_mul_f32 v169, %s, v169' % f32(-math.log(2.0)))
    k.ds('ds_write2st64_b32 v17, v164, v165 offset0:0 offset1:4')
    k.ds('ds_write_b64 v18, v[168:169]')
    k.wait_all(vm=False)
    k.barrier()
    for n in range(NW1, 32): k.w1tr(n)
    W2E = 0
    gt = []
    for s_ in range(32):
        gt.append(k.ds('ds_read_b128 %s, v16 offset:%d' % (v(32 + 4 * (s_ % 12), 4), 32 * s_)) if s_ < 12 else None)
    for s_ in range(32):
        k.wait(ds=gt[s_])
        k('v_mfma_f32_32x32x16_bf16 v[128:143], %s, %s, %s' % (a(4 * s_, 4), v(32 + 4 * (s_ % 12), 4), '0' if s_ == 0 else 'v[128:143]'))
        if s_ >= 1 and s_ + 11 < 32: gt[s_ + 11] = k.ds('ds_read_b128 %s, v16 offset:%d' % (v(32 + 4 * ((s_ + 11) % 12), 4), 32 * (s_ + 11)))
    for p in range(8): k('v_mov_b64 %s, %s' % (v(144 + 2 * p, 2), v(128 + 2 * p, 2)))
    for r in range(16): k('v_permlane16_swap_b32 v%d, v%d' % (128 + r, 144 + r))
    k('s_mov_b32 s60, %s' % f32(-LOG2E))
    for p in range(8): k('v_pk_mul_f32 %s, %s, s[60:61] op_sel_hi:[1,0]' % (v(144 + 2 * p, 2), v(144 + 2 * p, 2)))
    k.stamp(8)
    poll(k, 'f2', ['global_load_dwordx4 v[16:19], v124, s[14:15]' + SC], chk_tags([16, 17, 18, 19], 20))
    k.stamp(12)
    k.reset_counters()
    k('s_cmp_ge_u32 s4, 28')
    k('s_cbranch_scc1 L_stats')
    ctok = {}
    def chunk_ops(c):
        ops = [lambda: k('s_add_u32 m0, s56, %d' % (c * 4096))]
        def ld(i): ctok[c] = k.vm('global_load_lds_dwordx4 v2, s[58:59] offset:%d%s' % (i * 1024, LD_SC))
        for i in range(4): ops.append(lambda i=i: ld(i))
        if c < 7: ops.append(lambda: k('s_add_u32 s58, s58, 4096\ns_addc_u32 s59, s59, 0'))
        return ops
    XPRE = int(os.environ.get('XPRE', '5'))
    for c in range(XPRE):
        for op in chunk_ops(c): op()
    ACC = 16
    def breg(s_, j): return 80 + 16 * (s_ & 1) + 4 * j
    rtok = {}
    def rd(s_, j):
        k.ds('ds_read_b64_tr_b16 %s, v%d offset:%d' % (v(breg(s_, j), 2), 4 + j, s_ * 1024))
        rtok[s_, j] = k.ds('ds_read_b64_tr_b16 %s, v%d offset:%d' % (v(breg(s_, j) + 2, 2), 4 + j, s_ * 1024 + 256))
    k.wait(vm=ctok[0]); k.barrier()
    for j in range(4): rd(0, j)
    pend = []
    for c in range(XPRE, 8): pend += chunk_ops(c)
    W2L = int(os.environ.get('W2L', '14'))
    w2q = []
    for ks in range(W2E, 28): w2q += w2_ops(k, ks)
    nloop = sum(len(w2_ops(k, ks)) for ks in range(W2E, W2E + W2L))
    W2D = int(os.environ.get('W2D', '3'))
    gap = 0
    for s_ in range(32):
        c = s_ // 4
        if s_ == 24:
            def sl(j): ctok['st'] = k.vm('global_load_dwordx2 %s, v%d, s[70:71]%s' % (v(114 + 2 * j, 2), 12 + j, SC))
            for j in range(4): pend.append(lambda j=j: sl(j))
        if s_ % 4 == 3 and s_ < 31:
            k.wait(vm=ctok[c + 1]); k.barrier()
        for j in range(4):
            k.wait(ds=rtok[s_, j])
            k('v_mfma_f32_32x32x16_bf16 %s, %s, %s, %s' % (v(ACC + 16 * j, 16), a(4 * s_, 4), v(breg(s_, j), 4), '0' if s_ == 0 else v(ACC + 16 * j, 16)))
            if s_ < 31: rd(s_ + 1, j)
            if pend: pend.pop(0)()
            elif nloop > 0 and gap % W2D == 0:
                w2q.pop(0)(); nloop -= 1
            gap += 1
    assert not pend
    k.stamp(13)
    k.wait(vm=ctok['st'])
    k('s_mov_b32 s62, 0')
    k('L_chk:')
    k('v_min_u32 v80, v115, v117')
    k('v_min_u32 v81, v119, v121')
    k('v_min_u32 v80, v80, v81')
    k('v_cmp_eq_u32 vcc, 0, v80')
    k('s_nop 0')
    k('s_cbranch_vccz L_ok')
    k('s_add_u32 s62, s62, 1')
    k('s_cmp_gt_u32 s62, 0x%x' % TMO)
    k('s_cbranch_scc1 L_ok')
    k('s_sleep 2')
    for j in range(4): k.lines.append('    global_load_dwordx2 %s, v%d, s[70:71]%s' % (v(114 + 2 * j, 2), 12 + j, SC))
    k('s_waitcnt vmcnt(0)')
    k('s_branch L_chk')
    k('L_ok:')
    k('s_nop 7')
    def w2tick():
        if w2q: w2q.pop(0)()
    for j in range(4):
        b = 114 + 2 * j
        A_ = ACC + 16 * j
        for p in range(8):
            x = v(A_ + 2 * p, 2)
            k('v_pk_fma_f32 %s, %s, %s, %s op_sel_hi:[1,0,1] neg_lo:[0,1,0] neg_hi:[0,1,0]' % (x, v(128 + 2 * p, 2), v(b, 2), x))
        if j < 3: w2tick()
        for p in range(8):
            x = v(A_ + 2 * p, 2)
            k('v_pk_fma_f32 %s, %s, %s, %s op_sel:[1,0,0] op_sel_hi:[1,1,1]' % (x, v(b, 2), x, v(144 + 2 * p, 2)))
        if j < 3: w2tick()
        for r in range(16):
            k('v_exp_f32 v%d, v%d' % (80 + r, A_ + r))
            if r % 6 == 5 and j < 3: w2tick()
        for p in range(8): k('v_pk_add_f32 %s, %s, 1.0 op_sel_hi:[1,0]' % (v(80 + 2 * p, 2), v(80 + 2 * p, 2)))
        if j < 3: w2tick()
        for r in range(16):
            k('v_rcp_f32 v%d, v%d' % (80 + r, 80 + r))
            if r % 6 == 5 and j < 3: w2tick()
        for p in range(8): k('v_pk_mul_f32 %s, %s, %s' % (v(A_ + 2 * p, 2), v(A_ + 2 * p, 2), v(80 + 2 * p, 2)))
        if j < 3: w2tick()
        O = 96 + 8 * (j & 1)
        for p in range(8): k('v_cvt_pk_bf16_f32 v%d, v%d, v%d' % (O + p, A_ + 2 * p, A_ + 2 * p + 1))
        if j < 3: w2tick()
        k.vm('global_store_dwordx4 v%d, %s, s[68:69]%s' % (8 + j, v(O, 4), SC))
        lst = k.vm('global_store_dwordx4 v%d, %s, s[68:69] offset:1024%s' % (8 + j, v(O + 4, 4), SC))
    while w2q: w2q.pop(0)()
    phaseb_setup(k)
    k('s_lshl_b32 s60, s5, 6')
    k('s_lshl_b32 s61, s7, 2')
    k('s_add_u32 s60, s60, s61')
    k.wait(vm=lst)
    k.barrier()
    signal(k, 'f3', O_F3, 4, 5, nrep=1, sidx=60)
    resid_loads(k)
    k('s_branch L_join')
    k('L_stats:')
    k.reset_counters()
    k('s_sub_u32 s51, s4, 28')
    k('s_lshl_b32 s51, s51, 1')
    k('s_lshl_b32 s52, s3, 3')
    k('s_add_u32 s51, s51, s52')
    k('s_lshl_b32 s52, s51, 15')
    k('s_lshl_b32 s53, s50, 14')
    k('s_add_u32 s52, s52, s53')
    ws_ptr(k, 58, WS_X1T, 52)
    xt = []
    for i in range(16):
        xt.append(k.vm('global_load_dwordx4 %s, v2, s[58:59] offset:%d%s' % (v(128 + 4 * i, 4), (i & 3) * 1024, LD_SC)))
        if (i & 3) == 3 and i < 15: k('s_add_u32 s58, s58, 4096\ns_addc_u32 s59, s59, 0')
    k('s_mov_b32 s62, 0xffff0000')
    for r in range(16): k('v_mov_b32 v%d, 0' % (16 + r))
    for i in range(16):
        k.wait(vm=xt[i])
        for j in range(4):
            r = 128 + 4 * i + j
            tt = 32 + 2 * (j & 1)
            k('v_lshlrev_b32 v%d, 16, v%d' % (tt, r))
            k('v_and_b32 v%d, s62, v%d' % (tt + 1, r))
            k('v_pk_add_f32 %s, %s, %s' % (v(16 + 2 * j, 2), v(16 + 2 * j, 2), v(tt, 2)))
            k('v_pk_fma_f32 %s, %s, %s, %s' % (v(24 + 2 * j, 2), v(tt, 2), v(tt, 2), v(24 + 2 * j, 2)))
    for pat in ('row_ror:4', 'row_ror:8'):
        for r in range(16): k('v_add_f32_dpp v%d, v%d, v%d %s row_mask:0xf bank_mask:0xf' % (16 + r, 16 + r, 16 + r, pat))
    k('v_lshlrev_b32 v3, 6, v0')
    for i in range(4): k.ds('ds_write_b128 v3, %s offset:%d' % (v(16 + 4 * i, 4), 16 * i))
    k.wait_all(vm=False)
    k.barrier()
    k('s_cmp_lg_u32 s50, 0')
    k('s_cbranch_scc1 L_st2')
    k('v_lshrrev_b32 v3, 5, v1')
    k('v_lshlrev_b32 v3, 13, v3')
    k('v_bfe_u32 v4, v1, 3, 2')
    k('v_lshl_add_u32 v3, v4, 6, v3')
    k('v_and_b32 v4, 7, v1')
    k('v_lshl_add_u32 v3, v4, 2, v3')
    for q in range(8): t = k.ds('ds_read2_b32 %s, v3 offset0:%d offset1:%d' % (v(16 + 2 * q, 2), 0, 8)); k('v_add_u32 v3, 1024, v3')
    k('s_lshl_b32 s62, s51, 8')
    add_ptr(k, 70, 14, 62)
    k('v_lshlrev_b32 v4, 3, v1')
    k.wait(ds=t)
    for q in range(1, 8): k('v_pk_add_f32 v[16:17], v[16:17], %s' % v(16 + 2 * q, 2))
    k('v_mul_f32 v16, %s, v16' % f32(1.0 / 512))
    k('v_mul_f32 v17, %s, v17' % f32(1.0 / 512))
    k('v_fma_f32 v17, -v16, v16, v17')
    k('v_max_f32 v17, 0, v17')
    k('v_add_f32 v17, %s, v17' % f32(1e-5))
    k('v_rsq_f32 v17, v17')
    k('v_mul_f32 v17, %s, v17' % f32(-LOG2E))
    k.vm('global_store_dwordx2 v4, v[16:17], s[70:71]' + SC)
    k('L_st2:')
    k.stamp(13)
    for ks in range(W2E, 28):
        for op in w2_ops(k, ks): op()
    phaseb_setup(k)
    resid_loads(k)
    k('L_join:')
    k('s_lshr_b32 s60, s8, 1')
    k('s_lshl_b32 s60, s60, 6')
    k('s_add_u32 s60, s60, 0x%x' % O_F3)
    k('v_min_u32 v6, 13, v1')
    k('v_lshl_add_u32 v6, v6, 2, s60')
    k.stamp(14)
    poll(k, 'f3', ['global_load_dword v7, v6, s[14:15]' + SC], ['v_cmp_ne_u32 vcc, s81, v7'])
    k.stamp(1)
    k.reset_counters()
    NS = 16
    tok = {}
    def issue(s_):
        b = 8 * (s_ % NS)
        off = (s_ & 3) * 1024
        k.vm('global_load_dwordx4 %s, v114, s[78:79] offset:%d%s' % (a(b, 4), off, LD_SC))
        tok[s_] = k.vm('global_load_dwordx4 %s, v115, s[78:79] offset:%d%s' % (a(b + 4, 4), off, LD_SC))
        if (s_ & 3) == 3 and s_ < 27: k('s_add_u32 s78, s78, 4096\ns_addc_u32 s79, s79, 0')
    HP = int(os.environ.get('HP', '10'))
    for s_ in range(HP): issue(s_)
    nxt = HP
    for s_ in range(28):
        k.wait(vm=tok[s_])
        b = 8 * (s_ % NS)
        for j in range(4):
            k('v_mfma_f32_32x32x16_bf16 %s, %s, %s, %s' % (v(ACC + 16 * j, 16), w2reg(s_)[j >> 1], a(b + 4 * (j & 1), 4), '0' if s_ == 0 else v(ACC + 16 * j, 16)))
            if j in (1, 3) and nxt < 28 and nxt - NS <= (s_ if j == 3 else s_ - 1):
                issue(nxt); nxt += 1
    for j in range(1, 4):
        for q in range(4):
            k.ds('ds_write_b128 v%d, %s offset:%d' % (119 + j, v(ACC + 16 * j + 4 * q, 4), (j - 1) * 4096 + q * 1024))
    k.wait_all(vm=False)
    k.barrier()
    rt_ = []
    for j in range(3):
        for q in range(4): t = k.ds('ds_read_b128 %s, v123 offset:%d' % (v(32 + 16 * j + 4 * q, 4), j * 4096 + q * 1024))
        rt_.append(t)
    for j in range(3):
        k.wait(ds=rt_[j])
        for p in range(8): k('v_pk_add_f32 %s, %s, %s' % (v(ACC + 2 * p, 2), v(ACC + 2 * p, 2), v(32 + 16 * j + 2 * p, 2)))
    for p in range(8):
        k('v_pk_fma_f32 %s, %s, %s, %s' % (v(ACC + 2 * p, 2), v(ACC + 2 * p, 2), v(96 + 2 * p, 2), v(80 + 2 * p, 2)))
        k('v_cvt_pk_bf16_f32 v%d, v%d, v%d' % (128 + p, ACC + 2 * p, ACC + 2 * p + 1))
    for qq in range(2):
        b = 128 + 4 * qq
        k('v_permlane32_swap_b32 v%d, v%d' % (b, b + 2))
        k('v_permlane32_swap_b32 v%d, v%d' % (b + 1, b + 3))
        k.vm('global_store_dwordx4 v118, %s, s[24:25] offset:%d' % (v(b, 4), 32 * qq))

def phaseb_setup(k):
    k('s_mul_i32 s60, s11, 114688')
    k('v_add_u32 v114, s60, v2')
    k('s_sub_u32 s60, 114688, s60')
    k('v_add_u32 v115, s60, v2')
    k('s_mul_i32 s61, s50, %d' % (28 * 1024))
    k('s_mul_i32 s60, s8, %d' % (2 * 114688))
    k('s_add_u32 s60, s60, s61')
    ws_ptr(k, 78, WS_HID, 60)
    k('v_lshrrev_b32 v119, 5, v1')
    k('v_and_b32 v118, 31, v1')
    k('v_lshlrev_b32 v116, 8, v119')
    k('v_lshl_add_u32 v116, v118, 1, v116')
    k('v_lshlrev_b32 v117, 4, v119')
    k('v_lshl_add_u32 v118, v118, 10, v117')
    k('s_lshl_b32 s61, s8, 1')
    k('s_add_u32 s61, s61, s11')
    k('s_lshl_b32 s62, s9, 1')
    k('s_add_u32 s62, s62, s10')
    k('s_lshl_b32 s63, s61, 15')
    k('s_lshl_b32 s60, s62, 11')
    k('s_add_u32 s60, s60, s63')
    ws_ptr(k, 20, WS_X1T, 60)
    k('s_lshl_b32 s60, s62, 7')
    k('s_add_u32 s60, s60, %d' % (L_GS + 2048))
    k('v_add_u32 v117, s60, v117')
    k('s_lshl_b32 s60, s62, 6')
    k('s_add_u32 s60, s60, s63')
    add_ptr(k, 24, P_OUT, 60)
    for j in range(1, 4):
        k('s_xor_b32 s60, s50, %d' % j)
        k('s_mul_i32 s60, s60, 12288')
        k('v_add_u32 v%d, s60, v2' % (119 + j))
    k('s_mul_i32 s60, s50, 12288')
    k('v_add_u32 v123, s60, v2')

def resid_loads(k):
    for r in range(16): k('v_mov_b32 v%d, 0' % (80 + r))
    for q in range(4): k.ds('ds_read_b128 %s, v117 offset:%d' % (v(96 + 4 * q, 4), 32 * q))
    for q in range(4):
        for r in range(4): k.vm('global_load_short_d16_hi v%d, v116, s[20:21] offset:%d%s' % (80 + 4 * q + r, (8 * q + r) * 64, LD_SC))

def build_single(path):
    k = Kern(NAME + '_kernel')
    phase0(k); conv_phase(k); mlp_phase(k)
    k.end()
    k('L_end:')
    k('s_endpgm')
    launch, (vg_, sg_, ac) = 'grid=(256,1,1) block=(256,1,1) lds=%d' % LDS_TOTAL, (512, 84, 256)
    out = [HEADER.rstrip(), '; @launch ' + launch, '.amdgcn_target "amdgcn-amd-amdhsa--gfx950"', k.text(vg_, sg_, ac), '.text\nL_text_end:\n    s_endpgm']
    print(k.name, k.stats)
    open(path, 'w').write('\n'.join(out) + '\n')

if __name__ == '__main__':
    build_single(sys.argv[1] if len(sys.argv) > 1 else ('diag.s' if DIAG else 'cdna_kernels/%s.s' % NAME))
```

```python
import os
from gen import *
WS_XNX = 0x000000
WS_X1S = 0x400000
WS_SYNC = 0xF00000
O_F1, O_FP, O_F2, O_F3 = 0x4000, 0x6000, 0x8000, 0xA000
WS_MODP = 0x810000
WS_MODQ = 0x818000
L_T = 65536
L_SJ = 81920
L_CM = 98304
L_SC = 114688
L_STN = 118784; L_STX = 118784 + 8448 + 128
L_CV = 0; CHS = 25216
O_K1 = 4160; O_H = 8320; O_X = 12928; O_RED = 17024
L_GS = 135936
LDS_TOTAL = 144128
SC = ' sc1'
LD_SC = os.environ.get('LD_SC', ' sc1')
PRE = int(os.environ.get('PRE', '3'))
TMO = 0x20000
SYNCW = 1
KSPLIT = int(os.environ.get('KSPLIT', '1'))

def poll(k, name, loads, check, barrier=True):
    k('s_cmp_lg_u32 s50, %d' % SYNCW)
    k('s_cbranch_scc1 L_%s_w' % name)
    k('s_mov_b32 s80, 0')
    k('L_%s_p:' % name)
    for l in loads: k.lines.append('    ' + l)
    k('s_waitcnt vmcnt(0)')
    for c in check: k(c)
    k('s_nop 0')
    k('s_cbranch_vccz L_%s_w' % name)
    k('s_add_u32 s80, s80, 1')
    k('s_cmp_gt_u32 s80, 0x%x' % TMO)
    k('s_cbranch_scc1 L_%s_w' % name)
    k('s_sleep 1')
    k('s_branch L_%s_p' % name)
    k('L_%s_w:' % name)
    if barrier: k.barrier()

def signal(k, name, off, va, vd, nrep=8, sidx=None):
    k('s_cmp_lg_u32 s50, %d' % SYNCW)
    k('s_cbranch_scc1 L_%s_s' % name)
    if sidx is None:
        k('s_lshl_b32 s80, s2, 2')
        k('s_add_u32 s80, s80, 0x%x' % off)
    else:
        k('s_add_u32 s80, s%d, 0x%x' % (sidx, off))
    k('v_lshl_add_u32 v%d, v1, 10, s80' % va)
    k('v_mov_b32 v%d, s81' % vd)
    k('s_mov_b64 exec, %d' % ((1 << nrep) - 1))
    k.lines.append('    global_store_dword v%d, v%d, s[14:15]%s' % (va, vd, SC))
    k('s_mov_b64 exec, -1')
    k('L_%s_s:' % name)

def chk4(r):
    return ['v_xor_b32 v%d, s81, v%d' % (r, r), 'v_xor_b32 v%d, s81, v%d' % (r + 1, r + 1), 'v_xor_b32 v%d, s81, v%d' % (r + 2, r + 2), 'v_xor_b32 v%d, s81, v%d' % (r + 3, r + 3),
            'v_or3_b32 v%d, v%d, v%d, v%d' % (r, r, r + 1, r + 2), 'v_or_b32 v%d, v%d, v%d' % (r, r, r + 3), 'v_cmp_ne_u32 vcc, 0, v%d' % r]

def gen_p():
    k = Kern(NAME + '_kernel')
    load_ptrs(k)
    k('s_getpc_b64 s[82:83]')
    k('L_pf:')
    k('v_lshlrev_b32 v255, 7, v0')
    k('v_min_u32 v255, L_text_end-L_pf-4, v255')
    k.lines.append('    global_load_dword v255, v255, s[82:83]')
    k('s_cmp_ge_u32 s2, 256')
    k('s_cbranch_scc1 L_end')
    k('s_memrealtime s[78:79]')
    wave_id(k, 50, 1)
    k('v_and_b32 v1, 63, v0')
    k('s_and_b32 s3, s2, 7')
    k('s_lshr_b32 s4, s2, 3')
    k('v_lshrrev_b32 v77, 5, v0')
    k('v_and_b32 v78, 31, v0')
    k('v_lshlrev_b32 v78, 4, v78')
    k('v_lshl_add_u32 v79, v77, 10, v78')
    k('s_lshl_b32 s63, s2, 13')
    k('v_add_u32 v79, s63, v79')
    k('s_and_b32 s5, s4, 3')
    k('s_lshl_b32 s5, s5, 3')
    k('s_add_u32 s5, s5, s3')
    k('s_lshl_b32 s5, s5, 1')
    k('s_bfe_u32 s6, s4, 0x10002')
    k('s_add_u32 s5, s5, s6')
    k('s_lshr_b32 s6, s4, 3')
    k('s_cmp_ge_u32 s5, 48')
    k('s_cselect_b32 s7, 16, 0')
    k('s_add_u32 s7, s7, s5')
    k('s_lshl_b32 s7, s7, 6')
    k('s_lshl_b32 s8, s6, 2')
    k('s_add_u32 s8, s8, s50')
    k('s_mul_i32 s9, s8, %d' % (32 * 6144))
    k('s_add_u32 s7, s7, s9')
    k('s_lshl_b32 s8, s8, 6')
    k('s_and_b32 s64, s4, 1')
    k('s_lshl_b32 s64, s64, 3')
    k('s_add_u32 s64, s64, s3')
    k('s_lshl_b32 s64, s64, 1')
    k('s_bfe_u32 s65, s4, 0x10001')
    k('s_add_u32 s64, s64, s65')
    k('s_lshr_b32 s65, s4, 2')
    k('s_cmp_ge_u32 s64, 16')
    k('s_cselect_b32 s66, 64, 48')
    k('s_add_u32 s66, s66, s64')
    k('s_lshl_b32 s66, s66, 6')
    k('s_lshl_b32 s67, s65, 2')
    k('s_add_u32 s67, s67, s50')
    k('s_mul_i32 s68, s67, %d' % (16 * 6144))
    k('s_add_u32 s66, s66, s68')
    k('s_lshl_b32 s67, s67, 5')
    k('s_sub_u32 s67, s67, 64')
    k('v_min_u32 v248, 23, v1')
    k('v_cmp_gt_u32 vcc, 16, v248')
    k('v_mov_b32 v250, s67')
    k('v_mov_b32 v251, s8')
    k('v_cndmask_b32 v250, v250, v251, vcc')
    k('v_lshl_add_u32 v248, v248, 2, v250')
    k('v_lshrrev_b32 v250, 2, v1')
    k('v_mul_u32_u24 v254, 6144, v250')
    k('v_and_b32 v251, 3, v1')
    k('v_lshl_add_u32 v254, v251, 4, v254')
    k('s_lshl_b32 s9, s50, 12')
    k('s_add_u32 s9, s9, %d' % L_CM)
    k('s_lshl_b32 s51, s2, 9')
    k('v_lshl_add_u32 v2, v0, 1, s51')
    for i in range(4, 11): k('v_mov_b32 v%d, 0' % i)
    k('s_lshr_b32 s52, s50, 1')
    k('s_lshl_b32 s53, s2, 1')
    k('s_add_u32 s53, s53, s52')
    k('s_lshl_b32 s54, s53, 1')
    k('v_mov_b32 v3, s54')
    k.smem_wait()
    k('s_or_b32 s78, s78, 1')
    k('s_or_b32 s79, s2, s50')
    k('s_cmp_eq_u32 s79, 0')
    k('s_cbranch_scc0 L_nn')
    k('v_mov_b32 v250, s78')
    k('s_mov_b64 exec, 1')
    k.lines.append('    global_store_dword v4, v250, s[%d:%d]%s' % (P_DBG, P_DBG + 1, SC))
    k('s_mov_b64 exec, -1')
    k('L_nn:')
    k.vm('global_load_dwordx4 v[240:243], v79, s[%d:%d]' % (P_U, P_U + 1))
    tx = k.vm('global_load_dwordx4 v[244:247], v79, s[%d:%d] offset:512' % (P_U, P_U + 1))
    tc = k.vm('global_load_dword v248, v248, s[%d:%d]' % (P_C, P_C + 1))
    add_ptr(k, 10, P_WMOD, 7)
    k('s_mov_b32 m0, s9')
    k.vm('global_load_lds_dwordx4 v254, s[10:11]')
    k('s_add_u32 s10, s10, %d' % (16 * 6144 - 1024))
    k('s_addc_u32 s11, s11, 0')
    k.vm('global_load_lds_dwordx4 v254, s[10:11] offset:1024')
    add_ptr(k, 10, P_WMOD, 66)
    k('s_add_u32 m0, s9, 2048')
    tcm = k.vm('global_load_lds_dwordx4 v254, s[10:11]')
    k.vm('global_load_short_d16_hi v10, v3, s[%d:%d]' % (P_LDT, P_LDT + 1))
    for i, p in enumerate((P_ARE, P_AIM, P_BRE, P_BIM, P_CRE, P_CIM)):
        tpar = k.vm('global_load_short_d16_hi v%d, v2, s[%d:%d]' % (4 + i, p, p + 1))
    k('s_lshl_b32 s60, s2, 2')
    k('s_load_dword s30, s[%d:%d], s60' % (P_DSK, P_DSK + 1))
    k('s_lshl_b32 s75, s5, 9')
    k('s_lshl_b32 s76, s6, 2')
    k('s_add_u32 s75, s75, s76')
    ws_ptr(k, 16, WS_MODP, 75)
    k('s_lshl_b32 s75, s64, 10')
    k('s_lshl_b32 s76, s65, 2')
    k('s_add_u32 s75, s75, s76')
    ws_ptr(k, 18, WS_MODQ, 75)
    k('s_and_b32 s74, s50, 1')
    k('s_mov_b32 s69, 0')
    k('s_cmp_lt_u32 s2, 112')
    k('s_cbranch_scc1 L_sj_w1')
    k('s_sub_u32 s75, s2, 112')
    k('s_min_u32 s75, s75, 111')
    k('s_and_b32 s76, s75, 7')
    k('s_lshl_b32 s76, s76, 1')
    k('s_add_u32 s76, s76, s74')
    k('s_lshr_b32 s75, s75, 3')
    k('s_lshl_b32 s77, s75, 17')
    k('s_lshl_b32 s72, s76, 6')
    k('s_add_u32 s77, s77, s72')
    add_ptr(k, 64, P_W2, 77)
    k('s_mul_i32 s76, s76, %d' % (112 * 1024))
    k('s_lshl_b32 s75, s75, 13')
    k('s_add_u32 s76, s76, s75')
    ws_ptr(k, 70, WS_W2P, 76)
    k('s_movk_i32 s66, 1024\ns_movk_i32 s67, 16384\ns_movk_i32 s72, 256\ns_movk_i32 s73, 512')
    k('s_branch L_sj_go')
    k('L_sj_w1:')
    k('s_mul_i32 s75, s2, 147')
    k('s_lshr_b32 s75, s75, 12')
    k('s_mul_i32 s76, s75, 28')
    k('s_sub_u32 s76, s2, s76')
    k('s_lshl_b32 s76, s76, 1')
    k('s_add_u32 s76, s76, s74')
    k('s_mul_i32 s77, s75, %d' % (128 * 3584))
    k('s_lshl_b32 s72, s76, 6')
    k('s_add_u32 s77, s77, s72')
    add_ptr(k, 64, P_W1, 77)
    k('s_lshl_b32 s76, s76, 15')
    k('s_lshl_b32 s75, s75, 13')
    k('s_add_u32 s76, s76, s75')
    ws_ptr(k, 70, WS_W1P, 76)
    k('s_movk_i32 s66, 3584\ns_mov_b32 s67, %d\ns_movk_i32 s72, 512\ns_movk_i32 s73, 256' % (16 * 3584))
    k('L_sj_go:')
    k('s_cmp_lt_u32 s2, 224')
    k('s_cselect_b32 s69, s52, 0')
    k('s_lshl_b32 s74, s74, 13')
    k('s_add_u32 s74, s74, %d' % L_SJ)
    k('v_lshrrev_b32 v238, 2, v1')
    k('v_mul_u32_u24 v238, s66, v238')
    k('v_and_b32 v237, 3, v1')
    k('v_lshl_add_u32 v238, v237, 4, v238')
    k('v_mov_b32 v12, 0\nv_mov_b32 v13, 0\nv_mov_b32 v14, 0\nv_mov_b32 v15, 0')
    ws_ptr(k, 14, WS_SYNC)
    tr_addr32(k, 254, 1, 250, 251, 6, 8)
    k('v_add_u32 v254, s9, v254')
    k('v_lshrrev_b32 v250, 5, v1')
    k('v_mul_u32_u24 v252, s72, v250')
    k('v_bfe_u32 v250, v1, 2, 2')
    k('v_lshl_add_u32 v252, v250, 6, v252')
    k('v_bfe_u32 v250, v1, 4, 1')
    k('v_lshl_add_u32 v252, v250, 5, v252')
    k('v_and_b32 v250, 3, v1')
    k('v_lshl_add_u32 v252, v250, 3, v252')
    k('v_add_u32 v252, s74, v252')
    k('v_add_u32 v253, s73, v252')
    k('v_and_b32 v40, 31, v1')
    k('v_lshrrev_b32 v41, 5, v1')
    k('v_mul_u32_u24 v11, 1056, v77')
    k('v_add_u32 v11, v11, v78')
    k('v_add_u32 v11, %d, v11' % L_STN)
    k('v_bfe_u32 v56, v1, 2, 2')
    k('v_mul_u32_u24 v236, 1056, v56')
    k('v_bfe_u32 v56, v1, 4, 1')
    k('v_mul_u32_u24 v57, %d, v56' % (L_STX - L_STN))
    k('v_add_u32 v236, v236, v57')
    k('v_lshl_add_u32 v236, v41, 5, v236')
    k('v_and_b32 v57, 3, v1')
    k('v_lshl_add_u32 v236, v57, 3, v236')
    k('s_lshl_b32 s75, s50, 9')
    k('s_add_u32 s75, s75, %d' % L_STN)
    k('v_add_u32 v236, s75, v236')
    k('v_and_b32 v57, 15, v1')
    k('v_lshl_add_u32 v57, v41, 4, v57')
    k('v_lshlrev_b32 v235, 5, v57')
    k('v_lshl_add_u32 v235, v56, 4, v235')
    k('v_add_u32 v234, 0x1000, v235')
    k('s_lshl_b32 s75, s2, 14')
    k('s_lshl_b32 s76, s50, 13')
    k('s_add_u32 s75, s75, s76')
    ws_ptr(k, 12, WS_XNX, 75)
    k('s_mov_b32 s58, 0xffff0000')
    k('s_mov_b32 s63, 0x3f803f80')
    k('v_lshlrev_b32 v249, 2, v0')
    k('v_add_u32 v249, %d, v249' % L_SC)
    k('v_lshlrev_b32 v233, 4, v41')
    k('s_lshl_b32 s75, s50, 8')
    k('s_add_u32 s75, s75, %d' % L_SC)
    k('v_add_u32 v233, s75, v233')
    static = []
    S = lambda x: static.append(x)
    S('s_lshl_b32 s55, s50, 14')
    S('v_lshl_add_u32 v16, v1, 2, s55')
    for r in range(1, 16): S('v_xor_b32 v%d, %d, v16' % (16 + r, r << 4))
    S('v_and_b32 v42, 15, v1')
    S('v_xor_b32 v42, v42, v41')
    S('v_lshlrev_b32 v42, 4, v42')
    S('v_lshl_add_u32 v42, v40, 8, v42')
    S('v_add_u32 v32, s55, v42')
    for ks in range(1, 8): S('v_xor_b32 v%d, %d, v32' % (32 + ks, ks << 5))
    S('s_mul_i32 s56, s52, 6912')
    S('s_add_u32 s56, s56, %d' % (L_T - 0x3F00 * 4))
    S('v_lshlrev_b32 v42, 3, v40')
    S('v_cvt_f32_u32 v42, v42')
    S('v_cvt_f32_u32 v43, v41')
    c0 = [0, 1, 2, 3, 256, 258, 260, 262]
    c1 = [4, 5, 6, 7, 512, 516, 768, 772]
    for r in range(8):
        S('v_fmamk_f32 v56, v43, %s, v42' % f32(c1[r] - c0[r]))
        if c0[r]: S('v_add_f32 v56, %s, v56' % f32(c0[r]))
        else: S('v_max_f32 v56, 0.5, v56')
        S('v_cvt_pk_bf16_f32 v56, v56, 0')
        S('v_lshl_add_u32 v%d, v56, 2, s56' % (44 + r))
    S('v_cmp_eq_u32 vcc, 32, v1')
    S('v_fmaak_f32 v57, 4.0, v42, %s' % f32(4096.0))
    S('v_mov_b32 v58, %s' % f32(2048.0))
    S('v_cndmask_b32 v58, v57, v58, vcc')
    S('v_cmp_lt_u32 vcc, 31, v1')
    for r in range(8, 12):
        S('v_add_f32 v56, %s, v42' % f32(1024 + 256 * (r - 8)))
        S('v_cndmask_b32 v56, v56, v%d, vcc' % (58 if r == 8 else 57))
        S('v_cvt_pk_bf16_f32 v56, v56, 0')
        S('v_lshl_add_u32 v%d, v56, 2, s56' % (44 + r))
    S('v_and_b32 v59, 127, v0')
    S('v_lshlrev_b32 v56, 4, v59')
    S('v_sub_u32 v56, 2047, v56')
    S('v_cvt_f32_u32 v57, v56')
    for i in range(17):
        if i: S('v_add_f32 v56, %s, v57' % f32(-float(i)))
        else: S('v_mov_b32 v56, v57')
        if i >= 15: S('v_max_f32 v56, 0.5, v56')
        S('v_cvt_pk_bf16_f32 v56, v56, 0')
        S('v_lshl_add_u32 v%d, v56, 2, s56' % (60 + i))
    S('s_mov_b32 s57, 0x07060302')
    S('s_mov_b32 s59, %s' % f32(LOG2E))
    lo_log2e = LOG2E - struct.unpack('<f', struct.pack('<f', LOG2E))[0]
    inv2pi = 1.0 / (2 * math.pi)
    inv2pi_f = struct.unpack('<f', struct.pack('<f', inv2pi))[0]
    S('s_mov_b32 s60, %s' % f32(inv2pi_f))
    S('s_mov_b32 s61, %s' % f32(inv2pi - inv2pi_f))
    S('s_mov_b32 s62, %s' % f32(lo_log2e))
    for x in static: k(x)
    for i in range(4): k('v_mov_b32 v%d, 0' % (96 + i))
    k.smem_wait()
    k.wait(vm=tx)
    k.stamp(2)
    for i in range(2): k.ds('ds_write_b128 v11, %s offset:%d' % (v(240 + 4 * i, 4), (L_STX - L_STN) + 512 * i))
    for j in range(8):
        k('v_dot2c_f32_bf16 v%d, s63, v%d' % (96 + (j & 1), 240 + j))
        k('v_dot2c_f32_bf16 v%d, v%d, v%d' % (98 + (j & 1), 240 + j, 240 + j))
    k.wait(vm=tc)
    k('v_lshlrev_b32 v116, 16, v248')
    k('v_and_b32 v117, s58, v248')
    k('v_add_f32 v96, v96, v97')
    k('v_add_f32 v98, v98, v99')
    silu = []
    for nm in ('v_mul_f32 v%%d, %s, v%%d' % f32(-LOG2E),):
        silu += [nm % (118, 116), nm % (119, 117)]
    silu += ['v_exp_f32 v118, v118', 'v_exp_f32 v119, v119', 'v_add_f32 v118, 1.0, v118', 'v_add_f32 v119, 1.0, v119', 'v_rcp_f32 v118, v118', 'v_rcp_f32 v119, v119',
             'v_mul_f32 v116, v116, v118', 'v_mul_f32 v117, v117, v119', 'v_cvt_pk_bf16_f32 v116, v116, v117']
    for pat in ('quad_perm:[1,0,3,2]', 'quad_perm:[2,3,0,1]', 'row_half_mirror', 'row_mirror'):
        k(silu.pop(0)); k(silu.pop(0))
        k('v_add_f32_dpp v96, v96, v96 %s row_mask:0xf bank_mask:0xf' % pat)
        k('v_add_f32_dpp v98, v98, v98 %s row_mask:0xf bank_mask:0xf' % pat)
    k('v_mov_b32 v97, v96')
    k('v_mov_b32 v99, v98')
    while silu: k(silu.pop(0))
    k.ds('ds_write_b32 v249, v116')
    k('v_permlane16_swap_b32 v96, v97')
    k('v_permlane16_swap_b32 v98, v99')
    for ks in range(3): k.ds('ds_read_b128 %s, v233 offset:%d' % (v(116 + 4 * ks, 4), 32 * ks))
    k('v_add_f32 v96, v96, v97')
    k('v_add_f32 v98, v98, v99')
    k('v_mul_f32 v96, %s, v96' % f32(1.0 / 512))
    k('v_mul_f32 v98, %s, v98' % f32(1.0 / 512))
    k('v_fma_f32 v98, -v96, v96, v98')
    k('v_max_f32 v98, 0, v98')
    k('v_add_f32 v98, %s, v98' % f32(1e-5))
    k('v_rsq_f32 v100, v98')
    k.wait(vm=tcm)
    for ks in range(3):
        k.ds('ds_read_b64_tr_b16 %s, v254 offset:%d' % (v(128 + 4 * ks, 2), ks * 1024))
        ttr = k.ds('ds_read_b64_tr_b16 %s, v254 offset:%d' % (v(130 + 4 * ks, 2), ks * 1024 + 256))
    k('v_mul_f32 v101, v96, v100')
    for j in range(8):
        tt = 102 + 2 * (j & 1)
        k('v_lshlrev_b32 v%d, 16, v%d' % (tt, 240 + j))
        k('v_and_b32 v%d, s58, v%d' % (tt + 1, 240 + j))
        k('v_pk_fma_f32 %s, %s, v[100:101], v[100:101] op_sel:[0,0,1] op_sel_hi:[1,0,1] neg_lo:[0,0,1] neg_hi:[0,0,1]' % (v(tt, 2), v(tt, 2)))
        k('v_cvt_pk_bf16_f32 v%d, v%d, v%d' % (108 + j, tt, tt + 1))
    k.wait(ds=ttr)
    k('v_mfma_f32_32x32x16_bf16 v[160:175], v[116:119], v[128:131], 0')
    k('v_mfma_f32_32x32x16_bf16 v[176:191], v[124:127], v[136:139], 0')
    k('v_mfma_f32_32x32x16_bf16 v[160:175], v[120:123], v[132:135], v[160:175]')
    for i in range(2): k.ds('ds_write_b128 v11, %s offset:%d' % (v(108 + 4 * i, 4), 512 * i))
    k.wait(vm=tpar)
    k('s_cmp_eq_u32 s69, 0')
    k('s_cbranch_scc1 L_sj_no')
    for i in range(8):
        k('s_add_u32 m0, s74, %d' % (i * 1024))
        k.lines.append('    global_load_lds_dwordx4 v238, s[64:65]')
        if i < 7: k('s_add_u32 s64, s64, s67\ns_addc_u32 s65, s65, 0')
    k('L_sj_no:')
    k('s_nop 7')
    k.ds('ds_write_b32 v249, v176 offset:2048')
    k.ds('ds_write_b32 v249, v160 offset:1024')
    k.wait_all(vm=False)
    k.barrier()
    k('s_cmp_ge_u32 s50, 2')
    k('s_cbranch_scc1 L_st_no')
    k('s_lshl_b32 s75, s50, 10')
    k('v_lshl_add_u32 v160, v1, 2, s75')
    k('v_add_u32 v160, %d, v160' % (L_SC + 1024))
    for i in range(4): k.lines.append('    ds_read_b32 v%d, v160 offset:%d' % (164 + i, 256 * i))
    for q in range(8):
        k.lines.append('    ds_read_b64_tr_b16 %s, v236 offset:%d' % (v(96 + 4 * q, 2), 64 * q))
        k.lines.append('    ds_read_b64_tr_b16 %s, v236 offset:%d' % (v(98 + 4 * q, 2), 64 * q + 4224))
    k('s_add_u32 s75, s50, 4')
    k('v_lshlrev_b32 v161, s75, v40')
    k('s_cmp_eq_u32 s50, 0')
    k('s_cselect_b32 s16, s16, s18')
    k('s_cselect_b32 s17, s17, s19')
    k('v_and_b32 v162, 15, v1')
    k('s_lshl_b32 s75, s2, 6')
    k('v_lshl_add_u32 v162, v162, 2, s75')
    k.lines.append('    global_load_dword v232, v12, s[%d:%d]%s' % (P_DBG, P_DBG + 1, SC))
    k.lines.append('    global_store_dword v162, v12, s[14:15]' + SC)
    k('s_waitcnt lgkmcnt(15)')
    k('v_add_f32 v164, v164, v165')
    k('v_add_f32 v166, v166, v167')
    k('v_add_f32 v164, v164, v166')
    k.lines.append('    global_store_dword v161, v164, s[16:17]' + SC)
    for q in range(8):
        k('s_waitcnt lgkmcnt(%d)' % (14 - 2 * q))
        k.lines.append('    global_store_dwordx4 v%d, %s, s[12:13] offset:%d%s' % (235 - (q >> 2), v(96 + 4 * q, 4), 1024 * (q & 3), SC))
    k('s_nop 1')
    k('L_st_no:')
    k.stamp(4)
    k('v_mul_f32 v78, s59, v10')
    k('v_fma_f32 v79, v10, s59, -v78')
    k('v_fma_f32 v79, v10, s62, v79')
    k('v_exp_f32 v78, v78')
    k('v_mul_f32 v79, %s, v79' % f32(math.log(2.0)))
    k('v_fma_f32 v78, v78, v79, v78')
    k('v_cvt_pk_bf16_f32 v78, v78, v78')
    k('v_and_b32 v78, s58, v78')
    k('v_mul_f32 v4, v78, v4')
    k('v_mul_f32 v5, v78, v5')
    k('v_mul_f32 v152, v78, v6')
    k('v_mul_f32 v154, v78, v7')
    E0 = 96
    cmul1(k, E0, 8, 152); cmul2(k, E0, 8, 152)
    k('v_mul_f32 v4, s59, v4')
    Z1, Z256, Z8, Z128 = 80, 84, 152, 156
    def zpow(dst, p, conj, t):
        pf = f32(float(p))
        return ['v_mul_f32 v%d, %s, v4' % (t, pf), 'v_mul_f32 v%d, %s, v5' % (t + 1, pf), 'v_exp_f32 v%d, v%d' % (t, t),
                'v_mul_f32 v%d, s60, v%d' % (t + 2, t + 1), 'v_fma_f32 v%d, v%d, s60, -v%d' % (t + 3, t + 1, t + 2),
                'v_fma_f32 v%d, v%d, s61, v%d' % (t + 3, t + 1, t + 3), 'v_fract_f32 v%d, v%d' % (t + 2, t + 2),
                'v_add_f32 v%d, v%d, v%d' % (t + 2, t + 2, t + 3), 'v_cos_f32 v%d, v%d' % (t + 3, t + 2), 'v_sin_f32 v%d, v%d' % (t + 2, t + 2),
                'v_mul_f32 v%d, v%d, v%d' % (dst, t, t + 3), 'v_mul_f32 v%d, v%d, %sv%d' % (dst + 2, t, '-' if conj else '', t + 2)]
    for p_, q_ in ((zpow(Z1, 1, False, 88), zpow(Z256, 256, False, 92)), (zpow(Z8, 8, True, 88), zpow(Z128, 128, True, 92))):
        for x, y in zip(p_, q_): k(x); k(y)
    T0 = 140
    def split_a(e, i):
        t = T0 + 6 * (i & 1)
        if not KSPLIT:
            k('v_cvt_pk_bf16_f32 v%d, v%d, v%d' % (t + 4, e, e + 1)); return
        k('v_perm_b32 v%d, v%d, v%d, s57' % (t + 4, e + 1, e))
        k('v_and_b32 v%d, s58, v%d' % (t, e))
        k('v_and_b32 v%d, s58, v%d' % (t + 1, e + 1))
    def split_b(e, i, row):
        t = T0 + 6 * (i & 1)
        if not KSPLIT: return k.ds('ds_write_b32 v%d, v%d offset:%d' % (16 + (row & 15), t + 4, row * 256))
        k('v_pk_add_f32 %s, %s, %s neg_lo:[0,1] neg_hi:[0,1]' % (v(t + 2, 2), v(e, 2), v(t, 2)))
        k('v_cvt_pk_bf16_f32 v%d, v%d, v%d' % (t + 5, t + 2, t + 3))
        return k.ds('ds_write2st64_b32 v%d, v%d, v%d offset0:%d offset1:%d' % (16 + (row & 15), t + 4, t + 5, row, 32 + row))
    def f1_signal():
        k('s_cmp_ge_u32 s50, 2')
        k('s_cbranch_scc1 L_f1a')
        k('s_waitcnt vmcnt(0)')
        k('L_f1a:')
        k.barrier()
        k('s_cmp_lg_u32 s50, %d' % SYNCW)
        k('s_cbranch_scc1 L_non')
        k('s_mov_b32 s80, 0')
        k('L_non_p:')
        k('v_readfirstlane_b32 s81, v232')
        k('s_cmp_lg_u32 s81, 0')
        k('s_cbranch_scc1 L_non')
        k('s_add_u32 s80, s80, 1')
        k('s_cmp_gt_u32 s80, 0x%x' % TMO)
        k('s_cbranch_scc1 L_non')
        k.lines.append('    global_load_dword v232, v12, s[%d:%d]%s' % (P_DBG, P_DBG + 1, SC))
        k('s_waitcnt vmcnt(0)')
        k('s_branch L_non_p')
        k('L_non:')
        signal(k, 'f1', O_F1, 250, 251)
        k.stamp(5)
    def pack_job():
        k('s_cmp_eq_u32 s69, 0')
        k('s_cbranch_scc1 L_pk_no')
        k('s_waitcnt vmcnt(0)')
        for ks in range(8):
            k.lines.append('    ds_read_b64_tr_b16 %s, v252 offset:%d' % (a(4 * ks, 2), ks * 1024))
            k.lines.append('    ds_read_b64_tr_b16 %s, v253 offset:%d' % (a(4 * ks + 2, 2), ks * 1024))
        k('v_lshlrev_b32 v251, 4, v1')
        k('v_add_u32 v252, 0x1000, v251')
        for ks in range(8):
            k('s_waitcnt lgkmcnt(%d)' % (14 - 2 * ks))
            k.lines.append('    global_store_dwordx4 v%d, %s, s[70:71] offset:%d%s' % (251 + (ks >> 2), a(4 * ks, 4), (ks & 3) * 1024, SC))
        k('L_pk_no:')
    hi = {r: (r - 1, Z1) for r in range(1, 8)}
    hi.update({8: (0, Z256), 9: (2, Z256), 10: (4, Z256), 11: (6, Z256), 12: (8, Z256), 13: (10, Z256), 14: (12, Z256), 15: (13, Z256),
               16: (14, Z256), 17: (16, Z256), 18: (17, Z256), 19: (18, Z256), 20: (19, Z256)})
    order = [0, 1, 8, 2, 12, 3, 14, 4, 16, 5, 17, 6, 18, 7, 19, 9, 20, 10, 11, 13, 15]
    F1_AT = int(os.environ.get('F1_AT', '14'))
    PK_AT = int(os.environ.get('PK_AT', '20'))
    for i, r in enumerate(order):
        nxt = order[i + 1] if i + 1 < len(order) else None
        if nxt is not None: cmul1(k, E0 + 2 * nxt, E0 + 2 * hi[nxt][0], hi[nxt][1])
        split_a(E0 + 2 * r, i)
        if nxt is not None: cmul2(k, E0 + 2 * nxt, E0 + 2 * hi[nxt][0], hi[nxt][1])
        split_b(E0 + 2 * r, i, r)
        if i == F1_AT: f1_signal()
    AH, AL = 160, 192
    for ks in range(8):
        k.ds('ds_read_b128 %s, v%d' % (v(AH + 4 * ks, 4), 32 + ks))
        if KSPLIT: k.ds('ds_read_b128 %s, v%d offset:8192' % (v(AL + 4 * ks, 4), 32 + ks))
    L0 = 96
    k('v_mov_b32 v%d, 1.0' % L0)
    k('v_mov_b32 v%d, 0' % (L0 + 1))
    lo_order = []
    for m in range(16): lo_order += [m, 16 + m]
    def lreg(m): return L0 + 2 * m if m < 16 else 128 + 2 * (m & 1)
    def lsrc(m): return (lreg(m - 1), Z8) if m < 16 else (lreg(m - 16), Z128)
    for i, m in enumerate(lo_order):
        nxt = lo_order[i + 1] if i + 1 < len(lo_order) else None
        if nxt is not None: cmul1(k, lreg(nxt), *lsrc(nxt))
        split_a(lreg(m), i)
        if nxt is not None: cmul2(k, lreg(nxt), *lsrc(nxt))
        split_b(lreg(m), i, m)
        if i + 21 == F1_AT: f1_signal()
        if i == PK_AT: pack_job()
    ACC = 224
    bt = []
    k.wait_all(vm=False, ds=True)
    for ks in range(8):
        t = k.ds('ds_read_b128 %s, v%d' % (v(96 + 8 * ks, 4), 32 + ks))
        if KSPLIT: t = k.ds('ds_read_b128 %s, v%d offset:8192' % (v(100 + 8 * ks, 4), 32 + ks))
        bt.append(t)
    fill = []
    F = lambda x: fill.append(x)
    F('v_lshrrev_b32 v7, 2, v1'); F('v_and_b32 v8, 3, v1'); F('v_lshlrev_b32 v16, 14, v7'); F('v_lshl_add_u32 v16, v8, 4, v16')
    for i in range(1, 4): F('v_add_u32 v%d, 0x%x, v16' % (16 + i, i * 262144))
    F('s_lshl_b32 s60, s50, 20\ns_lshl_b32 s61, s2, 6\ns_add_u32 s60, s60, s61\ns_add_u32 s62, s48, s60\ns_addc_u32 s63, s49, 0')
    assert WS_XNX == 0
    F('v_lshrrev_b32 v9, 1, v8'); F('v_and_b32 v10, 1, v8'); F('v_lshlrev_b32 v21, 4, v9')
    F('s_lshl_b32 s60, s2, 5\ns_add_u32 s60, s60, 0x%x\ns_add_u32 s64, s48, s60\ns_addc_u32 s65, s49, 0' % WS_MODP)
    F('v_add_u32 v22, 0x2000, v21')
    F('s_lshl_b32 s60, s52, 4\ns_add_u32 s60, s60, 0x4000'); F('v_mov_b32 v23, s60'); F('v_add_u32 v24, 0x2000, v23')
    F('s_or_b32 s66, s55, 0x4000'); F('v_lshl_add_u32 v3, v1, 4, s66')
    F('s_mul_i32 s55, s52, %d\ns_add_u32 s55, s55, %d' % (CHS, L_CV)); F('v_lshl_add_u32 v2, v59, 5, s55')
    F('s_lshl_b32 s60, s3, 10\ns_add_u32 s60, s60, 0x%x' % O_F1); F('v_lshl_add_u32 v25, v1, 4, s60')
    for ks in range(8):
        k.wait(ds=bt[ks])
        c = '0' if ks == 0 else v(ACC, 16)
        ms = [(AH + 4 * ks, 96 + 8 * ks)] + ([(AH + 4 * ks, 100 + 8 * ks), (AL + 4 * ks, 96 + 8 * ks)] if KSPLIT else [])
        for x, y in ms:
            k('v_mfma_f32_32x32x16_bf16 %s, %s, %s, %s' % (v(ACC, 16), v(x, 4), v(y, 4), c)); c = v(ACC, 16)
            for _ in range(1 if KSPLIT else 3):
                if fill: k(fill.pop(0))
    while fill: k(fill.pop(0))
    k('s_nop 7\ns_nop 3')
    k('s_bitcmp1_b32 s50, 0')
    k('s_cbranch_scc0 L_kg_a')
    for i in range(3): k.ds('ds_write_b128 v3, %s offset:%d' % (v(ACC + 4 * i, 4), 1024 * i))
    k.wait_all(vm=False)
    k('L_kg_a:')
    k.wait_all(vm=True, ds=False)
    k.barrier()
    signal(k, 'fp', O_FP, 250, 251)
    k('s_bitcmp1_b32 s50, 0')
    k('s_cbranch_scc1 L_kg_b')
    for i in range(3): k.ds('ds_read_b128 %s, v3 offset:%d' % (v(96 + 4 * i, 4), 1024 * i))
    k.wait_all(vm=False)
    for i in range(6): k('v_pk_add_f32 %s, %s, %s' % (v(96 + 2 * i, 2), v(96 + 2 * i, 2), v(ACC + 2 * i, 2)))
    for r in range(12): k.ds('ds_write_b32 v%d, v%d' % (44 + r, 96 + r))
    k.wait_all(vm=False)
    k('L_kg_b:')
    k.stamp(6)
    poll(k, 'f1', ['global_load_dwordx4 v[28:31], v25, s[14:15]' + SC], chk4(28))
    k.stamp(7)
    k.txn = [k.vm('global_load_dwordx4 %s, v%d, s[62:63]%s' % (v(32 + 4 * i, 4), 16 + i, LD_SC)) for i in range(4)]
    for i in range(4): k.tm = k.vm('global_load_dwordx4 %s, v%d, s[64:65]%s' % (v(136 + 4 * i, 4), 21 + i, LD_SC))
    k('v_lshlrev_b32 v26, 5, v0')
    k('v_lshlrev_b32 v27, 6, v0')
    k('v_add_u32 v26, 0x%x, v26' % (WS_MODP + 3 * 8192))
    k('v_add_u32 v27, 0x%x, v27' % WS_MODQ)
    k('v_add_u32 v28, 0x4000, v27')
    for i in range(2): k.vm('global_load_dwordx4 %s, v26, s[48:49] offset:%d%s' % (v(208 + 4 * i, 4), 16 * i, LD_SC))
    for i in range(4): k.vm('global_load_dwordx4 %s, v27, s[48:49] offset:%d%s' % (v(216 + 4 * i, 4), 16 * i, LD_SC))
    for i in range(4): k.tbl = k.vm('global_load_dwordx4 %s, v28, s[48:49] offset:%d%s' % (v(232 + 4 * i, 4), 16 * i, LD_SC))
    k('v_cmp_eq_u32 vcc, 127, v59')
    G = 96
    gt = [k.ds('ds_read_b32 v%d, v%d' % (G + i, 60 + i)) for i in range(17)]
    k.wait(ds=gt[-1])
    k('v_cndmask_b32 v%d, v%d, v12, vcc' % (G + 16, G + 16))
    for i in range(8): k('v_cvt_pk_bf16_f32 v%d, v%d, v%d' % (120 + i, G + 2 * i, G + 2 * i + 1))
    for i in range(8): k('v_cvt_pk_bf16_f32 v%d, v%d, v%d' % (128 + i, G + 2 * i + 1, G + 2 * i + 2))
    k.ds('ds_write_b128 v2, v[120:123]')
    k.ds('ds_write_b128 v2, v[124:127] offset:16')
    k.ds('ds_write_b128 v2, v[128:131] offset:%d' % O_K1)
    k.ds('ds_write_b128 v2, v[132:135] offset:%d' % (O_K1 + 16))
    conv_phase(k)
    mlp_phase(k)
    k.end()
    k('L_end:')
    k('s_endpgm')
    return k, 'grid=(256,1,1) block=(256,1,1) lds=%d' % LDS_TOTAL, (512, 84, 256)

def conv_phase(k):
    k('s_and_b32 s54, s50, 1')
    k('v_lshlrev_b32 v2, 4, v1')
    k('v_and_b32 v5, 15, v1')
    k('v_lshrrev_b32 v6, 4, v1')
    k('s_mul_i32 s59, s54, %d' % O_K1)
    k('s_add_u32 s59, s59, s55')
    k('v_lshl_add_u32 v14, v5, 2, s59')
    k.ds('ds_write_b32 v14, v12 offset:4096')
    k('v_lshl_add_u32 v14, v1, 3, s55')
    k.ds('ds_write_b64 v14, v[12:13] offset:%d' % O_H)
    k('v_mul_u32_u24 v20, %d, v9' % CHS)
    k('v_mul_u32_u24 v21, %d, v10' % (O_X - O_H - 512))
    k('v_add_u32 v20, v20, v21')
    k('v_lshl_add_u32 v20, v7, 4, v20')
    k('s_lshl_b32 s60, s50, 10')
    k('s_add_u32 s60, s60, %d' % (L_CV + O_H + 512))
    k('v_add_u32 v20, s60, v20')
    k('s_lshl_b32 s76, s54, 11')
    k('s_add_u32 s76, s76, s55')
    k('v_lshlrev_b32 v15, 5, v5')
    k('v_lshl_add_u32 v15, v6, 4, v15')
    k('s_lshl_b32 s77, s54, 8')
    k('s_sub_u32 s77, s55, s77')
    k('s_add_u32 s78, s77, %d' % (O_H + 512 - 32 - 192))
    k('v_add_u32 v192, s78, v15')
    k('v_lshlrev_b32 v15, 5, v5')
    k('v_lshl_add_u32 v15, v6, 3, v15')
    k('v_add_u32 v193, s76, v15')
    k('v_lshlrev_b32 v15, 3, v6')
    k('v_sub_u32 v15, v15, v5')
    k('v_add_u32 v15, 15, v15')
    k('v_and_b32 v194, 1, v15')
    k('v_mul_u32_u24 v194, %d, v194' % O_K1)
    k('v_and_b32 v15, -2, v15')
    k('v_lshl_add_u32 v15, v15, 1, v194')
    k('s_add_u32 s78, s77, %d' % (2 * (2016 - 256 - 96 - 1536)))
    k('v_add_u32 v197, s78, v15')
    for ip in range(3): k('v_add_u32 v%d, %d, v197' % (194 + ip, 1024 * (3 - ip)))
    k('s_lshl_b32 s77, s54, 12')
    k('s_add_u32 s78, s77, s55')
    k('v_add_u32 v198, s78, v2')
    k('s_xor_b32 s77, s77, 0x1000')
    k('s_add_u32 s78, s77, s55')
    k('v_add_u32 v199, s78, v2')
    k('v_and_b32 v15, 1, v6')
    k('v_lshlrev_b32 v15, 3, v15')
    k('v_lshrrev_b32 v200, 1, v5')
    k('v_add_u32 v15, v15, v200')
    k('v_lshlrev_b32 v200, 15, v15')
    k('v_and_b32 v15, 1, v5')
    k('v_lshl_add_u32 v200, v15, 5, v200')
    k('v_lshrrev_b32 v15, 1, v6')
    k('v_lshl_add_u32 v200, v15, 4, v200')
    k('v_add_u32 v201, 0x80000, v200')
    k('s_lshl_b32 s60, s54, 20')
    k('s_lshl_b32 s61, s53, 6')
    k('s_add_u32 s60, s60, s61')
    ws_ptr(k, 66, WS_X1T, 60)
    ws_ptr(k, 68, WS_X1S, 60)
    k('s_lshr_b32 s5, s3, 1')
    k('s_lshl_b32 s5, s5, 2')
    k('s_and_b32 s60, s4, 3')
    k('s_add_u32 s5, s5, s60')
    k('s_and_b32 s6, s3, 1')
    k('s_mul_i32 s6, s6, 7')
    k('s_lshr_b32 s60, s4, 2')
    k('s_add_u32 s7, s6, s60')
    k('s_lshl_b32 s6, s7, 2')
    k('s_add_u32 s6, s6, s50')
    k('s_min_u32 s60, s6, 55')
    k('s_lshl_b32 s60, s60, 15')
    ws_ptr(k, 26, WS_W1P, 60)
    k('s_lshl_b32 s60, s3, 10')
    k('v_add_u32 v202, s60, v2')
    k('v_add_u32 v203, 0x%x, v202' % O_FP)
    k('s_lshl_b32 s77, s30, 16')
    k('s_and_b32 s74, s30, 0xffff0000')
    k('s_cmp_eq_u32 s52, 0')
    k('s_cselect_b32 s74, s77, s74')
    k('v_cmp_eq_u32 vcc, 1, v10')
    k.stamp(8)
    k.wait(vm=k.tm)
    for i in range(4):
        b = 136 + 4 * i
        k('v_add_f32 v%d, v%d, v%d' % (b, b, b + 1))
        k('v_add_f32 v%d, v%d, v%d' % (b + 2, b + 2, b + 3))
        k('v_add_f32 v%d, v%d, v%d' % (b, b, b + 2))
        k('v_cvt_pk_bf16_f32 v%d, v%d, v%d' % (b, b, b))
        k('v_and_b32 v%d, s58, v%d' % (b, b))
        if i in (1, 3):
            k('v_add_f32 v%d, 1.0, v%d' % (b, b))
            k('v_cvt_pk_bf16_f32 v%d, v%d, v%d' % (b, b, b))
            k('v_and_b32 v%d, s58, v%d' % (b, b))
    k('v_cndmask_b32 v26, v140, 1.0, vcc')
    k('v_cndmask_b32 v27, v136, 0, vcc')
    k('v_readfirstlane_b32 s75, v144')
    k('v_readfirstlane_b32 s76, v148')
    for i in range(4):
        for j in range(4):
            r = 32 + 4 * i + j
            tt = 48 + 2 * (j & 1)
            k('v_lshlrev_b32 v%d, 16, v%d' % (tt, r))
            k('v_and_b32 v%d, s58, v%d' % (tt + 1, r))
            k('v_pk_fma_f32 %s, %s, v[26:27], v[26:27] op_sel:[0,0,1] op_sel_hi:[1,0,1]' % (v(tt, 2), v(tt, 2)))
            k('v_cvt_pk_bf16_f32 v%d, v%d, v%d' % (r, tt, tt + 1))
        k.ds('ds_write_b128 v20, %s offset:%d' % (v(32 + 4 * i, 4), 256 * i))
    k.wait_all(vm=False)
    poll(k, 'fp', ['global_load_dwordx4 v[204:207], v203, s[14:15]' + SC], chk4(204))
    k.stamp(9)
    ACC = 32
    def areg(st, p): return 64 + 64 * st + 4 * p
    def breg(st, q): return 96 + 64 * st + 4 * q
    def loads(cc):
        st = cc & 1
        L = []
        for p in range(8):
            off = 128 * (1 - (p & 1)) + 16 * (3 - cc)
            L.append('ds_read2_b32 %s, v%d offset0:%d offset1:%d' % (v(areg(st, p), 2), 194 + (p >> 1), off, off + 1))
            L.append('ds_read2_b32 %s, v%d offset0:%d offset1:%d' % (v(areg(st, p) + 2, 2), 194 + (p >> 1), off + 2, off + 3))
            L.append('ds_read_b128 %s, v192 offset:%d' % (v(breg(st, p), 4), 512 * p + 64 * (3 - cc)))
        return L
    pairs = []
    for lv in range(8):
        for p in range(lv + 1):
            for q in range(lv + 1):
                if max(p, q) == lv and p + q <= 7: pairs.append((p, q))
    toks = [k.ds(x) for x in loads(0)]
    seen = set()
    k.tw1 = []
    for cc in range(4):
        st = cc & 1
        if cc < 3: nxt = loads(cc + 1)
        else:
            nxt = ['ds_read_b64 %s, v193 offset:%d' % (v(16 + 2 * j, 2), O_H + 512 + 512 * j) for j in range(4)]
            nxt += ['ds_read_b64 %s, v193 offset:%d' % (v(24 + 2 * j, 2), O_X + 512 * j) for j in range(4)]
        if cc > 0: k.wait_all(vm=False)
        for n, (p, q) in enumerate(pairs):
            if cc == 0: k.wait(ds=toks[3 * max(p, q) + 2])
            nt = p + q
            c = v(ACC + 4 * nt, 4) if nt in seen else '0'
            seen.add(nt)
            k('v_mfma_f32_16x16x32_bf16 %s, %s, %s, %s' % (v(ACC + 4 * nt, 4), v(areg(st, p), 4), v(breg(st, q), 4), c))
            start = 12 if cc == 0 else 2
            if n >= start and nxt: k.ds(nxt.pop(0))
            if n % 4 == 1 and len(k.tw1) < 32:
                w1n = len(k.tw1)
                k.tw1.append(k.vm('global_load_dwordx4 %s, v2, s[26:27] offset:%d%s' % (a(4 * w1n, 4), (w1n & 3) * 1024, LD_SC)))
                if (w1n & 3) == 3 and w1n < 31: k('s_add_u32 s26, s26, 4096\ns_addc_u32 s27, s27, 0')
        assert not nxt
    k('s_nop 7')
    k.stamp(10)
    k('s_cmp_eq_u32 s54, 0')
    k('s_cbranch_scc0 L_cv_w1')
    for j in range(4): k.ds('ds_write_b128 v198, %s offset:%d' % (v(ACC + 16 + 4 * j, 4), O_RED + 1024 * j))
    k('s_branch L_cv_j1')
    k('L_cv_w1:')
    k.nds -= 4
    for j in range(4): k.ds('ds_write_b128 v198, %s offset:%d' % (v(ACC + 4 * j, 4), O_RED + 1024 * j))
    for j in range(8): k('v_mov_b64 %s, %s' % (v(64 + 2 * j, 2), v(ACC + 16 + 2 * j, 2)))
    k('s_branch L_cv_j2')
    k('L_cv_j1:')
    for j in range(8): k('v_mov_b64 %s, %s' % (v(64 + 2 * j, 2), v(ACC + 2 * j, 2)))
    k('L_cv_j2:')
    k.wait_all(vm=False)
    k.barrier()
    rt_ = [k.ds('ds_read_b128 %s, v199 offset:%d' % (v(80 + 4 * j, 4), O_RED + 1024 * j)) for j in range(4)]
    for i in range(8):
        k('v_lshlrev_b32 v%d, 16, v%d' % (96 + 2 * i, 16 + i))
        k('v_and_b32 v%d, s58, v%d' % (97 + 2 * i, 16 + i))
        k('v_pk_fma_f32 %s, %s, s[74:75], %s op_sel_hi:[1,0,1]' % (v(64 + 2 * i, 2), v(96 + 2 * i, 2), v(64 + 2 * i, 2)))
        k('v_lshlrev_b32 v%d, 16, v%d' % (112 + 2 * i, 24 + i))
        k('v_and_b32 v%d, s58, v%d' % (113 + 2 * i, 24 + i))
    for jj in range(2):
        for j in (2 * jj, 2 * jj + 1):
            k.wait(ds=rt_[j])
            for i in (2 * j, 2 * j + 1):
                k('v_pk_add_f32 %s, %s, %s' % (v(64 + 2 * i, 2), v(64 + 2 * i, 2), v(80 + 2 * i, 2)))
                k('v_pk_fma_f32 %s, %s, s[74:75], %s op_sel:[0,1,0] op_sel_hi:[1,1,1]' % (v(64 + 2 * i, 2), v(64 + 2 * i, 2), v(112 + 2 * i, 2)))
                k('v_pk_mul_f32 %s, %s, s[76:77] op_sel_hi:[1,0]' % (v(96 + 2 * i, 2), v(64 + 2 * i, 2)))
                k('v_cvt_pk_bf16_f32 v%d, v%d, v%d' % (136 + i, 96 + 2 * i, 97 + 2 * i))
                k('v_cvt_pk_bf16_f32 v%d, v%d, v%d' % (128 + i, 64 + 2 * i, 65 + 2 * i))
        for b, sp in ((136 + 4 * jj, 68), (128 + 4 * jj, 66)):
            k('v_permlane16_swap_b32 v%d, v%d' % (b, b + 2))
            k('v_permlane16_swap_b32 v%d, v%d' % (b + 1, b + 3))
            k.tx1 = k.vm('global_store_dwordx4 v%d, %s, s[%d:%d]%s' % (200 + jj, v(b, 4), sp, sp + 1, SC))

def w2reg(ks): return (a(128 + 8 * ks, 4), a(132 + 8 * ks, 4)) if ks < 16 else (v(160 + 8 * (ks - 16), 4), v(164 + 8 * (ks - 16), 4))
def w2_ops(k, ks):
    ops = []
    off = (ks & 3) * 1024
    ops.append(lambda: k.vm('global_load_dwordx4 %s, v112, s[76:77] offset:%d%s' % (w2reg(ks)[0], off, LD_SC)))
    ops.append(lambda: k.vm('global_load_dwordx4 %s, v113, s[76:77] offset:%d%s' % (w2reg(ks)[1], off, LD_SC)))
    if (ks & 3) == 3 and ks < 27: ops.append(lambda: k('s_add_u32 s76, s76, 4096\ns_addc_u32 s77, s77, 0'))
    return ops

def mlp_phase(k):
    k('s_lshl_b32 s8, s3, 2')
    k('s_lshr_b32 s9, s4, 3')
    k('s_add_u32 s8, s8, s9')
    k('s_and_b32 s9, s4, 7')
    k('s_lshr_b32 s10, s50, 1')
    k('s_and_b32 s11, s50, 1')
    k('s_mul_i32 s60, s10, 114688')
    k('v_add_u32 v112, s60, v2')
    k('s_sub_u32 s60, 114688, s60')
    k('v_add_u32 v113, s60, v2')
    k('s_mul_i32 s51, s50, %d' % (28 * 1024))
    k('s_mul_i32 s60, s9, %d' % (2 * 114688))
    k('s_add_u32 s60, s60, s51')
    ws_ptr(k, 76, WS_W2P, 60)
    k('s_lshl_b32 s60, s5, 17')
    k('s_lshl_b32 s56, s50, 15')
    k('s_add_u32 s60, s60, s56')
    ws_ptr(k, 58, WS_X1S, 60)
    tr_addr32(k, 3, 1, 8, 9, 6, 8)
    k('v_and_b32 v16, 31, v1')
    k('v_lshlrev_b32 v16, 3, v16')
    for j in range(4):
        k('s_add_u32 s62, s50, %d' % j)
        k('s_and_b32 s62, s62, 3')
        k('s_lshl_b32 s63, s62, 15')
        k('v_add_u32 v%d, s63, v3' % (4 + j))
        k('s_mul_i32 s63, s62, 114688')
        k('v_add_u32 v%d, s63, v2' % (8 + j))
        k('s_lshl_b32 s63, s62, 8')
        k('v_add_u32 v%d, s63, v16' % (12 + j))
    k('s_mul_i32 s62, s5, %d' % (4 * 114688))
    k('s_lshl_b32 s63, s6, 11')
    k('s_add_u32 s62, s62, s63')
    ws_ptr(k, 68, WS_HID, 62)
    k('s_lshl_b32 s62, s5, 10')
    add_ptr(k, 70, 14, 62)
    k('v_bfe_u32 v16, v1, 4, 1')
    k('v_xor_b32 v16, 1, v16')
    k('v_lshlrev_b32 v16, 10, v16')
    k('v_lshrrev_b32 v17, 5, v1')
    k('v_lshl_add_u32 v16, v17, 4, v16')
    k('v_add_u32 v16, %d, v16' % L_GS)
    k('s_lshl_b32 s60, s3, 10')
    k('s_add_u32 s60, s60, 0x%x' % O_F2)
    k('v_add_u32 v124, s60, v2')
    k('s_mov_b32 s60, 0xffff0000')
    k.wait(vm=k.tbl)
    for b in (208, 212):
        k('v_add_f32 v%d, v%d, v%d' % (b, b, b + 1))
        k('v_add_f32 v%d, v%d, v%d' % (b + 2, b + 2, b + 3))
        k('v_add_f32 v%d, v%d, v%d' % (b, b, b + 2))
    for b in (216, 224, 232, 240):
        k('v_pk_add_f32 %s, %s, %s' % (v(b, 2), v(b, 2), v(b + 2, 2)))
        k('v_pk_add_f32 %s, %s, %s' % (v(b + 4, 2), v(b + 4, 2), v(b + 6, 2)))
        k('v_pk_add_f32 %s, %s, %s' % (v(b, 2), v(b, 2), v(b + 4, 2)))
        k('v_add_f32 v%d, v%d, v%d' % (b, b, b + 1))
    k('v_cvt_pk_bf16_f32 v208, v208, v212')
    k('v_cvt_pk_bf16_f32 v216, v216, v224')
    k('v_cvt_pk_bf16_f32 v232, v232, v240')
    k('v_lshlrev_b32 v210, 16, v208')
    k('v_and_b32 v211, s60, v208')
    k('v_add_f32 v210, 1.0, v210')
    k('v_add_f32 v211, 1.0, v211')
    k('v_cvt_pk_bf16_f32 v208, v210, v211')
    k('v_lshlrev_b32 v234, 16, v232')
    k('v_and_b32 v235, s60, v232')
    k('v_mul_f32 v234, %s, v234' % f32(-math.log(2.0)))
    k('v_mul_f32 v235, %s, v235' % f32(-math.log(2.0)))
    k('v_lshlrev_b32 v17, 2, v0')
    k('v_add_u32 v17, %d, v17' % L_GS)
    k('v_lshlrev_b32 v18, 3, v0')
    k('v_add_u32 v18, %d, v18' % (L_GS + 2048))
    k.ds('ds_write2st64_b32 v17, v216, v208 offset0:0 offset1:4')
    k.ds('ds_write_b64 v18, v[234:235]')
    k.wait(vm=k.tx1)
    k.wait_all(vm=False)
    k.barrier()
    signal(k, 'f2', O_F2, 122, 123)
    k.stamp(11)
    W2E = int(os.environ.get('W2E', '10'))
    w2q = []
    for ks in range(W2E): w2q += w2_ops(k, ks)
    gt = []
    for s_ in range(32):
        gt.append(k.ds('ds_read_b128 %s, v16 offset:%d' % (v(32 + 4 * (s_ % 12), 4), 32 * s_)) if s_ < 12 else None)
    for s_ in range(32):
        k.wait(ds=gt[s_], vm=k.tw1[s_])
        k('v_mfma_f32_32x32x16_bf16 v[128:143], %s, %s, %s' % (a(4 * s_, 4), v(32 + 4 * (s_ % 12), 4), '0' if s_ == 0 else 'v[128:143]'))
        if w2q: w2q.pop(0)()
        if s_ >= 1 and s_ + 11 < 32: gt[s_ + 11] = k.ds('ds_read_b128 %s, v16 offset:%d' % (v(32 + 4 * ((s_ + 11) % 12), 4), 32 * (s_ + 11)))
    while w2q: w2q.pop(0)()
    for p in range(8): k('v_mov_b64 %s, %s' % (v(144 + 2 * p, 2), v(128 + 2 * p, 2)))
    for r in range(16): k('v_permlane16_swap_b32 v%d, v%d' % (128 + r, 144 + r))
    k('s_mov_b32 s60, %s' % f32(-LOG2E))
    for p in range(8): k('v_pk_mul_f32 %s, %s, s[60:61] op_sel_hi:[1,0]' % (v(144 + 2 * p, 2), v(144 + 2 * p, 2)))
    k.stamp(3)
    poll(k, 'f2', ['global_load_dwordx4 v[16:19], v124, s[14:15]' + SC], chk4(16))
    k.stamp(12)
    k.reset_counters()
    k('s_cmp_ge_u32 s4, 28')
    k('s_cbranch_scc1 L_stats')
    ctok = {}
    def chunk_ops(c):
        ops = [lambda: k('s_add_u32 m0, s56, %d' % (c * 4096))]
        def ld(i): ctok[c] = k.vm('global_load_lds_dwordx4 v2, s[58:59] offset:%d%s' % (i * 1024, LD_SC))
        for i in range(4): ops.append(lambda i=i: ld(i))
        if c < 7: ops.append(lambda: k('s_add_u32 s58, s58, 4096\ns_addc_u32 s59, s59, 0'))
        return ops
    XPRE = int(os.environ.get('XPRE', '5'))
    for c in range(XPRE):
        for op in chunk_ops(c): op()
    ACC = 16
    def breg(s_, j): return 80 + 16 * (s_ & 1) + 4 * j
    rtok = {}
    def rd(s_, j):
        k.ds('ds_read_b64_tr_b16 %s, v%d offset:%d' % (v(breg(s_, j), 2), 4 + j, s_ * 1024))
        rtok[s_, j] = k.ds('ds_read_b64_tr_b16 %s, v%d offset:%d' % (v(breg(s_, j) + 2, 2), 4 + j, s_ * 1024 + 256))
    k.wait(vm=ctok[0]); k.barrier()
    for j in range(4): rd(0, j)
    pend = []
    for c in range(XPRE, 8): pend += chunk_ops(c)
    W2L = int(os.environ.get('W2L', '10'))
    w2q = []
    for ks in range(W2E, 28): w2q += w2_ops(k, ks)
    nloop = sum(len(w2_ops(k, ks)) for ks in range(W2E, W2E + W2L))
    W2D = int(os.environ.get('W2D', '3'))
    gap = 0
    for s_ in range(32):
        c = s_ // 4
        if s_ == 24:
            def sl(j): ctok['st'] = k.vm('global_load_dwordx2 %s, v%d, s[70:71]%s' % (v(114 + 2 * j, 2), 12 + j, SC))
            for j in range(4): pend.append(lambda j=j: sl(j))
        if s_ % 4 == 3 and s_ < 31:
            k.wait(vm=ctok[c + 1]); k.barrier()
        for j in range(4):
            k.wait(ds=rtok[s_, j])
            k('v_mfma_f32_32x32x16_bf16 %s, %s, %s, %s' % (v(ACC + 16 * j, 16), a(4 * s_, 4), v(breg(s_, j), 4), '0' if s_ == 0 else v(ACC + 16 * j, 16)))
            if s_ < 31: rd(s_ + 1, j)
            if pend: pend.pop(0)()
            elif nloop > 0 and gap % W2D == 0:
                w2q.pop(0)(); nloop -= 1
            gap += 1
    assert not pend
    k.stamp(13)
    k.wait(vm=ctok['st'])
    k('s_mov_b32 s62, 0')
    k('L_chk:')
    k('v_min_u32 v80, v115, v117')
    k('v_min_u32 v81, v119, v121')
    k('v_min_u32 v80, v80, v81')
    k('v_cmp_eq_u32 vcc, 0, v80')
    k('s_nop 0')
    k('s_cbranch_vccz L_ok')
    k('s_add_u32 s62, s62, 1')
    k('s_cmp_gt_u32 s62, 0x%x' % TMO)
    k('s_cbranch_scc1 L_ok')
    k('s_sleep 2')
    for j in range(4): k.lines.append('    global_load_dwordx2 %s, v%d, s[70:71]%s' % (v(114 + 2 * j, 2), 12 + j, SC))
    k('s_waitcnt vmcnt(0)')
    k('s_branch L_chk')
    k('L_ok:')
    k('s_nop 7')
    def w2tick():
        if w2q: w2q.pop(0)()
    for j in range(4):
        b = 114 + 2 * j
        A_ = ACC + 16 * j
        for p in range(8):
            x = v(A_ + 2 * p, 2)
            k('v_pk_fma_f32 %s, %s, %s, %s op_sel_hi:[1,0,1] neg_lo:[0,1,0] neg_hi:[0,1,0]' % (x, v(128 + 2 * p, 2), v(b, 2), x))
        if j < 3: w2tick()
        for p in range(8):
            x = v(A_ + 2 * p, 2)
            k('v_pk_fma_f32 %s, %s, %s, %s op_sel:[1,0,0] op_sel_hi:[1,1,1]' % (x, v(b, 2), x, v(144 + 2 * p, 2)))
        if j < 3: w2tick()
        for r in range(16):
            k('v_exp_f32 v%d, v%d' % (80 + r, A_ + r))
            if r % 6 == 5 and j < 3: w2tick()
        for p in range(8): k('v_pk_add_f32 %s, %s, 1.0 op_sel_hi:[1,0]' % (v(80 + 2 * p, 2), v(80 + 2 * p, 2)))
        if j < 3: w2tick()
        for r in range(16):
            k('v_rcp_f32 v%d, v%d' % (80 + r, 80 + r))
            if r % 6 == 5 and j < 3: w2tick()
        for p in range(8): k('v_pk_mul_f32 %s, %s, %s' % (v(A_ + 2 * p, 2), v(A_ + 2 * p, 2), v(80 + 2 * p, 2)))
        if j < 3: w2tick()
        O = 96 + 8 * (j & 1)
        for p in range(8): k('v_cvt_pk_bf16_f32 v%d, v%d, v%d' % (O + p, A_ + 2 * p, A_ + 2 * p + 1))
        if j < 3: w2tick()
        k.vm('global_store_dwordx4 v%d, %s, s[68:69]%s' % (8 + j, v(O, 4), SC))
        lst = k.vm('global_store_dwordx4 v%d, %s, s[68:69] offset:1024%s' % (8 + j, v(O + 4, 4), SC))
    while w2q: w2q.pop(0)()
    phaseb_setup(k)
    k('s_lshl_b32 s60, s5, 6')
    k('s_lshl_b32 s61, s7, 2')
    k('s_add_u32 s60, s60, s61')
    k.wait(vm=lst)
    k.barrier()
    signal(k, 'f3', O_F3, 4, 5, nrep=1, sidx=60)
    resid_loads(k)
    k('s_branch L_join')
    k('L_stats:')
    k.reset_counters()
    k('s_sub_u32 s51, s4, 28')
    k('s_lshl_b32 s51, s51, 1')
    k('s_lshl_b32 s52, s3, 3')
    k('s_add_u32 s51, s51, s52')
    k('s_lshl_b32 s52, s51, 15')
    k('s_lshl_b32 s53, s50, 14')
    k('s_add_u32 s52, s52, s53')
    ws_ptr(k, 58, WS_X1T, 52)
    xt = []
    for i in range(16):
        xt.append(k.vm('global_load_dwordx4 %s, v2, s[58:59] offset:%d%s' % (v(128 + 4 * i, 4), (i & 3) * 1024, LD_SC)))
        if (i & 3) == 3 and i < 15: k('s_add_u32 s58, s58, 4096\ns_addc_u32 s59, s59, 0')
    k('s_mov_b32 s62, 0xffff0000')
    for r in range(16): k('v_mov_b32 v%d, 0' % (16 + r))
    for i in range(16):
        k.wait(vm=xt[i])
        for j in range(4):
            r = 128 + 4 * i + j
            tt = 32 + 2 * (j & 1)
            k('v_lshlrev_b32 v%d, 16, v%d' % (tt, r))
            k('v_and_b32 v%d, s62, v%d' % (tt + 1, r))
            k('v_pk_add_f32 %s, %s, %s' % (v(16 + 2 * j, 2), v(16 + 2 * j, 2), v(tt, 2)))
            k('v_pk_fma_f32 %s, %s, %s, %s' % (v(24 + 2 * j, 2), v(tt, 2), v(tt, 2), v(24 + 2 * j, 2)))
    for pat in ('row_ror:4', 'row_ror:8'):
        for r in range(16): k('v_add_f32_dpp v%d, v%d, v%d %s row_mask:0xf bank_mask:0xf' % (16 + r, 16 + r, 16 + r, pat))
    k('v_lshlrev_b32 v3, 6, v0')
    for i in range(4): k.ds('ds_write_b128 v3, %s offset:%d' % (v(16 + 4 * i, 4), 16 * i))
    k.wait_all(vm=False)
    k.barrier()
    k('s_cmp_lg_u32 s50, 0')
    k('s_cbranch_scc1 L_st2')
    k('v_lshrrev_b32 v3, 5, v1')
    k('v_lshlrev_b32 v3, 13, v3')
    k('v_bfe_u32 v4, v1, 3, 2')
    k('v_lshl_add_u32 v3, v4, 6, v3')
    k('v_and_b32 v4, 7, v1')
    k('v_lshl_add_u32 v3, v4, 2, v3')
    for q in range(8): t = k.ds('ds_read2_b32 %s, v3 offset0:%d offset1:%d' % (v(16 + 2 * q, 2), 0, 8)); k('v_add_u32 v3, 1024, v3')
    k('s_lshl_b32 s62, s51, 8')
    add_ptr(k, 70, 14, 62)
    k('v_lshlrev_b32 v4, 3, v1')
    k.wait(ds=t)
    for q in range(1, 8): k('v_pk_add_f32 v[16:17], v[16:17], %s' % v(16 + 2 * q, 2))
    k('v_mul_f32 v16, %s, v16' % f32(1.0 / 512))
    k('v_mul_f32 v17, %s, v17' % f32(1.0 / 512))
    k('v_fma_f32 v17, -v16, v16, v17')
    k('v_max_f32 v17, 0, v17')
    k('v_add_f32 v17, %s, v17' % f32(1e-5))
    k('v_rsq_f32 v17, v17')
    k('v_mul_f32 v17, %s, v17' % f32(-LOG2E))
    k.vm('global_store_dwordx2 v4, v[16:17], s[70:71]' + SC)
    k('L_st2:')
    k.stamp(13)
    for ks in range(W2E, 28):
        for op in w2_ops(k, ks): op()
    phaseb_setup(k)
    resid_loads(k)
    k('L_join:')
    k('s_lshr_b32 s60, s8, 1')
    k('s_lshl_b32 s60, s60, 6')
    k('s_add_u32 s60, s60, 0x%x' % O_F3)
    k('v_min_u32 v6, 13, v1')
    k('v_lshl_add_u32 v6, v6, 2, s60')
    k.stamp(14)
    poll(k, 'f3', ['global_load_dword v7, v6, s[14:15]' + SC], ['v_cmp_ne_u32 vcc, s81, v7'])
    k.stamp(1)
    k.reset_counters()
    NS = 16
    tok = {}
    def issue(s_):
        b = 8 * (s_ % NS)
        off = (s_ & 3) * 1024
        k.vm('global_load_dwordx4 %s, v114, s[78:79] offset:%d%s' % (a(b, 4), off, LD_SC))
        tok[s_] = k.vm('global_load_dwordx4 %s, v115, s[78:79] offset:%d%s' % (a(b + 4, 4), off, LD_SC))
        if (s_ & 3) == 3 and s_ < 27: k('s_add_u32 s78, s78, 4096\ns_addc_u32 s79, s79, 0')
    HP = int(os.environ.get('HP', '10'))
    for s_ in range(HP): issue(s_)
    nxt = HP
    for s_ in range(28):
        k.wait(vm=tok[s_])
        b = 8 * (s_ % NS)
        for j in range(4):
            k('v_mfma_f32_32x32x16_bf16 %s, %s, %s, %s' % (v(ACC + 16 * j, 16), w2reg(s_)[j >> 1], a(b + 4 * (j & 1), 4), '0' if s_ == 0 else v(ACC + 16 * j, 16)))
            if j in (1, 3) and nxt < 28 and nxt - NS <= (s_ if j == 3 else s_ - 1):
                issue(nxt); nxt += 1
    for j in range(1, 4):
        for q in range(4):
            k.ds('ds_write_b128 v%d, %s offset:%d' % (119 + j, v(ACC + 16 * j + 4 * q, 4), (j - 1) * 4096 + q * 1024))
    k.wait_all(vm=False)
    k.barrier()
    rt_ = []
    for j in range(3):
        for q in range(4): t = k.ds('ds_read_b128 %s, v123 offset:%d' % (v(32 + 16 * j + 4 * q, 4), j * 4096 + q * 1024))
        rt_.append(t)
    for j in range(3):
        k.wait(ds=rt_[j])
        for p in range(8): k('v_pk_add_f32 %s, %s, %s' % (v(ACC + 2 * p, 2), v(ACC + 2 * p, 2), v(32 + 16 * j + 2 * p, 2)))
    for p in range(8):
        k('v_pk_fma_f32 %s, %s, %s, %s' % (v(ACC + 2 * p, 2), v(ACC + 2 * p, 2), v(96 + 2 * p, 2), v(80 + 2 * p, 2)))
        k('v_cvt_pk_bf16_f32 v%d, v%d, v%d' % (128 + p, ACC + 2 * p, ACC + 2 * p + 1))
    for qq in range(2):
        b = 128 + 4 * qq
        k('v_permlane32_swap_b32 v%d, v%d' % (b, b + 2))
        k('v_permlane32_swap_b32 v%d, v%d' % (b + 1, b + 3))
        k.vm('global_store_dwordx4 v118, %s, s[24:25] offset:%d' % (v(b, 4), 32 * qq))

def phaseb_setup(k):
    k('s_mul_i32 s60, s11, 114688')
    k('v_add_u32 v114, s60, v2')
    k('s_sub_u32 s60, 114688, s60')
    k('v_add_u32 v115, s60, v2')
    k('s_mul_i32 s61, s50, %d' % (28 * 1024))
    k('s_mul_i32 s60, s8, %d' % (2 * 114688))
    k('s_add_u32 s60, s60, s61')
    ws_ptr(k, 78, WS_HID, 60)
    k('v_lshrrev_b32 v119, 5, v1')
    k('v_and_b32 v118, 31, v1')
    k('v_lshlrev_b32 v116, 8, v119')
    k('v_lshl_add_u32 v116, v118, 1, v116')
    k('v_lshlrev_b32 v117, 4, v119')
    k('v_lshl_add_u32 v118, v118, 10, v117')
    k('s_lshl_b32 s61, s8, 1')
    k('s_add_u32 s61, s61, s11')
    k('s_lshl_b32 s62, s9, 1')
    k('s_add_u32 s62, s62, s10')
    k('s_lshl_b32 s63, s61, 15')
    k('s_lshl_b32 s60, s62, 11')
    k('s_add_u32 s60, s60, s63')
    ws_ptr(k, 20, WS_X1T, 60)
    k('s_lshl_b32 s60, s62, 7')
    k('s_add_u32 s60, s60, %d' % (L_GS + 2048))
    k('v_add_u32 v117, s60, v117')
    k('s_lshl_b32 s60, s62, 6')
    k('s_add_u32 s60, s60, s63')
    add_ptr(k, 24, P_OUT, 60)
    for j in range(1, 4):
        k('s_xor_b32 s60, s50, %d' % j)
        k('s_mul_i32 s60, s60, 12288')
        k('v_add_u32 v%d, s60, v2' % (119 + j))
    k('s_mul_i32 s60, s50, 12288')
    k('v_add_u32 v123, s60, v2')

def resid_loads(k):
    for r in range(16): k('v_mov_b32 v%d, 0' % (80 + r))
    for q in range(4): k.ds('ds_read_b128 %s, v117 offset:%d' % (v(96 + 4 * q, 4), 32 * q))
    for q in range(4):
        for r in range(4): k.vm('global_load_short_d16_hi v%d, v116, s[20:21] offset:%d%s' % (80 + 4 * q + r, (8 * q + r) * 64, LD_SC))

def build_single(path):
    k, launch, (vg_, sg_, ac) = gen_p()
    out = [HEADER.rstrip(), '; @launch ' + launch, '.amdgcn_target "amdgcn-amd-amdhsa--gfx950"', k.text(vg_, sg_, ac), '.text\nL_text_end:\n    s_endpgm']
    print(k.name, k.stats)
    open(path, 'w').write('\n'.join(out) + '\n')

if __name__ == '__main__':
    build_single(sys.argv[1] if len(sys.argv) > 1 else ('diag.s' if DIAG else 'cdna_kernels/%s.s' % NAME))
```

```python
import os
from gen import *
E = lambda n, d: int(os.environ.get(n, str(d)))
WS_XG = 0x000000
WS_MODG = 0x820000
WS_FIN = 0x860000
WS_W1P = 0x1800000
WS_X1S = 0xB00000
WS_SYNC = 0xF00000
O_F2, O_F3 = 0x8000, 0xC000
L_T = 65536
L_CM = 98304; L_SC = 114688
L_STN = 118784; L_STX = 118784 + 8448 + 128
L_CV = 0; CHS = 21120
O_K1 = 4160; O_H = 8320; O_RED = 12928
L_X = 42240
L_W1 = 79872
NW1 = 16
L_SJ = L_W1 + NW1 * 4096
L_GS = L_SJ
LDS_TOTAL = L_SJ + 16384
O_FP = 0x6000
SC = ' sc1'
LD_SC = ' sc1'
TMO = 0x20000
SYNCW = 1
KSPLIT = E('KSPLIT', 1)

def raw(k, s_): k.lines.append('    ' + s_)

def retry_tail(k, name, loads, sleep=0):
    k('s_nop 0')
    k('s_cbranch_vccz L_%s_w' % name)
    k('s_add_u32 s80, s80, 1')
    k('s_cmp_gt_u32 s80, 0x%x' % TMO)
    k('s_cbranch_scc1 L_%s_w' % name)
    if sleep: k('s_sleep %d' % sleep)
    for l in loads: raw(k, l)
    k('s_branch L_%s_p' % name)
    k('L_%s_w:' % name)

def poll(k, name, loads, check):
    k('s_cmp_lg_u32 s50, %d' % SYNCW)
    k('s_cbranch_scc1 L_%s_w' % name)
    k('s_mov_b32 s80, 0')
    for l in loads: raw(k, l)
    k('L_%s_p:' % name)
    k('s_waitcnt vmcnt(0)')
    for c in check: k(c)
    retry_tail(k, name, loads, 1)
    k.barrier()

def signal(k, name, off, va, vd, nrep=8, sidx=None):
    k('s_cmp_lg_u32 s50, %d' % SYNCW)
    k('s_cbranch_scc1 L_%s_s' % name)
    if sidx is None:
        k('s_lshl_b32 s80, s2, 2')
        k('s_add_u32 s80, s80, 0x%x' % off)
    else:
        k('s_add_u32 s80, s%d, 0x%x' % (sidx, off))
    k('v_lshl_add_u32 v%d, v1, 10, s80' % va)
    k('v_mov_b32 v%d, s81' % vd)
    k('s_mov_b64 exec, %d' % ((1 << nrep) - 1))
    raw(k, 'global_store_dword v%d, v%d, s[14:15]%s' % (va, vd, SC))
    k('s_mov_b64 exec, -1')
    k('L_%s_s:' % name)

def chk_tags(regs, t):
    o = ['v_xor_b32 v%d, s81, v%d' % (t, regs[0])]
    for r in regs[1:]:
        o += ['v_xor_b32 v%d, s81, v%d' % (t + 1, r), 'v_or_b32 v%d, v%d, v%d' % (t, t, t + 1)]
    return o + ['v_cmp_ne_u32 vcc, 0, v%d' % t]

def phase0(k):
    load_ptrs(k)
    k('s_getpc_b64 s[82:83]')
    k('L_pf:')
    k('v_lshlrev_b32 v255, 7, v0')
    k('v_min_u32 v255, L_text_end-L_pf-4, v255')
    raw(k, 'global_load_dword v255, v255, s[82:83]')
    k('s_cmp_ge_u32 s2, 256')
    k('s_cbranch_scc1 L_end')
    k('s_memrealtime s[78:79]')
    wave_id(k, 50, 1)
    k('v_and_b32 v1, 63, v0')
    k('s_and_b32 s3, s2, 7')
    k('s_lshr_b32 s4, s2, 3')
    k('s_lshl_b32 s51, s2, 9')
    k('v_lshl_add_u32 v2, v0, 1, s51')
    for i in range(4, 11): k('v_mov_b32 v%d, 0' % i)
    k('s_lshr_b32 s52, s50, 1')
    k('s_lshl_b32 s53, s2, 1')
    k('s_add_u32 s53, s53, s52')
    k('s_lshl_b32 s54, s53, 1')
    k('v_mov_b32 v3, s54')
    k('v_lshrrev_b32 v77, 5, v0')
    k('v_and_b32 v78, 31, v0')
    k('v_lshlrev_b32 v78, 4, v78')
    k('v_lshl_add_u32 v79, v77, 10, v78')
    k('s_lshl_b32 s63, s2, 13')
    k('v_add_u32 v79, s63, v79')
    k.smem_wait()
    k('s_or_b32 s78, s78, 1')
    k('s_or_b32 s79, s2, s50')
    k('s_cmp_eq_u32 s79, 0')
    k('s_cbranch_scc0 L_nn')
    k('v_mov_b32 v250, s78')
    k('s_mov_b64 exec, 1')
    raw(k, 'global_store_dword v4, v250, s[%d:%d]%s' % (P_DBG, P_DBG + 1, SC))
    k('s_mov_b64 exec, -1')
    k('L_nn:')
    k.vm('global_load_short_d16_hi v10, v3, s[%d:%d]' % (P_LDT, P_LDT + 1))
    for i, p in enumerate((P_ARE, P_AIM, P_BRE, P_BIM, P_CRE, P_CIM)):
        tpar = k.vm('global_load_short_d16_hi v%d, v2, s[%d:%d]' % (4 + i, p, p + 1))
    k.vm('global_load_dwordx4 v[240:243], v79, s[%d:%d]' % (P_U, P_U + 1))
    tx = k.vm('global_load_dwordx4 v[244:247], v79, s[%d:%d] offset:512' % (P_U, P_U + 1))
    k('s_and_b32 s5, s4, 3')
    k('s_lshl_b32 s5, s5, 3')
    k('s_add_u32 s5, s5, s3')
    k('s_lshl_b32 s5, s5, 1')
    k('s_bfe_u32 s6, s4, 0x10002')
    k('s_add_u32 s5, s5, s6')
    k('s_lshr_b32 s6, s4, 3')
    k('s_cmp_ge_u32 s5, 48')
    k('s_cselect_b32 s7, 16, 0')
    k('s_add_u32 s7, s7, s5')
    k('s_lshl_b32 s7, s7, 6')
    k('s_lshl_b32 s8, s6, 2')
    k('s_add_u32 s8, s8, s50')
    k('s_mul_i32 s9, s8, %d' % (32 * 6144))
    k('s_add_u32 s7, s7, s9')
    k('v_lshrrev_b32 v250, 2, v1')
    k('v_mul_u32_u24 v254, 6144, v250')
    k('v_and_b32 v251, 3, v1')
    k('v_lshl_add_u32 v254, v251, 4, v254')
    k('s_lshl_b32 s9, s50, 12')
    k('s_add_u32 s9, s9, %d' % L_CM)
    add_ptr(k, 10, P_WMOD, 7)
    k('s_mov_b32 m0, s9')
    k.vm('global_load_lds_dwordx4 v254, s[10:11]')
    k('s_add_u32 s10, s10, %d' % (16 * 6144 - 1024))
    k('s_addc_u32 s11, s11, 0')
    k.vm('global_load_lds_dwordx4 v254, s[10:11] offset:1024')
    k('s_lshl_b32 s8, s8, 6')
    k('s_and_b32 s64, s4, 1')
    k('s_lshl_b32 s64, s64, 3')
    k('s_add_u32 s64, s64, s3')
    k('s_lshl_b32 s64, s64, 1')
    k('s_bfe_u32 s65, s4, 0x10001')
    k('s_add_u32 s64, s64, s65')
    k('s_lshr_b32 s65, s4, 2')
    k('s_cmp_ge_u32 s64, 16')
    k('s_cselect_b32 s66, 64, 48')
    k('s_add_u32 s66, s66, s64')
    k('s_lshl_b32 s66, s66, 6')
    k('s_lshl_b32 s67, s65, 2')
    k('s_add_u32 s67, s67, s50')
    k('s_mul_i32 s68, s67, %d' % (16 * 6144))
    k('s_add_u32 s66, s66, s68')
    add_ptr(k, 10, P_WMOD, 66)
    k('s_add_u32 m0, s9, 2048')
    tcm = k.vm('global_load_lds_dwordx4 v254, s[10:11]')
    k('s_lshl_b32 s67, s67, 5')
    k('s_sub_u32 s67, s67, 64')
    k('v_min_u32 v248, 23, v1')
    k('v_cmp_gt_u32 vcc, 16, v248')
    k('v_mov_b32 v250, s67')
    k('v_mov_b32 v251, s8')
    k('v_cndmask_b32 v250, v250, v251, vcc')
    k('v_lshl_add_u32 v248, v248, 2, v250')
    tc = k.vm('global_load_dword v248, v248, s[%d:%d]' % (P_C, P_C + 1))
    k('s_lshl_b32 s60, s2, 2')
    k('s_load_dword s30, s[%d:%d], s60' % (P_DSK, P_DSK + 1))
    if E('W1T', 0):
        k('s_and_b32 s75, s3, 1')
        k('s_mul_i32 s75, s75, 7')
        k('s_lshr_b32 s76, s4, 2')
        k('s_add_u32 s75, s75, s76')
        k('s_min_u32 s75, s75, 13')
        k('s_lshl_b32 s75, s75, 8')
        k('s_and_b32 s76, s4, 3')
        k('s_mul_i32 s76, s76, %d' % (128 * 3584))
        k('s_add_u32 s75, s75, s76')
        k('v_lshrrev_b32 v237, 1, v0')
        k('v_mul_u32_u24 v237, 3584, v237')
        k('v_and_b32 v238, 1, v0')
        k('v_lshl_add_u32 v237, v238, 7, v237')
        k('v_add_u32 v237, s75, v237')
        k.vm('global_load_dword a200, v237, s[%d:%d]' % (P_W1, P_W1 + 1))
    if E('W2T', 0):
        k('s_min_u32 s75, s2, 111')
        k('s_lshl_b32 s75, s75, 14')
        k('v_and_b32 v238, 127, v0')
        k('v_lshl_add_u32 v238, v238, 7, s75')
        k.vm('global_load_dword a201, v238, s[%d:%d]' % (P_W2, P_W2 + 1))
    k('s_and_b32 s75, s5, 15')
    k('s_lshl_b32 s75, s75, 13')
    k('s_lshr_b32 s76, s5, 4')
    k('s_lshl_b32 s76, s76, 6')
    k('s_add_u32 s75, s75, s76')
    k('s_lshl_b32 s76, s6, 3')
    k('s_add_u32 s75, s75, s76')
    k('s_and_b32 s76, s64, 15')
    k('s_lshl_b32 s76, s76, 13')
    k('s_lshr_b32 s77, s64, 4')
    k('s_lshl_b32 s77, s77, 7')
    k('s_add_u32 s76, s76, s77')
    k('s_lshl_b32 s77, s65, 3')
    k('s_add_u32 s76, s76, s77')
    k('s_add_u32 s76, s76, 256')
    k('s_cmp_eq_u32 s50, 0')
    k('s_cselect_b32 s75, s75, s76')
    ws_ptr(k, 16, WS_MODG, 75)
    k('v_mov_b32 v12, 0\nv_mov_b32 v13, 0\nv_mov_b32 v14, 0\nv_mov_b32 v15, 0')
    ws_ptr(k, 14, WS_SYNC)
    tr_addr32(k, 254, 1, 250, 251, 6, 8)
    k('v_add_u32 v254, s9, v254')
    k('v_and_b32 v40, 31, v1')
    k('v_lshrrev_b32 v41, 5, v1')
    k('v_lshrrev_b32 v253, 1, v40')
    k('v_lshlrev_b32 v253, 9, v253')
    k('v_and_b32 v250, 1, v40')
    k('s_add_u32 s75, s50, 5')
    k('v_lshlrev_b32 v250, s75, v250')
    k('v_add_u32 v253, v253, v250')
    k('v_mul_u32_u24 v11, 1056, v77')
    k('v_add_u32 v11, v11, v78')
    k('v_add_u32 v11, %d, v11' % L_STN)
    k('v_bfe_u32 v56, v1, 2, 3')
    k('v_mul_u32_u24 v236, 1056, v56')
    k('v_and_b32 v57, 3, v1')
    k('v_lshl_add_u32 v236, v57, 3, v236')
    k('v_mul_u32_u24 v57, %d, v41' % (L_STX - L_STN))
    k('v_add_u32 v236, v236, v57')
    k('s_lshl_b32 s75, s50, 8')
    k('s_add_u32 s75, s75, %d' % L_STN)
    k('v_add_u32 v236, s75, v236')
    k('v_and_b32 v57, 15, v1')
    k('v_lshlrev_b32 v235, 6, v57')
    k('v_lshrrev_b32 v57, 4, v1')
    k('v_lshl_add_u32 v235, v57, 4, v235')
    k('v_add_u32 v234, 0x1000, v235')
    k('s_lshl_b32 s75, s2, 15')
    k('s_lshl_b32 s76, s50, 13')
    k('s_add_u32 s75, s75, s76')
    ws_ptr(k, 12, WS_XG, 75)
    k('s_mov_b32 s58, 0xffff0000')
    k('s_mov_b32 s63, 0x3f803f80')
    k('v_lshlrev_b32 v249, 2, v0')
    k('v_add_u32 v249, %d, v249' % L_SC)
    k('v_lshlrev_b32 v233, 4, v41')
    k('s_lshl_b32 s75, s50, 8')
    k('s_add_u32 s75, s75, %d' % L_SC)
    k('v_add_u32 v233, s75, v233')
    k('s_lshl_b32 s75, s50, 10')
    k('v_lshl_add_u32 v252, v1, 2, s75')
    k('v_add_u32 v252, %d, v252' % (L_SC + 1024))
    k('s_lshl_b32 s55, s50, 14')
    k('v_lshl_add_u32 v16, v1, 2, s55')
    for r in range(1, 16): k('v_xor_b32 v%d, %d, v16' % (16 + r, r << 4))
    k('v_and_b32 v42, 15, v1')
    k('v_xor_b32 v42, v42, v41')
    k('v_lshlrev_b32 v42, 4, v42')
    k('v_lshl_add_u32 v42, v40, 8, v42')
    k('v_add_u32 v32, s55, v42')
    for ks in range(1, 8): k('v_xor_b32 v%d, %d, v32' % (32 + ks, ks << 5))
    k('s_mul_i32 s56, s52, 6912')
    k('s_add_u32 s56, s56, %d' % (L_T - 0x3F00 * 4))
    k('v_lshlrev_b32 v42, 3, v40')
    k('v_cvt_f32_u32 v42, v42')
    k('v_cvt_f32_u32 v43, v41')
    c0 = [0, 1, 2, 3, 256, 258, 260, 262]
    c1 = [4, 5, 6, 7, 512, 516, 768, 772]
    for r in range(8):
        k('v_fmamk_f32 v56, v43, %s, v42' % f32(c1[r] - c0[r]))
        if c0[r]: k('v_add_f32 v56, %s, v56' % f32(c0[r]))
        else: k('v_max_f32 v56, 0.5, v56')
        k('v_cvt_pk_bf16_f32 v56, v56, 0')
        k('v_lshl_add_u32 v%d, v56, 2, s56' % (44 + r))
    k('v_cmp_eq_u32 vcc, 32, v1')
    k('v_fmaak_f32 v57, 4.0, v42, %s' % f32(4096.0))
    k('v_mov_b32 v58, %s' % f32(2048.0))
    k('v_cndmask_b32 v58, v57, v58, vcc')
    k('v_cmp_lt_u32 vcc, 31, v1')
    for r in range(8, 12):
        k('v_add_f32 v56, %s, v42' % f32(1024 + 256 * (r - 8)))
        k('v_cndmask_b32 v56, v56, v%d, vcc' % (58 if r == 8 else 57))
        k('v_cvt_pk_bf16_f32 v56, v56, 0')
        k('v_lshl_add_u32 v%d, v56, 2, s56' % (44 + r))
    k('v_and_b32 v59, 127, v0')
    k('v_lshlrev_b32 v56, 4, v59')
    k('v_sub_u32 v56, 2047, v56')
    k('v_cvt_f32_u32 v57, v56')
    for i in range(17):
        if i: k('v_add_f32 v56, %s, v57' % f32(-float(i)))
        else: k('v_mov_b32 v56, v57')
        if i >= 15: k('v_max_f32 v56, 0.5, v56')
        k('v_cvt_pk_bf16_f32 v56, v56, 0')
        k('v_lshl_add_u32 v%d, v56, 2, s56' % (60 + i))
    k('s_mov_b32 s57, 0x07060302')
    k('s_mov_b32 s59, %s' % f32(LOG2E))
    lo_log2e = LOG2E - struct.unpack('<f', struct.pack('<f', LOG2E))[0]
    inv2pi = 1.0 / (2 * math.pi)
    inv2pi_f = struct.unpack('<f', struct.pack('<f', inv2pi))[0]
    k('s_mov_b32 s60, %s' % f32(inv2pi_f))
    k('s_mov_b32 s61, %s' % f32(inv2pi - inv2pi_f))
    k('s_mov_b32 s62, %s' % f32(lo_log2e))
    NL = 'global_load_dword v232, v12, s[%d:%d]%s' % (P_DBG, P_DBG + 1, SC)
    k.smem_wait()
    k.wait(vm=tpar)
    tn = k.vm(NL)
    k.stamp(2)
    k('v_mul_f32 v78, s59, v10')
    k('v_fma_f32 v79, v10, s59, -v78')
    k('v_fma_f32 v79, v10, s62, v79')
    k('v_exp_f32 v78, v78')
    k('v_mul_f32 v79, %s, v79' % f32(math.log(2.0)))
    k('v_fma_f32 v78, v78, v79, v78')
    k('v_cvt_pk_bf16_f32 v78, v78, v78')
    k('v_and_b32 v78, s58, v78')
    k('v_mul_f32 v4, v78, v4')
    k('v_mul_f32 v5, v78, v5')
    k('v_mul_f32 v152, v78, v6')
    k('v_mul_f32 v154, v78, v7')
    E0 = 96
    cmul1(k, E0, 8, 152); cmul2(k, E0, 8, 152)
    k('v_mul_f32 v4, s59, v4')
    Z1, Z256, Z8, Z128 = 80, 84, 152, 156
    def zpow(dst, p, conj, t):
        pf = f32(float(p))
        return ['v_mul_f32 v%d, %s, v4' % (t, pf), 'v_mul_f32 v%d, %s, v5' % (t + 1, pf), 'v_exp_f32 v%d, v%d' % (t, t),
                'v_mul_f32 v%d, s60, v%d' % (t + 2, t + 1), 'v_fma_f32 v%d, v%d, s60, -v%d' % (t + 3, t + 1, t + 2),
                'v_fma_f32 v%d, v%d, s61, v%d' % (t + 3, t + 1, t + 3), 'v_fract_f32 v%d, v%d' % (t + 2, t + 2),
                'v_add_f32 v%d, v%d, v%d' % (t + 2, t + 2, t + 3), 'v_cos_f32 v%d, v%d' % (t + 3, t + 2), 'v_sin_f32 v%d, v%d' % (t + 2, t + 2),
                'v_mul_f32 v%d, v%d, v%d' % (dst, t, t + 3), 'v_mul_f32 v%d, v%d, %sv%d' % (dst + 2, t, '-' if conj else '', t + 2)]
    for p_, q_ in ((zpow(Z1, 1, False, 88), zpow(Z256, 256, False, 92)), (zpow(Z8, 8, True, 88), zpow(Z128, 128, True, 92))):
        for x, y in zip(p_, q_): k(x); k(y)
    T0 = 140
    def split_a(e, i):
        t = T0 + 6 * (i & 1)
        if not KSPLIT:
            k('v_cvt_pk_bf16_f32 v%d, v%d, v%d' % (t + 4, e, e + 1)); return
        k('v_perm_b32 v%d, v%d, v%d, s57' % (t + 4, e + 1, e))
        k('v_and_b32 v%d, s58, v%d' % (t, e))
        k('v_and_b32 v%d, s58, v%d' % (t + 1, e + 1))
    def split_b(e, i, row):
        t = T0 + 6 * (i & 1)
        if not KSPLIT: return k.ds('ds_write_b32 v%d, v%d offset:%d' % (16 + (row & 15), t + 4, row * 256))
        k('v_pk_add_f32 %s, %s, %s neg_lo:[0,1] neg_hi:[0,1]' % (v(t + 2, 2), v(e, 2), v(t, 2)))
        k('v_cvt_pk_bf16_f32 v%d, v%d, v%d' % (t + 5, t + 2, t + 3))
        return k.ds('ds_write2st64_b32 v%d, v%d, v%d offset0:%d offset1:%d' % (16 + (row & 15), t + 4, t + 5, row, 32 + row))
    hi = {r: (r - 1, Z1) for r in range(1, 8)}
    hi.update({8: (0, Z256), 9: (2, Z256), 10: (4, Z256), 11: (6, Z256), 12: (8, Z256), 13: (10, Z256), 14: (12, Z256), 15: (13, Z256),
               16: (14, Z256), 17: (16, Z256), 18: (17, Z256), 19: (18, Z256), 20: (19, Z256)})
    order = [0, 1, 8, 2, 12, 3, 14, 4, 16, 5, 17, 6, 18, 7, 19, 9, 20, 10, 11, 13, 15]
    for i, r in enumerate(order):
        nxt = order[i + 1] if i + 1 < len(order) else None
        if nxt is not None: cmul1(k, E0 + 2 * nxt, E0 + 2 * hi[nxt][0], hi[nxt][1])
        split_a(E0 + 2 * r, i)
        if nxt is not None: cmul2(k, E0 + 2 * nxt, E0 + 2 * hi[nxt][0], hi[nxt][1])
        split_b(E0 + 2 * r, i, r)
    AH, AL = 160, 192
    for ks in range(8):
        k.ds('ds_read_b128 %s, v%d' % (v(AH + 4 * ks, 4), 32 + ks))
        if KSPLIT: k.ds('ds_read_b128 %s, v%d offset:8192' % (v(AL + 4 * ks, 4), 32 + ks))
    for i in range(4): k('v_mov_b32 v%d, 0' % (96 + i))
    k.wait(vm=tx)
    for i in range(2): k.ds('ds_write_b128 v11, %s offset:%d' % (v(240 + 4 * i, 4), (L_STX - L_STN) + 512 * i))
    for j in range(8):
        k('v_dot2c_f32_bf16 v%d, s63, v%d' % (96 + (j & 1), 240 + j))
        k('v_dot2c_f32_bf16 v%d, v%d, v%d' % (98 + (j & 1), 240 + j, 240 + j))
    k.wait(vm=tc)
    for ks in range(3):
        k.ds('ds_read_b64_tr_b16 %s, v254 offset:%d' % (v(128 + 4 * ks, 2), ks * 1024))
        k.ds('ds_read_b64_tr_b16 %s, v254 offset:%d' % (v(130 + 4 * ks, 2), ks * 1024 + 256))
    k('v_lshlrev_b32 v116, 16, v248')
    k('v_and_b32 v117, s58, v248')
    k('v_add_f32 v96, v96, v97')
    k('v_add_f32 v98, v98, v99')
    nm = 'v_mul_f32 v%%d, %s, v%%d' % f32(-LOG2E)
    silu = [nm % (118, 116), nm % (119, 117), 'v_exp_f32 v118, v118', 'v_exp_f32 v119, v119', 'v_add_f32 v118, 1.0, v118', 'v_add_f32 v119, 1.0, v119',
            'v_rcp_f32 v118, v118', 'v_rcp_f32 v119, v119', 'v_mul_f32 v116, v116, v118', 'v_mul_f32 v117, v117, v119', 'v_cvt_pk_bf16_f32 v116, v116, v117']
    for pat in ('quad_perm:[1,0,3,2]', 'quad_perm:[2,3,0,1]', 'row_half_mirror', 'row_mirror'):
        k(silu.pop(0)); k(silu.pop(0))
        k('v_add_f32_dpp v96, v96, v96 %s row_mask:0xf bank_mask:0xf' % pat)
        k('v_add_f32_dpp v98, v98, v98 %s row_mask:0xf bank_mask:0xf' % pat)
    k('v_mov_b32 v97, v96')
    k('v_mov_b32 v99, v98')
    while silu: k(silu.pop(0))
    k.ds('ds_write_b32 v249, v116')
    k('v_permlane16_swap_b32 v96, v97')
    k('v_permlane16_swap_b32 v98, v99')
    for ks in range(3): tsf = k.ds('ds_read_b128 %s, v233 offset:%d' % (v(116 + 4 * ks, 4), 32 * ks))
    k('v_add_f32 v96, v96, v97')
    k('v_add_f32 v98, v98, v99')
    k('v_mul_f32 v96, %s, v96' % f32(1.0 / 512))
    k('v_mul_f32 v98, %s, v98' % f32(1.0 / 512))
    k('v_fma_f32 v98, -v96, v96, v98')
    k('v_max_f32 v98, 0, v98')
    k('v_add_f32 v98, %s, v98' % f32(1e-5))
    k('v_rsq_f32 v100, v98')
    k('v_mul_f32 v101, v96, v100')
    for j in range(8):
        tt = 102 + 2 * (j & 1)
        k('v_lshlrev_b32 v%d, 16, v%d' % (tt, 240 + j))
        k('v_and_b32 v%d, s58, v%d' % (tt + 1, 240 + j))
        k('v_pk_fma_f32 %s, %s, v[100:101], v[100:101] op_sel:[0,0,1] op_sel_hi:[1,0,1] neg_lo:[0,0,1] neg_hi:[0,0,1]' % (v(tt, 2), v(tt, 2)))
        k('v_cvt_pk_bf16_f32 v%d, v%d, v%d' % (108 + j, tt, tt + 1))
    k.wait(ds=tsf)
    k('v_mfma_f32_32x32x16_bf16 a[64:79], v[116:119], v[128:131], 0')
    k('v_mfma_f32_32x32x16_bf16 a[80:95], v[124:127], v[136:139], 0')
    k('v_mfma_f32_32x32x16_bf16 a[64:79], v[120:123], v[132:135], a[64:79]')
    for i in range(2): k.ds('ds_write_b128 v11, %s offset:%d' % (v(108 + 4 * i, 4), 512 * i))
    k.wait(vm=tn)
    k('s_mov_b32 s80, 0')
    k('L_non_p:')
    k('s_waitcnt vmcnt(0)')
    k('v_cmp_eq_u32 vcc, 0, v232')
    retry_tail(k, 'non', [NL])
    k('v_readfirstlane_b32 s81, v232')
    k('s_nop 4')
    k.ds('ds_write_b32 v249, a80 offset:2048')
    k.ds('ds_write_b32 v249, a64 offset:1024')
    k.wait_all(vm=False)
    GR = [96 + 4 * q for q in range(8)]
    for q in range(8): k('v_mov_b32 v%d, v232\nv_mov_b32 v%d, v232' % (GR[q] + 2, GR[q] + 3))
    k.barrier()
    tq = [k.ds('ds_read_b64_tr_b16 %s, v236 offset:%d' % (v(GR[q], 2), 32 * q)) for q in range(8)]
    for i in range(4): tp = k.ds('ds_read_b32 v%d, v252 offset:%d' % (128 + i, 256 * i))
    for q in range(8):
        k.wait(ds=tq[q])
        k.vm('global_store_dwordx4 v%d, %s, s[12:13] offset:%d%s' % (235 - (q >> 2), v(GR[q], 4), 1024 * (q & 3), SC))
    k.wait(ds=tp)
    k('s_cmp_ge_u32 s50, 2')
    k('s_cbranch_scc1 L_cm2')
    k('v_add_f32 v128, v128, v129')
    k('v_add_f32 v130, v130, v131')
    k('v_add_f32 v128, v128, v130')
    k('v_mov_b32 v129, v232')
    raw(k, 'global_store_dwordx2 v253, v[128:129], s[16:17]' + SC)
    k('s_branch L_cm3')
    k('L_cm2:')
    k('v_and_b32 v130, 15, v1')
    k('s_lshl_b32 s75, s2, 6')
    k('v_lshl_add_u32 v130, v130, 2, s75')
    raw(k, 'global_store_dword v130, v12, s[14:15]' + SC)
    k('L_cm3:')
    k('s_nop 1')
    k.stamp(4)
    k('s_lshr_b32 s5, s3, 1')
    k('s_lshl_b32 s5, s5, 2')
    k('s_and_b32 s75, s4, 3')
    k('s_add_u32 s5, s5, s75')
    k('s_and_b32 s7, s3, 1')
    k('s_mul_i32 s7, s7, 7')
    k('s_lshr_b32 s75, s4, 2')
    k('s_add_u32 s7, s7, s75')
    k('s_min_u32 s7, s7, 13')
    k('s_lshl_b32 s6, s7, 2')
    k('s_add_u32 s6, s6, s50')
    k('s_cmp_lt_u32 s2, 112')
    k('s_cbranch_scc0 L_pj_w1')
    k('s_lshl_b32 s76, s2, 14')
    k('s_lshl_b32 s70, s50, 12')
    k('s_add_u32 s76, s76, s70')
    add_ptr(k, 72, P_W2, 76)
    k('s_add_u32 s31, s70, %d' % L_SJ)
    k('s_movk_i32 s79, 1024')
    for r in range(4):
        k('v_xor_b32 v%d, %d, v1' % (244 + r, r << 2))
        k('v_lshlrev_b32 v%d, 4, v%d' % (244 + r, 244 + r))
        if r: k('v_add_u32 v%d, %d, v%d' % (244 + r, 1024 * r, 244 + r))
    k('s_branch L_pj_go')
    k('L_pj_w1:')
    k('s_sub_u32 s75, s2, 112')
    k('s_min_u32 s75, s75, 111')
    k('s_and_b32 s26, s75, 7')
    k('s_lshr_b32 s27, s75, 3')
    k('s_lshl_b32 s75, s26, 4')
    k('s_add_u32 s75, s75, s50')
    k('s_mul_i32 s75, s75, %d' % (4 * 3584))
    k('s_lshl_b32 s76, s27, 8')
    k('s_add_u32 s75, s75, s76')
    add_ptr(k, 72, P_W1, 75)
    k('s_lshl_b32 s31, s50, 10')
    k('s_add_u32 s31, s31, %d' % L_SJ)
    k('s_movk_i32 s79, 4096')
    k('v_lshrrev_b32 v241, 4, v1')
    k('v_and_b32 v242, 15, v1')
    k('v_lshlrev_b32 v243, 2, v241')
    k('v_xor_b32 v243, v243, v242')
    k('v_mul_u32_u24 v244, 3584, v241')
    k('v_lshl_add_u32 v244, v243, 4, v244')
    for r in range(1, 4): k('v_add_u32 v%d, %d, v244' % (244 + r, r * 16 * 3584))
    k('L_pj_go:')
    def pkdma(r):
        k('s_mov_b32 m0, s31')
        k.tpk = k.vm('global_load_lds_dwordx4 v%d, s[72:73]' % (244 + r))
        k('s_add_u32 s31, s31, s79')
    eq = [lambda r=r: pkdma(r) for r in range(4)]
    L0 = 96
    k('v_mov_b32 v%d, 1.0' % L0)
    k('v_mov_b32 v%d, 0' % (L0 + 1))
    lo_order = []
    for m in range(16): lo_order += [m, 16 + m]
    def lreg(m): return L0 + 2 * m if m < 16 else 132 + 2 * (m & 1)
    def lsrc(m): return (lreg(m - 1), Z8) if m < 16 else (lreg(m - 16), Z128)
    for i, m in enumerate(lo_order):
        nxt = lo_order[i + 1] if i + 1 < len(lo_order) else None
        if nxt is not None: cmul1(k, lreg(nxt), *lsrc(nxt))
        split_a(lreg(m), i)
        if nxt is not None: cmul2(k, lreg(nxt), *lsrc(nxt))
        split_b(lreg(m), i, m)
        if eq and i % E('EQD', 4) == 0: eq.pop(0)()
    while eq: eq.pop(0)()
    ACC = 224
    bt = []
    k.wait_all(vm=False, ds=True)
    for ks in range(8):
        t = k.ds('ds_read_b128 %s, v%d' % (v(96 + 8 * ks, 4), 32 + ks))
        if KSPLIT: t = k.ds('ds_read_b128 %s, v%d offset:8192' % (v(100 + 8 * ks, 4), 32 + ks))
        bt.append(t)
    fill = []
    F = lambda x: fill.append(x)
    F('v_lshrrev_b32 v7, 3, v1'); F('v_and_b32 v8, 7, v1'); F('v_lshlrev_b32 v16, 15, v7'); F('v_lshl_add_u32 v16, v8, 4, v16')
    F('s_lshl_b32 s60, s50, 21\ns_lshl_b32 s61, s2, 7\ns_add_u32 s60, s60, s61\ns_add_u32 s62, s48, s60\ns_addc_u32 s63, s49, 0')
    assert WS_XG == 0
    for i in range(1, 8): F('v_add_u32 v%d, 0x%x, v16' % (16 + i, i * 262144) if i < 4 else 'v_add_u32 v%d, 0x%x, v16' % (20 + i, i * 262144))
    XA = [16, 17, 18, 19, 24, 25, 26, 27]
    F('v_lshlrev_b32 v21, 3, v1')
    F('s_lshl_b32 s60, s2, 9\ns_add_u32 s60, s60, 0x%x\ns_add_u32 s64, s48, s60\ns_addc_u32 s65, s49, 0' % WS_MODG)
    XD = [240, 244, 248, 252, 80, 84, 88, 92]
    k.XD = XD
    k.XL = ['global_load_dwordx4 %s, v%d, s[62:63]%s' % (v(XD[i], 4), XA[i], SC) for i in range(8)] + ['global_load_dwordx2 v[22:23], v21, s[64:65]' + SC]
    F('s_or_b32 s66, s55, 0x4000'); F('v_lshl_add_u32 v3, v1, 4, s66')
    F('s_mul_i32 s55, s52, %d\ns_add_u32 s55, s55, %d' % (CHS, L_CV)); F('v_lshl_add_u32 v2, v59, 5, s55')
    XAT = E('XAT', 0)
    if XAT == 0:
        for x in k.XL: F('VM ' + x)
    def emit_fill():
        x = fill.pop(0)
        if x.startswith('VM '): k.vm(x[3:])
        else: k(x)
    for ks in range(8):
        k.wait(ds=bt[ks])
        c = '0' if ks == 0 else v(ACC, 16)
        ms = [(AH + 4 * ks, 96 + 8 * ks)] + ([(AH + 4 * ks, 100 + 8 * ks), (AL + 4 * ks, 96 + 8 * ks)] if KSPLIT else [])
        for x, y in ms:
            k('v_mfma_f32_32x32x16_bf16 %s, %s, %s, %s' % (v(ACC, 16), v(x, 4), v(y, 4), c)); c = v(ACC, 16)
            for _ in range(2 if KSPLIT else 4):
                if fill: emit_fill()
    while fill: emit_fill()
    k('s_nop 7\ns_nop 3')
    k('s_bitcmp1_b32 s50, 0')
    k('s_cbranch_scc0 L_kg_a')
    for i in range(3): k.ds('ds_write_b128 v3, %s offset:%d' % (v(ACC + 4 * i, 4), 1024 * i))
    k.wait_all(vm=False)
    k('L_kg_a:')
    k.barrier()
    if XAT == 1:
        for x in k.XL: k.vm(x)
    k('s_cbranch_scc1 L_kg_b')
    for i in range(3): k.ds('ds_read_b128 %s, v3 offset:%d' % (v(96 + 4 * i, 4), 1024 * i))
    k.wait_all(vm=False)
    for i in range(6): k('v_pk_add_f32 %s, %s, %s' % (v(96 + 2 * i, 2), v(96 + 2 * i, 2), v(ACC + 2 * i, 2)))
    for r in range(12): k.ds('ds_write_b32 v%d, v%d' % (44 + r, 96 + r))
    k.wait_all(vm=False)
    k('L_kg_b:')
    k.wait(vm=k.tpk)
    k.barrier()
    k('v_cmp_eq_u32 vcc, 127, v59')
    G = 96
    gt = [k.ds('ds_read_b32 v%d, v%d' % (G + i, 60 + i)) for i in range(17)]
    conv_setup(k)
    k.wait(ds=gt[-1])
    k('v_cmp_eq_u32 vcc, 127, v59')
    k('v_cndmask_b32 v%d, v%d, v12, vcc' % (G + 16, G + 16))
    for i in range(8): k('v_cvt_pk_bf16_f32 v%d, v%d, v%d' % (120 + i, G + 2 * i, G + 2 * i + 1))
    for i in range(8): k('v_cvt_pk_bf16_f32 v%d, v%d, v%d' % (128 + i, G + 2 * i + 1, G + 2 * i + 2))
    k.ds('ds_write_b128 v2, v[120:123]')
    k.ds('ds_write_b128 v2, v[124:127] offset:16')
    k.ds('ds_write_b128 v2, v[128:131] offset:%d' % O_K1)
    k.ds('ds_write_b128 v2, v[132:135] offset:%d' % (O_K1 + 16))
    k('v_lshlrev_b32 v2, 4, v1')
    for q in range(4):
        k.ds('ds_read_b64_tr_b16 %s, v%d' % (v(144 + 4 * q, 2), 210 + q))
        pt = k.ds('ds_read_b64_tr_b16 %s, v%d' % (v(146 + 4 * q, 2), 203 + q))
    k.wait(ds=pt)
    k('s_cmp_ge_u32 s2, 224')
    k('s_cbranch_scc1 L_pk_no')
    for q in range(4): raw(k, 'global_store_dwordx4 v%d, %s, s[70:71]%s' % (11 if q == 0 else 213 + q, v(144 + 4 * q, 4), SC))
    k('L_pk_no:')

def conv_setup(k):
    k('s_and_b32 s54, s50, 1')
    k('v_lshlrev_b32 v11, 4, v1')
    k('v_and_b32 v5, 15, v1')
    k('v_lshrrev_b32 v6, 4, v1')
    k('s_mul_i32 s59, s54, %d' % O_K1)
    k('s_add_u32 s59, s59, s55')
    k('v_lshl_add_u32 v14, v5, 2, s59')
    k.ds('ds_write_b32 v14, v12 offset:4096')
    k('v_lshl_add_u32 v14, v1, 3, s55')
    k.ds('ds_write_b64 v14, v[12:13] offset:%d' % O_H)
    k('v_lshrrev_b32 v9, 2, v8')
    k('v_bfe_u32 v10, v8, 1, 1')
    k('v_mul_u32_u24 v20, %d, v9' % CHS)
    k('v_add_u32 v20, %d, v20' % (L_CV + O_H + 512))
    k('v_lshlrev_b32 v14, 12, v9')
    k('v_add_u32 v14, %d, v14' % L_X)
    k('v_cmp_eq_u32 vcc, 1, v10')
    k('v_and_b32 v15, 1, v8')
    k('v_cndmask_b32 v20, v20, v14, vcc')
    k('v_lshl_add_u32 v20, v15, 3, v20')
    k('v_lshl_add_u32 v20, v7, 4, v20')
    k('s_lshl_b32 s60, s50, 10')
    k('v_add_u32 v20, s60, v20')
    k('s_lshl_b32 s76, s54, 10')
    k('s_add_u32 s77, s76, s55')
    k('v_lshlrev_b32 v15, 5, v5')
    k('v_lshl_add_u32 v15, v6, 3, v15')
    k('v_add_u32 v193, s77, v15')
    k('s_lshl_b32 s77, s52, 12')
    k('s_add_u32 s76, s76, s77')
    k('v_add_u32 v202, s76, v15')
    k('v_lshlrev_b32 v15, 5, v5')
    k('v_lshl_add_u32 v15, v6, 4, v15')
    k('s_lshl_b32 s77, s54, 8')
    k('s_sub_u32 s77, s55, s77')
    k('s_add_u32 s78, s77, %d' % (O_H + 512 - 32 - 192))
    k('v_add_u32 v192, s78, v15')
    k('v_lshlrev_b32 v15, 3, v6')
    k('v_sub_u32 v15, v15, v5')
    k('v_add_u32 v15, 15, v15')
    k('v_and_b32 v194, 1, v15')
    k('v_mul_u32_u24 v194, %d, v194' % O_K1)
    k('v_and_b32 v15, -2, v15')
    k('v_lshl_add_u32 v15, v15, 1, v194')
    k('s_add_u32 s78, s77, %d' % (2 * (2016 - 256 - 96 - 1536)))
    k('v_add_u32 v197, s78, v15')
    for ip in range(3): k('v_add_u32 v%d, %d, v197' % (194 + ip, 1024 * (3 - ip)))
    k('s_lshl_b32 s77, s54, 12')
    k('s_add_u32 s78, s77, s55')
    k('v_add_u32 v198, s78, v11')
    k('s_xor_b32 s77, s77, 0x1000')
    k('s_add_u32 s78, s77, s55')
    k('v_add_u32 v199, s78, v11')
    k('v_and_b32 v15, 1, v6')
    k('v_lshlrev_b32 v15, 3, v15')
    k('v_lshrrev_b32 v200, 1, v5')
    k('v_add_u32 v15, v15, v200')
    k('v_lshlrev_b32 v200, 15, v15')
    k('v_and_b32 v15, 1, v5')
    k('v_lshl_add_u32 v200, v15, 5, v200')
    k('v_lshrrev_b32 v15, 1, v6')
    k('v_lshl_add_u32 v200, v15, 4, v200')
    k('v_add_u32 v201, 0x100000, v200')
    k('s_lshl_b32 s60, s54, 19')
    k('s_lshl_b32 s61, s53, 6')
    k('s_add_u32 s60, s60, s61')
    ws_ptr(k, 66, WS_X1T, 60)
    ws_ptr(k, 68, WS_X1S, 60)
    k('s_cmp_lt_u32 s2, 112')
    k('s_cbranch_scc0 L_pa_w1')
    tr_addr32(k, 210, 1, 14, 15, 10, 4)
    k('s_lshl_b32 s61, s50, 8')
    k('s_add_u32 s61, s61, %d' % L_SJ)
    k('v_add_u32 v210, s61, v210')
    k('v_bfe_u32 v15, v1, 2, 2')
    k('v_lshlrev_b32 v15, 6, v15')
    k('v_xor_b32 v210, v210, v15')
    for q in range(1, 4): k('v_xor_b32 v%d, %d, v210' % (210 + q, q << 6))
    k('s_mul_i32 s61, s50, %d' % (4 * 114688))
    k('s_lshl_b32 s60, s2, 10')
    k('s_add_u32 s61, s61, s60')
    ws_ptr(k, 70, WS_W2P, 61)
    k('s_mov_b32 s60, 114688')
    k('s_movk_i32 s61, 8192')
    k('s_branch L_pa_go')
    k('L_pa_w1:')
    tr_addr32(k, 210, 1, 14, 15, 8, 8)
    k('v_bfe_u32 v15, v1, 2, 2')
    k('v_xor_b32 v15, s50, v15')
    k('v_lshl_add_u32 v210, v15, 6, v210')
    k('v_add_u32 v210, %d, v210' % L_SJ)
    for q in range(1, 4): k('v_add_u32 v%d, %d, v210' % (210 + q, q * 4096))
    k('s_lshl_b32 s61, s27, 2')
    k('s_add_u32 s61, s61, s50')
    k('s_lshl_b32 s61, s61, 15')
    k('s_lshl_b32 s60, s26, 12')
    k('s_add_u32 s61, s61, s60')
    ws_ptr(k, 70, WS_W1P, 61)
    k('s_movk_i32 s60, 1024')
    k('s_movk_i32 s61, 1024')
    k('L_pa_go:')
    for q in range(4): k('v_add_u32 v%d, s61, v%d' % (203 + q, 210 + q))
    k('v_add_u32 v214, s60, v11')
    k('v_add_u32 v215, s60, v214')
    k('v_add_u32 v216, s60, v215')
    k('s_lshl_b32 s60, s6, 15')
    ws_ptr(k, 26, WS_W1P, 60)
    k('s_lshl_b32 s77, s30, 16')
    k('s_and_b32 s74, s30, 0xffff0000')
    k('s_cmp_eq_u32 s52, 0')
    k('s_cselect_b32 s74, s77, s74')
    k('v_bfe_u32 v4, v1, 3, 1')
    k('v_cvt_f32_u32 v4, v4')
    k('v_cmp_gt_u32 vcc, 32, v1')
    k('v_cndmask_b32 v4, 0, v4, vcc')
    k('s_lshl_b32 s60, s2, 4')
    ws_ptr(k, 18, WS_FIN, 60)
    k('s_lshl_b32 s60, s3, 10')
    k('v_add_u32 v217, s60, v11')
    k('v_add_u32 v218, 0x%x, v217' % O_F2)
    k('v_add_u32 v217, 0x%x, v217' % O_FP)
    k('s_lshl_b32 s56, s54, 15')
    k('s_lshl_b32 s60, s52, 12')
    k('s_add_u32 s56, s56, s60')
    k('s_lshl_b32 s60, s5, 16')
    k('s_add_u32 s60, s60, s56')
    ws_ptr(k, 28, WS_X1S, 60)

def conv_phase(k):
    XD = k.XD
    k.stamp(6)
    k('s_mov_b32 s80, 0')
    k('L_xv_p:')
    k('s_waitcnt vmcnt(0)')
    for c in chk_tags([x + 2 for x in XD] + [23], 28): k(c)
    retry_tail(k, 'xv', k.XL)
    k.vm_done = k.nvm
    k.stamp(7)
    k('v_add_f32_dpp v22, v22, v22 quad_perm:[1,0,3,2] row_mask:0xf bank_mask:0xf')
    k('s_lshl_b32 s60, s52, 2')
    k('s_add_u32 s61, s60, 24')
    k('v_add_f32_dpp v22, v22, v22 quad_perm:[2,3,0,1] row_mask:0xf bank_mask:0xf')
    k('s_add_u32 s60, s60, 16')
    k('v_cmp_eq_u32 vcc, 1, v9')
    k('v_add_f32_dpp v22, v22, v22 row_half_mirror row_mask:0xc bank_mask:0xf')
    k('v_cvt_pk_bf16_f32 v22, v22, v22')
    k('v_and_b32 v22, s58, v22')
    k('v_add_f32 v22, v22, v4')
    k('v_cvt_pk_bf16_f32 v22, v22, v22')
    k('v_and_b32 v22, s58, v22')
    k('v_readlane_b32 s62, v22, 0')
    k('v_readlane_b32 s63, v22, 4')
    k('v_readlane_b32 s64, v22, 8')
    k('v_readlane_b32 s65, v22, 12')
    k('v_readlane_b32 s75, v22, s60')
    k('v_readlane_b32 s76, v22, s61')
    k('v_mov_b32 v27, s62')
    k('v_mov_b32 v29, s63')
    k('v_mov_b32 v26, s64')
    k('v_mov_b32 v28, s65')
    k('v_cndmask_b32 v27, v27, v29, vcc')
    k('v_cndmask_b32 v26, v26, v28, vcc')
    k('v_cmp_eq_u32 vcc, 1, v10')
    k('v_cndmask_b32 v27, v27, 0, vcc')
    k('v_cndmask_b32 v26, v26, 1.0, vcc')
    for i in range(8):
        for j in range(2):
            r = XD[i] + j
            tt = 48 + 2 * (j & 1)
            k('v_lshlrev_b32 v%d, 16, v%d' % (tt, r))
            k('v_and_b32 v%d, s58, v%d' % (tt + 1, r))
            k('v_pk_fma_f32 %s, %s, v[26:27], v[26:27] op_sel:[0,0,1] op_sel_hi:[1,0,1]' % (v(tt, 2), v(tt, 2)))
            k('v_cvt_pk_bf16_f32 v%d, v%d, v%d' % (r, tt, tt + 1))
        k.ds('ds_write_b64 v20, %s offset:%d' % (v(XD[i], 2), 128 * i))
    k.wait_all(vm=False)
    k.barrier()
    signal(k, 'fp', O_FP, 208, 209)
    k.stamp(9)
    ACC = 32
    def areg(st, p): return 64 + 64 * st + 4 * p
    def breg(st, q): return 96 + 64 * st + 4 * q
    def loads(cc, st, np_):
        L = []
        for p in range(np_):
            off = 128 * (1 - (p & 1)) + 16 * (3 - cc)
            L.append('ds_read2_b32 %s, v%d offset0:%d offset1:%d' % (v(areg(st, p), 2), 194 + (p >> 1), off, off + 1))
            L.append('ds_read2_b32 %s, v%d offset0:%d offset1:%d' % (v(areg(st, p) + 2, 2), 194 + (p >> 1), off + 2, off + 3))
            L.append('ds_read_b128 %s, v192 offset:%d' % (v(breg(st, p), 4), 512 * p + 64 * (3 - cc)))
        return L
    def lv_pairs(lo, hi_):
        P = []
        for lv in range(8):
            for p in range(lv + 1):
                for q in range(lv + 1):
                    if max(p, q) == lv and lo <= p + q <= hi_: P.append((p, q))
        return P
    def loadsA(cc):
        L = []
        st, o4 = cc >> 1, 4 * (cc & 1)
        for p in range(4):
            off = 128 * (1 - (p & 1)) + 16 * (3 - cc)
            L.append('ds_read2_b32 %s, v%d offset0:%d offset1:%d' % (v(areg(st, o4 + p), 2), 194 + (p >> 1), off, off + 1))
            L.append('ds_read2_b32 %s, v%d offset0:%d offset1:%d' % (v(areg(st, o4 + p) + 2, 2), 194 + (p >> 1), off + 2, off + 3))
            L.append('ds_read_b128 %s, v192 offset:%d' % (v(breg(st, o4 + p), 4), 512 * p + 64 * (3 - cc)))
        return L
    tA = {}
    for cc in range(2): tA[cc] = [k.ds(x) for x in loadsA(cc)]
    k('s_cmp_lg_u32 s50, 3')
    k('s_cbranch_scc1 L_fin')
    for i, (l0, l1) in enumerate(((32, 40), (24, 28), (48, 56))):
        k('v_readlane_b32 s60, v22, %d' % l0)
        k('v_readlane_b32 s61, v22, %d' % l1)
        k('s_lshr_b32 s60, s60, 16')
        k('s_or_b32 s60, s60, s61')
        k('v_mov_b32 v%d, s60' % (220 + i))
    k('v_mov_b32 v223, s81')
    k('s_mov_b64 exec, 1')
    raw(k, 'global_store_dwordx4 v12, v[220:223], s[18:19]' + SC)
    k('s_mov_b64 exec, -1')
    k('L_fin:')
    seen = set()
    def mf(nt, ar, br):
        c = v(ACC + 4 * nt, 4) if nt in seen else '0'
        seen.add(nt)
        k('v_mfma_f32_16x16x32_bf16 %s, %s, %s, %s' % (v(ACC + 4 * nt, 4), v(ar, 4), v(br, 4), c))
    def hx_reads(ps):
        return (['ds_read_b64 %s, v193 offset:%d' % (v(16 + 2 * j, 2), O_H + 512 + 2048 * ps + 512 * j) for j in range(2)] +
                ['ds_read_b64 %s, v202 offset:%d' % (v(20 + 2 * j, 2), L_X + 2048 * ps + 512 * j) for j in range(2)])
    PA = lv_pairs(0, 3); PB = lv_pairs(4, 7)
    q2 = loadsA(2) + loadsA(3) + hx_reads(0)
    tq = []
    for cc in range(4):
        st, o4 = cc >> 1, 4 * (cc & 1)
        for n, (p, q) in enumerate(PA):
            if cc < 2: k.wait(ds=tA[cc][3 * max(p, q) + 2])
            else: k.wait(ds=tq[12 * (cc - 2) + 3 * max(p, q) + 2])
            mf(p + q, areg(st, o4 + p), breg(st, o4 + q))
            for _ in range(2):
                if q2 and (cc > 0 or n >= 2): tq.append(k.ds(q2.pop(0)))
            if cc == 2 and n == 2: qB = loads(0, 0, 8)
            if cc >= 2 and (cc > 2 or n >= 2):
                for _ in range(2):
                    if qB: k.ds(qB.pop(0))
    assert not q2 and not qB
    def exchange_and_store(ps, lab, mid):
        b = ACC + 16 * ps
        k('s_nop 7')
        k('s_cmp_eq_u32 s54, 0')
        k('s_cbranch_scc0 L_%s_1' % lab)
        for j in range(2): k.ds('ds_write_b128 v198, %s offset:%d' % (v(b + 8 + 4 * j, 4), O_RED + 2048 * ps + 1024 * j))
        for j in range(4): k('v_mov_b64 %s, %s' % (v(224 + 2 * j, 2), v(b + 2 * j, 2)))
        k('s_branch L_%s_2' % lab)
        k('L_%s_1:' % lab)
        k.nds -= 2
        for j in range(2): k.ds('ds_write_b128 v198, %s offset:%d' % (v(b + 4 * j, 4), O_RED + 2048 * ps + 1024 * j))
        for j in range(4): k('v_mov_b64 %s, %s' % (v(224 + 2 * j, 2), v(b + 8 + 2 * j, 2)))
        k('L_%s_2:' % lab)
        k.wait_all(vm=False)
        k.barrier()
        mid()
        rt_ = [k.ds('ds_read_b128 %s, v199 offset:%d' % (v(232 + 4 * j, 4), O_RED + 2048 * ps + 1024 * j)) for j in range(2)]
        for i in range(4):
            k('v_lshlrev_b32 v%d, 16, v%d' % (240 + 2 * i, 16 + i))
            k('v_and_b32 v%d, s58, v%d' % (241 + 2 * i, 16 + i))
            k('v_pk_fma_f32 %s, %s, s[74:75], %s op_sel_hi:[1,0,1]' % (v(224 + 2 * i, 2), v(240 + 2 * i, 2), v(224 + 2 * i, 2)))
            k('v_lshlrev_b32 v%d, 16, v%d' % (248 + 2 * i, 20 + i))
            k('v_and_b32 v%d, s58, v%d' % (249 + 2 * i, 20 + i))
        k.wait(ds=rt_[1])
        for i in range(4):
            k('v_pk_add_f32 %s, %s, %s' % (v(224 + 2 * i, 2), v(224 + 2 * i, 2), v(232 + 2 * i, 2)))
            k('v_pk_fma_f32 %s, %s, s[74:75], %s op_sel:[0,1,0] op_sel_hi:[1,1,1]' % (v(224 + 2 * i, 2), v(224 + 2 * i, 2), v(248 + 2 * i, 2)))
            k('v_pk_mul_f32 %s, %s, s[76:77] op_sel_hi:[1,0]' % (v(240 + 2 * i, 2), v(224 + 2 * i, 2)))
            k('v_cvt_pk_bf16_f32 v%d, v%d, v%d' % (24 + i, 240 + 2 * i, 241 + 2 * i))
            k('v_cvt_pk_bf16_f32 v%d, v%d, v%d' % (28 + i, 224 + 2 * i, 225 + 2 * i))
        for b_, sp in ((24, 68), (28, 66)):
            k('v_permlane16_swap_b32 v%d, v%d' % (b_, b_ + 2))
            k('v_permlane16_swap_b32 v%d, v%d' % (b_ + 1, b_ + 3))
            t = k.vm('global_store_dwordx4 v%d, %s, s[%d:%d]%s' % (200 + ps, v(b_, 4), sp, sp + 1, SC))
        return t
    tsA = exchange_and_store(0, 'cvA', lambda: None)
    k.stamp(3)
    k.tw1 = []
    def w1l():
        n = len(k.tw1)
        k.tw1.append(k.vm('global_load_dwordx4 %s, v2, s[26:27] offset:%d%s' % (a(4 * n, 4), (n & 3) * 1024, LD_SC)) if not E('NOW1', 0) else k.nvm)
        if (n & 3) == 3 and n < 31: k('s_add_u32 s26, s26, 4096'); k('s_addc_u32 s27, s27, 0')
    k.w1l = w1l
    F2A_AT = E('F2A_AT', 2); FP_AT = E('FP_AT', 2); W1D = E('W1D', 3)
    FPL = 'global_load_dwordx4 v[204:207], v217, s[14:15]' + SC
    for cc in range(4):
        st = cc & 1
        nxt = loads(cc + 1, st ^ 1, 8) if cc < 3 else hx_reads(1)
        if cc > 0: k.wait_all(vm=False)
        if cc == FP_AT: sync_check(k, 'fp', [FPL], chk_tags([204, 205, 206, 207], 210))
        if cc == F2A_AT: k.wait(vm=tsA)
        if cc in (F2A_AT, FP_AT): k.barrier()
        if cc == F2A_AT: signal(k, 'f2a', O_F2, 208, 209)
        for n, (p, q) in enumerate(PB):
            if cc == FP_AT - 2 and n == 10: sync_issue(k, 'fp', FPL)
            mf(p + q, areg(st, p), breg(st, q))
            if n >= 1 and nxt: k.ds(nxt.pop(0))
            if cc >= FP_AT and n % W1D == 0 and len(k.tw1) < 32: w1l()
        assert not nxt
    k.stamp(10)
    k.PA = ['global_load_dwordx4 v[72:75], v218, s[14:15]' + SC]
    k.FL = 'global_load_dwordx4 v[164:167], v160, s[48:49]' + SC
    def mid():
        k('v_lshlrev_b32 v160, 4, v0')
        k('v_add_u32 v160, 0x%x, v160' % WS_FIN)
        k.tfin = k.vm(k.FL)
    k.tx1 = exchange_and_store(1, 'cvB', mid)
    while len(k.tw1) < 32: w1l()

def w2reg(ks): return (a(128 + 8 * ks, 4), a(132 + 8 * ks, 4)) if ks < 16 else (v(160 + 8 * (ks - 16), 4), v(164 + 8 * (ks - 16), 4))
def w2_ops(k, ks):
    ops = []
    if E('NOW2', 0): return ops
    off = (ks & 3) * 1024
    ops.append(lambda: k.vm('global_load_dwordx4 %s, v2, s[76:77] offset:%d%s' % (w2reg(ks)[0], off, LD_SC)))
    ops.append(lambda: k.vm('global_load_dwordx4 %s, v113, s[76:77] offset:%d%s' % (w2reg(ks)[1], off, LD_SC)))
    if (ks & 3) == 3 and ks < 27: ops.append(lambda: k('s_add_u32 s76, s76, 4096\ns_addc_u32 s77, s77, 0'))
    return ops

def sync_issue(k, name, *loads):
    k('s_cmp_lg_u32 s50, %d' % SYNCW)
    k('s_cbranch_scc1 L_%s_i' % name)
    for l in loads: raw(k, l)
    k('L_%s_i:' % name)
    k.__dict__.setdefault('pollmark', {})[name] = k.nvm

def sync_check(k, name, loads, check):
    k('s_cmp_lg_u32 s50, %d' % SYNCW)
    k('s_cbranch_scc1 L_%s_w' % name)
    k('s_mov_b32 s80, 0')
    k('s_waitcnt vmcnt(%d)' % min(63, k.nvm - k.pollmark[name]))
    k('L_%s_p:' % name)
    for c in check: k(c)
    retry_tail(k, name, list(loads) + ['s_waitcnt vmcnt(0)'], 1)

L_RD = 0

def mlp_phase(k):
    k('v_add_u32 v126, 0x2000, v218')
    PL = lambda r: 'global_load_dwordx4 v[72:75], v%d, s[14:15]%s' % (r, SC)
    k('s_lshl_b32 s8, s3, 2')
    k('s_lshr_b32 s9, s4, 3')
    k('s_add_u32 s8, s8, s9')
    k('s_and_b32 s9, s4, 7')
    k('v_add_u32 v113, 114688, v2')
    k('s_mul_i32 s51, s50, %d' % (28 * 1024))
    k('s_mul_i32 s60, s9, %d' % (2 * 114688))
    k('s_add_u32 s60, s60, s51')
    ws_ptr(k, 76, WS_W2P, 60)
    k('s_mul_i32 s60, s8, 114688')
    k('s_add_u32 s60, s60, s51')
    ws_ptr(k, 22, WS_HID, 60)
    tr_addr32(k, 4, 1, 8, 9, 6, 8)
    k('v_add_u32 v5, 0x10000, v4')
    k('v_and_b32 v6, 31, v1')
    k('v_lshlrev_b32 v6, 3, v6')
    k('s_mul_i32 s62, s5, %d' % (2 * 114688))
    k('s_lshl_b32 s63, s6, 11')
    k('s_add_u32 s62, s62, s63')
    ws_ptr(k, 68, WS_HID, 62)
    k('s_lshl_b32 s62, s5, 9')
    add_ptr(k, 70, 14, 62)
    k('v_bfe_u32 v16, v1, 4, 1')
    k('v_xor_b32 v16, 1, v16')
    k('v_lshlrev_b32 v16, 10, v16')
    k('v_lshrrev_b32 v17, 5, v1')
    k('v_lshl_add_u32 v16, v17, 4, v16')
    k('v_add_u32 v16, %d, v16' % L_GS)
    k('v_lshlrev_b32 v17, 2, v0')
    k('v_add_u32 v17, %d, v17' % L_GS)
    k('v_lshlrev_b32 v18, 3, v0')
    k('v_add_u32 v18, %d, v18' % (L_GS + 2048))
    k('v_lshrrev_b32 v119, 5, v1')
    k('v_and_b32 v118, 31, v1')
    k('v_lshlrev_b32 v116, 8, v119')
    k('v_lshl_add_u32 v116, v118, 1, v116')
    k('v_lshlrev_b32 v117, 4, v119')
    k('v_lshl_add_u32 v118, v118, 10, v117')
    k('s_lshl_b32 s62, s9, 2')
    k('s_add_u32 s62, s62, s50')
    k('s_lshl_b32 s63, s8, 15')
    k('s_lshl_b32 s60, s62, 10')
    k('s_add_u32 s60, s60, s63')
    ws_ptr(k, 20, WS_X1T, 60)
    k('s_lshl_b32 s60, s62, 6')
    k('s_add_u32 s60, s60, %d' % (L_GS + 2048))
    k('v_add_u32 v117, s60, v117')
    k('s_lshl_b32 s60, s62, 5')
    k('s_add_u32 s60, s60, s63')
    add_ptr(k, 24, P_OUT, 60)
    k('s_lshl_b32 s60, s50, 13')
    k('v_add_u32 v120, s60, v2')
    k('s_lshl_b32 s60, s50, 11')
    k('v_add_u32 v121, s60, v2')
    k('s_lshr_b32 s60, s8, 1')
    k('s_lshl_b32 s60, s60, 6')
    k('s_add_u32 s60, s60, 0x%x' % O_F3)
    k('v_min_u32 v122, 13, v1')
    k('v_lshl_add_u32 v122, v122, 2, s60')
    k('s_lshl_b32 s10, s5, 6')
    k('s_lshl_b32 s61, s7, 2')
    k('s_add_u32 s10, s10, s61')
    k('s_mov_b32 s80, 0')
    k.wait(vm=k.tfin)
    k('L_fin_p:')
    k('v_cmp_ne_u32 vcc, s81, v167')
    retry_tail(k, 'fin', [k.FL, 's_waitcnt vmcnt(0)'])
    k('v_lshlrev_b32 v168, 16, v166')
    k('v_and_b32 v169, 0xffff0000, v166')
    k('v_mul_f32 v168, %s, v168' % f32(-math.log(2.0)))
    k('v_mul_f32 v169, %s, v169' % f32(-math.log(2.0)))
    k.ds('ds_write2st64_b32 v17, v164, v165 offset0:0 offset1:4')
    k.ds('ds_write_b64 v18, v[168:169]')
    C12POS = E('C12POS', 1)
    if not C12POS: sync_issue(k, 'f2a', *k.PA)
    k.wait(vm=k.tx1)
    k.wait_all(vm=False)
    k.barrier()
    signal(k, 'f2b', O_F2 + 0x2000, 19, 20)
    k.stamp(11)
    def c12_block():
        gt = [None] * 32
        for s_ in range(8): gt[s_] = k.ds('ds_read_b128 %s, v16 offset:%d' % (v(80 + 4 * (s_ % 8), 4), 32 * s_))
        for s_ in range(32):
            if C12POS and s_ == E('PA_AT', 8): sync_issue(k, 'f2a', *k.PA)
            k.wait(ds=gt[s_], vm=k.tw1[s_])
            k('v_mfma_f32_32x32x16_bf16 v[128:143], %s, %s, %s' % (a(4 * s_, 4), v(80 + 4 * (s_ % 8), 4), '0' if s_ == 0 else 'v[128:143]'))
            if s_ >= 1 and s_ + 7 < 32: gt[s_ + 7] = k.ds('ds_read_b128 %s, v16 offset:%d' % (v(80 + 4 * ((s_ + 7) % 8), 4), 32 * (s_ + 7)))
        k.stamp(8)
    if C12POS: c12_block()
    sync_check(k, 'f2a', k.PA, chk_tags([72, 73, 74, 75], 114))
    k.barrier()
    k.stamp(12)
    ctok = {}
    def chunk_ops(ps, c):
        ops = [lambda: k('s_add_u32 m0, s56, %d' % (ps * 65536 + c * 8192))]
        def ld(i): ctok[ps, c] = k.vm('global_load_lds_dwordx4 v2, s[28:29] offset:%d%s' % (i * 1024, LD_SC))
        for i in range(4): ops.append(lambda i=i: ld(i))
        if c < 3: ops.append(lambda: k('s_add_u32 s28, s28, 8192\ns_addc_u32 s29, s29, 0'))
        elif ps == 0: ops.append(lambda: k('s_add_u32 s28, s28, %d\ns_addc_u32 s29, s29, 0' % (0x100000 - 3 * 8192)))
        return ops
    k('s_cmp_ge_u32 s4, 28')
    k('s_cbranch_scc1 L_st_a')
    for c in range(4):
        for op in chunk_ops(0, c): op()
    k('s_branch L_st_b')
    k('L_st_a:')
    k('s_sub_u32 s11, s4, 28')
    k('s_lshl_b32 s60, s3, 2')
    k('s_add_u32 s11, s11, s60')
    k('s_lshl_b32 s60, s11, 15')
    k('s_lshl_b32 s61, s50, 13')
    k('s_add_u32 s60, s60, s61')
    ws_ptr(k, 28, WS_X1T, 60)
    k('v_add_u32 v7, 0x1000, v2')
    STL = ['global_load_dwordx4 %s, v%d, s[28:29] offset:%d%s' % (v(80 + 4 * i, 4), 2 if i < 4 else 7, (i & 3) * 1024, LD_SC) for i in range(8)]
    for x in STL: raw(k, x)
    k('s_branch L_stats')
    k('L_st_b:')
    if not C12POS: c12_block()
    fix = ['v_mov_b32 v%d, v%d' % (144 + r, 128 + r) for r in range(16)]
    fix += ['v_permlane16_swap_b32 v%d, v%d' % (128 + r, 144 + r) for r in range(16)]
    fix += ['v_mul_f32 v%d, %s, v%d' % (144 + r, f32(-LOG2E), 144 + r) for r in range(16)]
    ACC = 16
    w2q = []
    for ks in range(28): w2q += w2_ops(k, ks)
    for _ in range(E('W2E', 12)):
        if w2q: w2q.pop(0)()
    SL = lambda ps: ['global_load_dwordx2 %s, v6, s[70:71] offset:%d%s' % (v(8 + 2 * u, 2), 256 * u, SC) for u in range(2)]
    htok = {}
    def hload(ps, s_):
        htok[ps, s_] = k.vm('global_load_dwordx4 %s, v2, s[22:23] offset:%d%s' % (a(4 * s_, 4), (s_ & 3) * 1024, LD_SC))
        if (s_ & 3) == 3:
            if s_ < 27: k('s_add_u32 s22, s22, 4096\ns_addc_u32 s23, s23, 0')
            elif ps == 0: k('s_add_u32 s22, s22, %d\ns_addc_u32 s23, s23, 0' % (32 * 114688 - 6 * 4096))
    k.hload, k.htok = hload, htok
    F3L = lambda ps: 'global_load_dword v72, v122, s[14:15] offset:%d%s' % (1024 * ps, SC)
    W2D = E('W2D', 2)
    lstA = [None]
    for ps in range(2):
        def breg(s_, u): return 48 + 8 * (s_ % 3) + 4 * u
        rtok = {}
        def rd(s_, u):
            off = u * 32768 + s_ * 1024
            k.ds('ds_read_b64_tr_b16 %s, v%d offset:%d' % (v(breg(s_, u), 2), 4 + ps, off))
            rtok[s_, u] = k.ds('ds_read_b64_tr_b16 %s, v%d offset:%d' % (v(breg(s_, u) + 2, 2), 4 + ps, off + 256))
        k.wait(vm=ctok[ps, 0]); k.barrier()
        for s_ in range(2):
            for u in range(2): rd(s_, u)
        pend = []
        gap = 0
        for s_ in range(32):
            if s_ % 8 == 6 and s_ < 30:
                c = s_ // 8 + 1
                if ps == 0 and c == E('F2B_AT', 2): sync_check(k, 'f2b', [PL(126)], chk_tags([72, 73, 74, 75], 80))
                if ps == 1 and c == E('F3A_SIG', 2): k.wait(vm=lstA[0])
                k.wait(vm=ctok[ps, c]); k.barrier()
                if ps == 0 and c == E('F2B_AT', 2):
                    for c2 in range(4): pend += chunk_ops(1, c2)
                if ps == 1 and c == E('F3A_SIG', 2): signal(k, 'f3a', O_F3, 73, 74, nrep=1, sidx=10)
            if ps == 0 and s_ == 8 * E('F2B_AT', 2) - 2 - E('POLLD', 12): sync_issue(k, 'f2b', PL(126))
            if s_ == 22:
                def sl(x): ctok['st'] = k.vm(x)
                for x in SL(ps): pend.append(lambda x=x: sl(x))
            for u in range(2):
                k.wait(ds=rtok[s_, u])
                k('v_mfma_f32_32x32x16_bf16 %s, %s, %s, %s' % (v(ACC + 16 * u, 16), a(4 * s_, 4), v(breg(s_, u), 4), '0' if s_ == 0 else v(ACC + 16 * u, 16)))
                if s_ + 2 < 32: rd(s_ + 2, u)
                if fix and s_ >= 2:
                    for _ in range(2): k(fix.pop(0))
                if pend: pend.pop(0)()
                elif w2q and gap % W2D == 0: w2q.pop(0)()
                gap += 1
        while pend: pend.pop(0)()
        k.stamp(13 if ps == 0 else 14)
        k.wait(vm=ctok['st'])
        k('s_mov_b32 s80, 0')
        k('L_chk%d_p:' % ps)
        k('v_min_u32 v80, v9, v11')
        k('v_cmp_eq_u32 vcc, 0, v80')
        retry_tail(k, 'chk%d' % ps, SL(ps) + ['s_waitcnt vmcnt(0)'], 2)
        if ps == 0: k('s_add_u32 s70, s70, 0x2000\ns_addc_u32 s71, s71, 0')
        k('s_nop 7')
        for u in range(2):
            b = 8 + 2 * u
            A_ = ACC + 16 * u
            for p in range(8):
                x = v(A_ + 2 * p, 2)
                k('v_pk_fma_f32 %s, %s, %s, %s op_sel_hi:[1,0,1] neg_lo:[0,1,0] neg_hi:[0,1,0]' % (x, v(128 + 2 * p, 2), v(b, 2), x))
            for p in range(8):
                x = v(A_ + 2 * p, 2)
                k('v_pk_fma_f32 %s, %s, %s, %s op_sel:[1,0,0] op_sel_hi:[1,1,1]' % (x, v(b, 2), x, v(144 + 2 * p, 2)))
            if ps == 1 and u == E('F3A_U', 0): sync_issue(k, 'f3a', F3L(0))
            for r in range(16): k('v_exp_f32 v%d, v%d' % (80 + r, A_ + r))
            for p in range(8): k('v_pk_add_f32 %s, %s, 1.0 op_sel_hi:[1,0]' % (v(80 + 2 * p, 2), v(80 + 2 * p, 2)))
            if u == 0:
                for _ in range(E('W2EP', 3)):
                    if w2q: w2q.pop(0)()
            for r in range(16): k('v_rcp_f32 v%d, v%d' % (80 + r, 80 + r))
            for p in range(8): k('v_pk_mul_f32 %s, %s, %s' % (v(A_ + 2 * p, 2), v(A_ + 2 * p, 2), v(80 + 2 * p, 2)))
            O = 96 + 8 * u
            for p in range(8): k('v_cvt_pk_bf16_f32 v%d, v%d, v%d' % (O + p, A_ + 2 * p, A_ + 2 * p + 1))
            k.vm('global_store_dwordx4 v%d, %s, s[68:69]%s' % (2 if u == 0 else 113, v(O, 4), SC))
            lst = k.vm('global_store_dwordx4 v%d, %s, s[68:69] offset:1024%s' % (2 if u == 0 else 113, v(O + 4, 4), SC))
        if ps == 0:
            lstA[0] = lst
            k('s_add_u32 s68, s68, %d\ns_addc_u32 s69, s69, 0' % (32 * 114688))
    while w2q: w2q.pop(0)()
    sync_check(k, 'f3a', [F3L(0)], ['v_cmp_ne_u32 vcc, s81, v72'])
    k.barrier()
    k('s_add_u32 s10, s10, 1024')
    k('s_branch L_join')
    k('L_stats:')
    k.reset_counters()
    k('s_movk_i32 s10, 2048')
    k('s_lshl_b32 s62, s11, 8')
    add_ptr(k, 70, 14, 62)
    k('s_mov_b32 s62, 0xffff0000')
    k('v_lshlrev_b32 v3, 6, v0')
    k('v_bfe_u32 v4, v1, 3, 2')
    k('v_lshlrev_b32 v4, 6, v4')
    k('v_and_b32 v5, 7, v1')
    k('v_lshl_add_u32 v4, v5, 2, v4')
    k('v_lshrrev_b32 v5, 5, v1')
    k('v_lshl_add_u32 v4, v5, 13, v4')
    for ps in range(2):
        if ps == 1:
            poll(k, 'sf2b', [PL(126)], chk_tags([72, 73, 74, 75], 80))
            k('s_add_u32 s28, s28, 0x100000\ns_addc_u32 s29, s29, 0')
            k('s_add_u32 s70, s70, 0x2000\ns_addc_u32 s71, s71, 0')
        if ps == 0:
            xt = list(range(1, 9)); k.nvm = 8
        else: xt = [k.vm(x) for x in STL]
        for r in range(16): k('v_mov_b32 v%d, 0' % (16 + r))
        for i in range(8):
            k.wait(vm=xt[i])
            for j in range(4):
                r = 80 + 4 * i + j
                tt = 32 + 2 * (j & 1)
                k('v_lshlrev_b32 v%d, 16, v%d' % (tt, r))
                k('v_and_b32 v%d, s62, v%d' % (tt + 1, r))
                k('v_pk_add_f32 %s, %s, %s' % (v(16 + 2 * j, 2), v(16 + 2 * j, 2), v(tt, 2)))
                k('v_pk_fma_f32 %s, %s, %s, %s' % (v(24 + 2 * j, 2), v(tt, 2), v(tt, 2), v(24 + 2 * j, 2)))
        for pat in ('row_ror:4', 'row_ror:8'):
            for r in range(16): k('v_add_f32_dpp v%d, v%d, v%d %s row_mask:0xf bank_mask:0xf' % (16 + r, 16 + r, 16 + r, pat))
        for i in range(4): k.ds('ds_write_b128 v3, %s offset:%d' % (v(16 + 4 * i, 4), 16384 * ps + 16 * i))
        k.wait_all(vm=False)
        k.barrier()
        k('s_cmp_lg_u32 s50, 0')
        k('s_cbranch_scc1 L_st%d' % ps)
        for q in range(8):
            raw(k, 'ds_read_b32 v%d, v4 offset:%d' % (16 + 2 * q, 16384 * ps + 1024 * q))
            raw(k, 'ds_read_b32 v%d, v4 offset:%d' % (17 + 2 * q, 16384 * ps + 1024 * q + 32))
        k('s_waitcnt lgkmcnt(0)')
        for q in range(1, 8): k('v_pk_add_f32 v[16:17], v[16:17], %s' % v(16 + 2 * q, 2))
        k('v_mov_b64 v[18:19], v[16:17]')
        k('v_permlane32_swap_b32 v16, v18')
        k('v_permlane32_swap_b32 v17, v19')
        k('v_pk_add_f32 v[16:17], v[16:17], v[18:19]')
        k('v_mul_f32 v16, %s, v16' % f32(1.0 / 512))
        k('v_mul_f32 v17, %s, v17' % f32(1.0 / 512))
        k('v_fma_f32 v17, -v16, v16, v17')
        k('v_max_f32 v17, 0, v17')
        k('v_add_f32 v17, %s, v17' % f32(1e-5))
        k('v_rsq_f32 v17, v17')
        k('v_mul_f32 v17, %s, v17' % f32(-LOG2E))
        raw(k, 'global_store_dwordx2 v6, v[16:17], s[70:71]' + SC)
        k('L_st%d:' % ps)
    for ks in range(28):
        for op in w2_ops(k, ks): op()
    poll(k, 'sf3a', [F3L(0)], ['v_cmp_ne_u32 vcc, s81, v72'])
    k('L_join:')
    k.stamp(1)
    k.reset_counters()
    htok.clear()
    HA0 = E('HA0', 12)
    for s_ in range(HA0): hload(0, s_)
    k('s_waitcnt vmcnt(%d)' % HA0)
    k.barrier()
    signal(k, 'f3b', O_F3, 73, 74, nrep=1, sidx=10)
    for s_ in range(HA0, 28): hload(0, s_)
    for q in range(2): k.ds('ds_read_b128 %s, v117 offset:%d' % (v(96 + 4 * q, 4), 32 * q))
    for r in range(16): k('v_mov_b32 v%d, 0' % (80 + r))
    k('v_add_u32 v115, 0x100000, v116')
    for ps in range(2):
        for q in range(2):
            for r in range(4): trs = k.vm('global_load_short_d16_hi v%d, v%d, s[20:21] offset:%d%s' % (80 + 8 * ps + 4 * q + r, 116 - ps, (8 * q + r) * 64, LD_SC))
    k('v_add_u32 v119, 0x100000, v118')
    FB = E('F3B_AT', 18); nh = [0]
    for ps in range(2):
        for s_ in range(28):
            k.wait(vm=htok[ps, s_])
            if ps == 0 and s_ == max(0, FB - E('F3B_D', 12)): sync_issue(k, 'f3b', F3L(1))
            if ps == 0 and s_ == FB:
                sync_check(k, 'f3b', [F3L(1)], ['v_cmp_ne_u32 vcc, s81, v72'])
                k.barrier()
                k.stamp(5)
            for j in range(2):
                k('v_mfma_f32_32x32x16_bf16 %s, %s, %s, %s' % (v(ACC + 16 * j, 16), w2reg(s_)[j], a(4 * s_, 4), '0' if s_ == 0 else v(ACC + 16 * j, 16)))
                if ps == 0 and s_ >= FB:
                    for _ in range(2):
                        if nh[0] < s_ + j: hload(1, nh[0]); nh[0] += 1
        while ps == 0 and nh[0] < 28: hload(1, nh[0]); nh[0] += 1
        for q in range(8): k.ds('ds_write_b128 v120, %s offset:%d' % (v(ACC + 4 * q, 4), 32768 * ps + q * 1024))
        k.wait_all(vm=False)
        k.barrier()
        rt_ = []
        for w_ in range(4):
            for q in range(2): t = k.ds('ds_read_b128 %s, v121 offset:%d' % (v(48 + 8 * w_ + 4 * q, 4), 32768 * ps + w_ * 8192 + q * 1024))
            rt_.append(t)
        k.wait(ds=rt_[1])
        for p in range(4): k('v_pk_add_f32 %s, %s, %s' % (v(48 + 2 * p, 2), v(48 + 2 * p, 2), v(56 + 2 * p, 2)))
        k.wait(ds=rt_[3])
        for p in range(4): k('v_pk_add_f32 %s, %s, %s' % (v(64 + 2 * p, 2), v(64 + 2 * p, 2), v(72 + 2 * p, 2)))
        k.wait(vm=trs)
        for p in range(4):
            k('v_pk_add_f32 %s, %s, %s' % (v(48 + 2 * p, 2), v(48 + 2 * p, 2), v(64 + 2 * p, 2)))
            k('v_pk_fma_f32 %s, %s, %s, %s' % (v(48 + 2 * p, 2), v(48 + 2 * p, 2), v(96 + 2 * p, 2), v(80 + 8 * ps + 2 * p, 2)))
            k('v_cvt_pk_bf16_f32 v%d, v%d, v%d' % (104 + 4 * ps + p, 48 + 2 * p, 49 + 2 * p))
        b = 104 + 4 * ps
        k('v_permlane32_swap_b32 v%d, v%d' % (b, b + 2))
        k('v_permlane32_swap_b32 v%d, v%d' % (b + 1, b + 3))
        k.vm('global_store_dwordx4 v%d, %s, s[24:25]' % (118 + ps, v(b, 4)))

def build_single(path):
    k = Kern(NAME + '_kernel')
    phase0(k); conv_phase(k); mlp_phase(k)
    k.end()
    k('L_end:')
    k('s_endpgm')
    launch, (vg_, sg_, ac) = 'grid=(256,1,1) block=(256,1,1) lds=%d' % LDS_TOTAL, (512, 84, 256)
    out = [HEADER.rstrip(), '; @launch ' + launch, '.amdgcn_target "amdgcn-amd-amdhsa--gfx950"', k.text(vg_, sg_, ac), '.text\nL_text_end:\n    s_endpgm']
    print(k.name, k.stats)
    open(path, 'w').write('\n'.join(out) + '\n')

if __name__ == '__main__':
    build_single(sys.argv[1] if len(sys.argv) > 1 else ('diag.s' if DIAG else 'cdna_kernels/%s.s' % NAME))
```

```python
import re, os
DIAG = int(os.environ.get('DIAG', '0'))
DIAGSET = int(os.environ.get('DIAGSET', '1'))

REG_RE = re.compile(r'^(-|abs\()?\|?([vas])(?:(\d+)|\[(\d+):(\d+)\])\|?\)?$')
TRANS = ('v_exp_f32', 'v_log_f32', 'v_rcp_f32', 'v_rsq_f32', 'v_sqrt_f32', 'v_sin_f32', 'v_cos_f32')

def regs_of(tok):
    tok = tok.strip()
    if tok in ('vcc',): return {('s', 106), ('s', 107)}
    if tok == 'vcc_lo': return {('s', 106)}
    if tok == 'exec': return {('s', 126), ('s', 127)}
    if tok == 'm0': return {('s', 124)}
    m = REG_RE.match(tok)
    if not m: return set()
    f = m.group(2)
    if m.group(3) is not None: return {(f, int(m.group(3)))}
    return {(f, i) for i in range(int(m.group(4)), int(m.group(5)) + 1)}

def split_ops(s):
    ops, depth, cur = [], 0, ''
    for ch in s:
        if ch in '[(': depth += 1
        if ch in '])': depth -= 1
        if ch == ',' and depth == 0:
            ops.append(cur.strip()); cur = ''
        else: cur += ch
    if cur.strip(): ops.append(cur.strip())
    return ops

class Ins:
    def __init__(self, text):
        self.text = text
        t = text.split(';')[0].strip()
        parts = t.split(None, 1)
        self.mn = parts[0]
        rest = parts[1] if len(parts) > 1 else ''
        ops = split_ops(rest)
        mods = ''
        if ops:
            lp = ops[-1].split(None, 1)
            if len(lp) > 1 and not lp[0].endswith(':'):
                ops[-1] = lp[0]; mods = lp[1]
        self.ops, self.mods = ops, mods
        mn = self.mn
        self.mfma = mn.startswith('v_mfma')
        self.valu = mn.startswith('v_') and not self.mfma
        self.trans = any(mn.startswith(x) for x in TRANS)
        self.dot = mn.startswith('v_dot')
        self.vmem = mn.startswith('buffer_') or mn.startswith('global_')
        self.ds = mn.startswith('ds_')
        self.salu = mn.startswith('s_')
        self.dpp = '_dpp' in mn or 'quad_perm' in mods or 'row_' in mods
        self.perml = mn.startswith('v_permlane')
        self.rdlane = mn.startswith('v_readfirstlane') or mn.startswith('v_readlane')
        self.ldsdma = self.vmem and (' lds' in (' ' + mods) or '_lds_' in mn)
        self.passes = 0
        R = [regs_of(o) for o in ops]
        w, r = set(), set()
        self.srcc = set(); self.ab = set()
        if self.mfma:
            self.passes = 8 if '32x32x16' in mn else 4 if '16x16x32' in mn else None
            assert self.passes, mn
            w = R[0]; self.ab = R[1] | R[2]; self.srcc = R[3]; r = self.ab | self.srcc
        elif self.valu:
            if self.perml and 'swap' in mn:
                w = R[0] | R[1]; r = R[0] | R[1]
            elif mn.startswith('v_cmp'):
                w = R[0]; r = set().union(*R[1:])
            elif mn.startswith(('v_add_co', 'v_sub_co', 'v_addc_co', 'v_subb_co', 'v_subrev_co')):
                w = R[0] | R[1]; r = set().union(*R[2:])
            else:
                w = R[0]; r = set().union(*R[1:]) if len(R) > 1 else set()
                if mn.startswith(('v_fmac', 'v_dot2c', 'v_pk_fmac', 'v_writelane')) or self.dpp or 'sdwa' in mn: r = r | R[0]
        elif self.ds:
            if mn.startswith(('ds_read', 'ds_bpermute', 'ds_permute', 'ds_swizzle')):
                w = R[0]; r = set().union(*R[1:])
            else:
                r = set().union(*R)
        elif self.vmem:
            if 'load' in mn and not self.ldsdma:
                w = R[0]; r = set().union(*R[1:])
            else:
                r = set().union(*R) if R else set()
            if self.ldsdma: r = r | {('s', 124)}
        elif self.salu:
            if mn.startswith(('s_cmp', 's_cbranch', 's_branch', 's_waitcnt', 's_barrier', 's_nop', 's_endpgm', 's_setprio', 's_sleep', 's_bitcmp')):
                r = set().union(*R) if R else set()
            else:
                w = R[0] if R else set(); r = set().union(*R[1:]) if len(R) > 1 else set()
                if 'saveexec' in mn: w = w | regs_of('exec')
        self.w, self.r = w, r
        if mn.startswith('v_pk_') and 'f32' in mn:
            m_ = re.search(r'op_sel:\[(\d),(\d)', mods)
            assert not (m_ and m_.group(2) == '1' and ops[2].startswith('v')), 'erratum: op_sel[1]=1 on VGPR src1: ' + text
        self.widestore = self.vmem and 'store' in mn and ('x4' in mn or 'x3' in mn)
        self.storedata = set()
        if self.widestore:
            self.storedata = R[0] if mn.startswith('buffer_') else R[1]
        self.states = 1
        if mn == 's_nop': self.states = int(ops[0], 0) + 1

def vg(s): return {x for x in s if x[0] in 'va'}
def sg(s): return {x for x in s if x[0] == 's'}

def need(p, c):
    n = 0
    pw, cw, cr = p.w, c.w, c.r
    if p.valu:
        if c.mfma and vg(pw) & cr: n = max(n, 2)
        if p.trans and (vg(pw) & cr) and not c.trans: n = max(n, 1)
        if sg(pw):
            if (c.valu or c.mfma) and sg(pw) & cr: n = max(n, 4 if c.rdlane else 2)
            if c.vmem and sg(pw) & cr: n = max(n, 5)
            if c.salu and sg(pw) & cr: n = max(n, 1)
        if c.rdlane and vg(pw) & cr: n = max(n, 1)
        if (c.dpp or c.perml) and vg(pw) & cr: n = max(n, 2)
        if p.dot and (vg(pw) & (cr | cw)):
            same = c.mn == p.mn
            if same:
                others = set()
                Rr = [regs_of(o) for o in c.ops]
                others = Rr[1] | Rr[2]
                if vg(pw) & others: n = max(n, 3)
            else: n = max(n, 3)
        if 'sdwa' in p.mn and c.valu and vg(pw) & (cr | cw): n = max(n, 1)
    if p.mfma:
        big = {4: 8, 8: 12}[p.passes]
        if c.mfma:
            if pw & c.ab: n = max(n, big)
            if pw & c.srcc:
                if not (c.srcc == pw and c.passes == p.passes): n = max(n, p.passes + 2)
            elif pw & cw and not (cw == pw and c.passes == p.passes): n = max(n, p.passes + 2)
        elif c.valu or c.vmem or c.ds:
            if pw & (cr | cw): n = max(n, big)
        if c.valu and p.srcc & cw: n = max(n, p.passes - 1)
        if (c.vmem or c.ds) and p.srcc & cw: n = max(n, p.passes - 1)
    if p.salu and ('s', 124) in pw and (c.ldsdma): n = max(n, 1)
    if p.widestore and p.storedata & cw: n = max(n, 2)
    return n

def fix_hazards(lines):
    out = []
    hist = []
    for ln in lines:
        s = ln.split(';')[0].strip()
        if not s or s.startswith('.') :
            out.append(ln); continue
        if s.endswith(':'):
            out.append(ln); continue
        c = Ins(ln)
        dist = 0; pad = 0
        for p in reversed(hist):
            nd = need(p, c)
            if nd > dist: pad = max(pad, nd - dist)
            dist += p.states
            if dist > 20: break
        while pad > 0:
            k = min(pad, 16)
            nop = Ins('s_nop %d' % (k - 1)); out.append('    s_nop %d' % (k - 1)); hist.append(nop); pad -= k
        out.append(ln); hist.append(c)
        if c.mn in ('s_endpgm', 's_branch'): hist = []
        if len(hist) > 40: hist = hist[-30:]
    return out

class Kern:
    def __init__(self, name):
        self.name = name; self.lines = []; self.kidx = int(name[1]) - 1 if name[1].isdigit() else 0
        self.nvm = 0; self.nds = 0; self.vm_done = 0; self.ds_done = 0
        if DIAG:
            for i in range(8): self.lines.append('    s_mov_b64 s[%d:%d], 0' % (84 + 2 * i, 85 + 2 * i))
            self.stamp(0)
        self.nvm = 0; self.nds = 0; self.vm_done = 0; self.ds_done = 0
    def __call__(self, s):
        for l in s.split('\n'):
            l = l.strip()
            if not l: continue
            if l.endswith(':') or l.startswith('.'): self.lines.append(l)
            else:
                mn = l.split()[0]
                assert not (mn.startswith('buffer_') or mn.startswith('global_') or mn.startswith('ds_')), 'use vm()/ds(): ' + l
                self.lines.append('    ' + l)
    def stamp3(self, i):
        if DIAGSET == 3: self.stamp(i, True)
    def stamp2(self, i):
        if DIAGSET == 2: self.stamp(i, True)
    def stamp(self, i, force=False):
        if DIAG and (force or DIAGSET == 1 or i in (0, 15)):
            self.lines.append('    s_memrealtime s[100:101]')
            self.lines.append('    s_waitcnt lgkmcnt(0)')
            self.lines.append('    s_mov_b32 s%d, s100' % (84 + i))
            self.ds_done = self.nds
    def end(self):
        if DIAG:
            L = self.lines
            L.append('    s_waitcnt vmcnt(0) lgkmcnt(0)')
            self.stamp(15)
            L.append('    s_mov_b64 exec, -1')
            if DIAG == 2:
                L.append('    s_mov_b64 exec, 1')
                L.append('    v_mov_b32 v1, 0')
                for n, i in enumerate([2, 4, 7, 9, 10, 11, 12, 13, 14, 1, 15]):
                    L.append('    s_sub_u32 s100, s%d, s81' % (84 + i))
                    L.append('    v_mov_b32 v2, s100')
                    L.append('    s_nop 1')
                    L.append('    global_atomic_umax v1, v2, s[46:47] offset:%d' % (4 * (n + 1)))
                    L.append('    s_nop 1')
                L.append('    s_endpgm')
                return
            L.append('    v_lshrrev_b32 v1, 6, v0')
            L.append('    v_lshl_add_u32 v1, s2, 3, v1')
            L.append('    v_lshlrev_b32 v1, 6, v1')
            L.append('    v_add_u32 v1, 0x%x, v1' % (0x4000000 + self.kidx * 0x100000))
            for i in range(16):
                L.append('    v_mov_b32 v2, s%d' % (84 + i))
                L.append('    s_nop 1')
                L.append('    global_store_dword v1, v2, s[48:49] offset:%d' % (4 * i))
                L.append('    s_nop 1')
        self.lines.append('    s_endpgm')
    def reset_counters(self):
        self.nvm = self.nds = self.vm_done = self.ds_done = 0
    def vm(self, s):
        self.lines.append('    ' + s); self.nvm += 1; return self.nvm
    def ds(self, s):
        self.lines.append('    ' + s); self.nds += 1; return self.nds
    def wait(self, vm=None, ds=None):
        parts = []
        if vm is not None and vm > self.vm_done:
            n = min(self.nvm - vm, 63); parts.append('vmcnt(%d)' % n); self.vm_done = self.nvm - n
        if ds is not None and ds > self.ds_done:
            n = min(self.nds - ds, 15); parts.append('lgkmcnt(%d)' % n); self.ds_done = self.nds - n
        if parts: self.lines.append('    s_waitcnt ' + ' '.join(parts))
    def wait_all(self, vm=True, ds=True):
        parts = []
        if vm: parts.append('vmcnt(0)'); self.vm_done = self.nvm
        if ds: parts.append('lgkmcnt(0)'); self.ds_done = self.nds
        self.lines.append('    s_waitcnt ' + ' '.join(parts))
    def smem_wait(self):
        self.lines.append('    s_waitcnt lgkmcnt(0)'); self.ds_done = self.nds
    def barrier(self):
        self.lines.append('    s_barrier')
    def text(self, vgpr, sgpr, accum):
        if DIAG: sgpr = 102
        body = fix_hazards(self.lines)
        if int(os.environ.get('ALIGN', '1')): body = align_pass(body)
        head = ['.text', '.globl %s' % self.name, '.p2align 8', '.type %s,@function' % self.name, '%s:' % self.name]
        desc = ['.section .rodata,"a"', '.p2align 6', '.amdhsa_kernel %s' % self.name,
                '  .amdhsa_next_free_vgpr %d' % vgpr, '  .amdhsa_next_free_sgpr %d' % sgpr, '  .amdhsa_accum_offset %d' % accum,
                '  .amdhsa_group_segment_fixed_size 0', '  .amdhsa_kernarg_size 136', '  .amdhsa_user_sgpr_count 2',
                '  .amdhsa_user_sgpr_kernarg_segment_ptr 1', '  .amdhsa_system_sgpr_workgroup_id_x 1', '.end_amdhsa_kernel']
        lastw = {}
        for ln in body:
            t_ = ln.split(';')[0].strip()
            if not t_ or t_.startswith('.') or t_.endswith(':'): continue
            i = Ins(ln)
            if i.vmem or i.mn.startswith('s_load'):
                for o in (i.ops if i.vmem else i.ops[1:2]):
                    m = re.match(r's\[(\d+):(\d+)\]$', o)
                    if m and int(m.group(1)) > 1:
                        lo, hi = int(m.group(1)), int(m.group(2))
                        whi, wlo = lastw.get(hi, '?'), lastw.get(lo, '?')
                        okh = whi.startswith(('s_addc_u32', 's_load', 's_getpc', 's_cselect', 's_mov'))
                        okl = wlo.startswith(('s_add_u32', 's_load', 's_getpc', 's_cselect', 's_mov'))
                        assert okh and okl, ('bad base', ln, wlo, whi)
            for f, n in i.w:
                if f == 's': lastw[n] = t_
        mv = ma = ms = -1
        for ln in body:
            s = ln.split(';')[0].strip()
            if not s or s.startswith('.') or s.endswith(':'): continue
            i = Ins(ln)
            for f, n in i.w | i.r:
                if f == 'v': mv = max(mv, n)
                elif f == 'a': ma = max(ma, n)
                elif n < 102: ms = max(ms, n)
        assert mv < accum, (self.name, mv, accum)
        assert accum + ma + 1 <= vgpr or ma < 0, (self.name, ma, accum, vgpr)
        assert mv < vgpr and ms < sgpr, (self.name, mv, ms)
        self.stats = (mv, ma, ms, len(body))
        return '\n'.join(head + body + desc)

def v(n, c=1): return 'v%d' % n if c == 1 else 'v[%d:%d]' % (n, n + c - 1)
def a(n, c=1): return 'a%d' % n if c == 1 else 'a[%d:%d]' % (n, n + c - 1)
def s(n, c=1): return 's%d' % n if c == 1 else 's[%d:%d]' % (n, n + c - 1)
import struct
def f32(x): return '0x%08x' % struct.unpack('<I', struct.pack('<f', x))[0]

import subprocess, tempfile
WIDEN = ('v_mov_b32', 'v_add_u32', 'v_sub_u32', 'v_and_b32', 'v_or_b32', 'v_xor_b32', 'v_lshlrev_b32', 'v_lshrrev_b32', 'v_add_f32', 'v_mul_f32',
         'v_max_f32', 'v_min_u32', 'v_exp_f32', 'v_rcp_f32', 'v_rsq_f32', 'v_cvt_f32_u32', 'v_fract_f32', 'v_sin_f32', 'v_cos_f32', 'v_mul_u32_u24',
         'v_fmac_f32', 'v_cndmask_b32', 'v_mov_b64', 'v_sub_f32')
def align_pass(lines, nopcost=4.0):
    src = '.amdgcn_target "amdgcn-amd-amdhsa--gfx950"\n.text\n' + '\n'.join(lines) + '\nL_text_end:\n s_endpgm\n'
    d = tempfile.mkdtemp()
    open(d + '/a.s', 'w').write(src)
    r = subprocess.run(['clang', '-x', 'assembler', '-target', 'amdgcn-amd-amdhsa', '-mcpu=gfx950', '-c', d + '/a.s', '-o', d + '/a.o'], capture_output=True, text=True)
    assert r.returncode == 0, r.stderr[:2000]
    o = subprocess.run(['llvm-objdump', '-d', '--mcpu=gfx950', d + '/a.o'], capture_output=True, text=True).stdout
    sizes = []
    for l in o.split('\n'):
        m = re.search(r'// [0-9A-F]{12}: ((?:[0-9A-F]{8} ?)+)', l)
        if m: sizes.append(4 * len(m.group(1).split()))
    idx = [i for i, l in enumerate(lines) if (lambda s_: s_ and not s_.startswith('.') and not s_.endswith(':'))(l.split(';')[0].strip())]
    assert len(sizes) == len(idx) + 1, (len(sizes), len(idx))
    n = len(idx)
    INF = 1e18
    cost = [[INF, INF] for _ in range(n + 1)]; back = [[None, None] for _ in range(n + 1)]
    cost[0][0] = 0
    for i in range(n):
        mn = lines[idx[i]].split()[0]
        sz = sizes[i]
        for p in (0, 1):
            c0 = cost[i][p]
            if c0 >= INF: continue
            opts = []
            for nop in (0, 1):
                q = p ^ nop; cn = c0 + nop * nopcost
                if sz == 4:
                    opts.append((q ^ 1, cn, nop, 0))
                    if mn in WIDEN: opts.append((q, cn + (1 if q else 0) + 0.01, nop, 1))
                else:
                    opts.append((q ^ ((sz // 4) & 1), cn + (1 if q else 0), nop, 0))
            for q2, c2, nop, wd in opts:
                if c2 < cost[i + 1][q2]: cost[i + 1][q2] = c2; back[i + 1][q2] = (p, nop, wd)
    p = 0 if cost[n][0] <= cost[n][1] else 1
    dec = [None] * n
    for i in range(n, 0, -1):
        pp, nop, wd = back[i][p]; dec[i - 1] = (nop, wd); p = pp
    out = []; j = 0
    for i, l in enumerate(lines):
        if j < n and idx[j] == i:
            nop, wd = dec[j]; j += 1
            if nop: out.append('    s_nop 0')
            if wd:
                mn = l.split()[0]; l = l.replace(mn, mn + '_e64', 1)
        out.append(l)
    print('align: cost before', sum(1 for i in range(n) if sizes[i] == 8 and (sum(sizes[:i]) & 4)) if n < 6000 else '?', 'after', min(cost[n]))
    return out
```

```python
import os
from gen import *
E = lambda n, d: int(os.environ.get(n, str(d)))
WS_XG = 0x000000
WS_MODG = 0x820000
WS_FIN = 0x860000
WS_W1P = 0x1800000
WS_X1S = 0xB00000
WS_SYNC = 0xF00000
O_F2, O_F3 = 0x8000, 0xC000
L_T = 65536
L_CM = 98304; L_SC = 114688
L_STN = 118784; L_STX = 118784 + 8448 + 128
L_CV = 0; CHS = 21120
O_K1 = 4160; O_H = 8320; O_RED = 12928
L_X = 42240
L_W1 = 79872
NW1 = 16
L_SJ = L_W1 + NW1 * 4096
L_GS = L_SJ
LDS_TOTAL = L_SJ + 16384
O_FP = 0x6000
SC = ' sc1'
LD_SC = ' sc1'
TMO = 0x20000
SYNCW = 1
KSPLIT = E('KSPLIT', 1)

def raw(k, s_): k.lines.append('    ' + s_)

def retry_tail(k, name, loads, sleep=0):
    k('s_nop 0')
    k('s_cbranch_vccz L_%s_w' % name)
    k('s_add_u32 s80, s80, 1')
    k('s_cmp_gt_u32 s80, 0x%x' % TMO)
    k('s_cbranch_scc1 L_%s_w' % name)
    if sleep: k('s_sleep %d' % sleep)
    for l in loads: raw(k, l)
    k('s_branch L_%s_p' % name)
    k('L_%s_w:' % name)

def poll(k, name, loads, check):
    k('s_cmp_lg_u32 s50, %d' % SYNCW)
    k('s_cbranch_scc1 L_%s_w' % name)
    k('s_mov_b32 s80, 0')
    for l in loads: raw(k, l)
    k('L_%s_p:' % name)
    k('s_waitcnt vmcnt(0)')
    for c in check: k(c)
    retry_tail(k, name, loads, 1)
    k.barrier()

def signal(k, name, off, va, vd, nrep=8, sidx=None):
    k('s_cmp_lg_u32 s50, %d' % SYNCW)
    k('s_cbranch_scc1 L_%s_s' % name)
    if sidx is None:
        k('s_lshl_b32 s80, s2, 2')
        k('s_add_u32 s80, s80, 0x%x' % off)
    else:
        k('s_add_u32 s80, s%d, 0x%x' % (sidx, off))
    k('v_lshl_add_u32 v%d, v1, 10, s80' % va)
    k('v_mov_b32 v%d, s81' % vd)
    k('s_mov_b64 exec, %d' % ((1 << nrep) - 1))
    raw(k, 'global_store_dword v%d, v%d, s[14:15]%s' % (va, vd, SC))
    k('s_mov_b64 exec, -1')
    k('L_%s_s:' % name)

def chk_tags(regs, t):
    o = ['v_xor_b32 v%d, s81, v%d' % (t, regs[0])]
    for r in regs[1:]:
        o += ['v_xor_b32 v%d, s81, v%d' % (t + 1, r), 'v_or_b32 v%d, v%d, v%d' % (t, t, t + 1)]
    return o + ['v_cmp_ne_u32 vcc, 0, v%d' % t]

def phase0(k):
    load_ptrs(k)
    k('s_getpc_b64 s[82:83]')
    k('L_pf:')
    k('v_lshlrev_b32 v255, 7, v0')
    k('v_min_u32 v255, L_text_end-L_pf-4, v255')
    raw(k, 'global_load_dword v255, v255, s[82:83]')
    k('s_cmp_ge_u32 s2, 256')
    k('s_cbranch_scc1 L_end')
    k('s_memrealtime s[78:79]')
    wave_id(k, 50, 1)
    k('v_and_b32 v1, 63, v0')
    k('s_and_b32 s3, s2, 7')
    k('s_lshr_b32 s4, s2, 3')
    k('s_lshl_b32 s51, s2, 9')
    k('v_lshl_add_u32 v2, v0, 1, s51')
    for i in range(4, 11): k('v_mov_b32 v%d, 0' % i)
    k('s_lshr_b32 s52, s50, 1')
    k('s_lshl_b32 s53, s2, 1')
    k('s_add_u32 s53, s53, s52')
    k('s_lshl_b32 s54, s53, 1')
    k('v_mov_b32 v3, s54')
    k('v_lshrrev_b32 v77, 5, v0')
    k('v_and_b32 v78, 31, v0')
    k('v_lshlrev_b32 v78, 4, v78')
    k('v_lshl_add_u32 v79, v77, 10, v78')
    k('s_lshl_b32 s63, s2, 13')
    k('v_add_u32 v79, s63, v79')
    k.smem_wait()
    k('s_or_b32 s78, s78, 1')
    k('s_or_b32 s79, s2, s50')
    k('s_cmp_eq_u32 s79, 0')
    k('s_cbranch_scc0 L_nn')
    k('v_mov_b32 v250, s78')
    k('s_mov_b64 exec, 1')
    raw(k, 'global_store_dword v4, v250, s[%d:%d]%s' % (P_DBG, P_DBG + 1, SC))
    k('s_mov_b64 exec, -1')
    k('L_nn:')
    k.vm('global_load_short_d16_hi v10, v3, s[%d:%d]' % (P_LDT, P_LDT + 1))
    for i, p in enumerate((P_ARE, P_AIM, P_BRE, P_BIM, P_CRE, P_CIM)):
        tpar = k.vm('global_load_short_d16_hi v%d, v2, s[%d:%d]' % (4 + i, p, p + 1))
    k.vm('global_load_dwordx4 v[240:243], v79, s[%d:%d]' % (P_U, P_U + 1))
    tx = k.vm('global_load_dwordx4 v[244:247], v79, s[%d:%d] offset:512' % (P_U, P_U + 1))
    k('s_and_b32 s5, s4, 3')
    k('s_lshl_b32 s5, s5, 3')
    k('s_add_u32 s5, s5, s3')
    k('s_lshl_b32 s5, s5, 1')
    k('s_bfe_u32 s6, s4, 0x10002')
    k('s_add_u32 s5, s5, s6')
    k('s_lshr_b32 s6, s4, 3')
    k('s_cmp_ge_u32 s5, 48')
    k('s_cselect_b32 s7, 16, 0')
    k('s_add_u32 s7, s7, s5')
    k('s_lshl_b32 s7, s7, 6')
    k('s_lshl_b32 s8, s6, 2')
    k('s_add_u32 s8, s8, s50')
    k('s_mul_i32 s9, s8, %d' % (32 * 6144))
    k('s_add_u32 s7, s7, s9')
    k('v_lshrrev_b32 v250, 2, v1')
    k('v_mul_u32_u24 v254, 6144, v250')
    k('v_and_b32 v251, 3, v1')
    k('v_lshl_add_u32 v254, v251, 4, v254')
    k('s_lshl_b32 s9, s50, 12')
    k('s_add_u32 s9, s9, %d' % L_CM)
    add_ptr(k, 10, P_WMOD, 7)
    k('s_mov_b32 m0, s9')
    k.vm('global_load_lds_dwordx4 v254, s[10:11]')
    k('s_add_u32 s10, s10, %d' % (16 * 6144 - 1024))
    k('s_addc_u32 s11, s11, 0')
    k.vm('global_load_lds_dwordx4 v254, s[10:11] offset:1024')
    k('s_lshl_b32 s8, s8, 6')
    k('s_and_b32 s64, s4, 1')
    k('s_lshl_b32 s64, s64, 3')
    k('s_add_u32 s64, s64, s3')
    k('s_lshl_b32 s64, s64, 1')
    k('s_bfe_u32 s65, s4, 0x10001')
    k('s_add_u32 s64, s64, s65')
    k('s_lshr_b32 s65, s4, 2')
    k('s_cmp_ge_u32 s64, 16')
    k('s_cselect_b32 s66, 64, 48')
    k('s_add_u32 s66, s66, s64')
    k('s_lshl_b32 s66, s66, 6')
    k('s_lshl_b32 s67, s65, 2')
    k('s_add_u32 s67, s67, s50')
    k('s_mul_i32 s68, s67, %d' % (16 * 6144))
    k('s_add_u32 s66, s66, s68')
    add_ptr(k, 10, P_WMOD, 66)
    k('s_add_u32 m0, s9, 2048')
    tcm = k.vm('global_load_lds_dwordx4 v254, s[10:11]')
    k('s_lshl_b32 s67, s67, 5')
    k('s_sub_u32 s67, s67, 64')
    k('v_min_u32 v248, 23, v1')
    k('v_cmp_gt_u32 vcc, 16, v248')
    k('v_mov_b32 v250, s67')
    k('v_mov_b32 v251, s8')
    k('v_cndmask_b32 v250, v250, v251, vcc')
    k('v_lshl_add_u32 v248, v248, 2, v250')
    tc = k.vm('global_load_dword v248, v248, s[%d:%d]' % (P_C, P_C + 1))
    k('s_lshl_b32 s60, s2, 2')
    k('s_load_dword s30, s[%d:%d], s60' % (P_DSK, P_DSK + 1))
    if E('W1T', 0):
        k('s_and_b32 s75, s3, 1')
        k('s_mul_i32 s75, s75, 7')
        k('s_lshr_b32 s76, s4, 2')
        k('s_add_u32 s75, s75, s76')
        k('s_min_u32 s75, s75, 13')
        k('s_lshl_b32 s75, s75, 8')
        k('s_and_b32 s76, s4, 3')
        k('s_mul_i32 s76, s76, %d' % (128 * 3584))
        k('s_add_u32 s75, s75, s76')
        k('v_lshrrev_b32 v237, 1, v0')
        k('v_mul_u32_u24 v237, 3584, v237')
        k('v_and_b32 v238, 1, v0')
        k('v_lshl_add_u32 v237, v238, 7, v237')
        k('v_add_u32 v237, s75, v237')
        k.vm('global_load_dword a200, v237, s[%d:%d]' % (P_W1, P_W1 + 1))
    if E('W2T', 0):
        k('s_min_u32 s75, s2, 111')
        k('s_lshl_b32 s75, s75, 14')
        k('v_and_b32 v238, 127, v0')
        k('v_lshl_add_u32 v238, v238, 7, s75')
        k.vm('global_load_dword a201, v238, s[%d:%d]' % (P_W2, P_W2 + 1))
    k('s_cmp_lt_u32 s2, 112')
    k('s_cbranch_scc0 L_pj_w1')
    k('s_lshl_b32 s76, s2, 14')
    k('s_lshl_b32 s70, s50, 12')
    k('s_add_u32 s76, s76, s70')
    add_ptr(k, 72, P_W2, 76)
    k('s_add_u32 s31, s70, %d' % L_SJ)
    k('s_movk_i32 s79, 1024')
    for r in range(4):
        k('v_xor_b32 v%d, %d, v1' % (224 + r, r << 2))
        k('v_lshlrev_b32 v%d, 4, v%d' % (224 + r, 224 + r))
        if r: k('v_add_u32 v%d, %d, v%d' % (224 + r, 1024 * r, 224 + r))
    k('s_branch L_pj_go')
    k('L_pj_w1:')
    k('s_sub_u32 s75, s2, 112')
    k('s_min_u32 s75, s75, 111')
    k('s_and_b32 s26, s75, 7')
    k('s_lshr_b32 s27, s75, 3')
    k('s_lshl_b32 s75, s26, 4')
    k('s_add_u32 s75, s75, s50')
    k('s_mul_i32 s75, s75, %d' % (4 * 3584))
    k('s_lshl_b32 s76, s27, 8')
    k('s_add_u32 s75, s75, s76')
    add_ptr(k, 72, P_W1, 75)
    k('s_lshl_b32 s31, s50, 10')
    k('s_add_u32 s31, s31, %d' % L_SJ)
    k('s_movk_i32 s79, 4096')
    k('v_lshrrev_b32 v228, 4, v1')
    k('v_and_b32 v229, 15, v1')
    k('v_lshlrev_b32 v230, 2, v228')
    k('v_xor_b32 v230, v230, v229')
    k('v_mul_u32_u24 v224, 3584, v228')
    k('v_lshl_add_u32 v224, v230, 4, v224')
    for r in range(1, 4): k('v_add_u32 v%d, %d, v224' % (224 + r, r * 16 * 3584))
    k('L_pj_go:')
    def pkdma(r):
        k('s_mov_b32 m0, s31')
        k.tpk = k.vm('global_load_lds_dwordx4 v%d, s[72:73]' % (224 + r))
        k('s_add_u32 s31, s31, s79')
    if E('PKE', 0) == 0:
        for r in range(4): pkdma(r)
    k('s_and_b32 s75, s5, 15')
    k('s_lshl_b32 s75, s75, 13')
    k('s_lshr_b32 s76, s5, 4')
    k('s_lshl_b32 s76, s76, 6')
    k('s_add_u32 s75, s75, s76')
    k('s_lshl_b32 s76, s6, 3')
    k('s_add_u32 s75, s75, s76')
    k('s_and_b32 s76, s64, 15')
    k('s_lshl_b32 s76, s76, 13')
    k('s_lshr_b32 s77, s64, 4')
    k('s_lshl_b32 s77, s77, 7')
    k('s_add_u32 s76, s76, s77')
    k('s_lshl_b32 s77, s65, 3')
    k('s_add_u32 s76, s76, s77')
    k('s_add_u32 s76, s76, 256')
    k('s_cmp_eq_u32 s50, 0')
    k('s_cselect_b32 s75, s75, s76')
    ws_ptr(k, 16, WS_MODG, 75)
    k('v_mov_b32 v12, 0\nv_mov_b32 v13, 0\nv_mov_b32 v14, 0\nv_mov_b32 v15, 0')
    ws_ptr(k, 14, WS_SYNC)
    tr_addr32(k, 254, 1, 250, 251, 6, 8)
    k('v_add_u32 v254, s9, v254')
    k('v_and_b32 v40, 31, v1')
    k('v_lshrrev_b32 v41, 5, v1')
    k('v_lshrrev_b32 v253, 1, v40')
    k('v_lshlrev_b32 v253, 9, v253')
    k('v_and_b32 v250, 1, v40')
    k('s_add_u32 s75, s50, 5')
    k('v_lshlrev_b32 v250, s75, v250')
    k('v_add_u32 v253, v253, v250')
    k('v_mul_u32_u24 v11, 1056, v77')
    k('v_add_u32 v11, v11, v78')
    k('v_add_u32 v11, %d, v11' % L_STN)
    k('v_bfe_u32 v56, v1, 2, 3')
    k('v_mul_u32_u24 v236, 1056, v56')
    k('v_and_b32 v57, 3, v1')
    k('v_lshl_add_u32 v236, v57, 3, v236')
    k('v_mul_u32_u24 v57, %d, v41' % (L_STX - L_STN))
    k('v_add_u32 v236, v236, v57')
    k('s_lshl_b32 s75, s50, 8')
    k('s_add_u32 s75, s75, %d' % L_STN)
    k('v_add_u32 v236, s75, v236')
    k('v_and_b32 v57, 15, v1')
    k('v_lshlrev_b32 v235, 6, v57')
    k('v_lshrrev_b32 v57, 4, v1')
    k('v_lshl_add_u32 v235, v57, 4, v235')
    k('v_add_u32 v234, 0x1000, v235')
    k('s_lshl_b32 s75, s2, 15')
    k('s_lshl_b32 s76, s50, 13')
    k('s_add_u32 s75, s75, s76')
    ws_ptr(k, 12, WS_XG, 75)
    k('s_mov_b32 s58, 0xffff0000')
    k('s_mov_b32 s63, 0x3f803f80')
    k('v_lshlrev_b32 v249, 2, v0')
    k('v_add_u32 v249, %d, v249' % L_SC)
    k('v_lshlrev_b32 v233, 4, v41')
    k('s_lshl_b32 s75, s50, 8')
    k('s_add_u32 s75, s75, %d' % L_SC)
    k('v_add_u32 v233, s75, v233')
    k('s_lshl_b32 s75, s50, 10')
    k('v_lshl_add_u32 v252, v1, 2, s75')
    k('v_add_u32 v252, %d, v252' % (L_SC + 1024))
    k('s_lshl_b32 s55, s50, 14')
    k('v_lshl_add_u32 v16, v1, 2, s55')
    for r in range(1, 16): k('v_xor_b32 v%d, %d, v16' % (16 + r, r << 4))
    k('v_and_b32 v42, 15, v1')
    k('v_xor_b32 v42, v42, v41')
    k('v_lshlrev_b32 v42, 4, v42')
    k('v_lshl_add_u32 v42, v40, 8, v42')
    k('v_add_u32 v32, s55, v42')
    for ks in range(1, 8): k('v_xor_b32 v%d, %d, v32' % (32 + ks, ks << 5))
    k('s_mul_i32 s56, s52, 6912')
    k('s_add_u32 s56, s56, %d' % (L_T - 0x3F00 * 4))
    k('v_lshlrev_b32 v42, 3, v40')
    k('v_cvt_f32_u32 v42, v42')
    k('v_cvt_f32_u32 v43, v41')
    c0 = [0, 1, 2, 3, 256, 258, 260, 262]
    c1 = [4, 5, 6, 7, 512, 516, 768, 772]
    for r in range(8):
        k('v_fmamk_f32 v56, v43, %s, v42' % f32(c1[r] - c0[r]))
        if c0[r]: k('v_add_f32 v56, %s, v56' % f32(c0[r]))
        else: k('v_max_f32 v56, 0.5, v56')
        k('v_cvt_pk_bf16_f32 v56, v56, 0')
        k('v_lshl_add_u32 v%d, v56, 2, s56' % (44 + r))
    k('v_cmp_eq_u32 vcc, 32, v1')
    k('v_fmaak_f32 v57, 4.0, v42, %s' % f32(4096.0))
    k('v_mov_b32 v58, %s' % f32(2048.0))
    k('v_cndmask_b32 v58, v57, v58, vcc')
    k('v_cmp_lt_u32 vcc, 31, v1')
    for r in range(8, 12):
        k('v_add_f32 v56, %s, v42' % f32(1024 + 256 * (r - 8)))
        k('v_cndmask_b32 v56, v56, v%d, vcc' % (58 if r == 8 else 57))
        k('v_cvt_pk_bf16_f32 v56, v56, 0')
        k('v_lshl_add_u32 v%d, v56, 2, s56' % (44 + r))
    k('v_and_b32 v59, 127, v0')
    k('v_lshlrev_b32 v56, 4, v59')
    k('v_sub_u32 v56, 2047, v56')
    k('v_cvt_f32_u32 v57, v56')
    for i in range(17):
        if i: k('v_add_f32 v56, %s, v57' % f32(-float(i)))
        else: k('v_mov_b32 v56, v57')
        if i >= 15: k('v_max_f32 v56, 0.5, v56')
        k('v_cvt_pk_bf16_f32 v56, v56, 0')
        k('v_lshl_add_u32 v%d, v56, 2, s56' % (60 + i))
    k('s_mov_b32 s57, 0x07060302')
    k('s_mov_b32 s59, %s' % f32(LOG2E))
    lo_log2e = LOG2E - struct.unpack('<f', struct.pack('<f', LOG2E))[0]
    inv2pi = 1.0 / (2 * math.pi)
    inv2pi_f = struct.unpack('<f', struct.pack('<f', inv2pi))[0]
    k('s_mov_b32 s60, %s' % f32(inv2pi_f))
    k('s_mov_b32 s61, %s' % f32(inv2pi - inv2pi_f))
    k('s_mov_b32 s62, %s' % f32(lo_log2e))
    NL = 'global_load_dword v232, v12, s[%d:%d]%s' % (P_DBG, P_DBG + 1, SC)
    k.smem_wait()
    k.wait(vm=tpar)
    tn = k.vm(NL)
    k.stamp(2)
    k('v_mul_f32 v78, s59, v10')
    k('v_fma_f32 v79, v10, s59, -v78')
    k('v_fma_f32 v79, v10, s62, v79')
    k('v_exp_f32 v78, v78')
    k('v_mul_f32 v79, %s, v79' % f32(math.log(2.0)))
    k('v_fma_f32 v78, v78, v79, v78')
    k('v_cvt_pk_bf16_f32 v78, v78, v78')
    k('v_and_b32 v78, s58, v78')
    k('v_mul_f32 v4, v78, v4')
    k('v_mul_f32 v5, v78, v5')
    k('v_mul_f32 v152, v78, v6')
    k('v_mul_f32 v154, v78, v7')
    E0 = 96
    cmul1(k, E0, 8, 152); cmul2(k, E0, 8, 152)
    k('v_mul_f32 v4, s59, v4')
    Z1, Z256, Z8, Z128 = 80, 84, 152, 156
    def zpow(dst, p, conj, t):
        pf = f32(float(p))
        return ['v_mul_f32 v%d, %s, v4' % (t, pf), 'v_mul_f32 v%d, %s, v5' % (t + 1, pf), 'v_exp_f32 v%d, v%d' % (t, t),
                'v_mul_f32 v%d, s60, v%d' % (t + 2, t + 1), 'v_fma_f32 v%d, v%d, s60, -v%d' % (t + 3, t + 1, t + 2),
                'v_fma_f32 v%d, v%d, s61, v%d' % (t + 3, t + 1, t + 3), 'v_fract_f32 v%d, v%d' % (t + 2, t + 2),
                'v_add_f32 v%d, v%d, v%d' % (t + 2, t + 2, t + 3), 'v_cos_f32 v%d, v%d' % (t + 3, t + 2), 'v_sin_f32 v%d, v%d' % (t + 2, t + 2),
                'v_mul_f32 v%d, v%d, v%d' % (dst, t, t + 3), 'v_mul_f32 v%d, v%d, %sv%d' % (dst + 2, t, '-' if conj else '', t + 2)]
    for p_, q_ in ((zpow(Z1, 1, False, 88), zpow(Z256, 256, False, 92)), (zpow(Z8, 8, True, 88), zpow(Z128, 128, True, 92))):
        for x, y in zip(p_, q_): k(x); k(y)
    T0 = 140
    def split_a(e, i):
        t = T0 + 6 * (i & 1)
        if not KSPLIT:
            k('v_cvt_pk_bf16_f32 v%d, v%d, v%d' % (t + 4, e, e + 1)); return
        k('v_perm_b32 v%d, v%d, v%d, s57' % (t + 4, e + 1, e))
        k('v_and_b32 v%d, s58, v%d' % (t, e))
        k('v_and_b32 v%d, s58, v%d' % (t + 1, e + 1))
    def split_b(e, i, row):
        t = T0 + 6 * (i & 1)
        if not KSPLIT: return k.ds('ds_write_b32 v%d, v%d offset:%d' % (16 + (row & 15), t + 4, row * 256))
        k('v_pk_add_f32 %s, %s, %s neg_lo:[0,1] neg_hi:[0,1]' % (v(t + 2, 2), v(e, 2), v(t, 2)))
        k('v_cvt_pk_bf16_f32 v%d, v%d, v%d' % (t + 5, t + 2, t + 3))
        return k.ds('ds_write2st64_b32 v%d, v%d, v%d offset0:%d offset1:%d' % (16 + (row & 15), t + 4, t + 5, row, 32 + row))
    hi = {r: (r - 1, Z1) for r in range(1, 8)}
    hi.update({8: (0, Z256), 9: (2, Z256), 10: (4, Z256), 11: (6, Z256), 12: (8, Z256), 13: (10, Z256), 14: (12, Z256), 15: (13, Z256),
               16: (14, Z256), 17: (16, Z256), 18: (17, Z256), 19: (18, Z256), 20: (19, Z256)})
    order = [0, 1, 8, 2, 12, 3, 14, 4, 16, 5, 17, 6, 18, 7, 19, 9, 20, 10, 11, 13, 15]
    for i, r in enumerate(order):
        nxt = order[i + 1] if i + 1 < len(order) else None
        if nxt is not None: cmul1(k, E0 + 2 * nxt, E0 + 2 * hi[nxt][0], hi[nxt][1])
        split_a(E0 + 2 * r, i)
        if nxt is not None: cmul2(k, E0 + 2 * nxt, E0 + 2 * hi[nxt][0], hi[nxt][1])
        split_b(E0 + 2 * r, i, r)
    AH, AL = 160, 192
    for ks in range(8):
        k.ds('ds_read_b128 %s, v%d' % (v(AH + 4 * ks, 4), 32 + ks))
        if KSPLIT: k.ds('ds_read_b128 %s, v%d offset:8192' % (v(AL + 4 * ks, 4), 32 + ks))
    if E('PKE', 0) == 1:
        for r in range(4): pkdma(r)
    k('s_cmp_lt_u32 s2, 112')
    k('s_cbranch_scc0 L_pa_w1')
    tr_addr32(k, 224, 1, 250, 251, 10, 4)
    k('s_lshl_b32 s76, s50, 8')
    k('s_add_u32 s76, s76, %d' % L_SJ)
    k('v_add_u32 v224, s76, v224')
    k('v_bfe_u32 v251, v1, 2, 2')
    k('v_lshlrev_b32 v251, 6, v251')
    k('v_xor_b32 v224, v224, v251')
    for q in range(1, 4): k('v_xor_b32 v%d, %d, v224' % (224 + q, q << 6))
    k('s_mul_i32 s76, s50, %d' % (4 * 114688))
    k('s_lshl_b32 s75, s2, 10')
    k('s_add_u32 s76, s76, s75')
    ws_ptr(k, 70, WS_W2P, 76)
    k('s_mov_b32 s75, 114688')
    k('s_movk_i32 s76, 8192')
    k('s_branch L_pa_go')
    k('L_pa_w1:')
    tr_addr32(k, 224, 1, 250, 251, 8, 8)
    k('v_bfe_u32 v251, v1, 2, 2')
    k('v_xor_b32 v251, s50, v251')
    k('v_lshl_add_u32 v224, v251, 6, v224')
    k('v_add_u32 v224, %d, v224' % L_SJ)
    for q in range(1, 4): k('v_add_u32 v%d, %d, v224' % (224 + q, q * 4096))
    k('s_lshl_b32 s76, s27, 2')
    k('s_add_u32 s76, s76, s50')
    k('s_lshl_b32 s76, s76, 15')
    k('s_lshl_b32 s75, s26, 12')
    k('s_add_u32 s76, s76, s75')
    ws_ptr(k, 70, WS_W1P, 76)
    k('s_movk_i32 s75, 1024')
    k('s_movk_i32 s76, 1024')
    k('L_pa_go:')
    for q in range(4): k('v_add_u32 v%d, s76, v%d' % (228 + q, 224 + q))
    k('v_lshlrev_b32 v255, 4, v1')
    k('v_add_u32 v237, s75, v255')
    k('v_add_u32 v238, s75, v237')
    k('v_add_u32 v239, s75, v238')
    for i in range(4): k('v_mov_b32 v%d, 0' % (96 + i))
    k.wait(vm=tx)
    for i in range(2): k.ds('ds_write_b128 v11, %s offset:%d' % (v(240 + 4 * i, 4), (L_STX - L_STN) + 512 * i))
    for j in range(8):
        k('v_dot2c_f32_bf16 v%d, s63, v%d' % (96 + (j & 1), 240 + j))
        k('v_dot2c_f32_bf16 v%d, v%d, v%d' % (98 + (j & 1), 240 + j, 240 + j))
    k.wait(vm=tc)
    for ks in range(3):
        k.ds('ds_read_b64_tr_b16 %s, v254 offset:%d' % (v(128 + 4 * ks, 2), ks * 1024))
        k.ds('ds_read_b64_tr_b16 %s, v254 offset:%d' % (v(130 + 4 * ks, 2), ks * 1024 + 256))
    k('v_lshlrev_b32 v116, 16, v248')
    k('v_and_b32 v117, s58, v248')
    k('v_add_f32 v96, v96, v97')
    k('v_add_f32 v98, v98, v99')
    nm = 'v_mul_f32 v%%d, %s, v%%d' % f32(-LOG2E)
    silu = [nm % (118, 116), nm % (119, 117), 'v_exp_f32 v118, v118', 'v_exp_f32 v119, v119', 'v_add_f32 v118, 1.0, v118', 'v_add_f32 v119, 1.0, v119',
            'v_rcp_f32 v118, v118', 'v_rcp_f32 v119, v119', 'v_mul_f32 v116, v116, v118', 'v_mul_f32 v117, v117, v119', 'v_cvt_pk_bf16_f32 v116, v116, v117']
    for pat in ('quad_perm:[1,0,3,2]', 'quad_perm:[2,3,0,1]', 'row_half_mirror', 'row_mirror'):
        k(silu.pop(0)); k(silu.pop(0))
        k('v_add_f32_dpp v96, v96, v96 %s row_mask:0xf bank_mask:0xf' % pat)
        k('v_add_f32_dpp v98, v98, v98 %s row_mask:0xf bank_mask:0xf' % pat)
    k('v_mov_b32 v97, v96')
    k('v_mov_b32 v99, v98')
    while silu: k(silu.pop(0))
    k.ds('ds_write_b32 v249, v116')
    k('v_permlane16_swap_b32 v96, v97')
    k('v_permlane16_swap_b32 v98, v99')
    for ks in range(3): tsf = k.ds('ds_read_b128 %s, v233 offset:%d' % (v(116 + 4 * ks, 4), 32 * ks))
    k('v_add_f32 v96, v96, v97')
    k('v_add_f32 v98, v98, v99')
    k('v_mul_f32 v96, %s, v96' % f32(1.0 / 512))
    k('v_mul_f32 v98, %s, v98' % f32(1.0 / 512))
    k('v_fma_f32 v98, -v96, v96, v98')
    k('v_max_f32 v98, 0, v98')
    k('v_add_f32 v98, %s, v98' % f32(1e-5))
    k('v_rsq_f32 v100, v98')
    k('v_mul_f32 v101, v96, v100')
    for j in range(8):
        tt = 102 + 2 * (j & 1)
        k('v_lshlrev_b32 v%d, 16, v%d' % (tt, 240 + j))
        k('v_and_b32 v%d, s58, v%d' % (tt + 1, 240 + j))
        k('v_pk_fma_f32 %s, %s, v[100:101], v[100:101] op_sel:[0,0,1] op_sel_hi:[1,0,1] neg_lo:[0,0,1] neg_hi:[0,0,1]' % (v(tt, 2), v(tt, 2)))
        k('v_cvt_pk_bf16_f32 v%d, v%d, v%d' % (108 + j, tt, tt + 1))
    k.wait(ds=tsf)
    k('v_mfma_f32_32x32x16_bf16 a[64:79], v[116:119], v[128:131], 0')
    k('v_mfma_f32_32x32x16_bf16 a[80:95], v[124:127], v[136:139], 0')
    k('v_mfma_f32_32x32x16_bf16 a[64:79], v[120:123], v[132:135], a[64:79]')
    for i in range(2): k.ds('ds_write_b128 v11, %s offset:%d' % (v(108 + 4 * i, 4), 512 * i))
    k.wait(vm=tn)
    k('s_mov_b32 s80, 0')
    k('L_non_p:')
    k('s_waitcnt vmcnt(0)')
    k('v_cmp_eq_u32 vcc, 0, v232')
    retry_tail(k, 'non', [NL])
    k('v_readfirstlane_b32 s81, v232')
    k('s_nop 4')
    k.ds('ds_write_b32 v249, a80 offset:2048')
    k.ds('ds_write_b32 v249, a64 offset:1024')
    k.wait_all(vm=False)
    GR = [96 + 4 * q for q in range(8)]
    for q in range(8): k('v_mov_b32 v%d, v232\nv_mov_b32 v%d, v232' % (GR[q] + 2, GR[q] + 3))
    k.barrier()
    tq = [k.ds('ds_read_b64_tr_b16 %s, v236 offset:%d' % (v(GR[q], 2), 32 * q)) for q in range(8)]
    for i in range(4): tp = k.ds('ds_read_b32 v%d, v252 offset:%d' % (128 + i, 256 * i))
    for q in range(8):
        k.wait(ds=tq[q])
        k.vm('global_store_dwordx4 v%d, %s, s[12:13] offset:%d%s' % (235 - (q >> 2), v(GR[q], 4), 1024 * (q & 3), SC))
    k.wait(ds=tp)
    k('s_cmp_ge_u32 s50, 2')
    k('s_cbranch_scc1 L_cm2')
    k('v_add_f32 v128, v128, v129')
    k('v_add_f32 v130, v130, v131')
    k('v_add_f32 v128, v128, v130')
    k('v_mov_b32 v129, v232')
    raw(k, 'global_store_dwordx2 v253, v[128:129], s[16:17]' + SC)
    k('s_branch L_cm3')
    k('L_cm2:')
    k('v_and_b32 v130, 15, v1')
    k('s_lshl_b32 s75, s2, 6')
    k('v_lshl_add_u32 v130, v130, 2, s75')
    raw(k, 'global_store_dword v130, v12, s[14:15]' + SC)
    k('L_cm3:')
    for q in range(4):
        k.ds('ds_read_b64_tr_b16 %s, v%d' % (a(4 * q, 2), 224 + q))
        pt = k.ds('ds_read_b64_tr_b16 %s, v%d' % (a(4 * q + 2, 2), 228 + q))
    k.wait(ds=pt)
    k('s_cmp_ge_u32 s2, 224')
    k('s_cbranch_scc1 L_pk_no')
    for q in range(4): raw(k, 'global_store_dwordx4 v%d, %s, s[70:71]%s' % (255 if q == 0 else 236 + q, a(4 * q, 4), SC))
    k('L_pk_no:')
    k.tall = k.nvm
    k('s_nop 1')
    k.stamp(4)
    k('s_lshr_b32 s5, s3, 1')
    k('s_lshl_b32 s5, s5, 2')
    k('s_and_b32 s75, s4, 3')
    k('s_add_u32 s5, s5, s75')
    k('s_and_b32 s7, s3, 1')
    k('s_mul_i32 s7, s7, 7')
    k('s_lshr_b32 s75, s4, 2')
    k('s_add_u32 s7, s7, s75')
    k('s_min_u32 s7, s7, 13')
    k('s_lshl_b32 s6, s7, 2')
    k('s_add_u32 s6, s6, s50')
    eq = []
    L0 = 96
    k('v_mov_b32 v%d, 1.0' % L0)
    k('v_mov_b32 v%d, 0' % (L0 + 1))
    lo_order = []
    for m in range(16): lo_order += [m, 16 + m]
    def lreg(m): return L0 + 2 * m if m < 16 else 132 + 2 * (m & 1)
    def lsrc(m): return (lreg(m - 1), Z8) if m < 16 else (lreg(m - 16), Z128)
    for i, m in enumerate(lo_order):
        nxt = lo_order[i + 1] if i + 1 < len(lo_order) else None
        if nxt is not None: cmul1(k, lreg(nxt), *lsrc(nxt))
        split_a(lreg(m), i)
        if nxt is not None: cmul2(k, lreg(nxt), *lsrc(nxt))
        split_b(lreg(m), i, m)
        if eq and i % E('EQD', 4) == 0: eq.pop(0)()
    while eq: eq.pop(0)()
    ACC = 224
    bt = []
    k.wait_all(vm=False, ds=True)
    for ks in range(8):
        t = k.ds('ds_read_b128 %s, v%d' % (v(96 + 8 * ks, 4), 32 + ks))
        if KSPLIT: t = k.ds('ds_read_b128 %s, v%d offset:8192' % (v(100 + 8 * ks, 4), 32 + ks))
        bt.append(t)
    fill = []
    F = lambda x: fill.append(x)
    F('v_lshrrev_b32 v7, 3, v1'); F('v_and_b32 v8, 7, v1'); F('v_lshlrev_b32 v16, 15, v7'); F('v_lshl_add_u32 v16, v8, 4, v16')
    F('s_lshl_b32 s60, s50, 21\ns_lshl_b32 s61, s2, 7\ns_add_u32 s60, s60, s61\ns_add_u32 s62, s48, s60\ns_addc_u32 s63, s49, 0')
    assert WS_XG == 0
    for i in range(1, 8): F('v_add_u32 v%d, 0x%x, v16' % (16 + i, i * 262144) if i < 4 else 'v_add_u32 v%d, 0x%x, v16' % (20 + i, i * 262144))
    XA = [16, 17, 18, 19, 24, 25, 26, 27]
    F('v_lshlrev_b32 v21, 3, v1')
    F('s_lshl_b32 s60, s2, 9\ns_add_u32 s60, s60, 0x%x\ns_add_u32 s64, s48, s60\ns_addc_u32 s65, s49, 0' % WS_MODG)
    XD = [240, 244, 248, 252, 80, 84, 88, 92]
    k.XD = XD
    k.XL = ['global_load_dwordx4 %s, v%d, s[62:63]%s' % (v(XD[i], 4), XA[i], SC) for i in range(8)] + ['global_load_dwordx2 v[22:23], v21, s[64:65]' + SC]
    F('s_or_b32 s66, s55, 0x4000'); F('v_lshl_add_u32 v3, v1, 4, s66')
    F('s_mul_i32 s55, s52, %d\ns_add_u32 s55, s55, %d' % (CHS, L_CV)); F('v_lshl_add_u32 v2, v59, 5, s55')
    XAT = E('XAT', 0)
    if XAT == 0:
        for x in k.XL: F('VM ' + x)
    def emit_fill():
        x = fill.pop(0)
        if x.startswith('VM '): k.vm(x[3:])
        else: k(x)
    for ks in range(8):
        k.wait(ds=bt[ks])
        c = '0' if ks == 0 else v(ACC, 16)
        ms = [(AH + 4 * ks, 96 + 8 * ks)] + ([(AH + 4 * ks, 100 + 8 * ks), (AL + 4 * ks, 96 + 8 * ks)] if KSPLIT else [])
        for x, y in ms:
            k('v_mfma_f32_32x32x16_bf16 %s, %s, %s, %s' % (v(ACC, 16), v(x, 4), v(y, 4), c)); c = v(ACC, 16)
            for _ in range(2 if KSPLIT else 4):
                if fill: emit_fill()
    while fill: emit_fill()
    k('s_nop 7\ns_nop 3')
    k('s_bitcmp1_b32 s50, 0')
    k('s_cbranch_scc0 L_kg_a')
    for i in range(3): k.ds('ds_write_b128 v3, %s offset:%d' % (v(ACC + 4 * i, 4), 1024 * i))
    k.wait_all(vm=False)
    k('L_kg_a:')
    k('s_waitcnt vmcnt(%d)' % (k.nvm - k.tall))
    k.barrier()
    signal(k, 'fp', O_FP, 28, 29)
    k('s_bitcmp1_b32 s50, 0')
    if XAT == 1:
        for x in k.XL: k.vm(x)
    k('s_cbranch_scc1 L_kg_b')
    for i in range(3): k.ds('ds_read_b128 %s, v3 offset:%d' % (v(96 + 4 * i, 4), 1024 * i))
    k.wait_all(vm=False)
    for i in range(6): k('v_pk_add_f32 %s, %s, %s' % (v(96 + 2 * i, 2), v(96 + 2 * i, 2), v(ACC + 2 * i, 2)))
    for r in range(12): k.ds('ds_write_b32 v%d, v%d' % (44 + r, 96 + r))
    k.wait_all(vm=False)
    k('L_kg_b:')
    k.barrier()
    k('v_cmp_eq_u32 vcc, 127, v59')
    G = 96
    gt = [k.ds('ds_read_b32 v%d, v%d' % (G + i, 60 + i)) for i in range(17)]
    conv_setup(k)
    k.wait(ds=gt[-1])
    k('v_cmp_eq_u32 vcc, 127, v59')
    k('v_cndmask_b32 v%d, v%d, v12, vcc' % (G + 16, G + 16))
    for i in range(8): k('v_cvt_pk_bf16_f32 v%d, v%d, v%d' % (120 + i, G + 2 * i, G + 2 * i + 1))
    for i in range(8): k('v_cvt_pk_bf16_f32 v%d, v%d, v%d' % (128 + i, G + 2 * i + 1, G + 2 * i + 2))
    k.ds('ds_write_b128 v2, v[120:123]')
    k.ds('ds_write_b128 v2, v[124:127] offset:16')
    k.ds('ds_write_b128 v2, v[128:131] offset:%d' % O_K1)
    k.ds('ds_write_b128 v2, v[132:135] offset:%d' % (O_K1 + 16))
    k('v_lshlrev_b32 v2, 4, v1')

def conv_setup(k):
    k('s_and_b32 s54, s50, 1')
    k('v_lshlrev_b32 v11, 4, v1')
    k('v_and_b32 v5, 15, v1')
    k('v_lshrrev_b32 v6, 4, v1')
    k('s_mul_i32 s59, s54, %d' % O_K1)
    k('s_add_u32 s59, s59, s55')
    k('v_lshl_add_u32 v14, v5, 2, s59')
    k.ds('ds_write_b32 v14, v12 offset:4096')
    k('v_lshl_add_u32 v14, v1, 3, s55')
    k.ds('ds_write_b64 v14, v[12:13] offset:%d' % O_H)
    k('v_lshrrev_b32 v9, 2, v8')
    k('v_bfe_u32 v10, v8, 1, 1')
    k('v_mul_u32_u24 v20, %d, v9' % CHS)
    k('v_add_u32 v20, %d, v20' % (L_CV + O_H + 512))
    k('v_lshlrev_b32 v14, 12, v9')
    k('v_add_u32 v14, %d, v14' % L_X)
    k('v_cmp_eq_u32 vcc, 1, v10')
    k('v_and_b32 v15, 1, v8')
    k('v_cndmask_b32 v20, v20, v14, vcc')
    k('v_lshl_add_u32 v20, v15, 3, v20')
    k('v_lshl_add_u32 v20, v7, 4, v20')
    k('s_lshl_b32 s60, s50, 10')
    k('v_add_u32 v20, s60, v20')
    k('s_lshl_b32 s76, s54, 10')
    k('s_add_u32 s77, s76, s55')
    k('v_lshlrev_b32 v15, 5, v5')
    k('v_lshl_add_u32 v15, v6, 3, v15')
    k('v_add_u32 v193, s77, v15')
    k('s_lshl_b32 s77, s52, 12')
    k('s_add_u32 s76, s76, s77')
    k('v_add_u32 v202, s76, v15')
    k('v_lshlrev_b32 v15, 5, v5')
    k('v_lshl_add_u32 v15, v6, 4, v15')
    k('s_lshl_b32 s77, s54, 8')
    k('s_sub_u32 s77, s55, s77')
    k('s_add_u32 s78, s77, %d' % (O_H + 512 - 32 - 192))
    k('v_add_u32 v192, s78, v15')
    k('v_lshlrev_b32 v15, 3, v6')
    k('v_sub_u32 v15, v15, v5')
    k('v_add_u32 v15, 15, v15')
    k('v_and_b32 v194, 1, v15')
    k('v_mul_u32_u24 v194, %d, v194' % O_K1)
    k('v_and_b32 v15, -2, v15')
    k('v_lshl_add_u32 v15, v15, 1, v194')
    k('s_add_u32 s78, s77, %d' % (2 * (2016 - 256 - 96 - 1536)))
    k('v_add_u32 v197, s78, v15')
    for ip in range(3): k('v_add_u32 v%d, %d, v197' % (194 + ip, 1024 * (3 - ip)))
    k('s_lshl_b32 s77, s54, 12')
    k('s_add_u32 s78, s77, s55')
    k('v_add_u32 v198, s78, v11')
    k('s_xor_b32 s77, s77, 0x1000')
    k('s_add_u32 s78, s77, s55')
    k('v_add_u32 v199, s78, v11')
    k('v_and_b32 v15, 1, v6')
    k('v_lshlrev_b32 v15, 3, v15')
    k('v_lshrrev_b32 v200, 1, v5')
    k('v_add_u32 v15, v15, v200')
    k('v_lshlrev_b32 v200, 15, v15')
    k('v_and_b32 v15, 1, v5')
    k('v_lshl_add_u32 v200, v15, 5, v200')
    k('v_lshrrev_b32 v15, 1, v6')
    k('v_lshl_add_u32 v200, v15, 4, v200')
    k('v_add_u32 v201, 0x100000, v200')
    k('s_lshl_b32 s60, s54, 19')
    k('s_lshl_b32 s61, s53, 6')
    k('s_add_u32 s60, s60, s61')
    ws_ptr(k, 66, WS_X1T, 60)
    ws_ptr(k, 68, WS_X1S, 60)
    k('s_lshl_b32 s60, s6, 15')
    ws_ptr(k, 26, WS_W1P, 60)
    k('s_lshl_b32 s77, s30, 16')
    k('s_and_b32 s74, s30, 0xffff0000')
    k('s_cmp_eq_u32 s52, 0')
    k('s_cselect_b32 s74, s77, s74')
    k('v_bfe_u32 v4, v1, 3, 1')
    k('v_cvt_f32_u32 v4, v4')
    k('v_cmp_gt_u32 vcc, 32, v1')
    k('v_cndmask_b32 v4, 0, v4, vcc')
    k('s_lshl_b32 s60, s2, 4')
    ws_ptr(k, 18, WS_FIN, 60)
    k('s_lshl_b32 s60, s3, 10')
    k('v_add_u32 v217, s60, v11')
    k('v_add_u32 v218, 0x%x, v217' % O_F2)
    k('v_add_u32 v217, 0x%x, v217' % O_FP)
    k('s_lshl_b32 s56, s54, 15')
    k('s_lshl_b32 s60, s52, 12')
    k('s_add_u32 s56, s56, s60')
    k('s_lshl_b32 s60, s5, 16')
    k('s_add_u32 s60, s60, s56')
    ws_ptr(k, 28, WS_X1S, 60)

def conv_phase(k):
    XD = k.XD
    k.stamp(6)
    k('s_mov_b32 s80, 0')
    k('L_xv_p:')
    k('s_waitcnt vmcnt(0)')
    for c in chk_tags([x + 2 for x in XD] + [23], 28): k(c)
    retry_tail(k, 'xv', k.XL)
    k.vm_done = k.nvm
    k.stamp(7)
    k('v_add_f32_dpp v22, v22, v22 quad_perm:[1,0,3,2] row_mask:0xf bank_mask:0xf')
    k('s_lshl_b32 s60, s52, 2')
    k('s_add_u32 s61, s60, 24')
    k('v_add_f32_dpp v22, v22, v22 quad_perm:[2,3,0,1] row_mask:0xf bank_mask:0xf')
    k('s_add_u32 s60, s60, 16')
    k('v_cmp_eq_u32 vcc, 1, v9')
    k('v_add_f32_dpp v22, v22, v22 row_half_mirror row_mask:0xc bank_mask:0xf')
    k('v_cvt_pk_bf16_f32 v22, v22, v22')
    k('v_and_b32 v22, s58, v22')
    k('v_add_f32 v22, v22, v4')
    k('v_cvt_pk_bf16_f32 v22, v22, v22')
    k('v_and_b32 v22, s58, v22')
    k('v_readlane_b32 s62, v22, 0')
    k('v_readlane_b32 s63, v22, 4')
    k('v_readlane_b32 s64, v22, 8')
    k('v_readlane_b32 s65, v22, 12')
    k('v_readlane_b32 s75, v22, s60')
    k('v_readlane_b32 s76, v22, s61')
    k('v_mov_b32 v27, s62')
    k('v_mov_b32 v29, s63')
    k('v_mov_b32 v26, s64')
    k('v_mov_b32 v28, s65')
    k('v_cndmask_b32 v27, v27, v29, vcc')
    k('v_cndmask_b32 v26, v26, v28, vcc')
    k('v_cmp_eq_u32 vcc, 1, v10')
    k('v_cndmask_b32 v27, v27, 0, vcc')
    k('v_cndmask_b32 v26, v26, 1.0, vcc')
    for i in range(8):
        for j in range(2):
            r = XD[i] + j
            tt = 48 + 2 * (j & 1)
            k('v_lshlrev_b32 v%d, 16, v%d' % (tt, r))
            k('v_and_b32 v%d, s58, v%d' % (tt + 1, r))
            k('v_pk_fma_f32 %s, %s, v[26:27], v[26:27] op_sel:[0,0,1] op_sel_hi:[1,0,1]' % (v(tt, 2), v(tt, 2)))
            k('v_cvt_pk_bf16_f32 v%d, v%d, v%d' % (r, tt, tt + 1))
        k.ds('ds_write_b64 v20, %s offset:%d' % (v(XD[i], 2), 128 * i))
    k.wait_all(vm=False)
    k.barrier()
    k.stamp(9)
    ACC = 32
    def areg(st, p): return 64 + 64 * st + 4 * p
    def breg(st, q): return 96 + 64 * st + 4 * q
    def loads(cc, st, np_):
        L = []
        for p in range(np_):
            off = 128 * (1 - (p & 1)) + 16 * (3 - cc)
            L.append('ds_read2_b32 %s, v%d offset0:%d offset1:%d' % (v(areg(st, p), 2), 194 + (p >> 1), off, off + 1))
            L.append('ds_read2_b32 %s, v%d offset0:%d offset1:%d' % (v(areg(st, p) + 2, 2), 194 + (p >> 1), off + 2, off + 3))
            L.append('ds_read_b128 %s, v192 offset:%d' % (v(breg(st, p), 4), 512 * p + 64 * (3 - cc)))
        return L
    def lv_pairs(lo, hi_):
        P = []
        for lv in range(8):
            for p in range(lv + 1):
                for q in range(lv + 1):
                    if max(p, q) == lv and lo <= p + q <= hi_: P.append((p, q))
        return P
    def loadsA(cc):
        L = []
        st, o4 = cc >> 1, 4 * (cc & 1)
        for p in range(4):
            off = 128 * (1 - (p & 1)) + 16 * (3 - cc)
            L.append('ds_read2_b32 %s, v%d offset0:%d offset1:%d' % (v(areg(st, o4 + p), 2), 194 + (p >> 1), off, off + 1))
            L.append('ds_read2_b32 %s, v%d offset0:%d offset1:%d' % (v(areg(st, o4 + p) + 2, 2), 194 + (p >> 1), off + 2, off + 3))
            L.append('ds_read_b128 %s, v192 offset:%d' % (v(breg(st, o4 + p), 4), 512 * p + 64 * (3 - cc)))
        return L
    tA = {}
    for cc in range(2): tA[cc] = [k.ds(x) for x in loadsA(cc)]
    if E('FP_AT', 0) == 0: sync_issue(k, 'fp', 'global_load_dwordx4 v[204:207], v217, s[14:15]' + SC)
    k('s_cmp_lg_u32 s50, 3')
    k('s_cbranch_scc1 L_fin')
    for i, (l0, l1) in enumerate(((32, 40), (24, 28), (48, 56))):
        k('v_readlane_b32 s60, v22, %d' % l0)
        k('v_readlane_b32 s61, v22, %d' % l1)
        k('s_lshr_b32 s60, s60, 16')
        k('s_or_b32 s60, s60, s61')
        k('v_mov_b32 v%d, s60' % (220 + i))
    k('v_mov_b32 v223, s81')
    k('s_mov_b64 exec, 1')
    raw(k, 'global_store_dwordx4 v12, v[220:223], s[18:19]' + SC)
    k('s_mov_b64 exec, -1')
    k('L_fin:')
    seen = set()
    def mf(nt, ar, br):
        c = v(ACC + 4 * nt, 4) if nt in seen else '0'
        seen.add(nt)
        k('v_mfma_f32_16x16x32_bf16 %s, %s, %s, %s' % (v(ACC + 4 * nt, 4), v(ar, 4), v(br, 4), c))
    def hx_reads(ps):
        return (['ds_read_b64 %s, v193 offset:%d' % (v(16 + 2 * j, 2), O_H + 512 + 2048 * ps + 512 * j) for j in range(2)] +
                ['ds_read_b64 %s, v202 offset:%d' % (v(20 + 2 * j, 2), L_X + 2048 * ps + 512 * j) for j in range(2)])
    PA = lv_pairs(0, 3); PB = lv_pairs(4, 7)
    q2 = loadsA(2) + loadsA(3) + hx_reads(0)
    tq = []
    for cc in range(4):
        st, o4 = cc >> 1, 4 * (cc & 1)
        for n, (p, q) in enumerate(PA):
            if cc < 2: k.wait(ds=tA[cc][3 * max(p, q) + 2])
            else: k.wait(ds=tq[12 * (cc - 2) + 3 * max(p, q) + 2])
            mf(p + q, areg(st, o4 + p), breg(st, o4 + q))
            for _ in range(2):
                if q2 and (cc > 0 or n >= 2): tq.append(k.ds(q2.pop(0)))
            if cc == 2 and n == 2: qB = loads(0, 0, 8)
            if cc >= 2 and (cc > 2 or n >= 2):
                for _ in range(2):
                    if qB: k.ds(qB.pop(0))
    assert not q2 and not qB
    def exchange_and_store(ps, lab, mid):
        b = ACC + 16 * ps
        k('s_nop 7')
        k('s_cmp_eq_u32 s54, 0')
        k('s_cbranch_scc0 L_%s_1' % lab)
        for j in range(2): k.ds('ds_write_b128 v198, %s offset:%d' % (v(b + 8 + 4 * j, 4), O_RED + 2048 * ps + 1024 * j))
        for j in range(4): k('v_mov_b64 %s, %s' % (v(224 + 2 * j, 2), v(b + 2 * j, 2)))
        k('s_branch L_%s_2' % lab)
        k('L_%s_1:' % lab)
        k.nds -= 2
        for j in range(2): k.ds('ds_write_b128 v198, %s offset:%d' % (v(b + 4 * j, 4), O_RED + 2048 * ps + 1024 * j))
        for j in range(4): k('v_mov_b64 %s, %s' % (v(224 + 2 * j, 2), v(b + 8 + 2 * j, 2)))
        k('L_%s_2:' % lab)
        k.pre()
        k.wait_all(vm=False)
        k.barrier()
        mid()
        rt_ = [k.ds('ds_read_b128 %s, v199 offset:%d' % (v(232 + 4 * j, 4), O_RED + 2048 * ps + 1024 * j)) for j in range(2)]
        for i in range(4):
            k('v_lshlrev_b32 v%d, 16, v%d' % (240 + 2 * i, 16 + i))
            k('v_and_b32 v%d, s58, v%d' % (241 + 2 * i, 16 + i))
            k('v_pk_fma_f32 %s, %s, s[74:75], %s op_sel_hi:[1,0,1]' % (v(224 + 2 * i, 2), v(240 + 2 * i, 2), v(224 + 2 * i, 2)))
            k('v_lshlrev_b32 v%d, 16, v%d' % (248 + 2 * i, 20 + i))
            k('v_and_b32 v%d, s58, v%d' % (249 + 2 * i, 20 + i))
        k.wait(ds=rt_[1])
        for i in range(4):
            k('v_pk_add_f32 %s, %s, %s' % (v(224 + 2 * i, 2), v(224 + 2 * i, 2), v(232 + 2 * i, 2)))
            k('v_pk_fma_f32 %s, %s, s[74:75], %s op_sel:[0,1,0] op_sel_hi:[1,1,1]' % (v(224 + 2 * i, 2), v(224 + 2 * i, 2), v(248 + 2 * i, 2)))
            k('v_pk_mul_f32 %s, %s, s[76:77] op_sel_hi:[1,0]' % (v(240 + 2 * i, 2), v(224 + 2 * i, 2)))
            k('v_cvt_pk_bf16_f32 v%d, v%d, v%d' % (24 + i, 240 + 2 * i, 241 + 2 * i))
            k('v_cvt_pk_bf16_f32 v%d, v%d, v%d' % (28 + i, 224 + 2 * i, 225 + 2 * i))
        for b_, sp in ((24, 68), (28, 66)):
            k('v_permlane16_swap_b32 v%d, v%d' % (b_, b_ + 2))
            k('v_permlane16_swap_b32 v%d, v%d' % (b_ + 1, b_ + 3))
            t = k.vm('global_store_dwordx4 v%d, %s, s[%d:%d]%s' % (200 + ps, v(b_, 4), sp, sp + 1, SC))
        return t
    FPL = 'global_load_dwordx4 v[204:207], v217, s[14:15]' + SC
    FP_AT = E('FP_AT', 0)
    k.pre = (lambda: sync_check(k, 'fp', [FPL], chk_tags([204, 205, 206, 207], 210))) if FP_AT == 0 else (lambda: None)
    tsA = exchange_and_store(0, 'cvA', lambda: None)
    k.pre = lambda: None
    k.stamp(3)
    k.tw1 = []
    def w1l():
        n = len(k.tw1)
        k.tw1.append(k.vm('global_load_dwordx4 %s, v2, s[26:27] offset:%d%s' % (a(4 * n, 4), (n & 3) * 1024, LD_SC)) if not E('NOW1', 0) else k.nvm)
        if (n & 3) == 3 and n < 31: k('s_add_u32 s26, s26, 4096'); k('s_addc_u32 s27, s27, 0')
    k.w1l = w1l
    F2A_AT = E('F2A_AT', 2); W1D = E('W1D', 3)
    for cc in range(4):
        st = cc & 1
        nxt = loads(cc + 1, st ^ 1, 8) if cc < 3 else hx_reads(1)
        if cc > 0: k.wait_all(vm=False)
        if cc == FP_AT and cc: sync_check(k, 'fp', [FPL], chk_tags([204, 205, 206, 207], 210))
        if cc == F2A_AT: k.wait(vm=tsA)
        if cc == F2A_AT or (cc == FP_AT and cc): k.barrier()
        if cc == F2A_AT: signal(k, 'f2a', O_F2, 208, 209)
        for n, (p, q) in enumerate(PB):
            if cc == FP_AT - 2 and n == 10: sync_issue(k, 'fp', FPL)
            mf(p + q, areg(st, p), breg(st, q))
            if n >= 1 and nxt: k.ds(nxt.pop(0))
            if cc >= FP_AT and n % W1D == 0 and len(k.tw1) < 32: w1l()
        assert not nxt
    k.stamp(10)
    k.PA = ['global_load_dwordx4 v[72:75], v218, s[14:15]' + SC]
    k.FL = 'global_load_dwordx4 v[164:167], v160, s[48:49]' + SC
    def mid():
        k('v_lshlrev_b32 v160, 4, v0')
        k('v_add_u32 v160, 0x%x, v160' % WS_FIN)
        k.tfin = k.vm(k.FL)
    k.tx1 = exchange_and_store(1, 'cvB', mid)
    while len(k.tw1) < 32: w1l()

def w2reg(ks): return (a(128 + 8 * ks, 4), a(132 + 8 * ks, 4)) if ks < 16 else (v(160 + 8 * (ks - 16), 4), v(164 + 8 * (ks - 16), 4))
def w2_ops(k, ks):
    ops = []
    if E('NOW2', 0): return ops
    off = (ks & 3) * 1024
    ops.append(lambda: k.vm('global_load_dwordx4 %s, v2, s[76:77] offset:%d%s' % (w2reg(ks)[0], off, LD_SC)))
    ops.append(lambda: k.vm('global_load_dwordx4 %s, v113, s[76:77] offset:%d%s' % (w2reg(ks)[1], off, LD_SC)))
    if (ks & 3) == 3 and ks < 27: ops.append(lambda: k('s_add_u32 s76, s76, 4096\ns_addc_u32 s77, s77, 0'))
    return ops

def sync_issue(k, name, *loads):
    k('s_cmp_lg_u32 s50, %d' % SYNCW)
    k('s_cbranch_scc1 L_%s_i' % name)
    for l in loads: raw(k, l)
    k('L_%s_i:' % name)
    k.__dict__.setdefault('pollmark', {})[name] = k.nvm

def sync_check(k, name, loads, check):
    k('s_cmp_lg_u32 s50, %d' % SYNCW)
    k('s_cbranch_scc1 L_%s_w' % name)
    k('s_mov_b32 s80, 0')
    k('s_waitcnt vmcnt(%d)' % min(63, k.nvm - k.pollmark[name]))
    k('L_%s_p:' % name)
    for c in check: k(c)
    retry_tail(k, name, list(loads) + ['s_waitcnt vmcnt(0)'], 1)

L_RD = 0

def mlp_phase(k):
    k('v_add_u32 v126, 0x2000, v218')
    PL = lambda r: 'global_load_dwordx4 v[72:75], v%d, s[14:15]%s' % (r, SC)
    k('s_lshl_b32 s8, s3, 2')
    k('s_lshr_b32 s9, s4, 3')
    k('s_add_u32 s8, s8, s9')
    k('s_and_b32 s9, s4, 7')
    k('v_add_u32 v113, 114688, v2')
    k('s_mul_i32 s51, s50, %d' % (28 * 1024))
    k('s_mul_i32 s60, s9, %d' % (2 * 114688))
    k('s_add_u32 s60, s60, s51')
    ws_ptr(k, 76, WS_W2P, 60)
    k('s_mul_i32 s60, s8, 114688')
    k('s_add_u32 s60, s60, s51')
    ws_ptr(k, 22, WS_HID, 60)
    tr_addr32(k, 4, 1, 8, 9, 6, 8)
    k('v_add_u32 v5, 0x10000, v4')
    k('v_and_b32 v6, 31, v1')
    k('v_lshlrev_b32 v6, 3, v6')
    k('s_mul_i32 s62, s5, %d' % (2 * 114688))
    k('s_lshl_b32 s63, s6, 11')
    k('s_add_u32 s62, s62, s63')
    ws_ptr(k, 68, WS_HID, 62)
    k('s_lshl_b32 s62, s5, 9')
    add_ptr(k, 70, 14, 62)
    k('v_bfe_u32 v16, v1, 4, 1')
    k('v_xor_b32 v16, 1, v16')
    k('v_lshlrev_b32 v16, 10, v16')
    k('v_lshrrev_b32 v17, 5, v1')
    k('v_lshl_add_u32 v16, v17, 4, v16')
    k('v_add_u32 v16, %d, v16' % L_GS)
    k('v_lshlrev_b32 v17, 2, v0')
    k('v_add_u32 v17, %d, v17' % L_GS)
    k('v_lshlrev_b32 v18, 3, v0')
    k('v_add_u32 v18, %d, v18' % (L_GS + 2048))
    k('v_lshrrev_b32 v119, 5, v1')
    k('v_and_b32 v118, 31, v1')
    k('v_lshlrev_b32 v116, 8, v119')
    k('v_lshl_add_u32 v116, v118, 1, v116')
    k('v_lshlrev_b32 v117, 4, v119')
    k('v_lshl_add_u32 v118, v118, 10, v117')
    k('s_lshl_b32 s62, s9, 2')
    k('s_add_u32 s62, s62, s50')
    k('s_lshl_b32 s63, s8, 15')
    k('s_lshl_b32 s60, s62, 10')
    k('s_add_u32 s60, s60, s63')
    ws_ptr(k, 20, WS_X1T, 60)
    k('s_lshl_b32 s60, s62, 6')
    k('s_add_u32 s60, s60, %d' % (L_GS + 2048))
    k('v_add_u32 v117, s60, v117')
    k('s_lshl_b32 s60, s62, 5')
    k('s_add_u32 s60, s60, s63')
    add_ptr(k, 24, P_OUT, 60)
    k('s_lshl_b32 s60, s50, 13')
    k('v_add_u32 v120, s60, v2')
    k('s_lshl_b32 s60, s50, 11')
    k('v_add_u32 v121, s60, v2')
    k('s_lshr_b32 s60, s8, 1')
    k('s_lshl_b32 s60, s60, 6')
    k('s_add_u32 s60, s60, 0x%x' % O_F3)
    k('v_min_u32 v122, 13, v1')
    k('v_lshl_add_u32 v122, v122, 2, s60')
    k('s_lshl_b32 s10, s5, 6')
    k('s_lshl_b32 s61, s7, 2')
    k('s_add_u32 s10, s10, s61')
    k('s_mov_b32 s80, 0')
    k.wait(vm=k.tfin)
    k('L_fin_p:')
    k('v_cmp_ne_u32 vcc, s81, v167')
    retry_tail(k, 'fin', [k.FL, 's_waitcnt vmcnt(0)'])
    k('v_lshlrev_b32 v168, 16, v166')
    k('v_and_b32 v169, 0xffff0000, v166')
    k('v_mul_f32 v168, %s, v168' % f32(-math.log(2.0)))
    k('v_mul_f32 v169, %s, v169' % f32(-math.log(2.0)))
    k.ds('ds_write2st64_b32 v17, v164, v165 offset0:0 offset1:4')
    k.ds('ds_write_b64 v18, v[168:169]')
    C12POS = E('C12POS', 1)
    if not C12POS: sync_issue(k, 'f2a', *k.PA)
    k.wait(vm=k.tx1)
    k.wait_all(vm=False)
    k.barrier()
    signal(k, 'f2b', O_F2 + 0x2000, 19, 20)
    k.stamp(11)
    def c12_block():
        gt = [None] * 32
        for s_ in range(8): gt[s_] = k.ds('ds_read_b128 %s, v16 offset:%d' % (v(80 + 4 * (s_ % 8), 4), 32 * s_))
        for s_ in range(32):
            if C12POS and s_ == E('PA_AT', 8): sync_issue(k, 'f2a', *k.PA)
            k.wait(ds=gt[s_], vm=k.tw1[s_])
            k('v_mfma_f32_32x32x16_bf16 v[128:143], %s, %s, %s' % (a(4 * s_, 4), v(80 + 4 * (s_ % 8), 4), '0' if s_ == 0 else 'v[128:143]'))
            if s_ >= 1 and s_ + 7 < 32: gt[s_ + 7] = k.ds('ds_read_b128 %s, v16 offset:%d' % (v(80 + 4 * ((s_ + 7) % 8), 4), 32 * (s_ + 7)))
        k.stamp(8)
    if C12POS: c12_block()
    sync_check(k, 'f2a', k.PA, chk_tags([72, 73, 74, 75], 114))
    k.barrier()
    k.stamp(12)
    ctok = {}
    def chunk_ops(ps, c):
        ops = [lambda: k('s_add_u32 m0, s56, %d' % (ps * 65536 + c * 8192))]
        def ld(i): ctok[ps, c] = k.vm('global_load_lds_dwordx4 v2, s[28:29] offset:%d%s' % (i * 1024, LD_SC))
        for i in range(4): ops.append(lambda i=i: ld(i))
        if c < 3: ops.append(lambda: k('s_add_u32 s28, s28, 8192\ns_addc_u32 s29, s29, 0'))
        elif ps == 0: ops.append(lambda: k('s_add_u32 s28, s28, %d\ns_addc_u32 s29, s29, 0' % (0x100000 - 3 * 8192)))
        return ops
    k('s_cmp_ge_u32 s4, 28')
    k('s_cbranch_scc1 L_st_a')
    for c in range(4):
        for op in chunk_ops(0, c): op()
    k('s_branch L_st_b')
    k('L_st_a:')
    k('s_sub_u32 s11, s4, 28')
    k('s_lshl_b32 s60, s3, 2')
    k('s_add_u32 s11, s11, s60')
    k('s_lshl_b32 s60, s11, 15')
    k('s_lshl_b32 s61, s50, 13')
    k('s_add_u32 s60, s60, s61')
    ws_ptr(k, 28, WS_X1T, 60)
    k('v_add_u32 v7, 0x1000, v2')
    STL = ['global_load_dwordx4 %s, v%d, s[28:29] offset:%d%s' % (v(80 + 4 * i, 4), 2 if i < 4 else 7, (i & 3) * 1024, LD_SC) for i in range(8)]
    for x in STL: raw(k, x)
    k('s_branch L_stats')
    k('L_st_b:')
    if not C12POS: c12_block()
    fix = ['v_mov_b32 v%d, v%d' % (144 + r, 128 + r) for r in range(16)]
    fix += ['v_permlane16_swap_b32 v%d, v%d' % (128 + r, 144 + r) for r in range(16)]
    fix += ['v_mul_f32 v%d, %s, v%d' % (144 + r, f32(-LOG2E), 144 + r) for r in range(16)]
    ACC = 16
    w2q = []
    for ks in range(28): w2q += w2_ops(k, ks)
    for _ in range(E('W2E', 12)):
        if w2q: w2q.pop(0)()
    SL = lambda ps: ['global_load_dwordx2 %s, v6, s[70:71] offset:%d%s' % (v(8 + 2 * u, 2), 256 * u, SC) for u in range(2)]
    htok = {}
    def hload(ps, s_):
        htok[ps, s_] = k.vm('global_load_dwordx4 %s, v2, s[22:23] offset:%d%s' % (a(4 * s_, 4), (s_ & 3) * 1024, LD_SC))
        if (s_ & 3) == 3:
            if s_ < 27: k('s_add_u32 s22, s22, 4096\ns_addc_u32 s23, s23, 0')
            elif ps == 0: k('s_add_u32 s22, s22, %d\ns_addc_u32 s23, s23, 0' % (32 * 114688 - 6 * 4096))
    k.hload, k.htok = hload, htok
    F3L = lambda ps: 'global_load_dword v72, v122, s[14:15] offset:%d%s' % (1024 * ps, SC)
    W2D = E('W2D', 2)
    lstA = [None]
    for ps in range(2):
        def breg(s_, u): return 48 + 8 * (s_ % 3) + 4 * u
        rtok = {}
        def rd(s_, u):
            off = u * 32768 + s_ * 1024
            k.ds('ds_read_b64_tr_b16 %s, v%d offset:%d' % (v(breg(s_, u), 2), 4 + ps, off))
            rtok[s_, u] = k.ds('ds_read_b64_tr_b16 %s, v%d offset:%d' % (v(breg(s_, u) + 2, 2), 4 + ps, off + 256))
        k.wait(vm=ctok[ps, 0]); k.barrier()
        for s_ in range(2):
            for u in range(2): rd(s_, u)
        pend = []
        gap = 0
        for s_ in range(32):
            if s_ % 8 == 6 and s_ < 30:
                c = s_ // 8 + 1
                if ps == 0 and c == E('F2B_AT', 2): sync_check(k, 'f2b', [PL(126)], chk_tags([72, 73, 74, 75], 80))
                if ps == 1 and c == E('F3A_SIG', 2): k.wait(vm=lstA[0])
                k.wait(vm=ctok[ps, c]); k.barrier()
                if ps == 0 and c == E('F2B_AT', 2):
                    for c2 in range(4): pend += chunk_ops(1, c2)
                if ps == 1 and c == E('F3A_SIG', 2): signal(k, 'f3a', O_F3, 73, 74, nrep=1, sidx=10)
            if ps == 0 and s_ == 8 * E('F2B_AT', 2) - 2 - E('POLLD', 12): sync_issue(k, 'f2b', PL(126))
            if s_ == 22:
                def sl(x): ctok['st'] = k.vm(x)
                for x in SL(ps): pend.append(lambda x=x: sl(x))
            for u in range(2):
                k.wait(ds=rtok[s_, u])
                k('v_mfma_f32_32x32x16_bf16 %s, %s, %s, %s' % (v(ACC + 16 * u, 16), a(4 * s_, 4), v(breg(s_, u), 4), '0' if s_ == 0 else v(ACC + 16 * u, 16)))
                if s_ + 2 < 32: rd(s_ + 2, u)
                if fix and s_ >= 2:
                    for _ in range(2): k(fix.pop(0))
                if pend: pend.pop(0)()
                elif w2q and gap % W2D == 0: w2q.pop(0)()
                gap += 1
        while pend: pend.pop(0)()
        k.stamp(13 if ps == 0 else 14)
        k.wait(vm=ctok['st'])
        k('s_mov_b32 s80, 0')
        k('L_chk%d_p:' % ps)
        k('v_min_u32 v80, v9, v11')
        k('v_cmp_eq_u32 vcc, 0, v80')
        retry_tail(k, 'chk%d' % ps, SL(ps) + ['s_waitcnt vmcnt(0)'], 2)
        if ps == 0: k('s_add_u32 s70, s70, 0x2000\ns_addc_u32 s71, s71, 0')
        k('s_nop 7')
        for u in range(2):
            b = 8 + 2 * u
            A_ = ACC + 16 * u
            for p in range(8):
                x = v(A_ + 2 * p, 2)
                k('v_pk_fma_f32 %s, %s, %s, %s op_sel_hi:[1,0,1] neg_lo:[0,1,0] neg_hi:[0,1,0]' % (x, v(128 + 2 * p, 2), v(b, 2), x))
            for p in range(8):
                x = v(A_ + 2 * p, 2)
                k('v_pk_fma_f32 %s, %s, %s, %s op_sel:[1,0,0] op_sel_hi:[1,1,1]' % (x, v(b, 2), x, v(144 + 2 * p, 2)))
            if ps == 1 and u == E('F3A_U', 0): sync_issue(k, 'f3a', F3L(0))
            for r in range(16): k('v_exp_f32 v%d, v%d' % (80 + r, A_ + r))
            for p in range(8): k('v_pk_add_f32 %s, %s, 1.0 op_sel_hi:[1,0]' % (v(80 + 2 * p, 2), v(80 + 2 * p, 2)))
            if u == 0:
                for _ in range(E('W2EP', 3)):
                    if w2q: w2q.pop(0)()
            for r in range(16): k('v_rcp_f32 v%d, v%d' % (80 + r, 80 + r))
            for p in range(8): k('v_pk_mul_f32 %s, %s, %s' % (v(A_ + 2 * p, 2), v(A_ + 2 * p, 2), v(80 + 2 * p, 2)))
            O = 96 + 8 * u
            for p in range(8): k('v_cvt_pk_bf16_f32 v%d, v%d, v%d' % (O + p, A_ + 2 * p, A_ + 2 * p + 1))
            k.vm('global_store_dwordx4 v%d, %s, s[68:69]%s' % (2 if u == 0 else 113, v(O, 4), SC))
            lst = k.vm('global_store_dwordx4 v%d, %s, s[68:69] offset:1024%s' % (2 if u == 0 else 113, v(O + 4, 4), SC))
        if ps == 0:
            lstA[0] = lst
            k('s_add_u32 s68, s68, %d\ns_addc_u32 s69, s69, 0' % (32 * 114688))
    while w2q: w2q.pop(0)()
    sync_check(k, 'f3a', [F3L(0)], ['v_cmp_ne_u32 vcc, s81, v72'])
    k.barrier()
    k('s_add_u32 s10, s10, 1024')
    k('s_branch L_join')
    k('L_stats:')
    k.reset_counters()
    k('s_movk_i32 s10, 2048')
    k('s_lshl_b32 s62, s11, 8')
    add_ptr(k, 70, 14, 62)
    k('s_mov_b32 s62, 0xffff0000')
    k('v_lshlrev_b32 v3, 6, v0')
    k('v_bfe_u32 v4, v1, 3, 2')
    k('v_lshlrev_b32 v4, 6, v4')
    k('v_and_b32 v5, 7, v1')
    k('v_lshl_add_u32 v4, v5, 2, v4')
    k('v_lshrrev_b32 v5, 5, v1')
    k('v_lshl_add_u32 v4, v5, 13, v4')
    for ps in range(2):
        if ps == 1:
            poll(k, 'sf2b', [PL(126)], chk_tags([72, 73, 74, 75], 80))
            k('s_add_u32 s28, s28, 0x100000\ns_addc_u32 s29, s29, 0')
            k('s_add_u32 s70, s70, 0x2000\ns_addc_u32 s71, s71, 0')
        if ps == 0:
            xt = list(range(1, 9)); k.nvm = 8
        else: xt = [k.vm(x) for x in STL]
        for r in range(16): k('v_mov_b32 v%d, 0' % (16 + r))
        for i in range(8):
            k.wait(vm=xt[i])
            for j in range(4):
                r = 80 + 4 * i + j
                tt = 32 + 2 * (j & 1)
                k('v_lshlrev_b32 v%d, 16, v%d' % (tt, r))
                k('v_and_b32 v%d, s62, v%d' % (tt + 1, r))
                k('v_pk_add_f32 %s, %s, %s' % (v(16 + 2 * j, 2), v(16 + 2 * j, 2), v(tt, 2)))
                k('v_pk_fma_f32 %s, %s, %s, %s' % (v(24 + 2 * j, 2), v(tt, 2), v(tt, 2), v(24 + 2 * j, 2)))
        for pat in ('row_ror:4', 'row_ror:8'):
            for r in range(16): k('v_add_f32_dpp v%d, v%d, v%d %s row_mask:0xf bank_mask:0xf' % (16 + r, 16 + r, 16 + r, pat))
        for i in range(4): k.ds('ds_write_b128 v3, %s offset:%d' % (v(16 + 4 * i, 4), 16384 * ps + 16 * i))
        k.wait_all(vm=False)
        k.barrier()
        k('s_cmp_lg_u32 s50, 0')
        k('s_cbranch_scc1 L_st%d' % ps)
        for q in range(8):
            raw(k, 'ds_read_b32 v%d, v4 offset:%d' % (16 + 2 * q, 16384 * ps + 1024 * q))
            raw(k, 'ds_read_b32 v%d, v4 offset:%d' % (17 + 2 * q, 16384 * ps + 1024 * q + 32))
        k('s_waitcnt lgkmcnt(0)')
        for q in range(1, 8): k('v_pk_add_f32 v[16:17], v[16:17], %s' % v(16 + 2 * q, 2))
        k('v_mov_b64 v[18:19], v[16:17]')
        k('v_permlane32_swap_b32 v16, v18')
        k('v_permlane32_swap_b32 v17, v19')
        k('v_pk_add_f32 v[16:17], v[16:17], v[18:19]')
        k('v_mul_f32 v16, %s, v16' % f32(1.0 / 512))
        k('v_mul_f32 v17, %s, v17' % f32(1.0 / 512))
        k('v_fma_f32 v17, -v16, v16, v17')
        k('v_max_f32 v17, 0, v17')
        k('v_add_f32 v17, %s, v17' % f32(1e-5))
        k('v_rsq_f32 v17, v17')
        k('v_mul_f32 v17, %s, v17' % f32(-LOG2E))
        raw(k, 'global_store_dwordx2 v6, v[16:17], s[70:71]' + SC)
        k('L_st%d:' % ps)
    for ks in range(28):
        for op in w2_ops(k, ks): op()
    poll(k, 'sf3a', [F3L(0)], ['v_cmp_ne_u32 vcc, s81, v72'])
    k('L_join:')
    k.stamp(1)
    k.reset_counters()
    htok.clear()
    HA0 = E('HA0', 12)
    for s_ in range(HA0): hload(0, s_)
    k('s_waitcnt vmcnt(%d)' % HA0)
    k.barrier()
    signal(k, 'f3b', O_F3, 73, 74, nrep=1, sidx=10)
    for s_ in range(HA0, 28): hload(0, s_)
    for q in range(2): k.ds('ds_read_b128 %s, v117 offset:%d' % (v(96 + 4 * q, 4), 32 * q))
    for r in range(16): k('v_mov_b32 v%d, 0' % (80 + r))
    k('v_add_u32 v115, 0x100000, v116')
    for ps in range(2):
        for q in range(2):
            for r in range(4): trs = k.vm('global_load_short_d16_hi v%d, v%d, s[20:21] offset:%d%s' % (80 + 8 * ps + 4 * q + r, 116 - ps, (8 * q + r) * 64, LD_SC))
    k('v_add_u32 v119, 0x100000, v118')
    FB = E('F3B_AT', 18); nh = [0]
    for ps in range(2):
        for s_ in range(28):
            k.wait(vm=htok[ps, s_])
            if ps == 0 and s_ == max(0, FB - E('F3B_D', 12)): sync_issue(k, 'f3b', F3L(1))
            if ps == 0 and s_ == FB:
                sync_check(k, 'f3b', [F3L(1)], ['v_cmp_ne_u32 vcc, s81, v72'])
                k.barrier()
                k.stamp(5)
            for j in range(2):
                k('v_mfma_f32_32x32x16_bf16 %s, %s, %s, %s' % (v(ACC + 16 * j, 16), w2reg(s_)[j], a(4 * s_, 4), '0' if s_ == 0 else v(ACC + 16 * j, 16)))
                if ps == 0 and s_ >= FB:
                    for _ in range(2):
                        if nh[0] < s_ + j: hload(1, nh[0]); nh[0] += 1
        while ps == 0 and nh[0] < 28: hload(1, nh[0]); nh[0] += 1
        for q in range(8): k.ds('ds_write_b128 v120, %s offset:%d' % (v(ACC + 4 * q, 4), 32768 * ps + q * 1024))
        k.wait_all(vm=False)
        k.barrier()
        rt_ = []
        for w_ in range(4):
            for q in range(2): t = k.ds('ds_read_b128 %s, v121 offset:%d' % (v(48 + 8 * w_ + 4 * q, 4), 32768 * ps + w_ * 8192 + q * 1024))
            rt_.append(t)
        k.wait(ds=rt_[1])
        for p in range(4): k('v_pk_add_f32 %s, %s, %s' % (v(48 + 2 * p, 2), v(48 + 2 * p, 2), v(56 + 2 * p, 2)))
        k.wait(ds=rt_[3])
        for p in range(4): k('v_pk_add_f32 %s, %s, %s' % (v(64 + 2 * p, 2), v(64 + 2 * p, 2), v(72 + 2 * p, 2)))
        k.wait(vm=trs)
        for p in range(4):
            k('v_pk_add_f32 %s, %s, %s' % (v(48 + 2 * p, 2), v(48 + 2 * p, 2), v(64 + 2 * p, 2)))
            k('v_pk_fma_f32 %s, %s, %s, %s' % (v(48 + 2 * p, 2), v(48 + 2 * p, 2), v(96 + 2 * p, 2), v(80 + 8 * ps + 2 * p, 2)))
            k('v_cvt_pk_bf16_f32 v%d, v%d, v%d' % (104 + 4 * ps + p, 48 + 2 * p, 49 + 2 * p))
        b = 104 + 4 * ps
        k('v_permlane32_swap_b32 v%d, v%d' % (b, b + 2))
        k('v_permlane32_swap_b32 v%d, v%d' % (b + 1, b + 3))
        k.vm('global_store_dwordx4 v%d, %s, s[24:25]' % (118 + ps, v(b, 4)))

def build_single(path):
    k = Kern(NAME + '_kernel')
    phase0(k); conv_phase(k); mlp_phase(k)
    k.end()
    k('L_end:')
    k('s_endpgm')
    launch, (vg_, sg_, ac) = 'grid=(256,1,1) block=(256,1,1) lds=%d' % LDS_TOTAL, (512, 84, 256)
    out = [HEADER.rstrip(), '; @launch ' + launch, '.amdgcn_target "amdgcn-amd-amdhsa--gfx950"', k.text(vg_, sg_, ac), '.text\nL_text_end:\n    s_endpgm']
    print(k.name, k.stats)
    open(path, 'w').write('\n'.join(out) + '\n')

if __name__ == '__main__':
    build_single(sys.argv[1] if len(sys.argv) > 1 else ('diag.s' if DIAG else 'cdna_kernels/%s.s' % NAME))
```

```python
import os
from gen import *
E = lambda n, d: int(os.environ.get(n, str(d)))
WS_XG = 0x000000
WS_ST1 = 0x800000
WS_MODG = 0x820000
WS_FIN = 0x860000
WS_W1P = 0x1800000
WS_X1S = 0xB00000
WS_SYNC = 0xF00000
O_F2, O_F3 = 0x8000, 0xC000
L_T = 65536
L_CM = 98304; L_SC = 114688
L_STN = 118784; L_STX = 118784 + 8448 + 128
L_CV = 0; CHS = 21120
O_K1 = 4160; O_H = 8320; O_RED = 12928
L_X = 42240
L_W1 = 79872
NW1 = 16
L_SJ = L_W1 + NW1 * 4096
L_GS = L_SJ
LDS_TOTAL = L_SJ + 16384
O_FP = 0x6000
SC = ' sc1'
LD_SC = ' sc1'
TMO = 0x20000
SYNCW = 1
KSPLIT = E('KSPLIT', 1)

def raw(k, s_): k.lines.append('    ' + s_)

def retry_tail(k, name, loads, sleep=0):
    k('s_nop 0')
    k('s_cbranch_vccz L_%s_w' % name)
    k('s_add_u32 s80, s80, 1')
    k('s_cmp_gt_u32 s80, 0x%x' % TMO)
    k('s_cbranch_scc1 L_%s_w' % name)
    if sleep: k('s_sleep %d' % sleep)
    for l in loads: raw(k, l)
    k('s_branch L_%s_p' % name)
    k('L_%s_w:' % name)

def poll(k, name, loads, check):
    k('s_cmp_lg_u32 s50, %d' % SYNCW)
    k('s_cbranch_scc1 L_%s_w' % name)
    k('s_mov_b32 s80, 0')
    for l in loads: raw(k, l)
    k('L_%s_p:' % name)
    k('s_waitcnt vmcnt(0)')
    for c in check: k(c)
    retry_tail(k, name, loads, 1)
    k.barrier()

def signal(k, name, off, va, vd, nrep=8, sidx=None):
    k('s_cmp_lg_u32 s50, %d' % SYNCW)
    k('s_cbranch_scc1 L_%s_s' % name)
    if sidx is None:
        k('s_lshl_b32 s80, s2, 2')
        k('s_add_u32 s80, s80, 0x%x' % off)
    else:
        k('s_add_u32 s80, s%d, 0x%x' % (sidx, off))
    k('v_lshl_add_u32 v%d, v1, 10, s80' % va)
    k('v_mov_b32 v%d, s81' % vd)
    k('s_mov_b64 exec, %d' % ((1 << nrep) - 1))
    raw(k, 'global_store_dword v%d, v%d, s[14:15]%s' % (va, vd, SC))
    k('s_mov_b64 exec, -1')
    k('L_%s_s:' % name)

def chk_tags(regs, t):
    o = ['v_xor_b32 v%d, s81, v%d' % (t, regs[0])]
    for r in regs[1:]:
        o += ['v_xor_b32 v%d, s81, v%d' % (t + 1, r), 'v_or_b32 v%d, v%d, v%d' % (t, t, t + 1)]
    return o + ['v_cmp_ne_u32 vcc, 0, v%d' % t]

def phase0(k):
    load_ptrs(k)
    k('s_getpc_b64 s[82:83]')
    k('L_pf:')
    k('v_lshlrev_b32 v255, 7, v0')
    k('v_min_u32 v255, L_text_end-L_pf-4, v255')
    raw(k, 'global_load_dword v255, v255, s[82:83]')
    k('s_cmp_ge_u32 s2, 256')
    k('s_cbranch_scc1 L_end')
    k('s_memrealtime s[78:79]')
    wave_id(k, 50, 1)
    k('v_and_b32 v1, 63, v0')
    k('s_and_b32 s3, s2, 7')
    k('s_lshr_b32 s4, s2, 3')
    k('s_lshl_b32 s51, s3, 5')
    k('s_add_u32 s80, s51, s4')
    k('s_lshl_b32 s51, s80, 9')
    k('v_lshl_add_u32 v2, v0, 1, s51')
    for i in range(4, 11): k('v_mov_b32 v%d, 0' % i)
    k('s_lshr_b32 s52, s50, 1')
    k('s_lshl_b32 s53, s80, 1')
    k('s_add_u32 s53, s53, s52')
    k('s_lshl_b32 s54, s53, 1')
    k('v_mov_b32 v3, s54')
    k('v_lshrrev_b32 v77, 5, v0')
    k('v_and_b32 v78, 31, v0')
    k('v_lshlrev_b32 v78, 4, v78')
    k('v_lshl_add_u32 v79, v77, 10, v78')
    k('s_lshl_b32 s63, s2, 13')
    k('v_add_u32 v79, s63, v79')
    k.smem_wait()
    k('s_mov_b32 s34, s80')
    k('s_or_b32 s78, s78, 1')
    k('s_or_b32 s79, s2, s50')
    k('s_cmp_eq_u32 s79, 0')
    k('s_cbranch_scc0 L_nn')
    k('v_mov_b32 v250, s78')
    k('v_lshlrev_b32 v251, 6, v1')
    k('s_mov_b64 exec, 15')
    raw(k, 'global_store_dword v251, v250, s[%d:%d]%s' % (P_DBG, P_DBG + 1, SC))
    k('s_mov_b64 exec, -1')
    k('L_nn:')
    k.vm('global_load_short_d16_hi v10, v3, s[%d:%d]' % (P_LDT, P_LDT + 1))
    for i, p in enumerate((P_ARE, P_AIM, P_BRE, P_BIM, P_CRE, P_CIM)):
        tpar = k.vm('global_load_short_d16_hi v%d, v2, s[%d:%d]' % (4 + i, p, p + 1))
    k.vm('global_load_dwordx4 v[240:243], v79, s[%d:%d]' % (P_U, P_U + 1))
    tx = k.vm('global_load_dwordx4 v[244:247], v79, s[%d:%d] offset:512' % (P_U, P_U + 1))
    k('s_and_b32 s5, s4, 3')
    k('s_lshl_b32 s5, s5, 3')
    k('s_add_u32 s5, s5, s3')
    k('s_lshl_b32 s5, s5, 1')
    k('s_bfe_u32 s6, s4, 0x10002')
    k('s_add_u32 s5, s5, s6')
    k('s_lshr_b32 s6, s4, 3')
    k('s_cmp_ge_u32 s5, 48')
    k('s_cselect_b32 s7, 16, 0')
    k('s_add_u32 s7, s7, s5')
    k('s_lshl_b32 s7, s7, 6')
    k('s_lshl_b32 s8, s6, 2')
    k('s_add_u32 s8, s8, s50')
    k('s_mul_i32 s9, s8, %d' % (32 * 6144))
    k('s_add_u32 s7, s7, s9')
    k('v_lshrrev_b32 v250, 2, v1')
    k('v_mul_u32_u24 v254, 6144, v250')
    k('v_and_b32 v251, 3, v1')
    k('v_lshl_add_u32 v254, v251, 4, v254')
    k('s_lshl_b32 s9, s50, 12')
    k('s_add_u32 s9, s9, %d' % L_CM)
    k('v_mov_b32 v231, v254')
    k('s_lshl_b32 s8, s8, 6')
    k('s_and_b32 s64, s4, 1')
    k('s_lshl_b32 s64, s64, 3')
    k('s_add_u32 s64, s64, s3')
    k('s_lshl_b32 s64, s64, 1')
    k('s_bfe_u32 s65, s4, 0x10001')
    k('s_add_u32 s64, s64, s65')
    k('s_lshr_b32 s65, s4, 2')
    k('s_cmp_ge_u32 s64, 16')
    k('s_cselect_b32 s66, 64, 48')
    k('s_add_u32 s66, s66, s64')
    k('s_lshl_b32 s66, s66, 6')
    k('s_lshl_b32 s67, s65, 2')
    k('s_add_u32 s67, s67, s50')
    k('s_mul_i32 s68, s67, %d' % (16 * 6144))
    k('s_add_u32 s66, s66, s68')
    k('s_lshl_b32 s67, s67, 5')
    k('s_sub_u32 s67, s67, 64')
    k('v_min_u32 v248, 23, v1')
    k('v_cmp_gt_u32 vcc, 16, v248')
    k('v_mov_b32 v250, s67')
    k('v_mov_b32 v251, s8')
    k('v_cndmask_b32 v250, v250, v251, vcc')
    k('v_lshl_add_u32 v248, v248, 2, v250')
    tc = k.vm('global_load_dword v248, v248, s[%d:%d]' % (P_C, P_C + 1))
    k('s_lshl_b32 s60, s34, 2')
    k('s_load_dword s30, s[%d:%d], s60' % (P_DSK, P_DSK + 1))
    if E('W1T', 0):
        k('s_and_b32 s75, s3, 1')
        k('s_mul_i32 s75, s75, 7')
        k('s_lshr_b32 s76, s4, 2')
        k('s_add_u32 s75, s75, s76')
        k('s_min_u32 s75, s75, 13')
        k('s_lshl_b32 s75, s75, 8')
        k('s_and_b32 s76, s4, 3')
        k('s_mul_i32 s76, s76, %d' % (128 * 3584))
        k('s_add_u32 s75, s75, s76')
        k('v_lshrrev_b32 v237, 1, v0')
        k('v_mul_u32_u24 v237, 3584, v237')
        k('v_and_b32 v238, 1, v0')
        k('v_lshl_add_u32 v237, v238, 7, v237')
        k('v_add_u32 v237, s75, v237')
        k.vm('global_load_dword a200, v237, s[%d:%d]' % (P_W1, P_W1 + 1))
    if E('W2T', 0):
        k('s_min_u32 s75, s2, 111')
        k('s_lshl_b32 s75, s75, 14')
        k('v_and_b32 v238, 127, v0')
        k('v_lshl_add_u32 v238, v238, 7, s75')
        k.vm('global_load_dword a201, v238, s[%d:%d]' % (P_W2, P_W2 + 1))
    k('s_cmp_lt_u32 s2, 112')
    k('s_cbranch_scc0 L_pj_w1')
    k('s_lshl_b32 s76, s2, 14')
    k('s_lshl_b32 s70, s50, 12')
    k('s_add_u32 s76, s76, s70')
    add_ptr(k, 72, P_W2, 76)
    k('s_add_u32 s31, s70, %d' % L_SJ)
    k('s_movk_i32 s79, 1024')
    for r in range(4):
        k('v_xor_b32 v%d, %d, v1' % (224 + r, r << 2))
        k('v_lshlrev_b32 v%d, 4, v%d' % (224 + r, 224 + r))
        if r: k('v_add_u32 v%d, %d, v%d' % (224 + r, 1024 * r, 224 + r))
    k('s_branch L_pj_go')
    k('L_pj_w1:')
    k('s_sub_u32 s75, s2, 112')
    k('s_min_u32 s75, s75, 111')
    k('s_and_b32 s26, s75, 7')
    k('s_lshr_b32 s27, s75, 3')
    k('s_lshl_b32 s75, s26, 4')
    k('s_add_u32 s75, s75, s50')
    k('s_mul_i32 s75, s75, %d' % (4 * 3584))
    k('s_lshl_b32 s76, s27, 8')
    k('s_add_u32 s75, s75, s76')
    add_ptr(k, 72, P_W1, 75)
    k('s_lshl_b32 s31, s50, 10')
    k('s_add_u32 s31, s31, %d' % L_SJ)
    k('s_movk_i32 s79, 4096')
    k('v_lshrrev_b32 v228, 4, v1')
    k('v_and_b32 v229, 15, v1')
    k('v_lshlrev_b32 v230, 2, v228')
    k('v_xor_b32 v230, v230, v229')
    k('v_mul_u32_u24 v224, 3584, v228')
    k('v_lshl_add_u32 v224, v230, 4, v224')
    for r in range(1, 4): k('v_add_u32 v%d, %d, v224' % (224 + r, r * 16 * 3584))
    k('L_pj_go:')
    def pkdma(r):
        k('s_mov_b32 m0, s31')
        k.tpk = k.vm('global_load_lds_dwordx4 v%d, s[72:73]' % (224 + r))
        k('s_add_u32 s31, s31, s79')
    SNON = 0
    if SNON:
        add_ptr(k, 10, P_WMOD, 7)
        k('s_mov_b32 m0, s9')
        k.vm('global_load_lds_dwordx4 v231, s[10:11]')
        k('s_add_u32 s10, s10, %d' % (16 * 6144 - 1024))
        k('s_addc_u32 s11, s11, 0')
        k.vm('global_load_lds_dwordx4 v231, s[10:11] offset:1024')
        add_ptr(k, 10, P_WMOD, 66)
        k('s_add_u32 m0, s9, 2048')
        tcm = k.vm('global_load_lds_dwordx4 v231, s[10:11]')
        for r in range(4): pkdma(r)
    k('s_and_b32 s75, s5, 15')
    k('s_lshl_b32 s75, s75, 13')
    k('s_lshr_b32 s76, s5, 4')
    k('s_lshl_b32 s76, s76, 6')
    k('s_add_u32 s75, s75, s76')
    k('s_lshl_b32 s76, s6, 3')
    k('s_add_u32 s75, s75, s76')
    k('s_and_b32 s76, s64, 15')
    k('s_lshl_b32 s76, s76, 13')
    k('s_lshr_b32 s77, s64, 4')
    k('s_lshl_b32 s77, s77, 7')
    k('s_add_u32 s76, s76, s77')
    k('s_lshl_b32 s77, s65, 3')
    k('s_add_u32 s76, s76, s77')
    k('s_add_u32 s76, s76, 256')
    k('s_cmp_eq_u32 s50, 0')
    k('s_cselect_b32 s75, s75, s76')
    ws_ptr(k, 16, WS_MODG, 75)
    k('v_mov_b32 v12, 0\nv_mov_b32 v13, 0\nv_mov_b32 v14, 0\nv_mov_b32 v15, 0')
    ws_ptr(k, 14, WS_SYNC)
    tr_addr32(k, 254, 1, 250, 251, 6, 8)
    k('v_add_u32 v254, s9, v254')
    k('v_and_b32 v40, 31, v1')
    k('v_lshrrev_b32 v41, 5, v1')
    k('v_lshrrev_b32 v253, 1, v40')
    k('v_lshlrev_b32 v253, 9, v253')
    k('v_and_b32 v250, 1, v40')
    k('s_add_u32 s75, s50, 5')
    k('v_lshlrev_b32 v250, s75, v250')
    k('v_add_u32 v253, v253, v250')
    k('v_mul_u32_u24 v11, 1056, v77')
    k('v_add_u32 v11, v11, v78')
    k('v_add_u32 v11, %d, v11' % L_STN)
    k('v_bfe_u32 v56, v1, 2, 3')
    k('v_mul_u32_u24 v236, 1056, v56')
    k('v_and_b32 v57, 3, v1')
    k('v_lshl_add_u32 v236, v57, 3, v236')
    k('v_lshl_add_u32 v236, v41, 5, v236')
    k('s_lshl_b32 s75, s50, 8')
    k('s_add_u32 s75, s75, %d' % L_STN)
    k('v_add_u32 v236, s75, v236')
    k('v_and_b32 v57, 15, v1')
    k('v_lshl_add_u32 v57, v41, 4, v57')
    k('v_lshlrev_b32 v235, 5, v57')
    k('v_bfe_u32 v57, v1, 4, 1')
    k('v_lshl_add_u32 v235, v57, 4, v235')
    k('s_lshl_b32 s75, s2, 14')
    k('s_lshl_b32 s76, s50, 12')
    k('s_add_u32 s75, s75, s76')
    ws_ptr(k, 12, WS_XG, 75)
    k('s_lshr_b32 s75, s75, 8')
    ws_ptr(k, 24, WS_ST1, 75)
    k('s_mov_b32 s58, 0xffff0000')
    k('s_mov_b32 s63, 0x3f803f80')
    k('v_lshlrev_b32 v249, 2, v0')
    k('v_add_u32 v249, %d, v249' % L_SC)
    k('v_lshlrev_b32 v233, 4, v41')
    k('s_lshl_b32 s75, s50, 8')
    k('s_add_u32 s75, s75, %d' % L_SC)
    k('v_add_u32 v233, s75, v233')
    k('s_lshl_b32 s75, s50, 10')
    k('v_lshl_add_u32 v252, v1, 2, s75')
    k('v_add_u32 v252, %d, v252' % (L_SC + 1024))
    k('s_lshl_b32 s55, s50, 14')
    k('v_lshl_add_u32 v16, v1, 2, s55')
    for r in range(1, 16): k('v_xor_b32 v%d, %d, v16' % (16 + r, r << 4))
    k('v_and_b32 v42, 15, v1')
    k('v_xor_b32 v42, v42, v41')
    k('v_lshlrev_b32 v42, 4, v42')
    k('v_lshl_add_u32 v42, v40, 8, v42')
    k('v_add_u32 v32, s55, v42')
    for ks in range(1, 8): k('v_xor_b32 v%d, %d, v32' % (32 + ks, ks << 5))
    k('s_mul_i32 s56, s52, 6912')
    k('s_add_u32 s56, s56, %d' % (L_T - 0x3F00 * 4))
    k('v_lshlrev_b32 v42, 3, v40')
    k('v_cvt_f32_u32 v42, v42')
    k('v_cvt_f32_u32 v43, v41')
    c0 = [0, 1, 2, 3, 256, 258, 260, 262]
    c1 = [4, 5, 6, 7, 512, 516, 768, 772]
    for r in range(8):
        k('v_fmamk_f32 v56, v43, %s, v42' % f32(c1[r] - c0[r]))
        if c0[r]: k('v_add_f32 v56, %s, v56' % f32(c0[r]))
        else: k('v_max_f32 v56, 0.5, v56')
        k('v_cvt_pk_bf16_f32 v56, v56, 0')
        k('v_lshl_add_u32 v%d, v56, 2, s56' % (44 + r))
    k('v_cmp_eq_u32 vcc, 32, v1')
    k('v_fmaak_f32 v57, 4.0, v42, %s' % f32(4096.0))
    k('v_mov_b32 v58, %s' % f32(2048.0))
    k('v_cndmask_b32 v58, v57, v58, vcc')
    k('v_cmp_lt_u32 vcc, 31, v1')
    for r in range(8, 12):
        k('v_add_f32 v56, %s, v42' % f32(1024 + 256 * (r - 8)))
        k('v_cndmask_b32 v56, v56, v%d, vcc' % (58 if r == 8 else 57))
        k('v_cvt_pk_bf16_f32 v56, v56, 0')
        k('v_lshl_add_u32 v%d, v56, 2, s56' % (44 + r))
    k('v_and_b32 v59, 127, v0')
    k('v_lshlrev_b32 v56, 4, v59')
    k('v_sub_u32 v56, 2047, v56')
    k('v_cvt_f32_u32 v57, v56')
    for i in range(17):
        if i: k('v_add_f32 v56, %s, v57' % f32(-float(i)))
        else: k('v_mov_b32 v56, v57')
        if i >= 15: k('v_max_f32 v56, 0.5, v56')
        k('v_cvt_pk_bf16_f32 v56, v56, 0')
        k('v_lshl_add_u32 v%d, v56, 2, s56' % (60 + i))
    k('s_mov_b32 s57, 0x07060302')
    k('s_mov_b32 s59, %s' % f32(LOG2E))
    lo_log2e = LOG2E - struct.unpack('<f', struct.pack('<f', LOG2E))[0]
    inv2pi = 1.0 / (2 * math.pi)
    inv2pi_f = struct.unpack('<f', struct.pack('<f', inv2pi))[0]
    k('s_mov_b32 s60, %s' % f32(inv2pi_f))
    k('s_mov_b32 s61, %s' % f32(inv2pi - inv2pi_f))
    k('s_mov_b32 s62, %s' % f32(lo_log2e))
    k('s_lshl_b32 s75, s50, 6')
    k('v_mov_b32 v234, s75')
    NL = 'global_load_dword v232, v234, s[%d:%d]%s' % (P_DBG, P_DBG + 1, SC)
    if not SNON:
        tn = k.vm(NL)
        add_ptr(k, 10, P_WMOD, 7)
        k('s_mov_b32 m0, s9')
        k.vm('global_load_lds_dwordx4 v231, s[10:11]')
        k('s_add_u32 s10, s10, %d' % (16 * 6144 - 1024))
        k('s_addc_u32 s11, s11, 0')
        k.vm('global_load_lds_dwordx4 v231, s[10:11] offset:1024')
        add_ptr(k, 10, P_WMOD, 66)
        k('s_add_u32 m0, s9, 2048')
        tcm = k.vm('global_load_lds_dwordx4 v231, s[10:11]')
        for r in range(4): pkdma(r)
    k('s_cmp_lt_u32 s2, 112')
    k('s_cbranch_scc0 L_pa_w1')
    tr_addr32(k, 224, 1, 250, 251, 10, 4)
    k('s_lshl_b32 s76, s50, 8')
    k('s_add_u32 s76, s76, %d' % L_SJ)
    k('v_add_u32 v224, s76, v224')
    k('v_bfe_u32 v251, v1, 2, 2')
    k('v_lshlrev_b32 v251, 6, v251')
    k('v_xor_b32 v224, v224, v251')
    for q in range(1, 4): k('v_xor_b32 v%d, %d, v224' % (224 + q, q << 6))
    k('s_mul_i32 s76, s50, %d' % (4 * 114688))
    k('s_lshl_b32 s75, s2, 10')
    k('s_add_u32 s76, s76, s75')
    ws_ptr(k, 70, WS_W2P, 76)
    k('s_mov_b32 s75, 114688')
    k('s_movk_i32 s76, 8192')
    k('s_branch L_pa_go')
    k('L_pa_w1:')
    tr_addr32(k, 224, 1, 250, 251, 8, 8)
    k('v_bfe_u32 v251, v1, 2, 2')
    k('v_xor_b32 v251, s50, v251')
    k('v_lshl_add_u32 v224, v251, 6, v224')
    k('v_add_u32 v224, %d, v224' % L_SJ)
    for q in range(1, 4): k('v_add_u32 v%d, %d, v224' % (224 + q, q * 4096))
    k('s_lshl_b32 s76, s27, 2')
    k('s_add_u32 s76, s76, s50')
    k('s_lshl_b32 s76, s76, 15')
    k('s_lshl_b32 s75, s26, 12')
    k('s_add_u32 s76, s76, s75')
    ws_ptr(k, 70, WS_W1P, 76)
    k('s_movk_i32 s75, 1024')
    k('s_movk_i32 s76, 1024')
    k('L_pa_go:')
    for q in range(4): k('v_add_u32 v%d, s76, v%d' % (228 + q, 224 + q))
    k('v_lshlrev_b32 v223, 4, v1')
    k('v_add_u32 v237, s75, v223')
    k('v_add_u32 v238, s75, v237')
    k('v_add_u32 v239, s75, v238')
    k('s_lshr_b32 s5, s3, 1')
    k('s_lshl_b32 s5, s5, 2')
    k('s_and_b32 s75, s4, 3')
    k('s_add_u32 s5, s5, s75')
    k('s_and_b32 s7, s3, 1')
    k('s_mul_i32 s7, s7, 7')
    k('s_lshr_b32 s75, s4, 2')
    k('s_add_u32 s7, s7, s75')
    k('s_min_u32 s7, s7, 13')
    k('s_lshl_b32 s6, s7, 2')
    k('s_add_u32 s6, s6, s50')
    k.smem_wait()
    k.wait(vm=tpar)
    k('v_mov_b32 v255, v223')
    k.stamp(2); k.stamp3(1)
    if SNON: k('s_load_dword s81, s[%d:%d], 0 glc' % (P_DBG, P_DBG + 1))
    k('v_mul_f32 v78, s59, v10')
    k('v_fma_f32 v79, v10, s59, -v78')
    k('v_fma_f32 v79, v10, s62, v79')
    k('v_exp_f32 v78, v78')
    k('v_mul_f32 v79, %s, v79' % f32(math.log(2.0)))
    k('v_fma_f32 v78, v78, v79, v78')
    k('v_cvt_pk_bf16_f32 v78, v78, v78')
    k('v_and_b32 v78, s58, v78')
    k('v_mul_f32 v4, v78, v4')
    k('v_mul_f32 v5, v78, v5')
    k('v_mul_f32 v152, v78, v6')
    k('v_mul_f32 v154, v78, v7')
    E0 = 96
    cmul1(k, E0, 8, 152); cmul2(k, E0, 8, 152)
    k('v_mul_f32 v4, s59, v4')
    Z1, Z256, Z8, Z128 = 80, 84, 152, 156
    def zpow(dst, p, conj, t):
        pf = f32(float(p))
        return ['v_mul_f32 v%d, %s, v4' % (t, pf), 'v_mul_f32 v%d, %s, v5' % (t + 1, pf), 'v_exp_f32 v%d, v%d' % (t, t),
                'v_mul_f32 v%d, s60, v%d' % (t + 2, t + 1), 'v_fma_f32 v%d, v%d, s60, -v%d' % (t + 3, t + 1, t + 2),
                'v_fma_f32 v%d, v%d, s61, v%d' % (t + 3, t + 1, t + 3), 'v_fract_f32 v%d, v%d' % (t + 2, t + 2),
                'v_add_f32 v%d, v%d, v%d' % (t + 2, t + 2, t + 3), 'v_cos_f32 v%d, v%d' % (t + 3, t + 2), 'v_sin_f32 v%d, v%d' % (t + 2, t + 2),
                'v_mul_f32 v%d, v%d, v%d' % (dst, t, t + 3), 'v_mul_f32 v%d, v%d, %sv%d' % (dst + 2, t, '-' if conj else '', t + 2)]
    for p_, q_ in ((zpow(Z1, 1, False, 88), zpow(Z256, 256, False, 92)), (zpow(Z8, 8, True, 88), zpow(Z128, 128, True, 92))):
        for x, y in zip(p_, q_): k(x); k(y)
    T0 = 140
    def split_a(e, i):
        t = T0 + 6 * (i & 1)
        if not KSPLIT:
            k('v_cvt_pk_bf16_f32 v%d, v%d, v%d' % (t + 4, e, e + 1)); return
        k('v_perm_b32 v%d, v%d, v%d, s57' % (t + 4, e + 1, e))
        k('v_and_b32 v%d, s58, v%d' % (t, e))
        k('v_and_b32 v%d, s58, v%d' % (t + 1, e + 1))
    def split_b(e, i, row):
        t = T0 + 6 * (i & 1)
        if not KSPLIT: return k.ds('ds_write_b32 v%d, v%d offset:%d' % (16 + (row & 15), t + 4, row * 256))
        k('v_pk_add_f32 %s, %s, %s neg_lo:[0,1] neg_hi:[0,1]' % (v(t + 2, 2), v(e, 2), v(t, 2)))
        k('v_cvt_pk_bf16_f32 v%d, v%d, v%d' % (t + 5, t + 2, t + 3))
        return k.ds('ds_write2st64_b32 v%d, v%d, v%d offset0:%d offset1:%d' % (16 + (row & 15), t + 4, t + 5, row, 32 + row))
    hi = {r: (r - 1, Z1) for r in range(1, 8)}
    hi.update({8: (0, Z256), 9: (2, Z256), 10: (4, Z256), 11: (6, Z256), 12: (8, Z256), 13: (10, Z256), 14: (12, Z256), 15: (13, Z256),
               16: (14, Z256), 17: (16, Z256), 18: (17, Z256), 19: (18, Z256), 20: (19, Z256)})
    order = [0, 1, 8, 2, 12, 3, 14, 4, 16, 5, 17, 6, 18, 7, 19, 9, 20, 10, 11, 13, 15]
    for i, r in enumerate(order):
        nxt = order[i + 1] if i + 1 < len(order) else None
        if nxt is not None: cmul1(k, E0 + 2 * nxt, E0 + 2 * hi[nxt][0], hi[nxt][1])
        split_a(E0 + 2 * r, i)
        if nxt is not None: cmul2(k, E0 + 2 * nxt, E0 + 2 * hi[nxt][0], hi[nxt][1])
        split_b(E0 + 2 * r, i, r)
    AH, AL = 160, 192
    for ks in range(8):
        k.ds('ds_read_b128 %s, v%d' % (v(AH + 4 * ks, 4), 32 + ks))
        if KSPLIT: k.ds('ds_read_b128 %s, v%d offset:8192' % (v(AL + 4 * ks, 4), 32 + ks))
    for i in range(4): k('v_mov_b32 v%d, 0' % (96 + i))
    k.stamp3(2)
    k.wait(vm=tx)
    k.stamp3(3)
    for i in range(2): k.ds('ds_write_b128 v11, %s offset:%d' % (v(240 + 4 * i, 4), 512 * i))
    for j in range(8):
        k('v_dot2c_f32_bf16 v%d, s63, v%d' % (96 + (j & 1), 240 + j))
        k('v_dot2c_f32_bf16 v%d, v%d, v%d' % (98 + (j & 1), 240 + j, 240 + j))
    if SNON:
        k.wait(vm=tc)
        k.smem_wait()
        k('v_mov_b32 v232, s81')
    else: k.wait(vm=tn)
    k('s_mov_b32 s80, 0')
    k('L_non_p:')
    k('v_cmp_eq_u32 vcc, 0, v232')
    retry_tail(k, 'non', [NL, 's_waitcnt vmcnt(0)'])
    k('v_readfirstlane_b32 s81, v232')
    k.stamp3(4)
    GR = [100 + 4 * q for q in range(3)] + [120]
    for q in range(4): k('v_mov_b32 v%d, v232\nv_mov_b32 v%d, v232' % (GR[q] + 2, GR[q] + 3))
    k.wait_all(vm=False)
    k.barrier()
    tq = [k.ds('ds_read_b64_tr_b16 %s, v236 offset:%d' % (v(GR[q], 2), 64 * q)) for q in range(4)]
    k('v_lshlrev_b32 v116, 16, v248')
    k('v_and_b32 v117, s58, v248')
    k('v_add_f32 v96, v96, v97')
    k('v_add_f32 v98, v98, v99')
    nm = 'v_mul_f32 v%%d, %s, v%%d' % f32(-LOG2E)
    silu = [nm % (118, 116), nm % (119, 117), 'v_exp_f32 v118, v118', 'v_exp_f32 v119, v119', 'v_add_f32 v118, 1.0, v118', 'v_add_f32 v119, 1.0, v119',
            'v_rcp_f32 v118, v118', 'v_rcp_f32 v119, v119', 'v_mul_f32 v116, v116, v118', 'v_mul_f32 v117, v117, v119', 'v_cvt_pk_bf16_f32 v116, v116, v117']
    for pat in ('quad_perm:[1,0,3,2]', 'quad_perm:[2,3,0,1]', 'row_half_mirror', 'row_mirror'):
        k(silu.pop(0)); k(silu.pop(0))
        k('v_add_f32_dpp v96, v96, v96 %s row_mask:0xf bank_mask:0xf' % pat)
        k('v_add_f32_dpp v98, v98, v98 %s row_mask:0xf bank_mask:0xf' % pat)
    k('v_mov_b32 v97, v96')
    k('v_mov_b32 v99, v98')
    for q in range(4):
        k.wait(ds=tq[q])
        k.vm('global_store_dwordx4 v235, %s, s[12:13] offset:%d%s' % (v(GR[q], 4), 1024 * q, SC))
    while silu: k(silu.pop(0))
    k.ds('ds_write_b32 v249, v116')
    k('v_permlane16_swap_b32 v96, v97')
    k('v_permlane16_swap_b32 v98, v99')
    for ks in range(3): k.ds('ds_read_b128 %s, v233 offset:%d' % (a(32 + 4 * ks, 4), 32 * ks))
    k('v_add_f32 v96, v96, v97')
    k('v_add_f32 v98, v98, v99')
    k('v_mul_f32 v96, %s, v96' % f32(1.0 / 512))
    k('v_mul_f32 v98, %s, v98' % f32(1.0 / 512))
    k('v_fma_f32 v98, -v96, v96, v98')
    k('v_max_f32 v98, 0, v98')
    k('v_add_f32 v98, %s, v98' % f32(1e-5))
    k('v_rsq_f32 v240, v98')
    k('v_mul_f32 v242, v96, v240')
    k('v_mov_b32 v241, v240')
    k('v_mov_b32 v243, v242')
    k('v_permlane32_swap_b32 v240, v241')
    k('v_permlane32_swap_b32 v242, v243')
    k('v_cvt_pk_bf16_f32 v242, v242, v243')
    k('v_mov_b32 v243, v232')
    k('s_mov_b64 exec, 1')
    k.vm('global_store_dwordx4 v12, v[240:243], s[24:25]' + SC)
    k('s_mov_b64 exec, -1')
    def mod_a():
        k.stamp3(6)
        k.wait(vm=tcm)
        k.stamp3(7)
        for ks in range(3):
            k.ds('ds_read_b64_tr_b16 %s, v254 offset:%d' % (a(48 + 4 * ks, 2), ks * 1024))
            k.tmr = k.ds('ds_read_b64_tr_b16 %s, v254 offset:%d' % (a(50 + 4 * ks, 2), ks * 1024 + 256))
    def mod_b():
        k.wait(ds=k.tmr)
        k('v_mfma_f32_32x32x16_bf16 a[64:79], a[32:35], a[48:51], 0')
        k('v_mfma_f32_32x32x16_bf16 a[80:95], a[40:43], a[56:59], 0')
        k('v_mfma_f32_32x32x16_bf16 a[64:79], a[36:39], a[52:55], a[64:79]')
    def mod_c():
        k.ds('ds_write_b32 v249, a80 offset:2048')
        k.ds('ds_write_b32 v249, a64 offset:1024')
        k.stamp3(8)
        k.wait_all(vm=False)
        k.barrier()
        k.stamp3(9)
        for i in range(4): k.tp = k.ds('ds_read_b32 v%d, v252 offset:%d' % (244 + i, 256 * i))
    def mod_d():
        k.wait(ds=k.tp)
        k('s_cmp_ge_u32 s50, 2')
        k('s_cbranch_scc1 L_cm2')
        k('v_add_f32 v244, v244, v245')
        k('v_add_f32 v246, v246, v247')
        k('v_add_f32 v244, v244, v246')
        k('v_mov_b32 v245, v232')
        raw(k, 'global_store_dwordx2 v253, v[244:245], s[16:17]' + SC)
        k('s_branch L_cm3')
        k('L_cm2:')
        k('v_and_b32 v246, 15, v1')
        k('s_lshl_b32 s75, s2, 6')
        k('v_lshl_add_u32 v246, v246, 2, s75')
        raw(k, 'global_store_dword v246, v12, s[14:15]' + SC)
        k('L_cm3:')
    def pack_out():
        for q in range(4):
            k.ds('ds_read_b64_tr_b16 %s, v%d' % (a(4 * q, 2), 224 + q))
            pt = k.ds('ds_read_b64_tr_b16 %s, v%d' % (a(4 * q + 2, 2), 228 + q))
        k.wait(ds=pt)
        k('s_cmp_ge_u32 s2, 224')
        k('s_cbranch_scc1 L_pk_no')
        for q in range(4): raw(k, 'global_store_dwordx4 v%d, %s, s[70:71]%s' % (255 if q == 0 else 236 + q, a(4 * q, 4), SC))
        k('L_pk_no:')
        k.tall = k.nvm
    k('s_nop 1')
    k.stamp(4); k.stamp3(5)
    eq = []
    L0 = 96
    k('v_mov_b32 v%d, 1.0' % L0)
    k('v_mov_b32 v%d, 0' % (L0 + 1))
    lo_order = []
    for m in range(16): lo_order += [m, 16 + m]
    def lreg(m): return L0 + 2 * m if m < 16 else 132 + 2 * (m & 1)
    def lsrc(m): return (lreg(m - 1), Z8) if m < 16 else (lreg(m - 16), Z128)
    for i, m in enumerate(lo_order):
        nxt = lo_order[i + 1] if i + 1 < len(lo_order) else None
        if nxt is not None: cmul1(k, lreg(nxt), *lsrc(nxt))
        split_a(lreg(m), i)
        if nxt is not None: cmul2(k, lreg(nxt), *lsrc(nxt))
        split_b(lreg(m), i, m)
        M0 = E('MODAT', 8)
        if i == M0: mod_a()
        if i == M0 + 2: mod_b()
        if i == M0 + 5: mod_c()
        if i == M0 + 7: mod_d()
        if i == E('PKO', 28):
            k.wait(vm=k.tpk); k.barrier(); pack_out()
    while eq: eq.pop(0)()
    k.stamp3(10)
    ACC = 224
    bt = []
    k.wait_all(vm=False, ds=True)
    for ks in range(8):
        t = k.ds('ds_read_b128 %s, v%d' % (v(96 + 8 * ks, 4), 32 + ks))
        if KSPLIT: t = k.ds('ds_read_b128 %s, v%d offset:8192' % (v(100 + 8 * ks, 4), 32 + ks))
        bt.append(t)
    fill = []
    F = lambda x: fill.append(x)
    F('v_lshrrev_b32 v7, 2, v1'); F('v_and_b32 v8, 3, v1'); F('v_lshlrev_b32 v16, 14, v7'); F('v_lshl_add_u32 v16, v8, 4, v16')
    F('s_lshl_b32 s60, s50, 20\ns_lshl_b32 s61, s34, 6\ns_add_u32 s60, s60, s61\ns_add_u32 s62, s48, s60\ns_addc_u32 s63, s49, 0')
    assert WS_XG == 0
    for i in range(1, 4): F('v_add_u32 v%d, 0x%x, v16' % (16 + i, i * 262144))
    F('v_and_b32 v10, 1, v8'); F('v_lshlrev_b32 v24, 6, v7'); F('v_lshl_add_u32 v24, v10, 5, v24'); F('v_lshrrev_b32 v9, 1, v8'); F('v_lshl_add_u32 v24, v9, 4, v24')
    F('s_lshl_b32 s60, s50, 12\ns_add_u32 s60, s60, 0x%x\ns_add_u32 s24, s48, s60\ns_addc_u32 s25, s49, 0' % WS_ST1)
    F('v_lshlrev_b32 v21, 3, v1')
    F('s_lshl_b32 s60, s34, 9\ns_add_u32 s60, s60, 0x%x\ns_add_u32 s64, s48, s60\ns_addc_u32 s65, s49, 0' % WS_MODG)
    XD = [240, 244, 248, 252]
    k.XD = XD
    XL1 = ['global_load_dwordx4 %s, v%d, s[62:63]%s' % (v(XD[i], 4), 16 + i, SC) for i in range(4)] + ['global_load_dwordx2 v[22:23], v21, s[64:65]' + SC]
    XL2 = ['global_load_dwordx4 %s, v24, s[24:25] offset:%d%s' % (v(80 + 4 * i, 4), i * 1024, SC) for i in range(4)]
    k.XL = XL1 + XL2
    F('s_or_b32 s66, s55, 0x4000'); F('v_lshl_add_u32 v3, v1, 4, s66')
    F('s_mul_i32 s55, s52, %d\ns_add_u32 s55, s55, %d' % (CHS, L_CV)); F('v_lshl_add_u32 v2, v59, 5, s55')
    for x in XL1 + XL2: F('VM ' + x); F('s_nop 0')
    def emit_fill():
        x = fill.pop(0)
        if x.startswith('VM '): k.vm(x[3:])
        else: k(x)
    for ks in range(8):
        k.wait(ds=bt[ks])
        c = '0' if ks == 0 else v(ACC, 16)
        ms = [(AH + 4 * ks, 96 + 8 * ks)] + ([(AH + 4 * ks, 100 + 8 * ks), (AL + 4 * ks, 96 + 8 * ks)] if KSPLIT else [])
        for x, y in ms:
            k('v_mfma_f32_32x32x16_bf16 %s, %s, %s, %s' % (v(ACC, 16), v(x, 4), v(y, 4), c)); c = v(ACC, 16)
            for _ in range(2 if KSPLIT else 4):
                if fill: emit_fill()
    while fill: emit_fill()
    k.stamp3(11)
    k('s_nop 7\ns_nop 3')
    k('s_bitcmp1_b32 s50, 0')
    k('s_cbranch_scc0 L_kg_a')
    for i in range(3): k.ds('ds_write_b128 v3, %s offset:%d' % (v(ACC + 4 * i, 4), 1024 * i))
    k.wait_all(vm=False)
    k('L_kg_a:')
    k.barrier()
    k.stamp3(12)
    k('s_cbranch_scc1 L_kg_b')
    for i in range(3): k.ds('ds_read_b128 %s, v3 offset:%d' % (v(96 + 4 * i, 4), 1024 * i))
    k.wait_all(vm=False)
    for i in range(6): k('v_pk_add_f32 %s, %s, %s' % (v(96 + 2 * i, 2), v(96 + 2 * i, 2), v(ACC + 2 * i, 2)))
    for r in range(12): k.ds('ds_write_b32 v%d, v%d' % (44 + r, 96 + r))
    k.wait_all(vm=False)
    k('L_kg_b:')
    if E('FPB', 1): k('s_waitcnt vmcnt(%d)' % (k.nvm - k.tall))
    k.barrier()
    k.stamp3(13)
    if E('FPB', 1): signal(k, 'fp', O_FP, 28, 29)
    k('v_cmp_eq_u32 vcc, 127, v59')
    G = 96
    gt = [k.ds('ds_read_b32 v%d, v%d' % (G + i, 60 + i)) for i in range(17)]
    conv_setup(k)
    k.wait(ds=gt[-1])
    k('v_cmp_eq_u32 vcc, 127, v59')
    k('v_cndmask_b32 v%d, v%d, v12, vcc' % (G + 16, G + 16))
    for i in range(8): k('v_cvt_pk_bf16_f32 v%d, v%d, v%d' % (120 + i, G + 2 * i, G + 2 * i + 1))
    for i in range(8): k('v_cvt_pk_bf16_f32 v%d, v%d, v%d' % (128 + i, G + 2 * i + 1, G + 2 * i + 2))
    k.ds('ds_write_b128 v2, v[120:123]')
    k.ds('ds_write_b128 v2, v[124:127] offset:16')
    k.ds('ds_write_b128 v2, v[128:131] offset:%d' % O_K1)
    k.ds('ds_write_b128 v2, v[132:135] offset:%d' % (O_K1 + 16))
    k('v_lshlrev_b32 v2, 4, v1')

def conv_setup(k):
    k('s_and_b32 s54, s50, 1')
    k('v_lshlrev_b32 v11, 4, v1')
    k('v_and_b32 v5, 15, v1')
    k('v_lshrrev_b32 v6, 4, v1')
    k('s_mul_i32 s59, s54, %d' % O_K1)
    k('s_add_u32 s59, s59, s55')
    k('v_lshl_add_u32 v14, v5, 2, s59')
    k.ds('ds_write_b32 v14, v12 offset:4096')
    k('v_lshl_add_u32 v14, v1, 3, s55')
    k.ds('ds_write_b64 v14, v[12:13] offset:%d' % O_H)
    k('v_lshlrev_b32 v15, 3, v10')
    k('v_lshl_add_u32 v15, v7, 4, v15')
    k('s_lshl_b32 s60, s50, 10')
    k('v_add_u32 v15, s60, v15')
    k('v_mul_u32_u24 v20, %d, v9' % CHS)
    k('v_add_u32 v20, v20, v15')
    k('v_lshl_add_u32 v25, v9, 12, v15')
    k('s_lshl_b32 s76, s54, 10')
    k('s_add_u32 s77, s76, s55')
    k('v_lshlrev_b32 v15, 5, v5')
    k('v_lshl_add_u32 v15, v6, 3, v15')
    k('v_add_u32 v193, s77, v15')
    k('s_lshl_b32 s77, s52, 12')
    k('s_add_u32 s76, s76, s77')
    k('v_add_u32 v202, s76, v15')
    k('v_lshlrev_b32 v15, 5, v5')
    k('v_lshl_add_u32 v15, v6, 4, v15')
    k('s_lshl_b32 s77, s54, 8')
    k('s_sub_u32 s77, s55, s77')
    k('s_add_u32 s78, s77, %d' % (O_H + 512 - 32 - 192))
    k('v_add_u32 v192, s78, v15')
    k('v_lshlrev_b32 v15, 3, v6')
    k('v_sub_u32 v15, v15, v5')
    k('v_add_u32 v15, 15, v15')
    k('v_and_b32 v194, 1, v15')
    k('v_mul_u32_u24 v194, %d, v194' % O_K1)
    k('v_and_b32 v15, -2, v15')
    k('v_lshl_add_u32 v15, v15, 1, v194')
    k('s_add_u32 s78, s77, %d' % (2 * (2016 - 256 - 96 - 1536)))
    k('v_add_u32 v197, s78, v15')
    for ip in range(3): k('v_add_u32 v%d, %d, v197' % (194 + ip, 1024 * (3 - ip)))
    k('s_lshl_b32 s77, s54, 12')
    k('s_add_u32 s78, s77, s55')
    k('v_add_u32 v198, s78, v11')
    k('s_xor_b32 s77, s77, 0x1000')
    k('s_add_u32 s78, s77, s55')
    k('v_add_u32 v199, s78, v11')
    k('v_and_b32 v15, 1, v6')
    k('v_lshlrev_b32 v15, 3, v15')
    k('v_lshrrev_b32 v200, 1, v5')
    k('v_add_u32 v15, v15, v200')
    k('v_lshlrev_b32 v200, 15, v15')
    k('v_and_b32 v15, 1, v5')
    k('v_lshl_add_u32 v200, v15, 5, v200')
    k('v_lshrrev_b32 v15, 1, v6')
    k('v_lshl_add_u32 v200, v15, 4, v200')
    k('v_add_u32 v201, 0x100000, v200')
    k('s_lshl_b32 s60, s54, 19')
    k('s_lshl_b32 s61, s53, 6')
    k('s_add_u32 s60, s60, s61')
    ws_ptr(k, 66, WS_X1T, 60)
    ws_ptr(k, 68, WS_X1S, 60)
    k('s_lshl_b32 s60, s6, 15')
    ws_ptr(k, 26, WS_W1P, 60)
    k('s_lshl_b32 s77, s30, 16')
    k('s_and_b32 s74, s30, 0xffff0000')
    k('s_cmp_eq_u32 s52, 0')
    k('s_cselect_b32 s74, s77, s74')
    k('v_bfe_u32 v4, v1, 3, 1')
    k('v_cvt_f32_u32 v4, v4')
    k('v_cmp_gt_u32 vcc, 32, v1')
    k('v_cndmask_b32 v4, 0, v4, vcc')
    k('s_lshl_b32 s60, s34, 4')
    ws_ptr(k, 18, WS_FIN, 60)
    k('s_lshl_b32 s60, s3, 10')
    k('v_add_u32 v217, s60, v11')
    k('v_add_u32 v218, 0x%x, v217' % O_F2)
    k('v_add_u32 v217, 0x%x, v217' % O_FP)
    k('s_lshl_b32 s56, s54, 15')
    k('s_lshl_b32 s60, s52, 12')
    k('s_add_u32 s56, s56, s60')
    k('s_lshl_b32 s60, s5, 16')
    k('s_add_u32 s60, s60, s56')
    ws_ptr(k, 28, WS_X1S, 60)

def conv_phase(k):
    XD = k.XD
    k.stamp(6); k.stamp3(14)
    k('s_mov_b32 s80, 0')
    k('L_xv_p:')
    k('s_waitcnt vmcnt(0)')
    for c in chk_tags([x + 2 for x in XD] + [23] + [83 + 4 * i for i in range(4)], 28): k(c)
    retry_tail(k, 'xv', k.XL)
    k.vm_done = k.nvm
    k.stamp(7)
    k('v_add_f32_dpp v22, v22, v22 quad_perm:[1,0,3,2] row_mask:0xf bank_mask:0xf')
    k('s_lshl_b32 s60, s52, 2')
    k('s_add_u32 s61, s60, 24')
    k('v_add_f32_dpp v22, v22, v22 quad_perm:[2,3,0,1] row_mask:0xf bank_mask:0xf')
    k('s_add_u32 s60, s60, 16')
    k('v_cmp_eq_u32 vcc, 1, v9')
    k('v_add_f32_dpp v22, v22, v22 row_half_mirror row_mask:0xc bank_mask:0xf')
    k('v_cvt_pk_bf16_f32 v22, v22, v22')
    k('v_and_b32 v22, s58, v22')
    k('v_add_f32 v22, v22, v4')
    k('v_cvt_pk_bf16_f32 v22, v22, v22')
    k('v_and_b32 v22, s58, v22')
    k('v_readlane_b32 s62, v22, 0')
    k('v_readlane_b32 s63, v22, 4')
    k('v_readlane_b32 s64, v22, 8')
    k('v_readlane_b32 s65, v22, 12')
    k('v_readlane_b32 s75, v22, s60')
    k('v_readlane_b32 s76, v22, s61')
    k('v_mov_b32 v27, s62')
    k('v_mov_b32 v29, s63')
    k('v_mov_b32 v26, s64')
    k('v_mov_b32 v28, s65')
    k('v_cndmask_b32 v27, v27, v29, vcc')
    k('v_cndmask_b32 v26, v26, v28, vcc')
    for i in range(4):
        k.ds('ds_write_b64 v25, %s offset:%d' % (v(XD[i], 2), L_X + 256 * i))
        for j in range(2):
            r = XD[i] + j
            g = 56 + 4 * j
            tt = 48 + 4 * (j & 1)
            for e in range(3): k('v_mov_b32_dpp v%d, v%d quad_perm:[%d,%d,%d,%d] row_mask:0xf bank_mask:0xf' % (g + e, 80 + 4 * i + e, 2 * j, 2 * j + 1, 2 * j, 2 * j + 1))
            k('v_lshlrev_b32 v%d, 16, v%d' % (tt, r))
            k('v_and_b32 v%d, s58, v%d' % (tt + 1, r))
            k('v_lshlrev_b32 v%d, 16, v%d' % (tt + 2, g + 2))
            k('v_and_b32 v%d, s58, v%d' % (tt + 3, g + 2))
            k('v_pk_fma_f32 %s, %s, %s, %s neg_lo:[0,0,1] neg_hi:[0,0,1]' % (v(tt, 2), v(tt, 2), v(g, 2), v(tt + 2, 2)))
            k('v_pk_fma_f32 %s, %s, v[26:27], v[26:27] op_sel:[0,0,1] op_sel_hi:[1,0,1]' % (v(tt, 2), v(tt, 2)))
            k('v_cvt_pk_bf16_f32 v%d, v%d, v%d' % (XD[i] + 2 + j, tt, tt + 1))
        k.ds('ds_write_b64 v20, %s offset:%d' % (v(XD[i] + 2, 2), L_CV + O_H + 512 + 256 * i))
    k.wait_all(vm=False)
    k.barrier()
    if not E('FPB', 1): signal(k, 'fp', O_FP, 28, 29)
    k.stamp(9)
    ACC = 32
    def areg(st, p): return 64 + 64 * st + 4 * p
    def breg(st, q): return 96 + 64 * st + 4 * q
    def loads(cc, st, np_):
        L = []
        for p in range(np_):
            off = 128 * (1 - (p & 1)) + 16 * (3 - cc)
            L.append('ds_read2_b32 %s, v%d offset0:%d offset1:%d' % (v(areg(st, p), 2), 194 + (p >> 1), off, off + 1))
            L.append('ds_read2_b32 %s, v%d offset0:%d offset1:%d' % (v(areg(st, p) + 2, 2), 194 + (p >> 1), off + 2, off + 3))
            L.append('ds_read_b128 %s, v192 offset:%d' % (v(breg(st, p), 4), 512 * p + 64 * (3 - cc)))
        return L
    def lv_pairs(lo, hi_):
        P = []
        for lv in range(8):
            for p in range(lv + 1):
                for q in range(lv + 1):
                    if max(p, q) == lv and lo <= p + q <= hi_: P.append((p, q))
        return P
    def loadsA(cc):
        L = []
        st, o4 = cc >> 1, 4 * (cc & 1)
        for p in range(4):
            off = 128 * (1 - (p & 1)) + 16 * (3 - cc)
            L.append('ds_read2_b32 %s, v%d offset0:%d offset1:%d' % (v(areg(st, o4 + p), 2), 194 + (p >> 1), off, off + 1))
            L.append('ds_read2_b32 %s, v%d offset0:%d offset1:%d' % (v(areg(st, o4 + p) + 2, 2), 194 + (p >> 1), off + 2, off + 3))
            L.append('ds_read_b128 %s, v192 offset:%d' % (v(breg(st, o4 + p), 4), 512 * p + 64 * (3 - cc)))
        return L
    tA = {}
    for cc in range(2): tA[cc] = [k.ds(x) for x in loadsA(cc)]
    if E('FP_AT', 2) == 0: sync_issue(k, 'fp', 'global_load_dwordx4 v[204:207], v217, s[14:15]' + SC)
    k('s_cmp_lg_u32 s50, 3')
    k('s_cbranch_scc1 L_fin')
    for i, (l0, l1) in enumerate(((32, 40), (24, 28), (48, 56))):
        k('v_readlane_b32 s60, v22, %d' % l0)
        k('v_readlane_b32 s61, v22, %d' % l1)
        k('s_lshr_b32 s60, s60, 16')
        k('s_or_b32 s60, s60, s61')
        k('v_mov_b32 v%d, s60' % (220 + i))
    k('v_mov_b32 v223, s81')
    k('s_mov_b64 exec, 1')
    raw(k, 'global_store_dwordx4 v12, v[220:223], s[18:19]' + SC)
    k('s_mov_b64 exec, -1')
    k('L_fin:')
    seen = set()
    def mf(nt, ar, br):
        c = v(ACC + 4 * nt, 4) if nt in seen else '0'
        seen.add(nt)
        k('v_mfma_f32_16x16x32_bf16 %s, %s, %s, %s' % (v(ACC + 4 * nt, 4), v(ar, 4), v(br, 4), c))
    def hx_reads(ps):
        return (['ds_read_b64 %s, v193 offset:%d' % (v(16 + 2 * j, 2), O_H + 512 + 2048 * ps + 512 * j) for j in range(2)] +
                ['ds_read_b64 %s, v202 offset:%d' % (v(20 + 2 * j, 2), L_X + 2048 * ps + 512 * j) for j in range(2)])
    PA = lv_pairs(0, 3); PB = lv_pairs(4, 7)
    q2 = loadsA(2) + loadsA(3) + hx_reads(0)
    tq = []
    for cc in range(4):
        st, o4 = cc >> 1, 4 * (cc & 1)
        for n, (p, q) in enumerate(PA):
            if cc < 2: k.wait(ds=tA[cc][3 * max(p, q) + 2])
            else: k.wait(ds=tq[12 * (cc - 2) + 3 * max(p, q) + 2])
            mf(p + q, areg(st, o4 + p), breg(st, o4 + q))
            for _ in range(2):
                if q2 and (cc > 0 or n >= 2): tq.append(k.ds(q2.pop(0)))
            if cc == 2 and n == 2: qB = loads(0, 0, 8)
            if cc >= 2 and (cc > 2 or n >= 2):
                for _ in range(2):
                    if qB: k.ds(qB.pop(0))
    assert not q2 and not qB
    def exchange_and_store(ps, lab, mid):
        b = ACC + 16 * ps
        k('s_nop 7')
        k('s_cmp_eq_u32 s54, 0')
        k('s_cbranch_scc0 L_%s_1' % lab)
        for j in range(2): k.ds('ds_write_b128 v198, %s offset:%d' % (v(b + 8 + 4 * j, 4), O_RED + 2048 * ps + 1024 * j))
        for j in range(4): k('v_mov_b64 %s, %s' % (v(224 + 2 * j, 2), v(b + 2 * j, 2)))
        k('s_branch L_%s_2' % lab)
        k('L_%s_1:' % lab)
        k.nds -= 2
        for j in range(2): k.ds('ds_write_b128 v198, %s offset:%d' % (v(b + 4 * j, 4), O_RED + 2048 * ps + 1024 * j))
        for j in range(4): k('v_mov_b64 %s, %s' % (v(224 + 2 * j, 2), v(b + 8 + 2 * j, 2)))
        k('L_%s_2:' % lab)
        k.pre()
        k.wait_all(vm=False)
        k.barrier()
        mid()
        rt_ = [k.ds('ds_read_b128 %s, v199 offset:%d' % (v(232 + 4 * j, 4), O_RED + 2048 * ps + 1024 * j)) for j in range(2)]
        for i in range(4):
            k('v_lshlrev_b32 v%d, 16, v%d' % (240 + 2 * i, 16 + i))
            k('v_and_b32 v%d, s58, v%d' % (241 + 2 * i, 16 + i))
            k('v_pk_fma_f32 %s, %s, s[74:75], %s op_sel_hi:[1,0,1]' % (v(224 + 2 * i, 2), v(240 + 2 * i, 2), v(224 + 2 * i, 2)))
            k('v_lshlrev_b32 v%d, 16, v%d' % (248 + 2 * i, 20 + i))
            k('v_and_b32 v%d, s58, v%d' % (249 + 2 * i, 20 + i))
        k.wait(ds=rt_[1])
        for i in range(4):
            k('v_pk_add_f32 %s, %s, %s' % (v(224 + 2 * i, 2), v(224 + 2 * i, 2), v(232 + 2 * i, 2)))
            k('v_pk_fma_f32 %s, %s, s[74:75], %s op_sel:[0,1,0] op_sel_hi:[1,1,1]' % (v(224 + 2 * i, 2), v(224 + 2 * i, 2), v(248 + 2 * i, 2)))
            k('v_pk_mul_f32 %s, %s, s[76:77] op_sel_hi:[1,0]' % (v(240 + 2 * i, 2), v(224 + 2 * i, 2)))
            k('v_cvt_pk_bf16_f32 v%d, v%d, v%d' % (24 + i, 240 + 2 * i, 241 + 2 * i))
            k('v_cvt_pk_bf16_f32 v%d, v%d, v%d' % (28 + i, 224 + 2 * i, 225 + 2 * i))
        for b_, sp in ((24, 68), (28, 66)):
            k('v_permlane16_swap_b32 v%d, v%d' % (b_, b_ + 2))
            k('v_permlane16_swap_b32 v%d, v%d' % (b_ + 1, b_ + 3))
            t = k.vm('global_store_dwordx4 v%d, %s, s[%d:%d]%s' % (200 + ps, v(b_, 4), sp, sp + 1, SC))
        return t
    FPL = 'global_load_dwordx4 v[204:207], v217, s[14:15]' + SC
    FP_AT = E('FP_AT', 2)
    k.pre = (lambda: sync_check(k, 'fp', [FPL], chk_tags([204, 205, 206, 207], 210))) if FP_AT == 0 else (lambda: None)
    tsA = exchange_and_store(0, 'cvA', lambda: None)
    k.pre = lambda: None
    k.stamp(3)
    k.tw1 = []
    def w1l():
        n = len(k.tw1)
        k.tw1.append(k.vm('global_load_dwordx4 %s, v2, s[26:27] offset:%d%s' % (a(4 * n, 4), (n & 3) * 1024, LD_SC)) if not E('NOW1', 0) else k.nvm)
        if (n & 3) == 3 and n < 31: k('s_add_u32 s26, s26, 4096'); k('s_addc_u32 s27, s27, 0')
    k.w1l = w1l
    F2A_AT = E('F2A_AT', 2); W1D = E('W1D', 3)
    for cc in range(4):
        st = cc & 1
        nxt = loads(cc + 1, st ^ 1, 8) if cc < 3 else hx_reads(1)
        if cc > 0: k.wait_all(vm=False)
        if cc == FP_AT and cc: sync_check(k, 'fp', [FPL], chk_tags([204, 205, 206, 207], 210))
        if cc == F2A_AT: k.wait(vm=tsA)
        if cc == F2A_AT or (cc == FP_AT and cc): k.barrier()
        if cc == F2A_AT: signal(k, 'f2a', O_F2, 208, 209)
        for n, (p, q) in enumerate(PB):
            if cc == FP_AT - 2 and n == 10: sync_issue(k, 'fp', FPL)
            mf(p + q, areg(st, p), breg(st, q))
            if n >= 1 and nxt: k.ds(nxt.pop(0))
            if cc >= FP_AT and n % W1D == 0 and len(k.tw1) < 32: w1l()
        assert not nxt
    k.stamp(10)
    k.PA = ['global_load_dwordx4 v[72:75], v218, s[14:15]' + SC]
    k.FL = 'global_load_dwordx4 v[164:167], v160, s[48:49]' + SC
    def mid():
        k('v_lshlrev_b32 v160, 4, v0')
        k('v_add_u32 v160, 0x%x, v160' % WS_FIN)
        k.tfin = k.vm(k.FL)
    k.tx1 = exchange_and_store(1, 'cvB', mid)
    if not E('C12POS', 0): sync_issue(k, 'f2a', *k.PA)
    while len(k.tw1) < 32: w1l()

ROT = E('ROT', 0)
def adv(k, p, c):
    if not ROT:
        k('s_add_u32 s%d, s%d, 4096\ns_addc_u32 s%d, s%d, 0' % (p, p, p + 1, p + 1)); return
    k('s_add_u32 s%d, s%d, 1' % (c, c))
    k('s_cmp_eq_u32 s%d, 7' % c)
    k('s_cselect_b32 s12, %d, s32' % (-24576))
    k('s_cselect_b32 s13, -1, 0')
    k('s_cselect_b32 s%d, 0, s%d' % (c, c))
    k('s_add_u32 s%d, s%d, s12' % (p, p))
    k('s_addc_u32 s%d, s%d, s13' % (p + 1, p + 1))

def w2reg(ks): return (a(128 + 8 * ks, 4), a(132 + 8 * ks, 4)) if ks < 16 else (v(160 + 8 * (ks - 16), 4), v(164 + 8 * (ks - 16), 4))
def w2_ops(k, ks):
    ops = []
    if E('NOW2', 0): return ops
    off = (ks & 3) * 1024
    ops.append(lambda: k.vm('global_load_dwordx4 %s, v2, s[76:77] offset:%d%s' % (w2reg(ks)[0], off, LD_SC)))
    ops.append(lambda: k.vm('global_load_dwordx4 %s, v113, s[76:77] offset:%d%s' % (w2reg(ks)[1], off, LD_SC)))
    if (ks & 3) == 3 and ks < 27: ops.append(lambda: adv(k, 76, 35))
    return ops

def sync_issue(k, name, *loads):
    k('s_cmp_lg_u32 s50, %d' % SYNCW)
    k('s_cbranch_scc1 L_%s_i' % name)
    for l in loads: raw(k, l)
    k('L_%s_i:' % name)
    k.__dict__.setdefault('pollmark', {})[name] = k.nvm

def sync_check(k, name, loads, check, extra=0):
    k('s_cmp_lg_u32 s50, %d' % SYNCW)
    k('s_cbranch_scc1 L_%s_w' % name)
    k('s_mov_b32 s80, 0')
    k('s_waitcnt vmcnt(%d)' % min(63, k.nvm - k.pollmark[name] + extra))
    k('L_%s_p:' % name)
    for c in check: k(c)
    retry_tail(k, name, list(loads) + ['s_waitcnt vmcnt(0)'], 1)

L_RD = 0

def mlp_phase(k):
    k('v_add_u32 v126, 0x2000, v218')
    PL = lambda r: 'global_load_dwordx4 v[72:75], v%d, s[14:15]%s' % (r, SC)
    k('s_lshl_b32 s8, s3, 2')
    k('s_lshr_b32 s9, s4, 3')
    k('s_add_u32 s8, s8, s9')
    k('s_and_b32 s9, s4, 7')
    k('v_add_u32 v113, 114688, v2')
    k('s_mul_i32 s51, s50, %d' % (28 * 1024))
    if ROT:
        k('s_lshr_b32 s35, s4, 3')
        k('s_lshl_b32 s35, s35, 1')
        k('s_add_u32 s35, s35, s9')
        k('s_cmp_ge_u32 s35, 7')
        k('s_cselect_b32 s60, 7, 0')
        k('s_sub_u32 s35, s35, s60')
        k('s_mov_b32 s33, s35')
        k('s_movk_i32 s32, 4096')
        k('s_lshl_b32 s60, s35, 12')
        k('s_add_u32 s51, s51, s60')
    k('s_mul_i32 s60, s9, %d' % (2 * 114688))
    k('s_add_u32 s60, s60, s51')
    ws_ptr(k, 76, WS_W2P, 60)
    k('s_mul_i32 s60, s8, 114688')
    k('s_add_u32 s60, s60, s51')
    ws_ptr(k, 22, WS_HID, 60)
    tr_addr32(k, 4, 1, 8, 9, 6, 8)
    k('v_add_u32 v5, 0x10000, v4')
    k('v_and_b32 v6, 31, v1')
    k('v_lshlrev_b32 v6, 3, v6')
    k('s_mul_i32 s62, s5, %d' % (2 * 114688))
    k('s_lshl_b32 s63, s6, 11')
    k('s_add_u32 s62, s62, s63')
    ws_ptr(k, 68, WS_HID, 62)
    k('s_lshl_b32 s62, s5, 9')
    add_ptr(k, 70, 14, 62)
    k('v_bfe_u32 v16, v1, 4, 1')
    k('v_xor_b32 v16, 1, v16')
    k('v_lshlrev_b32 v16, 10, v16')
    k('v_lshrrev_b32 v17, 5, v1')
    k('v_lshl_add_u32 v16, v17, 4, v16')
    k('v_add_u32 v16, %d, v16' % L_GS)
    k('v_lshlrev_b32 v17, 2, v0')
    k('v_add_u32 v17, %d, v17' % L_GS)
    k('v_lshlrev_b32 v18, 3, v0')
    k('v_add_u32 v18, %d, v18' % (L_GS + 2048))
    k('v_lshrrev_b32 v119, 5, v1')
    k('v_and_b32 v118, 31, v1')
    k('v_lshlrev_b32 v116, 8, v119')
    k('v_lshl_add_u32 v116, v118, 1, v116')
    k('v_lshlrev_b32 v117, 4, v119')
    k('v_lshl_add_u32 v118, v118, 10, v117')
    k('s_lshl_b32 s62, s9, 2')
    k('s_add_u32 s62, s62, s50')
    k('s_lshl_b32 s63, s8, 15')
    k('s_lshl_b32 s60, s62, 10')
    k('s_add_u32 s60, s60, s63')
    ws_ptr(k, 20, WS_X1T, 60)
    k('s_lshl_b32 s60, s62, 6')
    k('s_add_u32 s60, s60, %d' % (L_GS + 2048))
    k('v_add_u32 v117, s60, v117')
    k('s_lshl_b32 s60, s62, 5')
    k('s_add_u32 s60, s60, s63')
    add_ptr(k, 24, P_OUT, 60)
    k('s_lshl_b32 s60, s50, 13')
    k('v_add_u32 v120, s60, v2')
    k('s_lshl_b32 s60, s50, 11')
    k('v_add_u32 v121, s60, v2')
    k('s_lshr_b32 s60, s8, 1')
    k('s_lshl_b32 s60, s60, 6')
    k('s_add_u32 s60, s60, 0x%x' % O_F3)
    k('v_min_u32 v122, 13, v1')
    k('v_lshl_add_u32 v122, v122, 2, s60')
    k('s_lshl_b32 s10, s5, 6')
    k('s_lshl_b32 s61, s7, 2')
    k('s_add_u32 s10, s10, s61')
    k('s_mov_b32 s80, 0')
    k.wait(vm=k.tfin)
    k('L_fin_p:')
    k('v_cmp_ne_u32 vcc, s81, v167')
    retry_tail(k, 'fin', [k.FL, 's_waitcnt vmcnt(0)'])
    k('v_lshlrev_b32 v168, 16, v166')
    k('v_and_b32 v169, 0xffff0000, v166')
    k('v_mul_f32 v168, %s, v168' % f32(-math.log(2.0)))
    k('v_mul_f32 v169, %s, v169' % f32(-math.log(2.0)))
    k.ds('ds_write2st64_b32 v17, v164, v165 offset0:0 offset1:4')
    k.ds('ds_write_b64 v18, v[168:169]')
    C12POS = E('C12POS', 0)
    k.wait(vm=k.tx1)
    k.wait_all(vm=False)
    k.barrier()
    signal(k, 'f2b', O_F2 + 0x2000, 19, 20)
    k.stamp(11)
    xq = []
    w2q = []
    for ks in range(28): w2q += w2_ops(k, ks)
    w2q0 = w2q if not C12POS else []
    def c12_block():
        gt = [None] * 32
        for s_ in range(8): gt[s_] = k.ds('ds_read_b128 %s, v16 offset:%d' % (v(80 + 4 * (s_ % 8), 4), 32 * s_))
        for s_ in range(32):
            if C12POS and s_ == E('PA_AT', 8): sync_issue(k, 'f2a', *k.PA)
            k.wait(ds=gt[s_], vm=k.tw1[s_])
            k('v_mfma_f32_32x32x16_bf16 v[128:143], %s, %s, %s' % (a(4 * s_, 4), v(80 + 4 * (s_ % 8), 4), '0' if s_ == 0 else 'v[128:143]'))
            if xq: xq.pop(0)()
            elif w2q0: w2q0.pop(0)()
            if s_ >= 1 and s_ + 7 < 32: gt[s_ + 7] = k.ds('ds_read_b128 %s, v16 offset:%d' % (v(80 + 4 * ((s_ + 7) % 8), 4), 32 * (s_ + 7)))
        k.stamp(8)
    if C12POS: c12_block()
    sync_check(k, 'f2a', k.PA, chk_tags([72, 73, 74, 75], 114), extra=0 if C12POS else 1)
    k.barrier()
    k.stamp(12); k.stamp2(1)
    ctok = {}
    def chunk_ops(ps, c):
        ops = [lambda: k('s_add_u32 m0, s56, %d' % (ps * 65536 + c * 8192))]
        def ld(i): ctok[ps, c] = k.vm('global_load_lds_dwordx4 v2, s[28:29] offset:%d%s' % (i * 1024, LD_SC))
        for i in range(4): ops.append(lambda i=i: ld(i))
        if c < 3: ops.append(lambda: k('s_add_u32 s28, s28, 8192\ns_addc_u32 s29, s29, 0'))
        elif ps == 0: ops.append(lambda: k('s_add_u32 s28, s28, %d\ns_addc_u32 s29, s29, 0' % (0x100000 - 3 * 8192)))
        return ops
    k('s_cmp_ge_u32 s4, 28')
    k('s_cbranch_scc1 L_st_a')
    for c in range(4): xq.extend(chunk_ops(0, c))
    for _ in range(len(xq) if C12POS else E('XPRE', 5)): xq.pop(0)()
    k('s_branch L_st_b')
    k('L_st_a:')
    k('s_sub_u32 s11, s4, 28')
    k('s_lshl_b32 s60, s3, 2')
    k('s_add_u32 s11, s11, s60')
    k('s_lshl_b32 s60, s11, 15')
    k('s_lshl_b32 s61, s50, 13')
    k('s_add_u32 s60, s60, s61')
    ws_ptr(k, 28, WS_X1T, 60)
    k('v_add_u32 v7, 0x1000, v2')
    STL = ['global_load_dwordx4 %s, v%d, s[28:29] offset:%d%s' % (v(80 + 4 * i, 4), 2 if i < 4 else 7, (i & 3) * 1024, LD_SC) for i in range(8)]
    for x in STL: raw(k, x)
    k('s_branch L_stats')
    k('L_st_b:')
    if not C12POS: c12_block()
    fix = ['v_mov_b32 v%d, v%d' % (144 + r, 128 + r) for r in range(16)]
    fix += ['v_permlane16_swap_b32 v%d, v%d' % (128 + r, 144 + r) for r in range(16)]
    fix += ['v_mul_f32 v%d, %s, v%d' % (144 + r, f32(-LOG2E), 144 + r) for r in range(16)]
    ACC = 16
    for _ in range(E('W2E', 12) if C12POS else 0):
        if w2q: w2q.pop(0)()
    SL = lambda ps: ['global_load_dwordx2 %s, v6, s[70:71] offset:%d%s' % (v(8 + 2 * u, 2), 256 * u, SC) for u in range(2)]
    htok = {}
    def hload(ps, s_):
        htok[ps, s_] = k.vm('global_load_dwordx4 %s, v2, s[22:23] offset:%d%s' % (a(4 * s_, 4), (s_ & 3) * 1024, LD_SC))
        if (s_ & 3) == 3:
            if s_ < 27: adv(k, 22, 33)
            elif ps == 0:
                if ROT: adv(k, 22, 33); k('s_add_u32 s22, s22, %d\ns_addc_u32 s23, s23, 0' % (32 * 114688))
                else: k('s_add_u32 s22, s22, %d\ns_addc_u32 s23, s23, 0' % (32 * 114688 - 6 * 4096))
    k.hload, k.htok = hload, htok
    F3L = lambda ps: 'global_load_dword v72, v122, s[14:15] offset:%d%s' % (1024 * ps, SC)
    W2D = E('W2D', 2)
    lstA = [None]
    for ps in range(2):
        def breg(s_, u): return 48 + 8 * (s_ % 3) + 4 * u
        rtok = {}
        def rd(s_, u):
            off = u * 32768 + s_ * 1024
            k.ds('ds_read_b64_tr_b16 %s, v%d offset:%d' % (v(breg(s_, u), 2), 4 + ps, off))
            rtok[s_, u] = k.ds('ds_read_b64_tr_b16 %s, v%d offset:%d' % (v(breg(s_, u) + 2, 2), 4 + ps, off + 256))
        k.stamp2(2 + 5 * ps)
        k.wait(vm=ctok[ps, 0]); k.barrier()
        k.stamp2(3 + 5 * ps)
        for s_ in range(2):
            for u in range(2): rd(s_, u)
        pend = []
        gap = 0
        for s_ in range(32):
            if s_ % 8 == 6 and s_ < 30:
                c = s_ // 8 + 1
                if ps == 0 and c == E('F2B_AT', 2): sync_check(k, 'f2b', [PL(126)], chk_tags([72, 73, 74, 75], 80))
                if ps == 1 and c == E('F3A_SIG', 2): k.wait(vm=lstA[0])
                k.wait(vm=ctok[ps, c]); k.barrier()
                if ps == 0 and c == E('F2B_AT', 2):
                    for c2 in range(4): pend += chunk_ops(1, c2)
                if ps == 1 and c == E('F3A_SIG', 2): signal(k, 'f3a', O_F3, 73, 74, nrep=1, sidx=10)
            if ps == 0 and s_ == 8 * E('F2B_AT', 2) - 2 - E('POLLD', 12): sync_issue(k, 'f2b', PL(126))
            if s_ == 16: k.stamp2(4 + 5 * ps)
            if s_ == 22:
                def sl(x): ctok['st'] = k.vm(x)
                for x in SL(ps): pend.append(lambda x=x: sl(x))
            for u in range(2):
                k.wait(ds=rtok[s_, u])
                k('v_mfma_f32_32x32x16_bf16 %s, %s, %s, %s' % (v(ACC + 16 * u, 16), a(4 * s_, 4), v(breg(s_, u), 4), '0' if s_ == 0 else v(ACC + 16 * u, 16)))
                if s_ + 2 < 32: rd(s_ + 2, u)
                if fix and s_ >= 2:
                    for _ in range(2): k(fix.pop(0))
                if pend: pend.pop(0)()
                elif w2q and gap % W2D == 0: w2q.pop(0)()
                gap += 1
        while pend: pend.pop(0)()
        k.stamp(13 if ps == 0 else 14); k.stamp2(5 + 5 * ps)
        k.wait(vm=ctok['st'])
        k('s_mov_b32 s80, 0')
        k('L_chk%d_p:' % ps)
        k('v_min_u32 v80, v9, v11')
        k('v_cmp_eq_u32 vcc, 0, v80')
        retry_tail(k, 'chk%d' % ps, SL(ps) + ['s_waitcnt vmcnt(0)'], 2)
        if ps == 0: k('s_add_u32 s70, s70, 0x2000\ns_addc_u32 s71, s71, 0')
        k('s_nop 7')
        k.stamp2(6 + 5 * ps)
        for u in range(2):
            b = 8 + 2 * u
            A_ = ACC + 16 * u
            for p in range(8):
                x = v(A_ + 2 * p, 2)
                k('v_pk_fma_f32 %s, %s, %s, %s op_sel_hi:[1,0,1] neg_lo:[0,1,0] neg_hi:[0,1,0]' % (x, v(128 + 2 * p, 2), v(b, 2), x))
            for p in range(8):
                x = v(A_ + 2 * p, 2)
                k('v_pk_fma_f32 %s, %s, %s, %s op_sel:[1,0,0] op_sel_hi:[1,1,1]' % (x, v(b, 2), x, v(144 + 2 * p, 2)))
            if ps == 1 and u == E('F3A_U', 0): sync_issue(k, 'f3a', F3L(0))
            for r in range(16): k('v_exp_f32 v%d, v%d' % (80 + r, A_ + r))
            for p in range(8): k('v_pk_add_f32 %s, %s, 1.0 op_sel_hi:[1,0]' % (v(80 + 2 * p, 2), v(80 + 2 * p, 2)))
            if u == 0:
                for _ in range(E('W2EP', 3)):
                    if w2q: w2q.pop(0)()
            for r in range(16): k('v_rcp_f32 v%d, v%d' % (80 + r, 80 + r))
            for p in range(8): k('v_pk_mul_f32 %s, %s, %s' % (v(A_ + 2 * p, 2), v(A_ + 2 * p, 2), v(80 + 2 * p, 2)))
            O = 96 + 8 * u
            for p in range(8): k('v_cvt_pk_bf16_f32 v%d, v%d, v%d' % (O + p, A_ + 2 * p, A_ + 2 * p + 1))
            k.vm('global_store_dwordx4 v%d, %s, s[68:69]%s' % (2 if u == 0 else 113, v(O, 4), SC))
            lst = k.vm('global_store_dwordx4 v%d, %s, s[68:69] offset:1024%s' % (2 if u == 0 else 113, v(O + 4, 4), SC))
        if ps == 0:
            lstA[0] = lst
            k('s_add_u32 s68, s68, %d\ns_addc_u32 s69, s69, 0' % (32 * 114688))
    while w2q: w2q.pop(0)()
    sync_check(k, 'f3a', [F3L(0)], ['v_cmp_ne_u32 vcc, s81, v72'])
    k.barrier()
    k('s_add_u32 s10, s10, 1024')
    k('s_branch L_join')
    k('L_stats:')
    k.reset_counters()
    k('s_movk_i32 s10, 2048')
    k('s_lshl_b32 s62, s11, 8')
    add_ptr(k, 70, 14, 62)
    k('s_mov_b32 s62, 0xffff0000')
    k('v_lshlrev_b32 v3, 6, v0')
    k('v_bfe_u32 v4, v1, 3, 2')
    k('v_lshlrev_b32 v4, 6, v4')
    k('v_and_b32 v5, 7, v1')
    k('v_lshl_add_u32 v4, v5, 2, v4')
    k('v_lshrrev_b32 v5, 5, v1')
    k('v_lshl_add_u32 v4, v5, 13, v4')
    for ps in range(2):
        if ps == 1:
            poll(k, 'sf2b', [PL(126)], chk_tags([72, 73, 74, 75], 80))
            k('s_add_u32 s28, s28, 0x100000\ns_addc_u32 s29, s29, 0')
            k('s_add_u32 s70, s70, 0x2000\ns_addc_u32 s71, s71, 0')
        if ps == 0:
            xt = list(range(1, 9)); k.nvm = 8
        else: xt = [k.vm(x) for x in STL]
        for r in range(16): k('v_mov_b32 v%d, 0' % (16 + r))
        for i in range(8):
            k.wait(vm=xt[i])
            for j in range(4):
                r = 80 + 4 * i + j
                tt = 32 + 2 * (j & 1)
                k('v_lshlrev_b32 v%d, 16, v%d' % (tt, r))
                k('v_and_b32 v%d, s62, v%d' % (tt + 1, r))
                k('v_pk_add_f32 %s, %s, %s' % (v(16 + 2 * j, 2), v(16 + 2 * j, 2), v(tt, 2)))
                k('v_pk_fma_f32 %s, %s, %s, %s' % (v(24 + 2 * j, 2), v(tt, 2), v(tt, 2), v(24 + 2 * j, 2)))
        for pat in ('row_ror:4', 'row_ror:8'):
            for r in range(16): k('v_add_f32_dpp v%d, v%d, v%d %s row_mask:0xf bank_mask:0xf' % (16 + r, 16 + r, 16 + r, pat))
        for i in range(4): k.ds('ds_write_b128 v3, %s offset:%d' % (v(16 + 4 * i, 4), 16384 * ps + 16 * i))
        k.wait_all(vm=False)
        k.barrier()
        k('s_cmp_lg_u32 s50, 0')
        k('s_cbranch_scc1 L_st%d' % ps)
        for q in range(8):
            raw(k, 'ds_read_b32 v%d, v4 offset:%d' % (16 + 2 * q, 16384 * ps + 1024 * q))
            raw(k, 'ds_read_b32 v%d, v4 offset:%d' % (17 + 2 * q, 16384 * ps + 1024 * q + 32))
        k('s_waitcnt lgkmcnt(0)')
        for q in range(1, 8): k('v_pk_add_f32 v[16:17], v[16:17], %s' % v(16 + 2 * q, 2))
        k('v_mov_b64 v[18:19], v[16:17]')
        k('v_permlane32_swap_b32 v16, v18')
        k('v_permlane32_swap_b32 v17, v19')
        k('v_pk_add_f32 v[16:17], v[16:17], v[18:19]')
        k('v_mul_f32 v16, %s, v16' % f32(1.0 / 512))
        k('v_mul_f32 v17, %s, v17' % f32(1.0 / 512))
        k('v_fma_f32 v17, -v16, v16, v17')
        k('v_max_f32 v17, 0, v17')
        k('v_add_f32 v17, %s, v17' % f32(1e-5))
        k('v_rsq_f32 v17, v17')
        k('v_mul_f32 v17, %s, v17' % f32(-LOG2E))
        raw(k, 'global_store_dwordx2 v6, v[16:17], s[70:71]' + SC)
        k('L_st%d:' % ps)
    for ks in range(28):
        for op in w2_ops(k, ks): op()
    poll(k, 'sf3a', [F3L(0)], ['v_cmp_ne_u32 vcc, s81, v72'])
    k('L_join:')
    k.stamp(1); k.stamp2(12)
    k.reset_counters()
    htok.clear()
    HA0 = E('HA0', 16)
    for s_ in range(HA0): hload(0, s_)
    for q in range(2): k.ds('ds_read_b128 %s, v117 offset:%d' % (v(96 + 4 * q, 4), 32 * q))
    for r in range(16): k('v_mov_b32 v%d, 0' % (80 + r))
    k('v_add_u32 v115, 0x100000, v116')
    k('v_add_u32 v119, 0x100000, v118')
    k('s_waitcnt vmcnt(%d)' % HA0)
    k.barrier()
    signal(k, 'f3b', O_F3, 73, 74, nrep=1, sidx=10)
    aq = [lambda s_=s_: hload(0, s_) for s_ in range(HA0, 28)]
    trs = {}
    def rl(ps, q, r): trs[ps] = k.vm('global_load_short_d16_hi v%d, v%d, s[20:21] offset:%d%s' % (80 + 8 * ps + 4 * q + r, 116 - ps, (8 * q + r) * 64, LD_SC))
    for q in range(2):
        for r in range(4): aq.append(lambda q=q, r=r: rl(0, q, r))
    bq = [lambda q=q, r=r: rl(1, q, r) for q in range(2) for r in range(4)]
    FB = E('F3B_AT', 24); nh = [0]
    for ps in range(2):
        for s_ in range(28):
            k.wait(vm=htok[ps, s_])
            if s_ == 0: k.stamp2(13 + ps)
            if ps == 0 and s_ == max(0, FB - E('F3B_D', 8)): sync_issue(k, 'f3b', F3L(1))
            if ps == 0 and s_ == FB:
                sync_check(k, 'f3b', [F3L(1)], ['v_cmp_ne_u32 vcc, s81, v72'])
                k.barrier()
                k.stamp(5)
            for j in range(2):
                k('v_mfma_f32_32x32x16_bf16 %s, %s, %s, %s' % (v(ACC + 16 * j, 16), w2reg(s_)[j], a(4 * s_, 4), '0' if s_ == 0 else v(ACC + 16 * j, 16)))
                if ps == 0 and aq: aq.pop(0)()
                if ps == 1 and nh[0] < 28: hload(1, nh[0]); nh[0] += 1
                elif ps == 1 and bq and s_ >= 4: bq.pop(0)()
                if ps == 0 and s_ >= FB:
                    for _ in range(2):
                        if nh[0] < s_ + j: hload(1, nh[0]); nh[0] += 1
        while ps == 0 and FB < 28 and nh[0] < 28: hload(1, nh[0]); nh[0] += 1
        for q in range(8): k.ds('ds_write_b128 v120, %s offset:%d' % (v(ACC + 4 * q, 4), 32768 * ps + q * 1024))
        if ps == 0 and FB >= 28: sync_check(k, 'f3b', [F3L(1)], ['v_cmp_ne_u32 vcc, s81, v72'])
        k.wait_all(vm=False)
        k.barrier()
        if ps == 0 and FB >= 28:
            k.stamp(5)
            for _ in range(8): hload(1, nh[0]); nh[0] += 1
        rt_ = []
        for w_ in range(4):
            for q in range(2): t = k.ds('ds_read_b128 %s, v121 offset:%d' % (v(48 + 8 * w_ + 4 * q, 4), 32768 * ps + w_ * 8192 + q * 1024))
            rt_.append(t)
        while ps == 0 and nh[0] < E('HB1', 20): hload(1, nh[0]); nh[0] += 1
        k.wait(ds=rt_[1])
        for p in range(4): k('v_pk_add_f32 %s, %s, %s' % (v(48 + 2 * p, 2), v(48 + 2 * p, 2), v(56 + 2 * p, 2)))
        k.wait(ds=rt_[3])
        for p in range(4): k('v_pk_add_f32 %s, %s, %s' % (v(64 + 2 * p, 2), v(64 + 2 * p, 2), v(72 + 2 * p, 2)))
        k.wait(vm=trs[ps])
        for p in range(4):
            k('v_pk_add_f32 %s, %s, %s' % (v(48 + 2 * p, 2), v(48 + 2 * p, 2), v(64 + 2 * p, 2)))
            k('v_pk_fma_f32 %s, %s, %s, %s' % (v(48 + 2 * p, 2), v(48 + 2 * p, 2), v(96 + 2 * p, 2), v(80 + 8 * ps + 2 * p, 2)))
            k('v_cvt_pk_bf16_f32 v%d, v%d, v%d' % (104 + 4 * ps + p, 48 + 2 * p, 49 + 2 * p))
        b = 104 + 4 * ps
        k('v_permlane32_swap_b32 v%d, v%d' % (b, b + 2))
        k('v_permlane32_swap_b32 v%d, v%d' % (b + 1, b + 3))
        k.vm('global_store_dwordx4 v%d, %s, s[24:25]' % (118 + ps, v(b, 4)))

def build_single(path):
    k = Kern(NAME + '_kernel')
    phase0(k); conv_phase(k); mlp_phase(k)
    k.end()
    k('L_end:')
    k('s_endpgm')
    launch, (vg_, sg_, ac) = 'grid=(256,1,1) block=(256,1,1) lds=%d' % LDS_TOTAL, (512, 84, 256)
    out = [HEADER.rstrip(), '; @launch ' + launch, '.amdgcn_target "amdgcn-amd-amdhsa--gfx950"', k.text(vg_, sg_, ac), '.text\nL_text_end:\n    s_endpgm']
    print(k.name, k.stats)
    open(path, 'w').write('\n'.join(out) + '\n')

if __name__ == '__main__':
    build_single(sys.argv[1] if len(sys.argv) > 1 else ('diag.s' if DIAG else 'cdna_kernels/%s.s' % NAME))
```

```python
import os
from gen import *
E = lambda n, d: int(os.environ.get(n, str(d)))
WS_XG = 0x000000
WS_ST1 = 0x800000
WS_MODG = 0x820000
WS_FIN = 0x860000
WS_W1P = 0x1800000
WS_X1S = 0xB00000
WS_SYNC = 0xF00000
O_F2, O_F3 = 0x8000, 0xC000
L_T = 65536
L_CM = 98304; L_SC = 114688
L_STN = 118784; L_STX = 118784 + 8448 + 128
L_CV = 0; CHS = 21120
O_K1 = 4160; O_H = 8320; O_RED = 12928
L_X = 42240
L_W1 = 79872
NW1 = 16
L_SJ = L_W1 + NW1 * 4096
L_GS = L_SJ
LDS_TOTAL = L_SJ + 16384
O_FP = 0x6000
SC = ' sc1'
LD_SC = os.environ.get('LD_SC', ' sc1')
W_SC = os.environ.get('W_SC', ' sc1')
TMO = 0x20000
SYNCW = 1
KSPLIT = E('KSPLIT', 1)

def raw(k, s_): k.lines.append('    ' + s_)

def retry_tail(k, name, loads, sleep=0):
    k('s_nop 0')
    k('s_cbranch_vccz L_%s_w' % name)
    k('s_add_u32 s80, s80, 1')
    k('s_cmp_gt_u32 s80, 0x%x' % TMO)
    k('s_cbranch_scc1 L_%s_w' % name)
    if sleep: k('s_sleep %d' % sleep)
    for l in loads: raw(k, l)
    k('s_branch L_%s_p' % name)
    k('L_%s_w:' % name)

def poll(k, name, loads, check):
    k('s_cmp_lg_u32 s50, %d' % SYNCW)
    k('s_cbranch_scc1 L_%s_w' % name)
    k('s_mov_b32 s80, 0')
    for l in loads: raw(k, l)
    k('L_%s_p:' % name)
    k('s_waitcnt vmcnt(0)')
    for c in check: k(c)
    retry_tail(k, name, loads, 1)
    k.barrier()

def signal(k, name, off, va, vd, nrep=8, sidx=None):
    k('s_cmp_lg_u32 s50, %d' % SYNCW)
    k('s_cbranch_scc1 L_%s_s' % name)
    if sidx is None:
        k('s_lshl_b32 s80, s2, 2')
        k('s_add_u32 s80, s80, 0x%x' % off)
    else:
        k('s_add_u32 s80, s%d, 0x%x' % (sidx, off))
    k('v_lshl_add_u32 v%d, v1, 10, s80' % va)
    k('v_mov_b32 v%d, s81' % vd)
    k('s_mov_b64 exec, %d' % ((1 << nrep) - 1))
    raw(k, 'global_store_dword v%d, v%d, s[14:15]%s' % (va, vd, SC))
    k('s_mov_b64 exec, -1')
    k('L_%s_s:' % name)

def chk_tags(regs, t):
    o = ['v_xor_b32 v%d, s81, v%d' % (t, regs[0])]
    for r in regs[1:]:
        o += ['v_xor_b32 v%d, s81, v%d' % (t + 1, r), 'v_or_b32 v%d, v%d, v%d' % (t, t, t + 1)]
    return o + ['v_cmp_ne_u32 vcc, 0, v%d' % t]

def phase0(k):
    load_ptrs(k)
    k('s_getpc_b64 s[82:83]')
    k('L_pf:')
    PFM = E('PFM', 1)
    if PFM == 0:
        k('v_lshlrev_b32 v255, 7, v0')
        k('v_min_u32 v255, L_text_end-L_pf-4, v255')
        raw(k, 'global_load_dword v255, v255, s[82:83]')
    else:
        N = E('PFN', 32)
        k('s_lshr_b32 s4, s2, 3')
        k('s_and_b32 s4, s4, %d' % (256 // N - 1))
        k('s_mul_i32 s4, s4, %d' % (N * 128))
        k('v_subrev_u32 v255, 192, v0')
        k('v_cmp_gt_u32 vcc, %d, v255' % N)
        k('v_lshl_add_u32 v255, v255, 7, s4')
        k('v_min_u32 v255, L_text_end-L_pf-4, v255')
        k('s_and_saveexec_b64 s[80:81], vcc')
        k('s_cbranch_execz L_pf2')
        raw(k, 'global_load_dword v255, v255, s[82:83]')
        k('L_pf2:')
        k('s_mov_b64 exec, -1')
    k('s_cmp_ge_u32 s2, 256')
    k('s_cbranch_scc1 L_end')
    k('s_memrealtime s[78:79]')
    wave_id(k, 50, 1)
    k('v_and_b32 v1, 63, v0')
    k('s_and_b32 s3, s2, 7')
    k('s_lshr_b32 s4, s2, 3')
    k('s_lshl_b32 s51, s3, 5')
    k('s_add_u32 s80, s51, s4')
    k('s_lshl_b32 s51, s80, 9')
    k('v_lshl_add_u32 v2, v0, 1, s51')
    for i in range(4, 11): k('v_mov_b32 v%d, 0' % i)
    k('s_lshr_b32 s52, s50, 1')
    k('s_lshl_b32 s53, s80, 1')
    k('s_add_u32 s53, s53, s52')
    k('s_lshl_b32 s54, s53, 1')
    k('v_mov_b32 v3, s54')
    k('v_lshrrev_b32 v77, 5, v0')
    k('v_and_b32 v78, 31, v0')
    k('v_lshlrev_b32 v78, 4, v78')
    k('v_lshl_add_u32 v79, v77, 10, v78')
    k('s_lshl_b32 s63, s2, 13')
    k('v_add_u32 v79, s63, v79')
    k.smem_wait()
    k('s_mov_b32 s34, s80')
    k('s_or_b32 s78, s78, 1')
    k('s_or_b32 s79, s2, s50')
    k('s_cmp_eq_u32 s79, 0')
    k('s_cbranch_scc0 L_nn')
    k('v_mov_b32 v250, s78')
    k('v_lshlrev_b32 v251, 6, v1')
    k('s_mov_b64 exec, 15')
    raw(k, 'global_store_dword v251, v250, s[%d:%d]%s' % (P_DBG, P_DBG + 1, SC))
    k('s_mov_b64 exec, -1')
    k('L_nn:')
    k.vm('global_load_short_d16_hi v10, v3, s[%d:%d]' % (P_LDT, P_LDT + 1))
    for i, p in enumerate((P_ARE, P_AIM, P_BRE, P_BIM, P_CRE, P_CIM)):
        tpar = k.vm('global_load_short_d16_hi v%d, v2, s[%d:%d]' % (4 + i, p, p + 1))
    k.vm('global_load_dwordx4 v[240:243], v79, s[%d:%d]' % (P_U, P_U + 1))
    tx = k.vm('global_load_dwordx4 v[244:247], v79, s[%d:%d] offset:512' % (P_U, P_U + 1))
    k('s_and_b32 s5, s4, 3')
    k('s_lshl_b32 s5, s5, 3')
    k('s_add_u32 s5, s5, s3')
    k('s_lshl_b32 s5, s5, 1')
    k('s_bfe_u32 s6, s4, 0x10002')
    k('s_add_u32 s5, s5, s6')
    k('s_lshr_b32 s6, s4, 3')
    k('s_cmp_ge_u32 s5, 48')
    k('s_cselect_b32 s7, 16, 0')
    k('s_add_u32 s7, s7, s5')
    k('s_lshl_b32 s7, s7, 6')
    k('s_lshl_b32 s8, s6, 2')
    k('s_add_u32 s8, s8, s50')
    k('s_mul_i32 s9, s8, %d' % (32 * 6144))
    k('s_add_u32 s7, s7, s9')
    k('v_lshrrev_b32 v250, 2, v1')
    k('v_mul_u32_u24 v254, 6144, v250')
    k('v_and_b32 v251, 3, v1')
    k('v_lshl_add_u32 v254, v251, 4, v254')
    k('s_lshl_b32 s9, s50, 12')
    k('s_add_u32 s9, s9, %d' % L_CM)
    k('v_mov_b32 v231, v254')
    k('s_lshl_b32 s8, s8, 6')
    k('s_and_b32 s64, s4, 1')
    k('s_lshl_b32 s64, s64, 3')
    k('s_add_u32 s64, s64, s3')
    k('s_lshl_b32 s64, s64, 1')
    k('s_bfe_u32 s65, s4, 0x10001')
    k('s_add_u32 s64, s64, s65')
    k('s_lshr_b32 s65, s4, 2')
    k('s_cmp_ge_u32 s64, 16')
    k('s_cselect_b32 s66, 64, 48')
    k('s_add_u32 s66, s66, s64')
    k('s_lshl_b32 s66, s66, 6')
    k('s_lshl_b32 s67, s65, 2')
    k('s_add_u32 s67, s67, s50')
    k('s_mul_i32 s68, s67, %d' % (16 * 6144))
    k('s_add_u32 s66, s66, s68')
    k('s_lshl_b32 s67, s67, 5')
    k('s_sub_u32 s67, s67, 64')
    k('v_min_u32 v248, 23, v1')
    k('v_cmp_gt_u32 vcc, 16, v248')
    k('v_mov_b32 v250, s67')
    k('v_mov_b32 v251, s8')
    k('v_cndmask_b32 v250, v250, v251, vcc')
    k('v_lshl_add_u32 v248, v248, 2, v250')
    tc = k.vm('global_load_dword v248, v248, s[%d:%d]' % (P_C, P_C + 1))
    k('s_lshl_b32 s60, s34, 2')
    k('s_load_dword s30, s[%d:%d], s60' % (P_DSK, P_DSK + 1))
    if E('W1T', 0):
        k('s_and_b32 s75, s3, 1')
        k('s_mul_i32 s75, s75, 7')
        k('s_lshr_b32 s76, s4, 2')
        k('s_add_u32 s75, s75, s76')
        k('s_min_u32 s75, s75, 13')
        k('s_lshl_b32 s75, s75, 8')
        k('s_and_b32 s76, s4, 3')
        k('s_mul_i32 s76, s76, %d' % (128 * 3584))
        k('s_add_u32 s75, s75, s76')
        k('v_lshrrev_b32 v237, 1, v0')
        k('v_mul_u32_u24 v237, 3584, v237')
        k('v_and_b32 v238, 1, v0')
        k('v_lshl_add_u32 v237, v238, 7, v237')
        k('v_add_u32 v237, s75, v237')
        k.vm('global_load_dword a200, v237, s[%d:%d]' % (P_W1, P_W1 + 1))
    if E('W2T', 0):
        k('s_min_u32 s75, s2, 111')
        k('s_lshl_b32 s75, s75, 14')
        k('v_and_b32 v238, 127, v0')
        k('v_lshl_add_u32 v238, v238, 7, s75')
        k.vm('global_load_dword a201, v238, s[%d:%d]' % (P_W2, P_W2 + 1))
    k('s_cmp_lt_u32 s2, 112')
    k('s_cbranch_scc0 L_pj_w1')
    k('s_lshl_b32 s76, s2, 14')
    k('s_lshl_b32 s70, s50, 12')
    k('s_add_u32 s76, s76, s70')
    add_ptr(k, 72, P_W2, 76)
    k('s_add_u32 s31, s70, %d' % L_SJ)
    k('s_movk_i32 s79, 1024')
    for r in range(4):
        k('v_xor_b32 v%d, %d, v1' % (224 + r, r << 2))
        k('v_lshlrev_b32 v%d, 4, v%d' % (224 + r, 224 + r))
        if r: k('v_add_u32 v%d, %d, v%d' % (224 + r, 1024 * r, 224 + r))
    k('s_branch L_pj_go')
    k('L_pj_w1:')
    k('s_sub_u32 s75, s2, 112')
    k('s_min_u32 s75, s75, 111')
    k('s_and_b32 s26, s75, 7')
    k('s_lshr_b32 s27, s75, 3')
    k('s_lshl_b32 s75, s26, 4')
    k('s_add_u32 s75, s75, s50')
    k('s_mul_i32 s75, s75, %d' % (4 * 3584))
    k('s_lshl_b32 s76, s27, 8')
    k('s_add_u32 s75, s75, s76')
    add_ptr(k, 72, P_W1, 75)
    k('s_lshl_b32 s31, s50, 10')
    k('s_add_u32 s31, s31, %d' % L_SJ)
    k('s_movk_i32 s79, 4096')
    k('v_lshrrev_b32 v228, 4, v1')
    k('v_and_b32 v229, 15, v1')
    k('v_lshlrev_b32 v230, 2, v228')
    k('v_xor_b32 v230, v230, v229')
    k('v_mul_u32_u24 v224, 3584, v228')
    k('v_lshl_add_u32 v224, v230, 4, v224')
    for r in range(1, 4): k('v_add_u32 v%d, %d, v224' % (224 + r, r * 16 * 3584))
    k('L_pj_go:')
    def pkdma(r):
        k('s_mov_b32 m0, s31')
        k.tpk = k.vm('global_load_lds_dwordx4 v%d, s[72:73]' % (224 + r))
        k('s_add_u32 s31, s31, s79')
    SNON = 0
    if SNON:
        add_ptr(k, 10, P_WMOD, 7)
        k('s_mov_b32 m0, s9')
        k.vm('global_load_lds_dwordx4 v231, s[10:11]')
        k('s_add_u32 s10, s10, %d' % (16 * 6144 - 1024))
        k('s_addc_u32 s11, s11, 0')
        k.vm('global_load_lds_dwordx4 v231, s[10:11] offset:1024')
        add_ptr(k, 10, P_WMOD, 66)
        k('s_add_u32 m0, s9, 2048')
        tcm = k.vm('global_load_lds_dwordx4 v231, s[10:11]')
        for r in range(4): pkdma(r)
    k('s_and_b32 s75, s5, 15')
    k('s_lshl_b32 s75, s75, 13')
    k('s_lshr_b32 s76, s5, 4')
    k('s_lshl_b32 s76, s76, 6')
    k('s_add_u32 s75, s75, s76')
    k('s_lshl_b32 s76, s6, 3')
    k('s_add_u32 s75, s75, s76')
    k('s_and_b32 s76, s64, 15')
    k('s_lshl_b32 s76, s76, 13')
    k('s_lshr_b32 s77, s64, 4')
    k('s_lshl_b32 s77, s77, 7')
    k('s_add_u32 s76, s76, s77')
    k('s_lshl_b32 s77, s65, 3')
    k('s_add_u32 s76, s76, s77')
    k('s_add_u32 s76, s76, 256')
    k('s_cmp_eq_u32 s50, 0')
    k('s_cselect_b32 s75, s75, s76')
    ws_ptr(k, 16, WS_MODG, 75)
    k('v_mov_b32 v12, 0\nv_mov_b32 v13, 0\nv_mov_b32 v14, 0\nv_mov_b32 v15, 0')
    ws_ptr(k, 14, WS_SYNC)
    tr_addr32(k, 254, 1, 250, 251, 6, 8)
    k('v_add_u32 v254, s9, v254')
    k('v_and_b32 v40, 31, v1')
    k('v_lshrrev_b32 v41, 5, v1')
    k('v_lshrrev_b32 v253, 1, v40')
    k('v_lshlrev_b32 v253, 9, v253')
    k('v_and_b32 v250, 1, v40')
    k('s_add_u32 s75, s50, 5')
    k('v_lshlrev_b32 v250, s75, v250')
    k('v_add_u32 v253, v253, v250')
    k('v_mul_u32_u24 v11, 1056, v77')
    k('v_add_u32 v11, v11, v78')
    k('v_add_u32 v11, %d, v11' % L_STN)
    k('v_bfe_u32 v56, v1, 2, 3')
    k('v_mul_u32_u24 v236, 1056, v56')
    k('v_and_b32 v57, 3, v1')
    k('v_lshl_add_u32 v236, v57, 3, v236')
    k('v_lshl_add_u32 v236, v41, 5, v236')
    k('s_lshl_b32 s75, s50, 8')
    k('s_add_u32 s75, s75, %d' % L_STN)
    k('v_add_u32 v236, s75, v236')
    k('v_and_b32 v57, 15, v1')
    k('v_lshl_add_u32 v57, v41, 4, v57')
    k('v_lshlrev_b32 v235, 5, v57')
    k('v_bfe_u32 v57, v1, 4, 1')
    k('v_lshl_add_u32 v235, v57, 4, v235')
    k('s_lshl_b32 s75, s2, 14')
    k('s_lshl_b32 s76, s50, 12')
    k('s_add_u32 s75, s75, s76')
    ws_ptr(k, 12, WS_XG, 75)
    k('s_lshr_b32 s75, s75, 8')
    ws_ptr(k, 24, WS_ST1, 75)
    k('s_mov_b32 s58, 0xffff0000')
    k('s_mov_b32 s63, 0x3f803f80')
    k('v_lshlrev_b32 v249, 2, v0')
    k('v_add_u32 v249, %d, v249' % L_SC)
    k('v_lshlrev_b32 v233, 4, v41')
    k('s_lshl_b32 s75, s50, 8')
    k('s_add_u32 s75, s75, %d' % L_SC)
    k('v_add_u32 v233, s75, v233')
    k('s_lshl_b32 s75, s50, 10')
    k('v_lshl_add_u32 v252, v1, 2, s75')
    k('v_add_u32 v252, %d, v252' % (L_SC + 1024))
    k('s_lshl_b32 s55, s50, 14')
    k('v_lshl_add_u32 v16, v1, 2, s55')
    for r in range(1, 16): k('v_xor_b32 v%d, %d, v16' % (16 + r, r << 4))
    k('v_and_b32 v42, 15, v1')
    k('v_xor_b32 v42, v42, v41')
    k('v_lshlrev_b32 v42, 4, v42')
    k('v_lshl_add_u32 v42, v40, 8, v42')
    k('v_add_u32 v32, s55, v42')
    for ks in range(1, 8): k('v_xor_b32 v%d, %d, v32' % (32 + ks, ks << 5))
    k('s_mul_i32 s56, s52, 6912')
    k('s_add_u32 s56, s56, %d' % (L_T - 0x3F00 * 4))
    k('v_lshlrev_b32 v42, 3, v40')
    k('v_cvt_f32_u32 v42, v42')
    k('v_cvt_f32_u32 v43, v41')
    c0 = [0, 1, 2, 3, 256, 258, 260, 262]
    c1 = [4, 5, 6, 7, 512, 516, 768, 772]
    for r in range(8):
        k('v_fmamk_f32 v56, v43, %s, v42' % f32(c1[r] - c0[r]))
        if c0[r]: k('v_add_f32 v56, %s, v56' % f32(c0[r]))
        else: k('v_max_f32 v56, 0.5, v56')
        k('v_cvt_pk_bf16_f32 v56, v56, 0')
        k('v_lshl_add_u32 v%d, v56, 2, s56' % (44 + r))
    k('v_cmp_eq_u32 vcc, 32, v1')
    k('v_fmaak_f32 v57, 4.0, v42, %s' % f32(4096.0))
    k('v_mov_b32 v58, %s' % f32(2048.0))
    k('v_cndmask_b32 v58, v57, v58, vcc')
    k('v_cmp_lt_u32 vcc, 31, v1')
    for r in range(8, 12):
        k('v_add_f32 v56, %s, v42' % f32(1024 + 256 * (r - 8)))
        k('v_cndmask_b32 v56, v56, v%d, vcc' % (58 if r == 8 else 57))
        k('v_cvt_pk_bf16_f32 v56, v56, 0')
        k('v_lshl_add_u32 v%d, v56, 2, s56' % (44 + r))
    k('v_and_b32 v59, 127, v0')
    k('v_lshlrev_b32 v56, 4, v59')
    k('v_sub_u32 v56, 2047, v56')
    k('v_cvt_f32_u32 v57, v56')
    for i in range(17):
        if i: k('v_add_f32 v56, %s, v57' % f32(-float(i)))
        else: k('v_mov_b32 v56, v57')
        if i >= 15: k('v_max_f32 v56, 0.5, v56')
        k('v_cvt_pk_bf16_f32 v56, v56, 0')
        k('v_lshl_add_u32 v%d, v56, 2, s56' % (60 + i))
    k('s_mov_b32 s57, 0x07060302')
    k('s_mov_b32 s59, %s' % f32(LOG2E))
    lo_log2e = LOG2E - struct.unpack('<f', struct.pack('<f', LOG2E))[0]
    inv2pi = 1.0 / (2 * math.pi)
    inv2pi_f = struct.unpack('<f', struct.pack('<f', inv2pi))[0]
    k('s_mov_b32 s60, %s' % f32(inv2pi_f))
    k('s_mov_b32 s61, %s' % f32(inv2pi - inv2pi_f))
    k('s_mov_b32 s62, %s' % f32(lo_log2e))
    k('s_lshl_b32 s75, s50, 6')
    k('v_mov_b32 v234, s75')
    NL = 'global_load_dword v232, v234, s[%d:%d]%s' % (P_DBG, P_DBG + 1, SC)
    if not SNON:
        tn = k.vm(NL)
        add_ptr(k, 10, P_WMOD, 7)
        k('s_mov_b32 m0, s9')
        k.vm('global_load_lds_dwordx4 v231, s[10:11]')
        k('s_add_u32 s10, s10, %d' % (16 * 6144 - 1024))
        k('s_addc_u32 s11, s11, 0')
        k.vm('global_load_lds_dwordx4 v231, s[10:11] offset:1024')
        add_ptr(k, 10, P_WMOD, 66)
        k('s_add_u32 m0, s9, 2048')
        tcm = k.vm('global_load_lds_dwordx4 v231, s[10:11]')
        for r in range(4): pkdma(r)
    k('s_cmp_lt_u32 s2, 112')
    k('s_cbranch_scc0 L_pa_w1')
    tr_addr32(k, 224, 1, 250, 251, 10, 4)
    k('s_lshl_b32 s76, s50, 8')
    k('s_add_u32 s76, s76, %d' % L_SJ)
    k('v_add_u32 v224, s76, v224')
    k('v_bfe_u32 v251, v1, 2, 2')
    k('v_lshlrev_b32 v251, 6, v251')
    k('v_xor_b32 v224, v224, v251')
    for q in range(1, 4): k('v_xor_b32 v%d, %d, v224' % (224 + q, q << 6))
    k('s_mul_i32 s76, s50, %d' % (4 * 114688))
    k('s_lshl_b32 s75, s2, 10')
    k('s_add_u32 s76, s76, s75')
    ws_ptr(k, 70, WS_W2P, 76)
    k('s_mov_b32 s75, 114688')
    k('s_movk_i32 s76, 8192')
    k('s_branch L_pa_go')
    k('L_pa_w1:')
    tr_addr32(k, 224, 1, 250, 251, 8, 8)
    k('v_bfe_u32 v251, v1, 2, 2')
    k('v_xor_b32 v251, s50, v251')
    k('v_lshl_add_u32 v224, v251, 6, v224')
    k('v_add_u32 v224, %d, v224' % L_SJ)
    for q in range(1, 4): k('v_add_u32 v%d, %d, v224' % (224 + q, q * 4096))
    k('s_lshl_b32 s76, s27, 2')
    k('s_add_u32 s76, s76, s50')
    k('s_lshl_b32 s76, s76, 15')
    k('s_lshl_b32 s75, s26, 12')
    k('s_add_u32 s76, s76, s75')
    ws_ptr(k, 70, WS_W1P, 76)
    k('s_movk_i32 s75, 1024')
    k('s_movk_i32 s76, 1024')
    k('L_pa_go:')
    for q in range(4): k('v_add_u32 v%d, s76, v%d' % (228 + q, 224 + q))
    k('v_lshlrev_b32 v223, 4, v1')
    k('v_add_u32 v237, s75, v223')
    k('v_add_u32 v238, s75, v237')
    k('v_add_u32 v239, s75, v238')
    k('s_lshr_b32 s5, s3, 1')
    k('s_lshl_b32 s5, s5, 2')
    k('s_and_b32 s75, s4, 3')
    k('s_add_u32 s5, s5, s75')
    k('s_and_b32 s7, s3, 1')
    k('s_mul_i32 s7, s7, 7')
    k('s_lshr_b32 s75, s4, 2')
    k('s_add_u32 s7, s7, s75')
    k('s_min_u32 s7, s7, 13')
    k('s_lshl_b32 s6, s7, 2')
    k('s_add_u32 s6, s6, s50')
    k.smem_wait()
    k.wait(vm=tpar)
    k('v_mov_b32 v255, v223')
    k.stamp(2); k.stamp3(1)
    if SNON: k('s_load_dword s81, s[%d:%d], 0 glc' % (P_DBG, P_DBG + 1))
    k('v_mul_f32 v78, s59, v10')
    k('v_fma_f32 v79, v10, s59, -v78')
    k('v_fma_f32 v79, v10, s62, v79')
    k('v_exp_f32 v78, v78')
    k('v_mul_f32 v79, %s, v79' % f32(math.log(2.0)))
    k('v_fma_f32 v78, v78, v79, v78')
    k('v_cvt_pk_bf16_f32 v78, v78, v78')
    k('v_and_b32 v78, s58, v78')
    k('v_mul_f32 v4, v78, v4')
    k('v_mul_f32 v5, v78, v5')
    k('v_mul_f32 v152, v78, v6')
    k('v_mul_f32 v154, v78, v7')
    E0 = 96
    cmul1(k, E0, 8, 152); cmul2(k, E0, 8, 152)
    k('v_mul_f32 v4, s59, v4')
    Z1, Z256, Z8, Z128 = 80, 84, 152, 156
    def zpow(dst, p, conj, t):
        pf = f32(float(p))
        return ['v_mul_f32 v%d, %s, v4' % (t, pf), 'v_mul_f32 v%d, %s, v5' % (t + 1, pf), 'v_exp_f32 v%d, v%d' % (t, t),
                'v_mul_f32 v%d, s60, v%d' % (t + 2, t + 1), 'v_fma_f32 v%d, v%d, s60, -v%d' % (t + 3, t + 1, t + 2),
                'v_fma_f32 v%d, v%d, s61, v%d' % (t + 3, t + 1, t + 3), 'v_fract_f32 v%d, v%d' % (t + 2, t + 2),
                'v_add_f32 v%d, v%d, v%d' % (t + 2, t + 2, t + 3), 'v_cos_f32 v%d, v%d' % (t + 3, t + 2), 'v_sin_f32 v%d, v%d' % (t + 2, t + 2),
                'v_mul_f32 v%d, v%d, v%d' % (dst, t, t + 3), 'v_mul_f32 v%d, v%d, %sv%d' % (dst + 2, t, '-' if conj else '', t + 2)]
    for p_, q_ in ((zpow(Z1, 1, False, 88), zpow(Z256, 256, False, 92)), (zpow(Z8, 8, True, 88), zpow(Z128, 128, True, 92))):
        for x, y in zip(p_, q_): k(x); k(y)
    T0 = 140
    def split_a(e, i):
        t = T0 + 6 * (i & 1)
        if not KSPLIT:
            k('v_cvt_pk_bf16_f32 v%d, v%d, v%d' % (t + 4, e, e + 1)); return
        k('v_perm_b32 v%d, v%d, v%d, s57' % (t + 4, e + 1, e))
        k('v_and_b32 v%d, s58, v%d' % (t, e))
        k('v_and_b32 v%d, s58, v%d' % (t + 1, e + 1))
    def split_b(e, i, row):
        t = T0 + 6 * (i & 1)
        if not KSPLIT: return k.ds('ds_write_b32 v%d, v%d offset:%d' % (16 + (row & 15), t + 4, row * 256))
        k('v_pk_add_f32 %s, %s, %s neg_lo:[0,1] neg_hi:[0,1]' % (v(t + 2, 2), v(e, 2), v(t, 2)))
        k('v_cvt_pk_bf16_f32 v%d, v%d, v%d' % (t + 5, t + 2, t + 3))
        return k.ds('ds_write2st64_b32 v%d, v%d, v%d offset0:%d offset1:%d' % (16 + (row & 15), t + 4, t + 5, row, 32 + row))
    hi = {r: (r - 1, Z1) for r in range(1, 8)}
    hi.update({8: (0, Z256), 9: (2, Z256), 10: (4, Z256), 11: (6, Z256), 12: (8, Z256), 13: (10, Z256), 14: (12, Z256), 15: (13, Z256),
               16: (14, Z256), 17: (16, Z256), 18: (17, Z256), 19: (18, Z256), 20: (19, Z256)})
    order = [0, 1, 8, 2, 12, 3, 14, 4, 16, 5, 17, 6, 18, 7, 19, 9, 20, 10, 11, 13, 15]
    for i, r in enumerate(order):
        nxt = order[i + 1] if i + 1 < len(order) else None
        if nxt is not None: cmul1(k, E0 + 2 * nxt, E0 + 2 * hi[nxt][0], hi[nxt][1])
        split_a(E0 + 2 * r, i)
        if nxt is not None: cmul2(k, E0 + 2 * nxt, E0 + 2 * hi[nxt][0], hi[nxt][1])
        split_b(E0 + 2 * r, i, r)
    AH, AL = 160, 192
    for ks in range(8):
        k.ds('ds_read_b128 %s, v%d' % (v(AH + 4 * ks, 4), 32 + ks))
        if KSPLIT: k.ds('ds_read_b128 %s, v%d offset:8192' % (v(AL + 4 * ks, 4), 32 + ks))
    for i in range(4): k('v_mov_b32 v%d, 0' % (96 + i))
    k.stamp3(2)
    k.wait(vm=tx)
    k.stamp3(3)
    for i in range(2): k.ds('ds_write_b128 v11, %s offset:%d' % (v(240 + 4 * i, 4), 512 * i))
    for j in range(8):
        k('v_dot2c_f32_bf16 v%d, s63, v%d' % (96 + (j & 1), 240 + j))
        k('v_dot2c_f32_bf16 v%d, v%d, v%d' % (98 + (j & 1), 240 + j, 240 + j))
    if SNON:
        k.wait(vm=tc)
        k.smem_wait()
        k('v_mov_b32 v232, s81')
    else: k.wait(vm=tn)
    k('s_mov_b32 s80, 0')
    k('L_non_p:')
    k('v_cmp_eq_u32 vcc, 0, v232')
    retry_tail(k, 'non', [NL, 's_waitcnt vmcnt(0)'])
    k('v_readfirstlane_b32 s81, v232')
    k.stamp3(4)
    GR = [100 + 4 * q for q in range(3)] + [120]
    for q in range(4): k('v_mov_b32 v%d, v232\nv_mov_b32 v%d, v232' % (GR[q] + 2, GR[q] + 3))
    k.wait_all(vm=False)
    k.barrier()
    tq = [k.ds('ds_read_b64_tr_b16 %s, v236 offset:%d' % (v(GR[q], 2), 64 * q)) for q in range(4)]
    k('v_lshlrev_b32 v116, 16, v248')
    k('v_and_b32 v117, s58, v248')
    k('v_add_f32 v96, v96, v97')
    k('v_add_f32 v98, v98, v99')
    nm = 'v_mul_f32 v%%d, %s, v%%d' % f32(-LOG2E)
    silu = [nm % (118, 116), nm % (119, 117), 'v_exp_f32 v118, v118', 'v_exp_f32 v119, v119', 'v_add_f32 v118, 1.0, v118', 'v_add_f32 v119, 1.0, v119',
            'v_rcp_f32 v118, v118', 'v_rcp_f32 v119, v119', 'v_mul_f32 v116, v116, v118', 'v_mul_f32 v117, v117, v119', 'v_cvt_pk_bf16_f32 v116, v116, v117']
    for pat in ('quad_perm:[1,0,3,2]', 'quad_perm:[2,3,0,1]', 'row_half_mirror', 'row_mirror'):
        k(silu.pop(0)); k(silu.pop(0))
        k('v_add_f32_dpp v96, v96, v96 %s row_mask:0xf bank_mask:0xf' % pat)
        k('v_add_f32_dpp v98, v98, v98 %s row_mask:0xf bank_mask:0xf' % pat)
    k('v_mov_b32 v97, v96')
    k('v_mov_b32 v99, v98')
    for q in range(4):
        k.wait(ds=tq[q])
        k.vm('global_store_dwordx4 v235, %s, s[12:13] offset:%d%s' % (v(GR[q], 4), 1024 * q, SC))
    while silu: k(silu.pop(0))
    k.ds('ds_write_b32 v249, v116')
    k('v_permlane16_swap_b32 v96, v97')
    k('v_permlane16_swap_b32 v98, v99')
    for ks in range(3): k.ds('ds_read_b128 %s, v233 offset:%d' % (a(32 + 4 * ks, 4), 32 * ks))
    k('v_add_f32 v96, v96, v97')
    k('v_add_f32 v98, v98, v99')
    k('v_mul_f32 v96, %s, v96' % f32(1.0 / 512))
    k('v_mul_f32 v98, %s, v98' % f32(1.0 / 512))
    k('v_fma_f32 v98, -v96, v96, v98')
    k('v_max_f32 v98, 0, v98')
    k('v_add_f32 v98, %s, v98' % f32(1e-5))
    k('v_rsq_f32 v240, v98')
    k('v_mul_f32 v242, v96, v240')
    k('v_mov_b32 v241, v240')
    k('v_mov_b32 v243, v242')
    k('v_permlane32_swap_b32 v240, v241')
    k('v_permlane32_swap_b32 v242, v243')
    k('v_cvt_pk_bf16_f32 v242, v242, v243')
    k('v_mov_b32 v243, v232')
    k('s_mov_b64 exec, 1')
    k.vm('global_store_dwordx4 v12, v[240:243], s[24:25]' + SC)
    k('s_mov_b64 exec, -1')
    def mod_a():
        k.stamp3(6)
        k.wait(vm=tcm)
        k.stamp3(7)
        for ks in range(3):
            k.ds('ds_read_b64_tr_b16 %s, v254 offset:%d' % (a(48 + 4 * ks, 2), ks * 1024))
            k.tmr = k.ds('ds_read_b64_tr_b16 %s, v254 offset:%d' % (a(50 + 4 * ks, 2), ks * 1024 + 256))
    def mod_b():
        k.wait(ds=k.tmr)
        k('v_mfma_f32_32x32x16_bf16 a[64:79], a[32:35], a[48:51], 0')
        k('v_mfma_f32_32x32x16_bf16 a[80:95], a[40:43], a[56:59], 0')
        k('v_mfma_f32_32x32x16_bf16 a[64:79], a[36:39], a[52:55], a[64:79]')
    def mod_c():
        k.ds('ds_write_b32 v249, a80 offset:2048')
        k.ds('ds_write_b32 v249, a64 offset:1024')
        k.stamp3(8)
        k.wait_all(vm=False)
        k.barrier()
        k.stamp3(9)
        for i in range(4): k.tp = k.ds('ds_read_b32 v%d, v252 offset:%d' % (244 + i, 256 * i))
    def mod_d():
        k.wait(ds=k.tp)
        k('s_cmp_ge_u32 s50, 2')
        k('s_cbranch_scc1 L_cm2')
        k('v_add_f32 v244, v244, v245')
        k('v_add_f32 v246, v246, v247')
        k('v_add_f32 v244, v244, v246')
        k('v_mov_b32 v245, v232')
        raw(k, 'global_store_dwordx2 v253, v[244:245], s[16:17]' + SC)
        k('s_branch L_cm3')
        k('L_cm2:')
        k('v_and_b32 v246, 15, v1')
        k('s_lshl_b32 s75, s2, 6')
        k('v_lshl_add_u32 v246, v246, 2, s75')
        raw(k, 'global_store_dword v246, v12, s[14:15]' + SC)
        k('L_cm3:')
    def pack_out():
        for q in range(4):
            k.ds('ds_read_b64_tr_b16 %s, v%d' % (a(4 * q, 2), 224 + q))
            pt = k.ds('ds_read_b64_tr_b16 %s, v%d' % (a(4 * q + 2, 2), 228 + q))
        k.wait(ds=pt)
        k('s_cmp_ge_u32 s2, 224')
        k('s_cbranch_scc1 L_pk_no')
        for q in range(4): raw(k, 'global_store_dwordx4 v%d, %s, s[70:71]%s' % (255 if q == 0 else 236 + q, a(4 * q, 4), SC))
        k('L_pk_no:')
        k.tall = k.nvm
    k('s_nop 1')
    k.stamp(4); k.stamp3(5)
    eq = []
    L0 = 96
    k('v_mov_b32 v%d, 1.0' % L0)
    k('v_mov_b32 v%d, 0' % (L0 + 1))
    lo_order = []
    for m in range(16): lo_order += [m, 16 + m]
    def lreg(m): return L0 + 2 * m if m < 16 else 132 + 2 * (m & 1)
    def lsrc(m): return (lreg(m - 1), Z8) if m < 16 else (lreg(m - 16), Z128)
    for i, m in enumerate(lo_order):
        nxt = lo_order[i + 1] if i + 1 < len(lo_order) else None
        if nxt is not None: cmul1(k, lreg(nxt), *lsrc(nxt))
        split_a(lreg(m), i)
        if nxt is not None: cmul2(k, lreg(nxt), *lsrc(nxt))
        split_b(lreg(m), i, m)
        M0 = E('MODAT', 8)
        if i == M0: mod_a()
        if i == M0 + 2: mod_b()
        if i == M0 + 5: mod_c()
        if i == M0 + 7: mod_d()
        if i == E('PKO', 28):
            k.wait(vm=k.tpk); k.barrier(); pack_out()
    while eq: eq.pop(0)()
    k.stamp3(10)
    ACC = 224
    bt = []
    k.wait_all(vm=False, ds=True)
    for ks in range(8):
        t = k.ds('ds_read_b128 %s, v%d' % (v(96 + 8 * ks, 4), 32 + ks))
        if KSPLIT: t = k.ds('ds_read_b128 %s, v%d offset:8192' % (v(100 + 8 * ks, 4), 32 + ks))
        bt.append(t)
    fill = []
    F = lambda x: fill.append(x)
    F('v_lshrrev_b32 v7, 2, v1'); F('v_and_b32 v8, 3, v1'); F('v_lshlrev_b32 v16, 14, v7'); F('v_lshl_add_u32 v16, v8, 4, v16')
    F('s_lshl_b32 s60, s50, 20\ns_lshl_b32 s61, s34, 6\ns_add_u32 s60, s60, s61\ns_add_u32 s62, s48, s60\ns_addc_u32 s63, s49, 0')
    assert WS_XG == 0
    for i in range(1, 4): F('v_add_u32 v%d, 0x%x, v16' % (16 + i, i * 262144))
    F('v_and_b32 v10, 1, v8'); F('v_lshlrev_b32 v24, 6, v7'); F('v_lshl_add_u32 v24, v10, 5, v24'); F('v_lshrrev_b32 v9, 1, v8'); F('v_lshl_add_u32 v24, v9, 4, v24')
    F('s_lshl_b32 s60, s50, 12\ns_add_u32 s60, s60, 0x%x\ns_add_u32 s24, s48, s60\ns_addc_u32 s25, s49, 0' % WS_ST1)
    F('v_lshlrev_b32 v21, 3, v1')
    F('s_lshl_b32 s60, s34, 9\ns_add_u32 s60, s60, 0x%x\ns_add_u32 s64, s48, s60\ns_addc_u32 s65, s49, 0' % WS_MODG)
    XD = [240, 244, 248, 252]
    k.XD = XD
    XL1 = ['global_load_dwordx4 %s, v%d, s[62:63]%s' % (v(XD[i], 4), 16 + i, SC) for i in range(4)] + ['global_load_dwordx2 v[22:23], v21, s[64:65]' + SC]
    XL2 = ['global_load_dwordx4 %s, v24, s[24:25] offset:%d%s' % (v(80 + 4 * i, 4), i * 1024, SC) for i in range(4)]
    k.XL = XL1 + XL2
    F('s_or_b32 s66, s55, 0x4000'); F('v_lshl_add_u32 v3, v1, 4, s66')
    F('s_mul_i32 s55, s52, %d\ns_add_u32 s55, s55, %d' % (CHS, L_CV)); F('v_lshl_add_u32 v2, v59, 5, s55')
    for x in XL1 + XL2: F('VM ' + x); F('s_nop 0')
    def emit_fill():
        x = fill.pop(0)
        if x.startswith('VM '): k.vm(x[3:])
        else: k(x)
    for ks in range(8):
        k.wait(ds=bt[ks])
        c = '0' if ks == 0 else v(ACC, 16)
        ms = [(AH + 4 * ks, 96 + 8 * ks)] + ([(AH + 4 * ks, 100 + 8 * ks), (AL + 4 * ks, 96 + 8 * ks)] if KSPLIT else [])
        for x, y in ms:
            k('v_mfma_f32_32x32x16_bf16 %s, %s, %s, %s' % (v(ACC, 16), v(x, 4), v(y, 4), c)); c = v(ACC, 16)
            for _ in range(2 if KSPLIT else 4):
                if fill: emit_fill()
    while fill: emit_fill()
    k.stamp3(11)
    k('s_nop 7\ns_nop 3')
    k('s_bitcmp1_b32 s50, 0')
    k('s_cbranch_scc0 L_kg_a')
    for i in range(3): k.ds('ds_write_b128 v3, %s offset:%d' % (v(ACC + 4 * i, 4), 1024 * i))
    k.wait_all(vm=False)
    k('L_kg_a:')
    k.barrier()
    k.stamp3(12)
    k('s_cbranch_scc1 L_kg_b')
    for i in range(3): k.ds('ds_read_b128 %s, v3 offset:%d' % (v(96 + 4 * i, 4), 1024 * i))
    k.wait_all(vm=False)
    for i in range(6): k('v_pk_add_f32 %s, %s, %s' % (v(96 + 2 * i, 2), v(96 + 2 * i, 2), v(ACC + 2 * i, 2)))
    for r in range(12): k.ds('ds_write_b32 v%d, v%d' % (44 + r, 96 + r))
    k.wait_all(vm=False)
    k('L_kg_b:')
    if E('FPB', 1): k('s_waitcnt vmcnt(%d)' % (k.nvm - k.tall))
    k.barrier()
    k.stamp3(13)
    if E('FPB', 1): signal(k, 'fp', O_FP, 28, 29)
    k('v_cmp_eq_u32 vcc, 127, v59')
    G = 96
    gt = [k.ds('ds_read_b32 v%d, v%d' % (G + i, 60 + i)) for i in range(17)]
    conv_setup(k)
    k.wait(ds=gt[-1])
    k('v_cmp_eq_u32 vcc, 127, v59')
    k('v_cndmask_b32 v%d, v%d, v12, vcc' % (G + 16, G + 16))
    for i in range(8): k('v_cvt_pk_bf16_f32 v%d, v%d, v%d' % (120 + i, G + 2 * i, G + 2 * i + 1))
    for i in range(8): k('v_cvt_pk_bf16_f32 v%d, v%d, v%d' % (128 + i, G + 2 * i + 1, G + 2 * i + 2))
    k.ds('ds_write_b128 v2, v[120:123]')
    k.ds('ds_write_b128 v2, v[124:127] offset:16')
    k.ds('ds_write_b128 v2, v[128:131] offset:%d' % O_K1)
    k.ds('ds_write_b128 v2, v[132:135] offset:%d' % (O_K1 + 16))
    k('v_lshlrev_b32 v2, 4, v1')

def conv_setup(k):
    k('s_and_b32 s54, s50, 1')
    k('v_lshlrev_b32 v11, 4, v1')
    k('v_and_b32 v5, 15, v1')
    k('v_lshrrev_b32 v6, 4, v1')
    k('s_mul_i32 s59, s54, %d' % O_K1)
    k('s_add_u32 s59, s59, s55')
    k('v_lshl_add_u32 v14, v5, 2, s59')
    k.ds('ds_write_b32 v14, v12 offset:4096')
    k('v_lshl_add_u32 v14, v1, 3, s55')
    k.ds('ds_write_b64 v14, v[12:13] offset:%d' % O_H)
    k('v_lshlrev_b32 v15, 3, v10')
    k('v_lshl_add_u32 v15, v7, 4, v15')
    k('s_lshl_b32 s60, s50, 10')
    k('v_add_u32 v15, s60, v15')
    k('v_mul_u32_u24 v20, %d, v9' % CHS)
    k('v_add_u32 v20, v20, v15')
    k('v_lshl_add_u32 v25, v9, 12, v15')
    k('s_lshl_b32 s76, s54, 10')
    k('s_add_u32 s77, s76, s55')
    k('v_lshlrev_b32 v15, 5, v5')
    k('v_lshl_add_u32 v15, v6, 3, v15')
    k('v_add_u32 v193, s77, v15')
    k('s_lshl_b32 s77, s52, 12')
    k('s_add_u32 s76, s76, s77')
    k('v_add_u32 v202, s76, v15')
    k('v_lshlrev_b32 v15, 5, v5')
    k('v_lshl_add_u32 v15, v6, 4, v15')
    k('s_lshl_b32 s77, s54, 8')
    k('s_sub_u32 s77, s55, s77')
    k('s_add_u32 s78, s77, %d' % (O_H + 512 - 32 - 192))
    k('v_add_u32 v192, s78, v15')
    k('v_lshlrev_b32 v15, 3, v6')
    k('v_sub_u32 v15, v15, v5')
    k('v_add_u32 v15, 15, v15')
    k('v_and_b32 v194, 1, v15')
    k('v_mul_u32_u24 v194, %d, v194' % O_K1)
    k('v_and_b32 v15, -2, v15')
    k('v_lshl_add_u32 v15, v15, 1, v194')
    k('s_add_u32 s78, s77, %d' % (2 * (2016 - 256 - 96 - 1536)))
    k('v_add_u32 v197, s78, v15')
    for ip in range(3): k('v_add_u32 v%d, %d, v197' % (194 + ip, 1024 * (3 - ip)))
    k('s_lshl_b32 s77, s54, 12')
    k('s_add_u32 s78, s77, s55')
    k('v_add_u32 v198, s78, v11')
    k('s_xor_b32 s77, s77, 0x1000')
    k('s_add_u32 s78, s77, s55')
    k('v_add_u32 v199, s78, v11')
    k('v_and_b32 v15, 1, v6')
    k('v_lshlrev_b32 v15, 3, v15')
    k('v_lshrrev_b32 v200, 1, v5')
    k('v_add_u32 v15, v15, v200')
    k('v_lshlrev_b32 v200, 15, v15')
    k('v_and_b32 v15, 1, v5')
    k('v_lshl_add_u32 v200, v15, 5, v200')
    k('v_lshrrev_b32 v15, 1, v6')
    k('v_lshl_add_u32 v200, v15, 4, v200')
    k('v_add_u32 v201, 0x100000, v200')
    k('s_lshl_b32 s60, s54, 19')
    k('s_lshl_b32 s61, s53, 6')
    k('s_add_u32 s60, s60, s61')
    ws_ptr(k, 66, WS_X1T, 60)
    ws_ptr(k, 68, WS_X1S, 60)
    k('s_lshl_b32 s60, s6, 15')
    ws_ptr(k, 26, WS_W1P, 60)
    k('s_lshl_b32 s77, s30, 16')
    k('s_and_b32 s74, s30, 0xffff0000')
    k('s_cmp_eq_u32 s52, 0')
    k('s_cselect_b32 s74, s77, s74')
    k('v_bfe_u32 v4, v1, 3, 1')
    k('v_cvt_f32_u32 v4, v4')
    k('v_cmp_gt_u32 vcc, 32, v1')
    k('v_cndmask_b32 v4, 0, v4, vcc')
    k('s_lshl_b32 s60, s34, 4')
    ws_ptr(k, 18, WS_FIN, 60)
    k('s_lshl_b32 s60, s3, 10')
    k('v_add_u32 v217, s60, v11')
    k('v_add_u32 v218, 0x%x, v217' % O_F2)
    k('v_add_u32 v217, 0x%x, v217' % O_FP)
    k('s_lshl_b32 s56, s54, 15')
    k('s_lshl_b32 s60, s52, 12')
    k('s_add_u32 s56, s56, s60')
    k('s_lshl_b32 s60, s5, 16')
    k('s_add_u32 s60, s60, s56')
    ws_ptr(k, 28, WS_X1S, 60)

def conv_phase(k):
    XD = k.XD
    k.stamp(6); k.stamp3(14)
    k('s_mov_b32 s80, 0')
    k('L_xv_p:')
    k('s_waitcnt vmcnt(0)')
    for c in chk_tags([x + 2 for x in XD] + [23] + [83 + 4 * i for i in range(4)], 28): k(c)
    retry_tail(k, 'xv', k.XL)
    k.vm_done = k.nvm
    k.stamp(7)
    k('v_add_f32_dpp v22, v22, v22 quad_perm:[1,0,3,2] row_mask:0xf bank_mask:0xf')
    k('s_lshl_b32 s60, s52, 2')
    k('s_add_u32 s61, s60, 24')
    k('v_add_f32_dpp v22, v22, v22 quad_perm:[2,3,0,1] row_mask:0xf bank_mask:0xf')
    k('s_add_u32 s60, s60, 16')
    k('v_cmp_eq_u32 vcc, 1, v9')
    k('v_add_f32_dpp v22, v22, v22 row_half_mirror row_mask:0xc bank_mask:0xf')
    k('v_cvt_pk_bf16_f32 v22, v22, v22')
    k('v_and_b32 v22, s58, v22')
    k('v_add_f32 v22, v22, v4')
    k('v_cvt_pk_bf16_f32 v22, v22, v22')
    k('v_and_b32 v22, s58, v22')
    k('v_readlane_b32 s62, v22, 0')
    k('v_readlane_b32 s63, v22, 4')
    k('v_readlane_b32 s64, v22, 8')
    k('v_readlane_b32 s65, v22, 12')
    k('v_readlane_b32 s75, v22, s60')
    k('v_readlane_b32 s76, v22, s61')
    k('v_mov_b32 v27, s62')
    k('v_mov_b32 v29, s63')
    k('v_mov_b32 v26, s64')
    k('v_mov_b32 v28, s65')
    k('v_cndmask_b32 v27, v27, v29, vcc')
    k('v_cndmask_b32 v26, v26, v28, vcc')
    for i in range(4):
        k.ds('ds_write_b64 v25, %s offset:%d' % (v(XD[i], 2), L_X + 256 * i))
        for j in range(2):
            r = XD[i] + j
            g = 56 + 4 * j
            tt = 48 + 4 * (j & 1)
            for e in range(3): k('v_mov_b32_dpp v%d, v%d quad_perm:[%d,%d,%d,%d] row_mask:0xf bank_mask:0xf' % (g + e, 80 + 4 * i + e, 2 * j, 2 * j + 1, 2 * j, 2 * j + 1))
            k('v_lshlrev_b32 v%d, 16, v%d' % (tt, r))
            k('v_and_b32 v%d, s58, v%d' % (tt + 1, r))
            k('v_lshlrev_b32 v%d, 16, v%d' % (tt + 2, g + 2))
            k('v_and_b32 v%d, s58, v%d' % (tt + 3, g + 2))
            k('v_pk_fma_f32 %s, %s, %s, %s neg_lo:[0,0,1] neg_hi:[0,0,1]' % (v(tt, 2), v(tt, 2), v(g, 2), v(tt + 2, 2)))
            k('v_pk_fma_f32 %s, %s, v[26:27], v[26:27] op_sel:[0,0,1] op_sel_hi:[1,0,1]' % (v(tt, 2), v(tt, 2)))
            k('v_cvt_pk_bf16_f32 v%d, v%d, v%d' % (XD[i] + 2 + j, tt, tt + 1))
        k.ds('ds_write_b64 v20, %s offset:%d' % (v(XD[i] + 2, 2), L_CV + O_H + 512 + 256 * i))
    k.wait_all(vm=False)
    k.barrier()
    if not E('FPB', 1): signal(k, 'fp', O_FP, 28, 29)
    k.stamp(9)
    ACC = 32
    def areg(st, p): return 64 + 64 * st + 4 * p
    def breg(st, q): return 96 + 64 * st + 4 * q
    def loads(cc, st, np_):
        L = []
        for p in range(np_):
            off = 128 * (1 - (p & 1)) + 16 * (3 - cc)
            L.append('ds_read2_b32 %s, v%d offset0:%d offset1:%d' % (v(areg(st, p), 2), 194 + (p >> 1), off, off + 1))
            L.append('ds_read2_b32 %s, v%d offset0:%d offset1:%d' % (v(areg(st, p) + 2, 2), 194 + (p >> 1), off + 2, off + 3))
            L.append('ds_read_b128 %s, v192 offset:%d' % (v(breg(st, p), 4), 512 * p + 64 * (3 - cc)))
        return L
    def lv_pairs(lo, hi_):
        P = []
        for lv in range(8):
            for p in range(lv + 1):
                for q in range(lv + 1):
                    if max(p, q) == lv and lo <= p + q <= hi_: P.append((p, q))
        return P
    def loadsA(cc):
        L = []
        st, o4 = cc >> 1, 4 * (cc & 1)
        for p in range(4):
            off = 128 * (1 - (p & 1)) + 16 * (3 - cc)
            L.append('ds_read2_b32 %s, v%d offset0:%d offset1:%d' % (v(areg(st, o4 + p), 2), 194 + (p >> 1), off, off + 1))
            L.append('ds_read2_b32 %s, v%d offset0:%d offset1:%d' % (v(areg(st, o4 + p) + 2, 2), 194 + (p >> 1), off + 2, off + 3))
            L.append('ds_read_b128 %s, v192 offset:%d' % (v(breg(st, o4 + p), 4), 512 * p + 64 * (3 - cc)))
        return L
    tA = {}
    for cc in range(2): tA[cc] = [k.ds(x) for x in loadsA(cc)]
    if E('FP_AT', 2) == 0: sync_issue(k, 'fp', 'global_load_dwordx4 v[204:207], v217, s[14:15]' + SC)
    k('s_cmp_lg_u32 s50, 3')
    k('s_cbranch_scc1 L_fin')
    for i, (l0, l1) in enumerate(((32, 40), (24, 28), (48, 56))):
        k('v_readlane_b32 s60, v22, %d' % l0)
        k('v_readlane_b32 s61, v22, %d' % l1)
        k('s_lshr_b32 s60, s60, 16')
        k('s_or_b32 s60, s60, s61')
        k('v_mov_b32 v%d, s60' % (220 + i))
    k('v_mov_b32 v223, s81')
    k('s_mov_b64 exec, 1')
    raw(k, 'global_store_dwordx4 v12, v[220:223], s[18:19]' + SC)
    k('s_mov_b64 exec, -1')
    k('L_fin:')
    seen = set()
    def mf(nt, ar, br):
        c = v(ACC + 4 * nt, 4) if nt in seen else '0'
        seen.add(nt)
        k('v_mfma_f32_16x16x32_bf16 %s, %s, %s, %s' % (v(ACC + 4 * nt, 4), v(ar, 4), v(br, 4), c))
    def hx_reads(ps):
        return (['ds_read_b64 %s, v193 offset:%d' % (v(16 + 2 * j, 2), O_H + 512 + 2048 * ps + 512 * j) for j in range(2)] +
                ['ds_read_b64 %s, v202 offset:%d' % (v(20 + 2 * j, 2), L_X + 2048 * ps + 512 * j) for j in range(2)])
    PA = lv_pairs(0, 3); PB = lv_pairs(4, 7)
    q2 = loadsA(2) + loadsA(3) + hx_reads(0)
    tq = []
    for cc in range(4):
        st, o4 = cc >> 1, 4 * (cc & 1)
        for n, (p, q) in enumerate(PA):
            if cc < 2: k.wait(ds=tA[cc][3 * max(p, q) + 2])
            else: k.wait(ds=tq[12 * (cc - 2) + 3 * max(p, q) + 2])
            mf(p + q, areg(st, o4 + p), breg(st, o4 + q))
            for _ in range(2):
                if q2 and (cc > 0 or n >= 2): tq.append(k.ds(q2.pop(0)))
            if cc == 2 and n == 2: qB = loads(0, 0, 8)
            if cc >= 2 and (cc > 2 or n >= 2):
                for _ in range(2):
                    if qB: k.ds(qB.pop(0))
    assert not q2 and not qB
    def exchange_and_store(ps, lab, mid):
        b = ACC + 16 * ps
        k('s_nop 7')
        k('s_cmp_eq_u32 s54, 0')
        k('s_cbranch_scc0 L_%s_1' % lab)
        for j in range(2): k.ds('ds_write_b128 v198, %s offset:%d' % (v(b + 8 + 4 * j, 4), O_RED + 2048 * ps + 1024 * j))
        for j in range(4): k('v_mov_b64 %s, %s' % (v(224 + 2 * j, 2), v(b + 2 * j, 2)))
        k('s_branch L_%s_2' % lab)
        k('L_%s_1:' % lab)
        k.nds -= 2
        for j in range(2): k.ds('ds_write_b128 v198, %s offset:%d' % (v(b + 4 * j, 4), O_RED + 2048 * ps + 1024 * j))
        for j in range(4): k('v_mov_b64 %s, %s' % (v(224 + 2 * j, 2), v(b + 8 + 2 * j, 2)))
        k('L_%s_2:' % lab)
        k.pre()
        k.wait_all(vm=False)
        k.barrier()
        mid()
        rt_ = [k.ds('ds_read_b128 %s, v199 offset:%d' % (v(232 + 4 * j, 4), O_RED + 2048 * ps + 1024 * j)) for j in range(2)]
        for i in range(4):
            k('v_lshlrev_b32 v%d, 16, v%d' % (240 + 2 * i, 16 + i))
            k('v_and_b32 v%d, s58, v%d' % (241 + 2 * i, 16 + i))
            k('v_pk_fma_f32 %s, %s, s[74:75], %s op_sel_hi:[1,0,1]' % (v(224 + 2 * i, 2), v(240 + 2 * i, 2), v(224 + 2 * i, 2)))
            k('v_lshlrev_b32 v%d, 16, v%d' % (248 + 2 * i, 20 + i))
            k('v_and_b32 v%d, s58, v%d' % (249 + 2 * i, 20 + i))
        k.wait(ds=rt_[1])
        for i in range(4):
            k('v_pk_add_f32 %s, %s, %s' % (v(224 + 2 * i, 2), v(224 + 2 * i, 2), v(232 + 2 * i, 2)))
            k('v_pk_fma_f32 %s, %s, s[74:75], %s op_sel:[0,1,0] op_sel_hi:[1,1,1]' % (v(224 + 2 * i, 2), v(224 + 2 * i, 2), v(248 + 2 * i, 2)))
            k('v_pk_mul_f32 %s, %s, s[76:77] op_sel_hi:[1,0]' % (v(240 + 2 * i, 2), v(224 + 2 * i, 2)))
            k('v_cvt_pk_bf16_f32 v%d, v%d, v%d' % (24 + i, 240 + 2 * i, 241 + 2 * i))
            k('v_cvt_pk_bf16_f32 v%d, v%d, v%d' % (28 + i, 224 + 2 * i, 225 + 2 * i))
        for b_, sp in ((24, 68), (28, 66)):
            k('v_permlane16_swap_b32 v%d, v%d' % (b_, b_ + 2))
            k('v_permlane16_swap_b32 v%d, v%d' % (b_ + 1, b_ + 3))
            t = k.vm('global_store_dwordx4 v%d, %s, s[%d:%d]%s' % (200 + ps, v(b_, 4), sp, sp + 1, SC))
        return t
    FPL = 'global_load_dwordx4 v[204:207], v217, s[14:15]' + SC
    FP_AT = E('FP_AT', 2)
    k.pre = (lambda: sync_check(k, 'fp', [FPL], chk_tags([204, 205, 206, 207], 210))) if FP_AT == 0 else (lambda: None)
    tsA = exchange_and_store(0, 'cvA', lambda: None)
    k.pre = lambda: None
    k.stamp(3)
    k.tw1 = []
    def w1l():
        n = len(k.tw1)
        k.tw1.append(k.vm('global_load_dwordx4 %s, v2, s[26:27] offset:%d%s' % (a(4 * n, 4), (n & 3) * 1024, W_SC)) if not E('NOW1', 0) else k.nvm)
        if (n & 3) == 3 and n < 31: k('s_add_u32 s26, s26, 4096'); k('s_addc_u32 s27, s27, 0')
    k.w1l = w1l
    F2A_AT = E('F2A_AT', 2); W1D = E('W1D', 3)
    for cc in range(4):
        st = cc & 1
        nxt = loads(cc + 1, st ^ 1, 8) if cc < 3 else hx_reads(1)
        if cc > 0: k.wait_all(vm=False)
        if cc == FP_AT and cc: sync_check(k, 'fp', [FPL], chk_tags([204, 205, 206, 207], 210))
        if cc == F2A_AT: k.wait(vm=tsA)
        if cc == F2A_AT or (cc == FP_AT and cc): k.barrier()
        if cc == F2A_AT: signal(k, 'f2a', O_F2, 208, 209)
        for n, (p, q) in enumerate(PB):
            if cc == FP_AT - 2 and n == 10: sync_issue(k, 'fp', FPL)
            mf(p + q, areg(st, p), breg(st, q))
            if n >= 1 and nxt: k.ds(nxt.pop(0))
            if cc >= FP_AT and n % W1D == 0 and len(k.tw1) < 32: w1l()
        assert not nxt
    k.stamp(10)
    k.PA = ['global_load_dwordx4 v[72:75], v218, s[14:15]' + SC]
    k.FL = 'global_load_dwordx4 v[164:167], v160, s[48:49]' + SC
    def mid():
        k('v_lshlrev_b32 v160, 4, v0')
        k('v_add_u32 v160, 0x%x, v160' % WS_FIN)
        k.tfin = k.vm(k.FL)
    k.tx1 = exchange_and_store(1, 'cvB', mid)
    if not E('C12POS', 0): sync_issue(k, 'f2a', *k.PA)
    while len(k.tw1) < 32: w1l()

ROT = E('ROT', 0)
def adv(k, p, c):
    if not ROT:
        k('s_add_u32 s%d, s%d, 4096\ns_addc_u32 s%d, s%d, 0' % (p, p, p + 1, p + 1)); return
    k('s_add_u32 s%d, s%d, 1' % (c, c))
    k('s_cmp_eq_u32 s%d, 7' % c)
    k('s_cselect_b32 s12, %d, s32' % (-24576))
    k('s_cselect_b32 s13, -1, 0')
    k('s_cselect_b32 s%d, 0, s%d' % (c, c))
    k('s_add_u32 s%d, s%d, s12' % (p, p))
    k('s_addc_u32 s%d, s%d, s13' % (p + 1, p + 1))

def w2reg(ks): return (a(128 + 8 * ks, 4), a(132 + 8 * ks, 4)) if ks < 16 else (v(160 + 8 * (ks - 16), 4), v(164 + 8 * (ks - 16), 4))
def w2_ops(k, ks):
    ops = []
    if E('NOW2', 0): return ops
    off = (ks & 3) * 1024
    ops.append(lambda: k.vm('global_load_dwordx4 %s, v2, s[76:77] offset:%d%s' % (w2reg(ks)[0], off, W_SC)))
    ops.append(lambda: k.vm('global_load_dwordx4 %s, v113, s[76:77] offset:%d%s' % (w2reg(ks)[1], off, W_SC)))
    if (ks & 3) == 3 and ks < 27: ops.append(lambda: adv(k, 76, 35))
    return ops

def sync_issue(k, name, *loads):
    k('s_cmp_lg_u32 s50, %d' % SYNCW)
    k('s_cbranch_scc1 L_%s_i' % name)
    for l in loads: raw(k, l)
    k('L_%s_i:' % name)
    k.__dict__.setdefault('pollmark', {})[name] = k.nvm

def sync_check(k, name, loads, check, extra=0):
    k('s_cmp_lg_u32 s50, %d' % SYNCW)
    k('s_cbranch_scc1 L_%s_w' % name)
    k('s_mov_b32 s80, 0')
    k('s_waitcnt vmcnt(%d)' % min(63, k.nvm - k.pollmark[name] + extra))
    k('L_%s_p:' % name)
    for c in check: k(c)
    retry_tail(k, name, list(loads) + ['s_waitcnt vmcnt(0)'], 1)

L_RD = 0

def mlp_phase(k):
    k('v_add_u32 v126, 0x2000, v218')
    PL = lambda r: 'global_load_dwordx4 v[72:75], v%d, s[14:15]%s' % (r, SC)
    k('s_lshl_b32 s8, s3, 2')
    k('s_lshr_b32 s9, s4, 3')
    k('s_add_u32 s8, s8, s9')
    k('s_and_b32 s9, s4, 7')
    k('v_add_u32 v113, 114688, v2')
    k('s_mul_i32 s51, s50, %d' % (28 * 1024))
    if ROT:
        k('s_lshr_b32 s35, s4, 3')
        k('s_lshl_b32 s35, s35, 1')
        k('s_add_u32 s35, s35, s9')
        k('s_cmp_ge_u32 s35, 7')
        k('s_cselect_b32 s60, 7, 0')
        k('s_sub_u32 s35, s35, s60')
        k('s_mov_b32 s33, s35')
        k('s_movk_i32 s32, 4096')
        k('s_lshl_b32 s60, s35, 12')
        k('s_add_u32 s51, s51, s60')
    k('s_mul_i32 s60, s9, %d' % (2 * 114688))
    k('s_add_u32 s60, s60, s51')
    ws_ptr(k, 76, WS_W2P, 60)
    k('s_mul_i32 s60, s8, 114688')
    k('s_add_u32 s60, s60, s51')
    ws_ptr(k, 22, WS_HID, 60)
    tr_addr32(k, 4, 1, 8, 9, 6, 8)
    k('v_add_u32 v5, 0x10000, v4')
    k('v_and_b32 v6, 31, v1')
    k('v_lshlrev_b32 v6, 3, v6')
    k('s_mul_i32 s62, s5, %d' % (2 * 114688))
    k('s_lshl_b32 s63, s6, 11')
    k('s_add_u32 s62, s62, s63')
    ws_ptr(k, 68, WS_HID, 62)
    k('s_lshl_b32 s62, s5, 9')
    add_ptr(k, 70, 14, 62)
    k('v_bfe_u32 v16, v1, 4, 1')
    k('v_xor_b32 v16, 1, v16')
    k('v_lshlrev_b32 v16, 10, v16')
    k('v_lshrrev_b32 v17, 5, v1')
    k('v_lshl_add_u32 v16, v17, 4, v16')
    k('v_add_u32 v16, %d, v16' % L_GS)
    k('v_lshlrev_b32 v17, 2, v0')
    k('v_add_u32 v17, %d, v17' % L_GS)
    k('v_lshlrev_b32 v18, 3, v0')
    k('v_add_u32 v18, %d, v18' % (L_GS + 2048))
    k('v_lshrrev_b32 v119, 5, v1')
    k('v_and_b32 v118, 31, v1')
    k('v_lshlrev_b32 v116, 8, v119')
    k('v_lshl_add_u32 v116, v118, 1, v116')
    k('v_lshlrev_b32 v117, 4, v119')
    k('v_lshl_add_u32 v118, v118, 10, v117')
    k('s_lshl_b32 s62, s9, 2')
    k('s_add_u32 s62, s62, s50')
    k('s_lshl_b32 s63, s8, 15')
    k('s_lshl_b32 s60, s62, 10')
    k('s_add_u32 s60, s60, s63')
    ws_ptr(k, 20, WS_X1T, 60)
    k('s_lshl_b32 s60, s62, 6')
    k('s_add_u32 s60, s60, %d' % (L_GS + 2048))
    k('v_add_u32 v117, s60, v117')
    k('s_lshl_b32 s60, s62, 5')
    k('s_add_u32 s60, s60, s63')
    add_ptr(k, 24, P_OUT, 60)
    k('s_lshl_b32 s60, s50, 13')
    k('v_add_u32 v120, s60, v2')
    k('s_lshl_b32 s60, s50, 11')
    k('v_add_u32 v121, s60, v2')
    k('s_lshr_b32 s60, s8, 1')
    k('s_lshl_b32 s60, s60, 6')
    k('s_add_u32 s60, s60, 0x%x' % O_F3)
    k('v_min_u32 v122, 13, v1')
    k('v_lshl_add_u32 v122, v122, 2, s60')
    k('s_lshl_b32 s10, s5, 6')
    k('s_lshl_b32 s61, s7, 2')
    k('s_add_u32 s10, s10, s61')
    k('s_mov_b32 s80, 0')
    k.wait(vm=k.tfin)
    k('L_fin_p:')
    k('v_cmp_ne_u32 vcc, s81, v167')
    retry_tail(k, 'fin', [k.FL, 's_waitcnt vmcnt(0)'])
    k('v_lshlrev_b32 v168, 16, v166')
    k('v_and_b32 v169, 0xffff0000, v166')
    k('v_mul_f32 v168, %s, v168' % f32(-math.log(2.0)))
    k('v_mul_f32 v169, %s, v169' % f32(-math.log(2.0)))
    k.ds('ds_write2st64_b32 v17, v164, v165 offset0:0 offset1:4')
    k.ds('ds_write_b64 v18, v[168:169]')
    C12POS = E('C12POS', 0)
    EARLYA = E('EARLYA', 0)
    def sigB(nm):
        k.wait(vm=k.tx1)
        k.barrier()
        signal(k, nm, O_F2 + 0x2000, 19, 20)
        k.stamp(11)
    k.wait_all(vm=False)
    if not EARLYA: sigB('f2b')
    xq = []
    w2q = []
    for ks in range(28): w2q += w2_ops(k, ks)
    w2q0 = w2q if not C12POS else []
    def c12_block():
        gt = [None] * 32
        for s_ in range(8): gt[s_] = k.ds('ds_read_b128 %s, v16 offset:%d' % (v(80 + 4 * (s_ % 8), 4), 32 * s_))
        for s_ in range(32):
            if C12POS and s_ == E('PA_AT', 8): sync_issue(k, 'f2a', *k.PA)
            k.wait(ds=gt[s_], vm=k.tw1[s_])
            k('v_mfma_f32_32x32x16_bf16 v[128:143], %s, %s, %s' % (a(4 * s_, 4), v(80 + 4 * (s_ % 8), 4), '0' if s_ == 0 else 'v[128:143]'))
            if EARLYA and s_ == E('SIGB_AT', 6): sigB('f2b')
            if xq: xq.pop(0)()
            elif w2q0: w2q0.pop(0)()
            if s_ >= 1 and s_ + 7 < 32: gt[s_ + 7] = k.ds('ds_read_b128 %s, v16 offset:%d' % (v(80 + 4 * ((s_ + 7) % 8), 4), 32 * (s_ + 7)))
        k.stamp(8)
    if C12POS: c12_block()
    sync_check(k, 'f2a', k.PA, chk_tags([72, 73, 74, 75], 114), extra=0 if (C12POS or EARLYA) else 1)
    k.barrier()
    k.stamp(12); k.stamp2(1)
    ctok = {}
    def chunk_ops(ps, c):
        ops = [lambda: k('s_add_u32 m0, s56, %d' % (ps * 65536 + c * 8192))]
        def ld(i): ctok[ps, c] = k.vm('global_load_lds_dwordx4 v2, s[28:29] offset:%d%s' % (i * 1024, LD_SC))
        for i in range(4): ops.append(lambda i=i: ld(i))
        if c < 3: ops.append(lambda: k('s_add_u32 s28, s28, 8192\ns_addc_u32 s29, s29, 0'))
        elif ps == 0: ops.append(lambda: k('s_add_u32 s28, s28, %d\ns_addc_u32 s29, s29, 0' % (0x100000 - 3 * 8192)))
        return ops
    k('s_cmp_ge_u32 s4, 28')
    k('s_cbranch_scc1 L_st_a')
    for c in range(4): xq.extend(chunk_ops(0, c))
    for _ in range(len(xq) if C12POS else E('XPRE', 5)): xq.pop(0)()
    k('s_branch L_st_b')
    k('L_st_a:')
    k('s_sub_u32 s11, s4, 28')
    k('s_lshl_b32 s60, s3, 2')
    k('s_add_u32 s11, s11, s60')
    k('s_lshl_b32 s60, s11, 15')
    k('s_lshl_b32 s61, s50, 13')
    k('s_add_u32 s60, s60, s61')
    ws_ptr(k, 28, WS_X1T, 60)
    k('v_add_u32 v7, 0x1000, v2')
    STL = ['global_load_dwordx4 %s, v%d, s[28:29] offset:%d%s' % (v(80 + 4 * i, 4), 2 if i < 4 else 7, (i & 3) * 1024, LD_SC) for i in range(8)]
    for x in STL: raw(k, x)
    if EARLYA:
        k('s_waitcnt vmcnt(8)')
        k.barrier()
        signal(k, 'f2bs', O_F2 + 0x2000, 19, 20)
    k('s_branch L_stats')
    k('L_st_b:')
    if not C12POS: c12_block()
    fix = ['v_mov_b32 v%d, v%d' % (144 + r, 128 + r) for r in range(16)]
    fix += ['v_permlane16_swap_b32 v%d, v%d' % (128 + r, 144 + r) for r in range(16)]
    fix += ['v_mul_f32 v%d, %s, v%d' % (144 + r, f32(-LOG2E), 144 + r) for r in range(16)]
    ACC = 16
    for _ in range(E('W2E', 12) if C12POS else 0):
        if w2q: w2q.pop(0)()
    SL = lambda ps: ['global_load_dwordx2 %s, v6, s[70:71] offset:%d%s' % (v(8 + 2 * u, 2), 256 * u, SC) for u in range(2)]
    htok = {}
    def hload(ps, s_):
        htok[ps, s_] = k.vm('global_load_dwordx4 %s, v2, s[22:23] offset:%d%s' % (a(4 * s_, 4), (s_ & 3) * 1024, LD_SC))
        if (s_ & 3) == 3:
            if s_ < 27: adv(k, 22, 33)
            elif ps == 0:
                if ROT: adv(k, 22, 33); k('s_add_u32 s22, s22, %d\ns_addc_u32 s23, s23, 0' % (32 * 114688))
                else: k('s_add_u32 s22, s22, %d\ns_addc_u32 s23, s23, 0' % (32 * 114688 - 6 * 4096))
    k.hload, k.htok = hload, htok
    F3L = lambda ps: 'global_load_dword v72, v122, s[14:15] offset:%d%s' % (1024 * ps, SC)
    W2D = E('W2D', 2)
    lstA = [None]
    for ps in range(2):
        def breg(s_, u): return 48 + 8 * (s_ % 3) + 4 * u
        rtok = {}
        def rd(s_, u):
            off = u * 32768 + s_ * 1024
            k.ds('ds_read_b64_tr_b16 %s, v%d offset:%d' % (v(breg(s_, u), 2), 4 + ps, off))
            rtok[s_, u] = k.ds('ds_read_b64_tr_b16 %s, v%d offset:%d' % (v(breg(s_, u) + 2, 2), 4 + ps, off + 256))
        k.stamp2(2 + 5 * ps)
        k.wait(vm=ctok[ps, 0]); k.barrier()
        k.stamp2(3 + 5 * ps)
        for s_ in range(2):
            for u in range(2): rd(s_, u)
        pend = []
        gap = 0
        for s_ in range(32):
            if s_ % 8 == 6 and s_ < 30:
                c = s_ // 8 + 1
                if ps == 0 and c == E('F2B_AT', 2): sync_check(k, 'f2b', [PL(126)], chk_tags([72, 73, 74, 75], 80))
                if ps == 1 and c == E('F3A_SIG', 2): k.wait(vm=lstA[0])
                k.wait(vm=ctok[ps, c]); k.barrier()
                if ps == 0 and c == E('F2B_AT', 2):
                    for c2 in range(4): pend += chunk_ops(1, c2)
                if ps == 1 and c == E('F3A_SIG', 2): signal(k, 'f3a', O_F3, 73, 74, nrep=1, sidx=10)
            if ps == 0 and s_ == 8 * E('F2B_AT', 2) - 2 - E('POLLD', 12): sync_issue(k, 'f2b', PL(126))
            if s_ == 16: k.stamp2(4 + 5 * ps)
            if s_ == 22:
                def sl(x): ctok['st'] = k.vm(x)
                for x in SL(ps): pend.append(lambda x=x: sl(x))
            for u in range(2):
                k.wait(ds=rtok[s_, u])
                k('v_mfma_f32_32x32x16_bf16 %s, %s, %s, %s' % (v(ACC + 16 * u, 16), a(4 * s_, 4), v(breg(s_, u), 4), '0' if s_ == 0 else v(ACC + 16 * u, 16)))
                if s_ + 2 < 32: rd(s_ + 2, u)
                if fix and s_ >= 2:
                    for _ in range(2): k(fix.pop(0))
                if pend: pend.pop(0)()
                elif w2q and gap % W2D == 0: w2q.pop(0)()
                gap += 1
        while pend: pend.pop(0)()
        k.stamp(13 if ps == 0 else 14); k.stamp2(5 + 5 * ps)
        k.wait(vm=ctok['st'])
        k('s_mov_b32 s80, 0')
        k('L_chk%d_p:' % ps)
        k('v_min_u32 v80, v9, v11')
        k('v_cmp_eq_u32 vcc, 0, v80')
        retry_tail(k, 'chk%d' % ps, SL(ps) + ['s_waitcnt vmcnt(0)'], 2)
        if ps == 0: k('s_add_u32 s70, s70, 0x2000\ns_addc_u32 s71, s71, 0')
        k('s_nop 7')
        k.stamp2(6 + 5 * ps)
        for u in range(2):
            b = 8 + 2 * u
            A_ = ACC + 16 * u
            for p in range(8):
                x = v(A_ + 2 * p, 2)
                k('v_pk_fma_f32 %s, %s, %s, %s op_sel_hi:[1,0,1] neg_lo:[0,1,0] neg_hi:[0,1,0]' % (x, v(128 + 2 * p, 2), v(b, 2), x))
            for p in range(8):
                x = v(A_ + 2 * p, 2)
                k('v_pk_fma_f32 %s, %s, %s, %s op_sel:[1,0,0] op_sel_hi:[1,1,1]' % (x, v(b, 2), x, v(144 + 2 * p, 2)))
            if ps == 1 and u == E('F3A_U', 0): sync_issue(k, 'f3a', F3L(0))
            W2EP = E('W2EP', 4)
            def tick(r):
                if w2q and W2EP and r % W2EP == W2EP - 1 and (u == 0 or E('W2EU', 0)): w2q.pop(0)()
            for r in range(16):
                k('v_exp_f32 v%d, v%d' % (80 + r, A_ + r)); tick(r)
            for p in range(8): k('v_pk_add_f32 %s, %s, 1.0 op_sel_hi:[1,0]' % (v(80 + 2 * p, 2), v(80 + 2 * p, 2)))
            for r in range(16):
                k('v_rcp_f32 v%d, v%d' % (80 + r, 80 + r)); tick(r)
            for p in range(8): k('v_pk_mul_f32 %s, %s, %s' % (v(A_ + 2 * p, 2), v(A_ + 2 * p, 2), v(80 + 2 * p, 2)))
            O = 96 + 8 * u
            for p in range(8): k('v_cvt_pk_bf16_f32 v%d, v%d, v%d' % (O + p, A_ + 2 * p, A_ + 2 * p + 1))
            k.vm('global_store_dwordx4 v%d, %s, s[68:69]%s' % (2 if u == 0 else 113, v(O, 4), SC))
            lst = k.vm('global_store_dwordx4 v%d, %s, s[68:69] offset:1024%s' % (2 if u == 0 else 113, v(O + 4, 4), SC))
        if ps == 0:
            lstA[0] = lst
            k('s_add_u32 s68, s68, %d\ns_addc_u32 s69, s69, 0' % (32 * 114688))
    print('w2 leftover ops', len(w2q))
    while w2q: w2q.pop(0)()
    sync_check(k, 'f3a', [F3L(0)], ['v_cmp_ne_u32 vcc, s81, v72'])
    k.barrier()
    k('s_add_u32 s10, s10, 1024')
    k('s_branch L_join')
    k('L_stats:')
    k.reset_counters()
    k('s_movk_i32 s10, 2048')
    k('s_lshl_b32 s62, s11, 8')
    add_ptr(k, 70, 14, 62)
    k('s_mov_b32 s62, 0xffff0000')
    k('v_lshlrev_b32 v3, 6, v0')
    k('v_bfe_u32 v4, v1, 3, 2')
    k('v_lshlrev_b32 v4, 6, v4')
    k('v_and_b32 v5, 7, v1')
    k('v_lshl_add_u32 v4, v5, 2, v4')
    k('v_lshrrev_b32 v5, 5, v1')
    k('v_lshl_add_u32 v4, v5, 13, v4')
    for ps in range(2):
        if ps == 1:
            poll(k, 'sf2b', [PL(126)], chk_tags([72, 73, 74, 75], 80))
            k('s_add_u32 s28, s28, 0x100000\ns_addc_u32 s29, s29, 0')
            k('s_add_u32 s70, s70, 0x2000\ns_addc_u32 s71, s71, 0')
        if ps == 0:
            xt = list(range(1, 9)); k.nvm = 8
        else: xt = [k.vm(x) for x in STL]
        for r in range(16): k('v_mov_b32 v%d, 0' % (16 + r))
        for i in range(8):
            k.wait(vm=xt[i])
            for j in range(4):
                r = 80 + 4 * i + j
                tt = 32 + 2 * (j & 1)
                k('v_lshlrev_b32 v%d, 16, v%d' % (tt, r))
                k('v_and_b32 v%d, s62, v%d' % (tt + 1, r))
                k('v_pk_add_f32 %s, %s, %s' % (v(16 + 2 * j, 2), v(16 + 2 * j, 2), v(tt, 2)))
                k('v_pk_fma_f32 %s, %s, %s, %s' % (v(24 + 2 * j, 2), v(tt, 2), v(tt, 2), v(24 + 2 * j, 2)))
        for pat in ('row_ror:4', 'row_ror:8'):
            for r in range(16): k('v_add_f32_dpp v%d, v%d, v%d %s row_mask:0xf bank_mask:0xf' % (16 + r, 16 + r, 16 + r, pat))
        for i in range(4): k.ds('ds_write_b128 v3, %s offset:%d' % (v(16 + 4 * i, 4), 16384 * ps + 16 * i))
        k.wait_all(vm=False)
        k.barrier()
        k('s_cmp_lg_u32 s50, 0')
        k('s_cbranch_scc1 L_st%d' % ps)
        for q in range(8):
            raw(k, 'ds_read_b32 v%d, v4 offset:%d' % (16 + 2 * q, 16384 * ps + 1024 * q))
            raw(k, 'ds_read_b32 v%d, v4 offset:%d' % (17 + 2 * q, 16384 * ps + 1024 * q + 32))
        k('s_waitcnt lgkmcnt(0)')
        for q in range(1, 8): k('v_pk_add_f32 v[16:17], v[16:17], %s' % v(16 + 2 * q, 2))
        k('v_mov_b64 v[18:19], v[16:17]')
        k('v_permlane32_swap_b32 v16, v18')
        k('v_permlane32_swap_b32 v17, v19')
        k('v_pk_add_f32 v[16:17], v[16:17], v[18:19]')
        k('v_mul_f32 v16, %s, v16' % f32(1.0 / 512))
        k('v_mul_f32 v17, %s, v17' % f32(1.0 / 512))
        k('v_fma_f32 v17, -v16, v16, v17')
        k('v_max_f32 v17, 0, v17')
        k('v_add_f32 v17, %s, v17' % f32(1e-5))
        k('v_rsq_f32 v17, v17')
        k('v_mul_f32 v17, %s, v17' % f32(-LOG2E))
        raw(k, 'global_store_dwordx2 v6, v[16:17], s[70:71]' + SC)
        k('L_st%d:' % ps)
    for ks in range(28):
        for op in w2_ops(k, ks): op()
    poll(k, 'sf3a', [F3L(0)], ['v_cmp_ne_u32 vcc, s81, v72'])
    k('L_join:')
    k.stamp(1); k.stamp2(12)
    k.reset_counters()
    htok.clear()
    HA0 = E('HA0', 16)
    for s_ in range(HA0): hload(0, s_)
    for q in range(2): k.ds('ds_read_b128 %s, v117 offset:%d' % (v(96 + 4 * q, 4), 32 * q))
    for r in range(16): k('v_mov_b32 v%d, 0' % (80 + r))
    k('v_add_u32 v115, 0x100000, v116')
    k('v_add_u32 v119, 0x100000, v118')
    k('s_waitcnt vmcnt(%d)' % HA0)
    k.barrier()
    signal(k, 'f3b', O_F3, 73, 74, nrep=1, sidx=10)
    aq = [lambda s_=s_: hload(0, s_) for s_ in range(HA0, 28)]
    trs = {}
    def rl(ps, q, r): trs[ps] = k.vm('global_load_short_d16_hi v%d, v%d, s[20:21] offset:%d%s' % (80 + 8 * ps + 4 * q + r, 116 - ps, (8 * q + r) * 64, LD_SC))
    for q in range(2):
        for r in range(4): aq.append(lambda q=q, r=r: rl(0, q, r))
    bq = [lambda q=q, r=r: rl(1, q, r) for q in range(2) for r in range(4)]
    FB = E('F3B_AT', 24); nh = [0]
    for ps in range(2):
        for s_ in range(28):
            k.wait(vm=htok[ps, s_])
            if s_ == 0: k.stamp2(13 + ps)
            if ps == 0 and s_ == max(0, FB - E('F3B_D', 8)): sync_issue(k, 'f3b', F3L(1))
            if ps == 0 and s_ == FB:
                sync_check(k, 'f3b', [F3L(1)], ['v_cmp_ne_u32 vcc, s81, v72'])
                k.barrier()
                k.stamp(5)
            for j in range(2):
                k('v_mfma_f32_32x32x16_bf16 %s, %s, %s, %s' % (v(ACC + 16 * j, 16), w2reg(s_)[j], a(4 * s_, 4), '0' if s_ == 0 else v(ACC + 16 * j, 16)))
                if ps == 0 and aq: aq.pop(0)()
                if ps == 1 and nh[0] < 28: hload(1, nh[0]); nh[0] += 1
                elif ps == 1 and bq and s_ >= 4: bq.pop(0)()
                if ps == 0 and s_ >= FB:
                    for _ in range(2):
                        if nh[0] < s_ + j: hload(1, nh[0]); nh[0] += 1
        while ps == 0 and FB < 28 and nh[0] < 28: hload(1, nh[0]); nh[0] += 1
        for q in range(8): k.ds('ds_write_b128 v120, %s offset:%d' % (v(ACC + 4 * q, 4), 32768 * ps + q * 1024))
        if ps == 0 and FB >= 28: sync_check(k, 'f3b', [F3L(1)], ['v_cmp_ne_u32 vcc, s81, v72'])
        k.wait_all(vm=False)
        k.barrier()
        if ps == 0 and FB >= 28:
            k.stamp(5)
            for _ in range(8): hload(1, nh[0]); nh[0] += 1
        rt_ = []
        for w_ in range(4):
            for q in range(2): t = k.ds('ds_read_b128 %s, v121 offset:%d' % (v(48 + 8 * w_ + 4 * q, 4), 32768 * ps + w_ * 8192 + q * 1024))
            rt_.append(t)
        while ps == 0 and nh[0] < E('HB1', 20): hload(1, nh[0]); nh[0] += 1
        k.wait(ds=rt_[1])
        for p in range(4): k('v_pk_add_f32 %s, %s, %s' % (v(48 + 2 * p, 2), v(48 + 2 * p, 2), v(56 + 2 * p, 2)))
        k.wait(ds=rt_[3])
        for p in range(4): k('v_pk_add_f32 %s, %s, %s' % (v(64 + 2 * p, 2), v(64 + 2 * p, 2), v(72 + 2 * p, 2)))
        k.wait(vm=trs[ps])
        for p in range(4):
            k('v_pk_add_f32 %s, %s, %s' % (v(48 + 2 * p, 2), v(48 + 2 * p, 2), v(64 + 2 * p, 2)))
            k('v_pk_fma_f32 %s, %s, %s, %s' % (v(48 + 2 * p, 2), v(48 + 2 * p, 2), v(96 + 2 * p, 2), v(80 + 8 * ps + 2 * p, 2)))
            k('v_cvt_pk_bf16_f32 v%d, v%d, v%d' % (104 + 4 * ps + p, 48 + 2 * p, 49 + 2 * p))
        b = 104 + 4 * ps
        k('v_permlane32_swap_b32 v%d, v%d' % (b, b + 2))
        k('v_permlane32_swap_b32 v%d, v%d' % (b + 1, b + 3))
        k.vm('global_store_dwordx4 v%d, %s, s[24:25]' % (118 + ps, v(b, 4)))

def build_single(path):
    k = Kern(NAME + '_kernel')
    phase0(k); conv_phase(k); mlp_phase(k)
    k.end()
    k('L_end:')
    k('s_endpgm')
    launch, (vg_, sg_, ac) = 'grid=(256,1,1) block=(256,1,1) lds=%d' % LDS_TOTAL, (512, 84, 256)
    out = [HEADER.rstrip(), '; @launch ' + launch, '.amdgcn_target "amdgcn-amd-amdhsa--gfx950"', k.text(vg_, sg_, ac), '.text\nL_text_end:\n    s_endpgm']
    print(k.name, k.stats)
    open(path, 'w').write('\n'.join(out) + '\n')

if __name__ == '__main__':
    build_single(sys.argv[1] if len(sys.argv) > 1 else ('diag.s' if DIAG else 'cdna_kernels/%s.s' % NAME))
```

```python
import re, os
DIAG = int(os.environ.get('DIAG', '0'))
DIAGSET = int(os.environ.get('DIAGSET', '1'))

REG_RE = re.compile(r'^(-|abs\()?\|?([vas])(?:(\d+)|\[(\d+):(\d+)\])\|?\)?$')
TRANS = ('v_exp_f32', 'v_log_f32', 'v_rcp_f32', 'v_rsq_f32', 'v_sqrt_f32', 'v_sin_f32', 'v_cos_f32')

def regs_of(tok):
    tok = tok.strip()
    if tok in ('vcc',): return {('s', 106), ('s', 107)}
    if tok == 'vcc_lo': return {('s', 106)}
    if tok == 'exec': return {('s', 126), ('s', 127)}
    if tok == 'm0': return {('s', 124)}
    m = REG_RE.match(tok)
    if not m: return set()
    f = m.group(2)
    if m.group(3) is not None: return {(f, int(m.group(3)))}
    return {(f, i) for i in range(int(m.group(4)), int(m.group(5)) + 1)}

def split_ops(s):
    ops, depth, cur = [], 0, ''
    for ch in s:
        if ch in '[(': depth += 1
        if ch in '])': depth -= 1
        if ch == ',' and depth == 0:
            ops.append(cur.strip()); cur = ''
        else: cur += ch
    if cur.strip(): ops.append(cur.strip())
    return ops

class Ins:
    def __init__(self, text):
        self.text = text
        t = text.split(';')[0].strip()
        parts = t.split(None, 1)
        self.mn = parts[0]
        rest = parts[1] if len(parts) > 1 else ''
        ops = split_ops(rest)
        mods = ''
        if ops:
            lp = ops[-1].split(None, 1)
            if len(lp) > 1 and not lp[0].endswith(':'):
                ops[-1] = lp[0]; mods = lp[1]
        self.ops, self.mods = ops, mods
        mn = self.mn
        self.mfma = mn.startswith('v_mfma')
        self.valu = mn.startswith('v_') and not self.mfma
        self.trans = any(mn.startswith(x) for x in TRANS)
        self.dot = mn.startswith('v_dot')
        self.vmem = mn.startswith('buffer_') or mn.startswith('global_')
        self.ds = mn.startswith('ds_')
        self.salu = mn.startswith('s_')
        self.dpp = '_dpp' in mn or 'quad_perm' in mods or 'row_' in mods
        self.perml = mn.startswith('v_permlane')
        self.rdlane = mn.startswith('v_readfirstlane') or mn.startswith('v_readlane')
        self.ldsdma = self.vmem and (' lds' in (' ' + mods) or '_lds_' in mn)
        self.passes = 0
        R = [regs_of(o) for o in ops]
        w, r = set(), set()
        self.srcc = set(); self.ab = set()
        if self.mfma:
            self.passes = 8 if '32x32x16' in mn else 4 if '16x16x32' in mn else None
            assert self.passes, mn
            w = R[0]; self.ab = R[1] | R[2]; self.srcc = R[3]; r = self.ab | self.srcc
        elif self.valu:
            if self.perml and 'swap' in mn:
                w = R[0] | R[1]; r = R[0] | R[1]
            elif mn.startswith('v_cmp'):
                w = R[0]; r = set().union(*R[1:])
            elif mn.startswith(('v_add_co', 'v_sub_co', 'v_addc_co', 'v_subb_co', 'v_subrev_co')):
                w = R[0] | R[1]; r = set().union(*R[2:])
            else:
                w = R[0]; r = set().union(*R[1:]) if len(R) > 1 else set()
                if mn.startswith(('v_fmac', 'v_dot2c', 'v_pk_fmac', 'v_writelane')) or self.dpp or 'sdwa' in mn: r = r | R[0]
        elif self.ds:
            if mn.startswith(('ds_read', 'ds_bpermute', 'ds_permute', 'ds_swizzle')):
                w = R[0]; r = set().union(*R[1:])
            else:
                r = set().union(*R)
        elif self.vmem:
            if 'load' in mn and not self.ldsdma:
                w = R[0]; r = set().union(*R[1:])
            else:
                r = set().union(*R) if R else set()
            if self.ldsdma: r = r | {('s', 124)}
        elif self.salu:
            if mn.startswith(('s_cmp', 's_cbranch', 's_branch', 's_waitcnt', 's_barrier', 's_nop', 's_endpgm', 's_setprio', 's_sleep', 's_bitcmp')):
                r = set().union(*R) if R else set()
            else:
                w = R[0] if R else set(); r = set().union(*R[1:]) if len(R) > 1 else set()
                if 'saveexec' in mn: w = w | regs_of('exec')
        self.w, self.r = w, r
        if mn.startswith('v_pk_') and 'f32' in mn:
            m_ = re.search(r'op_sel:\[(\d),(\d)', mods)
            assert not (m_ and m_.group(2) == '1' and ops[2].startswith('v')), 'erratum: op_sel[1]=1 on VGPR src1: ' + text
        self.widestore = self.vmem and 'store' in mn and ('x4' in mn or 'x3' in mn)
        self.storedata = set()
        if self.widestore:
            self.storedata = R[0] if mn.startswith('buffer_') else R[1]
        self.states = 1
        if mn == 's_nop': self.states = int(ops[0], 0) + 1

def vg(s): return {x for x in s if x[0] in 'va'}
def sg(s): return {x for x in s if x[0] == 's'}

def need(p, c):
    n = 0
    pw, cw, cr = p.w, c.w, c.r
    if p.valu:
        if c.mfma and vg(pw) & cr: n = max(n, 2)
        if p.trans and (vg(pw) & cr) and not c.trans: n = max(n, 1)
        if sg(pw):
            if (c.valu or c.mfma) and sg(pw) & cr: n = max(n, 4 if c.rdlane else 2)
            if c.vmem and sg(pw) & cr: n = max(n, 5)
            if c.salu and sg(pw) & cr: n = max(n, 1)
        if c.rdlane and vg(pw) & cr: n = max(n, 1)
        if (c.dpp or c.perml) and vg(pw) & cr: n = max(n, 2)
        if p.dot and (vg(pw) & (cr | cw)):
            same = c.mn == p.mn
            if same:
                others = set()
                Rr = [regs_of(o) for o in c.ops]
                others = Rr[1] | Rr[2]
                if vg(pw) & others: n = max(n, 3)
            else: n = max(n, 3)
        if 'sdwa' in p.mn and c.valu and vg(pw) & (cr | cw): n = max(n, 1)
    if p.mfma:
        big = {4: 8, 8: 12}[p.passes]
        if c.mfma:
            if pw & c.ab: n = max(n, big)
            if pw & c.srcc:
                if not (c.srcc == pw and c.passes == p.passes): n = max(n, p.passes + 2)
            elif pw & cw and not (cw == pw and c.passes == p.passes): n = max(n, p.passes + 2)
        elif c.valu or c.vmem or c.ds:
            if pw & (cr | cw): n = max(n, big)
        if c.valu and p.srcc & cw: n = max(n, p.passes - 1)
        if (c.vmem or c.ds) and p.srcc & cw: n = max(n, p.passes - 1)
    if p.salu and ('s', 124) in pw and (c.ldsdma): n = max(n, 1)
    if p.widestore and p.storedata & cw: n = max(n, 2)
    return n

def fix_hazards(lines):
    out = []
    hist = []
    for ln in lines:
        s = ln.split(';')[0].strip()
        if not s or s.startswith('.') :
            out.append(ln); continue
        if s.endswith(':'):
            out.append(ln); continue
        c = Ins(ln)
        dist = 0; pad = 0
        for p in reversed(hist):
            nd = need(p, c)
            if nd > dist: pad = max(pad, nd - dist)
            dist += p.states
            if dist > 20: break
        while pad > 0:
            k = min(pad, 16)
            nop = Ins('s_nop %d' % (k - 1)); out.append('    s_nop %d' % (k - 1)); hist.append(nop); pad -= k
        out.append(ln); hist.append(c)
        if c.mn in ('s_endpgm', 's_branch'): hist = []
        if len(hist) > 40: hist = hist[-30:]
    return out

class Kern:
    def __init__(self, name):
        self.name = name; self.lines = []; self.kidx = int(name[1]) - 1 if name[1].isdigit() else 0
        self.nvm = 0; self.nds = 0; self.vm_done = 0; self.ds_done = 0
        if DIAG:
            for i in range(8): self.lines.append('    s_mov_b64 s[%d:%d], 0' % (84 + 2 * i, 85 + 2 * i))
            self.stamp(0)
        self.nvm = 0; self.nds = 0; self.vm_done = 0; self.ds_done = 0
    def __call__(self, s):
        for l in s.split('\n'):
            l = l.strip()
            if not l: continue
            if l.endswith(':') or l.startswith('.'): self.lines.append(l)
            else:
                mn = l.split()[0]
                assert not (mn.startswith('buffer_') or mn.startswith('global_') or mn.startswith('ds_')), 'use vm()/ds(): ' + l
                self.lines.append('    ' + l)
    def stamp4(self, i):
        if DIAGSET == 4: self.stamp(i, True)
    def stamp3(self, i):
        if DIAGSET == 3: self.stamp(i, True)
    def stamp2(self, i):
        if DIAGSET == 2: self.stamp(i, True)
    def stamp(self, i, force=False):
        if DIAG and (force or DIAGSET == 1 or i in (0, 15)):
            self.lines.append('    s_memrealtime s[100:101]')
            self.lines.append('    s_waitcnt lgkmcnt(0)')
            self.lines.append('    s_mov_b32 s%d, s100' % (84 + i))
            self.ds_done = self.nds
    def end(self):
        if DIAG:
            L = self.lines
            L.append('    s_waitcnt vmcnt(0) lgkmcnt(0)')
            self.stamp(15)
            L.append('    s_mov_b64 exec, -1')
            if DIAG == 3:
                i = int(os.environ.get('DSTAMP', '15'))
                ref = os.environ.get('DREF', 's81')
                L.append('    s_sub_u32 s98, s%d, %s' % (84 + i, ref) if i >= 0 else '    s_sub_u32 s98, s81, s84')
                L.append('    s_lshl_b32 s98, s98, 1')
                L.append('    s_add_u32 s98, s98, s99')
                L.append('L_spin:')
                L.append('    s_memrealtime s[100:101]')
                L.append('    s_waitcnt lgkmcnt(0)')
                L.append('    s_sub_u32 s97, s98, s100')
                L.append('    s_cmp_gt_i32 s97, 0')
                L.append('    s_cbranch_scc1 L_spin')
                L.append('    s_endpgm')
                return
            if DIAG == 2:
                L.append('    s_mov_b64 exec, 1')
                L.append('    v_mov_b32 v1, 0')
                for n, i in enumerate([2, 4, 7, 9, 10, 11, 12, 13, 14, 1, 15]):
                    L.append('    s_sub_u32 s100, s%d, s81' % (84 + i))
                    L.append('    v_mov_b32 v2, s100')
                    L.append('    s_nop 1')
                    L.append('    global_atomic_umax v1, v2, s[46:47] offset:%d' % (4 * (n + 1)))
                    L.append('    s_nop 1')
                L.append('    s_endpgm')
                return
            L.append('    v_lshrrev_b32 v1, 6, v0')
            L.append('    v_lshl_add_u32 v1, s2, 3, v1')
            L.append('    v_lshlrev_b32 v1, 6, v1')
            L.append('    v_add_u32 v1, 0x%x, v1' % (0x4000000 + self.kidx * 0x100000))
            for i in range(16):
                L.append('    v_mov_b32 v2, s%d' % (84 + i))
                L.append('    s_nop 1')
                L.append('    global_store_dword v1, v2, s[48:49] offset:%d' % (4 * i))
                L.append('    s_nop 1')
        self.lines.append('    s_endpgm')
    def reset_counters(self):
        self.nvm = self.nds = self.vm_done = self.ds_done = 0
    def vm(self, s):
        self.lines.append('    ' + s); self.nvm += 1; return self.nvm
    def ds(self, s):
        self.lines.append('    ' + s); self.nds += 1; return self.nds
    def wait(self, vm=None, ds=None):
        parts = []
        if vm is not None and vm > self.vm_done:
            n = min(self.nvm - vm, 63); parts.append('vmcnt(%d)' % n); self.vm_done = self.nvm - n
        if ds is not None and ds > self.ds_done:
            n = min(self.nds - ds, 15); parts.append('lgkmcnt(%d)' % n); self.ds_done = self.nds - n
        if parts: self.lines.append('    s_waitcnt ' + ' '.join(parts))
    def wait_all(self, vm=True, ds=True):
        parts = []
        if vm: parts.append('vmcnt(0)'); self.vm_done = self.nvm
        if ds: parts.append('lgkmcnt(0)'); self.ds_done = self.nds
        self.lines.append('    s_waitcnt ' + ' '.join(parts))
    def smem_wait(self):
        self.lines.append('    s_waitcnt lgkmcnt(0)'); self.ds_done = self.nds
    def barrier(self):
        self.lines.append('    s_barrier')
    def text(self, vgpr, sgpr, accum):
        if DIAG: sgpr = 102
        body = fix_hazards(self.lines)
        if int(os.environ.get('ALIGN', '1')): body = align_pass(body)
        head = ['.text', '.globl %s' % self.name, '.p2align 8', '.type %s,@function' % self.name, '%s:' % self.name]
        desc = ['.section .rodata,"a"', '.p2align 6', '.amdhsa_kernel %s' % self.name,
                '  .amdhsa_next_free_vgpr %d' % vgpr, '  .amdhsa_next_free_sgpr %d' % sgpr, '  .amdhsa_accum_offset %d' % accum,
                '  .amdhsa_group_segment_fixed_size 0', '  .amdhsa_kernarg_size 136', '  .amdhsa_user_sgpr_count 2',
                '  .amdhsa_user_sgpr_kernarg_segment_ptr 1', '  .amdhsa_system_sgpr_workgroup_id_x 1', '.end_amdhsa_kernel']
        lastw = {}
        for ln in body:
            t_ = ln.split(';')[0].strip()
            if not t_ or t_.startswith('.') or t_.endswith(':'): continue
            i = Ins(ln)
            if i.vmem or i.mn.startswith('s_load'):
                for o in (i.ops if i.vmem else i.ops[1:2]):
                    m = re.match(r's\[(\d+):(\d+)\]$', o)
                    if m and int(m.group(1)) > 1:
                        lo, hi = int(m.group(1)), int(m.group(2))
                        whi, wlo = lastw.get(hi, '?'), lastw.get(lo, '?')
                        okh = whi.startswith(('s_addc_u32', 's_load', 's_getpc', 's_cselect', 's_mov'))
                        okl = wlo.startswith(('s_add_u32', 's_load', 's_getpc', 's_cselect', 's_mov'))
                        assert okh and okl, ('bad base', ln, wlo, whi)
            for f, n in i.w:
                if f == 's': lastw[n] = t_
        mv = ma = ms = -1
        for ln in body:
            s = ln.split(';')[0].strip()
            if not s or s.startswith('.') or s.endswith(':'): continue
            i = Ins(ln)
            for f, n in i.w | i.r:
                if f == 'v': mv = max(mv, n)
                elif f == 'a': ma = max(ma, n)
                elif n < 102: ms = max(ms, n)
        assert mv < accum, (self.name, mv, accum)
        assert accum + ma + 1 <= vgpr or ma < 0, (self.name, ma, accum, vgpr)
        assert mv < vgpr and ms < sgpr, (self.name, mv, ms)
        self.stats = (mv, ma, ms, len(body))
        return '\n'.join(head + body + desc)

def v(n, c=1): return 'v%d' % n if c == 1 else 'v[%d:%d]' % (n, n + c - 1)
def a(n, c=1): return 'a%d' % n if c == 1 else 'a[%d:%d]' % (n, n + c - 1)
def s(n, c=1): return 's%d' % n if c == 1 else 's[%d:%d]' % (n, n + c - 1)
import struct
def f32(x): return '0x%08x' % struct.unpack('<I', struct.pack('<f', x))[0]

import subprocess, tempfile
WIDEN = ('v_mov_b32', 'v_add_u32', 'v_sub_u32', 'v_and_b32', 'v_or_b32', 'v_xor_b32', 'v_lshlrev_b32', 'v_lshrrev_b32', 'v_add_f32', 'v_mul_f32',
         'v_max_f32', 'v_min_u32', 'v_exp_f32', 'v_rcp_f32', 'v_rsq_f32', 'v_cvt_f32_u32', 'v_fract_f32', 'v_sin_f32', 'v_cos_f32', 'v_mul_u32_u24',
         'v_fmac_f32', 'v_cndmask_b32', 'v_mov_b64', 'v_sub_f32')
def align_pass(lines, nopcost=4.0):
    src = '.amdgcn_target "amdgcn-amd-amdhsa--gfx950"\n.text\n' + '\n'.join(lines) + '\nL_text_end:\n s_endpgm\n'
    d = tempfile.mkdtemp()
    open(d + '/a.s', 'w').write(src)
    r = subprocess.run(['clang', '-x', 'assembler', '-target', 'amdgcn-amd-amdhsa', '-mcpu=gfx950', '-c', d + '/a.s', '-o', d + '/a.o'], capture_output=True, text=True)
    assert r.returncode == 0, r.stderr[:2000]
    o = subprocess.run(['llvm-objdump', '-d', '--mcpu=gfx950', d + '/a.o'], capture_output=True, text=True).stdout
    sizes = []
    for l in o.split('\n'):
        m = re.search(r'// [0-9A-F]{12}: ((?:[0-9A-F]{8} ?)+)', l)
        if m: sizes.append(4 * len(m.group(1).split()))
    idx = [i for i, l in enumerate(lines) if (lambda s_: s_ and not s_.startswith('.') and not s_.endswith(':'))(l.split(';')[0].strip())]
    assert len(sizes) == len(idx) + 1, (len(sizes), len(idx))
    n = len(idx)
    INF = 1e18
    cost = [[INF, INF] for _ in range(n + 1)]; back = [[None, None] for _ in range(n + 1)]
    cost[0][0] = 0
    for i in range(n):
        mn = lines[idx[i]].split()[0]
        sz = sizes[i]
        for p in (0, 1):
            c0 = cost[i][p]
            if c0 >= INF: continue
            opts = []
            for nop in (0, 1):
                q = p ^ nop; cn = c0 + nop * nopcost
                if sz == 4:
                    opts.append((q ^ 1, cn, nop, 0))
                    if mn in WIDEN: opts.append((q, cn + (1 if q else 0) + 0.01, nop, 1))
                else:
                    opts.append((q ^ ((sz // 4) & 1), cn + (1 if q else 0), nop, 0))
            for q2, c2, nop, wd in opts:
                if c2 < cost[i + 1][q2]: cost[i + 1][q2] = c2; back[i + 1][q2] = (p, nop, wd)
    p = 0 if cost[n][0] <= cost[n][1] else 1
    dec = [None] * n
    for i in range(n, 0, -1):
        pp, nop, wd = back[i][p]; dec[i - 1] = (nop, wd); p = pp
    out = []; j = 0
    for i, l in enumerate(lines):
        if j < n and idx[j] == i:
            nop, wd = dec[j]; j += 1
            if nop: out.append('    s_nop 0')
            if wd:
                mn = l.split()[0]; l = l.replace(mn, mn + '_e64', 1)
        out.append(l)
    print('align: cost before', sum(1 for i in range(n) if sizes[i] == 8 and (sum(sizes[:i]) & 4)) if n < 6000 else '?', 'after', min(cost[n]))
    return out
```

```python
import os
from gen import *
E = lambda n, d: int(os.environ.get(n, str(d)))
WS_XG = 0x000000
WS_ST1 = 0x800000
WS_MODG = 0x820000
WS_FIN = 0x860000
WS_W1P = 0x1800000
WS_X1S = 0xB00000
WS_SYNC = 0xF00000
O_F2, O_F3 = 0x8000, 0xC000
L_T = 65536
L_CM = 98304; L_SC = 114688
L_STN = 118784; L_STX = 118784 + 8448 + 128
L_CV = 0; CHS = 21120
O_K1 = 4160; O_H = 8320; O_RED = 12928
L_X = 42240
L_W1 = 79872
NW1 = 16
L_SJ = L_W1 + NW1 * 4096
L_GS = L_SJ
LDS_TOTAL = L_SJ + 16384
O_FP = 0x6000
XS = E('XS', 16384 + 384)
SC = ' sc1'
LD_SC = os.environ.get('LD_SC', ' sc1')
W_SC = os.environ.get('W_SC', ' sc1')
TMO = 0x20000
SYNCW = 1
KSPLIT = E('KSPLIT', 1)

def raw(k, s_): k.lines.append('    ' + s_)

def retry_tail(k, name, loads, sleep=0):
    k('s_nop 0')
    k('s_cbranch_vccz L_%s_w' % name)
    k('s_add_u32 s80, s80, 1')
    k('s_cmp_gt_u32 s80, 0x%x' % TMO)
    k('s_cbranch_scc1 L_%s_w' % name)
    if sleep: k('s_sleep %d' % sleep)
    for l in loads: raw(k, l)
    k('s_branch L_%s_p' % name)
    k('L_%s_w:' % name)

def poll(k, name, loads, check):
    k('s_cmp_lg_u32 s50, %d' % SYNCW)
    k('s_cbranch_scc1 L_%s_w' % name)
    k('s_mov_b32 s80, 0')
    for l in loads: raw(k, l)
    k('L_%s_p:' % name)
    k('s_waitcnt vmcnt(0)')
    for c in check: k(c)
    retry_tail(k, name, loads, 1)
    k.barrier()

def signal(k, name, off, va, vd, nrep=8, sidx=None):
    k('s_cmp_lg_u32 s50, %d' % SYNCW)
    k('s_cbranch_scc1 L_%s_s' % name)
    if sidx is None:
        k('s_lshl_b32 s80, s2, 2')
        k('s_add_u32 s80, s80, 0x%x' % off)
    else:
        k('s_add_u32 s80, s%d, 0x%x' % (sidx, off))
    k('v_lshl_add_u32 v%d, v1, 10, s80' % va)
    k('v_mov_b32 v%d, s81' % vd)
    k('s_mov_b64 exec, %d' % ((1 << nrep) - 1))
    raw(k, 'global_store_dword v%d, v%d, s[14:15]%s' % (va, vd, SC))
    k('s_mov_b64 exec, -1')
    k('L_%s_s:' % name)

def chk_tags(regs, t):
    o = ['v_xor_b32 v%d, s81, v%d' % (t, regs[0])]
    for r in regs[1:]:
        o += ['v_xor_b32 v%d, s81, v%d' % (t + 1, r), 'v_or_b32 v%d, v%d, v%d' % (t, t, t + 1)]
    return o + ['v_cmp_ne_u32 vcc, 0, v%d' % t]

def phase0(k):
    load_ptrs(k)
    k('s_getpc_b64 s[82:83]')
    k('L_pf:')
    PFM = E('PFM', 1)
    if PFM == 0:
        k('v_lshlrev_b32 v255, 7, v0')
        k('v_min_u32 v255, L_text_end-L_pf-4, v255')
        raw(k, 'global_load_dword v255, v255, s[82:83]')
    else:
        N = E('PFN', 32)
        k('s_lshr_b32 s4, s2, 3')
        k('s_and_b32 s4, s4, %d' % (256 // N - 1))
        k('s_mul_i32 s4, s4, %d' % (N * 128))
        k('v_subrev_u32 v255, 192, v0')
        k('v_cmp_gt_u32 vcc, %d, v255' % N)
        k('v_lshl_add_u32 v255, v255, 7, s4')
        k('v_min_u32 v255, L_text_end-L_pf-4, v255')
        k('s_and_saveexec_b64 s[80:81], vcc')
        k('s_cbranch_execz L_pf2')
        raw(k, 'global_load_dword v255, v255, s[82:83]')
        k('L_pf2:')
        k('s_mov_b64 exec, -1')
    k('s_cmp_ge_u32 s2, 256')
    k('s_cbranch_scc1 L_end')
    k('s_memrealtime s[78:79]')
    wave_id(k, 50, 1)
    k('v_and_b32 v1, 63, v0')
    k('s_and_b32 s3, s2, 7')
    k('s_lshr_b32 s4, s2, 3')
    k('s_lshl_b32 s51, s3, 5')
    k('s_add_u32 s80, s51, s4')
    k('s_lshl_b32 s51, s80, 9')
    k('v_lshl_add_u32 v2, v0, 1, s51')
    for i in range(4, 11): k('v_mov_b32 v%d, 0' % i)
    k('s_lshr_b32 s52, s50, 1')
    k('s_lshl_b32 s53, s80, 1')
    k('s_add_u32 s53, s53, s52')
    k('s_lshl_b32 s54, s53, 1')
    k('v_mov_b32 v3, s54')
    k('v_lshrrev_b32 v77, 5, v0')
    k('v_and_b32 v78, 31, v0')
    k('v_lshlrev_b32 v78, 4, v78')
    k('v_lshl_add_u32 v79, v77, 10, v78')
    k('s_lshl_b32 s63, s2, 13')
    k('v_add_u32 v79, s63, v79')
    k.smem_wait()
    k('s_mov_b32 s34, s80')
    k('s_or_b32 s78, s78, 1')
    k('s_or_b32 s79, s2, s50')
    k('s_cmp_eq_u32 s79, 0')
    k('s_cbranch_scc0 L_nn')
    k('v_mov_b32 v250, s78')
    k('v_lshlrev_b32 v251, 6, v1')
    k('s_mov_b64 exec, 15')
    raw(k, 'global_store_dword v251, v250, s[%d:%d]%s' % (P_DBG, P_DBG + 1, SC))
    k('s_mov_b64 exec, -1')
    k('L_nn:')
    k.vm('global_load_short_d16_hi v10, v3, s[%d:%d]' % (P_LDT, P_LDT + 1))
    for i, p in enumerate((P_ARE, P_AIM, P_BRE, P_BIM, P_CRE, P_CIM)):
        tpar = k.vm('global_load_short_d16_hi v%d, v2, s[%d:%d]' % (4 + i, p, p + 1))
    k.vm('global_load_dwordx4 v[240:243], v79, s[%d:%d]' % (P_U, P_U + 1))
    tx = k.vm('global_load_dwordx4 v[244:247], v79, s[%d:%d] offset:512' % (P_U, P_U + 1))
    k('s_and_b32 s5, s4, 3')
    k('s_lshl_b32 s5, s5, 3')
    k('s_add_u32 s5, s5, s3')
    k('s_lshl_b32 s5, s5, 1')
    k('s_bfe_u32 s6, s4, 0x10002')
    k('s_add_u32 s5, s5, s6')
    k('s_lshr_b32 s6, s4, 3')
    k('s_cmp_ge_u32 s5, 48')
    k('s_cselect_b32 s7, 16, 0')
    k('s_add_u32 s7, s7, s5')
    k('s_lshl_b32 s7, s7, 6')
    k('s_lshl_b32 s8, s6, 2')
    k('s_add_u32 s8, s8, s50')
    k('s_mul_i32 s9, s8, %d' % (32 * 6144))
    k('s_add_u32 s7, s7, s9')
    k('v_lshrrev_b32 v250, 2, v1')
    k('v_mul_u32_u24 v254, 6144, v250')
    k('v_and_b32 v251, 3, v1')
    k('v_lshl_add_u32 v254, v251, 4, v254')
    k('s_lshl_b32 s9, s50, 12')
    k('s_add_u32 s9, s9, %d' % L_CM)
    k('v_mov_b32 v231, v254')
    k('s_lshl_b32 s8, s8, 6')
    k('s_and_b32 s64, s4, 1')
    k('s_lshl_b32 s64, s64, 3')
    k('s_add_u32 s64, s64, s3')
    k('s_lshl_b32 s64, s64, 1')
    k('s_bfe_u32 s65, s4, 0x10001')
    k('s_add_u32 s64, s64, s65')
    k('s_lshr_b32 s65, s4, 2')
    k('s_cmp_ge_u32 s64, 16')
    k('s_cselect_b32 s66, 64, 48')
    k('s_add_u32 s66, s66, s64')
    k('s_lshl_b32 s66, s66, 6')
    k('s_lshl_b32 s67, s65, 2')
    k('s_add_u32 s67, s67, s50')
    k('s_mul_i32 s68, s67, %d' % (16 * 6144))
    k('s_add_u32 s66, s66, s68')
    k('s_lshl_b32 s67, s67, 5')
    k('s_sub_u32 s67, s67, 64')
    k('v_min_u32 v248, 23, v1')
    k('v_cmp_gt_u32 vcc, 16, v248')
    k('v_mov_b32 v250, s67')
    k('v_mov_b32 v251, s8')
    k('v_cndmask_b32 v250, v250, v251, vcc')
    k('v_lshl_add_u32 v248, v248, 2, v250')
    tc = k.vm('global_load_dword v248, v248, s[%d:%d]' % (P_C, P_C + 1))
    k('s_lshl_b32 s60, s34, 2')
    k('s_load_dword s30, s[%d:%d], s60' % (P_DSK, P_DSK + 1))
    if E('W1T', 0):
        k('s_and_b32 s75, s3, 1')
        k('s_mul_i32 s75, s75, 7')
        k('s_lshr_b32 s76, s4, 2')
        k('s_add_u32 s75, s75, s76')
        k('s_min_u32 s75, s75, 13')
        k('s_lshl_b32 s75, s75, 8')
        k('s_and_b32 s76, s4, 3')
        k('s_mul_i32 s76, s76, %d' % (128 * 3584))
        k('s_add_u32 s75, s75, s76')
        k('v_lshrrev_b32 v237, 1, v0')
        k('v_mul_u32_u24 v237, 3584, v237')
        k('v_and_b32 v238, 1, v0')
        k('v_lshl_add_u32 v237, v238, 7, v237')
        k('v_add_u32 v237, s75, v237')
        k.vm('global_load_dword a200, v237, s[%d:%d]' % (P_W1, P_W1 + 1))
    if E('W2T', 0):
        k('s_min_u32 s75, s2, 111')
        k('s_lshl_b32 s75, s75, 14')
        k('v_and_b32 v238, 127, v0')
        k('v_lshl_add_u32 v238, v238, 7, s75')
        k.vm('global_load_dword a201, v238, s[%d:%d]' % (P_W2, P_W2 + 1))
    k('s_cmp_lt_u32 s2, 112')
    k('s_cbranch_scc0 L_pj_w1')
    k('s_lshl_b32 s76, s2, 14')
    k('s_lshl_b32 s70, s50, 12')
    k('s_add_u32 s76, s76, s70')
    add_ptr(k, 72, P_W2, 76)
    k('s_add_u32 s31, s70, %d' % L_SJ)
    k('s_movk_i32 s79, 1024')
    for r in range(4):
        k('v_xor_b32 v%d, %d, v1' % (224 + r, r << 2))
        k('v_lshlrev_b32 v%d, 4, v%d' % (224 + r, 224 + r))
        if r: k('v_add_u32 v%d, %d, v%d' % (224 + r, 1024 * r, 224 + r))
    k('s_branch L_pj_go')
    k('L_pj_w1:')
    k('s_sub_u32 s75, s2, 112')
    k('s_min_u32 s75, s75, 111')
    k('s_and_b32 s26, s75, 7')
    k('s_lshr_b32 s27, s75, 3')
    k('s_lshl_b32 s75, s26, 4')
    k('s_add_u32 s75, s75, s50')
    k('s_mul_i32 s75, s75, %d' % (4 * 3584))
    k('s_lshl_b32 s76, s27, 8')
    k('s_add_u32 s75, s75, s76')
    add_ptr(k, 72, P_W1, 75)
    k('s_lshl_b32 s31, s50, 10')
    k('s_add_u32 s31, s31, %d' % L_SJ)
    k('s_movk_i32 s79, 4096')
    k('v_lshrrev_b32 v228, 4, v1')
    k('v_and_b32 v229, 15, v1')
    k('v_lshlrev_b32 v230, 2, v228')
    k('v_xor_b32 v230, v230, v229')
    k('v_mul_u32_u24 v224, 3584, v228')
    k('v_lshl_add_u32 v224, v230, 4, v224')
    for r in range(1, 4): k('v_add_u32 v%d, %d, v224' % (224 + r, r * 16 * 3584))
    k('L_pj_go:')
    def pkdma(r):
        k('s_mov_b32 m0, s31')
        k.tpk = k.vm('global_load_lds_dwordx4 v%d, s[72:73]' % (224 + r))
        k('s_add_u32 s31, s31, s79')
    SNON = 0
    if SNON:
        add_ptr(k, 10, P_WMOD, 7)
        k('s_mov_b32 m0, s9')
        k.vm('global_load_lds_dwordx4 v231, s[10:11]')
        k('s_add_u32 s10, s10, %d' % (16 * 6144 - 1024))
        k('s_addc_u32 s11, s11, 0')
        k.vm('global_load_lds_dwordx4 v231, s[10:11] offset:1024')
        add_ptr(k, 10, P_WMOD, 66)
        k('s_add_u32 m0, s9, 2048')
        tcm = k.vm('global_load_lds_dwordx4 v231, s[10:11]')
        for r in range(4): pkdma(r)
    k('s_and_b32 s75, s5, 15')
    k('s_lshl_b32 s75, s75, 13')
    k('s_lshr_b32 s76, s5, 4')
    k('s_lshl_b32 s76, s76, 6')
    k('s_add_u32 s75, s75, s76')
    k('s_lshl_b32 s76, s6, 3')
    k('s_add_u32 s75, s75, s76')
    k('s_and_b32 s76, s64, 15')
    k('s_lshl_b32 s76, s76, 13')
    k('s_lshr_b32 s77, s64, 4')
    k('s_lshl_b32 s77, s77, 7')
    k('s_add_u32 s76, s76, s77')
    k('s_lshl_b32 s77, s65, 3')
    k('s_add_u32 s76, s76, s77')
    k('s_add_u32 s76, s76, 256')
    k('s_cmp_eq_u32 s50, 0')
    k('s_cselect_b32 s75, s75, s76')
    ws_ptr(k, 16, WS_MODG, 75)
    k('v_mov_b32 v12, 0\nv_mov_b32 v13, 0\nv_mov_b32 v14, 0\nv_mov_b32 v15, 0')
    ws_ptr(k, 14, WS_SYNC)
    tr_addr32(k, 254, 1, 250, 251, 6, 8)
    k('v_add_u32 v254, s9, v254')
    k('v_and_b32 v40, 31, v1')
    k('v_lshrrev_b32 v41, 5, v1')
    k('v_lshrrev_b32 v253, 1, v40')
    k('v_lshlrev_b32 v253, 9, v253')
    k('v_and_b32 v250, 1, v40')
    k('s_add_u32 s75, s50, 5')
    k('v_lshlrev_b32 v250, s75, v250')
    k('v_add_u32 v253, v253, v250')
    k('v_mul_u32_u24 v11, 1056, v77')
    k('v_add_u32 v11, v11, v78')
    k('v_add_u32 v11, %d, v11' % L_STN)
    k('v_bfe_u32 v56, v1, 2, 3')
    k('v_mul_u32_u24 v236, 1056, v56')
    k('v_and_b32 v57, 3, v1')
    k('v_lshl_add_u32 v236, v57, 3, v236')
    k('v_lshl_add_u32 v236, v41, 5, v236')
    k('s_lshl_b32 s75, s50, 8')
    k('s_add_u32 s75, s75, %d' % L_STN)
    k('v_add_u32 v236, s75, v236')
    k('v_and_b32 v57, 15, v1')
    k('v_lshl_add_u32 v57, v41, 4, v57')
    k('v_lshlrev_b32 v235, 5, v57')
    k('v_bfe_u32 v57, v1, 4, 1')
    k('v_lshl_add_u32 v235, v57, 4, v235')
    k('s_mul_i32 s75, s2, %d' % XS)
    k('s_lshl_b32 s76, s50, 12')
    k('s_add_u32 s75, s75, s76')
    ws_ptr(k, 12, WS_XG, 75)
    k('s_lshl_b32 s75, s2, 6')
    k('s_lshl_b32 s76, s50, 4')
    k('s_add_u32 s75, s75, s76')
    ws_ptr(k, 24, WS_ST1, 75)
    k('s_mov_b32 s58, 0xffff0000')
    k('s_mov_b32 s63, 0x3f803f80')
    k('v_lshlrev_b32 v249, 2, v0')
    k('v_add_u32 v249, %d, v249' % L_SC)
    k('v_lshlrev_b32 v233, 4, v41')
    k('s_lshl_b32 s75, s50, 8')
    k('s_add_u32 s75, s75, %d' % L_SC)
    k('v_add_u32 v233, s75, v233')
    k('s_lshl_b32 s75, s50, 10')
    k('v_lshl_add_u32 v252, v1, 2, s75')
    k('v_add_u32 v252, %d, v252' % (L_SC + 1024))
    k('s_lshl_b32 s55, s50, 14')
    k('v_lshl_add_u32 v16, v1, 2, s55')
    for r in range(1, 16): k('v_xor_b32 v%d, %d, v16' % (16 + r, r << 4))
    k('v_and_b32 v42, 15, v1')
    k('v_xor_b32 v42, v42, v41')
    k('v_lshlrev_b32 v42, 4, v42')
    k('v_lshl_add_u32 v42, v40, 8, v42')
    k('v_add_u32 v32, s55, v42')
    for ks in range(1, 8): k('v_xor_b32 v%d, %d, v32' % (32 + ks, ks << 5))
    k('s_mul_i32 s56, s52, 6912')
    k('s_add_u32 s56, s56, %d' % (L_T - 0x3F00 * 4))
    k('v_lshlrev_b32 v42, 3, v40')
    k('v_cvt_f32_u32 v42, v42')
    k('v_cvt_f32_u32 v43, v41')
    c0 = [0, 1, 2, 3, 256, 258, 260, 262]
    c1 = [4, 5, 6, 7, 512, 516, 768, 772]
    for r in range(8):
        k('v_fmamk_f32 v56, v43, %s, v42' % f32(c1[r] - c0[r]))
        if c0[r]: k('v_add_f32 v56, %s, v56' % f32(c0[r]))
        else: k('v_max_f32 v56, 0.5, v56')
        k('v_cvt_pk_bf16_f32 v56, v56, 0')
        k('v_lshl_add_u32 v%d, v56, 2, s56' % (44 + r))
    k('v_cmp_eq_u32 vcc, 32, v1')
    k('v_fmaak_f32 v57, 4.0, v42, %s' % f32(4096.0))
    k('v_mov_b32 v58, %s' % f32(2048.0))
    k('v_cndmask_b32 v58, v57, v58, vcc')
    k('v_cmp_lt_u32 vcc, 31, v1')
    for r in range(8, 12):
        k('v_add_f32 v56, %s, v42' % f32(1024 + 256 * (r - 8)))
        k('v_cndmask_b32 v56, v56, v%d, vcc' % (58 if r == 8 else 57))
        k('v_cvt_pk_bf16_f32 v56, v56, 0')
        k('v_lshl_add_u32 v%d, v56, 2, s56' % (44 + r))
    k('v_and_b32 v59, 127, v0')
    k('v_lshlrev_b32 v56, 4, v59')
    k('v_sub_u32 v56, 2047, v56')
    k('v_cvt_f32_u32 v57, v56')
    for i in range(17):
        if i: k('v_add_f32 v56, %s, v57' % f32(-float(i)))
        else: k('v_mov_b32 v56, v57')
        if i >= 15: k('v_max_f32 v56, 0.5, v56')
        k('v_cvt_pk_bf16_f32 v56, v56, 0')
        k('v_lshl_add_u32 v%d, v56, 2, s56' % (60 + i))
    k('s_mov_b32 s57, 0x07060302')
    k('s_mov_b32 s59, %s' % f32(LOG2E))
    lo_log2e = LOG2E - struct.unpack('<f', struct.pack('<f', LOG2E))[0]
    inv2pi = 1.0 / (2 * math.pi)
    inv2pi_f = struct.unpack('<f', struct.pack('<f', inv2pi))[0]
    k('s_mov_b32 s60, %s' % f32(inv2pi_f))
    k('s_mov_b32 s61, %s' % f32(inv2pi - inv2pi_f))
    k('s_mov_b32 s62, %s' % f32(lo_log2e))
    k('s_lshl_b32 s75, s50, 6')
    k('v_mov_b32 v234, s75')
    NL = 'global_load_dword v232, v234, s[%d:%d]%s' % (P_DBG, P_DBG + 1, SC)
    if not SNON:
        tn = k.vm(NL)
        add_ptr(k, 10, P_WMOD, 7)
        k('s_mov_b32 m0, s9')
        k.vm('global_load_lds_dwordx4 v231, s[10:11]')
        k('s_add_u32 s10, s10, %d' % (16 * 6144 - 1024))
        k('s_addc_u32 s11, s11, 0')
        k.vm('global_load_lds_dwordx4 v231, s[10:11] offset:1024')
        add_ptr(k, 10, P_WMOD, 66)
        k('s_add_u32 m0, s9, 2048')
        tcm = k.vm('global_load_lds_dwordx4 v231, s[10:11]')
        for r in range(4): pkdma(r)
    k('s_cmp_lt_u32 s2, 112')
    k('s_cbranch_scc0 L_pa_w1')
    tr_addr32(k, 224, 1, 250, 251, 10, 4)
    k('s_lshl_b32 s76, s50, 8')
    k('s_add_u32 s76, s76, %d' % L_SJ)
    k('v_add_u32 v224, s76, v224')
    k('v_bfe_u32 v251, v1, 2, 2')
    k('v_lshlrev_b32 v251, 6, v251')
    k('v_xor_b32 v224, v224, v251')
    for q in range(1, 4): k('v_xor_b32 v%d, %d, v224' % (224 + q, q << 6))
    k('s_mul_i32 s76, s50, %d' % (4 * 114688))
    k('s_lshl_b32 s75, s2, 10')
    k('s_add_u32 s76, s76, s75')
    ws_ptr(k, 70, WS_W2P, 76)
    k('s_mov_b32 s75, 114688')
    k('s_movk_i32 s76, 8192')
    k('s_branch L_pa_go')
    k('L_pa_w1:')
    tr_addr32(k, 224, 1, 250, 251, 8, 8)
    k('v_bfe_u32 v251, v1, 2, 2')
    k('v_xor_b32 v251, s50, v251')
    k('v_lshl_add_u32 v224, v251, 6, v224')
    k('v_add_u32 v224, %d, v224' % L_SJ)
    for q in range(1, 4): k('v_add_u32 v%d, %d, v224' % (224 + q, q * 4096))
    k('s_lshl_b32 s76, s27, 2')
    k('s_add_u32 s76, s76, s50')
    k('s_lshl_b32 s76, s76, 15')
    k('s_lshl_b32 s75, s26, 12')
    k('s_add_u32 s76, s76, s75')
    ws_ptr(k, 70, WS_W1P, 76)
    k('s_movk_i32 s75, 1024')
    k('s_movk_i32 s76, 1024')
    k('L_pa_go:')
    for q in range(4): k('v_add_u32 v%d, s76, v%d' % (228 + q, 224 + q))
    k('v_lshlrev_b32 v223, 4, v1')
    k('v_add_u32 v237, s75, v223')
    k('v_add_u32 v238, s75, v237')
    k('v_add_u32 v239, s75, v238')
    k('s_lshr_b32 s5, s3, 1')
    k('s_lshl_b32 s5, s5, 2')
    k('s_and_b32 s75, s4, 3')
    k('s_add_u32 s5, s5, s75')
    k('s_and_b32 s7, s3, 1')
    k('s_mul_i32 s7, s7, 7')
    k('s_lshr_b32 s75, s4, 2')
    k('s_add_u32 s7, s7, s75')
    k('s_min_u32 s7, s7, 13')
    k('s_lshl_b32 s6, s7, 2')
    k('s_add_u32 s6, s6, s50')
    k.smem_wait()
    k.wait(vm=tpar)
    k('v_mov_b32 v255, v223')
    k.stamp(2); k.stamp3(1)
    if SNON: k('s_load_dword s81, s[%d:%d], 0 glc' % (P_DBG, P_DBG + 1))
    k('v_mul_f32 v78, s59, v10')
    k('v_fma_f32 v79, v10, s59, -v78')
    k('v_fma_f32 v79, v10, s62, v79')
    k('v_exp_f32 v78, v78')
    k('v_mul_f32 v79, %s, v79' % f32(math.log(2.0)))
    k('v_fma_f32 v78, v78, v79, v78')
    k('v_cvt_pk_bf16_f32 v78, v78, v78')
    k('v_and_b32 v78, s58, v78')
    k('v_mul_f32 v4, v78, v4')
    k('v_mul_f32 v5, v78, v5')
    k('v_mul_f32 v152, v78, v6')
    k('v_mul_f32 v154, v78, v7')
    E0 = 96
    cmul1(k, E0, 8, 152); cmul2(k, E0, 8, 152)
    k('v_mul_f32 v4, s59, v4')
    Z1, Z256, Z8, Z128 = 80, 84, 152, 156
    def zpow(dst, p, conj, t):
        pf = f32(float(p))
        return ['v_mul_f32 v%d, %s, v4' % (t, pf), 'v_mul_f32 v%d, %s, v5' % (t + 1, pf), 'v_exp_f32 v%d, v%d' % (t, t),
                'v_mul_f32 v%d, s60, v%d' % (t + 2, t + 1), 'v_fma_f32 v%d, v%d, s60, -v%d' % (t + 3, t + 1, t + 2),
                'v_fma_f32 v%d, v%d, s61, v%d' % (t + 3, t + 1, t + 3), 'v_fract_f32 v%d, v%d' % (t + 2, t + 2),
                'v_add_f32 v%d, v%d, v%d' % (t + 2, t + 2, t + 3), 'v_cos_f32 v%d, v%d' % (t + 3, t + 2), 'v_sin_f32 v%d, v%d' % (t + 2, t + 2),
                'v_mul_f32 v%d, v%d, v%d' % (dst, t, t + 3), 'v_mul_f32 v%d, v%d, %sv%d' % (dst + 2, t, '-' if conj else '', t + 2)]
    for p_, q_ in ((zpow(Z1, 1, False, 88), zpow(Z256, 256, False, 92)), (zpow(Z8, 8, True, 88), zpow(Z128, 128, True, 92))):
        for x, y in zip(p_, q_): k(x); k(y)
    T0 = 140
    def split_a(e, i):
        t = T0 + 6 * (i & 1)
        if not KSPLIT:
            k('v_cvt_pk_bf16_f32 v%d, v%d, v%d' % (t + 4, e, e + 1)); return
        k('v_perm_b32 v%d, v%d, v%d, s57' % (t + 4, e + 1, e))
        k('v_and_b32 v%d, s58, v%d' % (t, e))
        k('v_and_b32 v%d, s58, v%d' % (t + 1, e + 1))
    def split_b(e, i, row):
        t = T0 + 6 * (i & 1)
        if not KSPLIT: return k.ds('ds_write_b32 v%d, v%d offset:%d' % (16 + (row & 15), t + 4, row * 256))
        k('v_pk_add_f32 %s, %s, %s neg_lo:[0,1] neg_hi:[0,1]' % (v(t + 2, 2), v(e, 2), v(t, 2)))
        k('v_cvt_pk_bf16_f32 v%d, v%d, v%d' % (t + 5, t + 2, t + 3))
        return k.ds('ds_write2st64_b32 v%d, v%d, v%d offset0:%d offset1:%d' % (16 + (row & 15), t + 4, t + 5, row, 32 + row))
    hi = {r: (r - 1, Z1) for r in range(1, 8)}
    hi.update({8: (0, Z256), 9: (2, Z256), 10: (4, Z256), 11: (6, Z256), 12: (8, Z256), 13: (10, Z256), 14: (12, Z256), 15: (13, Z256),
               16: (14, Z256), 17: (16, Z256), 18: (17, Z256), 19: (18, Z256), 20: (19, Z256)})
    order = [0, 1, 8, 2, 12, 3, 14, 4, 16, 5, 17, 6, 18, 7, 19, 9, 20, 10, 11, 13, 15]
    for i, r in enumerate(order):
        nxt = order[i + 1] if i + 1 < len(order) else None
        if nxt is not None: cmul1(k, E0 + 2 * nxt, E0 + 2 * hi[nxt][0], hi[nxt][1])
        split_a(E0 + 2 * r, i)
        if nxt is not None: cmul2(k, E0 + 2 * nxt, E0 + 2 * hi[nxt][0], hi[nxt][1])
        split_b(E0 + 2 * r, i, r)
    AH, AL = 160, 192
    for ks in range(8):
        k.ds('ds_read_b128 %s, v%d' % (v(AH + 4 * ks, 4), 32 + ks))
        if KSPLIT: k.ds('ds_read_b128 %s, v%d offset:8192' % (v(AL + 4 * ks, 4), 32 + ks))
    for i in range(4): k('v_mov_b32 v%d, 0' % (96 + i))
    k.stamp3(2)
    k.wait(vm=tx)
    k.stamp3(3)
    for i in range(2): k.ds('ds_write_b128 v11, %s offset:%d' % (v(240 + 4 * i, 4), 512 * i))
    for j in range(8):
        k('v_dot2c_f32_bf16 v%d, s63, v%d' % (96 + (j & 1), 240 + j))
        k('v_dot2c_f32_bf16 v%d, v%d, v%d' % (98 + (j & 1), 240 + j, 240 + j))
    if SNON:
        k.wait(vm=tc)
        k.smem_wait()
        k('v_mov_b32 v232, s81')
    else: k.wait(vm=tn)
    k('s_mov_b32 s80, 0')
    k('L_non_p:')
    k('v_cmp_eq_u32 vcc, 0, v232')
    retry_tail(k, 'non', [NL, 's_waitcnt vmcnt(0)'])
    k('v_readfirstlane_b32 s81, v232')
    k.stamp3(4)
    GR = [100 + 4 * q for q in range(3)] + [120]
    for q in range(4): k('v_mov_b32 v%d, v232\nv_mov_b32 v%d, v232' % (GR[q] + 2, GR[q] + 3))
    k.wait_all(vm=False)
    k.barrier()
    tq = [k.ds('ds_read_b64_tr_b16 %s, v236 offset:%d' % (v(GR[q], 2), 64 * q)) for q in range(4)]
    k('v_lshlrev_b32 v116, 16, v248')
    k('v_and_b32 v117, s58, v248')
    k('v_add_f32 v96, v96, v97')
    k('v_add_f32 v98, v98, v99')
    nm = 'v_mul_f32 v%%d, %s, v%%d' % f32(-LOG2E)
    silu = [nm % (118, 116), nm % (119, 117), 'v_exp_f32 v118, v118', 'v_exp_f32 v119, v119', 'v_add_f32 v118, 1.0, v118', 'v_add_f32 v119, 1.0, v119',
            'v_rcp_f32 v118, v118', 'v_rcp_f32 v119, v119', 'v_mul_f32 v116, v116, v118', 'v_mul_f32 v117, v117, v119', 'v_cvt_pk_bf16_f32 v116, v116, v117']
    for pat in ('quad_perm:[1,0,3,2]', 'quad_perm:[2,3,0,1]', 'row_half_mirror', 'row_mirror'):
        k(silu.pop(0)); k(silu.pop(0))
        k('v_add_f32_dpp v96, v96, v96 %s row_mask:0xf bank_mask:0xf' % pat)
        k('v_add_f32_dpp v98, v98, v98 %s row_mask:0xf bank_mask:0xf' % pat)
    k('v_mov_b32 v97, v96')
    k('v_mov_b32 v99, v98')
    for q in range(4):
        k.wait(ds=tq[q])
        k.vm('global_store_dwordx4 v235, %s, s[12:13] offset:%d%s' % (v(GR[q], 4), 1024 * q, SC))
    while silu: k(silu.pop(0))
    k.ds('ds_write_b32 v249, v116')
    k('v_permlane16_swap_b32 v96, v97')
    k('v_permlane16_swap_b32 v98, v99')
    for ks in range(3): k.ds('ds_read_b128 %s, v233 offset:%d' % (a(32 + 4 * ks, 4), 32 * ks))
    k('v_add_f32 v96, v96, v97')
    k('v_add_f32 v98, v98, v99')
    k('v_mul_f32 v96, %s, v96' % f32(1.0 / 512))
    k('v_mul_f32 v98, %s, v98' % f32(1.0 / 512))
    k('v_fma_f32 v98, -v96, v96, v98')
    k('v_max_f32 v98, 0, v98')
    k('v_add_f32 v98, %s, v98' % f32(1e-5))
    k('v_rsq_f32 v240, v98')
    k('v_mul_f32 v242, v96, v240')
    k('v_mov_b32 v241, v240')
    k('v_mov_b32 v243, v242')
    k('v_permlane32_swap_b32 v240, v241')
    k('v_permlane32_swap_b32 v242, v243')
    k('v_cvt_pk_bf16_f32 v242, v242, v243')
    k('v_mov_b32 v243, v232')
    k('s_mov_b64 exec, 1')
    k.vm('global_store_dwordx4 v12, v[240:243], s[24:25]' + SC)
    k('s_mov_b64 exec, -1')
    def mod_a():
        k.stamp3(6)
        k.wait(vm=tcm)
        k.stamp3(7)
        for ks in range(3):
            k.ds('ds_read_b64_tr_b16 %s, v254 offset:%d' % (a(48 + 4 * ks, 2), ks * 1024))
            k.tmr = k.ds('ds_read_b64_tr_b16 %s, v254 offset:%d' % (a(50 + 4 * ks, 2), ks * 1024 + 256))
    def mod_b():
        k.wait(ds=k.tmr)
        k('v_mfma_f32_32x32x16_bf16 a[64:79], a[32:35], a[48:51], 0')
        k('v_mfma_f32_32x32x16_bf16 a[80:95], a[40:43], a[56:59], 0')
        k('v_mfma_f32_32x32x16_bf16 a[64:79], a[36:39], a[52:55], a[64:79]')
    def mod_c():
        k.ds('ds_write_b32 v249, a80 offset:2048')
        k.ds('ds_write_b32 v249, a64 offset:1024')
        k.stamp3(8)
        k.wait_all(vm=False)
        k.barrier()
        k.stamp3(9)
        for i in range(4): k.tp = k.ds('ds_read_b32 v%d, v252 offset:%d' % (244 + i, 256 * i))
    def mod_d():
        k.wait(ds=k.tp)
        k('s_cmp_ge_u32 s50, 2')
        k('s_cbranch_scc1 L_cm2')
        k('v_add_f32 v244, v244, v245')
        k('v_add_f32 v246, v246, v247')
        k('v_add_f32 v244, v244, v246')
        k('v_mov_b32 v245, v232')
        raw(k, 'global_store_dwordx2 v253, v[244:245], s[16:17]' + SC)
        k('s_branch L_cm3')
        k('L_cm2:')
        k('v_and_b32 v246, 15, v1')
        k('s_lshl_b32 s75, s2, 6')
        k('v_lshl_add_u32 v246, v246, 2, s75')
        raw(k, 'global_store_dword v246, v12, s[14:15]' + SC)
        k('L_cm3:')
    def pack_out():
        for q in range(4):
            k.ds('ds_read_b64_tr_b16 %s, v%d' % (a(4 * q, 2), 224 + q))
            pt = k.ds('ds_read_b64_tr_b16 %s, v%d' % (a(4 * q + 2, 2), 228 + q))
        k.wait(ds=pt)
        k('s_cmp_ge_u32 s2, 224')
        k('s_cbranch_scc1 L_pk_no')
        for q in range(4): raw(k, 'global_store_dwordx4 v%d, %s, s[70:71]%s' % (255 if q == 0 else 236 + q, a(4 * q, 4), SC))
        k('L_pk_no:')
        k.tall = k.nvm
    k('s_nop 1')
    k.stamp(4); k.stamp3(5)
    eq = []
    L0 = 96
    k('v_mov_b32 v%d, 1.0' % L0)
    k('v_mov_b32 v%d, 0' % (L0 + 1))
    lo_order = []
    for m in range(16): lo_order += [m, 16 + m]
    def lreg(m): return L0 + 2 * m if m < 16 else 132 + 2 * (m & 1)
    def lsrc(m): return (lreg(m - 1), Z8) if m < 16 else (lreg(m - 16), Z128)
    for i, m in enumerate(lo_order):
        nxt = lo_order[i + 1] if i + 1 < len(lo_order) else None
        if nxt is not None: cmul1(k, lreg(nxt), *lsrc(nxt))
        split_a(lreg(m), i)
        if nxt is not None: cmul2(k, lreg(nxt), *lsrc(nxt))
        split_b(lreg(m), i, m)
        M0 = E('MODAT', 2)
        if i == M0: mod_a()
        if i == M0 + 2: mod_b()
        if i == M0 + 5: mod_c()
        if i == M0 + 7: mod_d()
        if i == E('PKO', 20):
            k.wait(vm=k.tpk); k.barrier(); pack_out()
    while eq: eq.pop(0)()
    k.stamp3(10)
    ACC = 224
    bt = []
    k.wait_all(vm=False, ds=True)
    for ks in range(8):
        t = k.ds('ds_read_b128 %s, v%d' % (v(96 + 8 * ks, 4), 32 + ks))
        if KSPLIT: t = k.ds('ds_read_b128 %s, v%d offset:8192' % (v(100 + 8 * ks, 4), 32 + ks))
        bt.append(t)
    fill = []
    F = lambda x: fill.append(x)
    F('v_lshrrev_b32 v7, 2, v1'); F('v_and_b32 v8, 3, v1'); F('v_mul_u32_u24 v16, %d, v7' % XS); F('v_lshl_add_u32 v16, v8, 4, v16')
    F('s_mul_i32 s60, s50, %d' % (64 * XS))
    F('s_lshl_b32 s61, s34, 6\ns_add_u32 s60, s60, s61\ns_add_u32 s62, s48, s60\ns_addc_u32 s63, s49, 0')
    assert WS_XG == 0
    for i in range(1, 4): F('v_add_u32 v%d, 0x%x, v16' % (16 + i, i * 16 * XS))
    F('v_and_b32 v10, 1, v8'); F('v_lshlrev_b32 v24, 6, v7'); F('v_lshl_add_u32 v24, v10, 5, v24'); F('v_lshrrev_b32 v9, 1, v8'); F('v_lshl_add_u32 v24, v9, 4, v24')
    F('s_lshl_b32 s60, s50, 12\ns_add_u32 s60, s60, 0x%x\ns_add_u32 s24, s48, s60\ns_addc_u32 s25, s49, 0' % WS_ST1)
    F('v_lshlrev_b32 v21, 3, v1')
    F('s_lshl_b32 s60, s34, 9\ns_add_u32 s60, s60, 0x%x\ns_add_u32 s64, s48, s60\ns_addc_u32 s65, s49, 0' % WS_MODG)
    XD = [240, 244, 248, 252]
    k.XD = XD
    XL1 = ['global_load_dwordx4 %s, v%d, s[62:63]%s' % (v(XD[i], 4), 16 + i, SC) for i in range(4)] + ['global_load_dwordx2 v[22:23], v21, s[64:65]' + SC]
    XL2 = ['global_load_dwordx4 %s, v24, s[24:25] offset:%d%s' % (v(80 + 4 * i, 4), i * 1024, SC) for i in range(4)]
    k.XL = XL1 + XL2
    F('s_or_b32 s66, s55, 0x4000'); F('v_lshl_add_u32 v3, v1, 4, s66')
    F('s_mul_i32 s55, s52, %d\ns_add_u32 s55, s55, %d' % (CHS, L_CV)); F('v_lshl_add_u32 v2, v59, 5, s55')
    for x in XL1 + XL2: F('VM ' + x); F('s_nop 0')
    def emit_fill():
        x = fill.pop(0)
        if x.startswith('VM '): k.vm(x[3:])
        else: k(x)
    for ks in range(8):
        k.wait(ds=bt[ks])
        c = '0' if ks == 0 else v(ACC, 16)
        ms = [(AH + 4 * ks, 96 + 8 * ks)] + ([(AH + 4 * ks, 100 + 8 * ks), (AL + 4 * ks, 96 + 8 * ks)] if KSPLIT else [])
        for x, y in ms:
            k('v_mfma_f32_32x32x16_bf16 %s, %s, %s, %s' % (v(ACC, 16), v(x, 4), v(y, 4), c)); c = v(ACC, 16)
            for _ in range(2 if KSPLIT else 4):
                if fill: emit_fill()
    while fill: emit_fill()
    k.stamp3(11)
    k('s_nop 7\ns_nop 3')
    k('s_bitcmp1_b32 s50, 0')
    k('s_cbranch_scc0 L_kg_a')
    for i in range(3): k.ds('ds_write_b128 v3, %s offset:%d' % (v(ACC + 4 * i, 4), 1024 * i))
    k.wait_all(vm=False)
    k('L_kg_a:')
    k.barrier()
    k.stamp3(12)
    k('s_cbranch_scc1 L_kg_b')
    for i in range(3): k.ds('ds_read_b128 %s, v3 offset:%d' % (v(96 + 4 * i, 4), 1024 * i))
    k.wait_all(vm=False)
    for i in range(6): k('v_pk_add_f32 %s, %s, %s' % (v(96 + 2 * i, 2), v(96 + 2 * i, 2), v(ACC + 2 * i, 2)))
    for r in range(12): k.ds('ds_write_b32 v%d, v%d' % (44 + r, 96 + r))
    k.wait_all(vm=False)
    k('L_kg_b:')
    if E('FPB', 1): k('s_waitcnt vmcnt(%d)' % (k.nvm - k.tall))
    k.barrier()
    k.stamp3(13)
    if E('FPB', 1): signal(k, 'fp', O_FP, 28, 29)
    k('v_cmp_eq_u32 vcc, 127, v59')
    G = 96
    gt = [k.ds('ds_read_b32 v%d, v%d' % (G + i, 60 + i)) for i in range(17)]
    conv_setup(k)
    k.wait(ds=gt[-1])
    k('v_cmp_eq_u32 vcc, 127, v59')
    k('v_cndmask_b32 v%d, v%d, v12, vcc' % (G + 16, G + 16))
    for i in range(8): k('v_cvt_pk_bf16_f32 v%d, v%d, v%d' % (120 + i, G + 2 * i, G + 2 * i + 1))
    for i in range(8): k('v_cvt_pk_bf16_f32 v%d, v%d, v%d' % (128 + i, G + 2 * i + 1, G + 2 * i + 2))
    k.ds('ds_write_b128 v2, v[120:123]')
    k.ds('ds_write_b128 v2, v[124:127] offset:16')
    k.ds('ds_write_b128 v2, v[128:131] offset:%d' % O_K1)
    k.ds('ds_write_b128 v2, v[132:135] offset:%d' % (O_K1 + 16))
    k('v_lshlrev_b32 v2, 4, v1')

def conv_setup(k):
    k('s_and_b32 s54, s50, 1')
    k('v_lshlrev_b32 v11, 4, v1')
    k('v_and_b32 v5, 15, v1')
    k('v_lshrrev_b32 v6, 4, v1')
    k('s_mul_i32 s59, s54, %d' % O_K1)
    k('s_add_u32 s59, s59, s55')
    k('v_lshl_add_u32 v14, v5, 2, s59')
    k.ds('ds_write_b32 v14, v12 offset:4096')
    k('v_lshl_add_u32 v14, v1, 3, s55')
    k.ds('ds_write_b64 v14, v[12:13] offset:%d' % O_H)
    k('v_lshlrev_b32 v15, 3, v10')
    k('v_lshl_add_u32 v15, v7, 4, v15')
    k('s_lshl_b32 s60, s50, 10')
    k('v_add_u32 v15, s60, v15')
    k('v_mul_u32_u24 v20, %d, v9' % CHS)
    k('v_add_u32 v20, v20, v15')
    k('v_lshl_add_u32 v25, v9, 12, v15')
    k('s_lshl_b32 s76, s54, 10')
    k('s_add_u32 s77, s76, s55')
    k('v_lshlrev_b32 v15, 5, v5')
    k('v_lshl_add_u32 v15, v6, 3, v15')
    k('v_add_u32 v193, s77, v15')
    k('s_lshl_b32 s77, s52, 12')
    k('s_add_u32 s76, s76, s77')
    k('v_add_u32 v202, s76, v15')
    k('v_lshlrev_b32 v15, 5, v5')
    k('v_lshl_add_u32 v15, v6, 4, v15')
    k('s_lshl_b32 s77, s54, 8')
    k('s_sub_u32 s77, s55, s77')
    k('s_add_u32 s78, s77, %d' % (O_H + 512 - 32 - 192))
    k('v_add_u32 v192, s78, v15')
    k('v_lshlrev_b32 v15, 3, v6')
    k('v_sub_u32 v15, v15, v5')
    k('v_add_u32 v15, 15, v15')
    k('v_and_b32 v194, 1, v15')
    k('v_mul_u32_u24 v194, %d, v194' % O_K1)
    k('v_and_b32 v15, -2, v15')
    k('v_lshl_add_u32 v15, v15, 1, v194')
    k('s_add_u32 s78, s77, %d' % (2 * (2016 - 256 - 96 - 1536)))
    k('v_add_u32 v197, s78, v15')
    for ip in range(3): k('v_add_u32 v%d, %d, v197' % (194 + ip, 1024 * (3 - ip)))
    k('s_lshl_b32 s77, s54, 12')
    k('s_add_u32 s78, s77, s55')
    k('v_add_u32 v198, s78, v11')
    k('s_xor_b32 s77, s77, 0x1000')
    k('s_add_u32 s78, s77, s55')
    k('v_add_u32 v199, s78, v11')
    k('v_and_b32 v15, 1, v6')
    k('v_lshlrev_b32 v15, 3, v15')
    k('v_lshrrev_b32 v200, 1, v5')
    k('v_add_u32 v15, v15, v200')
    k('v_lshlrev_b32 v200, 15, v15')
    k('v_and_b32 v15, 1, v5')
    k('v_lshl_add_u32 v200, v15, 5, v200')
    k('v_lshrrev_b32 v15, 1, v6')
    k('v_lshl_add_u32 v200, v15, 4, v200')
    k('v_add_u32 v201, 0x100000, v200')
    k('s_lshl_b32 s60, s54, 19')
    k('s_lshl_b32 s61, s53, 6')
    k('s_add_u32 s60, s60, s61')
    ws_ptr(k, 66, WS_X1T, 60)
    ws_ptr(k, 68, WS_X1S, 60)
    k('s_lshl_b32 s60, s6, 15')
    ws_ptr(k, 26, WS_W1P, 60)
    k('s_lshl_b32 s77, s30, 16')
    k('s_and_b32 s74, s30, 0xffff0000')
    k('s_cmp_eq_u32 s52, 0')
    k('s_cselect_b32 s74, s77, s74')
    k('v_bfe_u32 v4, v1, 3, 1')
    k('v_cvt_f32_u32 v4, v4')
    k('v_cmp_gt_u32 vcc, 32, v1')
    k('v_cndmask_b32 v4, 0, v4, vcc')
    k('s_lshl_b32 s60, s34, 4')
    ws_ptr(k, 18, WS_FIN, 60)
    k('s_lshl_b32 s60, s3, 10')
    k('v_add_u32 v217, s60, v11')
    k('v_add_u32 v218, 0x%x, v217' % O_F2)
    k('v_add_u32 v217, 0x%x, v217' % O_FP)
    k('s_lshl_b32 s56, s54, 15')
    k('s_lshl_b32 s60, s52, 12')
    k('s_add_u32 s56, s56, s60')
    k('s_lshl_b32 s60, s5, 16')
    k('s_add_u32 s60, s60, s56')
    ws_ptr(k, 28, WS_X1S, 60)

def conv_phase(k):
    XD = k.XD
    k.stamp(6); k.stamp3(14)
    k('s_mov_b32 s80, 0')
    k('L_xv_p:')
    k('s_waitcnt vmcnt(0)')
    for c in chk_tags([x + 2 for x in XD] + [23] + [83 + 4 * i for i in range(4)], 28): k(c)
    retry_tail(k, 'xv', k.XL)
    k.vm_done = k.nvm
    k.stamp(7)
    k('v_add_f32_dpp v22, v22, v22 quad_perm:[1,0,3,2] row_mask:0xf bank_mask:0xf')
    k('s_lshl_b32 s60, s52, 2')
    k('s_add_u32 s61, s60, 24')
    k('v_add_f32_dpp v22, v22, v22 quad_perm:[2,3,0,1] row_mask:0xf bank_mask:0xf')
    k('s_add_u32 s60, s60, 16')
    k('v_cmp_eq_u32 vcc, 1, v9')
    k('v_add_f32_dpp v22, v22, v22 row_half_mirror row_mask:0xc bank_mask:0xf')
    k('v_cvt_pk_bf16_f32 v22, v22, v22')
    k('v_and_b32 v22, s58, v22')
    k('v_add_f32 v22, v22, v4')
    k('v_cvt_pk_bf16_f32 v22, v22, v22')
    k('v_and_b32 v22, s58, v22')
    k('v_readlane_b32 s62, v22, 0')
    k('v_readlane_b32 s63, v22, 4')
    k('v_readlane_b32 s64, v22, 8')
    k('v_readlane_b32 s65, v22, 12')
    k('v_readlane_b32 s75, v22, s60')
    k('v_readlane_b32 s76, v22, s61')
    k('v_mov_b32 v27, s62')
    k('v_mov_b32 v29, s63')
    k('v_mov_b32 v26, s64')
    k('v_mov_b32 v28, s65')
    k('v_cndmask_b32 v27, v27, v29, vcc')
    k('v_cndmask_b32 v26, v26, v28, vcc')
    for i in range(4):
        k.ds('ds_write_b64 v25, %s offset:%d' % (v(XD[i], 2), L_X + 256 * i))
        for j in range(2):
            r = XD[i] + j
            g = 56 + 4 * j
            tt = 48 + 4 * (j & 1)
            for e in range(3): k('v_mov_b32_dpp v%d, v%d quad_perm:[%d,%d,%d,%d] row_mask:0xf bank_mask:0xf' % (g + e, 80 + 4 * i + e, 2 * j, 2 * j + 1, 2 * j, 2 * j + 1))
            k('v_lshlrev_b32 v%d, 16, v%d' % (tt, r))
            k('v_and_b32 v%d, s58, v%d' % (tt + 1, r))
            k('v_lshlrev_b32 v%d, 16, v%d' % (tt + 2, g + 2))
            k('v_and_b32 v%d, s58, v%d' % (tt + 3, g + 2))
            k('v_pk_fma_f32 %s, %s, %s, %s neg_lo:[0,0,1] neg_hi:[0,0,1]' % (v(tt, 2), v(tt, 2), v(g, 2), v(tt + 2, 2)))
            k('v_pk_fma_f32 %s, %s, v[26:27], v[26:27] op_sel:[0,0,1] op_sel_hi:[1,0,1]' % (v(tt, 2), v(tt, 2)))
            k('v_cvt_pk_bf16_f32 v%d, v%d, v%d' % (XD[i] + 2 + j, tt, tt + 1))
        k.ds('ds_write_b64 v20, %s offset:%d' % (v(XD[i] + 2, 2), L_CV + O_H + 512 + 256 * i))
    k.wait_all(vm=False)
    k.barrier()
    if not E('FPB', 1): signal(k, 'fp', O_FP, 28, 29)
    k.stamp(9)
    ACC = 32
    def areg(st, p): return 64 + 64 * st + 4 * p
    def breg(st, q): return 96 + 64 * st + 4 * q
    def loads(cc, st, np_):
        L = []
        for p in range(np_):
            off = 128 * (1 - (p & 1)) + 16 * (3 - cc)
            L.append('ds_read2_b32 %s, v%d offset0:%d offset1:%d' % (v(areg(st, p), 2), 194 + (p >> 1), off, off + 1))
            L.append('ds_read2_b32 %s, v%d offset0:%d offset1:%d' % (v(areg(st, p) + 2, 2), 194 + (p >> 1), off + 2, off + 3))
            L.append('ds_read_b128 %s, v192 offset:%d' % (v(breg(st, p), 4), 512 * p + 64 * (3 - cc)))
        return L
    def lv_pairs(lo, hi_):
        P = []
        for lv in range(8):
            for p in range(lv + 1):
                for q in range(lv + 1):
                    if max(p, q) == lv and lo <= p + q <= hi_: P.append((p, q))
        return P
    def loadsA(cc):
        L = []
        st, o4 = cc >> 1, 4 * (cc & 1)
        for p in range(4):
            off = 128 * (1 - (p & 1)) + 16 * (3 - cc)
            L.append('ds_read2_b32 %s, v%d offset0:%d offset1:%d' % (v(areg(st, o4 + p), 2), 194 + (p >> 1), off, off + 1))
            L.append('ds_read2_b32 %s, v%d offset0:%d offset1:%d' % (v(areg(st, o4 + p) + 2, 2), 194 + (p >> 1), off + 2, off + 3))
            L.append('ds_read_b128 %s, v192 offset:%d' % (v(breg(st, o4 + p), 4), 512 * p + 64 * (3 - cc)))
        return L
    tA = {}
    for cc in range(2): tA[cc] = [k.ds(x) for x in loadsA(cc)]
    if E('FP_AT', 2) == 0: sync_issue(k, 'fp', 'global_load_dwordx4 v[204:207], v217, s[14:15]' + SC)
    k('s_cmp_lg_u32 s50, 3')
    k('s_cbranch_scc1 L_fin')
    for i, (l0, l1) in enumerate(((32, 40), (24, 28), (48, 56))):
        k('v_readlane_b32 s60, v22, %d' % l0)
        k('v_readlane_b32 s61, v22, %d' % l1)
        k('s_lshr_b32 s60, s60, 16')
        k('s_or_b32 s60, s60, s61')
        k('v_mov_b32 v%d, s60' % (220 + i))
    k('v_mov_b32 v223, s81')
    k('s_mov_b64 exec, 1')
    raw(k, 'global_store_dwordx4 v12, v[220:223], s[18:19]' + SC)
    k('s_mov_b64 exec, -1')
    k('L_fin:')
    seen = set()
    def mf(nt, ar, br):
        c = v(ACC + 4 * nt, 4) if nt in seen else '0'
        seen.add(nt)
        k('v_mfma_f32_16x16x32_bf16 %s, %s, %s, %s' % (v(ACC + 4 * nt, 4), v(ar, 4), v(br, 4), c))
    def hx_reads(ps):
        return (['ds_read_b64 %s, v193 offset:%d' % (v(16 + 2 * j, 2), O_H + 512 + 2048 * ps + 512 * j) for j in range(2)] +
                ['ds_read_b64 %s, v202 offset:%d' % (v(20 + 2 * j, 2), L_X + 2048 * ps + 512 * j) for j in range(2)])
    PA = lv_pairs(0, 3); PB = lv_pairs(4, 7)
    q2 = loadsA(2) + loadsA(3) + hx_reads(0)
    tq = []
    for cc in range(4):
        st, o4 = cc >> 1, 4 * (cc & 1)
        for n, (p, q) in enumerate(PA):
            if cc < 2: k.wait(ds=tA[cc][3 * max(p, q) + 2])
            else: k.wait(ds=tq[12 * (cc - 2) + 3 * max(p, q) + 2])
            mf(p + q, areg(st, o4 + p), breg(st, o4 + q))
            for _ in range(2):
                if q2 and (cc > 0 or n >= 2): tq.append(k.ds(q2.pop(0)))
            if cc == 2 and n == 2: qB = loads(0, 0, 8)
            if cc >= 2 and (cc > 2 or n >= 2):
                for _ in range(2):
                    if qB: k.ds(qB.pop(0))
    assert not q2 and not qB
    def exchange_and_store(ps, lab, mid):
        b = ACC + 16 * ps
        k('s_nop 7')
        k('s_cmp_eq_u32 s54, 0')
        k('s_cbranch_scc0 L_%s_1' % lab)
        for j in range(2): k.ds('ds_write_b128 v198, %s offset:%d' % (v(b + 8 + 4 * j, 4), O_RED + 2048 * ps + 1024 * j))
        for j in range(4): k('v_mov_b64 %s, %s' % (v(224 + 2 * j, 2), v(b + 2 * j, 2)))
        k('s_branch L_%s_2' % lab)
        k('L_%s_1:' % lab)
        k.nds -= 2
        for j in range(2): k.ds('ds_write_b128 v198, %s offset:%d' % (v(b + 4 * j, 4), O_RED + 2048 * ps + 1024 * j))
        for j in range(4): k('v_mov_b64 %s, %s' % (v(224 + 2 * j, 2), v(b + 8 + 2 * j, 2)))
        k('L_%s_2:' % lab)
        k.pre()
        k.wait_all(vm=False)
        k.barrier()
        mid()
        rt_ = [k.ds('ds_read_b128 %s, v199 offset:%d' % (v(232 + 4 * j, 4), O_RED + 2048 * ps + 1024 * j)) for j in range(2)]
        for i in range(4):
            k('v_lshlrev_b32 v%d, 16, v%d' % (240 + 2 * i, 16 + i))
            k('v_and_b32 v%d, s58, v%d' % (241 + 2 * i, 16 + i))
            k('v_pk_fma_f32 %s, %s, s[74:75], %s op_sel_hi:[1,0,1]' % (v(224 + 2 * i, 2), v(240 + 2 * i, 2), v(224 + 2 * i, 2)))
            k('v_lshlrev_b32 v%d, 16, v%d' % (248 + 2 * i, 20 + i))
            k('v_and_b32 v%d, s58, v%d' % (249 + 2 * i, 20 + i))
        k.wait(ds=rt_[1])
        for i in range(4):
            k('v_pk_add_f32 %s, %s, %s' % (v(224 + 2 * i, 2), v(224 + 2 * i, 2), v(232 + 2 * i, 2)))
            k('v_pk_fma_f32 %s, %s, s[74:75], %s op_sel:[0,1,0] op_sel_hi:[1,1,1]' % (v(224 + 2 * i, 2), v(224 + 2 * i, 2), v(248 + 2 * i, 2)))
            k('v_pk_mul_f32 %s, %s, s[76:77] op_sel_hi:[1,0]' % (v(240 + 2 * i, 2), v(224 + 2 * i, 2)))
            k('v_cvt_pk_bf16_f32 v%d, v%d, v%d' % (24 + i, 240 + 2 * i, 241 + 2 * i))
            k('v_cvt_pk_bf16_f32 v%d, v%d, v%d' % (28 + i, 224 + 2 * i, 225 + 2 * i))
        for b_, sp in ((24, 68), (28, 66)):
            k('v_permlane16_swap_b32 v%d, v%d' % (b_, b_ + 2))
            k('v_permlane16_swap_b32 v%d, v%d' % (b_ + 1, b_ + 3))
            t = k.vm('global_store_dwordx4 v%d, %s, s[%d:%d]%s' % (200 + ps, v(b_, 4), sp, sp + 1, SC))
        return t
    FPL = 'global_load_dwordx4 v[204:207], v217, s[14:15]' + SC
    FP_AT = E('FP_AT', 2)
    k.pre = (lambda: sync_check(k, 'fp', [FPL], chk_tags([204, 205, 206, 207], 210))) if FP_AT == 0 else (lambda: None)
    tsA = exchange_and_store(0, 'cvA', lambda: None)
    k.pre = lambda: None
    k.stamp(3)
    k.tw1 = []
    def w1l():
        n = len(k.tw1)
        k.tw1.append(k.vm('global_load_dwordx4 %s, v2, s[26:27] offset:%d%s' % (a(4 * n, 4), (n & 3) * 1024, W_SC)) if not E('NOW1', 0) else k.nvm)
        if (n & 3) == 3 and n < 31: k('s_add_u32 s26, s26, 4096'); k('s_addc_u32 s27, s27, 0')
    k.w1l = w1l
    F2A_AT = E('F2A_AT', 2); W1D = E('W1D', 3)
    for cc in range(4):
        st = cc & 1
        nxt = loads(cc + 1, st ^ 1, 8) if cc < 3 else hx_reads(1)
        if cc > 0: k.wait_all(vm=False)
        if cc == FP_AT and cc: sync_check(k, 'fp', [FPL], chk_tags([204, 205, 206, 207], 210))
        if cc == F2A_AT: k.wait(vm=tsA)
        if cc == F2A_AT or (cc == FP_AT and cc): k.barrier()
        if cc == F2A_AT: signal(k, 'f2a', O_F2, 208, 209)
        for n, (p, q) in enumerate(PB):
            if cc == FP_AT - 2 and n == 10: sync_issue(k, 'fp', FPL)
            mf(p + q, areg(st, p), breg(st, q))
            if n >= 1 and nxt: k.ds(nxt.pop(0))
            if cc >= FP_AT and n % W1D == 0 and len(k.tw1) < 32: w1l()
        assert not nxt
    k.stamp(10)
    k.PA = ['global_load_dwordx4 v[72:75], v218, s[14:15]' + SC]
    k.FL = 'global_load_dwordx4 v[164:167], v160, s[48:49]' + SC
    def mid():
        k('v_lshlrev_b32 v160, 4, v0')
        k('v_add_u32 v160, 0x%x, v160' % WS_FIN)
        k.tfin = k.vm(k.FL)
    k.tx1 = exchange_and_store(1, 'cvB', mid)
    if not E('C12POS', 0): sync_issue(k, 'f2a', *k.PA)
    while len(k.tw1) < 32: w1l()

ROT = E('ROT', 0)
def adv(k, p, c):
    if not ROT:
        k('s_add_u32 s%d, s%d, 4096\ns_addc_u32 s%d, s%d, 0' % (p, p, p + 1, p + 1)); return
    k('s_add_u32 s%d, s%d, 1' % (c, c))
    k('s_cmp_eq_u32 s%d, 7' % c)
    k('s_cselect_b32 s12, %d, s32' % (-24576))
    k('s_cselect_b32 s13, -1, 0')
    k('s_cselect_b32 s%d, 0, s%d' % (c, c))
    k('s_add_u32 s%d, s%d, s12' % (p, p))
    k('s_addc_u32 s%d, s%d, s13' % (p + 1, p + 1))

def w2reg(ks): return (a(128 + 8 * ks, 4), a(132 + 8 * ks, 4)) if ks < 16 else (v(160 + 8 * (ks - 16), 4), v(164 + 8 * (ks - 16), 4))
def w2_ops(k, ks):
    ops = []
    if E('NOW2', 0): return ops
    off = (ks & 3) * 1024
    ops.append(lambda: k.vm('global_load_dwordx4 %s, v2, s[76:77] offset:%d%s' % (w2reg(ks)[0], off, W_SC)))
    ops.append(lambda: k.vm('global_load_dwordx4 %s, v113, s[76:77] offset:%d%s' % (w2reg(ks)[1], off, W_SC)))
    if (ks & 3) == 3 and ks < 27: ops.append(lambda: adv(k, 76, 35))
    return ops

def sync_issue(k, name, *loads):
    k('s_cmp_lg_u32 s50, %d' % SYNCW)
    k('s_cbranch_scc1 L_%s_i' % name)
    for l in loads: raw(k, l)
    k('L_%s_i:' % name)
    k.__dict__.setdefault('pollmark', {})[name] = k.nvm

def sync_check(k, name, loads, check, extra=0):
    k('s_cmp_lg_u32 s50, %d' % SYNCW)
    k('s_cbranch_scc1 L_%s_w' % name)
    k('s_mov_b32 s80, 0')
    k('s_waitcnt vmcnt(%d)' % min(63, k.nvm - k.pollmark[name] + extra))
    k('L_%s_p:' % name)
    for c in check: k(c)
    retry_tail(k, name, list(loads) + ['s_waitcnt vmcnt(0)'], 1)

L_RD = 0

def mlp_phase(k):
    k('v_add_u32 v126, 0x2000, v218')
    PL = lambda r: 'global_load_dwordx4 v[72:75], v%d, s[14:15]%s' % (r, SC)
    k('s_lshl_b32 s8, s3, 2')
    k('s_lshr_b32 s9, s4, 3')
    k('s_add_u32 s8, s8, s9')
    k('s_and_b32 s9, s4, 7')
    k('v_add_u32 v113, 114688, v2')
    k('s_mul_i32 s51, s50, %d' % (28 * 1024))
    if ROT:
        k('s_lshr_b32 s35, s4, 3')
        k('s_lshl_b32 s35, s35, 1')
        k('s_add_u32 s35, s35, s9')
        k('s_cmp_ge_u32 s35, 7')
        k('s_cselect_b32 s60, 7, 0')
        k('s_sub_u32 s35, s35, s60')
        k('s_mov_b32 s33, s35')
        k('s_movk_i32 s32, 4096')
        k('s_lshl_b32 s60, s35, 12')
        k('s_add_u32 s51, s51, s60')
    k('s_mul_i32 s60, s9, %d' % (2 * 114688))
    k('s_add_u32 s60, s60, s51')
    ws_ptr(k, 76, WS_W2P, 60)
    k('s_mul_i32 s60, s8, 114688')
    k('s_add_u32 s60, s60, s51')
    ws_ptr(k, 22, WS_HID, 60)
    tr_addr32(k, 4, 1, 8, 9, 6, 8)
    k('v_add_u32 v5, 0x10000, v4')
    k('v_and_b32 v6, 31, v1')
    k('v_lshlrev_b32 v6, 3, v6')
    k('s_mul_i32 s62, s5, %d' % (2 * 114688))
    k('s_lshl_b32 s63, s6, 11')
    k('s_add_u32 s62, s62, s63')
    ws_ptr(k, 68, WS_HID, 62)
    k('s_lshl_b32 s62, s5, 9')
    add_ptr(k, 70, 14, 62)
    k('v_bfe_u32 v16, v1, 4, 1')
    k('v_xor_b32 v16, 1, v16')
    k('v_lshlrev_b32 v16, 10, v16')
    k('v_lshrrev_b32 v17, 5, v1')
    k('v_lshl_add_u32 v16, v17, 4, v16')
    k('v_add_u32 v16, %d, v16' % L_GS)
    k('v_lshlrev_b32 v17, 2, v0')
    k('v_add_u32 v17, %d, v17' % L_GS)
    k('v_lshlrev_b32 v18, 3, v0')
    k('v_add_u32 v18, %d, v18' % (L_GS + 2048))
    k('v_lshrrev_b32 v119, 5, v1')
    k('v_and_b32 v118, 31, v1')
    k('v_lshlrev_b32 v116, 8, v119')
    k('v_lshl_add_u32 v116, v118, 1, v116')
    k('v_lshlrev_b32 v117, 4, v119')
    k('v_lshl_add_u32 v118, v118, 10, v117')
    k('s_lshl_b32 s62, s9, 2')
    k('s_add_u32 s62, s62, s50')
    k('s_lshl_b32 s63, s8, 15')
    k('s_lshl_b32 s60, s62, 10')
    k('s_add_u32 s60, s60, s63')
    ws_ptr(k, 20, WS_X1T, 60)
    k('s_lshl_b32 s60, s62, 6')
    k('s_add_u32 s60, s60, %d' % (L_GS + 2048))
    k('v_add_u32 v117, s60, v117')
    k('s_lshl_b32 s60, s62, 5')
    k('s_add_u32 s60, s60, s63')
    add_ptr(k, 24, P_OUT, 60)
    k('s_lshl_b32 s60, s50, 13')
    k('v_add_u32 v120, s60, v2')
    k('s_lshl_b32 s60, s50, 11')
    k('v_add_u32 v121, s60, v2')
    k('s_lshr_b32 s60, s8, 1')
    k('s_lshl_b32 s60, s60, 6')
    k('s_add_u32 s60, s60, 0x%x' % O_F3)
    k('v_min_u32 v122, 13, v1')
    k('v_lshl_add_u32 v122, v122, 2, s60')
    k('s_lshl_b32 s10, s5, 6')
    k('s_lshl_b32 s61, s7, 2')
    k('s_add_u32 s10, s10, s61')
    k('s_mov_b32 s80, 0')
    k.wait(vm=k.tfin)
    k('L_fin_p:')
    k('v_cmp_ne_u32 vcc, s81, v167')
    retry_tail(k, 'fin', [k.FL, 's_waitcnt vmcnt(0)'])
    k('v_lshlrev_b32 v168, 16, v166')
    k('v_and_b32 v169, 0xffff0000, v166')
    k('v_mul_f32 v168, %s, v168' % f32(-math.log(2.0)))
    k('v_mul_f32 v169, %s, v169' % f32(-math.log(2.0)))
    k.ds('ds_write2st64_b32 v17, v164, v165 offset0:0 offset1:4')
    k.ds('ds_write_b64 v18, v[168:169]')
    C12POS = E('C12POS', 0)
    EARLYA = E('EARLYA', 0)
    def sigB(nm):
        k.wait(vm=k.tx1)
        k.barrier()
        signal(k, nm, O_F2 + 0x2000, 19, 20)
        k.stamp(11)
    k.wait_all(vm=False)
    if not EARLYA: sigB('f2b')
    xq = []
    w2q = []
    for ks in range(28): w2q += w2_ops(k, ks)
    w2q0 = w2q if not C12POS else []
    def c12_block():
        gt = [None] * 32
        for s_ in range(8): gt[s_] = k.ds('ds_read_b128 %s, v16 offset:%d' % (v(80 + 4 * (s_ % 8), 4), 32 * s_))
        for s_ in range(32):
            if C12POS and s_ == E('PA_AT', 8): sync_issue(k, 'f2a', *k.PA)
            k.wait(ds=gt[s_], vm=k.tw1[s_])
            k('v_mfma_f32_32x32x16_bf16 v[128:143], %s, %s, %s' % (a(4 * s_, 4), v(80 + 4 * (s_ % 8), 4), '0' if s_ == 0 else 'v[128:143]'))
            if EARLYA and s_ == E('SIGB_AT', 6): sigB('f2b')
            if xq: xq.pop(0)()
            elif w2q0: w2q0.pop(0)()
            if s_ >= 1 and s_ + 7 < 32: gt[s_ + 7] = k.ds('ds_read_b128 %s, v16 offset:%d' % (v(80 + 4 * ((s_ + 7) % 8), 4), 32 * (s_ + 7)))
        k.stamp(8)
    if C12POS: c12_block()
    sync_check(k, 'f2a', k.PA, chk_tags([72, 73, 74, 75], 114), extra=0 if (C12POS or EARLYA) else 1)
    k.barrier()
    k.stamp(12); k.stamp2(1)
    ctok = {}
    def chunk_ops(ps, c):
        ops = [lambda: k('s_add_u32 m0, s56, %d' % (ps * 65536 + c * 8192))]
        def ld(i): ctok[ps, c] = k.vm('global_load_lds_dwordx4 v2, s[28:29] offset:%d%s' % (i * 1024, LD_SC))
        for i in range(4): ops.append(lambda i=i: ld(i))
        if c < 3: ops.append(lambda: k('s_add_u32 s28, s28, 8192\ns_addc_u32 s29, s29, 0'))
        elif ps == 0: ops.append(lambda: k('s_add_u32 s28, s28, %d\ns_addc_u32 s29, s29, 0' % (0x100000 - 3 * 8192)))
        return ops
    k('s_cmp_ge_u32 s4, 28')
    k('s_cbranch_scc1 L_st_a')
    for c in range(4): xq.extend(chunk_ops(0, c))
    for _ in range(len(xq) if C12POS else E('XPRE', 5)): xq.pop(0)()
    k('s_branch L_st_b')
    k('L_st_a:')
    k('s_sub_u32 s11, s4, 28')
    k('s_lshl_b32 s60, s3, 2')
    k('s_add_u32 s11, s11, s60')
    k('s_lshl_b32 s60, s11, 15')
    k('s_lshl_b32 s61, s50, 13')
    k('s_add_u32 s60, s60, s61')
    ws_ptr(k, 28, WS_X1T, 60)
    k('v_add_u32 v7, 0x1000, v2')
    STL = ['global_load_dwordx4 %s, v%d, s[28:29] offset:%d%s' % (v(80 + 4 * i, 4), 2 if i < 4 else 7, (i & 3) * 1024, LD_SC) for i in range(8)]
    for x in STL: raw(k, x)
    if EARLYA:
        k('s_waitcnt vmcnt(8)')
        k.barrier()
        signal(k, 'f2bs', O_F2 + 0x2000, 19, 20)
    k('s_branch L_stats')
    k('L_st_b:')
    if not C12POS: c12_block()
    fix = ['v_mov_b32 v%d, v%d' % (144 + r, 128 + r) for r in range(16)]
    fix += ['v_permlane16_swap_b32 v%d, v%d' % (128 + r, 144 + r) for r in range(16)]
    fix += ['v_mul_f32 v%d, %s, v%d' % (144 + r, f32(-LOG2E), 144 + r) for r in range(16)]
    ACC = 16
    for _ in range(E('W2E', 12) if C12POS else 0):
        if w2q: w2q.pop(0)()
    SL = lambda ps: ['global_load_dwordx2 %s, v6, s[70:71] offset:%d%s' % (v(8 + 2 * u, 2), 256 * u, SC) for u in range(2)]
    htok = {}
    def hload(ps, s_):
        htok[ps, s_] = k.vm('global_load_dwordx4 %s, v2, s[22:23] offset:%d%s' % (a(4 * s_, 4), (s_ & 3) * 1024, LD_SC))
        if (s_ & 3) == 3:
            if s_ < 27: adv(k, 22, 33)
            elif ps == 0:
                if ROT: adv(k, 22, 33); k('s_add_u32 s22, s22, %d\ns_addc_u32 s23, s23, 0' % (32 * 114688))
                else: k('s_add_u32 s22, s22, %d\ns_addc_u32 s23, s23, 0' % (32 * 114688 - 6 * 4096))
    k.hload, k.htok = hload, htok
    F3L = lambda ps: 'global_load_dword v72, v122, s[14:15] offset:%d%s' % (1024 * ps, SC)
    W2D = E('W2D', 2)
    lstA = [None]
    for ps in range(2):
        def breg(s_, u): return 48 + 8 * (s_ % 3) + 4 * u
        rtok = {}
        def rd(s_, u):
            off = u * 32768 + s_ * 1024
            k.ds('ds_read_b64_tr_b16 %s, v%d offset:%d' % (v(breg(s_, u), 2), 4 + ps, off))
            rtok[s_, u] = k.ds('ds_read_b64_tr_b16 %s, v%d offset:%d' % (v(breg(s_, u) + 2, 2), 4 + ps, off + 256))
        k.stamp2(2 + 5 * ps)
        k.wait(vm=ctok[ps, 0]); k.barrier()
        k.stamp2(3 + 5 * ps)
        for s_ in range(2):
            for u in range(2): rd(s_, u)
        pend = []
        gap = 0
        for s_ in range(32):
            if s_ % 8 == 6 and s_ < 30:
                c = s_ // 8 + 1
                if ps == 0 and c == E('F2B_AT', 2): sync_check(k, 'f2b', [PL(126)], chk_tags([72, 73, 74, 75], 80))
                if ps == 1 and c == E('F3A_SIG', 2): k.wait(vm=lstA[0])
                k.wait(vm=ctok[ps, c]); k.barrier()
                if ps == 0 and c == E('F2B_AT', 2):
                    for c2 in range(4): pend += chunk_ops(1, c2)
                if ps == 1 and c == E('F3A_SIG', 2): signal(k, 'f3a', O_F3, 73, 74, nrep=1, sidx=10)
            if ps == 0 and s_ == 8 * E('F2B_AT', 2) - 2 - E('POLLD', 12): sync_issue(k, 'f2b', PL(126))
            if s_ == 16: k.stamp2(4 + 5 * ps)
            if s_ == 22:
                def sl(x): ctok['st'] = k.vm(x)
                for x in SL(ps): pend.append(lambda x=x: sl(x))
            for u in range(2):
                k.wait(ds=rtok[s_, u])
                k('v_mfma_f32_32x32x16_bf16 %s, %s, %s, %s' % (v(ACC + 16 * u, 16), a(4 * s_, 4), v(breg(s_, u), 4), '0' if s_ == 0 else v(ACC + 16 * u, 16)))
                if s_ + 2 < 32: rd(s_ + 2, u)
                if fix and s_ >= 2:
                    for _ in range(2): k(fix.pop(0))
                if pend: pend.pop(0)()
                elif w2q and gap % W2D == 0: w2q.pop(0)()
                gap += 1
        while pend: pend.pop(0)()
        k.stamp(13 if ps == 0 else 14); k.stamp2(5 + 5 * ps)
        k.wait(vm=ctok['st'])
        k('s_mov_b32 s80, 0')
        k('L_chk%d_p:' % ps)
        k('v_min_u32 v80, v9, v11')
        k('v_cmp_eq_u32 vcc, 0, v80')
        retry_tail(k, 'chk%d' % ps, SL(ps) + ['s_waitcnt vmcnt(0)'], 2)
        if ps == 0: k('s_add_u32 s70, s70, 0x2000\ns_addc_u32 s71, s71, 0')
        k('s_nop 7')
        k.stamp2(6 + 5 * ps)
        for u in range(2):
            b = 8 + 2 * u
            A_ = ACC + 16 * u
            for p in range(8):
                x = v(A_ + 2 * p, 2)
                k('v_pk_fma_f32 %s, %s, %s, %s op_sel_hi:[1,0,1] neg_lo:[0,1,0] neg_hi:[0,1,0]' % (x, v(128 + 2 * p, 2), v(b, 2), x))
            for p in range(8):
                x = v(A_ + 2 * p, 2)
                k('v_pk_fma_f32 %s, %s, %s, %s op_sel:[1,0,0] op_sel_hi:[1,1,1]' % (x, v(b, 2), x, v(144 + 2 * p, 2)))
            if ps == 1 and u == E('F3A_U', 0): sync_issue(k, 'f3a', F3L(0))
            W2EP = E('W2EP', 4)
            def tick(r):
                if w2q and W2EP and r % W2EP == W2EP - 1 and (u == 0 or E('W2EU', 0)): w2q.pop(0)()
            for r in range(16):
                k('v_exp_f32 v%d, v%d' % (80 + r, A_ + r)); tick(r)
            for p in range(8): k('v_pk_add_f32 %s, %s, 1.0 op_sel_hi:[1,0]' % (v(80 + 2 * p, 2), v(80 + 2 * p, 2)))
            for r in range(16):
                k('v_rcp_f32 v%d, v%d' % (80 + r, 80 + r)); tick(r)
            for p in range(8): k('v_pk_mul_f32 %s, %s, %s' % (v(A_ + 2 * p, 2), v(A_ + 2 * p, 2), v(80 + 2 * p, 2)))
            O = 96 + 8 * u
            for p in range(8): k('v_cvt_pk_bf16_f32 v%d, v%d, v%d' % (O + p, A_ + 2 * p, A_ + 2 * p + 1))
            k.vm('global_store_dwordx4 v%d, %s, s[68:69]%s' % (2 if u == 0 else 113, v(O, 4), SC))
            lst = k.vm('global_store_dwordx4 v%d, %s, s[68:69] offset:1024%s' % (2 if u == 0 else 113, v(O + 4, 4), SC))
        if ps == 0:
            lstA[0] = lst
            k('s_add_u32 s68, s68, %d\ns_addc_u32 s69, s69, 0' % (32 * 114688))
    print('w2 leftover ops', len(w2q))
    while w2q: w2q.pop(0)()
    sync_check(k, 'f3a', [F3L(0)], ['v_cmp_ne_u32 vcc, s81, v72'])
    k.barrier()
    k('s_add_u32 s10, s10, 1024')
    k('s_branch L_join')
    k('L_stats:')
    k.reset_counters()
    k('s_movk_i32 s10, 2048')
    k('s_lshl_b32 s62, s11, 8')
    add_ptr(k, 70, 14, 62)
    k('s_mov_b32 s62, 0xffff0000')
    k('v_lshlrev_b32 v3, 6, v0')
    k('v_bfe_u32 v4, v1, 3, 2')
    k('v_lshlrev_b32 v4, 6, v4')
    k('v_and_b32 v5, 7, v1')
    k('v_lshl_add_u32 v4, v5, 2, v4')
    k('v_lshrrev_b32 v5, 5, v1')
    k('v_lshl_add_u32 v4, v5, 13, v4')
    for ps in range(2):
        if ps == 1:
            poll(k, 'sf2b', [PL(126)], chk_tags([72, 73, 74, 75], 80))
            k('s_add_u32 s28, s28, 0x100000\ns_addc_u32 s29, s29, 0')
            k('s_add_u32 s70, s70, 0x2000\ns_addc_u32 s71, s71, 0')
        if ps == 0:
            xt = list(range(1, 9)); k.nvm = 8
        else: xt = [k.vm(x) for x in STL]
        for r in range(16): k('v_mov_b32 v%d, 0' % (16 + r))
        for i in range(8):
            k.wait(vm=xt[i])
            for j in range(4):
                r = 80 + 4 * i + j
                tt = 32 + 2 * (j & 1)
                k('v_lshlrev_b32 v%d, 16, v%d' % (tt, r))
                k('v_and_b32 v%d, s62, v%d' % (tt + 1, r))
                k('v_pk_add_f32 %s, %s, %s' % (v(16 + 2 * j, 2), v(16 + 2 * j, 2), v(tt, 2)))
                k('v_pk_fma_f32 %s, %s, %s, %s' % (v(24 + 2 * j, 2), v(tt, 2), v(tt, 2), v(24 + 2 * j, 2)))
        for pat in ('row_ror:4', 'row_ror:8'):
            for r in range(16): k('v_add_f32_dpp v%d, v%d, v%d %s row_mask:0xf bank_mask:0xf' % (16 + r, 16 + r, 16 + r, pat))
        for i in range(4): k.ds('ds_write_b128 v3, %s offset:%d' % (v(16 + 4 * i, 4), 16384 * ps + 16 * i))
        k.wait_all(vm=False)
        k.barrier()
        k('s_cmp_lg_u32 s50, 0')
        k('s_cbranch_scc1 L_st%d' % ps)
        for q in range(8):
            raw(k, 'ds_read_b32 v%d, v4 offset:%d' % (16 + 2 * q, 16384 * ps + 1024 * q))
            raw(k, 'ds_read_b32 v%d, v4 offset:%d' % (17 + 2 * q, 16384 * ps + 1024 * q + 32))
        k('s_waitcnt lgkmcnt(0)')
        for q in range(1, 8): k('v_pk_add_f32 v[16:17], v[16:17], %s' % v(16 + 2 * q, 2))
        k('v_mov_b64 v[18:19], v[16:17]')
        k('v_permlane32_swap_b32 v16, v18')
        k('v_permlane32_swap_b32 v17, v19')
        k('v_pk_add_f32 v[16:17], v[16:17], v[18:19]')
        k('v_mul_f32 v16, %s, v16' % f32(1.0 / 512))
        k('v_mul_f32 v17, %s, v17' % f32(1.0 / 512))
        k('v_fma_f32 v17, -v16, v16, v17')
        k('v_max_f32 v17, 0, v17')
        k('v_add_f32 v17, %s, v17' % f32(1e-5))
        k('v_rsq_f32 v17, v17')
        k('v_mul_f32 v17, %s, v17' % f32(-LOG2E))
        raw(k, 'global_store_dwordx2 v6, v[16:17], s[70:71]' + SC)
        k('L_st%d:' % ps)
    for ks in range(28):
        for op in w2_ops(k, ks): op()
    poll(k, 'sf3a', [F3L(0)], ['v_cmp_ne_u32 vcc, s81, v72'])
    k('L_join:')
    k.stamp(1); k.stamp2(12)
    k.reset_counters()
    htok.clear()
    HA0 = E('HA0', 16)
    for s_ in range(HA0): hload(0, s_)
    for q in range(2): k.ds('ds_read_b128 %s, v117 offset:%d' % (v(96 + 4 * q, 4), 32 * q))
    for r in range(16): k('v_mov_b32 v%d, 0' % (80 + r))
    k('v_add_u32 v115, 0x100000, v116')
    k('v_add_u32 v119, 0x100000, v118')
    k('s_waitcnt vmcnt(%d)' % HA0)
    k.barrier()
    signal(k, 'f3b', O_F3, 73, 74, nrep=1, sidx=10)
    aq = [lambda s_=s_: hload(0, s_) for s_ in range(HA0, 28)]
    trs = {}
    def rl(ps, q, r): trs[ps] = k.vm('global_load_short_d16_hi v%d, v%d, s[20:21] offset:%d%s' % (80 + 8 * ps + 4 * q + r, 116 - ps, (8 * q + r) * 64, LD_SC))
    for q in range(2):
        for r in range(4): aq.append(lambda q=q, r=r: rl(0, q, r))
    bq = [lambda q=q, r=r: rl(1, q, r) for q in range(2) for r in range(4)]
    FB = E('F3B_AT', 24); nh = [0]
    for ps in range(2):
        for s_ in range(28):
            k.wait(vm=htok[ps, s_])
            if s_ == 0: k.stamp2(13 + ps)
            if ps == 0 and s_ == max(0, FB - E('F3B_D', 8)): sync_issue(k, 'f3b', F3L(1))
            if ps == 0 and s_ == FB:
                sync_check(k, 'f3b', [F3L(1)], ['v_cmp_ne_u32 vcc, s81, v72'])
                k.barrier()
                k.stamp(5)
            for j in range(2):
                k('v_mfma_f32_32x32x16_bf16 %s, %s, %s, %s' % (v(ACC + 16 * j, 16), w2reg(s_)[j], a(4 * s_, 4), '0' if s_ == 0 else v(ACC + 16 * j, 16)))
                if ps == 0 and aq: aq.pop(0)()
                if ps == 1 and nh[0] < 28: hload(1, nh[0]); nh[0] += 1
                elif ps == 1 and bq and s_ >= 4: bq.pop(0)()
                if ps == 0 and s_ >= FB:
                    for _ in range(2):
                        if nh[0] < s_ + j: hload(1, nh[0]); nh[0] += 1
        while ps == 0 and FB < 28 and nh[0] < 28: hload(1, nh[0]); nh[0] += 1
        for q in range(8): k.ds('ds_write_b128 v120, %s offset:%d' % (v(ACC + 4 * q, 4), 32768 * ps + q * 1024))
        if ps == 0 and FB >= 28: sync_check(k, 'f3b', [F3L(1)], ['v_cmp_ne_u32 vcc, s81, v72'])
        k.wait_all(vm=False)
        k.barrier()
        if ps == 0 and FB >= 28:
            k.stamp(5)
            for _ in range(8): hload(1, nh[0]); nh[0] += 1
        rt_ = []
        for w_ in range(4):
            for q in range(2): t = k.ds('ds_read_b128 %s, v121 offset:%d' % (v(48 + 8 * w_ + 4 * q, 4), 32768 * ps + w_ * 8192 + q * 1024))
            rt_.append(t)
        while ps == 0 and nh[0] < E('HB1', 20): hload(1, nh[0]); nh[0] += 1
        k.wait(ds=rt_[1])
        for p in range(4): k('v_pk_add_f32 %s, %s, %s' % (v(48 + 2 * p, 2), v(48 + 2 * p, 2), v(56 + 2 * p, 2)))
        k.wait(ds=rt_[3])
        for p in range(4): k('v_pk_add_f32 %s, %s, %s' % (v(64 + 2 * p, 2), v(64 + 2 * p, 2), v(72 + 2 * p, 2)))
        k.wait(vm=trs[ps])
        for p in range(4):
            k('v_pk_add_f32 %s, %s, %s' % (v(48 + 2 * p, 2), v(48 + 2 * p, 2), v(64 + 2 * p, 2)))
            k('v_pk_fma_f32 %s, %s, %s, %s' % (v(48 + 2 * p, 2), v(48 + 2 * p, 2), v(96 + 2 * p, 2), v(80 + 8 * ps + 2 * p, 2)))
            k('v_cvt_pk_bf16_f32 v%d, v%d, v%d' % (104 + 4 * ps + p, 48 + 2 * p, 49 + 2 * p))
        b = 104 + 4 * ps
        k('v_permlane32_swap_b32 v%d, v%d' % (b, b + 2))
        k('v_permlane32_swap_b32 v%d, v%d' % (b + 1, b + 3))
        k.vm('global_store_dwordx4 v%d, %s, s[24:25]' % (118 + ps, v(b, 4)))

def build_single(path):
    k = Kern(NAME + '_kernel')
    phase0(k); conv_phase(k); mlp_phase(k)
    k.end()
    k('L_end:')
    k('s_endpgm')
    launch, (vg_, sg_, ac) = 'grid=(256,1,1) block=(256,1,1) lds=%d' % LDS_TOTAL, (512, 84, 256)
    out = [HEADER.rstrip(), '; @launch ' + launch, '.amdgcn_target "amdgcn-amd-amdhsa--gfx950"', k.text(vg_, sg_, ac), '.text\nL_text_end:\n    s_endpgm']
    print(k.name, k.stats)
    open(path, 'w').write('\n'.join(out) + '\n')

if __name__ == '__main__':
    build_single(sys.argv[1] if len(sys.argv) > 1 else ('diag.s' if DIAG else 'cdna_kernels/%s.s' % NAME))
```

```python
import os
from gen import *
E = lambda n, d: int(os.environ.get(n, str(d)))
WS_XG = 0x000000
WS_ST1 = 0x800000
WS_MODG = 0x820000
WS_FIN = 0x860000
WS_W1P = 0x1800000
WS_X1S = 0xB00000
WS_SYNC = 0xF00000
O_F2, O_F3 = 0x8000, 0xC000
L_T = 65536
L_CM = 98304; L_SC = 114688
L_STN = 118784; L_STX = 118784 + 8448 + 128
L_CV = 0; CHS = 21120
O_K1 = 4160; O_H = 8320; O_RED = 12928
L_X = 42240
L_W1 = 79872
NW1 = 16
L_SJ = L_W1 + NW1 * 4096
L_GS = L_SJ
LDS_TOTAL = L_SJ + 16384
O_FP = 0x6000
XS = E('XS', 16384 + 384)
SC = ' sc1'
LD_SC = os.environ.get('LD_SC', ' sc1')
W_SC = os.environ.get('W_SC', ' sc1')
TMO = 0x20000
SYNCW = 1
KSPLIT = E('KSPLIT', 1)

def raw(k, s_): k.lines.append('    ' + s_)

def retry_tail(k, name, loads, sleep=0):
    k('s_nop 0')
    k('s_cbranch_vccz L_%s_w' % name)
    k('s_add_u32 s80, s80, 1')
    k('s_cmp_gt_u32 s80, 0x%x' % TMO)
    k('s_cbranch_scc1 L_%s_w' % name)
    if sleep: k('s_sleep %d' % sleep)
    for l in loads: raw(k, l)
    k('s_branch L_%s_p' % name)
    k('L_%s_w:' % name)

def poll(k, name, loads, check):
    k('s_cmp_lg_u32 s50, %d' % SYNCW)
    k('s_cbranch_scc1 L_%s_w' % name)
    k('s_mov_b32 s80, 0')
    for l in loads: raw(k, l)
    k('L_%s_p:' % name)
    k('s_waitcnt vmcnt(0)')
    for c in check: k(c)
    retry_tail(k, name, loads, 1)
    k.barrier()

def signal(k, name, off, va, vd, nrep=8, sidx=None):
    k('s_cmp_lg_u32 s50, %d' % SYNCW)
    k('s_cbranch_scc1 L_%s_s' % name)
    if sidx is None:
        k('s_lshl_b32 s80, s2, 2')
        k('s_add_u32 s80, s80, 0x%x' % off)
    else:
        k('s_add_u32 s80, s%d, 0x%x' % (sidx, off))
    k('v_lshl_add_u32 v%d, v1, 10, s80' % va)
    k('v_mov_b32 v%d, s81' % vd)
    k('s_mov_b64 exec, %d' % ((1 << nrep) - 1))
    raw(k, 'global_store_dword v%d, v%d, s[14:15]%s' % (va, vd, SC))
    k('s_mov_b64 exec, -1')
    k('L_%s_s:' % name)

def chk_tags(regs, t):
    o = ['v_xor_b32 v%d, s81, v%d' % (t, regs[0])]
    for r in regs[1:]:
        o += ['v_xor_b32 v%d, s81, v%d' % (t + 1, r), 'v_or_b32 v%d, v%d, v%d' % (t, t, t + 1)]
    return o + ['v_cmp_ne_u32 vcc, 0, v%d' % t]

def phase0(k):
    load_ptrs(k)
    k('s_getpc_b64 s[82:83]')
    k('L_pf:')
    PFM = E('PFM', 1)
    if PFM == 0:
        k('v_lshlrev_b32 v255, 7, v0')
        k('v_min_u32 v255, L_text_end-L_pf-4, v255')
        raw(k, 'global_load_dword v255, v255, s[82:83]')
    else:
        N = E('PFN', 32)
        k('s_lshr_b32 s4, s2, 3')
        k('s_and_b32 s4, s4, %d' % (256 // N - 1))
        k('s_mul_i32 s4, s4, %d' % (N * 128))
        k('v_subrev_u32 v255, 192, v0')
        k('v_cmp_gt_u32 vcc, %d, v255' % N)
        k('v_lshl_add_u32 v255, v255, 7, s4')
        k('v_min_u32 v255, L_text_end-L_pf-4, v255')
        k('s_and_saveexec_b64 s[80:81], vcc')
        k('s_cbranch_execz L_pf2')
        raw(k, 'global_load_dword v255, v255, s[82:83]')
        k('L_pf2:')
        k('s_mov_b64 exec, -1')
    k('s_cmp_ge_u32 s2, 256')
    k('s_cbranch_scc1 L_end')
    k('s_memrealtime s[78:79]')
    wave_id(k, 50, 1)
    k('v_and_b32 v1, 63, v0')
    k('s_and_b32 s3, s2, 7')
    k('s_lshr_b32 s4, s2, 3')
    k('s_lshl_b32 s51, s3, 5')
    k('s_add_u32 s80, s51, s4')
    k('s_lshl_b32 s51, s80, 9')
    k('v_lshl_add_u32 v2, v0, 1, s51')
    for i in range(4, 11): k('v_mov_b32 v%d, 0' % i)
    k('s_lshr_b32 s52, s50, 1')
    k('s_lshl_b32 s53, s80, 1')
    k('s_add_u32 s53, s53, s52')
    k('s_lshl_b32 s54, s53, 1')
    k('v_mov_b32 v3, s54')
    k('v_lshrrev_b32 v77, 5, v0')
    k('v_and_b32 v78, 31, v0')
    k('v_lshlrev_b32 v78, 4, v78')
    k('v_lshl_add_u32 v79, v77, 10, v78')
    k('s_lshl_b32 s63, s2, 13')
    k('v_add_u32 v79, s63, v79')
    k.smem_wait()
    k('s_mov_b32 s34, s80')
    k('s_or_b32 s78, s78, 1')
    k('s_or_b32 s79, s2, s50')
    k('s_cmp_eq_u32 s79, 0')
    k('s_cbranch_scc0 L_nn')
    k('v_mov_b32 v250, s78')
    k('v_lshlrev_b32 v251, 6, v1')
    k('s_mov_b64 exec, 15')
    raw(k, 'global_store_dword v251, v250, s[%d:%d]%s' % (P_DBG, P_DBG + 1, SC))
    k('s_mov_b64 exec, -1')
    k('L_nn:')
    k.vm('global_load_short_d16_hi v10, v3, s[%d:%d]' % (P_LDT, P_LDT + 1))
    for i, p in enumerate((P_ARE, P_AIM, P_BRE, P_BIM, P_CRE, P_CIM)):
        tpar = k.vm('global_load_short_d16_hi v%d, v2, s[%d:%d]' % (4 + i, p, p + 1))
    k.vm('global_load_dwordx4 v[240:243], v79, s[%d:%d]' % (P_U, P_U + 1))
    tx = k.vm('global_load_dwordx4 v[244:247], v79, s[%d:%d] offset:512' % (P_U, P_U + 1))
    k('s_and_b32 s5, s4, 3')
    k('s_lshl_b32 s5, s5, 3')
    k('s_add_u32 s5, s5, s3')
    k('s_lshl_b32 s5, s5, 1')
    k('s_bfe_u32 s6, s4, 0x10002')
    k('s_add_u32 s5, s5, s6')
    k('s_lshr_b32 s6, s4, 3')
    k('s_cmp_ge_u32 s5, 48')
    k('s_cselect_b32 s7, 16, 0')
    k('s_add_u32 s7, s7, s5')
    k('s_lshl_b32 s7, s7, 6')
    k('s_lshl_b32 s8, s6, 2')
    k('s_add_u32 s8, s8, s50')
    k('s_mul_i32 s9, s8, %d' % (32 * 6144))
    k('s_add_u32 s7, s7, s9')
    k('v_lshrrev_b32 v250, 2, v1')
    k('v_mul_u32_u24 v254, 6144, v250')
    k('v_and_b32 v251, 3, v1')
    k('v_lshl_add_u32 v254, v251, 4, v254')
    k('s_lshl_b32 s9, s50, 12')
    k('s_add_u32 s9, s9, %d' % L_CM)
    k('v_mov_b32 v231, v254')
    k('s_lshl_b32 s8, s8, 6')
    k('s_and_b32 s64, s4, 1')
    k('s_lshl_b32 s64, s64, 3')
    k('s_add_u32 s64, s64, s3')
    k('s_lshl_b32 s64, s64, 1')
    k('s_bfe_u32 s65, s4, 0x10001')
    k('s_add_u32 s64, s64, s65')
    k('s_lshr_b32 s65, s4, 2')
    k('s_cmp_ge_u32 s64, 16')
    k('s_cselect_b32 s66, 64, 48')
    k('s_add_u32 s66, s66, s64')
    k('s_lshl_b32 s66, s66, 6')
    k('s_lshl_b32 s67, s65, 2')
    k('s_add_u32 s67, s67, s50')
    k('s_mul_i32 s68, s67, %d' % (16 * 6144))
    k('s_add_u32 s66, s66, s68')
    k('s_lshl_b32 s67, s67, 5')
    k('s_sub_u32 s67, s67, 64')
    k('v_min_u32 v248, 23, v1')
    k('v_cmp_gt_u32 vcc, 16, v248')
    k('v_mov_b32 v250, s67')
    k('v_mov_b32 v251, s8')
    k('v_cndmask_b32 v250, v250, v251, vcc')
    k('v_lshl_add_u32 v248, v248, 2, v250')
    tc = k.vm('global_load_dword v248, v248, s[%d:%d]' % (P_C, P_C + 1))
    k('s_lshl_b32 s60, s34, 2')
    k('s_load_dword s30, s[%d:%d], s60' % (P_DSK, P_DSK + 1))
    if E('W1T', 0):
        k('s_and_b32 s75, s3, 1')
        k('s_mul_i32 s75, s75, 7')
        k('s_lshr_b32 s76, s4, 2')
        k('s_add_u32 s75, s75, s76')
        k('s_min_u32 s75, s75, 13')
        k('s_lshl_b32 s75, s75, 8')
        k('s_and_b32 s76, s4, 3')
        k('s_mul_i32 s76, s76, %d' % (128 * 3584))
        k('s_add_u32 s75, s75, s76')
        k('v_lshrrev_b32 v237, 1, v0')
        k('v_mul_u32_u24 v237, 3584, v237')
        k('v_and_b32 v238, 1, v0')
        k('v_lshl_add_u32 v237, v238, 7, v237')
        k('v_add_u32 v237, s75, v237')
        k.vm('global_load_dword a200, v237, s[%d:%d]' % (P_W1, P_W1 + 1))
    if E('W2T', 0):
        k('s_min_u32 s75, s2, 111')
        k('s_lshl_b32 s75, s75, 14')
        k('v_and_b32 v238, 127, v0')
        k('v_lshl_add_u32 v238, v238, 7, s75')
        k.vm('global_load_dword a201, v238, s[%d:%d]' % (P_W2, P_W2 + 1))
    k('s_cmp_lt_u32 s2, 112')
    k('s_cbranch_scc0 L_pj_w1')
    k('s_lshl_b32 s76, s2, 14')
    k('s_lshl_b32 s70, s50, 12')
    k('s_add_u32 s76, s76, s70')
    add_ptr(k, 72, P_W2, 76)
    k('s_add_u32 s31, s70, %d' % L_SJ)
    k('s_movk_i32 s79, 1024')
    for r in range(4):
        k('v_xor_b32 v%d, %d, v1' % (224 + r, r << 2))
        k('v_lshlrev_b32 v%d, 4, v%d' % (224 + r, 224 + r))
        if r: k('v_add_u32 v%d, %d, v%d' % (224 + r, 1024 * r, 224 + r))
    k('s_branch L_pj_go')
    k('L_pj_w1:')
    k('s_sub_u32 s75, s2, 112')
    k('s_min_u32 s75, s75, 111')
    k('s_and_b32 s26, s75, 7')
    k('s_lshr_b32 s27, s75, 3')
    k('s_lshl_b32 s75, s26, 4')
    k('s_add_u32 s75, s75, s50')
    k('s_mul_i32 s75, s75, %d' % (4 * 3584))
    k('s_lshl_b32 s76, s27, 8')
    k('s_add_u32 s75, s75, s76')
    add_ptr(k, 72, P_W1, 75)
    k('s_lshl_b32 s31, s50, 10')
    k('s_add_u32 s31, s31, %d' % L_SJ)
    k('s_movk_i32 s79, 4096')
    k('v_lshrrev_b32 v228, 4, v1')
    k('v_and_b32 v229, 15, v1')
    k('v_lshlrev_b32 v230, 2, v228')
    k('v_xor_b32 v230, v230, v229')
    k('v_mul_u32_u24 v224, 3584, v228')
    k('v_lshl_add_u32 v224, v230, 4, v224')
    for r in range(1, 4): k('v_add_u32 v%d, %d, v224' % (224 + r, r * 16 * 3584))
    k('L_pj_go:')
    def pkdma(r):
        k('s_mov_b32 m0, s31')
        k.tpk = k.vm('global_load_lds_dwordx4 v%d, s[72:73]' % (224 + r))
        k('s_add_u32 s31, s31, s79')
    SNON = 0
    if SNON:
        add_ptr(k, 10, P_WMOD, 7)
        k('s_mov_b32 m0, s9')
        k.vm('global_load_lds_dwordx4 v231, s[10:11]')
        k('s_add_u32 s10, s10, %d' % (16 * 6144 - 1024))
        k('s_addc_u32 s11, s11, 0')
        k.vm('global_load_lds_dwordx4 v231, s[10:11] offset:1024')
        add_ptr(k, 10, P_WMOD, 66)
        k('s_add_u32 m0, s9, 2048')
        tcm = k.vm('global_load_lds_dwordx4 v231, s[10:11]')
        for r in range(4): pkdma(r)
    k('s_and_b32 s75, s5, 15')
    k('s_lshl_b32 s75, s75, 13')
    k('s_lshr_b32 s76, s5, 4')
    k('s_lshl_b32 s76, s76, 6')
    k('s_add_u32 s75, s75, s76')
    k('s_lshl_b32 s76, s6, 3')
    k('s_add_u32 s75, s75, s76')
    k('s_and_b32 s76, s64, 15')
    k('s_lshl_b32 s76, s76, 13')
    k('s_lshr_b32 s77, s64, 4')
    k('s_lshl_b32 s77, s77, 7')
    k('s_add_u32 s76, s76, s77')
    k('s_lshl_b32 s77, s65, 3')
    k('s_add_u32 s76, s76, s77')
    k('s_add_u32 s76, s76, 256')
    k('s_cmp_eq_u32 s50, 0')
    k('s_cselect_b32 s75, s75, s76')
    ws_ptr(k, 16, WS_MODG, 75)
    k('v_mov_b32 v12, 0\nv_mov_b32 v13, 0\nv_mov_b32 v14, 0\nv_mov_b32 v15, 0')
    ws_ptr(k, 14, WS_SYNC)
    tr_addr32(k, 254, 1, 250, 251, 6, 8)
    k('v_add_u32 v254, s9, v254')
    k('v_and_b32 v40, 31, v1')
    k('v_lshrrev_b32 v41, 5, v1')
    k('v_lshrrev_b32 v253, 1, v40')
    k('v_lshlrev_b32 v253, 9, v253')
    k('v_and_b32 v250, 1, v40')
    k('s_add_u32 s75, s50, 5')
    k('v_lshlrev_b32 v250, s75, v250')
    k('v_add_u32 v253, v253, v250')
    k('v_mul_u32_u24 v11, 1056, v77')
    k('v_add_u32 v11, v11, v78')
    k('v_add_u32 v11, %d, v11' % L_STN)
    k('v_bfe_u32 v56, v1, 2, 3')
    k('v_mul_u32_u24 v236, 1056, v56')
    k('v_and_b32 v57, 3, v1')
    k('v_lshl_add_u32 v236, v57, 3, v236')
    k('v_lshl_add_u32 v236, v41, 5, v236')
    k('s_lshl_b32 s75, s50, 8')
    k('s_add_u32 s75, s75, %d' % L_STN)
    k('v_add_u32 v236, s75, v236')
    k('v_and_b32 v57, 15, v1')
    k('v_lshl_add_u32 v57, v41, 4, v57')
    k('v_lshlrev_b32 v235, 5, v57')
    k('v_bfe_u32 v57, v1, 4, 1')
    k('v_lshl_add_u32 v235, v57, 4, v235')
    k('s_lshl_b32 s75, s2, 10')
    k('s_lshl_b32 s76, s50, 20')
    k('s_add_u32 s75, s75, s76')
    ws_ptr(k, 12, WS_XG, 75)
    k('s_lshl_b32 s75, s2, 6')
    k('s_lshl_b32 s76, s50, 4')
    k('s_add_u32 s75, s75, s76')
    ws_ptr(k, 24, WS_ST1, 75)
    k('s_mov_b32 s58, 0xffff0000')
    k('s_mov_b32 s63, 0x3f803f80')
    k('v_lshlrev_b32 v249, 2, v0')
    k('v_add_u32 v249, %d, v249' % L_SC)
    k('v_lshlrev_b32 v233, 4, v41')
    k('s_lshl_b32 s75, s50, 8')
    k('s_add_u32 s75, s75, %d' % L_SC)
    k('v_add_u32 v233, s75, v233')
    k('s_lshl_b32 s75, s50, 10')
    k('v_lshl_add_u32 v252, v1, 2, s75')
    k('v_add_u32 v252, %d, v252' % (L_SC + 1024))
    k('s_lshl_b32 s55, s50, 14')
    k('v_lshl_add_u32 v16, v1, 2, s55')
    for r in range(1, 16): k('v_xor_b32 v%d, %d, v16' % (16 + r, r << 4))
    k('v_and_b32 v42, 15, v1')
    k('v_xor_b32 v42, v42, v41')
    k('v_lshlrev_b32 v42, 4, v42')
    k('v_lshl_add_u32 v42, v40, 8, v42')
    k('v_add_u32 v32, s55, v42')
    for ks in range(1, 8): k('v_xor_b32 v%d, %d, v32' % (32 + ks, ks << 5))
    k('s_mul_i32 s56, s52, 6912')
    k('s_add_u32 s56, s56, %d' % (L_T - 0x3F00 * 4))
    k('v_lshlrev_b32 v42, 3, v40')
    k('v_cvt_f32_u32 v42, v42')
    k('v_cvt_f32_u32 v43, v41')
    c0 = [0, 1, 2, 3, 256, 258, 260, 262]
    c1 = [4, 5, 6, 7, 512, 516, 768, 772]
    for r in range(8):
        k('v_fmamk_f32 v56, v43, %s, v42' % f32(c1[r] - c0[r]))
        if c0[r]: k('v_add_f32 v56, %s, v56' % f32(c0[r]))
        else: k('v_max_f32 v56, 0.5, v56')
        k('v_cvt_pk_bf16_f32 v56, v56, 0')
        k('v_lshl_add_u32 v%d, v56, 2, s56' % (44 + r))
    k('v_cmp_eq_u32 vcc, 32, v1')
    k('v_fmaak_f32 v57, 4.0, v42, %s' % f32(4096.0))
    k('v_mov_b32 v58, %s' % f32(2048.0))
    k('v_cndmask_b32 v58, v57, v58, vcc')
    k('v_cmp_lt_u32 vcc, 31, v1')
    for r in range(8, 12):
        k('v_add_f32 v56, %s, v42' % f32(1024 + 256 * (r - 8)))
        k('v_cndmask_b32 v56, v56, v%d, vcc' % (58 if r == 8 else 57))
        k('v_cvt_pk_bf16_f32 v56, v56, 0')
        k('v_lshl_add_u32 v%d, v56, 2, s56' % (44 + r))
    k('v_and_b32 v59, 127, v0')
    k('v_lshlrev_b32 v56, 4, v59')
    k('v_sub_u32 v56, 2047, v56')
    k('v_cvt_f32_u32 v57, v56')
    for i in range(17):
        if i: k('v_add_f32 v56, %s, v57' % f32(-float(i)))
        else: k('v_mov_b32 v56, v57')
        if i >= 15: k('v_max_f32 v56, 0.5, v56')
        k('v_cvt_pk_bf16_f32 v56, v56, 0')
        k('v_lshl_add_u32 v%d, v56, 2, s56' % (60 + i))
    k('s_mov_b32 s57, 0x07060302')
    k('s_mov_b32 s59, %s' % f32(LOG2E))
    lo_log2e = LOG2E - struct.unpack('<f', struct.pack('<f', LOG2E))[0]
    inv2pi = 1.0 / (2 * math.pi)
    inv2pi_f = struct.unpack('<f', struct.pack('<f', inv2pi))[0]
    k('s_mov_b32 s60, %s' % f32(inv2pi_f))
    k('s_mov_b32 s61, %s' % f32(inv2pi - inv2pi_f))
    k('s_mov_b32 s62, %s' % f32(lo_log2e))
    k('s_lshl_b32 s75, s50, 6')
    k('v_mov_b32 v234, s75')
    NL = 'global_load_dword v232, v234, s[%d:%d]%s' % (P_DBG, P_DBG + 1, SC)
    if not SNON:
        tn = k.vm(NL)
        add_ptr(k, 10, P_WMOD, 7)
        k('s_mov_b32 m0, s9')
        k.vm('global_load_lds_dwordx4 v231, s[10:11]')
        k('s_add_u32 s10, s10, %d' % (16 * 6144 - 1024))
        k('s_addc_u32 s11, s11, 0')
        k.vm('global_load_lds_dwordx4 v231, s[10:11] offset:1024')
        add_ptr(k, 10, P_WMOD, 66)
        k('s_add_u32 m0, s9, 2048')
        tcm = k.vm('global_load_lds_dwordx4 v231, s[10:11]')
        for r in range(4): pkdma(r)
    k('s_cmp_lt_u32 s2, 112')
    k('s_cbranch_scc0 L_pa_w1')
    tr_addr32(k, 224, 1, 250, 251, 10, 4)
    k('s_lshl_b32 s76, s50, 8')
    k('s_add_u32 s76, s76, %d' % L_SJ)
    k('v_add_u32 v224, s76, v224')
    k('v_bfe_u32 v251, v1, 2, 2')
    k('v_lshlrev_b32 v251, 6, v251')
    k('v_xor_b32 v224, v224, v251')
    for q in range(1, 4): k('v_xor_b32 v%d, %d, v224' % (224 + q, q << 6))
    k('s_mul_i32 s76, s50, %d' % (4 * 114688))
    k('s_lshl_b32 s75, s2, 10')
    k('s_add_u32 s76, s76, s75')
    ws_ptr(k, 70, WS_W2P, 76)
    k('s_mov_b32 s75, 114688')
    k('s_movk_i32 s76, 8192')
    k('s_branch L_pa_go')
    k('L_pa_w1:')
    tr_addr32(k, 224, 1, 250, 251, 8, 8)
    k('v_bfe_u32 v251, v1, 2, 2')
    k('v_xor_b32 v251, s50, v251')
    k('v_lshl_add_u32 v224, v251, 6, v224')
    k('v_add_u32 v224, %d, v224' % L_SJ)
    for q in range(1, 4): k('v_add_u32 v%d, %d, v224' % (224 + q, q * 4096))
    k('s_lshl_b32 s76, s27, 2')
    k('s_add_u32 s76, s76, s50')
    k('s_lshl_b32 s76, s76, 15')
    k('s_lshl_b32 s75, s26, 12')
    k('s_add_u32 s76, s76, s75')
    ws_ptr(k, 70, WS_W1P, 76)
    k('s_movk_i32 s75, 1024')
    k('s_movk_i32 s76, 1024')
    k('L_pa_go:')
    for q in range(4): k('v_add_u32 v%d, s76, v%d' % (228 + q, 224 + q))
    k('v_lshlrev_b32 v223, 4, v1')
    k('v_add_u32 v237, s75, v223')
    k('v_add_u32 v238, s75, v237')
    k('v_add_u32 v239, s75, v238')
    k('s_lshr_b32 s5, s3, 1')
    k('s_lshl_b32 s5, s5, 2')
    k('s_and_b32 s75, s4, 3')
    k('s_add_u32 s5, s5, s75')
    k('s_and_b32 s7, s3, 1')
    k('s_mul_i32 s7, s7, 7')
    k('s_lshr_b32 s75, s4, 2')
    k('s_add_u32 s7, s7, s75')
    k('s_min_u32 s7, s7, 13')
    k('s_lshl_b32 s6, s7, 2')
    k('s_add_u32 s6, s6, s50')
    k.smem_wait()
    k.wait(vm=tpar)
    k('v_mov_b32 v255, v223')
    k.stamp(2); k.stamp3(1)
    if SNON: k('s_load_dword s81, s[%d:%d], 0 glc' % (P_DBG, P_DBG + 1))
    k('v_mul_f32 v78, s59, v10')
    k('v_fma_f32 v79, v10, s59, -v78')
    k('v_fma_f32 v79, v10, s62, v79')
    k('v_exp_f32 v78, v78')
    k('v_mul_f32 v79, %s, v79' % f32(math.log(2.0)))
    k('v_fma_f32 v78, v78, v79, v78')
    k('v_cvt_pk_bf16_f32 v78, v78, v78')
    k('v_and_b32 v78, s58, v78')
    k('v_mul_f32 v4, v78, v4')
    k('v_mul_f32 v5, v78, v5')
    k('v_mul_f32 v152, v78, v6')
    k('v_mul_f32 v154, v78, v7')
    E0 = 96
    cmul1(k, E0, 8, 152); cmul2(k, E0, 8, 152)
    k('v_mul_f32 v4, s59, v4')
    Z1, Z256, Z8, Z128 = 80, 84, 152, 156
    def zpow(dst, p, conj, t):
        pf = f32(float(p))
        return ['v_mul_f32 v%d, %s, v4' % (t, pf), 'v_mul_f32 v%d, %s, v5' % (t + 1, pf), 'v_exp_f32 v%d, v%d' % (t, t),
                'v_mul_f32 v%d, s60, v%d' % (t + 2, t + 1), 'v_fma_f32 v%d, v%d, s60, -v%d' % (t + 3, t + 1, t + 2),
                'v_fma_f32 v%d, v%d, s61, v%d' % (t + 3, t + 1, t + 3), 'v_fract_f32 v%d, v%d' % (t + 2, t + 2),
                'v_add_f32 v%d, v%d, v%d' % (t + 2, t + 2, t + 3), 'v_cos_f32 v%d, v%d' % (t + 3, t + 2), 'v_sin_f32 v%d, v%d' % (t + 2, t + 2),
                'v_mul_f32 v%d, v%d, v%d' % (dst, t, t + 3), 'v_mul_f32 v%d, v%d, %sv%d' % (dst + 2, t, '-' if conj else '', t + 2)]
    for p_, q_ in ((zpow(Z1, 1, False, 88), zpow(Z256, 256, False, 92)), (zpow(Z8, 8, True, 88), zpow(Z128, 128, True, 92))):
        for x, y in zip(p_, q_): k(x); k(y)
    T0 = 140
    def split_a(e, i):
        t = T0 + 6 * (i & 1)
        if not KSPLIT:
            k('v_cvt_pk_bf16_f32 v%d, v%d, v%d' % (t + 4, e, e + 1)); return
        k('v_perm_b32 v%d, v%d, v%d, s57' % (t + 4, e + 1, e))
        k('v_and_b32 v%d, s58, v%d' % (t, e))
        k('v_and_b32 v%d, s58, v%d' % (t + 1, e + 1))
    def split_b(e, i, row):
        t = T0 + 6 * (i & 1)
        if not KSPLIT: return k.ds('ds_write_b32 v%d, v%d offset:%d' % (16 + (row & 15), t + 4, row * 256))
        k('v_pk_add_f32 %s, %s, %s neg_lo:[0,1] neg_hi:[0,1]' % (v(t + 2, 2), v(e, 2), v(t, 2)))
        k('v_cvt_pk_bf16_f32 v%d, v%d, v%d' % (t + 5, t + 2, t + 3))
        return k.ds('ds_write2st64_b32 v%d, v%d, v%d offset0:%d offset1:%d' % (16 + (row & 15), t + 4, t + 5, row, 32 + row))
    hi = {r: (r - 1, Z1) for r in range(1, 8)}
    hi.update({8: (0, Z256), 9: (2, Z256), 10: (4, Z256), 11: (6, Z256), 12: (8, Z256), 13: (10, Z256), 14: (12, Z256), 15: (13, Z256),
               16: (14, Z256), 17: (16, Z256), 18: (17, Z256), 19: (18, Z256), 20: (19, Z256)})
    order = [0, 1, 8, 2, 12, 3, 14, 4, 16, 5, 17, 6, 18, 7, 19, 9, 20, 10, 11, 13, 15]
    for i, r in enumerate(order):
        nxt = order[i + 1] if i + 1 < len(order) else None
        if nxt is not None: cmul1(k, E0 + 2 * nxt, E0 + 2 * hi[nxt][0], hi[nxt][1])
        split_a(E0 + 2 * r, i)
        if nxt is not None: cmul2(k, E0 + 2 * nxt, E0 + 2 * hi[nxt][0], hi[nxt][1])
        split_b(E0 + 2 * r, i, r)
    AH, AL = 160, 192
    for ks in range(8):
        k.ds('ds_read_b128 %s, v%d' % (v(AH + 4 * ks, 4), 32 + ks))
        if KSPLIT: k.ds('ds_read_b128 %s, v%d offset:8192' % (v(AL + 4 * ks, 4), 32 + ks))
    for i in range(4): k('v_mov_b32 v%d, 0' % (96 + i))
    k.stamp3(2)
    k.wait(vm=tx)
    k.stamp3(3)
    for i in range(2): k.ds('ds_write_b128 v11, %s offset:%d' % (v(240 + 4 * i, 4), 512 * i))
    for j in range(8):
        k('v_dot2c_f32_bf16 v%d, s63, v%d' % (96 + (j & 1), 240 + j))
        k('v_dot2c_f32_bf16 v%d, v%d, v%d' % (98 + (j & 1), 240 + j, 240 + j))
    if SNON:
        k.wait(vm=tc)
        k.smem_wait()
        k('v_mov_b32 v232, s81')
    else: k.wait(vm=tn)
    k('s_mov_b32 s80, 0')
    k('L_non_p:')
    k('v_cmp_eq_u32 vcc, 0, v232')
    retry_tail(k, 'non', [NL, 's_waitcnt vmcnt(0)'])
    k('v_readfirstlane_b32 s81, v232')
    k.stamp3(4)
    GR = [100 + 4 * q for q in range(3)] + [120]
    for q in range(4): k('v_mov_b32 v%d, v232\nv_mov_b32 v%d, v232' % (GR[q] + 2, GR[q] + 3))
    k.wait_all(vm=False)
    k.barrier()
    tq = [k.ds('ds_read_b64_tr_b16 %s, v236 offset:%d' % (v(GR[q], 2), 64 * q)) for q in range(4)]
    k('v_lshlrev_b32 v116, 16, v248')
    k('v_and_b32 v117, s58, v248')
    k('v_add_f32 v96, v96, v97')
    k('v_add_f32 v98, v98, v99')
    nm = 'v_mul_f32 v%%d, %s, v%%d' % f32(-LOG2E)
    silu = [nm % (118, 116), nm % (119, 117), 'v_exp_f32 v118, v118', 'v_exp_f32 v119, v119', 'v_add_f32 v118, 1.0, v118', 'v_add_f32 v119, 1.0, v119',
            'v_rcp_f32 v118, v118', 'v_rcp_f32 v119, v119', 'v_mul_f32 v116, v116, v118', 'v_mul_f32 v117, v117, v119', 'v_cvt_pk_bf16_f32 v116, v116, v117']
    for pat in ('quad_perm:[1,0,3,2]', 'quad_perm:[2,3,0,1]', 'row_half_mirror', 'row_mirror'):
        k(silu.pop(0)); k(silu.pop(0))
        k('v_add_f32_dpp v96, v96, v96 %s row_mask:0xf bank_mask:0xf' % pat)
        k('v_add_f32_dpp v98, v98, v98 %s row_mask:0xf bank_mask:0xf' % pat)
    k('v_mov_b32 v97, v96')
    k('v_mov_b32 v99, v98')
    for q in range(4):
        k.wait(ds=tq[q])
        k.vm('global_store_dwordx4 v235, %s, s[12:13]%s' % (v(GR[q], 4), SC))
        if q < 3: k('s_add_u32 s12, s12, 0x40000'); k('s_addc_u32 s13, s13, 0')
    while silu: k(silu.pop(0))
    k.ds('ds_write_b32 v249, v116')
    k('v_permlane16_swap_b32 v96, v97')
    k('v_permlane16_swap_b32 v98, v99')
    for ks in range(3): k.ds('ds_read_b128 %s, v233 offset:%d' % (a(32 + 4 * ks, 4), 32 * ks))
    k('v_add_f32 v96, v96, v97')
    k('v_add_f32 v98, v98, v99')
    k('v_mul_f32 v96, %s, v96' % f32(1.0 / 512))
    k('v_mul_f32 v98, %s, v98' % f32(1.0 / 512))
    k('v_fma_f32 v98, -v96, v96, v98')
    k('v_max_f32 v98, 0, v98')
    k('v_add_f32 v98, %s, v98' % f32(1e-5))
    k('v_rsq_f32 v240, v98')
    k('v_mul_f32 v242, v96, v240')
    k('v_mov_b32 v241, v240')
    k('v_mov_b32 v243, v242')
    k('v_permlane32_swap_b32 v240, v241')
    k('v_permlane32_swap_b32 v242, v243')
    k('v_cvt_pk_bf16_f32 v242, v242, v243')
    k('v_mov_b32 v243, v232')
    k('s_mov_b64 exec, 1')
    k.vm('global_store_dwordx4 v12, v[240:243], s[24:25]' + SC)
    k('s_mov_b64 exec, -1')
    def mod_a():
        k.stamp3(6)
        k.wait(vm=tcm)
        k.stamp3(7)
        for ks in range(3):
            k.ds('ds_read_b64_tr_b16 %s, v254 offset:%d' % (a(48 + 4 * ks, 2), ks * 1024))
            k.tmr = k.ds('ds_read_b64_tr_b16 %s, v254 offset:%d' % (a(50 + 4 * ks, 2), ks * 1024 + 256))
    def mod_b():
        k.wait(ds=k.tmr)
        k('v_mfma_f32_32x32x16_bf16 a[64:79], a[32:35], a[48:51], 0')
        k('v_mfma_f32_32x32x16_bf16 a[80:95], a[40:43], a[56:59], 0')
        k('v_mfma_f32_32x32x16_bf16 a[64:79], a[36:39], a[52:55], a[64:79]')
    def mod_c():
        k.ds('ds_write_b32 v249, a80 offset:2048')
        k.ds('ds_write_b32 v249, a64 offset:1024')
        k.stamp3(8)
        k.wait_all(vm=False)
        k.barrier()
        k.stamp3(9)
        for i in range(4): k.tp = k.ds('ds_read_b32 v%d, v252 offset:%d' % (244 + i, 256 * i))
    def mod_d():
        k.wait(ds=k.tp)
        k('s_cmp_ge_u32 s50, 2')
        k('s_cbranch_scc1 L_cm2')
        k('v_add_f32 v244, v244, v245')
        k('v_add_f32 v246, v246, v247')
        k('v_add_f32 v244, v244, v246')
        k('v_mov_b32 v245, v232')
        raw(k, 'global_store_dwordx2 v253, v[244:245], s[16:17]' + SC)
        k('s_branch L_cm3')
        k('L_cm2:')
        k('v_and_b32 v246, 15, v1')
        k('s_lshl_b32 s75, s2, 6')
        k('v_lshl_add_u32 v246, v246, 2, s75')
        raw(k, 'global_store_dword v246, v12, s[14:15]' + SC)
        k('L_cm3:')
    def pack_out():
        for q in range(4):
            k.ds('ds_read_b64_tr_b16 %s, v%d' % (a(4 * q, 2), 224 + q))
            pt = k.ds('ds_read_b64_tr_b16 %s, v%d' % (a(4 * q + 2, 2), 228 + q))
        k.wait(ds=pt)
        k('s_cmp_ge_u32 s2, 224')
        k('s_cbranch_scc1 L_pk_no')
        for q in range(4): raw(k, 'global_store_dwordx4 v%d, %s, s[70:71]%s' % (255 if q == 0 else 236 + q, a(4 * q, 4), SC))
        k('L_pk_no:')
        k.tall = k.nvm
    k('s_nop 1')
    k.stamp(4); k.stamp3(5)
    eq = []
    L0 = 96
    k('v_mov_b32 v%d, 1.0' % L0)
    k('v_mov_b32 v%d, 0' % (L0 + 1))
    lo_order = []
    for m in range(16): lo_order += [m, 16 + m]
    def lreg(m): return L0 + 2 * m if m < 16 else 132 + 2 * (m & 1)
    def lsrc(m): return (lreg(m - 1), Z8) if m < 16 else (lreg(m - 16), Z128)
    for i, m in enumerate(lo_order):
        nxt = lo_order[i + 1] if i + 1 < len(lo_order) else None
        if nxt is not None: cmul1(k, lreg(nxt), *lsrc(nxt))
        split_a(lreg(m), i)
        if nxt is not None: cmul2(k, lreg(nxt), *lsrc(nxt))
        split_b(lreg(m), i, m)
        M0 = E('MODAT', 2)
        if i == M0: mod_a()
        if i == M0 + 2: mod_b()
        if i == M0 + 5: mod_c()
        if i == M0 + 7: mod_d()
        if i == E('PKO', 20):
            k.wait(vm=k.tpk); k.barrier(); pack_out()
    while eq: eq.pop(0)()
    k.stamp3(10)
    ACC = 224
    bt = []
    k.wait_all(vm=False, ds=True)
    for ks in range(8):
        t = k.ds('ds_read_b128 %s, v%d' % (v(96 + 8 * ks, 4), 32 + ks))
        if KSPLIT: t = k.ds('ds_read_b128 %s, v%d offset:8192' % (v(100 + 8 * ks, 4), 32 + ks))
        bt.append(t)
    fill = []
    F = lambda x: fill.append(x)
    F('v_lshrrev_b32 v7, 2, v1'); F('v_and_b32 v8, 3, v1'); F('v_lshlrev_b32 v16, 10, v7'); F('v_lshl_add_u32 v16, v8, 4, v16')
    F('s_lshl_b32 s60, s50, 16\ns_lshr_b32 s61, s34, 4\ns_lshl_b32 s61, s61, 18\ns_add_u32 s60, s60, s61')
    F('s_and_b32 s61, s34, 15\ns_lshl_b32 s61, s61, 6\ns_add_u32 s60, s60, s61\ns_add_u32 s62, s48, s60\ns_addc_u32 s63, s49, 0')
    assert WS_XG == 0
    for i in range(1, 4): F('v_add_u32 v%d, 0x%x, v16' % (16 + i, i * 16384))
    F('v_and_b32 v10, 1, v8'); F('v_lshlrev_b32 v24, 6, v7'); F('v_lshl_add_u32 v24, v10, 5, v24'); F('v_lshrrev_b32 v9, 1, v8'); F('v_lshl_add_u32 v24, v9, 4, v24')
    F('s_lshl_b32 s60, s50, 12\ns_add_u32 s60, s60, 0x%x\ns_add_u32 s24, s48, s60\ns_addc_u32 s25, s49, 0' % WS_ST1)
    F('v_lshlrev_b32 v21, 3, v1')
    F('s_lshl_b32 s60, s34, 9\ns_add_u32 s60, s60, 0x%x\ns_add_u32 s64, s48, s60\ns_addc_u32 s65, s49, 0' % WS_MODG)
    XD = [240, 244, 248, 252]
    k.XD = XD
    XL1 = ['global_load_dwordx4 %s, v%d, s[62:63]%s' % (v(XD[i], 4), 16 + i, SC) for i in range(4)] + ['global_load_dwordx2 v[22:23], v21, s[64:65]' + SC]
    XL2 = ['global_load_dwordx4 %s, v24, s[24:25] offset:%d%s' % (v(80 + 4 * i, 4), i * 1024, SC) for i in range(4)]
    k.XL = XL1 + XL2
    F('s_or_b32 s66, s55, 0x4000'); F('v_lshl_add_u32 v3, v1, 4, s66')
    F('s_mul_i32 s55, s52, %d\ns_add_u32 s55, s55, %d' % (CHS, L_CV)); F('v_lshl_add_u32 v2, v59, 5, s55')
    for x in XL1 + XL2: F('VM ' + x); F('s_nop 0')
    def emit_fill():
        x = fill.pop(0)
        if x.startswith('VM '): k.vm(x[3:])
        else: k(x)
    for ks in range(8):
        k.wait(ds=bt[ks])
        c = '0' if ks == 0 else v(ACC, 16)
        ms = [(AH + 4 * ks, 96 + 8 * ks)] + ([(AH + 4 * ks, 100 + 8 * ks), (AL + 4 * ks, 96 + 8 * ks)] if KSPLIT else [])
        for x, y in ms:
            k('v_mfma_f32_32x32x16_bf16 %s, %s, %s, %s' % (v(ACC, 16), v(x, 4), v(y, 4), c)); c = v(ACC, 16)
            for _ in range(2 if KSPLIT else 4):
                if fill: emit_fill()
    while fill: emit_fill()
    k.stamp3(11)
    k('s_nop 7\ns_nop 3')
    k('s_bitcmp1_b32 s50, 0')
    k('s_cbranch_scc0 L_kg_a')
    for i in range(3): k.ds('ds_write_b128 v3, %s offset:%d' % (v(ACC + 4 * i, 4), 1024 * i))
    k.wait_all(vm=False)
    k('L_kg_a:')
    k.barrier()
    k.stamp3(12)
    k('s_cbranch_scc1 L_kg_b')
    for i in range(3): k.ds('ds_read_b128 %s, v3 offset:%d' % (v(96 + 4 * i, 4), 1024 * i))
    k.wait_all(vm=False)
    for i in range(6): k('v_pk_add_f32 %s, %s, %s' % (v(96 + 2 * i, 2), v(96 + 2 * i, 2), v(ACC + 2 * i, 2)))
    for r in range(12): k.ds('ds_write_b32 v%d, v%d' % (44 + r, 96 + r))
    k.wait_all(vm=False)
    k('L_kg_b:')
    if E('FPB', 1): k('s_waitcnt vmcnt(%d)' % (k.nvm - k.tall))
    k.barrier()
    k.stamp3(13)
    if E('FPB', 1): signal(k, 'fp', O_FP, 28, 29)
    k('v_cmp_eq_u32 vcc, 127, v59')
    G = 96
    gt = [k.ds('ds_read_b32 v%d, v%d' % (G + i, 60 + i)) for i in range(17)]
    conv_setup(k)
    k.wait(ds=gt[-1])
    k('v_cmp_eq_u32 vcc, 127, v59')
    k('v_cndmask_b32 v%d, v%d, v12, vcc' % (G + 16, G + 16))
    for i in range(8): k('v_cvt_pk_bf16_f32 v%d, v%d, v%d' % (120 + i, G + 2 * i, G + 2 * i + 1))
    for i in range(8): k('v_cvt_pk_bf16_f32 v%d, v%d, v%d' % (128 + i, G + 2 * i + 1, G + 2 * i + 2))
    k.ds('ds_write_b128 v2, v[120:123]')
    k.ds('ds_write_b128 v2, v[124:127] offset:16')
    k.ds('ds_write_b128 v2, v[128:131] offset:%d' % O_K1)
    k.ds('ds_write_b128 v2, v[132:135] offset:%d' % (O_K1 + 16))
    k('v_lshlrev_b32 v2, 4, v1')

def conv_setup(k):
    k('s_and_b32 s54, s50, 1')
    k('v_lshlrev_b32 v11, 4, v1')
    k('v_and_b32 v5, 15, v1')
    k('v_lshrrev_b32 v6, 4, v1')
    k('s_mul_i32 s59, s54, %d' % O_K1)
    k('s_add_u32 s59, s59, s55')
    k('v_lshl_add_u32 v14, v5, 2, s59')
    k.ds('ds_write_b32 v14, v12 offset:4096')
    k('v_lshl_add_u32 v14, v1, 3, s55')
    k.ds('ds_write_b64 v14, v[12:13] offset:%d' % O_H)
    k('v_lshlrev_b32 v15, 3, v10')
    k('v_lshl_add_u32 v15, v7, 4, v15')
    k('s_lshl_b32 s60, s50, 10')
    k('v_add_u32 v15, s60, v15')
    k('v_mul_u32_u24 v20, %d, v9' % CHS)
    k('v_add_u32 v20, v20, v15')
    k('v_lshl_add_u32 v25, v9, 12, v15')
    k('s_lshl_b32 s76, s54, 10')
    k('s_add_u32 s77, s76, s55')
    k('v_lshlrev_b32 v15, 5, v5')
    k('v_lshl_add_u32 v15, v6, 3, v15')
    k('v_add_u32 v193, s77, v15')
    k('s_lshl_b32 s77, s52, 12')
    k('s_add_u32 s76, s76, s77')
    k('v_add_u32 v202, s76, v15')
    k('v_lshlrev_b32 v15, 5, v5')
    k('v_lshl_add_u32 v15, v6, 4, v15')
    k('s_lshl_b32 s77, s54, 8')
    k('s_sub_u32 s77, s55, s77')
    k('s_add_u32 s78, s77, %d' % (O_H + 512 - 32 - 192))
    k('v_add_u32 v192, s78, v15')
    k('v_lshlrev_b32 v15, 3, v6')
    k('v_sub_u32 v15, v15, v5')
    k('v_add_u32 v15, 15, v15')
    k('v_and_b32 v194, 1, v15')
    k('v_mul_u32_u24 v194, %d, v194' % O_K1)
    k('v_and_b32 v15, -2, v15')
    k('v_lshl_add_u32 v15, v15, 1, v194')
    k('s_add_u32 s78, s77, %d' % (2 * (2016 - 256 - 96 - 1536)))
    k('v_add_u32 v197, s78, v15')
    for ip in range(3): k('v_add_u32 v%d, %d, v197' % (194 + ip, 1024 * (3 - ip)))
    k('s_lshl_b32 s77, s54, 12')
    k('s_add_u32 s78, s77, s55')
    k('v_add_u32 v198, s78, v11')
    k('s_xor_b32 s77, s77, 0x1000')
    k('s_add_u32 s78, s77, s55')
    k('v_add_u32 v199, s78, v11')
    k('v_and_b32 v15, 1, v6')
    k('v_lshlrev_b32 v15, 3, v15')
    k('v_lshrrev_b32 v200, 1, v5')
    k('v_add_u32 v15, v15, v200')
    k('v_lshlrev_b32 v200, 15, v15')
    k('v_and_b32 v15, 1, v5')
    k('v_lshl_add_u32 v200, v15, 5, v200')
    k('v_lshrrev_b32 v15, 1, v6')
    k('v_lshl_add_u32 v200, v15, 4, v200')
    k('v_add_u32 v201, 0x100000, v200')
    k('s_lshl_b32 s60, s54, 19')
    k('s_lshl_b32 s61, s53, 6')
    k('s_add_u32 s60, s60, s61')
    ws_ptr(k, 66, WS_X1T, 60)
    ws_ptr(k, 68, WS_X1S, 60)
    k('s_lshl_b32 s60, s6, 15')
    ws_ptr(k, 26, WS_W1P, 60)
    k('s_lshl_b32 s77, s30, 16')
    k('s_and_b32 s74, s30, 0xffff0000')
    k('s_cmp_eq_u32 s52, 0')
    k('s_cselect_b32 s74, s77, s74')
    k('v_bfe_u32 v4, v1, 3, 1')
    k('v_cvt_f32_u32 v4, v4')
    k('v_cmp_gt_u32 vcc, 32, v1')
    k('v_cndmask_b32 v4, 0, v4, vcc')
    k('s_lshl_b32 s60, s34, 4')
    ws_ptr(k, 18, WS_FIN, 60)
    k('s_lshl_b32 s60, s3, 10')
    k('v_add_u32 v217, s60, v11')
    k('v_add_u32 v218, 0x%x, v217' % O_F2)
    k('v_add_u32 v217, 0x%x, v217' % O_FP)
    k('s_lshl_b32 s56, s54, 15')
    k('s_lshl_b32 s60, s52, 12')
    k('s_add_u32 s56, s56, s60')
    k('s_lshl_b32 s60, s5, 16')
    k('s_add_u32 s60, s60, s56')
    ws_ptr(k, 28, WS_X1S, 60)

def conv_phase(k):
    XD = k.XD
    k.stamp(6); k.stamp3(14)
    k('s_mov_b32 s80, 0')
    k('L_xv_p:')
    k('s_waitcnt vmcnt(0)')
    for c in chk_tags([x + 2 for x in XD] + [23] + [83 + 4 * i for i in range(4)], 28): k(c)
    retry_tail(k, 'xv', k.XL)
    k.vm_done = k.nvm
    k.stamp(7)
    k('v_add_f32_dpp v22, v22, v22 quad_perm:[1,0,3,2] row_mask:0xf bank_mask:0xf')
    k('s_lshl_b32 s60, s52, 2')
    k('s_add_u32 s61, s60, 24')
    k('v_add_f32_dpp v22, v22, v22 quad_perm:[2,3,0,1] row_mask:0xf bank_mask:0xf')
    k('s_add_u32 s60, s60, 16')
    k('v_cmp_eq_u32 vcc, 1, v9')
    k('v_add_f32_dpp v22, v22, v22 row_half_mirror row_mask:0xc bank_mask:0xf')
    k('v_cvt_pk_bf16_f32 v22, v22, v22')
    k('v_and_b32 v22, s58, v22')
    k('v_add_f32 v22, v22, v4')
    k('v_cvt_pk_bf16_f32 v22, v22, v22')
    k('v_and_b32 v22, s58, v22')
    k('v_readlane_b32 s62, v22, 0')
    k('v_readlane_b32 s63, v22, 4')
    k('v_readlane_b32 s64, v22, 8')
    k('v_readlane_b32 s65, v22, 12')
    k('v_readlane_b32 s75, v22, s60')
    k('v_readlane_b32 s76, v22, s61')
    k('v_mov_b32 v27, s62')
    k('v_mov_b32 v29, s63')
    k('v_mov_b32 v26, s64')
    k('v_mov_b32 v28, s65')
    k('v_cndmask_b32 v27, v27, v29, vcc')
    k('v_cndmask_b32 v26, v26, v28, vcc')
    for i in range(4):
        k.ds('ds_write_b64 v25, %s offset:%d' % (v(XD[i], 2), L_X + 256 * i))
        for j in range(2):
            r = XD[i] + j
            g = 56 + 4 * j
            tt = 48 + 4 * (j & 1)
            for e in range(3): k('v_mov_b32_dpp v%d, v%d quad_perm:[%d,%d,%d,%d] row_mask:0xf bank_mask:0xf' % (g + e, 80 + 4 * i + e, 2 * j, 2 * j + 1, 2 * j, 2 * j + 1))
            k('v_lshlrev_b32 v%d, 16, v%d' % (tt, r))
            k('v_and_b32 v%d, s58, v%d' % (tt + 1, r))
            k('v_lshlrev_b32 v%d, 16, v%d' % (tt + 2, g + 2))
            k('v_and_b32 v%d, s58, v%d' % (tt + 3, g + 2))
            k('v_pk_fma_f32 %s, %s, %s, %s neg_lo:[0,0,1] neg_hi:[0,0,1]' % (v(tt, 2), v(tt, 2), v(g, 2), v(tt + 2, 2)))
            k('v_pk_fma_f32 %s, %s, v[26:27], v[26:27] op_sel:[0,0,1] op_sel_hi:[1,0,1]' % (v(tt, 2), v(tt, 2)))
            k('v_cvt_pk_bf16_f32 v%d, v%d, v%d' % (XD[i] + 2 + j, tt, tt + 1))
        k.ds('ds_write_b64 v20, %s offset:%d' % (v(XD[i] + 2, 2), L_CV + O_H + 512 + 256 * i))
    k.wait_all(vm=False)
    k.barrier()
    if not E('FPB', 1): signal(k, 'fp', O_FP, 28, 29)
    k.stamp(9)
    ACC = 32
    def areg(st, p): return 64 + 64 * st + 4 * p
    def breg(st, q): return 96 + 64 * st + 4 * q
    def loads(cc, st, np_):
        L = []
        for p in range(np_):
            off = 128 * (1 - (p & 1)) + 16 * (3 - cc)
            L.append('ds_read2_b32 %s, v%d offset0:%d offset1:%d' % (v(areg(st, p), 2), 194 + (p >> 1), off, off + 1))
            L.append('ds_read2_b32 %s, v%d offset0:%d offset1:%d' % (v(areg(st, p) + 2, 2), 194 + (p >> 1), off + 2, off + 3))
            L.append('ds_read_b128 %s, v192 offset:%d' % (v(breg(st, p), 4), 512 * p + 64 * (3 - cc)))
        return L
    def lv_pairs(lo, hi_):
        P = []
        for lv in range(8):
            for p in range(lv + 1):
                for q in range(lv + 1):
                    if max(p, q) == lv and lo <= p + q <= hi_: P.append((p, q))
        return P
    def loadsA(cc):
        L = []
        st, o4 = cc >> 1, 4 * (cc & 1)
        for p in range(4):
            off = 128 * (1 - (p & 1)) + 16 * (3 - cc)
            L.append('ds_read2_b32 %s, v%d offset0:%d offset1:%d' % (v(areg(st, o4 + p), 2), 194 + (p >> 1), off, off + 1))
            L.append('ds_read2_b32 %s, v%d offset0:%d offset1:%d' % (v(areg(st, o4 + p) + 2, 2), 194 + (p >> 1), off + 2, off + 3))
            L.append('ds_read_b128 %s, v192 offset:%d' % (v(breg(st, o4 + p), 4), 512 * p + 64 * (3 - cc)))
        return L
    tA = {}
    for cc in range(2): tA[cc] = [k.ds(x) for x in loadsA(cc)]
    if E('FP_AT', 2) == 0: sync_issue(k, 'fp', 'global_load_dwordx4 v[204:207], v217, s[14:15]' + SC)
    k('s_cmp_lg_u32 s50, 3')
    k('s_cbranch_scc1 L_fin')
    for i, (l0, l1) in enumerate(((32, 40), (24, 28), (48, 56))):
        k('v_readlane_b32 s60, v22, %d' % l0)
        k('v_readlane_b32 s61, v22, %d' % l1)
        k('s_lshr_b32 s60, s60, 16')
        k('s_or_b32 s60, s60, s61')
        k('v_mov_b32 v%d, s60' % (220 + i))
    k('v_mov_b32 v223, s81')
    k('s_mov_b64 exec, 1')
    raw(k, 'global_store_dwordx4 v12, v[220:223], s[18:19]' + SC)
    k('s_mov_b64 exec, -1')
    k('L_fin:')
    seen = set()
    def mf(nt, ar, br):
        c = v(ACC + 4 * nt, 4) if nt in seen else '0'
        seen.add(nt)
        k('v_mfma_f32_16x16x32_bf16 %s, %s, %s, %s' % (v(ACC + 4 * nt, 4), v(ar, 4), v(br, 4), c))
    def hx_reads(ps):
        return (['ds_read_b64 %s, v193 offset:%d' % (v(16 + 2 * j, 2), O_H + 512 + 2048 * ps + 512 * j) for j in range(2)] +
                ['ds_read_b64 %s, v202 offset:%d' % (v(20 + 2 * j, 2), L_X + 2048 * ps + 512 * j) for j in range(2)])
    PA = lv_pairs(0, 3); PB = lv_pairs(4, 7)
    q2 = loadsA(2) + loadsA(3) + hx_reads(0)
    tq = []
    for cc in range(4):
        st, o4 = cc >> 1, 4 * (cc & 1)
        for n, (p, q) in enumerate(PA):
            if cc < 2: k.wait(ds=tA[cc][3 * max(p, q) + 2])
            else: k.wait(ds=tq[12 * (cc - 2) + 3 * max(p, q) + 2])
            mf(p + q, areg(st, o4 + p), breg(st, o4 + q))
            for _ in range(2):
                if q2 and (cc > 0 or n >= 2): tq.append(k.ds(q2.pop(0)))
            if cc == 2 and n == 2: qB = loads(0, 0, 8)
            if cc >= 2 and (cc > 2 or n >= 2):
                for _ in range(2):
                    if qB: k.ds(qB.pop(0))
    assert not q2 and not qB
    def exchange_and_store(ps, lab, mid):
        b = ACC + 16 * ps
        k('s_nop 7')
        k('s_cmp_eq_u32 s54, 0')
        k('s_cbranch_scc0 L_%s_1' % lab)
        for j in range(2): k.ds('ds_write_b128 v198, %s offset:%d' % (v(b + 8 + 4 * j, 4), O_RED + 2048 * ps + 1024 * j))
        for j in range(4): k('v_mov_b64 %s, %s' % (v(224 + 2 * j, 2), v(b + 2 * j, 2)))
        k('s_branch L_%s_2' % lab)
        k('L_%s_1:' % lab)
        k.nds -= 2
        for j in range(2): k.ds('ds_write_b128 v198, %s offset:%d' % (v(b + 4 * j, 4), O_RED + 2048 * ps + 1024 * j))
        for j in range(4): k('v_mov_b64 %s, %s' % (v(224 + 2 * j, 2), v(b + 8 + 2 * j, 2)))
        k('L_%s_2:' % lab)
        k.pre()
        k.wait_all(vm=False)
        k.barrier()
        mid()
        rt_ = [k.ds('ds_read_b128 %s, v199 offset:%d' % (v(232 + 4 * j, 4), O_RED + 2048 * ps + 1024 * j)) for j in range(2)]
        for i in range(4):
            k('v_lshlrev_b32 v%d, 16, v%d' % (240 + 2 * i, 16 + i))
            k('v_and_b32 v%d, s58, v%d' % (241 + 2 * i, 16 + i))
            k('v_pk_fma_f32 %s, %s, s[74:75], %s op_sel_hi:[1,0,1]' % (v(224 + 2 * i, 2), v(240 + 2 * i, 2), v(224 + 2 * i, 2)))
            k('v_lshlrev_b32 v%d, 16, v%d' % (248 + 2 * i, 20 + i))
            k('v_and_b32 v%d, s58, v%d' % (249 + 2 * i, 20 + i))
        k.wait(ds=rt_[1])
        for i in range(4):
            k('v_pk_add_f32 %s, %s, %s' % (v(224 + 2 * i, 2), v(224 + 2 * i, 2), v(232 + 2 * i, 2)))
            k('v_pk_fma_f32 %s, %s, s[74:75], %s op_sel:[0,1,0] op_sel_hi:[1,1,1]' % (v(224 + 2 * i, 2), v(224 + 2 * i, 2), v(248 + 2 * i, 2)))
            k('v_pk_mul_f32 %s, %s, s[76:77] op_sel_hi:[1,0]' % (v(240 + 2 * i, 2), v(224 + 2 * i, 2)))
            k('v_cvt_pk_bf16_f32 v%d, v%d, v%d' % (24 + i, 240 + 2 * i, 241 + 2 * i))
            k('v_cvt_pk_bf16_f32 v%d, v%d, v%d' % (28 + i, 224 + 2 * i, 225 + 2 * i))
        for b_, sp in ((24, 68), (28, 66)):
            k('v_permlane16_swap_b32 v%d, v%d' % (b_, b_ + 2))
            k('v_permlane16_swap_b32 v%d, v%d' % (b_ + 1, b_ + 3))
            t = k.vm('global_store_dwordx4 v%d, %s, s[%d:%d]%s' % (200 + ps, v(b_, 4), sp, sp + 1, SC))
        return t
    FPL = 'global_load_dwordx4 v[204:207], v217, s[14:15]' + SC
    FP_AT = E('FP_AT', 2)
    k.pre = (lambda: sync_check(k, 'fp', [FPL], chk_tags([204, 205, 206, 207], 210))) if FP_AT == 0 else (lambda: None)
    tsA = exchange_and_store(0, 'cvA', lambda: None)
    k.pre = lambda: None
    k.stamp(3)
    k.tw1 = []
    def w1l():
        n = len(k.tw1)
        k.tw1.append(k.vm('global_load_dwordx4 %s, v2, s[26:27] offset:%d%s' % (a(4 * n, 4), (n & 3) * 1024, W_SC)) if not E('NOW1', 0) else k.nvm)
        if (n & 3) == 3 and n < 31: k('s_add_u32 s26, s26, 4096'); k('s_addc_u32 s27, s27, 0')
    k.w1l = w1l
    F2A_AT = E('F2A_AT', 2); W1D = E('W1D', 3)
    for cc in range(4):
        st = cc & 1
        nxt = loads(cc + 1, st ^ 1, 8) if cc < 3 else hx_reads(1)
        if cc > 0: k.wait_all(vm=False)
        if cc == FP_AT and cc: sync_check(k, 'fp', [FPL], chk_tags([204, 205, 206, 207], 210))
        if cc == F2A_AT: k.wait(vm=tsA)
        if cc == F2A_AT or (cc == FP_AT and cc): k.barrier()
        if cc == F2A_AT: signal(k, 'f2a', O_F2, 208, 209)
        for n, (p, q) in enumerate(PB):
            if cc == FP_AT - 2 and n == 10: sync_issue(k, 'fp', FPL)
            mf(p + q, areg(st, p), breg(st, q))
            if n >= 1 and nxt: k.ds(nxt.pop(0))
            if cc >= FP_AT and n % W1D == 0 and len(k.tw1) < 32: w1l()
        assert not nxt
    k.stamp(10)
    k.PA = ['global_load_dwordx4 v[72:75], v218, s[14:15]' + SC]
    k.FL = 'global_load_dwordx4 v[164:167], v160, s[48:49]' + SC
    def mid():
        k('v_lshlrev_b32 v160, 4, v0')
        k('v_add_u32 v160, 0x%x, v160' % WS_FIN)
        k.tfin = k.vm(k.FL)
    k.tx1 = exchange_and_store(1, 'cvB', mid)
    if not E('C12POS', 0): sync_issue(k, 'f2a', *k.PA)
    while len(k.tw1) < 32: w1l()

ROT = E('ROT', 0)
def adv(k, p, c):
    if not ROT:
        k('s_add_u32 s%d, s%d, 4096\ns_addc_u32 s%d, s%d, 0' % (p, p, p + 1, p + 1)); return
    k('s_add_u32 s%d, s%d, 1' % (c, c))
    k('s_cmp_eq_u32 s%d, 7' % c)
    k('s_cselect_b32 s12, %d, s32' % (-24576))
    k('s_cselect_b32 s13, -1, 0')
    k('s_cselect_b32 s%d, 0, s%d' % (c, c))
    k('s_add_u32 s%d, s%d, s12' % (p, p))
    k('s_addc_u32 s%d, s%d, s13' % (p + 1, p + 1))

def w2reg(ks): return (a(128 + 8 * ks, 4), a(132 + 8 * ks, 4)) if ks < 16 else (v(160 + 8 * (ks - 16), 4), v(164 + 8 * (ks - 16), 4))
def w2_ops(k, ks):
    ops = []
    if E('NOW2', 0): return ops
    off = (ks & 3) * 1024
    ops.append(lambda: k.vm('global_load_dwordx4 %s, v2, s[76:77] offset:%d%s' % (w2reg(ks)[0], off, W_SC)))
    ops.append(lambda: k.vm('global_load_dwordx4 %s, v113, s[76:77] offset:%d%s' % (w2reg(ks)[1], off, W_SC)))
    if (ks & 3) == 3 and ks < 27: ops.append(lambda: adv(k, 76, 35))
    return ops

def sync_issue(k, name, *loads):
    k('s_cmp_lg_u32 s50, %d' % SYNCW)
    k('s_cbranch_scc1 L_%s_i' % name)
    for l in loads: raw(k, l)
    k('L_%s_i:' % name)
    k.__dict__.setdefault('pollmark', {})[name] = k.nvm

def sync_check(k, name, loads, check, extra=0):
    k('s_cmp_lg_u32 s50, %d' % SYNCW)
    k('s_cbranch_scc1 L_%s_w' % name)
    k('s_mov_b32 s80, 0')
    k('s_waitcnt vmcnt(%d)' % min(63, k.nvm - k.pollmark[name] + extra))
    k('L_%s_p:' % name)
    for c in check: k(c)
    retry_tail(k, name, list(loads) + ['s_waitcnt vmcnt(0)'], 1)

L_RD = 0

def mlp_phase(k):
    k('v_add_u32 v126, 0x2000, v218')
    PL = lambda r: 'global_load_dwordx4 v[72:75], v%d, s[14:15]%s' % (r, SC)
    k('s_lshl_b32 s8, s3, 2')
    k('s_lshr_b32 s9, s4, 3')
    k('s_add_u32 s8, s8, s9')
    k('s_and_b32 s9, s4, 7')
    k('v_add_u32 v113, 114688, v2')
    k('s_mul_i32 s51, s50, %d' % (28 * 1024))
    if ROT:
        k('s_lshr_b32 s35, s4, 3')
        k('s_lshl_b32 s35, s35, 1')
        k('s_add_u32 s35, s35, s9')
        k('s_cmp_ge_u32 s35, 7')
        k('s_cselect_b32 s60, 7, 0')
        k('s_sub_u32 s35, s35, s60')
        k('s_mov_b32 s33, s35')
        k('s_movk_i32 s32, 4096')
        k('s_lshl_b32 s60, s35, 12')
        k('s_add_u32 s51, s51, s60')
    k('s_mul_i32 s60, s9, %d' % (2 * 114688))
    k('s_add_u32 s60, s60, s51')
    ws_ptr(k, 76, WS_W2P, 60)
    k('s_mul_i32 s60, s8, 114688')
    k('s_add_u32 s60, s60, s51')
    ws_ptr(k, 22, WS_HID, 60)
    tr_addr32(k, 4, 1, 8, 9, 6, 8)
    k('v_add_u32 v5, 0x10000, v4')
    k('v_and_b32 v6, 31, v1')
    k('v_lshlrev_b32 v6, 3, v6')
    k('s_mul_i32 s62, s5, %d' % (2 * 114688))
    k('s_lshl_b32 s63, s6, 11')
    k('s_add_u32 s62, s62, s63')
    ws_ptr(k, 68, WS_HID, 62)
    k('s_lshl_b32 s62, s5, 9')
    add_ptr(k, 70, 14, 62)
    k('v_bfe_u32 v16, v1, 4, 1')
    k('v_xor_b32 v16, 1, v16')
    k('v_lshlrev_b32 v16, 10, v16')
    k('v_lshrrev_b32 v17, 5, v1')
    k('v_lshl_add_u32 v16, v17, 4, v16')
    k('v_add_u32 v16, %d, v16' % L_GS)
    k('v_lshlrev_b32 v17, 2, v0')
    k('v_add_u32 v17, %d, v17' % L_GS)
    k('v_lshlrev_b32 v18, 3, v0')
    k('v_add_u32 v18, %d, v18' % (L_GS + 2048))
    k('v_lshrrev_b32 v119, 5, v1')
    k('v_and_b32 v118, 31, v1')
    k('v_lshlrev_b32 v116, 8, v119')
    k('v_lshl_add_u32 v116, v118, 1, v116')
    k('v_lshlrev_b32 v117, 4, v119')
    k('v_lshl_add_u32 v118, v118, 10, v117')
    k('s_lshl_b32 s62, s9, 2')
    k('s_add_u32 s62, s62, s50')
    k('s_lshl_b32 s63, s8, 15')
    k('s_lshl_b32 s60, s62, 10')
    k('s_add_u32 s60, s60, s63')
    ws_ptr(k, 20, WS_X1T, 60)
    k('s_lshl_b32 s60, s62, 6')
    k('s_add_u32 s60, s60, %d' % (L_GS + 2048))
    k('v_add_u32 v117, s60, v117')
    k('s_lshl_b32 s60, s62, 5')
    k('s_add_u32 s60, s60, s63')
    add_ptr(k, 24, P_OUT, 60)
    k('s_lshl_b32 s60, s50, 13')
    k('v_add_u32 v120, s60, v2')
    k('s_lshl_b32 s60, s50, 11')
    k('v_add_u32 v121, s60, v2')
    k('s_lshr_b32 s60, s8, 1')
    k('s_lshl_b32 s60, s60, 6')
    k('s_add_u32 s60, s60, 0x%x' % O_F3)
    k('v_min_u32 v122, 13, v1')
    k('v_lshl_add_u32 v122, v122, 2, s60')
    k('s_lshl_b32 s10, s5, 6')
    k('s_lshl_b32 s61, s7, 2')
    k('s_add_u32 s10, s10, s61')
    k('s_mov_b32 s80, 0')
    k.wait(vm=k.tfin)
    k('L_fin_p:')
    k('v_cmp_ne_u32 vcc, s81, v167')
    retry_tail(k, 'fin', [k.FL, 's_waitcnt vmcnt(0)'])
    k('v_lshlrev_b32 v168, 16, v166')
    k('v_and_b32 v169, 0xffff0000, v166')
    k('v_mul_f32 v168, %s, v168' % f32(-math.log(2.0)))
    k('v_mul_f32 v169, %s, v169' % f32(-math.log(2.0)))
    k.ds('ds_write2st64_b32 v17, v164, v165 offset0:0 offset1:4')
    k.ds('ds_write_b64 v18, v[168:169]')
    C12POS = E('C12POS', 0)
    EARLYA = E('EARLYA', 0)
    def sigB(nm):
        k.wait(vm=k.tx1)
        k.barrier()
        signal(k, nm, O_F2 + 0x2000, 19, 20)
        k.stamp(11)
    k.wait_all(vm=False)
    if not EARLYA: sigB('f2b')
    xq = []
    w2q = []
    for ks in range(28): w2q += w2_ops(k, ks)
    w2q0 = w2q if not C12POS else []
    def c12_block():
        gt = [None] * 32
        for s_ in range(8): gt[s_] = k.ds('ds_read_b128 %s, v16 offset:%d' % (v(80 + 4 * (s_ % 8), 4), 32 * s_))
        for s_ in range(32):
            if C12POS and s_ == E('PA_AT', 8): sync_issue(k, 'f2a', *k.PA)
            k.wait(ds=gt[s_], vm=k.tw1[s_])
            k('v_mfma_f32_32x32x16_bf16 v[128:143], %s, %s, %s' % (a(4 * s_, 4), v(80 + 4 * (s_ % 8), 4), '0' if s_ == 0 else 'v[128:143]'))
            if EARLYA and s_ == E('SIGB_AT', 6): sigB('f2b')
            if xq: xq.pop(0)()
            elif w2q0: w2q0.pop(0)()
            if s_ >= 1 and s_ + 7 < 32: gt[s_ + 7] = k.ds('ds_read_b128 %s, v16 offset:%d' % (v(80 + 4 * ((s_ + 7) % 8), 4), 32 * (s_ + 7)))
        k.stamp(8)
    if C12POS: c12_block()
    sync_check(k, 'f2a', k.PA, chk_tags([72, 73, 74, 75], 114), extra=0 if (C12POS or EARLYA) else 1)
    k.barrier()
    k.stamp(12); k.stamp2(1)
    ctok = {}
    def chunk_ops(ps, c):
        ops = [lambda: k('s_add_u32 m0, s56, %d' % (ps * 65536 + c * 8192))]
        def ld(i): ctok[ps, c] = k.vm('global_load_lds_dwordx4 v2, s[28:29] offset:%d%s' % (i * 1024, LD_SC))
        for i in range(4): ops.append(lambda i=i: ld(i))
        if c < 3: ops.append(lambda: k('s_add_u32 s28, s28, 8192\ns_addc_u32 s29, s29, 0'))
        elif ps == 0: ops.append(lambda: k('s_add_u32 s28, s28, %d\ns_addc_u32 s29, s29, 0' % (0x100000 - 3 * 8192)))
        return ops
    k('s_cmp_ge_u32 s4, 28')
    k('s_cbranch_scc1 L_st_a')
    for c in range(4): xq.extend(chunk_ops(0, c))
    for _ in range(len(xq) if C12POS else E('XPRE', 5)): xq.pop(0)()
    k('s_branch L_st_b')
    k('L_st_a:')
    k('s_sub_u32 s11, s4, 28')
    k('s_lshl_b32 s60, s3, 2')
    k('s_add_u32 s11, s11, s60')
    k('s_lshl_b32 s60, s11, 15')
    k('s_lshl_b32 s61, s50, 13')
    k('s_add_u32 s60, s60, s61')
    ws_ptr(k, 28, WS_X1T, 60)
    k('v_add_u32 v7, 0x1000, v2')
    STL = ['global_load_dwordx4 %s, v%d, s[28:29] offset:%d%s' % (v(80 + 4 * i, 4), 2 if i < 4 else 7, (i & 3) * 1024, LD_SC) for i in range(8)]
    for x in STL: raw(k, x)
    if EARLYA:
        k('s_waitcnt vmcnt(8)')
        k.barrier()
        signal(k, 'f2bs', O_F2 + 0x2000, 19, 20)
    k('s_branch L_stats')
    k('L_st_b:')
    if not C12POS: c12_block()
    fix = ['v_mov_b32 v%d, v%d' % (144 + r, 128 + r) for r in range(16)]
    fix += ['v_permlane16_swap_b32 v%d, v%d' % (128 + r, 144 + r) for r in range(16)]
    fix += ['v_mul_f32 v%d, %s, v%d' % (144 + r, f32(-LOG2E), 144 + r) for r in range(16)]
    ACC = 16
    for _ in range(E('W2E', 12) if C12POS else 0):
        if w2q: w2q.pop(0)()
    SL = lambda ps: ['global_load_dwordx2 %s, v6, s[70:71] offset:%d%s' % (v(8 + 2 * u, 2), 256 * u, SC) for u in range(2)]
    htok = {}
    def hload(ps, s_):
        htok[ps, s_] = k.vm('global_load_dwordx4 %s, v2, s[22:23] offset:%d%s' % (a(4 * s_, 4), (s_ & 3) * 1024, LD_SC))
        if (s_ & 3) == 3:
            if s_ < 27: adv(k, 22, 33)
            elif ps == 0:
                if ROT: adv(k, 22, 33); k('s_add_u32 s22, s22, %d\ns_addc_u32 s23, s23, 0' % (32 * 114688))
                else: k('s_add_u32 s22, s22, %d\ns_addc_u32 s23, s23, 0' % (32 * 114688 - 6 * 4096))
    k.hload, k.htok = hload, htok
    F3L = lambda ps: 'global_load_dword v72, v122, s[14:15] offset:%d%s' % (1024 * ps, SC)
    W2D = E('W2D', 2)
    lstA = [None]
    for ps in range(2):
        def breg(s_, u): return 48 + 8 * (s_ % 3) + 4 * u
        rtok = {}
        def rd(s_, u):
            off = u * 32768 + s_ * 1024
            k.ds('ds_read_b64_tr_b16 %s, v%d offset:%d' % (v(breg(s_, u), 2), 4 + ps, off))
            rtok[s_, u] = k.ds('ds_read_b64_tr_b16 %s, v%d offset:%d' % (v(breg(s_, u) + 2, 2), 4 + ps, off + 256))
        k.stamp2(2 + 5 * ps)
        k.wait(vm=ctok[ps, 0]); k.barrier()
        k.stamp2(3 + 5 * ps)
        for s_ in range(2):
            for u in range(2): rd(s_, u)
        pend = []
        gap = 0
        for s_ in range(32):
            if s_ % 8 == 6 and s_ < 30:
                c = s_ // 8 + 1
                if ps == 0 and c == E('F2B_AT', 2): sync_check(k, 'f2b', [PL(126)], chk_tags([72, 73, 74, 75], 80))
                if ps == 1 and c == E('F3A_SIG', 2): k.wait(vm=lstA[0])
                k.wait(vm=ctok[ps, c]); k.barrier()
                if ps == 0 and c == E('F2B_AT', 2):
                    for c2 in range(4): pend += chunk_ops(1, c2)
                if ps == 1 and c == E('F3A_SIG', 2): signal(k, 'f3a', O_F3, 73, 74, nrep=1, sidx=10)
            if ps == 0 and s_ == 8 * E('F2B_AT', 2) - 2 - E('POLLD', 12): sync_issue(k, 'f2b', PL(126))
            if s_ == 16: k.stamp2(4 + 5 * ps)
            if s_ == 22:
                def sl(x): ctok['st'] = k.vm(x)
                for x in SL(ps): pend.append(lambda x=x: sl(x))
            for u in range(2):
                k.wait(ds=rtok[s_, u])
                k('v_mfma_f32_32x32x16_bf16 %s, %s, %s, %s' % (v(ACC + 16 * u, 16), a(4 * s_, 4), v(breg(s_, u), 4), '0' if s_ == 0 else v(ACC + 16 * u, 16)))
                if s_ + 2 < 32: rd(s_ + 2, u)
                if fix and s_ >= 2:
                    for _ in range(2): k(fix.pop(0))
                if pend: pend.pop(0)()
                elif w2q and gap % W2D == 0: w2q.pop(0)()
                gap += 1
        while pend: pend.pop(0)()
        k.stamp(13 if ps == 0 else 14); k.stamp2(5 + 5 * ps)
        k.wait(vm=ctok['st'])
        k('s_mov_b32 s80, 0')
        k('L_chk%d_p:' % ps)
        k('v_min_u32 v80, v9, v11')
        k('v_cmp_eq_u32 vcc, 0, v80')
        retry_tail(k, 'chk%d' % ps, SL(ps) + ['s_waitcnt vmcnt(0)'], 2)
        if ps == 0: k('s_add_u32 s70, s70, 0x2000\ns_addc_u32 s71, s71, 0')
        k('s_nop 7')
        k.stamp2(6 + 5 * ps)
        for u in range(2):
            b = 8 + 2 * u
            A_ = ACC + 16 * u
            for p in range(8):
                x = v(A_ + 2 * p, 2)
                k('v_pk_fma_f32 %s, %s, %s, %s op_sel_hi:[1,0,1] neg_lo:[0,1,0] neg_hi:[0,1,0]' % (x, v(128 + 2 * p, 2), v(b, 2), x))
            for p in range(8):
                x = v(A_ + 2 * p, 2)
                k('v_pk_fma_f32 %s, %s, %s, %s op_sel:[1,0,0] op_sel_hi:[1,1,1]' % (x, v(b, 2), x, v(144 + 2 * p, 2)))
            if ps == 1 and u == E('F3A_U', 0): sync_issue(k, 'f3a', F3L(0))
            W2EP = E('W2EP', 4)
            def tick(r):
                if w2q and W2EP and r % W2EP == W2EP - 1 and (u == 0 or E('W2EU', 0)): w2q.pop(0)()
            for r in range(16):
                k('v_exp_f32 v%d, v%d' % (80 + r, A_ + r)); tick(r)
            for p in range(8): k('v_pk_add_f32 %s, %s, 1.0 op_sel_hi:[1,0]' % (v(80 + 2 * p, 2), v(80 + 2 * p, 2)))
            for r in range(16):
                k('v_rcp_f32 v%d, v%d' % (80 + r, 80 + r)); tick(r)
            for p in range(8): k('v_pk_mul_f32 %s, %s, %s' % (v(A_ + 2 * p, 2), v(A_ + 2 * p, 2), v(80 + 2 * p, 2)))
            O = 96 + 8 * u
            for p in range(8): k('v_cvt_pk_bf16_f32 v%d, v%d, v%d' % (O + p, A_ + 2 * p, A_ + 2 * p + 1))
            k.vm('global_store_dwordx4 v%d, %s, s[68:69]%s' % (2 if u == 0 else 113, v(O, 4), SC))
            lst = k.vm('global_store_dwordx4 v%d, %s, s[68:69] offset:1024%s' % (2 if u == 0 else 113, v(O + 4, 4), SC))
        if ps == 0:
            lstA[0] = lst
            k('s_add_u32 s68, s68, %d\ns_addc_u32 s69, s69, 0' % (32 * 114688))
    print('w2 leftover ops', len(w2q))
    while w2q: w2q.pop(0)()
    sync_check(k, 'f3a', [F3L(0)], ['v_cmp_ne_u32 vcc, s81, v72'])
    k.barrier()
    k('s_add_u32 s10, s10, 1024')
    k('s_branch L_join')
    k('L_stats:')
    k.reset_counters()
    k('s_movk_i32 s10, 2048')
    k('s_lshl_b32 s62, s11, 8')
    add_ptr(k, 70, 14, 62)
    k('s_mov_b32 s62, 0xffff0000')
    k('v_lshlrev_b32 v3, 6, v0')
    k('v_bfe_u32 v4, v1, 3, 2')
    k('v_lshlrev_b32 v4, 6, v4')
    k('v_and_b32 v5, 7, v1')
    k('v_lshl_add_u32 v4, v5, 2, v4')
    k('v_lshrrev_b32 v5, 5, v1')
    k('v_lshl_add_u32 v4, v5, 13, v4')
    for ps in range(2):
        if ps == 1:
            poll(k, 'sf2b', [PL(126)], chk_tags([72, 73, 74, 75], 80))
            k('s_add_u32 s28, s28, 0x100000\ns_addc_u32 s29, s29, 0')
            k('s_add_u32 s70, s70, 0x2000\ns_addc_u32 s71, s71, 0')
        if ps == 0:
            xt = list(range(1, 9)); k.nvm = 8
        else: xt = [k.vm(x) for x in STL]
        for r in range(16): k('v_mov_b32 v%d, 0' % (16 + r))
        for i in range(8):
            k.wait(vm=xt[i])
            for j in range(4):
                r = 80 + 4 * i + j
                tt = 32 + 2 * (j & 1)
                k('v_lshlrev_b32 v%d, 16, v%d' % (tt, r))
                k('v_and_b32 v%d, s62, v%d' % (tt + 1, r))
                k('v_pk_add_f32 %s, %s, %s' % (v(16 + 2 * j, 2), v(16 + 2 * j, 2), v(tt, 2)))
                k('v_pk_fma_f32 %s, %s, %s, %s' % (v(24 + 2 * j, 2), v(tt, 2), v(tt, 2), v(24 + 2 * j, 2)))
        for pat in ('row_ror:4', 'row_ror:8'):
            for r in range(16): k('v_add_f32_dpp v%d, v%d, v%d %s row_mask:0xf bank_mask:0xf' % (16 + r, 16 + r, 16 + r, pat))
        for i in range(4): k.ds('ds_write_b128 v3, %s offset:%d' % (v(16 + 4 * i, 4), 16384 * ps + 16 * i))
        k.wait_all(vm=False)
        k.barrier()
        k('s_cmp_lg_u32 s50, 0')
        k('s_cbranch_scc1 L_st%d' % ps)
        for q in range(8):
            raw(k, 'ds_read_b32 v%d, v4 offset:%d' % (16 + 2 * q, 16384 * ps + 1024 * q))
            raw(k, 'ds_read_b32 v%d, v4 offset:%d' % (17 + 2 * q, 16384 * ps + 1024 * q + 32))
        k('s_waitcnt lgkmcnt(0)')
        for q in range(1, 8): k('v_pk_add_f32 v[16:17], v[16:17], %s' % v(16 + 2 * q, 2))
        k('v_mov_b64 v[18:19], v[16:17]')
        k('v_permlane32_swap_b32 v16, v18')
        k('v_permlane32_swap_b32 v17, v19')
        k('v_pk_add_f32 v[16:17], v[16:17], v[18:19]')
        k('v_mul_f32 v16, %s, v16' % f32(1.0 / 512))
        k('v_mul_f32 v17, %s, v17' % f32(1.0 / 512))
        k('v_fma_f32 v17, -v16, v16, v17')
        k('v_max_f32 v17, 0, v17')
        k('v_add_f32 v17, %s, v17' % f32(1e-5))
        k('v_rsq_f32 v17, v17')
        k('v_mul_f32 v17, %s, v17' % f32(-LOG2E))
        raw(k, 'global_store_dwordx2 v6, v[16:17], s[70:71]' + SC)
        k('L_st%d:' % ps)
    for ks in range(28):
        for op in w2_ops(k, ks): op()
    poll(k, 'sf3a', [F3L(0)], ['v_cmp_ne_u32 vcc, s81, v72'])
    k('L_join:')
    k.stamp(1); k.stamp2(12)
    k.reset_counters()
    htok.clear()
    HA0 = E('HA0', 16)
    for s_ in range(HA0): hload(0, s_)
    for q in range(2): k.ds('ds_read_b128 %s, v117 offset:%d' % (v(96 + 4 * q, 4), 32 * q))
    for r in range(16): k('v_mov_b32 v%d, 0' % (80 + r))
    k('v_add_u32 v115, 0x100000, v116')
    k('v_add_u32 v119, 0x100000, v118')
    k('s_waitcnt vmcnt(%d)' % HA0)
    k.barrier()
    signal(k, 'f3b', O_F3, 73, 74, nrep=1, sidx=10)
    aq = [lambda s_=s_: hload(0, s_) for s_ in range(HA0, 28)]
    trs = {}
    def rl(ps, q, r): trs[ps] = k.vm('global_load_short_d16_hi v%d, v%d, s[20:21] offset:%d%s' % (80 + 8 * ps + 4 * q + r, 116 - ps, (8 * q + r) * 64, LD_SC))
    for q in range(2):
        for r in range(4): aq.append(lambda q=q, r=r: rl(0, q, r))
    bq = [lambda q=q, r=r: rl(1, q, r) for q in range(2) for r in range(4)]
    FB = E('F3B_AT', 24); nh = [0]
    for ps in range(2):
        for s_ in range(28):
            k.wait(vm=htok[ps, s_])
            if s_ == 0: k.stamp2(13 + ps)
            if ps == 0 and s_ == max(0, FB - E('F3B_D', 8)): sync_issue(k, 'f3b', F3L(1))
            if ps == 0 and s_ == FB:
                sync_check(k, 'f3b', [F3L(1)], ['v_cmp_ne_u32 vcc, s81, v72'])
                k.barrier()
                k.stamp(5)
            for j in range(2):
                k('v_mfma_f32_32x32x16_bf16 %s, %s, %s, %s' % (v(ACC + 16 * j, 16), w2reg(s_)[j], a(4 * s_, 4), '0' if s_ == 0 else v(ACC + 16 * j, 16)))
                if ps == 0 and aq: aq.pop(0)()
                if ps == 1 and nh[0] < 28: hload(1, nh[0]); nh[0] += 1
                elif ps == 1 and bq and s_ >= 4: bq.pop(0)()
                if ps == 0 and s_ >= FB:
                    for _ in range(2):
                        if nh[0] < s_ + j: hload(1, nh[0]); nh[0] += 1
        while ps == 0 and FB < 28 and nh[0] < 28: hload(1, nh[0]); nh[0] += 1
        for q in range(8): k.ds('ds_write_b128 v120, %s offset:%d' % (v(ACC + 4 * q, 4), 32768 * ps + q * 1024))
        if ps == 0 and FB >= 28: sync_check(k, 'f3b', [F3L(1)], ['v_cmp_ne_u32 vcc, s81, v72'])
        k.wait_all(vm=False)
        k.barrier()
        if ps == 0 and FB >= 28:
            k.stamp(5)
            for _ in range(8): hload(1, nh[0]); nh[0] += 1
        rt_ = []
        for w_ in range(4):
            for q in range(2): t = k.ds('ds_read_b128 %s, v121 offset:%d' % (v(48 + 8 * w_ + 4 * q, 4), 32768 * ps + w_ * 8192 + q * 1024))
            rt_.append(t)
        while ps == 0 and nh[0] < E('HB1', 20): hload(1, nh[0]); nh[0] += 1
        k.wait(ds=rt_[1])
        for p in range(4): k('v_pk_add_f32 %s, %s, %s' % (v(48 + 2 * p, 2), v(48 + 2 * p, 2), v(56 + 2 * p, 2)))
        k.wait(ds=rt_[3])
        for p in range(4): k('v_pk_add_f32 %s, %s, %s' % (v(64 + 2 * p, 2), v(64 + 2 * p, 2), v(72 + 2 * p, 2)))
        k.wait(vm=trs[ps])
        for p in range(4):
            k('v_pk_add_f32 %s, %s, %s' % (v(48 + 2 * p, 2), v(48 + 2 * p, 2), v(64 + 2 * p, 2)))
            k('v_pk_fma_f32 %s, %s, %s, %s' % (v(48 + 2 * p, 2), v(48 + 2 * p, 2), v(96 + 2 * p, 2), v(80 + 8 * ps + 2 * p, 2)))
            k('v_cvt_pk_bf16_f32 v%d, v%d, v%d' % (104 + 4 * ps + p, 48 + 2 * p, 49 + 2 * p))
        b = 104 + 4 * ps
        k('v_permlane32_swap_b32 v%d, v%d' % (b, b + 2))
        k('v_permlane32_swap_b32 v%d, v%d' % (b + 1, b + 3))
        k.vm('global_store_dwordx4 v%d, %s, s[24:25]' % (118 + ps, v(b, 4)))

def build_single(path):
    k = Kern(NAME + '_kernel')
    phase0(k); conv_phase(k); mlp_phase(k)
    k.end()
    k('L_end:')
    k('s_endpgm')
    launch, (vg_, sg_, ac) = 'grid=(256,1,1) block=(256,1,1) lds=%d' % LDS_TOTAL, (512, 84, 256)
    out = [HEADER.rstrip(), '; @launch ' + launch, '.amdgcn_target "amdgcn-amd-amdhsa--gfx950"', k.text(vg_, sg_, ac), '.text\nL_text_end:\n    s_endpgm']
    print(k.name, k.stats)
    open(path, 'w').write('\n'.join(out) + '\n')

if __name__ == '__main__':
    build_single(sys.argv[1] if len(sys.argv) > 1 else ('diag.s' if DIAG else 'cdna_kernels/%s.s' % NAME))
```

```python
import os
from gen import *
E = lambda n, d: int(os.environ.get(n, str(d)))
WS_XG = 0x000000
WS_ST1 = 0x800000
WS_MODG = 0x820000
WS_FIN = 0x860000
WS_W1P = 0x1800000
WS_X1S = 0xB00000
WS_SYNC = 0xF00000
O_F2, O_F3 = 0x8000, 0xC000
L_T = 65536
L_CM = 98304; L_SC = 114688
L_STN = 118784; L_STX = 118784 + 8448 + 128
L_CV = 0; CHS = 21120
O_K1 = 4160; O_H = 8320; O_RED = 12928
L_X = 42240
L_W1 = 79872
NW1 = 16
L_SJ = L_W1 + NW1 * 4096
L_GS = L_SJ
LDS_TOTAL = L_SJ + 16384
O_FP = 0x6000
XS = E('XS', 16384 + 384)
SC = ' sc1'
LD_SC = os.environ.get('LD_SC', ' sc1')
W_SC = os.environ.get('W_SC', ' sc1')
TMO = 0x20000
SYNCW = 1
KSPLIT = E('KSPLIT', 1)

def raw(k, s_): k.lines.append('    ' + s_)

def retry_tail(k, name, loads, sleep=0):
    k('s_nop 0')
    k('s_cbranch_vccz L_%s_w' % name)
    k('s_add_u32 s80, s80, 1')
    k('s_cmp_gt_u32 s80, 0x%x' % TMO)
    k('s_cbranch_scc1 L_%s_w' % name)
    if sleep: k('s_sleep %d' % sleep)
    for l in loads: raw(k, l)
    k('s_branch L_%s_p' % name)
    k('L_%s_w:' % name)

def poll(k, name, loads, check):
    k('s_cmp_lg_u32 s50, %d' % SYNCW)
    k('s_cbranch_scc1 L_%s_w' % name)
    k('s_mov_b32 s80, 0')
    for l in loads: raw(k, l)
    k('L_%s_p:' % name)
    k('s_waitcnt vmcnt(0)')
    for c in check: k(c)
    retry_tail(k, name, loads, 1)
    k.barrier()

def signal(k, name, off, va, vd, nrep=8, sidx=None):
    k('s_cmp_lg_u32 s50, %d' % SYNCW)
    k('s_cbranch_scc1 L_%s_s' % name)
    if sidx is None:
        k('s_lshl_b32 s80, s2, 2')
        k('s_add_u32 s80, s80, 0x%x' % off)
    else:
        k('s_add_u32 s80, s%d, 0x%x' % (sidx, off))
    k('v_lshl_add_u32 v%d, v1, 10, s80' % va)
    k('v_mov_b32 v%d, s81' % vd)
    k('s_mov_b64 exec, %d' % ((1 << nrep) - 1))
    raw(k, 'global_store_dword v%d, v%d, s[14:15]%s' % (va, vd, SC))
    k('s_mov_b64 exec, -1')
    k('L_%s_s:' % name)

def chk_tags(regs, t):
    o = ['v_xor_b32 v%d, s81, v%d' % (t, regs[0])]
    for r in regs[1:]:
        o += ['v_xor_b32 v%d, s81, v%d' % (t + 1, r), 'v_or_b32 v%d, v%d, v%d' % (t, t, t + 1)]
    return o + ['v_cmp_ne_u32 vcc, 0, v%d' % t]

def phase0(k):
    load_ptrs(k)
    k('s_getpc_b64 s[82:83]')
    k('L_pf:')
    PFM = E('PFM', 1)
    if PFM == 0:
        k('v_lshlrev_b32 v255, 7, v0')
        k('v_min_u32 v255, L_text_end-L_pf-4, v255')
        raw(k, 'global_load_dword v255, v255, s[82:83]')
    else:
        N = E('PFN', 32)
        k('s_lshr_b32 s4, s2, 3')
        k('s_and_b32 s4, s4, %d' % (256 // N - 1))
        k('s_mul_i32 s4, s4, %d' % (N * 128))
        k('v_subrev_u32 v255, 192, v0')
        k('v_cmp_gt_u32 vcc, %d, v255' % N)
        k('v_lshl_add_u32 v255, v255, 7, s4')
        k('v_min_u32 v255, L_text_end-L_pf-4, v255')
        k('s_and_saveexec_b64 s[80:81], vcc')
        k('s_cbranch_execz L_pf2')
        raw(k, 'global_load_dword v255, v255, s[82:83]')
        k('L_pf2:')
        k('s_mov_b64 exec, -1')
    k('s_cmp_ge_u32 s2, 256')
    k('s_cbranch_scc1 L_end')
    k('s_memrealtime s[78:79]')
    wave_id(k, 50, 1)
    k('v_and_b32 v1, 63, v0')
    k('s_and_b32 s3, s2, 7')
    k('s_lshr_b32 s4, s2, 3')
    k('s_lshl_b32 s51, s3, 5')
    k('s_add_u32 s80, s51, s4')
    k('s_lshl_b32 s51, s80, 9')
    k('v_lshl_add_u32 v2, v0, 1, s51')
    for i in range(4, 11): k('v_mov_b32 v%d, 0' % i)
    k('s_lshr_b32 s52, s50, 1')
    k('s_lshl_b32 s53, s80, 1')
    k('s_add_u32 s53, s53, s52')
    k('s_lshl_b32 s54, s53, 1')
    k('v_mov_b32 v3, s54')
    k('v_lshrrev_b32 v77, 5, v0')
    k('v_and_b32 v78, 31, v0')
    k('v_lshlrev_b32 v78, 4, v78')
    k('v_lshl_add_u32 v79, v77, 10, v78')
    k('s_lshl_b32 s63, s2, 13')
    k('v_add_u32 v79, s63, v79')
    k.smem_wait()
    k('s_mov_b32 s34, s80')
    k('s_or_b32 s78, s78, 1')
    k('s_or_b32 s79, s2, s50')
    k('s_cmp_eq_u32 s79, 0')
    k('s_cbranch_scc0 L_nn')
    k('v_mov_b32 v250, s78')
    k('v_lshlrev_b32 v251, 6, v1')
    k('s_mov_b64 exec, 15')
    raw(k, 'global_store_dword v251, v250, s[%d:%d]%s' % (P_DBG, P_DBG + 1, SC))
    k('s_mov_b64 exec, -1')
    k('L_nn:')
    k.vm('global_load_short_d16_hi v10, v3, s[%d:%d]' % (P_LDT, P_LDT + 1))
    for i, p in enumerate((P_ARE, P_AIM, P_BRE, P_BIM, P_CRE, P_CIM)):
        tpar = k.vm('global_load_short_d16_hi v%d, v2, s[%d:%d]' % (4 + i, p, p + 1))
    k.vm('global_load_dwordx4 v[240:243], v79, s[%d:%d]' % (P_U, P_U + 1))
    tx = k.vm('global_load_dwordx4 v[244:247], v79, s[%d:%d] offset:512' % (P_U, P_U + 1))
    k('s_and_b32 s5, s4, 3')
    k('s_lshl_b32 s5, s5, 3')
    k('s_add_u32 s5, s5, s3')
    k('s_lshl_b32 s5, s5, 1')
    k('s_bfe_u32 s6, s4, 0x10002')
    k('s_add_u32 s5, s5, s6')
    k('s_lshr_b32 s6, s4, 3')
    k('s_cmp_ge_u32 s5, 48')
    k('s_cselect_b32 s7, 16, 0')
    k('s_add_u32 s7, s7, s5')
    k('s_lshl_b32 s7, s7, 6')
    k('s_lshl_b32 s8, s6, 2')
    k('s_add_u32 s8, s8, s50')
    k('s_mul_i32 s9, s8, %d' % (32 * 6144))
    k('s_add_u32 s7, s7, s9')
    k('v_lshrrev_b32 v250, 2, v1')
    k('v_mul_u32_u24 v254, 6144, v250')
    k('v_and_b32 v251, 3, v1')
    k('v_lshl_add_u32 v254, v251, 4, v254')
    k('s_lshl_b32 s9, s50, 12')
    k('s_add_u32 s9, s9, %d' % L_CM)
    k('v_mov_b32 v231, v254')
    k('s_lshl_b32 s8, s8, 6')
    k('s_and_b32 s64, s4, 1')
    k('s_lshl_b32 s64, s64, 3')
    k('s_add_u32 s64, s64, s3')
    k('s_lshl_b32 s64, s64, 1')
    k('s_bfe_u32 s65, s4, 0x10001')
    k('s_add_u32 s64, s64, s65')
    k('s_lshr_b32 s65, s4, 2')
    k('s_cmp_ge_u32 s64, 16')
    k('s_cselect_b32 s66, 64, 48')
    k('s_add_u32 s66, s66, s64')
    k('s_lshl_b32 s66, s66, 6')
    k('s_lshl_b32 s67, s65, 2')
    k('s_add_u32 s67, s67, s50')
    k('s_mul_i32 s68, s67, %d' % (16 * 6144))
    k('s_add_u32 s66, s66, s68')
    k('s_lshl_b32 s67, s67, 5')
    k('s_sub_u32 s67, s67, 64')
    k('v_min_u32 v248, 23, v1')
    k('v_cmp_gt_u32 vcc, 16, v248')
    k('v_mov_b32 v250, s67')
    k('v_mov_b32 v251, s8')
    k('v_cndmask_b32 v250, v250, v251, vcc')
    k('v_lshl_add_u32 v248, v248, 2, v250')
    tc = k.vm('global_load_dword v248, v248, s[%d:%d]' % (P_C, P_C + 1))
    k('s_lshl_b32 s60, s34, 2')
    k('s_load_dword s30, s[%d:%d], s60' % (P_DSK, P_DSK + 1))
    if E('W1T', 0):
        k('s_and_b32 s75, s3, 1')
        k('s_mul_i32 s75, s75, 7')
        k('s_lshr_b32 s76, s4, 2')
        k('s_add_u32 s75, s75, s76')
        k('s_min_u32 s75, s75, 13')
        k('s_lshl_b32 s75, s75, 8')
        k('s_and_b32 s76, s4, 3')
        k('s_mul_i32 s76, s76, %d' % (128 * 3584))
        k('s_add_u32 s75, s75, s76')
        k('v_lshrrev_b32 v237, 1, v0')
        k('v_mul_u32_u24 v237, 3584, v237')
        k('v_and_b32 v238, 1, v0')
        k('v_lshl_add_u32 v237, v238, 7, v237')
        k('v_add_u32 v237, s75, v237')
        k.vm('global_load_dword a200, v237, s[%d:%d]' % (P_W1, P_W1 + 1))
    if E('W2T', 0):
        k('s_min_u32 s75, s2, 111')
        k('s_lshl_b32 s75, s75, 14')
        k('v_and_b32 v238, 127, v0')
        k('v_lshl_add_u32 v238, v238, 7, s75')
        k.vm('global_load_dword a201, v238, s[%d:%d]' % (P_W2, P_W2 + 1))
    k('s_cmp_lt_u32 s2, 112')
    k('s_cbranch_scc0 L_pj_w1')
    k('s_lshl_b32 s76, s2, 14')
    k('s_lshl_b32 s70, s50, 12')
    k('s_add_u32 s76, s76, s70')
    add_ptr(k, 72, P_W2, 76)
    k('s_add_u32 s31, s70, %d' % L_SJ)
    k('s_movk_i32 s79, 1024')
    for r in range(4):
        k('v_xor_b32 v%d, %d, v1' % (224 + r, r << 2))
        k('v_lshlrev_b32 v%d, 4, v%d' % (224 + r, 224 + r))
        if r: k('v_add_u32 v%d, %d, v%d' % (224 + r, 1024 * r, 224 + r))
    k('s_branch L_pj_go')
    k('L_pj_w1:')
    k('s_sub_u32 s75, s2, 112')
    k('s_min_u32 s75, s75, 111')
    k('s_and_b32 s26, s75, 7')
    k('s_lshr_b32 s27, s75, 3')
    k('s_lshl_b32 s75, s26, 4')
    k('s_add_u32 s75, s75, s50')
    k('s_mul_i32 s75, s75, %d' % (4 * 3584))
    k('s_lshl_b32 s76, s27, 8')
    k('s_add_u32 s75, s75, s76')
    add_ptr(k, 72, P_W1, 75)
    k('s_lshl_b32 s31, s50, 10')
    k('s_add_u32 s31, s31, %d' % L_SJ)
    k('s_movk_i32 s79, 4096')
    k('v_lshrrev_b32 v228, 4, v1')
    k('v_and_b32 v229, 15, v1')
    k('v_lshlrev_b32 v230, 2, v228')
    k('v_xor_b32 v230, v230, v229')
    k('v_mul_u32_u24 v224, 3584, v228')
    k('v_lshl_add_u32 v224, v230, 4, v224')
    for r in range(1, 4): k('v_add_u32 v%d, %d, v224' % (224 + r, r * 16 * 3584))
    k('L_pj_go:')
    def pkdma(r):
        k('s_mov_b32 m0, s31')
        k.tpk = k.vm('global_load_lds_dwordx4 v%d, s[72:73]' % (224 + r))
        k('s_add_u32 s31, s31, s79')
    SNON = 0
    if SNON:
        add_ptr(k, 10, P_WMOD, 7)
        k('s_mov_b32 m0, s9')
        k.vm('global_load_lds_dwordx4 v231, s[10:11]')
        k('s_add_u32 s10, s10, %d' % (16 * 6144 - 1024))
        k('s_addc_u32 s11, s11, 0')
        k.vm('global_load_lds_dwordx4 v231, s[10:11] offset:1024')
        add_ptr(k, 10, P_WMOD, 66)
        k('s_add_u32 m0, s9, 2048')
        tcm = k.vm('global_load_lds_dwordx4 v231, s[10:11]')
        for r in range(4): pkdma(r)
    k('s_and_b32 s75, s5, 15')
    k('s_lshl_b32 s75, s75, 13')
    k('s_lshr_b32 s76, s5, 4')
    k('s_lshl_b32 s76, s76, 6')
    k('s_add_u32 s75, s75, s76')
    k('s_lshl_b32 s76, s6, 3')
    k('s_add_u32 s75, s75, s76')
    k('s_and_b32 s76, s64, 15')
    k('s_lshl_b32 s76, s76, 13')
    k('s_lshr_b32 s77, s64, 4')
    k('s_lshl_b32 s77, s77, 7')
    k('s_add_u32 s76, s76, s77')
    k('s_lshl_b32 s77, s65, 3')
    k('s_add_u32 s76, s76, s77')
    k('s_add_u32 s76, s76, 256')
    k('s_cmp_eq_u32 s50, 0')
    k('s_cselect_b32 s75, s75, s76')
    ws_ptr(k, 16, WS_MODG, 75)
    k('v_mov_b32 v12, 0\nv_mov_b32 v13, 0\nv_mov_b32 v14, 0\nv_mov_b32 v15, 0')
    ws_ptr(k, 14, WS_SYNC)
    tr_addr32(k, 254, 1, 250, 251, 6, 8)
    k('v_add_u32 v254, s9, v254')
    k('v_and_b32 v40, 31, v1')
    k('v_lshrrev_b32 v41, 5, v1')
    k('v_lshrrev_b32 v253, 1, v40')
    k('v_lshlrev_b32 v253, 9, v253')
    k('v_and_b32 v250, 1, v40')
    k('s_add_u32 s75, s50, 5')
    k('v_lshlrev_b32 v250, s75, v250')
    k('v_add_u32 v253, v253, v250')
    k('v_mul_u32_u24 v11, 1056, v77')
    k('v_add_u32 v11, v11, v78')
    k('v_add_u32 v11, %d, v11' % L_STN)
    k('v_bfe_u32 v56, v1, 2, 3')
    k('v_mul_u32_u24 v236, 1056, v56')
    k('v_and_b32 v57, 3, v1')
    k('v_lshl_add_u32 v236, v57, 3, v236')
    k('v_lshl_add_u32 v236, v41, 5, v236')
    k('s_lshl_b32 s75, s50, 8')
    k('s_add_u32 s75, s75, %d' % L_STN)
    k('v_add_u32 v236, s75, v236')
    k('v_and_b32 v57, 15, v1')
    k('v_lshl_add_u32 v57, v41, 4, v57')
    k('v_lshlrev_b32 v235, 5, v57')
    k('v_bfe_u32 v57, v1, 4, 1')
    k('v_lshl_add_u32 v235, v57, 4, v235')
    k('s_lshl_b32 s75, s2, 10')
    k('s_lshl_b32 s76, s50, 20')
    k('s_add_u32 s75, s75, s76')
    ws_ptr(k, 12, WS_XG, 75)
    k('s_lshl_b32 s75, s2, 6')
    k('s_lshl_b32 s76, s50, 4')
    k('s_add_u32 s75, s75, s76')
    ws_ptr(k, 24, WS_ST1, 75)
    k('s_mov_b32 s58, 0xffff0000')
    k('s_mov_b32 s63, 0x3f803f80')
    k('v_lshlrev_b32 v249, 2, v0')
    k('v_add_u32 v249, %d, v249' % L_SC)
    k('v_lshlrev_b32 v233, 4, v41')
    k('s_lshl_b32 s75, s50, 8')
    k('s_add_u32 s75, s75, %d' % L_SC)
    k('v_add_u32 v233, s75, v233')
    k('s_lshl_b32 s75, s50, 10')
    k('v_lshl_add_u32 v252, v1, 2, s75')
    k('v_add_u32 v252, %d, v252' % (L_SC + 1024))
    k('s_lshl_b32 s55, s50, 14')
    k('v_lshl_add_u32 v16, v1, 2, s55')
    for r in range(1, 16): k('v_xor_b32 v%d, %d, v16' % (16 + r, r << 4))
    k('v_and_b32 v42, 15, v1')
    k('v_xor_b32 v42, v42, v41')
    k('v_lshlrev_b32 v42, 4, v42')
    k('v_lshl_add_u32 v42, v40, 8, v42')
    k('v_add_u32 v32, s55, v42')
    for ks in range(1, 8): k('v_xor_b32 v%d, %d, v32' % (32 + ks, ks << 5))
    k('s_mul_i32 s56, s52, 6912')
    k('s_add_u32 s56, s56, %d' % (L_T - 0x3F00 * 4))
    k('v_lshlrev_b32 v42, 3, v40')
    k('v_cvt_f32_u32 v42, v42')
    k('v_cvt_f32_u32 v43, v41')
    c0 = [0, 1, 2, 3, 256, 258, 260, 262]
    c1 = [4, 5, 6, 7, 512, 516, 768, 772]
    for r in range(8):
        k('v_fmamk_f32 v56, v43, %s, v42' % f32(c1[r] - c0[r]))
        if c0[r]: k('v_add_f32 v56, %s, v56' % f32(c0[r]))
        else: k('v_max_f32 v56, 0.5, v56')
        k('v_cvt_pk_bf16_f32 v56, v56, 0')
        k('v_lshl_add_u32 v%d, v56, 2, s56' % (44 + r))
    k('v_cmp_eq_u32 vcc, 32, v1')
    k('v_fmaak_f32 v57, 4.0, v42, %s' % f32(4096.0))
    k('v_mov_b32 v58, %s' % f32(2048.0))
    k('v_cndmask_b32 v58, v57, v58, vcc')
    k('v_cmp_lt_u32 vcc, 31, v1')
    for r in range(8, 12):
        k('v_add_f32 v56, %s, v42' % f32(1024 + 256 * (r - 8)))
        k('v_cndmask_b32 v56, v56, v%d, vcc' % (58 if r == 8 else 57))
        k('v_cvt_pk_bf16_f32 v56, v56, 0')
        k('v_lshl_add_u32 v%d, v56, 2, s56' % (44 + r))
    k('v_and_b32 v59, 127, v0')
    k('v_lshlrev_b32 v56, 4, v59')
    k('v_sub_u32 v56, 2047, v56')
    k('v_cvt_f32_u32 v57, v56')
    for i in range(17):
        if i: k('v_add_f32 v56, %s, v57' % f32(-float(i)))
        else: k('v_mov_b32 v56, v57')
        if i >= 15: k('v_max_f32 v56, 0.5, v56')
        k('v_cvt_pk_bf16_f32 v56, v56, 0')
        k('v_lshl_add_u32 v%d, v56, 2, s56' % (60 + i))
    k('s_mov_b32 s57, 0x07060302')
    k('s_mov_b32 s59, %s' % f32(LOG2E))
    lo_log2e = LOG2E - struct.unpack('<f', struct.pack('<f', LOG2E))[0]
    inv2pi = 1.0 / (2 * math.pi)
    inv2pi_f = struct.unpack('<f', struct.pack('<f', inv2pi))[0]
    k('s_mov_b32 s60, %s' % f32(inv2pi_f))
    k('s_mov_b32 s61, %s' % f32(inv2pi - inv2pi_f))
    k('s_mov_b32 s62, %s' % f32(lo_log2e))
    k('s_lshl_b32 s75, s50, 6')
    k('v_mov_b32 v234, s75')
    NL = 'global_load_dword v232, v234, s[%d:%d]%s' % (P_DBG, P_DBG + 1, SC)
    if not SNON:
        tn = k.vm(NL)
        add_ptr(k, 10, P_WMOD, 7)
        k('s_mov_b32 m0, s9')
        k.vm('global_load_lds_dwordx4 v231, s[10:11]')
        k('s_add_u32 s10, s10, %d' % (16 * 6144 - 1024))
        k('s_addc_u32 s11, s11, 0')
        k.vm('global_load_lds_dwordx4 v231, s[10:11] offset:1024')
        add_ptr(k, 10, P_WMOD, 66)
        k('s_add_u32 m0, s9, 2048')
        tcm = k.vm('global_load_lds_dwordx4 v231, s[10:11]')
        for r in range(4): pkdma(r)
    k('s_cmp_lt_u32 s2, 112')
    k('s_cbranch_scc0 L_pa_w1')
    tr_addr32(k, 224, 1, 250, 251, 10, 4)
    k('s_lshl_b32 s76, s50, 8')
    k('s_add_u32 s76, s76, %d' % L_SJ)
    k('v_add_u32 v224, s76, v224')
    k('v_bfe_u32 v251, v1, 2, 2')
    k('v_lshlrev_b32 v251, 6, v251')
    k('v_xor_b32 v224, v224, v251')
    for q in range(1, 4): k('v_xor_b32 v%d, %d, v224' % (224 + q, q << 6))
    k('s_mul_i32 s76, s50, %d' % (4 * 114688))
    k('s_lshl_b32 s75, s2, 10')
    k('s_add_u32 s76, s76, s75')
    ws_ptr(k, 70, WS_W2P, 76)
    k('s_mov_b32 s75, 114688')
    k('s_movk_i32 s76, 8192')
    k('s_branch L_pa_go')
    k('L_pa_w1:')
    tr_addr32(k, 224, 1, 250, 251, 8, 8)
    k('v_bfe_u32 v251, v1, 2, 2')
    k('v_xor_b32 v251, s50, v251')
    k('v_lshl_add_u32 v224, v251, 6, v224')
    k('v_add_u32 v224, %d, v224' % L_SJ)
    for q in range(1, 4): k('v_add_u32 v%d, %d, v224' % (224 + q, q * 4096))
    k('s_lshl_b32 s76, s27, 2')
    k('s_add_u32 s76, s76, s50')
    k('s_lshl_b32 s76, s76, 15')
    k('s_lshl_b32 s75, s26, 12')
    k('s_add_u32 s76, s76, s75')
    ws_ptr(k, 70, WS_W1P, 76)
    k('s_movk_i32 s75, 1024')
    k('s_movk_i32 s76, 1024')
    k('L_pa_go:')
    for q in range(4): k('v_add_u32 v%d, s76, v%d' % (228 + q, 224 + q))
    k('v_lshlrev_b32 v223, 4, v1')
    k('v_add_u32 v237, s75, v223')
    k('v_add_u32 v238, s75, v237')
    k('v_add_u32 v239, s75, v238')
    k('s_lshr_b32 s5, s3, 1')
    k('s_lshl_b32 s5, s5, 2')
    k('s_and_b32 s75, s4, 3')
    k('s_add_u32 s5, s5, s75')
    k('s_and_b32 s7, s3, 1')
    k('s_mul_i32 s7, s7, 7')
    k('s_lshr_b32 s75, s4, 2')
    k('s_add_u32 s7, s7, s75')
    k('s_min_u32 s7, s7, 13')
    k('s_lshl_b32 s6, s7, 2')
    k('s_add_u32 s6, s6, s50')
    k.smem_wait()
    k.wait(vm=tpar)
    k('v_mov_b32 v255, v223')
    k.stamp(2); k.stamp3(1)
    if SNON: k('s_load_dword s81, s[%d:%d], 0 glc' % (P_DBG, P_DBG + 1))
    k('v_mul_f32 v78, s59, v10')
    k('v_fma_f32 v79, v10, s59, -v78')
    k('v_fma_f32 v79, v10, s62, v79')
    k('v_exp_f32 v78, v78')
    k('v_mul_f32 v79, %s, v79' % f32(math.log(2.0)))
    k('v_fma_f32 v78, v78, v79, v78')
    k('v_cvt_pk_bf16_f32 v78, v78, v78')
    k('v_and_b32 v78, s58, v78')
    k('v_mul_f32 v4, v78, v4')
    k('v_mul_f32 v5, v78, v5')
    k('v_mul_f32 v152, v78, v6')
    k('v_mul_f32 v154, v78, v7')
    E0 = 96
    cmul1(k, E0, 8, 152); cmul2(k, E0, 8, 152)
    k('v_mul_f32 v4, s59, v4')
    Z1, Z256, Z8, Z128 = 80, 84, 152, 156
    def zpow(dst, p, conj, t):
        pf = f32(float(p))
        return ['v_mul_f32 v%d, %s, v4' % (t, pf), 'v_mul_f32 v%d, %s, v5' % (t + 1, pf), 'v_exp_f32 v%d, v%d' % (t, t),
                'v_mul_f32 v%d, s60, v%d' % (t + 2, t + 1), 'v_fma_f32 v%d, v%d, s60, -v%d' % (t + 3, t + 1, t + 2),
                'v_fma_f32 v%d, v%d, s61, v%d' % (t + 3, t + 1, t + 3), 'v_fract_f32 v%d, v%d' % (t + 2, t + 2),
                'v_add_f32 v%d, v%d, v%d' % (t + 2, t + 2, t + 3), 'v_cos_f32 v%d, v%d' % (t + 3, t + 2), 'v_sin_f32 v%d, v%d' % (t + 2, t + 2),
                'v_mul_f32 v%d, v%d, v%d' % (dst, t, t + 3), 'v_mul_f32 v%d, v%d, %sv%d' % (dst + 2, t, '-' if conj else '', t + 2)]
    for p_, q_ in ((zpow(Z1, 1, False, 88), zpow(Z256, 256, False, 92)), (zpow(Z8, 8, True, 88), zpow(Z128, 128, True, 92))):
        for x, y in zip(p_, q_): k(x); k(y)
    T0 = 140
    def split_a(e, i):
        t = T0 + 6 * (i & 1)
        if not KSPLIT:
            k('v_cvt_pk_bf16_f32 v%d, v%d, v%d' % (t + 4, e, e + 1)); return
        k('v_perm_b32 v%d, v%d, v%d, s57' % (t + 4, e + 1, e))
        k('v_and_b32 v%d, s58, v%d' % (t, e))
        k('v_and_b32 v%d, s58, v%d' % (t + 1, e + 1))
    def split_b(e, i, row):
        t = T0 + 6 * (i & 1)
        if not KSPLIT: return k.ds('ds_write_b32 v%d, v%d offset:%d' % (16 + (row & 15), t + 4, row * 256))
        k('v_pk_add_f32 %s, %s, %s neg_lo:[0,1] neg_hi:[0,1]' % (v(t + 2, 2), v(e, 2), v(t, 2)))
        k('v_cvt_pk_bf16_f32 v%d, v%d, v%d' % (t + 5, t + 2, t + 3))
        return k.ds('ds_write2st64_b32 v%d, v%d, v%d offset0:%d offset1:%d' % (16 + (row & 15), t + 4, t + 5, row, 32 + row))
    hi = {r: (r - 1, Z1) for r in range(1, 8)}
    hi.update({8: (0, Z256), 9: (2, Z256), 10: (4, Z256), 11: (6, Z256), 12: (8, Z256), 13: (10, Z256), 14: (12, Z256), 15: (13, Z256),
               16: (14, Z256), 17: (16, Z256), 18: (17, Z256), 19: (18, Z256), 20: (19, Z256)})
    order = [0, 1, 8, 2, 12, 3, 14, 4, 16, 5, 17, 6, 18, 7, 19, 9, 20, 10, 11, 13, 15]
    for i, r in enumerate(order):
        nxt = order[i + 1] if i + 1 < len(order) else None
        if nxt is not None: cmul1(k, E0 + 2 * nxt, E0 + 2 * hi[nxt][0], hi[nxt][1])
        split_a(E0 + 2 * r, i)
        if nxt is not None: cmul2(k, E0 + 2 * nxt, E0 + 2 * hi[nxt][0], hi[nxt][1])
        split_b(E0 + 2 * r, i, r)
    AH, AL = 160, 192
    for ks in range(8):
        k.ds('ds_read_b128 %s, v%d' % (v(AH + 4 * ks, 4), 32 + ks))
        if KSPLIT: k.ds('ds_read_b128 %s, v%d offset:8192' % (v(AL + 4 * ks, 4), 32 + ks))
    for i in range(4): k('v_mov_b32 v%d, 0' % (96 + i))
    k.stamp3(2)
    k.wait(vm=tx)
    k.stamp3(3)
    for i in range(2): k.ds('ds_write_b128 v11, %s offset:%d' % (v(240 + 4 * i, 4), 512 * i))
    for j in range(8):
        k('v_dot2c_f32_bf16 v%d, s63, v%d' % (96 + (j & 1), 240 + j))
        k('v_dot2c_f32_bf16 v%d, v%d, v%d' % (98 + (j & 1), 240 + j, 240 + j))
    if SNON:
        k.wait(vm=tc)
        k.smem_wait()
        k('v_mov_b32 v232, s81')
    else: k.wait(vm=tn)
    k('s_mov_b32 s80, 0')
    k('L_non_p:')
    k('v_cmp_eq_u32 vcc, 0, v232')
    retry_tail(k, 'non', [NL, 's_waitcnt vmcnt(0)'])
    k('v_readfirstlane_b32 s81, v232')
    k.stamp3(4)
    GR = [100 + 4 * q for q in range(3)] + [120]
    for q in range(4): k('v_mov_b32 v%d, v232\nv_mov_b32 v%d, v232' % (GR[q] + 2, GR[q] + 3))
    k.wait_all(vm=False)
    k.barrier()
    tq = [k.ds('ds_read_b64_tr_b16 %s, v236 offset:%d' % (v(GR[q], 2), 64 * q)) for q in range(4)]
    k('v_lshlrev_b32 v116, 16, v248')
    k('v_and_b32 v117, s58, v248')
    k('v_add_f32 v96, v96, v97')
    k('v_add_f32 v98, v98, v99')
    nm = 'v_mul_f32 v%%d, %s, v%%d' % f32(-LOG2E)
    silu = [nm % (118, 116), nm % (119, 117), 'v_exp_f32 v118, v118', 'v_exp_f32 v119, v119', 'v_add_f32 v118, 1.0, v118', 'v_add_f32 v119, 1.0, v119',
            'v_rcp_f32 v118, v118', 'v_rcp_f32 v119, v119', 'v_mul_f32 v116, v116, v118', 'v_mul_f32 v117, v117, v119', 'v_cvt_pk_bf16_f32 v116, v116, v117']
    for pat in ('quad_perm:[1,0,3,2]', 'quad_perm:[2,3,0,1]', 'row_half_mirror', 'row_mirror'):
        k(silu.pop(0)); k(silu.pop(0))
        k('v_add_f32_dpp v96, v96, v96 %s row_mask:0xf bank_mask:0xf' % pat)
        k('v_add_f32_dpp v98, v98, v98 %s row_mask:0xf bank_mask:0xf' % pat)
    k('v_mov_b32 v97, v96')
    k('v_mov_b32 v99, v98')
    for q in range(4):
        k.wait(ds=tq[q])
        k.vm('global_store_dwordx4 v235, %s, s[12:13]%s' % (v(GR[q], 4), SC))
        if q < 3: k('s_add_u32 s12, s12, 0x40000'); k('s_addc_u32 s13, s13, 0')
    while silu: k(silu.pop(0))
    k.ds('ds_write_b32 v249, v116')
    k('v_permlane16_swap_b32 v96, v97')
    k('v_permlane16_swap_b32 v98, v99')
    for ks in range(3): k.ds('ds_read_b128 %s, v233 offset:%d' % (a(32 + 4 * ks, 4), 32 * ks))
    k('v_add_f32 v96, v96, v97')
    k('v_add_f32 v98, v98, v99')
    k('v_mul_f32 v96, %s, v96' % f32(1.0 / 512))
    k('v_mul_f32 v98, %s, v98' % f32(1.0 / 512))
    k('v_fma_f32 v98, -v96, v96, v98')
    k('v_max_f32 v98, 0, v98')
    k('v_add_f32 v98, %s, v98' % f32(1e-5))
    k('v_rsq_f32 v240, v98')
    k('v_mul_f32 v242, v96, v240')
    k('v_mov_b32 v241, v240')
    k('v_mov_b32 v243, v242')
    k('v_permlane32_swap_b32 v240, v241')
    k('v_permlane32_swap_b32 v242, v243')
    k('v_cvt_pk_bf16_f32 v242, v242, v243')
    k('v_mov_b32 v243, v232')
    k('s_mov_b64 exec, 1')
    k.vm('global_store_dwordx4 v12, v[240:243], s[24:25]' + SC)
    k('s_mov_b64 exec, -1')
    def mod_a():
        k.stamp3(6)
        k.wait(vm=tcm)
        k.stamp3(7)
        for ks in range(3):
            k.ds('ds_read_b64_tr_b16 %s, v254 offset:%d' % (a(48 + 4 * ks, 2), ks * 1024))
            k.tmr = k.ds('ds_read_b64_tr_b16 %s, v254 offset:%d' % (a(50 + 4 * ks, 2), ks * 1024 + 256))
    def mod_b():
        k.wait(ds=k.tmr)
        k('v_mfma_f32_32x32x16_bf16 a[64:79], a[32:35], a[48:51], 0')
        k('v_mfma_f32_32x32x16_bf16 a[80:95], a[40:43], a[56:59], 0')
        k('v_mfma_f32_32x32x16_bf16 a[64:79], a[36:39], a[52:55], a[64:79]')
    def mod_c():
        k.ds('ds_write_b32 v249, a80 offset:2048')
        k.ds('ds_write_b32 v249, a64 offset:1024')
        k.stamp3(8)
        k.wait_all(vm=False)
        k.barrier()
        k.stamp3(9)
        for i in range(4): k.tp = k.ds('ds_read_b32 v%d, v252 offset:%d' % (244 + i, 256 * i))
    def mod_d():
        k.wait(ds=k.tp)
        k('s_cmp_ge_u32 s50, 2')
        k('s_cbranch_scc1 L_cm2')
        k('v_add_f32 v244, v244, v245')
        k('v_add_f32 v246, v246, v247')
        k('v_add_f32 v244, v244, v246')
        k('v_mov_b32 v245, v232')
        raw(k, 'global_store_dwordx2 v253, v[244:245], s[16:17]' + SC)
        k('s_branch L_cm3')
        k('L_cm2:')
        k('v_and_b32 v246, 15, v1')
        k('s_lshl_b32 s75, s2, 6')
        k('v_lshl_add_u32 v246, v246, 2, s75')
        raw(k, 'global_store_dword v246, v12, s[14:15]' + SC)
        k('L_cm3:')
    def pack_out():
        for q in range(4):
            k.ds('ds_read_b64_tr_b16 %s, v%d' % (a(4 * q, 2), 224 + q))
            pt = k.ds('ds_read_b64_tr_b16 %s, v%d' % (a(4 * q + 2, 2), 228 + q))
        k.wait(ds=pt)
        k('s_cmp_ge_u32 s2, 224')
        k('s_cbranch_scc1 L_pk_no')
        for q in range(4): raw(k, 'global_store_dwordx4 v%d, %s, s[70:71]%s' % (255 if q == 0 else 236 + q, a(4 * q, 4), SC))
        k('L_pk_no:')
        k.tall = k.nvm
    k('s_nop 1')
    k.stamp(4); k.stamp3(5)
    eq = []
    L0 = 96
    k('v_mov_b32 v%d, 1.0' % L0)
    k('v_mov_b32 v%d, 0' % (L0 + 1))
    lo_order = []
    for m in range(16): lo_order += [m, 16 + m]
    def lreg(m): return L0 + 2 * m if m < 16 else 132 + 2 * (m & 1)
    def lsrc(m): return (lreg(m - 1), Z8) if m < 16 else (lreg(m - 16), Z128)
    for i, m in enumerate(lo_order):
        nxt = lo_order[i + 1] if i + 1 < len(lo_order) else None
        if nxt is not None: cmul1(k, lreg(nxt), *lsrc(nxt))
        split_a(lreg(m), i)
        if nxt is not None: cmul2(k, lreg(nxt), *lsrc(nxt))
        split_b(lreg(m), i, m)
        M0 = E('MODAT', 2)
        if i == M0: mod_a()
        if i == M0 + 2: mod_b()
        if i == M0 + 5: mod_c()
        if i == M0 + 7: mod_d()
        if i == E('PKO', 20):
            k.wait(vm=k.tpk); k.barrier(); pack_out()
    while eq: eq.pop(0)()
    k.stamp3(10)
    ACC = 224
    bt = []
    k.wait_all(vm=False, ds=True)
    for ks in range(8):
        t = k.ds('ds_read_b128 %s, v%d' % (v(96 + 8 * ks, 4), 32 + ks))
        if KSPLIT: t = k.ds('ds_read_b128 %s, v%d offset:8192' % (v(100 + 8 * ks, 4), 32 + ks))
        bt.append(t)
    fill = []
    F = lambda x: fill.append(x)
    F('v_lshrrev_b32 v7, 2, v1'); F('v_and_b32 v8, 3, v1'); F('v_lshlrev_b32 v16, 10, v7'); F('v_lshl_add_u32 v16, v8, 4, v16')
    F('s_lshl_b32 s60, s50, 16\ns_lshr_b32 s61, s34, 4\ns_lshl_b32 s61, s61, 18\ns_add_u32 s60, s60, s61')
    F('s_and_b32 s61, s34, 15\ns_lshl_b32 s61, s61, 6\ns_add_u32 s60, s60, s61\ns_add_u32 s62, s48, s60\ns_addc_u32 s63, s49, 0')
    assert WS_XG == 0
    for i in range(1, 4): F('v_add_u32 v%d, 0x%x, v16' % (16 + i, i * 16384))
    F('v_and_b32 v10, 1, v8'); F('v_lshlrev_b32 v24, 6, v7'); F('v_lshl_add_u32 v24, v10, 5, v24'); F('v_lshrrev_b32 v9, 1, v8'); F('v_lshl_add_u32 v24, v9, 4, v24')
    F('s_lshl_b32 s60, s50, 12\ns_add_u32 s60, s60, 0x%x\ns_add_u32 s24, s48, s60\ns_addc_u32 s25, s49, 0' % WS_ST1)
    F('v_lshlrev_b32 v21, 3, v1')
    F('s_lshl_b32 s60, s34, 9\ns_add_u32 s60, s60, 0x%x\ns_add_u32 s64, s48, s60\ns_addc_u32 s65, s49, 0' % WS_MODG)
    XD = [240, 244, 248, 252]
    k.XD = XD
    XL1 = ['global_load_dwordx4 %s, v%d, s[62:63]%s' % (v(XD[i], 4), 16 + i, SC) for i in range(4)] + ['global_load_dwordx2 v[22:23], v21, s[64:65]' + SC]
    XL2 = ['global_load_dwordx4 %s, v24, s[24:25] offset:%d%s' % (v(80 + 4 * i, 4), i * 1024, SC) for i in range(4)]
    k.XL = XL1 + XL2
    F('s_or_b32 s66, s55, 0x4000'); F('v_lshl_add_u32 v3, v1, 4, s66')
    F('s_mul_i32 s55, s52, %d\ns_add_u32 s55, s55, %d' % (CHS, L_CV)); F('v_lshl_add_u32 v2, v59, 5, s55')
    for x in XL1 + XL2: F('VM ' + x); F('s_nop 0')
    def emit_fill():
        x = fill.pop(0)
        if x.startswith('VM '): k.vm(x[3:])
        else: k(x)
    for ks in range(8):
        k.wait(ds=bt[ks])
        c = '0' if ks == 0 else v(ACC, 16)
        ms = [(AH + 4 * ks, 96 + 8 * ks)] + ([(AH + 4 * ks, 100 + 8 * ks), (AL + 4 * ks, 96 + 8 * ks)] if KSPLIT else [])
        for x, y in ms:
            k('v_mfma_f32_32x32x16_bf16 %s, %s, %s, %s' % (v(ACC, 16), v(x, 4), v(y, 4), c)); c = v(ACC, 16)
            for _ in range(2 if KSPLIT else 4):
                if fill: emit_fill()
    while fill: emit_fill()
    k.stamp3(11)
    k('s_nop 7\ns_nop 3')
    k('s_bitcmp1_b32 s50, 0')
    k('s_cbranch_scc0 L_kg_a')
    for i in range(3): k.ds('ds_write_b128 v3, %s offset:%d' % (v(ACC + 4 * i, 4), 1024 * i))
    k.wait_all(vm=False)
    k('L_kg_a:')
    k.barrier()
    k.stamp3(12)
    k('s_cbranch_scc1 L_kg_b')
    for i in range(3): k.ds('ds_read_b128 %s, v3 offset:%d' % (v(96 + 4 * i, 4), 1024 * i))
    k.wait_all(vm=False)
    for i in range(6): k('v_pk_add_f32 %s, %s, %s' % (v(96 + 2 * i, 2), v(96 + 2 * i, 2), v(ACC + 2 * i, 2)))
    for r in range(12): k.ds('ds_write_b32 v%d, v%d' % (44 + r, 96 + r))
    k.wait_all(vm=False)
    k('L_kg_b:')
    if E('FPB', 1): k('s_waitcnt vmcnt(%d)' % (k.nvm - k.tall))
    k.barrier()
    k.stamp3(13)
    if E('FPB', 1): signal(k, 'fp', O_FP, 28, 29)
    k('v_cmp_eq_u32 vcc, 127, v59')
    G = 96
    gt = [k.ds('ds_read_b32 v%d, v%d' % (G + i, 60 + i)) for i in range(17)]
    conv_setup(k)
    k.wait(ds=gt[-1])
    k('v_cmp_eq_u32 vcc, 127, v59')
    k('v_cndmask_b32 v%d, v%d, v12, vcc' % (G + 16, G + 16))
    for i in range(8): k('v_cvt_pk_bf16_f32 v%d, v%d, v%d' % (120 + i, G + 2 * i, G + 2 * i + 1))
    for i in range(8): k('v_cvt_pk_bf16_f32 v%d, v%d, v%d' % (128 + i, G + 2 * i + 1, G + 2 * i + 2))
    k.ds('ds_write_b128 v2, v[120:123]')
    k.ds('ds_write_b128 v2, v[124:127] offset:16')
    k.ds('ds_write_b128 v2, v[128:131] offset:%d' % O_K1)
    k.ds('ds_write_b128 v2, v[132:135] offset:%d' % (O_K1 + 16))
    k('v_lshlrev_b32 v2, 4, v1')

def conv_setup(k):
    k('s_and_b32 s54, s50, 1')
    k('v_lshlrev_b32 v11, 4, v1')
    k('v_and_b32 v5, 15, v1')
    k('v_lshrrev_b32 v6, 4, v1')
    k('s_mul_i32 s59, s54, %d' % O_K1)
    k('s_add_u32 s59, s59, s55')
    k('v_lshl_add_u32 v14, v5, 2, s59')
    k.ds('ds_write_b32 v14, v12 offset:4096')
    k('v_lshl_add_u32 v14, v1, 3, s55')
    k.ds('ds_write_b64 v14, v[12:13] offset:%d' % O_H)
    k('v_lshlrev_b32 v15, 3, v10')
    k('v_lshl_add_u32 v15, v7, 4, v15')
    k('s_lshl_b32 s60, s50, 10')
    k('v_add_u32 v15, s60, v15')
    k('v_mul_u32_u24 v20, %d, v9' % CHS)
    k('v_add_u32 v20, v20, v15')
    k('v_lshl_add_u32 v25, v9, 12, v15')
    k('s_lshl_b32 s76, s54, 10')
    k('s_add_u32 s77, s76, s55')
    k('v_lshlrev_b32 v15, 5, v5')
    k('v_lshl_add_u32 v15, v6, 3, v15')
    k('v_add_u32 v193, s77, v15')
    k('s_lshl_b32 s77, s52, 12')
    k('s_add_u32 s76, s76, s77')
    k('v_add_u32 v202, s76, v15')
    k('v_lshlrev_b32 v15, 5, v5')
    k('v_lshl_add_u32 v15, v6, 4, v15')
    k('s_lshl_b32 s77, s54, 8')
    k('s_sub_u32 s77, s55, s77')
    k('s_add_u32 s78, s77, %d' % (O_H + 512 - 32 - 192))
    k('v_add_u32 v192, s78, v15')
    k('v_lshlrev_b32 v15, 3, v6')
    k('v_sub_u32 v15, v15, v5')
    k('v_add_u32 v15, 15, v15')
    k('v_and_b32 v194, 1, v15')
    k('v_mul_u32_u24 v194, %d, v194' % O_K1)
    k('v_and_b32 v15, -2, v15')
    k('v_lshl_add_u32 v15, v15, 1, v194')
    k('s_add_u32 s78, s77, %d' % (2 * (2016 - 256 - 96 - 1536)))
    k('v_add_u32 v197, s78, v15')
    for ip in range(3): k('v_add_u32 v%d, %d, v197' % (194 + ip, 1024 * (3 - ip)))
    k('s_lshl_b32 s77, s54, 12')
    k('s_add_u32 s78, s77, s55')
    k('v_add_u32 v198, s78, v11')
    k('s_xor_b32 s77, s77, 0x1000')
    k('s_add_u32 s78, s77, s55')
    k('v_add_u32 v199, s78, v11')
    k('v_and_b32 v15, 1, v6')
    k('v_lshlrev_b32 v15, 3, v15')
    k('v_lshrrev_b32 v200, 1, v5')
    k('v_add_u32 v15, v15, v200')
    k('v_lshlrev_b32 v200, 15, v15')
    k('v_and_b32 v15, 1, v5')
    k('v_lshl_add_u32 v200, v15, 5, v200')
    k('v_lshrrev_b32 v15, 1, v6')
    k('v_lshl_add_u32 v200, v15, 4, v200')
    k('v_add_u32 v201, 0x100000, v200')
    k('s_lshl_b32 s60, s54, 19')
    k('s_lshl_b32 s61, s53, 6')
    k('s_add_u32 s60, s60, s61')
    ws_ptr(k, 66, WS_X1T, 60)
    ws_ptr(k, 68, WS_X1S, 60)
    k('s_lshl_b32 s60, s6, 15')
    ws_ptr(k, 26, WS_W1P, 60)
    k('s_lshl_b32 s77, s30, 16')
    k('s_and_b32 s74, s30, 0xffff0000')
    k('s_cmp_eq_u32 s52, 0')
    k('s_cselect_b32 s74, s77, s74')
    k('v_bfe_u32 v4, v1, 3, 1')
    k('v_cvt_f32_u32 v4, v4')
    k('v_cmp_gt_u32 vcc, 32, v1')
    k('v_cndmask_b32 v4, 0, v4, vcc')
    k('s_lshl_b32 s60, s34, 4')
    ws_ptr(k, 18, WS_FIN, 60)
    k('s_lshl_b32 s60, s3, 10')
    k('v_add_u32 v217, s60, v11')
    k('v_add_u32 v218, 0x%x, v217' % O_F2)
    k('v_add_u32 v217, 0x%x, v217' % O_FP)
    k('s_lshl_b32 s56, s54, 15')
    k('s_lshl_b32 s60, s52, 12')
    k('s_add_u32 s56, s56, s60')
    k('s_lshl_b32 s60, s5, 16')
    k('s_add_u32 s60, s60, s56')
    ws_ptr(k, 28, WS_X1S, 60)

def conv_phase(k):
    XD = k.XD
    k.stamp(6); k.stamp3(14)
    k('s_mov_b32 s80, 0')
    k('L_xv_p:')
    k('s_waitcnt vmcnt(0)')
    for c in chk_tags([x + 2 for x in XD] + [23] + [83 + 4 * i for i in range(4)], 28): k(c)
    retry_tail(k, 'xv', k.XL)
    k.vm_done = k.nvm
    k.stamp(7)
    k('v_add_f32_dpp v22, v22, v22 quad_perm:[1,0,3,2] row_mask:0xf bank_mask:0xf')
    k('s_lshl_b32 s60, s52, 2')
    k('s_add_u32 s61, s60, 24')
    k('v_add_f32_dpp v22, v22, v22 quad_perm:[2,3,0,1] row_mask:0xf bank_mask:0xf')
    k('s_add_u32 s60, s60, 16')
    k('v_cmp_eq_u32 vcc, 1, v9')
    k('v_add_f32_dpp v22, v22, v22 row_half_mirror row_mask:0xc bank_mask:0xf')
    k('v_cvt_pk_bf16_f32 v22, v22, v22')
    k('v_and_b32 v22, s58, v22')
    k('v_add_f32 v22, v22, v4')
    k('v_cvt_pk_bf16_f32 v22, v22, v22')
    k('v_and_b32 v22, s58, v22')
    k('v_readlane_b32 s62, v22, 0')
    k('v_readlane_b32 s63, v22, 4')
    k('v_readlane_b32 s64, v22, 8')
    k('v_readlane_b32 s65, v22, 12')
    k('v_readlane_b32 s75, v22, s60')
    k('v_readlane_b32 s76, v22, s61')
    k('v_mov_b32 v27, s62')
    k('v_mov_b32 v29, s63')
    k('v_mov_b32 v26, s64')
    k('v_mov_b32 v28, s65')
    k('v_cndmask_b32 v27, v27, v29, vcc')
    k('v_cndmask_b32 v26, v26, v28, vcc')
    for i in range(4):
        k.ds('ds_write_b64 v25, %s offset:%d' % (v(XD[i], 2), L_X + 256 * i))
        for j in range(2):
            r = XD[i] + j
            g = 56 + 4 * j
            tt = 48 + 4 * (j & 1)
            for e in range(3): k('v_mov_b32_dpp v%d, v%d quad_perm:[%d,%d,%d,%d] row_mask:0xf bank_mask:0xf' % (g + e, 80 + 4 * i + e, 2 * j, 2 * j + 1, 2 * j, 2 * j + 1))
            k('v_lshlrev_b32 v%d, 16, v%d' % (tt, r))
            k('v_and_b32 v%d, s58, v%d' % (tt + 1, r))
            k('v_lshlrev_b32 v%d, 16, v%d' % (tt + 2, g + 2))
            k('v_and_b32 v%d, s58, v%d' % (tt + 3, g + 2))
            k('v_pk_fma_f32 %s, %s, %s, %s neg_lo:[0,0,1] neg_hi:[0,0,1]' % (v(tt, 2), v(tt, 2), v(g, 2), v(tt + 2, 2)))
            k('v_pk_fma_f32 %s, %s, v[26:27], v[26:27] op_sel:[0,0,1] op_sel_hi:[1,0,1]' % (v(tt, 2), v(tt, 2)))
            k('v_cvt_pk_bf16_f32 v%d, v%d, v%d' % (XD[i] + 2 + j, tt, tt + 1))
        k.ds('ds_write_b64 v20, %s offset:%d' % (v(XD[i] + 2, 2), L_CV + O_H + 512 + 256 * i))
    k.wait_all(vm=False)
    k.barrier()
    if not E('FPB', 1): signal(k, 'fp', O_FP, 28, 29)
    k.stamp(9)
    ACC = 32
    def areg(st, p): return 64 + 64 * st + 4 * p
    def breg(st, q): return 96 + 64 * st + 4 * q
    def loads(cc, st, np_):
        L = []
        for p in range(np_):
            off = 128 * (1 - (p & 1)) + 16 * (3 - cc)
            L.append('ds_read2_b32 %s, v%d offset0:%d offset1:%d' % (v(areg(st, p), 2), 194 + (p >> 1), off, off + 1))
            L.append('ds_read2_b32 %s, v%d offset0:%d offset1:%d' % (v(areg(st, p) + 2, 2), 194 + (p >> 1), off + 2, off + 3))
            L.append('ds_read_b128 %s, v192 offset:%d' % (v(breg(st, p), 4), 512 * p + 64 * (3 - cc)))
        return L
    def lv_pairs(lo, hi_):
        P = []
        for lv in range(8):
            for p in range(lv + 1):
                for q in range(lv + 1):
                    if max(p, q) == lv and lo <= p + q <= hi_: P.append((p, q))
        return P
    def loadsA(cc):
        L = []
        st, o4 = cc >> 1, 4 * (cc & 1)
        for p in range(4):
            off = 128 * (1 - (p & 1)) + 16 * (3 - cc)
            L.append('ds_read2_b32 %s, v%d offset0:%d offset1:%d' % (v(areg(st, o4 + p), 2), 194 + (p >> 1), off, off + 1))
            L.append('ds_read2_b32 %s, v%d offset0:%d offset1:%d' % (v(areg(st, o4 + p) + 2, 2), 194 + (p >> 1), off + 2, off + 3))
            L.append('ds_read_b128 %s, v192 offset:%d' % (v(breg(st, o4 + p), 4), 512 * p + 64 * (3 - cc)))
        return L
    tA = {}
    for cc in range(2): tA[cc] = [k.ds(x) for x in loadsA(cc)]
    if E('FP_AT', 2) == 0: sync_issue(k, 'fp', 'global_load_dwordx4 v[204:207], v217, s[14:15]' + SC)
    k('s_cmp_lg_u32 s50, 3')
    k('s_cbranch_scc1 L_fin')
    for i, (l0, l1) in enumerate(((32, 40), (24, 28), (48, 56))):
        k('v_readlane_b32 s60, v22, %d' % l0)
        k('v_readlane_b32 s61, v22, %d' % l1)
        k('s_lshr_b32 s60, s60, 16')
        k('s_or_b32 s60, s60, s61')
        k('v_mov_b32 v%d, s60' % (220 + i))
    k('v_mov_b32 v223, s81')
    k('s_mov_b64 exec, 1')
    raw(k, 'global_store_dwordx4 v12, v[220:223], s[18:19]' + SC)
    k('s_mov_b64 exec, -1')
    k('L_fin:')
    seen = set()
    def mf(nt, ar, br):
        c = v(ACC + 4 * nt, 4) if nt in seen else '0'
        seen.add(nt)
        k('v_mfma_f32_16x16x32_bf16 %s, %s, %s, %s' % (v(ACC + 4 * nt, 4), v(ar, 4), v(br, 4), c))
    def hx_reads(ps):
        return (['ds_read_b64 %s, v193 offset:%d' % (v(16 + 2 * j, 2), O_H + 512 + 2048 * ps + 512 * j) for j in range(2)] +
                ['ds_read_b64 %s, v202 offset:%d' % (v(20 + 2 * j, 2), L_X + 2048 * ps + 512 * j) for j in range(2)])
    PA = lv_pairs(0, 3); PB = lv_pairs(4, 7)
    q2 = loadsA(2) + loadsA(3) + hx_reads(0)
    tq = []
    for cc in range(4):
        st, o4 = cc >> 1, 4 * (cc & 1)
        for n, (p, q) in enumerate(PA):
            if cc < 2: k.wait(ds=tA[cc][3 * max(p, q) + 2])
            else: k.wait(ds=tq[12 * (cc - 2) + 3 * max(p, q) + 2])
            mf(p + q, areg(st, o4 + p), breg(st, o4 + q))
            for _ in range(2):
                if q2 and (cc > 0 or n >= 2): tq.append(k.ds(q2.pop(0)))
            if cc == 2 and n == 2: qB = loads(0, 0, 8)
            if cc >= 2 and (cc > 2 or n >= 2):
                for _ in range(2):
                    if qB: k.ds(qB.pop(0))
    assert not q2 and not qB
    def exchange_and_store(ps, lab, mid):
        b = ACC + 16 * ps
        k('s_nop 7')
        k('s_cmp_eq_u32 s54, 0')
        k('s_cbranch_scc0 L_%s_1' % lab)
        for j in range(2): k.ds('ds_write_b128 v198, %s offset:%d' % (v(b + 8 + 4 * j, 4), O_RED + 2048 * ps + 1024 * j))
        for j in range(4): k('v_mov_b64 %s, %s' % (v(224 + 2 * j, 2), v(b + 2 * j, 2)))
        k('s_branch L_%s_2' % lab)
        k('L_%s_1:' % lab)
        k.nds -= 2
        for j in range(2): k.ds('ds_write_b128 v198, %s offset:%d' % (v(b + 4 * j, 4), O_RED + 2048 * ps + 1024 * j))
        for j in range(4): k('v_mov_b64 %s, %s' % (v(224 + 2 * j, 2), v(b + 8 + 2 * j, 2)))
        k('L_%s_2:' % lab)
        k.pre()
        k.wait_all(vm=False)
        k.barrier()
        mid()
        rt_ = [k.ds('ds_read_b128 %s, v199 offset:%d' % (v(232 + 4 * j, 4), O_RED + 2048 * ps + 1024 * j)) for j in range(2)]
        for i in range(4):
            k('v_lshlrev_b32 v%d, 16, v%d' % (240 + 2 * i, 16 + i))
            k('v_and_b32 v%d, s58, v%d' % (241 + 2 * i, 16 + i))
            k('v_pk_fma_f32 %s, %s, s[74:75], %s op_sel_hi:[1,0,1]' % (v(224 + 2 * i, 2), v(240 + 2 * i, 2), v(224 + 2 * i, 2)))
            k('v_lshlrev_b32 v%d, 16, v%d' % (248 + 2 * i, 20 + i))
            k('v_and_b32 v%d, s58, v%d' % (249 + 2 * i, 20 + i))
        k.wait(ds=rt_[1])
        for i in range(4):
            k('v_pk_add_f32 %s, %s, %s' % (v(224 + 2 * i, 2), v(224 + 2 * i, 2), v(232 + 2 * i, 2)))
            k('v_pk_fma_f32 %s, %s, s[74:75], %s op_sel:[0,1,0] op_sel_hi:[1,1,1]' % (v(224 + 2 * i, 2), v(224 + 2 * i, 2), v(248 + 2 * i, 2)))
            k('v_pk_mul_f32 %s, %s, s[76:77] op_sel_hi:[1,0]' % (v(240 + 2 * i, 2), v(224 + 2 * i, 2)))
            k('v_cvt_pk_bf16_f32 v%d, v%d, v%d' % (24 + i, 240 + 2 * i, 241 + 2 * i))
            k('v_cvt_pk_bf16_f32 v%d, v%d, v%d' % (28 + i, 224 + 2 * i, 225 + 2 * i))
        for b_, sp in ((24, 68), (28, 66)):
            k('v_permlane16_swap_b32 v%d, v%d' % (b_, b_ + 2))
            k('v_permlane16_swap_b32 v%d, v%d' % (b_ + 1, b_ + 3))
            t = k.vm('global_store_dwordx4 v%d, %s, s[%d:%d]%s' % (200 + ps, v(b_, 4), sp, sp + 1, SC))
        return t
    FPL = 'global_load_dwordx4 v[204:207], v217, s[14:15]' + SC
    FP_AT = E('FP_AT', 2)
    k.pre = (lambda: sync_check(k, 'fp', [FPL], chk_tags([204, 205, 206, 207], 210))) if FP_AT == 0 else (lambda: None)
    tsA = exchange_and_store(0, 'cvA', lambda: None)
    k.pre = lambda: None
    k.stamp(3)
    k.tw1 = []
    def w1l():
        n = len(k.tw1)
        k.tw1.append(k.vm('global_load_dwordx4 %s, v2, s[26:27] offset:%d%s' % (a(4 * n, 4), (n & 3) * 1024, W_SC)) if not E('NOW1', 0) else k.nvm)
        if (n & 3) == 3 and n < 31: k('s_add_u32 s26, s26, 4096'); k('s_addc_u32 s27, s27, 0')
    k.w1l = w1l
    F2A_AT = E('F2A_AT', 2); W1D = E('W1D', 3)
    for cc in range(4):
        st = cc & 1
        nxt = loads(cc + 1, st ^ 1, 8) if cc < 3 else hx_reads(1)
        if cc > 0: k.wait_all(vm=False)
        if cc == FP_AT and cc: sync_check(k, 'fp', [FPL], chk_tags([204, 205, 206, 207], 210))
        if cc == F2A_AT: k.wait(vm=tsA)
        if cc == F2A_AT or (cc == FP_AT and cc): k.barrier()
        if cc == F2A_AT: signal(k, 'f2a', O_F2, 208, 209)
        for n, (p, q) in enumerate(PB):
            if cc == FP_AT - 2 and n == 10: sync_issue(k, 'fp', FPL)
            mf(p + q, areg(st, p), breg(st, q))
            if n >= 1 and nxt: k.ds(nxt.pop(0))
            if cc >= FP_AT and n % W1D == 0 and len(k.tw1) < 32: w1l()
        assert not nxt
    k.stamp(10)
    k.PA = ['global_load_dwordx4 v[72:75], v218, s[14:15]' + SC]
    k.FL = 'global_load_dwordx4 v[164:167], v160, s[48:49]' + SC
    def mid():
        k('v_lshlrev_b32 v160, 4, v0')
        k('v_add_u32 v160, 0x%x, v160' % WS_FIN)
        k.tfin = k.vm(k.FL)
    k.tx1 = exchange_and_store(1, 'cvB', mid)
    if not E('C12POS', 0): sync_issue(k, 'f2a', *k.PA)
    while len(k.tw1) < 32: w1l()

ROT = E('ROT', 0)
def adv(k, p, c):
    if not ROT:
        k('s_add_u32 s%d, s%d, 4096\ns_addc_u32 s%d, s%d, 0' % (p, p, p + 1, p + 1)); return
    k('s_add_u32 s%d, s%d, 1' % (c, c))
    k('s_cmp_eq_u32 s%d, 7' % c)
    k('s_cselect_b32 s12, %d, s32' % (-24576))
    k('s_cselect_b32 s13, -1, 0')
    k('s_cselect_b32 s%d, 0, s%d' % (c, c))
    k('s_add_u32 s%d, s%d, s12' % (p, p))
    k('s_addc_u32 s%d, s%d, s13' % (p + 1, p + 1))

def w2reg(ks): return (a(128 + 8 * ks, 4), a(132 + 8 * ks, 4)) if ks < 16 else (v(160 + 8 * (ks - 16), 4), v(164 + 8 * (ks - 16), 4))
def w2_ops(k, ks):
    ops = []
    if E('NOW2', 0): return ops
    off = (ks & 3) * 1024
    ops.append(lambda: k.vm('global_load_dwordx4 %s, v2, s[76:77] offset:%d%s' % (w2reg(ks)[0], off, W_SC)))
    ops.append(lambda: k.vm('global_load_dwordx4 %s, v113, s[76:77] offset:%d%s' % (w2reg(ks)[1], off, W_SC)))
    if (ks & 3) == 3 and ks < 27: ops.append(lambda: adv(k, 76, 35))
    return ops

def sync_issue(k, name, *loads):
    k('s_cmp_lg_u32 s50, %d' % SYNCW)
    k('s_cbranch_scc1 L_%s_i' % name)
    for l in loads: raw(k, l)
    k('L_%s_i:' % name)
    k.__dict__.setdefault('pollmark', {})[name] = k.nvm

def sync_check(k, name, loads, check, extra=0):
    k('s_cmp_lg_u32 s50, %d' % SYNCW)
    k('s_cbranch_scc1 L_%s_w' % name)
    k('s_mov_b32 s80, 0')
    k('s_waitcnt vmcnt(%d)' % min(63, k.nvm - k.pollmark[name] + extra))
    k('L_%s_p:' % name)
    for c in check: k(c)
    retry_tail(k, name, list(loads) + ['s_waitcnt vmcnt(0)'], 1)

L_RD = 0

def mlp_phase(k):
    k('v_add_u32 v126, 0x2000, v218')
    PL = lambda r: 'global_load_dwordx4 v[72:75], v%d, s[14:15]%s' % (r, SC)
    k('s_lshl_b32 s8, s3, 2')
    k('s_lshr_b32 s9, s4, 3')
    k('s_add_u32 s8, s8, s9')
    k('s_and_b32 s9, s4, 7')
    k('v_add_u32 v113, 114688, v2')
    k('s_mul_i32 s51, s50, %d' % (28 * 1024))
    if ROT:
        k('s_lshr_b32 s35, s4, 3')
        k('s_lshl_b32 s35, s35, 1')
        k('s_add_u32 s35, s35, s9')
        k('s_cmp_ge_u32 s35, 7')
        k('s_cselect_b32 s60, 7, 0')
        k('s_sub_u32 s35, s35, s60')
        k('s_mov_b32 s33, s35')
        k('s_movk_i32 s32, 4096')
        k('s_lshl_b32 s60, s35, 12')
        k('s_add_u32 s51, s51, s60')
    k('s_mul_i32 s60, s9, %d' % (2 * 114688))
    k('s_add_u32 s60, s60, s51')
    ws_ptr(k, 76, WS_W2P, 60)
    k('s_mul_i32 s60, s8, 114688')
    k('s_add_u32 s60, s60, s51')
    ws_ptr(k, 22, WS_HID, 60)
    tr_addr32(k, 4, 1, 8, 9, 6, 8)
    k('v_add_u32 v5, 0x10000, v4')
    k('v_and_b32 v6, 31, v1')
    k('v_lshlrev_b32 v6, 3, v6')
    k('s_mul_i32 s62, s5, %d' % (2 * 114688))
    k('s_lshl_b32 s63, s6, 11')
    k('s_add_u32 s62, s62, s63')
    ws_ptr(k, 68, WS_HID, 62)
    k('s_lshl_b32 s62, s5, 9')
    add_ptr(k, 70, 14, 62)
    k('v_bfe_u32 v16, v1, 4, 1')
    k('v_xor_b32 v16, 1, v16')
    k('v_lshlrev_b32 v16, 10, v16')
    k('v_lshrrev_b32 v17, 5, v1')
    k('v_lshl_add_u32 v16, v17, 4, v16')
    k('v_add_u32 v16, %d, v16' % L_GS)
    k('v_lshlrev_b32 v17, 2, v0')
    k('v_add_u32 v17, %d, v17' % L_GS)
    k('v_lshlrev_b32 v18, 3, v0')
    k('v_add_u32 v18, %d, v18' % (L_GS + 2048))
    k('v_lshrrev_b32 v119, 5, v1')
    k('v_and_b32 v118, 31, v1')
    k('v_lshlrev_b32 v116, 8, v119')
    k('v_lshl_add_u32 v116, v118, 1, v116')
    k('v_lshlrev_b32 v117, 4, v119')
    k('v_lshl_add_u32 v118, v118, 10, v117')
    k('s_lshl_b32 s62, s9, 2')
    k('s_add_u32 s62, s62, s50')
    k('s_lshl_b32 s63, s8, 15')
    k('s_lshl_b32 s60, s62, 10')
    k('s_add_u32 s60, s60, s63')
    ws_ptr(k, 20, WS_X1T, 60)
    k('s_lshl_b32 s60, s62, 6')
    k('s_add_u32 s60, s60, %d' % (L_GS + 2048))
    k('v_add_u32 v117, s60, v117')
    k('s_lshl_b32 s60, s62, 5')
    k('s_add_u32 s60, s60, s63')
    add_ptr(k, 24, P_OUT, 60)
    k('s_lshl_b32 s60, s50, 13')
    k('v_add_u32 v120, s60, v2')
    k('s_lshl_b32 s60, s50, 11')
    k('v_add_u32 v121, s60, v2')
    k('s_lshr_b32 s60, s8, 1')
    k('s_lshl_b32 s60, s60, 6')
    k('s_add_u32 s60, s60, 0x%x' % O_F3)
    k('v_min_u32 v122, 13, v1')
    k('v_lshl_add_u32 v122, v122, 2, s60')
    k('s_lshl_b32 s10, s5, 6')
    k('s_lshl_b32 s61, s7, 2')
    k('s_add_u32 s10, s10, s61')
    k('s_mov_b32 s80, 0')
    k.wait(vm=k.tfin)
    k('L_fin_p:')
    k('v_cmp_ne_u32 vcc, s81, v167')
    retry_tail(k, 'fin', [k.FL, 's_waitcnt vmcnt(0)'])
    k('v_lshlrev_b32 v168, 16, v166')
    k('v_and_b32 v169, 0xffff0000, v166')
    k('v_mul_f32 v168, %s, v168' % f32(-math.log(2.0)))
    k('v_mul_f32 v169, %s, v169' % f32(-math.log(2.0)))
    k.ds('ds_write2st64_b32 v17, v164, v165 offset0:0 offset1:4')
    k.ds('ds_write_b64 v18, v[168:169]')
    C12POS = E('C12POS', 0)
    EARLYA = E('EARLYA', 0)
    def sigB(nm):
        k.wait(vm=k.tx1)
        k.barrier()
        signal(k, nm, O_F2 + 0x2000, 19, 20)
        k.stamp(11)
    k.wait_all(vm=False)
    if not EARLYA: sigB('f2b')
    xq = []
    w2q = []
    for ks in range(28): w2q += w2_ops(k, ks)
    w2q0 = w2q if not C12POS else []
    def c12_block():
        gt = [None] * 32
        for s_ in range(8): gt[s_] = k.ds('ds_read_b128 %s, v16 offset:%d' % (v(80 + 4 * (s_ % 8), 4), 32 * s_))
        for s_ in range(32):
            if C12POS and s_ == E('PA_AT', 8): sync_issue(k, 'f2a', *k.PA)
            k.wait(ds=gt[s_], vm=k.tw1[s_])
            k('v_mfma_f32_32x32x16_bf16 v[128:143], %s, %s, %s' % (a(4 * s_, 4), v(80 + 4 * (s_ % 8), 4), '0' if s_ == 0 else 'v[128:143]'))
            if EARLYA and s_ == E('SIGB_AT', 6): sigB('f2b')
            if xq: xq.pop(0)()
            elif w2q0: w2q0.pop(0)()
            if s_ >= 1 and s_ + 7 < 32: gt[s_ + 7] = k.ds('ds_read_b128 %s, v16 offset:%d' % (v(80 + 4 * ((s_ + 7) % 8), 4), 32 * (s_ + 7)))
        k.stamp(8)
    if C12POS: c12_block()
    sync_check(k, 'f2a', k.PA, chk_tags([72, 73, 74, 75], 114), extra=0 if (C12POS or EARLYA) else 1)
    k.barrier()
    k.stamp(12); k.stamp2(1)
    ctok = {}
    def chunk_ops(ps, c):
        ops = [lambda: k('s_add_u32 m0, s56, %d' % (ps * 65536 + c * 8192))]
        def ld(i): ctok[ps, c] = k.vm('global_load_lds_dwordx4 v2, s[28:29] offset:%d%s' % (i * 1024, LD_SC))
        for i in range(4): ops.append(lambda i=i: ld(i))
        if c < 3: ops.append(lambda: k('s_add_u32 s28, s28, 8192\ns_addc_u32 s29, s29, 0'))
        elif ps == 0: ops.append(lambda: k('s_add_u32 s28, s28, %d\ns_addc_u32 s29, s29, 0' % (0x100000 - 3 * 8192)))
        return ops
    k('s_cmp_ge_u32 s4, 28')
    k('s_cbranch_scc1 L_st_a')
    for c in range(4): xq.extend(chunk_ops(0, c))
    for _ in range(len(xq) if C12POS else E('XPRE', 5)): xq.pop(0)()
    k('s_branch L_st_b')
    k('L_st_a:')
    k('s_sub_u32 s11, s4, 28')
    k('s_lshl_b32 s60, s3, 2')
    k('s_add_u32 s11, s11, s60')
    k('s_lshl_b32 s60, s11, 15')
    k('s_lshl_b32 s61, s50, 13')
    k('s_add_u32 s60, s60, s61')
    ws_ptr(k, 28, WS_X1T, 60)
    k('v_add_u32 v7, 0x1000, v2')
    STL = ['global_load_dwordx4 %s, v%d, s[28:29] offset:%d%s' % (v(80 + 4 * i, 4), 2 if i < 4 else 7, (i & 3) * 1024, LD_SC) for i in range(8)]
    for x in STL: raw(k, x)
    if EARLYA:
        k('s_waitcnt vmcnt(8)')
        k.barrier()
        signal(k, 'f2bs', O_F2 + 0x2000, 19, 20)
    k('s_branch L_stats')
    k('L_st_b:')
    if not C12POS: c12_block()
    fix = ['v_mov_b32 v%d, v%d' % (144 + r, 128 + r) for r in range(16)]
    fix += ['v_permlane16_swap_b32 v%d, v%d' % (128 + r, 144 + r) for r in range(16)]
    fix += ['v_mul_f32 v%d, %s, v%d' % (144 + r, f32(-LOG2E), 144 + r) for r in range(16)]
    ACC = 16
    for _ in range(E('W2E', 12) if C12POS else 0):
        if w2q: w2q.pop(0)()
    SL = lambda ps: ['global_load_dwordx2 %s, v6, s[70:71] offset:%d%s' % (v(8 + 2 * u, 2), 256 * u, SC) for u in range(2)]
    htok = {}
    def hload(ps, s_):
        htok[ps, s_] = k.vm('global_load_dwordx4 %s, v2, s[22:23] offset:%d%s' % (a(4 * s_, 4), (s_ & 3) * 1024, LD_SC))
        if (s_ & 3) == 3:
            if s_ < 27: adv(k, 22, 33)
            elif ps == 0:
                if ROT: adv(k, 22, 33); k('s_add_u32 s22, s22, %d\ns_addc_u32 s23, s23, 0' % (32 * 114688))
                else: k('s_add_u32 s22, s22, %d\ns_addc_u32 s23, s23, 0' % (32 * 114688 - 6 * 4096))
    k.hload, k.htok = hload, htok
    F3L = lambda ps: 'global_load_dword v72, v122, s[14:15] offset:%d%s' % (1024 * ps, SC)
    W2D = E('W2D', 2)
    lstA = [None]
    for ps in range(2):
        def breg(s_, u): return 48 + 8 * (s_ % 3) + 4 * u
        rtok = {}
        def rd(s_, u):
            off = u * 32768 + s_ * 1024
            k.ds('ds_read_b64_tr_b16 %s, v%d offset:%d' % (v(breg(s_, u), 2), 4 + ps, off))
            rtok[s_, u] = k.ds('ds_read_b64_tr_b16 %s, v%d offset:%d' % (v(breg(s_, u) + 2, 2), 4 + ps, off + 256))
        k.stamp2(2 + 5 * ps)
        k.wait(vm=ctok[ps, 0]); k.barrier()
        k.stamp2(3 + 5 * ps)
        for s_ in range(2):
            for u in range(2): rd(s_, u)
        pend = []
        gap = 0
        for s_ in range(32):
            if s_ % 8 == 6 and s_ < 30:
                c = s_ // 8 + 1
                if ps == 0 and c == E('F2B_AT', 2): sync_check(k, 'f2b', [PL(126)], chk_tags([72, 73, 74, 75], 80))
                if ps == 1 and c == E('F3A_SIG', 2): k.wait(vm=lstA[0])
                k.wait(vm=ctok[ps, c]); k.barrier()
                if ps == 0 and c == E('F2B_AT', 2):
                    for c2 in range(4): pend += chunk_ops(1, c2)
                if ps == 1 and c == E('F3A_SIG', 2): signal(k, 'f3a', O_F3, 73, 74, nrep=1, sidx=10)
            if ps == 0 and s_ == 8 * E('F2B_AT', 2) - 2 - E('POLLD', 12): sync_issue(k, 'f2b', PL(126))
            if s_ == 16: k.stamp2(4 + 5 * ps)
            if s_ == 22:
                def sl(x): ctok['st'] = k.vm(x)
                for x in SL(ps): pend.append(lambda x=x: sl(x))
            for u in range(2):
                k.wait(ds=rtok[s_, u])
                k('v_mfma_f32_32x32x16_bf16 %s, %s, %s, %s' % (v(ACC + 16 * u, 16), a(4 * s_, 4), v(breg(s_, u), 4), '0' if s_ == 0 else v(ACC + 16 * u, 16)))
                if s_ + 2 < 32: rd(s_ + 2, u)
                if fix and s_ >= 2:
                    for _ in range(2): k(fix.pop(0))
                if pend: pend.pop(0)()
                elif w2q and gap % W2D == 0: w2q.pop(0)()
                gap += 1
        while pend: pend.pop(0)()
        k.stamp(13 if ps == 0 else 14); k.stamp2(5 + 5 * ps)
        k.wait(vm=ctok['st'])
        k('s_mov_b32 s80, 0')
        k('L_chk%d_p:' % ps)
        k('v_min_u32 v80, v9, v11')
        k('v_cmp_eq_u32 vcc, 0, v80')
        retry_tail(k, 'chk%d' % ps, SL(ps) + ['s_waitcnt vmcnt(0)'], 2)
        if ps == 0: k('s_add_u32 s70, s70, 0x2000\ns_addc_u32 s71, s71, 0')
        k('s_nop 7')
        k.stamp2(6 + 5 * ps)
        for u in range(2):
            b = 8 + 2 * u
            A_ = ACC + 16 * u
            for p in range(8):
                x = v(A_ + 2 * p, 2)
                k('v_pk_fma_f32 %s, %s, %s, %s op_sel_hi:[1,0,1] neg_lo:[0,1,0] neg_hi:[0,1,0]' % (x, v(128 + 2 * p, 2), v(b, 2), x))
            for p in range(8):
                x = v(A_ + 2 * p, 2)
                k('v_pk_fma_f32 %s, %s, %s, %s op_sel:[1,0,0] op_sel_hi:[1,1,1]' % (x, v(b, 2), x, v(144 + 2 * p, 2)))
            if ps == 1 and u == E('F3A_U', 0): sync_issue(k, 'f3a', F3L(0))
            W2EP = E('W2EP', 4)
            def tick(r):
                if w2q and W2EP and r % W2EP == W2EP - 1 and (u == 0 or E('W2EU', 0)): w2q.pop(0)()
            for r in range(16):
                k('v_exp_f32 v%d, v%d' % (80 + r, A_ + r)); tick(r)
            for p in range(8): k('v_pk_add_f32 %s, %s, 1.0 op_sel_hi:[1,0]' % (v(80 + 2 * p, 2), v(80 + 2 * p, 2)))
            for r in range(16):
                k('v_rcp_f32 v%d, v%d' % (80 + r, 80 + r)); tick(r)
            for p in range(8): k('v_pk_mul_f32 %s, %s, %s' % (v(A_ + 2 * p, 2), v(A_ + 2 * p, 2), v(80 + 2 * p, 2)))
            O = 96 + 8 * u
            for p in range(8): k('v_cvt_pk_bf16_f32 v%d, v%d, v%d' % (O + p, A_ + 2 * p, A_ + 2 * p + 1))
            k.vm('global_store_dwordx4 v%d, %s, s[68:69]%s' % (2 if u == 0 else 113, v(O, 4), SC))
            lst = k.vm('global_store_dwordx4 v%d, %s, s[68:69] offset:1024%s' % (2 if u == 0 else 113, v(O + 4, 4), SC))
        if ps == 0:
            lstA[0] = lst
            k('s_add_u32 s68, s68, %d\ns_addc_u32 s69, s69, 0' % (32 * 114688))
    print('w2 leftover ops', len(w2q))
    while w2q: w2q.pop(0)()
    sync_check(k, 'f3a', [F3L(0)], ['v_cmp_ne_u32 vcc, s81, v72'])
    k.barrier()
    k('s_add_u32 s10, s10, 1024')
    k('s_branch L_join')
    k('L_stats:')
    k.reset_counters()
    k('s_movk_i32 s10, 2048')
    k('s_lshl_b32 s62, s11, 8')
    add_ptr(k, 70, 14, 62)
    k('s_mov_b32 s62, 0xffff0000')
    k('v_lshlrev_b32 v3, 6, v0')
    k('v_bfe_u32 v4, v1, 3, 2')
    k('v_lshlrev_b32 v4, 6, v4')
    k('v_and_b32 v5, 7, v1')
    k('v_lshl_add_u32 v4, v5, 2, v4')
    k('v_lshrrev_b32 v5, 5, v1')
    k('v_lshl_add_u32 v4, v5, 13, v4')
    for ps in range(2):
        if ps == 1:
            poll(k, 'sf2b', [PL(126)], chk_tags([72, 73, 74, 75], 80))
            k('s_add_u32 s28, s28, 0x100000\ns_addc_u32 s29, s29, 0')
            k('s_add_u32 s70, s70, 0x2000\ns_addc_u32 s71, s71, 0')
        if ps == 0:
            xt = list(range(1, 9)); k.nvm = 8
        else: xt = [k.vm(x) for x in STL]
        for r in range(16): k('v_mov_b32 v%d, 0' % (16 + r))
        for i in range(8):
            k.wait(vm=xt[i])
            for j in range(4):
                r = 80 + 4 * i + j
                tt = 32 + 2 * (j & 1)
                k('v_lshlrev_b32 v%d, 16, v%d' % (tt, r))
                k('v_and_b32 v%d, s62, v%d' % (tt + 1, r))
                k('v_pk_add_f32 %s, %s, %s' % (v(16 + 2 * j, 2), v(16 + 2 * j, 2), v(tt, 2)))
                k('v_pk_fma_f32 %s, %s, %s, %s' % (v(24 + 2 * j, 2), v(tt, 2), v(tt, 2), v(24 + 2 * j, 2)))
        for pat in ('row_ror:4', 'row_ror:8'):
            for r in range(16): k('v_add_f32_dpp v%d, v%d, v%d %s row_mask:0xf bank_mask:0xf' % (16 + r, 16 + r, 16 + r, pat))
        for i in range(4): k.ds('ds_write_b128 v3, %s offset:%d' % (v(16 + 4 * i, 4), 16384 * ps + 16 * i))
        k.wait_all(vm=False)
        k.barrier()
        k('s_cmp_lg_u32 s50, 0')
        k('s_cbranch_scc1 L_st%d' % ps)
        for q in range(8):
            raw(k, 'ds_read_b32 v%d, v4 offset:%d' % (16 + 2 * q, 16384 * ps + 1024 * q))
            raw(k, 'ds_read_b32 v%d, v4 offset:%d' % (17 + 2 * q, 16384 * ps + 1024 * q + 32))
        k('s_waitcnt lgkmcnt(0)')
        for q in range(1, 8): k('v_pk_add_f32 v[16:17], v[16:17], %s' % v(16 + 2 * q, 2))
        k('v_mov_b64 v[18:19], v[16:17]')
        k('v_permlane32_swap_b32 v16, v18')
        k('v_permlane32_swap_b32 v17, v19')
        k('v_pk_add_f32 v[16:17], v[16:17], v[18:19]')
        k('v_mul_f32 v16, %s, v16' % f32(1.0 / 512))
        k('v_mul_f32 v17, %s, v17' % f32(1.0 / 512))
        k('v_fma_f32 v17, -v16, v16, v17')
        k('v_max_f32 v17, 0, v17')
        k('v_add_f32 v17, %s, v17' % f32(1e-5))
        k('v_rsq_f32 v17, v17')
        k('v_mul_f32 v17, %s, v17' % f32(-LOG2E))
        raw(k, 'global_store_dwordx2 v6, v[16:17], s[70:71]' + SC)
        k('L_st%d:' % ps)
    for ks in range(28):
        for op in w2_ops(k, ks): op()
    poll(k, 'sf3a', [F3L(0)], ['v_cmp_ne_u32 vcc, s81, v72'])
    k('L_join:')
    k.stamp(1); k.stamp2(12); k.stamp4(1)
    k.reset_counters()
    htok.clear()
    HA0 = E('HA0', 16)
    for s_ in range(HA0): hload(0, s_)
    for q in range(2): k.ds('ds_read_b128 %s, v117 offset:%d' % (v(96 + 4 * q, 4), 32 * q))
    for r in range(16): k('v_mov_b32 v%d, 0' % (80 + r))
    k('v_add_u32 v115, 0x100000, v116')
    k('v_add_u32 v119, 0x100000, v118')
    k.stamp4(2)
    k('s_waitcnt vmcnt(%d)' % HA0)
    k.barrier()
    signal(k, 'f3b', O_F3, 73, 74, nrep=1, sidx=10)
    aq = [lambda s_=s_: hload(0, s_) for s_ in range(HA0, 28)]
    trs = {}
    def rl(ps, q, r): trs[ps] = k.vm('global_load_short_d16_hi v%d, v%d, s[20:21] offset:%d%s' % (80 + 8 * ps + 4 * q + r, 116 - ps, (8 * q + r) * 64, LD_SC))
    for q in range(2):
        for r in range(4): aq.append(lambda q=q, r=r: rl(0, q, r))
    bq = [lambda q=q, r=r: rl(1, q, r) for q in range(2) for r in range(4)]
    FB = E('F3B_AT', 24); nh = [0]
    for ps in range(2):
        for s_ in range(28):
            k.wait(vm=htok[ps, s_])
            if s_ == 0: k.stamp2(13 + ps)
            if s_ in (0, 8, 16, 24): k.stamp4(3 + 6 * ps + s_ // 8)
            if ps == 0 and s_ == max(0, FB - E('F3B_D', 8)): sync_issue(k, 'f3b', F3L(1))
            if ps == 0 and s_ == FB:
                sync_check(k, 'f3b', [F3L(1)], ['v_cmp_ne_u32 vcc, s81, v72'])
                k.barrier()
                k.stamp(5); k.stamp4(7)
            for j in range(2):
                k('v_mfma_f32_32x32x16_bf16 %s, %s, %s, %s' % (v(ACC + 16 * j, 16), w2reg(s_)[j], a(4 * s_, 4), '0' if s_ == 0 else v(ACC + 16 * j, 16)))
                if ps == 0 and aq and (j == 0 or E('HAJ', 0)): aq.pop(0)()
                if ps == 1 and nh[0] < 28 and (j == 0 or E('HBJ', 0)): hload(1, nh[0]); nh[0] += 1
                elif ps == 1 and bq and s_ >= 10 and j == 0: bq.pop(0)()
                if ps == 0 and s_ >= FB:
                    for _ in range(E('HBR', 1)):
                        if nh[0] < s_ + j: hload(1, nh[0]); nh[0] += 1
        k.stamp4(8 + 5 * ps)
        for q in range(8):
            k.ds('ds_write_b128 v120, %s offset:%d' % (v(ACC + 4 * q, 4), 32768 * ps + q * 1024))
            if ps == 0 and FB < 28 and q % 2 == 1 and nh[0] < 28: hload(1, nh[0]); nh[0] += 1
        if ps == 0 and FB >= 28: sync_check(k, 'f3b', [F3L(1)], ['v_cmp_ne_u32 vcc, s81, v72'])
        k.wait_all(vm=False)
        k.barrier()
        if ps == 0 and FB >= 28:
            k.stamp(5)
            for _ in range(8): hload(1, nh[0]); nh[0] += 1
        if ps == 1: k.stamp4(14)
        rt_ = []
        for w_ in range(4):
            for q in range(2): t = k.ds('ds_read_b128 %s, v121 offset:%d' % (v(48 + 8 * w_ + 4 * q, 4), 32768 * ps + w_ * 8192 + q * 1024))
            rt_.append(t)
        while ps == 0 and nh[0] < E('HB1', 20): hload(1, nh[0]); nh[0] += 1
        k.wait(ds=rt_[1])
        for p in range(4): k('v_pk_add_f32 %s, %s, %s' % (v(48 + 2 * p, 2), v(48 + 2 * p, 2), v(56 + 2 * p, 2)))
        k.wait(ds=rt_[3])
        for p in range(4): k('v_pk_add_f32 %s, %s, %s' % (v(64 + 2 * p, 2), v(64 + 2 * p, 2), v(72 + 2 * p, 2)))
        k.wait(vm=trs[ps])
        for p in range(4):
            k('v_pk_add_f32 %s, %s, %s' % (v(48 + 2 * p, 2), v(48 + 2 * p, 2), v(64 + 2 * p, 2)))
            k('v_pk_fma_f32 %s, %s, %s, %s' % (v(48 + 2 * p, 2), v(48 + 2 * p, 2), v(96 + 2 * p, 2), v(80 + 8 * ps + 2 * p, 2)))
            k('v_cvt_pk_bf16_f32 v%d, v%d, v%d' % (104 + 4 * ps + p, 48 + 2 * p, 49 + 2 * p))
        b = 104 + 4 * ps
        k('v_permlane32_swap_b32 v%d, v%d' % (b, b + 2))
        k('v_permlane32_swap_b32 v%d, v%d' % (b + 1, b + 3))
        k.vm('global_store_dwordx4 v%d, %s, s[24:25]' % (118 + ps, v(b, 4)))

def build_single(path):
    k = Kern(NAME + '_kernel')
    phase0(k); conv_phase(k); mlp_phase(k)
    k.end()
    k('L_end:')
    k('s_endpgm')
    launch, (vg_, sg_, ac) = 'grid=(256,1,1) block=(256,1,1) lds=%d' % LDS_TOTAL, (512, 84, 256)
    out = [HEADER.rstrip(), '; @launch ' + launch, '.amdgcn_target "amdgcn-amd-amdhsa--gfx950"', k.text(vg_, sg_, ac), '.text\nL_text_end:\n    s_endpgm']
    print(k.name, k.stats)
    open(path, 'w').write('\n'.join(out) + '\n')

if __name__ == '__main__':
    build_single(sys.argv[1] if len(sys.argv) > 1 else ('diag.s' if DIAG else 'cdna_kernels/%s.s' % NAME))
```

```python
import os
from gen import *
E = lambda n, d: int(os.environ.get(n, str(d)))
WS_XG = 0x000000
WS_ST1 = 0x800000
WS_MODG = 0x820000
WS_FIN = 0x860000
WS_W1P = 0x1800000
WS_X1S = 0xB00000
WS_SYNC = 0xF00000
O_F2, O_F3 = 0x8000, 0xC000
L_T = 65536
L_CM = 98304; L_SC = 114688
L_STN = 118784; L_STX = 118784 + 8448 + 128
L_CV = 0; CHS = 21120
O_K1 = 4160; O_H = 8320; O_RED = 12928
L_X = 42240
L_W1 = 79872
NW1 = 16
L_SJ = L_W1 + NW1 * 4096
L_GS = L_SJ
LDS_TOTAL = L_SJ + 16384
O_FP = 0x6000
XS = E('XS', 16384 + 384)
SC = ' sc1'
LD_SC = os.environ.get('LD_SC', ' sc1')
W_SC = os.environ.get('W_SC', ' sc1')
TMO = 0x20000
SYNCW = 1
KSPLIT = E('KSPLIT', 1)

def raw(k, s_): k.lines.append('    ' + s_)

def retry_tail(k, name, loads, sleep=0):
    k('s_nop 0')
    k('s_cbranch_vccz L_%s_w' % name)
    k('s_add_u32 s80, s80, 1')
    k('s_cmp_gt_u32 s80, 0x%x' % TMO)
    k('s_cbranch_scc1 L_%s_w' % name)
    if sleep: k('s_sleep %d' % sleep)
    for l in loads: raw(k, l)
    k('s_branch L_%s_p' % name)
    k('L_%s_w:' % name)

def poll(k, name, loads, check):
    k('s_cmp_lg_u32 s50, %d' % SYNCW)
    k('s_cbranch_scc1 L_%s_w' % name)
    k('s_mov_b32 s80, 0')
    for l in loads: raw(k, l)
    k('L_%s_p:' % name)
    k('s_waitcnt vmcnt(0)')
    for c in check: k(c)
    retry_tail(k, name, loads, 1)
    k.barrier()

def signal(k, name, off, va, vd, nrep=8, sidx=None):
    k('s_cmp_lg_u32 s50, %d' % SYNCW)
    k('s_cbranch_scc1 L_%s_s' % name)
    if sidx is None:
        k('s_lshl_b32 s80, s2, 2')
        k('s_add_u32 s80, s80, 0x%x' % off)
    else:
        k('s_add_u32 s80, s%d, 0x%x' % (sidx, off))
    k('v_lshl_add_u32 v%d, v1, 10, s80' % va)
    k('v_mov_b32 v%d, s81' % vd)
    k('s_mov_b64 exec, %d' % ((1 << nrep) - 1))
    raw(k, 'global_store_dword v%d, v%d, s[14:15]%s' % (va, vd, SC))
    k('s_mov_b64 exec, -1')
    k('L_%s_s:' % name)

def chk_tags(regs, t):
    o = ['v_xor_b32 v%d, s81, v%d' % (t, regs[0])]
    for r in regs[1:]:
        o += ['v_xor_b32 v%d, s81, v%d' % (t + 1, r), 'v_or_b32 v%d, v%d, v%d' % (t, t, t + 1)]
    return o + ['v_cmp_ne_u32 vcc, 0, v%d' % t]

def phase0(k):
    load_ptrs(k)
    k('s_getpc_b64 s[82:83]')
    k('L_pf:')
    PFM = E('PFM', 1)
    if PFM == 0:
        k('v_lshlrev_b32 v255, 7, v0')
        k('v_min_u32 v255, L_text_end-L_pf-4, v255')
        raw(k, 'global_load_dword v255, v255, s[82:83]')
    else:
        N = E('PFN', 32)
        k('s_lshr_b32 s4, s2, 3')
        k('s_and_b32 s4, s4, %d' % (256 // N - 1))
        k('s_mul_i32 s4, s4, %d' % (N * 128))
        k('v_subrev_u32 v255, 192, v0')
        k('v_cmp_gt_u32 vcc, %d, v255' % N)
        k('v_lshl_add_u32 v255, v255, 7, s4')
        k('v_min_u32 v255, L_text_end-L_pf-4, v255')
        k('s_and_saveexec_b64 s[80:81], vcc')
        k('s_cbranch_execz L_pf2')
        raw(k, 'global_load_dword v255, v255, s[82:83]')
        k('L_pf2:')
        k('s_mov_b64 exec, -1')
    k('s_cmp_ge_u32 s2, 256')
    k('s_cbranch_scc1 L_end')
    k('s_memrealtime s[78:79]')
    wave_id(k, 50, 1)
    k('v_and_b32 v1, 63, v0')
    k('s_and_b32 s3, s2, 7')
    k('s_lshr_b32 s4, s2, 3')
    k('s_lshl_b32 s51, s3, 5')
    k('s_add_u32 s80, s51, s4')
    k('s_lshl_b32 s51, s80, 9')
    k('v_lshl_add_u32 v2, v0, 1, s51')
    for i in range(4, 11): k('v_mov_b32 v%d, 0' % i)
    k('s_lshr_b32 s52, s50, 1')
    k('s_lshl_b32 s53, s80, 1')
    k('s_add_u32 s53, s53, s52')
    k('s_lshl_b32 s54, s53, 1')
    k('v_mov_b32 v3, s54')
    k('v_lshrrev_b32 v77, 5, v0')
    k('v_and_b32 v78, 31, v0')
    k('v_lshlrev_b32 v78, 4, v78')
    k('v_lshl_add_u32 v79, v77, 10, v78')
    k('s_lshl_b32 s63, s2, 13')
    k('v_add_u32 v79, s63, v79')
    k.smem_wait()
    k('s_mov_b32 s34, s80')
    k('s_or_b32 s78, s78, 1')
    k('s_or_b32 s79, s2, s50')
    k('s_cmp_eq_u32 s79, 0')
    k('s_cbranch_scc0 L_nn')
    k('v_mov_b32 v250, s78')
    k('v_lshlrev_b32 v251, 6, v1')
    k('s_mov_b64 exec, 15')
    raw(k, 'global_store_dword v251, v250, s[%d:%d]%s' % (P_DBG, P_DBG + 1, SC))
    k('s_mov_b64 exec, -1')
    k('L_nn:')
    k.vm('global_load_short_d16_hi v10, v3, s[%d:%d]' % (P_LDT, P_LDT + 1))
    for i, p in enumerate((P_ARE, P_AIM, P_BRE, P_BIM, P_CRE, P_CIM)):
        tpar = k.vm('global_load_short_d16_hi v%d, v2, s[%d:%d]' % (4 + i, p, p + 1))
    k.vm('global_load_dwordx4 v[240:243], v79, s[%d:%d]' % (P_U, P_U + 1))
    tx = k.vm('global_load_dwordx4 v[244:247], v79, s[%d:%d] offset:512' % (P_U, P_U + 1))
    k('s_and_b32 s5, s4, 3')
    k('s_lshl_b32 s5, s5, 3')
    k('s_add_u32 s5, s5, s3')
    k('s_lshl_b32 s5, s5, 1')
    k('s_bfe_u32 s6, s4, 0x10002')
    k('s_add_u32 s5, s5, s6')
    k('s_lshr_b32 s6, s4, 3')
    k('s_cmp_ge_u32 s5, 48')
    k('s_cselect_b32 s7, 16, 0')
    k('s_add_u32 s7, s7, s5')
    k('s_lshl_b32 s7, s7, 6')
    k('s_lshl_b32 s8, s6, 2')
    k('s_add_u32 s8, s8, s50')
    k('s_mul_i32 s9, s8, %d' % (32 * 6144))
    k('s_add_u32 s7, s7, s9')
    k('v_lshrrev_b32 v250, 2, v1')
    k('v_mul_u32_u24 v254, 6144, v250')
    k('v_and_b32 v251, 3, v1')
    k('v_lshl_add_u32 v254, v251, 4, v254')
    k('s_lshl_b32 s9, s50, 12')
    k('s_add_u32 s9, s9, %d' % L_CM)
    k('v_mov_b32 v231, v254')
    k('s_lshl_b32 s8, s8, 6')
    k('s_and_b32 s64, s4, 1')
    k('s_lshl_b32 s64, s64, 3')
    k('s_add_u32 s64, s64, s3')
    k('s_lshl_b32 s64, s64, 1')
    k('s_bfe_u32 s65, s4, 0x10001')
    k('s_add_u32 s64, s64, s65')
    k('s_lshr_b32 s65, s4, 2')
    k('s_cmp_ge_u32 s64, 16')
    k('s_cselect_b32 s66, 64, 48')
    k('s_add_u32 s66, s66, s64')
    k('s_lshl_b32 s66, s66, 6')
    k('s_lshl_b32 s67, s65, 2')
    k('s_add_u32 s67, s67, s50')
    k('s_mul_i32 s68, s67, %d' % (16 * 6144))
    k('s_add_u32 s66, s66, s68')
    k('s_lshl_b32 s67, s67, 5')
    k('s_sub_u32 s67, s67, 64')
    k('v_min_u32 v248, 23, v1')
    k('v_cmp_gt_u32 vcc, 16, v248')
    k('v_mov_b32 v250, s67')
    k('v_mov_b32 v251, s8')
    k('v_cndmask_b32 v250, v250, v251, vcc')
    k('v_lshl_add_u32 v248, v248, 2, v250')
    tc = k.vm('global_load_dword v248, v248, s[%d:%d]' % (P_C, P_C + 1))
    k('s_lshl_b32 s60, s34, 2')
    k('s_load_dword s30, s[%d:%d], s60' % (P_DSK, P_DSK + 1))
    if E('W1T', 0):
        k('s_and_b32 s75, s3, 1')
        k('s_mul_i32 s75, s75, 7')
        k('s_lshr_b32 s76, s4, 2')
        k('s_add_u32 s75, s75, s76')
        k('s_min_u32 s75, s75, 13')
        k('s_lshl_b32 s75, s75, 8')
        k('s_and_b32 s76, s4, 3')
        k('s_mul_i32 s76, s76, %d' % (128 * 3584))
        k('s_add_u32 s75, s75, s76')
        k('v_lshrrev_b32 v237, 1, v0')
        k('v_mul_u32_u24 v237, 3584, v237')
        k('v_and_b32 v238, 1, v0')
        k('v_lshl_add_u32 v237, v238, 7, v237')
        k('v_add_u32 v237, s75, v237')
        k.vm('global_load_dword a200, v237, s[%d:%d]' % (P_W1, P_W1 + 1))
    if E('W2T', 0):
        k('s_min_u32 s75, s2, 111')
        k('s_lshl_b32 s75, s75, 14')
        k('v_and_b32 v238, 127, v0')
        k('v_lshl_add_u32 v238, v238, 7, s75')
        k.vm('global_load_dword a201, v238, s[%d:%d]' % (P_W2, P_W2 + 1))
    k('s_cmp_lt_u32 s2, 112')
    k('s_cbranch_scc0 L_pj_w1')
    k('s_lshl_b32 s76, s2, 14')
    k('s_lshl_b32 s70, s50, 12')
    k('s_add_u32 s76, s76, s70')
    add_ptr(k, 72, P_W2, 76)
    k('s_add_u32 s31, s70, %d' % L_SJ)
    k('s_movk_i32 s79, 1024')
    for r in range(4):
        k('v_xor_b32 v%d, %d, v1' % (224 + r, r << 2))
        k('v_lshlrev_b32 v%d, 4, v%d' % (224 + r, 224 + r))
        if r: k('v_add_u32 v%d, %d, v%d' % (224 + r, 1024 * r, 224 + r))
    k('s_branch L_pj_go')
    k('L_pj_w1:')
    k('s_sub_u32 s75, s2, 112')
    k('s_min_u32 s75, s75, 111')
    k('s_and_b32 s26, s75, 7')
    k('s_lshr_b32 s27, s75, 3')
    k('s_lshl_b32 s75, s26, 4')
    k('s_add_u32 s75, s75, s50')
    k('s_mul_i32 s75, s75, %d' % (4 * 3584))
    k('s_lshl_b32 s76, s27, 8')
    k('s_add_u32 s75, s75, s76')
    add_ptr(k, 72, P_W1, 75)
    k('s_lshl_b32 s31, s50, 10')
    k('s_add_u32 s31, s31, %d' % L_SJ)
    k('s_movk_i32 s79, 4096')
    k('v_lshrrev_b32 v228, 4, v1')
    k('v_and_b32 v229, 15, v1')
    k('v_lshlrev_b32 v230, 2, v228')
    k('v_xor_b32 v230, v230, v229')
    k('v_mul_u32_u24 v224, 3584, v228')
    k('v_lshl_add_u32 v224, v230, 4, v224')
    for r in range(1, 4): k('v_add_u32 v%d, %d, v224' % (224 + r, r * 16 * 3584))
    k('L_pj_go:')
    def pkdma(r):
        k('s_mov_b32 m0, s31')
        k.tpk = k.vm('global_load_lds_dwordx4 v%d, s[72:73]' % (224 + r))
        k('s_add_u32 s31, s31, s79')
    SNON = 0
    if SNON:
        add_ptr(k, 10, P_WMOD, 7)
        k('s_mov_b32 m0, s9')
        k.vm('global_load_lds_dwordx4 v231, s[10:11]')
        k('s_add_u32 s10, s10, %d' % (16 * 6144 - 1024))
        k('s_addc_u32 s11, s11, 0')
        k.vm('global_load_lds_dwordx4 v231, s[10:11] offset:1024')
        add_ptr(k, 10, P_WMOD, 66)
        k('s_add_u32 m0, s9, 2048')
        tcm = k.vm('global_load_lds_dwordx4 v231, s[10:11]')
        for r in range(4): pkdma(r)
    k('s_and_b32 s75, s5, 15')
    k('s_lshl_b32 s75, s75, 13')
    k('s_lshr_b32 s76, s5, 4')
    k('s_lshl_b32 s76, s76, 6')
    k('s_add_u32 s75, s75, s76')
    k('s_lshl_b32 s76, s6, 3')
    k('s_add_u32 s75, s75, s76')
    k('s_and_b32 s76, s64, 15')
    k('s_lshl_b32 s76, s76, 13')
    k('s_lshr_b32 s77, s64, 4')
    k('s_lshl_b32 s77, s77, 7')
    k('s_add_u32 s76, s76, s77')
    k('s_lshl_b32 s77, s65, 3')
    k('s_add_u32 s76, s76, s77')
    k('s_add_u32 s76, s76, 256')
    k('s_cmp_eq_u32 s50, 0')
    k('s_cselect_b32 s75, s75, s76')
    ws_ptr(k, 16, WS_MODG, 75)
    k('v_mov_b32 v12, 0\nv_mov_b32 v13, 0\nv_mov_b32 v14, 0\nv_mov_b32 v15, 0')
    ws_ptr(k, 14, WS_SYNC)
    tr_addr32(k, 254, 1, 250, 251, 6, 8)
    k('v_add_u32 v254, s9, v254')
    k('v_and_b32 v40, 31, v1')
    k('v_lshrrev_b32 v41, 5, v1')
    k('v_lshrrev_b32 v253, 1, v40')
    k('v_lshlrev_b32 v253, 9, v253')
    k('v_and_b32 v250, 1, v40')
    k('s_add_u32 s75, s50, 5')
    k('v_lshlrev_b32 v250, s75, v250')
    k('v_add_u32 v253, v253, v250')
    k('v_mul_u32_u24 v11, 1056, v77')
    k('v_add_u32 v11, v11, v78')
    k('v_add_u32 v11, %d, v11' % L_STN)
    k('v_bfe_u32 v56, v1, 2, 3')
    k('v_mul_u32_u24 v236, 1056, v56')
    k('v_and_b32 v57, 3, v1')
    k('v_lshl_add_u32 v236, v57, 3, v236')
    k('v_lshl_add_u32 v236, v41, 5, v236')
    k('s_lshl_b32 s75, s50, 8')
    k('s_add_u32 s75, s75, %d' % L_STN)
    k('v_add_u32 v236, s75, v236')
    k('v_and_b32 v57, 15, v1')
    k('v_lshl_add_u32 v57, v41, 4, v57')
    k('v_lshlrev_b32 v235, 5, v57')
    k('v_bfe_u32 v57, v1, 4, 1')
    k('v_lshl_add_u32 v235, v57, 4, v235')
    k('s_lshl_b32 s75, s2, 10')
    k('s_lshl_b32 s76, s50, 20')
    k('s_add_u32 s75, s75, s76')
    ws_ptr(k, 12, WS_XG, 75)
    k('s_lshl_b32 s75, s2, 6')
    k('s_lshl_b32 s76, s50, 4')
    k('s_add_u32 s75, s75, s76')
    ws_ptr(k, 24, WS_ST1, 75)
    k('s_mov_b32 s58, 0xffff0000')
    k('s_mov_b32 s63, 0x3f803f80')
    k('v_lshlrev_b32 v249, 2, v0')
    k('v_add_u32 v249, %d, v249' % L_SC)
    k('v_lshlrev_b32 v233, 4, v41')
    k('s_lshl_b32 s75, s50, 8')
    k('s_add_u32 s75, s75, %d' % L_SC)
    k('v_add_u32 v233, s75, v233')
    k('s_lshl_b32 s75, s50, 10')
    k('v_lshl_add_u32 v252, v1, 2, s75')
    k('v_add_u32 v252, %d, v252' % (L_SC + 1024))
    k('s_lshl_b32 s55, s50, 14')
    k('v_lshl_add_u32 v16, v1, 2, s55')
    for r in range(1, 16): k('v_xor_b32 v%d, %d, v16' % (16 + r, r << 4))
    k('v_and_b32 v42, 15, v1')
    k('v_xor_b32 v42, v42, v41')
    k('v_lshlrev_b32 v42, 4, v42')
    k('v_lshl_add_u32 v42, v40, 8, v42')
    k('v_add_u32 v32, s55, v42')
    for ks in range(1, 8): k('v_xor_b32 v%d, %d, v32' % (32 + ks, ks << 5))
    k('s_mul_i32 s56, s52, 6912')
    k('s_add_u32 s56, s56, %d' % (L_T - 0x3F00 * 4))
    k('v_lshlrev_b32 v42, 3, v40')
    k('v_cvt_f32_u32 v42, v42')
    k('v_cvt_f32_u32 v43, v41')
    c0 = [0, 1, 2, 3, 256, 258, 260, 262]
    c1 = [4, 5, 6, 7, 512, 516, 768, 772]
    for r in range(8):
        k('v_fmamk_f32 v56, v43, %s, v42' % f32(c1[r] - c0[r]))
        if c0[r]: k('v_add_f32 v56, %s, v56' % f32(c0[r]))
        else: k('v_max_f32 v56, 0.5, v56')
        k('v_cvt_pk_bf16_f32 v56, v56, 0')
        k('v_lshl_add_u32 v%d, v56, 2, s56' % (44 + r))
    k('v_cmp_eq_u32 vcc, 32, v1')
    k('v_fmaak_f32 v57, 4.0, v42, %s' % f32(4096.0))
    k('v_mov_b32 v58, %s' % f32(2048.0))
    k('v_cndmask_b32 v58, v57, v58, vcc')
    k('v_cmp_lt_u32 vcc, 31, v1')
    for r in range(8, 12):
        k('v_add_f32 v56, %s, v42' % f32(1024 + 256 * (r - 8)))
        k('v_cndmask_b32 v56, v56, v%d, vcc' % (58 if r == 8 else 57))
        k('v_cvt_pk_bf16_f32 v56, v56, 0')
        k('v_lshl_add_u32 v%d, v56, 2, s56' % (44 + r))
    k('v_and_b32 v59, 127, v0')
    k('v_lshlrev_b32 v56, 4, v59')
    k('v_sub_u32 v56, 2047, v56')
    k('v_cvt_f32_u32 v57, v56')
    for i in range(17):
        if i: k('v_add_f32 v56, %s, v57' % f32(-float(i)))
        else: k('v_mov_b32 v56, v57')
        if i >= 15: k('v_max_f32 v56, 0.5, v56')
        k('v_cvt_pk_bf16_f32 v56, v56, 0')
        k('v_lshl_add_u32 v%d, v56, 2, s56' % (60 + i))
    k('s_mov_b32 s57, 0x07060302')
    k('s_mov_b32 s59, %s' % f32(LOG2E))
    lo_log2e = LOG2E - struct.unpack('<f', struct.pack('<f', LOG2E))[0]
    inv2pi = 1.0 / (2 * math.pi)
    inv2pi_f = struct.unpack('<f', struct.pack('<f', inv2pi))[0]
    k('s_mov_b32 s60, %s' % f32(inv2pi_f))
    k('s_mov_b32 s61, %s' % f32(inv2pi - inv2pi_f))
    k('s_mov_b32 s62, %s' % f32(lo_log2e))
    k('s_lshl_b32 s75, s50, 6')
    k('v_mov_b32 v234, s75')
    NL = 'global_load_dword v232, v234, s[%d:%d]%s' % (P_DBG, P_DBG + 1, SC)
    if not SNON:
        tn = k.vm(NL)
        add_ptr(k, 10, P_WMOD, 7)
        k('s_mov_b32 m0, s9')
        k.vm('global_load_lds_dwordx4 v231, s[10:11]')
        k('s_add_u32 s10, s10, %d' % (16 * 6144 - 1024))
        k('s_addc_u32 s11, s11, 0')
        k.vm('global_load_lds_dwordx4 v231, s[10:11] offset:1024')
        add_ptr(k, 10, P_WMOD, 66)
        k('s_add_u32 m0, s9, 2048')
        tcm = k.vm('global_load_lds_dwordx4 v231, s[10:11]')
        for r in range(4): pkdma(r)
    k('s_cmp_lt_u32 s2, 112')
    k('s_cbranch_scc0 L_pa_w1')
    tr_addr32(k, 224, 1, 250, 251, 10, 4)
    k('s_lshl_b32 s76, s50, 8')
    k('s_add_u32 s76, s76, %d' % L_SJ)
    k('v_add_u32 v224, s76, v224')
    k('v_bfe_u32 v251, v1, 2, 2')
    k('v_lshlrev_b32 v251, 6, v251')
    k('v_xor_b32 v224, v224, v251')
    for q in range(1, 4): k('v_xor_b32 v%d, %d, v224' % (224 + q, q << 6))
    k('s_mul_i32 s76, s50, %d' % (4 * 114688))
    k('s_lshl_b32 s75, s2, 10')
    k('s_add_u32 s76, s76, s75')
    ws_ptr(k, 70, WS_W2P, 76)
    k('s_mov_b32 s75, 114688')
    k('s_movk_i32 s76, 8192')
    k('s_branch L_pa_go')
    k('L_pa_w1:')
    tr_addr32(k, 224, 1, 250, 251, 8, 8)
    k('v_bfe_u32 v251, v1, 2, 2')
    k('v_xor_b32 v251, s50, v251')
    k('v_lshl_add_u32 v224, v251, 6, v224')
    k('v_add_u32 v224, %d, v224' % L_SJ)
    for q in range(1, 4): k('v_add_u32 v%d, %d, v224' % (224 + q, q * 4096))
    k('s_lshl_b32 s76, s27, 2')
    k('s_add_u32 s76, s76, s50')
    k('s_lshl_b32 s76, s76, 15')
    k('s_lshl_b32 s75, s26, 12')
    k('s_add_u32 s76, s76, s75')
    ws_ptr(k, 70, WS_W1P, 76)
    k('s_movk_i32 s75, 1024')
    k('s_movk_i32 s76, 1024')
    k('L_pa_go:')
    for q in range(4): k('v_add_u32 v%d, s76, v%d' % (228 + q, 224 + q))
    k('v_lshlrev_b32 v223, 4, v1')
    k('v_add_u32 v237, s75, v223')
    k('v_add_u32 v238, s75, v237')
    k('v_add_u32 v239, s75, v238')
    k('s_lshr_b32 s5, s3, 1')
    k('s_lshl_b32 s5, s5, 2')
    k('s_and_b32 s75, s4, 3')
    k('s_add_u32 s5, s5, s75')
    k('s_and_b32 s7, s3, 1')
    k('s_mul_i32 s7, s7, 7')
    k('s_lshr_b32 s75, s4, 2')
    k('s_add_u32 s7, s7, s75')
    k('s_min_u32 s7, s7, 13')
    k('s_lshl_b32 s6, s7, 2')
    k('s_add_u32 s6, s6, s50')
    k.smem_wait()
    k.wait(vm=tpar)
    k('v_mov_b32 v255, v223')
    k.stamp(2); k.stamp3(1)
    if SNON: k('s_load_dword s81, s[%d:%d], 0 glc' % (P_DBG, P_DBG + 1))
    k('v_mul_f32 v78, s59, v10')
    k('v_fma_f32 v79, v10, s59, -v78')
    k('v_fma_f32 v79, v10, s62, v79')
    k('v_exp_f32 v78, v78')
    k('v_mul_f32 v79, %s, v79' % f32(math.log(2.0)))
    k('v_fma_f32 v78, v78, v79, v78')
    k('v_cvt_pk_bf16_f32 v78, v78, v78')
    k('v_and_b32 v78, s58, v78')
    k('v_mul_f32 v4, v78, v4')
    k('v_mul_f32 v5, v78, v5')
    k('v_mul_f32 v152, v78, v6')
    k('v_mul_f32 v154, v78, v7')
    E0 = 96
    cmul1(k, E0, 8, 152); cmul2(k, E0, 8, 152)
    k('v_mul_f32 v4, s59, v4')
    Z1, Z256, Z8, Z128 = 80, 84, 152, 156
    def zpow(dst, p, conj, t):
        pf = f32(float(p))
        return ['v_mul_f32 v%d, %s, v4' % (t, pf), 'v_mul_f32 v%d, %s, v5' % (t + 1, pf), 'v_exp_f32 v%d, v%d' % (t, t),
                'v_mul_f32 v%d, s60, v%d' % (t + 2, t + 1), 'v_fma_f32 v%d, v%d, s60, -v%d' % (t + 3, t + 1, t + 2),
                'v_fma_f32 v%d, v%d, s61, v%d' % (t + 3, t + 1, t + 3), 'v_fract_f32 v%d, v%d' % (t + 2, t + 2),
                'v_add_f32 v%d, v%d, v%d' % (t + 2, t + 2, t + 3), 'v_cos_f32 v%d, v%d' % (t + 3, t + 2), 'v_sin_f32 v%d, v%d' % (t + 2, t + 2),
                'v_mul_f32 v%d, v%d, v%d' % (dst, t, t + 3), 'v_mul_f32 v%d, v%d, %sv%d' % (dst + 2, t, '-' if conj else '', t + 2)]
    for p_, q_ in ((zpow(Z1, 1, False, 88), zpow(Z256, 256, False, 92)), (zpow(Z8, 8, True, 88), zpow(Z128, 128, True, 92))):
        for x, y in zip(p_, q_): k(x); k(y)
    T0 = 140
    def split_a(e, i):
        t = T0 + 6 * (i & 1)
        if not KSPLIT:
            k('v_cvt_pk_bf16_f32 v%d, v%d, v%d' % (t + 4, e, e + 1)); return
        k('v_perm_b32 v%d, v%d, v%d, s57' % (t + 4, e + 1, e))
        k('v_and_b32 v%d, s58, v%d' % (t, e))
        k('v_and_b32 v%d, s58, v%d' % (t + 1, e + 1))
    def split_b(e, i, row):
        t = T0 + 6 * (i & 1)
        if not KSPLIT: return k.ds('ds_write_b32 v%d, v%d offset:%d' % (16 + (row & 15), t + 4, row * 256))
        k('v_pk_add_f32 %s, %s, %s neg_lo:[0,1] neg_hi:[0,1]' % (v(t + 2, 2), v(e, 2), v(t, 2)))
        k('v_cvt_pk_bf16_f32 v%d, v%d, v%d' % (t + 5, t + 2, t + 3))
        return k.ds('ds_write2st64_b32 v%d, v%d, v%d offset0:%d offset1:%d' % (16 + (row & 15), t + 4, t + 5, row, 32 + row))
    hi = {r: (r - 1, Z1) for r in range(1, 8)}
    hi.update({8: (0, Z256), 9: (2, Z256), 10: (4, Z256), 11: (6, Z256), 12: (8, Z256), 13: (10, Z256), 14: (12, Z256), 15: (13, Z256),
               16: (14, Z256), 17: (16, Z256), 18: (17, Z256), 19: (18, Z256), 20: (19, Z256)})
    order = [0, 1, 8, 2, 12, 3, 14, 4, 16, 5, 17, 6, 18, 7, 19, 9, 20, 10, 11, 13, 15]
    for i, r in enumerate(order):
        nxt = order[i + 1] if i + 1 < len(order) else None
        if nxt is not None: cmul1(k, E0 + 2 * nxt, E0 + 2 * hi[nxt][0], hi[nxt][1])
        split_a(E0 + 2 * r, i)
        if nxt is not None: cmul2(k, E0 + 2 * nxt, E0 + 2 * hi[nxt][0], hi[nxt][1])
        split_b(E0 + 2 * r, i, r)
    AH, AL = 160, 192
    for ks in range(8):
        k.ds('ds_read_b128 %s, v%d' % (v(AH + 4 * ks, 4), 32 + ks))
        if KSPLIT: k.ds('ds_read_b128 %s, v%d offset:8192' % (v(AL + 4 * ks, 4), 32 + ks))
    for i in range(4): k('v_mov_b32 v%d, 0' % (96 + i))
    k.stamp3(2)
    k.wait(vm=tx)
    k.stamp3(3)
    for i in range(2): k.ds('ds_write_b128 v11, %s offset:%d' % (v(240 + 4 * i, 4), 512 * i))
    for j in range(8):
        k('v_dot2c_f32_bf16 v%d, s63, v%d' % (96 + (j & 1), 240 + j))
        k('v_dot2c_f32_bf16 v%d, v%d, v%d' % (98 + (j & 1), 240 + j, 240 + j))
    if SNON:
        k.wait(vm=tc)
        k.smem_wait()
        k('v_mov_b32 v232, s81')
    else: k.wait(vm=tn)
    k('s_mov_b32 s80, 0')
    k('L_non_p:')
    k('v_cmp_eq_u32 vcc, 0, v232')
    retry_tail(k, 'non', [NL, 's_waitcnt vmcnt(0)'])
    k('v_readfirstlane_b32 s81, v232')
    k.stamp3(4)
    GR = [100 + 4 * q for q in range(3)] + [120]
    for q in range(4): k('v_mov_b32 v%d, v232\nv_mov_b32 v%d, v232' % (GR[q] + 2, GR[q] + 3))
    k.wait_all(vm=False)
    k.barrier()
    tq = [k.ds('ds_read_b64_tr_b16 %s, v236 offset:%d' % (v(GR[q], 2), 64 * q)) for q in range(4)]
    k('v_lshlrev_b32 v116, 16, v248')
    k('v_and_b32 v117, s58, v248')
    k('v_add_f32 v96, v96, v97')
    k('v_add_f32 v98, v98, v99')
    nm = 'v_mul_f32 v%%d, %s, v%%d' % f32(-LOG2E)
    silu = [nm % (118, 116), nm % (119, 117), 'v_exp_f32 v118, v118', 'v_exp_f32 v119, v119', 'v_add_f32 v118, 1.0, v118', 'v_add_f32 v119, 1.0, v119',
            'v_rcp_f32 v118, v118', 'v_rcp_f32 v119, v119', 'v_mul_f32 v116, v116, v118', 'v_mul_f32 v117, v117, v119', 'v_cvt_pk_bf16_f32 v116, v116, v117']
    for pat in ('quad_perm:[1,0,3,2]', 'quad_perm:[2,3,0,1]', 'row_half_mirror', 'row_mirror'):
        k(silu.pop(0)); k(silu.pop(0))
        k('v_add_f32_dpp v96, v96, v96 %s row_mask:0xf bank_mask:0xf' % pat)
        k('v_add_f32_dpp v98, v98, v98 %s row_mask:0xf bank_mask:0xf' % pat)
    k('v_mov_b32 v97, v96')
    k('v_mov_b32 v99, v98')
    for q in range(4):
        k.wait(ds=tq[q])
        k.vm('global_store_dwordx4 v235, %s, s[12:13]%s' % (v(GR[q], 4), SC))
        if q < 3: k('s_add_u32 s12, s12, 0x40000'); k('s_addc_u32 s13, s13, 0')
    while silu: k(silu.pop(0))
    k.ds('ds_write_b32 v249, v116')
    k('v_permlane16_swap_b32 v96, v97')
    k('v_permlane16_swap_b32 v98, v99')
    for ks in range(3): k.ds('ds_read_b128 %s, v233 offset:%d' % (a(32 + 4 * ks, 4), 32 * ks))
    k('v_add_f32 v96, v96, v97')
    k('v_add_f32 v98, v98, v99')
    k('v_mul_f32 v96, %s, v96' % f32(1.0 / 512))
    k('v_mul_f32 v98, %s, v98' % f32(1.0 / 512))
    k('v_fma_f32 v98, -v96, v96, v98')
    k('v_max_f32 v98, 0, v98')
    k('v_add_f32 v98, %s, v98' % f32(1e-5))
    k('v_rsq_f32 v240, v98')
    k('v_mul_f32 v242, v96, v240')
    k('v_mov_b32 v241, v240')
    k('v_mov_b32 v243, v242')
    k('v_permlane32_swap_b32 v240, v241')
    k('v_permlane32_swap_b32 v242, v243')
    k('v_cvt_pk_bf16_f32 v242, v242, v243')
    k('v_mov_b32 v243, v232')
    k('s_mov_b64 exec, 1')
    k.vm('global_store_dwordx4 v12, v[240:243], s[24:25]' + SC)
    k('s_mov_b64 exec, -1')
    def mod_a():
        k.stamp3(6)
        k.wait(vm=tcm)
        k.stamp3(7)
        for ks in range(3):
            k.ds('ds_read_b64_tr_b16 %s, v254 offset:%d' % (a(48 + 4 * ks, 2), ks * 1024))
            k.tmr = k.ds('ds_read_b64_tr_b16 %s, v254 offset:%d' % (a(50 + 4 * ks, 2), ks * 1024 + 256))
    def mod_b():
        k.wait(ds=k.tmr)
        k('v_mfma_f32_32x32x16_bf16 a[64:79], a[32:35], a[48:51], 0')
        k('v_mfma_f32_32x32x16_bf16 a[80:95], a[40:43], a[56:59], 0')
        k('v_mfma_f32_32x32x16_bf16 a[64:79], a[36:39], a[52:55], a[64:79]')
    def mod_c():
        k.ds('ds_write_b32 v249, a80 offset:2048')
        k.ds('ds_write_b32 v249, a64 offset:1024')
        k.stamp3(8)
        k.wait_all(vm=False)
        k.barrier()
        k.stamp3(9)
        for i in range(4): k.tp = k.ds('ds_read_b32 v%d, v252 offset:%d' % (244 + i, 256 * i))
    def mod_d():
        k.wait(ds=k.tp)
        k('s_cmp_ge_u32 s50, 2')
        k('s_cbranch_scc1 L_cm2')
        k('v_add_f32 v244, v244, v245')
        k('v_add_f32 v246, v246, v247')
        k('v_add_f32 v244, v244, v246')
        k('v_mov_b32 v245, v232')
        raw(k, 'global_store_dwordx2 v253, v[244:245], s[16:17]' + SC)
        k('s_branch L_cm3')
        k('L_cm2:')
        k('v_and_b32 v246, 15, v1')
        k('s_lshl_b32 s75, s2, 6')
        k('v_lshl_add_u32 v246, v246, 2, s75')
        raw(k, 'global_store_dword v246, v12, s[14:15]' + SC)
        k('L_cm3:')
    def pack_out():
        for q in range(4):
            k.ds('ds_read_b64_tr_b16 %s, v%d' % (a(4 * q, 2), 224 + q))
            pt = k.ds('ds_read_b64_tr_b16 %s, v%d' % (a(4 * q + 2, 2), 228 + q))
        k.wait(ds=pt)
        k('s_cmp_ge_u32 s2, 224')
        k('s_cbranch_scc1 L_pk_no')
        for q in range(4): raw(k, 'global_store_dwordx4 v%d, %s, s[70:71]%s' % (255 if q == 0 else 236 + q, a(4 * q, 4), SC))
        k('L_pk_no:')
        k.tall = k.nvm
    k('s_nop 1')
    k.stamp(4); k.stamp3(5)
    eq = []
    L0 = 96
    k('v_mov_b32 v%d, 1.0' % L0)
    k('v_mov_b32 v%d, 0' % (L0 + 1))
    lo_order = []
    for m in range(16): lo_order += [m, 16 + m]
    def lreg(m): return L0 + 2 * m if m < 16 else 132 + 2 * (m & 1)
    def lsrc(m): return (lreg(m - 1), Z8) if m < 16 else (lreg(m - 16), Z128)
    for i, m in enumerate(lo_order):
        nxt = lo_order[i + 1] if i + 1 < len(lo_order) else None
        if nxt is not None: cmul1(k, lreg(nxt), *lsrc(nxt))
        split_a(lreg(m), i)
        if nxt is not None: cmul2(k, lreg(nxt), *lsrc(nxt))
        split_b(lreg(m), i, m)
        M0 = E('MODAT', 2)
        if i == M0: mod_a()
        if i == M0 + 2: mod_b()
        if i == M0 + 5: mod_c()
        if i == M0 + 7: mod_d()
        if i == E('PKO', 20):
            k.wait(vm=k.tpk); k.barrier(); pack_out()
    while eq: eq.pop(0)()
    k.stamp3(10)
    ACC = 224
    bt = []
    k.wait_all(vm=False, ds=True)
    for ks in range(8):
        t = k.ds('ds_read_b128 %s, v%d' % (v(96 + 8 * ks, 4), 32 + ks))
        if KSPLIT: t = k.ds('ds_read_b128 %s, v%d offset:8192' % (v(100 + 8 * ks, 4), 32 + ks))
        bt.append(t)
    fill = []
    F = lambda x: fill.append(x)
    F('v_lshrrev_b32 v7, 2, v1'); F('v_and_b32 v8, 3, v1'); F('v_lshlrev_b32 v16, 10, v7'); F('v_lshl_add_u32 v16, v8, 4, v16')
    F('s_lshl_b32 s60, s50, 16\ns_lshr_b32 s61, s34, 4\ns_lshl_b32 s61, s61, 18\ns_add_u32 s60, s60, s61')
    F('s_and_b32 s61, s34, 15\ns_lshl_b32 s61, s61, 6\ns_add_u32 s60, s60, s61\ns_add_u32 s62, s48, s60\ns_addc_u32 s63, s49, 0')
    assert WS_XG == 0
    for i in range(1, 4): F('v_add_u32 v%d, 0x%x, v16' % (16 + i, i * 16384))
    F('v_and_b32 v10, 1, v8'); F('v_lshlrev_b32 v24, 6, v7'); F('v_lshl_add_u32 v24, v10, 5, v24'); F('v_lshrrev_b32 v9, 1, v8'); F('v_lshl_add_u32 v24, v9, 4, v24')
    F('s_lshl_b32 s60, s50, 12\ns_add_u32 s60, s60, 0x%x\ns_add_u32 s24, s48, s60\ns_addc_u32 s25, s49, 0' % WS_ST1)
    F('v_lshlrev_b32 v21, 3, v1')
    F('s_lshl_b32 s60, s34, 9\ns_add_u32 s60, s60, 0x%x\ns_add_u32 s64, s48, s60\ns_addc_u32 s65, s49, 0' % WS_MODG)
    XD = [240, 244, 248, 252]
    k.XD = XD
    XL1 = ['global_load_dwordx4 %s, v%d, s[62:63]%s' % (v(XD[i], 4), 16 + i, SC) for i in range(4)] + ['global_load_dwordx2 v[22:23], v21, s[64:65]' + SC]
    XL2 = ['global_load_dwordx4 %s, v24, s[24:25] offset:%d%s' % (v(80 + 4 * i, 4), i * 1024, SC) for i in range(4)]
    k.XL = XL1 + XL2
    F('s_or_b32 s66, s55, 0x4000'); F('v_lshl_add_u32 v3, v1, 4, s66')
    F('s_mul_i32 s55, s52, %d\ns_add_u32 s55, s55, %d' % (CHS, L_CV)); F('v_lshl_add_u32 v2, v59, 5, s55')
    for x in XL1 + XL2: F('VM ' + x); F('s_nop 0')
    def emit_fill():
        x = fill.pop(0)
        if x.startswith('VM '): k.vm(x[3:])
        else: k(x)
    for ks in range(8):
        k.wait(ds=bt[ks])
        c = '0' if ks == 0 else v(ACC, 16)
        ms = [(AH + 4 * ks, 96 + 8 * ks)] + ([(AH + 4 * ks, 100 + 8 * ks), (AL + 4 * ks, 96 + 8 * ks)] if KSPLIT else [])
        for x, y in ms:
            k('v_mfma_f32_32x32x16_bf16 %s, %s, %s, %s' % (v(ACC, 16), v(x, 4), v(y, 4), c)); c = v(ACC, 16)
            for _ in range(2 if KSPLIT else 4):
                if fill: emit_fill()
    while fill: emit_fill()
    k.stamp3(11)
    k('s_nop 7\ns_nop 3')
    k('s_bitcmp1_b32 s50, 0')
    k('s_cbranch_scc0 L_kg_a')
    for i in range(3): k.ds('ds_write_b128 v3, %s offset:%d' % (v(ACC + 4 * i, 4), 1024 * i))
    k.wait_all(vm=False)
    k('L_kg_a:')
    if E('FPB', 1) == 2: k('s_waitcnt vmcnt(%d)' % (k.nvm - k.tall))
    k.barrier()
    k.stamp3(12)
    if E('FPB', 1) == 2:
        signal(k, 'fp', O_FP, 28, 29)
        k('s_bitcmp1_b32 s50, 0')
    k('s_cbranch_scc1 L_kg_b')
    for i in range(3): k.ds('ds_read_b128 %s, v3 offset:%d' % (v(96 + 4 * i, 4), 1024 * i))
    k.wait_all(vm=False)
    for i in range(6): k('v_pk_add_f32 %s, %s, %s' % (v(96 + 2 * i, 2), v(96 + 2 * i, 2), v(ACC + 2 * i, 2)))
    for r in range(12): k.ds('ds_write_b32 v%d, v%d' % (44 + r, 96 + r))
    k.wait_all(vm=False)
    k('L_kg_b:')
    if E('FPB', 1) == 1: k('s_waitcnt vmcnt(%d)' % (k.nvm - k.tall))
    k.barrier()
    k.stamp3(13)
    if E('FPB', 1) == 1: signal(k, 'fp', O_FP, 28, 29)
    k('v_cmp_eq_u32 vcc, 127, v59')
    G = 96
    gt = [k.ds('ds_read_b32 v%d, v%d' % (G + i, 60 + i)) for i in range(17)]
    conv_setup(k)
    k.wait(ds=gt[-1])
    k('v_cmp_eq_u32 vcc, 127, v59')
    k('v_cndmask_b32 v%d, v%d, v12, vcc' % (G + 16, G + 16))
    for i in range(8): k('v_cvt_pk_bf16_f32 v%d, v%d, v%d' % (120 + i, G + 2 * i, G + 2 * i + 1))
    for i in range(8): k('v_cvt_pk_bf16_f32 v%d, v%d, v%d' % (128 + i, G + 2 * i + 1, G + 2 * i + 2))
    k.ds('ds_write_b128 v2, v[120:123]')
    k.ds('ds_write_b128 v2, v[124:127] offset:16')
    k.ds('ds_write_b128 v2, v[128:131] offset:%d' % O_K1)
    k.ds('ds_write_b128 v2, v[132:135] offset:%d' % (O_K1 + 16))
    k('v_lshlrev_b32 v2, 4, v1')

def conv_setup(k):
    k('s_and_b32 s54, s50, 1')
    k('v_lshlrev_b32 v11, 4, v1')
    k('v_and_b32 v5, 15, v1')
    k('v_lshrrev_b32 v6, 4, v1')
    k('s_mul_i32 s59, s54, %d' % O_K1)
    k('s_add_u32 s59, s59, s55')
    k('v_lshl_add_u32 v14, v5, 2, s59')
    k.ds('ds_write_b32 v14, v12 offset:4096')
    k('v_lshl_add_u32 v14, v1, 3, s55')
    k.ds('ds_write_b64 v14, v[12:13] offset:%d' % O_H)
    k('v_lshlrev_b32 v15, 3, v10')
    k('v_lshl_add_u32 v15, v7, 4, v15')
    k('s_lshl_b32 s60, s50, 10')
    k('v_add_u32 v15, s60, v15')
    k('v_mul_u32_u24 v20, %d, v9' % CHS)
    k('v_add_u32 v20, v20, v15')
    k('v_lshl_add_u32 v25, v9, 12, v15')
    k('s_lshl_b32 s76, s54, 10')
    k('s_add_u32 s77, s76, s55')
    k('v_lshlrev_b32 v15, 5, v5')
    k('v_lshl_add_u32 v15, v6, 3, v15')
    k('v_add_u32 v193, s77, v15')
    k('s_lshl_b32 s77, s52, 12')
    k('s_add_u32 s76, s76, s77')
    k('v_add_u32 v202, s76, v15')
    k('v_lshlrev_b32 v15, 5, v5')
    k('v_lshl_add_u32 v15, v6, 4, v15')
    k('s_lshl_b32 s77, s54, 8')
    k('s_sub_u32 s77, s55, s77')
    k('s_add_u32 s78, s77, %d' % (O_H + 512 - 32 - 192))
    k('v_add_u32 v192, s78, v15')
    k('v_lshlrev_b32 v15, 3, v6')
    k('v_sub_u32 v15, v15, v5')
    k('v_add_u32 v15, 15, v15')
    k('v_and_b32 v194, 1, v15')
    k('v_mul_u32_u24 v194, %d, v194' % O_K1)
    k('v_and_b32 v15, -2, v15')
    k('v_lshl_add_u32 v15, v15, 1, v194')
    k('s_add_u32 s78, s77, %d' % (2 * (2016 - 256 - 96 - 1536)))
    k('v_add_u32 v197, s78, v15')
    for ip in range(3): k('v_add_u32 v%d, %d, v197' % (194 + ip, 1024 * (3 - ip)))
    k('s_lshl_b32 s77, s54, 12')
    k('s_add_u32 s78, s77, s55')
    k('v_add_u32 v198, s78, v11')
    k('s_xor_b32 s77, s77, 0x1000')
    k('s_add_u32 s78, s77, s55')
    k('v_add_u32 v199, s78, v11')
    k('v_and_b32 v15, 1, v6')
    k('v_lshlrev_b32 v15, 3, v15')
    k('v_lshrrev_b32 v200, 1, v5')
    k('v_add_u32 v15, v15, v200')
    k('v_lshlrev_b32 v200, 15, v15')
    k('v_and_b32 v15, 1, v5')
    k('v_lshl_add_u32 v200, v15, 5, v200')
    k('v_lshrrev_b32 v15, 1, v6')
    k('v_lshl_add_u32 v200, v15, 4, v200')
    k('v_add_u32 v201, 0x100000, v200')
    k('s_lshl_b32 s60, s54, 19')
    k('s_lshl_b32 s61, s53, 6')
    k('s_add_u32 s60, s60, s61')
    ws_ptr(k, 66, WS_X1T, 60)
    ws_ptr(k, 68, WS_X1S, 60)
    k('s_lshl_b32 s60, s6, 15')
    ws_ptr(k, 26, WS_W1P, 60)
    k('s_lshl_b32 s77, s30, 16')
    k('s_and_b32 s74, s30, 0xffff0000')
    k('s_cmp_eq_u32 s52, 0')
    k('s_cselect_b32 s74, s77, s74')
    k('v_bfe_u32 v4, v1, 3, 1')
    k('v_cvt_f32_u32 v4, v4')
    k('v_cmp_gt_u32 vcc, 32, v1')
    k('v_cndmask_b32 v4, 0, v4, vcc')
    k('s_lshl_b32 s60, s34, 4')
    ws_ptr(k, 18, WS_FIN, 60)
    k('s_lshl_b32 s60, s3, 10')
    k('v_add_u32 v217, s60, v11')
    k('v_add_u32 v218, 0x%x, v217' % O_F2)
    k('v_add_u32 v217, 0x%x, v217' % O_FP)
    k('s_lshl_b32 s56, s54, 15')
    k('s_lshl_b32 s60, s52, 12')
    k('s_add_u32 s56, s56, s60')
    k('s_lshl_b32 s60, s5, 16')
    k('s_add_u32 s60, s60, s56')
    ws_ptr(k, 28, WS_X1S, 60)

def conv_phase(k):
    XD = k.XD
    k.stamp(6); k.stamp3(14)
    k('s_mov_b32 s80, 0')
    k('L_xv_p:')
    k('s_waitcnt vmcnt(0)')
    for c in chk_tags([x + 2 for x in XD] + [23] + [83 + 4 * i for i in range(4)], 28): k(c)
    retry_tail(k, 'xv', k.XL)
    k.vm_done = k.nvm
    k.stamp(7)
    k('v_add_f32_dpp v22, v22, v22 quad_perm:[1,0,3,2] row_mask:0xf bank_mask:0xf')
    k('s_lshl_b32 s60, s52, 2')
    k('s_add_u32 s61, s60, 24')
    k('v_add_f32_dpp v22, v22, v22 quad_perm:[2,3,0,1] row_mask:0xf bank_mask:0xf')
    k('s_add_u32 s60, s60, 16')
    k('v_cmp_eq_u32 vcc, 1, v9')
    k('v_add_f32_dpp v22, v22, v22 row_half_mirror row_mask:0xc bank_mask:0xf')
    k('v_cvt_pk_bf16_f32 v22, v22, v22')
    k('v_and_b32 v22, s58, v22')
    k('v_add_f32 v22, v22, v4')
    k('v_cvt_pk_bf16_f32 v22, v22, v22')
    k('v_and_b32 v22, s58, v22')
    k('v_readlane_b32 s62, v22, 0')
    k('v_readlane_b32 s63, v22, 4')
    k('v_readlane_b32 s64, v22, 8')
    k('v_readlane_b32 s65, v22, 12')
    k('v_readlane_b32 s75, v22, s60')
    k('v_readlane_b32 s76, v22, s61')
    k('v_mov_b32 v27, s62')
    k('v_mov_b32 v29, s63')
    k('v_mov_b32 v26, s64')
    k('v_mov_b32 v28, s65')
    k('v_cndmask_b32 v27, v27, v29, vcc')
    k('v_cndmask_b32 v26, v26, v28, vcc')
    for i in range(4):
        k.ds('ds_write_b64 v25, %s offset:%d' % (v(XD[i], 2), L_X + 256 * i))
        for j in range(2):
            r = XD[i] + j
            g = 56 + 4 * j
            tt = 48 + 4 * (j & 1)
            for e in range(3): k('v_mov_b32_dpp v%d, v%d quad_perm:[%d,%d,%d,%d] row_mask:0xf bank_mask:0xf' % (g + e, 80 + 4 * i + e, 2 * j, 2 * j + 1, 2 * j, 2 * j + 1))
            k('v_lshlrev_b32 v%d, 16, v%d' % (tt, r))
            k('v_and_b32 v%d, s58, v%d' % (tt + 1, r))
            k('v_lshlrev_b32 v%d, 16, v%d' % (tt + 2, g + 2))
            k('v_and_b32 v%d, s58, v%d' % (tt + 3, g + 2))
            k('v_pk_fma_f32 %s, %s, %s, %s neg_lo:[0,0,1] neg_hi:[0,0,1]' % (v(tt, 2), v(tt, 2), v(g, 2), v(tt + 2, 2)))
            k('v_pk_fma_f32 %s, %s, v[26:27], v[26:27] op_sel:[0,0,1] op_sel_hi:[1,0,1]' % (v(tt, 2), v(tt, 2)))
            k('v_cvt_pk_bf16_f32 v%d, v%d, v%d' % (XD[i] + 2 + j, tt, tt + 1))
        k.ds('ds_write_b64 v20, %s offset:%d' % (v(XD[i] + 2, 2), L_CV + O_H + 512 + 256 * i))
    k.wait_all(vm=False)
    k.barrier()
    if not E('FPB', 1): signal(k, 'fp', O_FP, 28, 29)
    k.stamp(9)
    ACC = 32
    def areg(st, p): return 64 + 64 * st + 4 * p
    def breg(st, q): return 96 + 64 * st + 4 * q
    def loads(cc, st, np_):
        L = []
        for p in range(np_):
            off = 128 * (1 - (p & 1)) + 16 * (3 - cc)
            L.append('ds_read2_b32 %s, v%d offset0:%d offset1:%d' % (v(areg(st, p), 2), 194 + (p >> 1), off, off + 1))
            L.append('ds_read2_b32 %s, v%d offset0:%d offset1:%d' % (v(areg(st, p) + 2, 2), 194 + (p >> 1), off + 2, off + 3))
            L.append('ds_read_b128 %s, v192 offset:%d' % (v(breg(st, p), 4), 512 * p + 64 * (3 - cc)))
        return L
    def lv_pairs(lo, hi_):
        P = []
        for lv in range(8):
            for p in range(lv + 1):
                for q in range(lv + 1):
                    if max(p, q) == lv and lo <= p + q <= hi_: P.append((p, q))
        return P
    def loadsA(cc):
        L = []
        st, o4 = cc >> 1, 4 * (cc & 1)
        for p in range(4):
            off = 128 * (1 - (p & 1)) + 16 * (3 - cc)
            L.append('ds_read2_b32 %s, v%d offset0:%d offset1:%d' % (v(areg(st, o4 + p), 2), 194 + (p >> 1), off, off + 1))
            L.append('ds_read2_b32 %s, v%d offset0:%d offset1:%d' % (v(areg(st, o4 + p) + 2, 2), 194 + (p >> 1), off + 2, off + 3))
            L.append('ds_read_b128 %s, v192 offset:%d' % (v(breg(st, o4 + p), 4), 512 * p + 64 * (3 - cc)))
        return L
    tA = {}
    for cc in range(2): tA[cc] = [k.ds(x) for x in loadsA(cc)]
    if E('FP_AT', 2) == 0: sync_issue(k, 'fp', 'global_load_dwordx4 v[204:207], v217, s[14:15]' + SC)
    k('s_cmp_lg_u32 s50, 3')
    k('s_cbranch_scc1 L_fin')
    for i, (l0, l1) in enumerate(((32, 40), (24, 28), (48, 56))):
        k('v_readlane_b32 s60, v22, %d' % l0)
        k('v_readlane_b32 s61, v22, %d' % l1)
        k('s_lshr_b32 s60, s60, 16')
        k('s_or_b32 s60, s60, s61')
        k('v_mov_b32 v%d, s60' % (220 + i))
    k('v_mov_b32 v223, s81')
    k('s_mov_b64 exec, 1')
    raw(k, 'global_store_dwordx4 v12, v[220:223], s[18:19]' + SC)
    k('s_mov_b64 exec, -1')
    k('L_fin:')
    seen = set()
    def mf(nt, ar, br):
        c = v(ACC + 4 * nt, 4) if nt in seen else '0'
        seen.add(nt)
        k('v_mfma_f32_16x16x32_bf16 %s, %s, %s, %s' % (v(ACC + 4 * nt, 4), v(ar, 4), v(br, 4), c))
    def hx_reads(ps):
        return (['ds_read_b64 %s, v193 offset:%d' % (v(16 + 2 * j, 2), O_H + 512 + 2048 * ps + 512 * j) for j in range(2)] +
                ['ds_read_b64 %s, v202 offset:%d' % (v(20 + 2 * j, 2), L_X + 2048 * ps + 512 * j) for j in range(2)])
    PA = lv_pairs(0, 3); PB = lv_pairs(4, 7)
    q2 = loadsA(2) + loadsA(3) + hx_reads(0)
    tq = []
    for cc in range(4):
        st, o4 = cc >> 1, 4 * (cc & 1)
        for n, (p, q) in enumerate(PA):
            if cc < 2: k.wait(ds=tA[cc][3 * max(p, q) + 2])
            else: k.wait(ds=tq[12 * (cc - 2) + 3 * max(p, q) + 2])
            mf(p + q, areg(st, o4 + p), breg(st, o4 + q))
            for _ in range(2):
                if q2 and (cc > 0 or n >= 2): tq.append(k.ds(q2.pop(0)))
            if cc == 2 and n == 2: qB = loads(0, 0, 8)
            if cc >= 2 and (cc > 2 or n >= 2):
                for _ in range(2):
                    if qB: k.ds(qB.pop(0))
    assert not q2 and not qB
    def exchange_and_store(ps, lab, mid):
        b = ACC + 16 * ps
        k('s_nop 7')
        k('s_cmp_eq_u32 s54, 0')
        k('s_cbranch_scc0 L_%s_1' % lab)
        for j in range(2): k.ds('ds_write_b128 v198, %s offset:%d' % (v(b + 8 + 4 * j, 4), O_RED + 2048 * ps + 1024 * j))
        for j in range(4): k('v_mov_b64 %s, %s' % (v(224 + 2 * j, 2), v(b + 2 * j, 2)))
        k('s_branch L_%s_2' % lab)
        k('L_%s_1:' % lab)
        k.nds -= 2
        for j in range(2): k.ds('ds_write_b128 v198, %s offset:%d' % (v(b + 4 * j, 4), O_RED + 2048 * ps + 1024 * j))
        for j in range(4): k('v_mov_b64 %s, %s' % (v(224 + 2 * j, 2), v(b + 8 + 2 * j, 2)))
        k('L_%s_2:' % lab)
        k.pre()
        k.wait_all(vm=False)
        k.barrier()
        mid()
        rt_ = [k.ds('ds_read_b128 %s, v199 offset:%d' % (v(232 + 4 * j, 4), O_RED + 2048 * ps + 1024 * j)) for j in range(2)]
        for i in range(4):
            k('v_lshlrev_b32 v%d, 16, v%d' % (240 + 2 * i, 16 + i))
            k('v_and_b32 v%d, s58, v%d' % (241 + 2 * i, 16 + i))
            k('v_pk_fma_f32 %s, %s, s[74:75], %s op_sel_hi:[1,0,1]' % (v(224 + 2 * i, 2), v(240 + 2 * i, 2), v(224 + 2 * i, 2)))
            k('v_lshlrev_b32 v%d, 16, v%d' % (248 + 2 * i, 20 + i))
            k('v_and_b32 v%d, s58, v%d' % (249 + 2 * i, 20 + i))
        k.wait(ds=rt_[1])
        for i in range(4):
            k('v_pk_add_f32 %s, %s, %s' % (v(224 + 2 * i, 2), v(224 + 2 * i, 2), v(232 + 2 * i, 2)))
            k('v_pk_fma_f32 %s, %s, s[74:75], %s op_sel:[0,1,0] op_sel_hi:[1,1,1]' % (v(224 + 2 * i, 2), v(224 + 2 * i, 2), v(248 + 2 * i, 2)))
            k('v_pk_mul_f32 %s, %s, s[76:77] op_sel_hi:[1,0]' % (v(240 + 2 * i, 2), v(224 + 2 * i, 2)))
            k('v_cvt_pk_bf16_f32 v%d, v%d, v%d' % (24 + i, 240 + 2 * i, 241 + 2 * i))
            k('v_cvt_pk_bf16_f32 v%d, v%d, v%d' % (28 + i, 224 + 2 * i, 225 + 2 * i))
        for b_, sp in ((24, 68), (28, 66)):
            k('v_permlane16_swap_b32 v%d, v%d' % (b_, b_ + 2))
            k('v_permlane16_swap_b32 v%d, v%d' % (b_ + 1, b_ + 3))
            t = k.vm('global_store_dwordx4 v%d, %s, s[%d:%d]%s' % (200 + ps, v(b_, 4), sp, sp + 1, SC))
        return t
    FPL = 'global_load_dwordx4 v[204:207], v217, s[14:15]' + SC
    FP_AT = E('FP_AT', 2)
    k.pre = (lambda: sync_check(k, 'fp', [FPL], chk_tags([204, 205, 206, 207], 210))) if FP_AT == 0 else (lambda: None)
    tsA = exchange_and_store(0, 'cvA', lambda: None)
    k.pre = lambda: None
    k.stamp(3)
    k.tw1 = []
    def w1l():
        n = len(k.tw1)
        k.tw1.append(k.vm('global_load_dwordx4 %s, v2, s[26:27] offset:%d%s' % (a(4 * n, 4), (n & 3) * 1024, W_SC)) if not E('NOW1', 0) else k.nvm)
        if (n & 3) == 3 and n < 31: k('s_add_u32 s26, s26, 4096'); k('s_addc_u32 s27, s27, 0')
    k.w1l = w1l
    F2A_AT = E('F2A_AT', 2); W1D = E('W1D', 3)
    for cc in range(4):
        st = cc & 1
        nxt = loads(cc + 1, st ^ 1, 8) if cc < 3 else hx_reads(1)
        if cc > 0: k.wait_all(vm=False)
        if cc == FP_AT and cc: sync_check(k, 'fp', [FPL], chk_tags([204, 205, 206, 207], 210))
        if cc == F2A_AT: k.wait(vm=tsA)
        if cc == F2A_AT or (cc == FP_AT and cc): k.barrier()
        if cc == F2A_AT: signal(k, 'f2a', O_F2, 208, 209)
        for n, (p, q) in enumerate(PB):
            if cc == FP_AT - 2 and n == 10: sync_issue(k, 'fp', FPL)
            mf(p + q, areg(st, p), breg(st, q))
            if n >= 1 and nxt: k.ds(nxt.pop(0))
            if cc >= FP_AT and n % W1D == 0 and len(k.tw1) < 32: w1l()
        assert not nxt
    k.stamp(10)
    k.PA = ['global_load_dwordx4 v[72:75], v218, s[14:15]' + SC]
    k.FL = 'global_load_dwordx4 v[164:167], v160, s[48:49]' + SC
    def mid():
        k('v_lshlrev_b32 v160, 4, v0')
        k('v_add_u32 v160, 0x%x, v160' % WS_FIN)
        k.tfin = k.vm(k.FL)
    k.tx1 = exchange_and_store(1, 'cvB', mid)
    if not E('C12POS', 0): sync_issue(k, 'f2a', *k.PA)
    while len(k.tw1) < 32: w1l()

ROT = E('ROT', 0)
def adv(k, p, c):
    if not ROT:
        k('s_add_u32 s%d, s%d, 4096\ns_addc_u32 s%d, s%d, 0' % (p, p, p + 1, p + 1)); return
    k('s_add_u32 s%d, s%d, 1' % (c, c))
    k('s_cmp_eq_u32 s%d, 7' % c)
    k('s_cselect_b32 s12, %d, s32' % (-24576))
    k('s_cselect_b32 s13, -1, 0')
    k('s_cselect_b32 s%d, 0, s%d' % (c, c))
    k('s_add_u32 s%d, s%d, s12' % (p, p))
    k('s_addc_u32 s%d, s%d, s13' % (p + 1, p + 1))

def w2reg(ks): return (a(128 + 8 * ks, 4), a(132 + 8 * ks, 4)) if ks < 16 else (v(160 + 8 * (ks - 16), 4), v(164 + 8 * (ks - 16), 4))
def w2_ops(k, ks):
    ops = []
    if E('NOW2', 0): return ops
    off = (ks & 3) * 1024
    ops.append(lambda: k.vm('global_load_dwordx4 %s, v2, s[76:77] offset:%d%s' % (w2reg(ks)[0], off, W_SC)))
    ops.append(lambda: k.vm('global_load_dwordx4 %s, v113, s[76:77] offset:%d%s' % (w2reg(ks)[1], off, W_SC)))
    if (ks & 3) == 3 and ks < 27: ops.append(lambda: adv(k, 76, 35))
    return ops

def sync_issue(k, name, *loads):
    k('s_cmp_lg_u32 s50, %d' % SYNCW)
    k('s_cbranch_scc1 L_%s_i' % name)
    for l in loads: raw(k, l)
    k('L_%s_i:' % name)
    k.__dict__.setdefault('pollmark', {})[name] = k.nvm

def sync_check(k, name, loads, check, extra=0):
    k('s_cmp_lg_u32 s50, %d' % SYNCW)
    k('s_cbranch_scc1 L_%s_w' % name)
    k('s_mov_b32 s80, 0')
    k('s_waitcnt vmcnt(%d)' % min(63, k.nvm - k.pollmark[name] + extra))
    k('L_%s_p:' % name)
    for c in check: k(c)
    retry_tail(k, name, list(loads) + ['s_waitcnt vmcnt(0)'], 1)

L_RD = 0

def mlp_phase(k):
    k('v_add_u32 v126, 0x2000, v218')
    PL = lambda r: 'global_load_dwordx4 v[72:75], v%d, s[14:15]%s' % (r, SC)
    k('s_lshl_b32 s8, s3, 2')
    k('s_lshr_b32 s9, s4, 3')
    k('s_add_u32 s8, s8, s9')
    k('s_and_b32 s9, s4, 7')
    k('v_add_u32 v113, 114688, v2')
    k('s_mul_i32 s51, s50, %d' % (28 * 1024))
    if ROT:
        k('s_lshr_b32 s35, s4, 3')
        k('s_lshl_b32 s35, s35, 1')
        k('s_add_u32 s35, s35, s9')
        k('s_cmp_ge_u32 s35, 7')
        k('s_cselect_b32 s60, 7, 0')
        k('s_sub_u32 s35, s35, s60')
        k('s_mov_b32 s33, s35')
        k('s_movk_i32 s32, 4096')
        k('s_lshl_b32 s60, s35, 12')
        k('s_add_u32 s51, s51, s60')
    k('s_mul_i32 s60, s9, %d' % (2 * 114688))
    k('s_add_u32 s60, s60, s51')
    ws_ptr(k, 76, WS_W2P, 60)
    k('s_mul_i32 s60, s8, 114688')
    k('s_add_u32 s60, s60, s51')
    ws_ptr(k, 22, WS_HID, 60)
    tr_addr32(k, 4, 1, 8, 9, 6, 8)
    k('v_add_u32 v5, 0x10000, v4')
    k('v_and_b32 v6, 31, v1')
    k('v_lshlrev_b32 v6, 3, v6')
    k('s_mul_i32 s62, s5, %d' % (2 * 114688))
    k('s_lshl_b32 s63, s6, 11')
    k('s_add_u32 s62, s62, s63')
    ws_ptr(k, 68, WS_HID, 62)
    k('s_lshl_b32 s62, s5, 9')
    add_ptr(k, 70, 14, 62)
    k('v_bfe_u32 v16, v1, 4, 1')
    k('v_xor_b32 v16, 1, v16')
    k('v_lshlrev_b32 v16, 10, v16')
    k('v_lshrrev_b32 v17, 5, v1')
    k('v_lshl_add_u32 v16, v17, 4, v16')
    k('v_add_u32 v16, %d, v16' % L_GS)
    k('v_lshlrev_b32 v17, 2, v0')
    k('v_add_u32 v17, %d, v17' % L_GS)
    k('v_lshlrev_b32 v18, 3, v0')
    k('v_add_u32 v18, %d, v18' % (L_GS + 2048))
    k('v_lshrrev_b32 v119, 5, v1')
    k('v_and_b32 v118, 31, v1')
    k('v_lshlrev_b32 v116, 8, v119')
    k('v_lshl_add_u32 v116, v118, 1, v116')
    k('v_lshlrev_b32 v117, 4, v119')
    k('v_lshl_add_u32 v118, v118, 10, v117')
    k('s_lshl_b32 s62, s9, 2')
    k('s_add_u32 s62, s62, s50')
    k('s_lshl_b32 s63, s8, 15')
    k('s_lshl_b32 s60, s62, 10')
    k('s_add_u32 s60, s60, s63')
    ws_ptr(k, 20, WS_X1T, 60)
    k('s_lshl_b32 s60, s62, 6')
    k('s_add_u32 s60, s60, %d' % (L_GS + 2048))
    k('v_add_u32 v117, s60, v117')
    k('s_lshl_b32 s60, s62, 5')
    k('s_add_u32 s60, s60, s63')
    add_ptr(k, 24, P_OUT, 60)
    k('s_lshl_b32 s60, s50, 13')
    k('v_add_u32 v120, s60, v2')
    k('s_lshl_b32 s60, s50, 11')
    k('v_add_u32 v121, s60, v2')
    k('s_lshr_b32 s60, s8, 1')
    k('s_lshl_b32 s60, s60, 6')
    k('s_add_u32 s60, s60, 0x%x' % O_F3)
    k('v_min_u32 v122, 13, v1')
    k('v_lshl_add_u32 v122, v122, 2, s60')
    k('s_lshl_b32 s10, s5, 6')
    k('s_lshl_b32 s61, s7, 2')
    k('s_add_u32 s10, s10, s61')
    k('s_mov_b32 s80, 0')
    k.wait(vm=k.tfin)
    k('L_fin_p:')
    k('v_cmp_ne_u32 vcc, s81, v167')
    retry_tail(k, 'fin', [k.FL, 's_waitcnt vmcnt(0)'])
    k('v_lshlrev_b32 v168, 16, v166')
    k('v_and_b32 v169, 0xffff0000, v166')
    k('v_mul_f32 v168, %s, v168' % f32(-math.log(2.0)))
    k('v_mul_f32 v169, %s, v169' % f32(-math.log(2.0)))
    k.ds('ds_write2st64_b32 v17, v164, v165 offset0:0 offset1:4')
    k.ds('ds_write_b64 v18, v[168:169]')
    C12POS = E('C12POS', 0)
    EARLYA = E('EARLYA', 0)
    def sigB(nm):
        k.wait(vm=k.tx1)
        k.barrier()
        signal(k, nm, O_F2 + 0x2000, 19, 20)
        k.stamp(11)
    k.wait_all(vm=False)
    if not EARLYA: sigB('f2b')
    xq = []
    w2q = []
    for ks in range(28): w2q += w2_ops(k, ks)
    w2q0 = w2q if not C12POS else []
    def c12_block():
        gt = [None] * 32
        for s_ in range(8): gt[s_] = k.ds('ds_read_b128 %s, v16 offset:%d' % (v(80 + 4 * (s_ % 8), 4), 32 * s_))
        for s_ in range(32):
            if C12POS and s_ == E('PA_AT', 8): sync_issue(k, 'f2a', *k.PA)
            k.wait(ds=gt[s_], vm=k.tw1[s_])
            k('v_mfma_f32_32x32x16_bf16 v[128:143], %s, %s, %s' % (a(4 * s_, 4), v(80 + 4 * (s_ % 8), 4), '0' if s_ == 0 else 'v[128:143]'))
            if EARLYA and s_ == E('SIGB_AT', 6): sigB('f2b')
            if xq: xq.pop(0)()
            elif w2q0: w2q0.pop(0)()
            if s_ >= 1 and s_ + 7 < 32: gt[s_ + 7] = k.ds('ds_read_b128 %s, v16 offset:%d' % (v(80 + 4 * ((s_ + 7) % 8), 4), 32 * (s_ + 7)))
        k.stamp(8)
    if C12POS: c12_block()
    sync_check(k, 'f2a', k.PA, chk_tags([72, 73, 74, 75], 114), extra=0 if (C12POS or EARLYA) else 1)
    k.barrier()
    k.stamp(12); k.stamp2(1)
    ctok = {}
    def chunk_ops(ps, c):
        ops = [lambda: k('s_add_u32 m0, s56, %d' % (ps * 65536 + c * 8192))]
        def ld(i): ctok[ps, c] = k.vm('global_load_lds_dwordx4 v2, s[28:29] offset:%d%s' % (i * 1024, LD_SC))
        for i in range(4): ops.append(lambda i=i: ld(i))
        if c < 3: ops.append(lambda: k('s_add_u32 s28, s28, 8192\ns_addc_u32 s29, s29, 0'))
        elif ps == 0: ops.append(lambda: k('s_add_u32 s28, s28, %d\ns_addc_u32 s29, s29, 0' % (0x100000 - 3 * 8192)))
        return ops
    k('s_cmp_ge_u32 s4, 28')
    k('s_cbranch_scc1 L_st_a')
    for c in range(4): xq.extend(chunk_ops(0, c))
    for _ in range(len(xq) if C12POS else E('XPRE', 5)): xq.pop(0)()
    k('s_branch L_st_b')
    k('L_st_a:')
    k('s_sub_u32 s11, s4, 28')
    k('s_lshl_b32 s60, s3, 2')
    k('s_add_u32 s11, s11, s60')
    k('s_lshl_b32 s60, s11, 15')
    k('s_lshl_b32 s61, s50, 13')
    k('s_add_u32 s60, s60, s61')
    ws_ptr(k, 28, WS_X1T, 60)
    k('v_add_u32 v7, 0x1000, v2')
    STL = ['global_load_dwordx4 %s, v%d, s[28:29] offset:%d%s' % (v(80 + 4 * i, 4), 2 if i < 4 else 7, (i & 3) * 1024, LD_SC) for i in range(8)]
    for x in STL: raw(k, x)
    if EARLYA:
        k('s_waitcnt vmcnt(8)')
        k.barrier()
        signal(k, 'f2bs', O_F2 + 0x2000, 19, 20)
    k('s_branch L_stats')
    k('L_st_b:')
    if not C12POS: c12_block()
    fix = ['v_mov_b32 v%d, v%d' % (144 + r, 128 + r) for r in range(16)]
    fix += ['v_permlane16_swap_b32 v%d, v%d' % (128 + r, 144 + r) for r in range(16)]
    fix += ['v_mul_f32 v%d, %s, v%d' % (144 + r, f32(-LOG2E), 144 + r) for r in range(16)]
    ACC = 16
    for _ in range(E('W2E', 12) if C12POS else 0):
        if w2q: w2q.pop(0)()
    SL = lambda ps: ['global_load_dwordx2 %s, v6, s[70:71] offset:%d%s' % (v(8 + 2 * u, 2), 256 * u, SC) for u in range(2)]
    htok = {}
    def hload(ps, s_):
        htok[ps, s_] = k.vm('global_load_dwordx4 %s, v2, s[22:23] offset:%d%s' % (a(4 * s_, 4), (s_ & 3) * 1024, LD_SC))
        if (s_ & 3) == 3:
            if s_ < 27: adv(k, 22, 33)
            elif ps == 0:
                if ROT: adv(k, 22, 33); k('s_add_u32 s22, s22, %d\ns_addc_u32 s23, s23, 0' % (32 * 114688))
                else: k('s_add_u32 s22, s22, %d\ns_addc_u32 s23, s23, 0' % (32 * 114688 - 6 * 4096))
    k.hload, k.htok = hload, htok
    F3L = lambda ps: 'global_load_dword v72, v122, s[14:15] offset:%d%s' % (1024 * ps, SC)
    W2D = E('W2D', 2)
    lstA = [None]
    for ps in range(2):
        def breg(s_, u): return 48 + 8 * (s_ % 3) + 4 * u
        rtok = {}
        def rd(s_, u):
            off = u * 32768 + s_ * 1024
            k.ds('ds_read_b64_tr_b16 %s, v%d offset:%d' % (v(breg(s_, u), 2), 4 + ps, off))
            rtok[s_, u] = k.ds('ds_read_b64_tr_b16 %s, v%d offset:%d' % (v(breg(s_, u) + 2, 2), 4 + ps, off + 256))
        k.stamp2(2 + 5 * ps)
        k.wait(vm=ctok[ps, 0]); k.barrier()
        k.stamp2(3 + 5 * ps)
        for s_ in range(2):
            for u in range(2): rd(s_, u)
        pend = []
        gap = 0
        for s_ in range(32):
            if s_ % 8 == 6 and s_ < 30:
                c = s_ // 8 + 1
                if ps == 0 and c == E('F2B_AT', 2): sync_check(k, 'f2b', [PL(126)], chk_tags([72, 73, 74, 75], 80))
                if ps == 1 and c == E('F3A_SIG', 2): k.wait(vm=lstA[0])
                k.wait(vm=ctok[ps, c]); k.barrier()
                if ps == 0 and c == E('F2B_AT', 2):
                    for c2 in range(4): pend += chunk_ops(1, c2)
                if ps == 1 and c == E('F3A_SIG', 2): signal(k, 'f3a', O_F3, 73, 74, nrep=1, sidx=10)
            if ps == 0 and s_ == 8 * E('F2B_AT', 2) - 2 - E('POLLD', 12): sync_issue(k, 'f2b', PL(126))
            if s_ == 16: k.stamp2(4 + 5 * ps)
            if s_ == 22:
                def sl(x): ctok['st'] = k.vm(x)
                for x in SL(ps): pend.append(lambda x=x: sl(x))
            for u in range(2):
                k.wait(ds=rtok[s_, u])
                k('v_mfma_f32_32x32x16_bf16 %s, %s, %s, %s' % (v(ACC + 16 * u, 16), a(4 * s_, 4), v(breg(s_, u), 4), '0' if s_ == 0 else v(ACC + 16 * u, 16)))
                if s_ + 2 < 32: rd(s_ + 2, u)
                if fix and s_ >= 2:
                    for _ in range(2): k(fix.pop(0))
                if pend: pend.pop(0)()
                elif w2q and gap % W2D == 0: w2q.pop(0)()
                gap += 1
        while pend: pend.pop(0)()
        k.stamp(13 if ps == 0 else 14); k.stamp2(5 + 5 * ps)
        k.wait(vm=ctok['st'])
        k('s_mov_b32 s80, 0')
        k('L_chk%d_p:' % ps)
        k('v_min_u32 v80, v9, v11')
        k('v_cmp_eq_u32 vcc, 0, v80')
        retry_tail(k, 'chk%d' % ps, SL(ps) + ['s_waitcnt vmcnt(0)'], 2)
        if ps == 0: k('s_add_u32 s70, s70, 0x2000\ns_addc_u32 s71, s71, 0')
        k('s_nop 7')
        k.stamp2(6 + 5 * ps)
        for u in range(2):
            b = 8 + 2 * u
            A_ = ACC + 16 * u
            for p in range(8):
                x = v(A_ + 2 * p, 2)
                k('v_pk_fma_f32 %s, %s, %s, %s op_sel_hi:[1,0,1] neg_lo:[0,1,0] neg_hi:[0,1,0]' % (x, v(128 + 2 * p, 2), v(b, 2), x))
            for p in range(8):
                x = v(A_ + 2 * p, 2)
                k('v_pk_fma_f32 %s, %s, %s, %s op_sel:[1,0,0] op_sel_hi:[1,1,1]' % (x, v(b, 2), x, v(144 + 2 * p, 2)))
            if ps == 1 and u == E('F3A_U', 0): sync_issue(k, 'f3a', F3L(0))
            W2EP = E('W2EP', 4)
            def tick(r):
                if w2q and W2EP and r % W2EP == W2EP - 1 and (u == 0 or E('W2EU', 0)): w2q.pop(0)()
            for r in range(16):
                k('v_exp_f32 v%d, v%d' % (80 + r, A_ + r)); tick(r)
            for p in range(8): k('v_pk_add_f32 %s, %s, 1.0 op_sel_hi:[1,0]' % (v(80 + 2 * p, 2), v(80 + 2 * p, 2)))
            for r in range(16):
                k('v_rcp_f32 v%d, v%d' % (80 + r, 80 + r)); tick(r)
            for p in range(8): k('v_pk_mul_f32 %s, %s, %s' % (v(A_ + 2 * p, 2), v(A_ + 2 * p, 2), v(80 + 2 * p, 2)))
            O = 96 + 8 * u
            for p in range(8): k('v_cvt_pk_bf16_f32 v%d, v%d, v%d' % (O + p, A_ + 2 * p, A_ + 2 * p + 1))
            k.vm('global_store_dwordx4 v%d, %s, s[68:69]%s' % (2 if u == 0 else 113, v(O, 4), SC))
            lst = k.vm('global_store_dwordx4 v%d, %s, s[68:69] offset:1024%s' % (2 if u == 0 else 113, v(O + 4, 4), SC))
        if ps == 0:
            lstA[0] = lst
            k('s_add_u32 s68, s68, %d\ns_addc_u32 s69, s69, 0' % (32 * 114688))
    print('w2 leftover ops', len(w2q))
    while w2q: w2q.pop(0)()
    sync_check(k, 'f3a', [F3L(0)], ['v_cmp_ne_u32 vcc, s81, v72'])
    k.barrier()
    k('s_add_u32 s10, s10, 1024')
    k('s_branch L_join')
    k('L_stats:')
    k.reset_counters()
    k('s_movk_i32 s10, 2048')
    k('s_lshl_b32 s62, s11, 8')
    add_ptr(k, 70, 14, 62)
    k('s_mov_b32 s62, 0xffff0000')
    k('v_lshlrev_b32 v3, 6, v0')
    k('v_bfe_u32 v4, v1, 3, 2')
    k('v_lshlrev_b32 v4, 6, v4')
    k('v_and_b32 v5, 7, v1')
    k('v_lshl_add_u32 v4, v5, 2, v4')
    k('v_lshrrev_b32 v5, 5, v1')
    k('v_lshl_add_u32 v4, v5, 13, v4')
    for ps in range(2):
        if ps == 1:
            poll(k, 'sf2b', [PL(126)], chk_tags([72, 73, 74, 75], 80))
            k('s_add_u32 s28, s28, 0x100000\ns_addc_u32 s29, s29, 0')
            k('s_add_u32 s70, s70, 0x2000\ns_addc_u32 s71, s71, 0')
        if ps == 0:
            xt = list(range(1, 9)); k.nvm = 8
        else: xt = [k.vm(x) for x in STL]
        for r in range(16): k('v_mov_b32 v%d, 0' % (16 + r))
        for i in range(8):
            k.wait(vm=xt[i])
            for j in range(4):
                r = 80 + 4 * i + j
                tt = 32 + 2 * (j & 1)
                k('v_lshlrev_b32 v%d, 16, v%d' % (tt, r))
                k('v_and_b32 v%d, s62, v%d' % (tt + 1, r))
                k('v_pk_add_f32 %s, %s, %s' % (v(16 + 2 * j, 2), v(16 + 2 * j, 2), v(tt, 2)))
                k('v_pk_fma_f32 %s, %s, %s, %s' % (v(24 + 2 * j, 2), v(tt, 2), v(tt, 2), v(24 + 2 * j, 2)))
        for pat in ('row_ror:4', 'row_ror:8'):
            for r in range(16): k('v_add_f32_dpp v%d, v%d, v%d %s row_mask:0xf bank_mask:0xf' % (16 + r, 16 + r, 16 + r, pat))
        for i in range(4): k.ds('ds_write_b128 v3, %s offset:%d' % (v(16 + 4 * i, 4), 16384 * ps + 16 * i))
        k.wait_all(vm=False)
        k.barrier()
        k('s_cmp_lg_u32 s50, 0')
        k('s_cbranch_scc1 L_st%d' % ps)
        for q in range(8):
            raw(k, 'ds_read_b32 v%d, v4 offset:%d' % (16 + 2 * q, 16384 * ps + 1024 * q))
            raw(k, 'ds_read_b32 v%d, v4 offset:%d' % (17 + 2 * q, 16384 * ps + 1024 * q + 32))
        k('s_waitcnt lgkmcnt(0)')
        for q in range(1, 8): k('v_pk_add_f32 v[16:17], v[16:17], %s' % v(16 + 2 * q, 2))
        k('v_mov_b64 v[18:19], v[16:17]')
        k('v_permlane32_swap_b32 v16, v18')
        k('v_permlane32_swap_b32 v17, v19')
        k('v_pk_add_f32 v[16:17], v[16:17], v[18:19]')
        k('v_mul_f32 v16, %s, v16' % f32(1.0 / 512))
        k('v_mul_f32 v17, %s, v17' % f32(1.0 / 512))
        k('v_fma_f32 v17, -v16, v16, v17')
        k('v_max_f32 v17, 0, v17')
        k('v_add_f32 v17, %s, v17' % f32(1e-5))
        k('v_rsq_f32 v17, v17')
        k('v_mul_f32 v17, %s, v17' % f32(-LOG2E))
        raw(k, 'global_store_dwordx2 v6, v[16:17], s[70:71]' + SC)
        k('L_st%d:' % ps)
    for ks in range(28):
        for op in w2_ops(k, ks): op()
    poll(k, 'sf3a', [F3L(0)], ['v_cmp_ne_u32 vcc, s81, v72'])
    k('L_join:')
    k.stamp(1); k.stamp2(12); k.stamp4(1)
    k.reset_counters()
    htok.clear()
    HA0 = E('HA0', 16)
    for s_ in range(HA0): hload(0, s_)
    for q in range(2): k.ds('ds_read_b128 %s, v117 offset:%d' % (v(96 + 4 * q, 4), 32 * q))
    for r in range(16): k('v_mov_b32 v%d, 0' % (80 + r))
    k('v_add_u32 v115, 0x100000, v116')
    k('v_add_u32 v119, 0x100000, v118')
    k.stamp4(2)
    k('s_waitcnt vmcnt(%d)' % HA0)
    k.barrier()
    signal(k, 'f3b', O_F3, 73, 74, nrep=1, sidx=10)
    aq = [lambda s_=s_: hload(0, s_) for s_ in range(HA0, 28)]
    trs = {}
    def rl(ps, q, r): trs[ps] = k.vm('global_load_short_d16_hi v%d, v%d, s[20:21] offset:%d%s' % (80 + 8 * ps + 4 * q + r, 116 - ps, (8 * q + r) * 64, LD_SC))
    for q in range(2):
        for r in range(4): aq.append(lambda q=q, r=r: rl(0, q, r))
    bq = [lambda q=q, r=r: rl(1, q, r) for q in range(2) for r in range(4)]
    FB = E('F3B_AT', 24); nh = [0]
    for ps in range(2):
        for s_ in range(28):
            k.wait(vm=htok[ps, s_])
            if s_ == 0: k.stamp2(13 + ps)
            if s_ in (0, 8, 16, 24): k.stamp4(3 + 6 * ps + s_ // 8)
            if ps == 0 and s_ == max(0, FB - E('F3B_D', 8)): sync_issue(k, 'f3b', F3L(1))
            if ps == 0 and s_ == FB:
                sync_check(k, 'f3b', [F3L(1)], ['v_cmp_ne_u32 vcc, s81, v72'])
                k.barrier()
                k.stamp(5); k.stamp4(7)
            for j in range(2):
                k('v_mfma_f32_32x32x16_bf16 %s, %s, %s, %s' % (v(ACC + 16 * j, 16), w2reg(s_)[j], a(4 * s_, 4), '0' if s_ == 0 else v(ACC + 16 * j, 16)))
                if ps == 0 and aq and (j == 0 or E('HAJ', 0)): aq.pop(0)()
                if ps == 1 and nh[0] < 28 and (j == 0 or E('HBJ', 0)): hload(1, nh[0]); nh[0] += 1
                elif ps == 1 and bq and s_ >= 10 and j == 0: bq.pop(0)()
                if ps == 0 and s_ >= FB:
                    for _ in range(E('HBR', 1)):
                        if nh[0] < s_ + j: hload(1, nh[0]); nh[0] += 1
        k.stamp4(8 + 5 * ps)
        for q in range(8):
            k.ds('ds_write_b128 v120, %s offset:%d' % (v(ACC + 4 * q, 4), 32768 * ps + q * 1024))
            if ps == 0 and FB < 28 and q % 2 == 1 and nh[0] < 28: hload(1, nh[0]); nh[0] += 1
        if ps == 0 and FB >= 28: sync_check(k, 'f3b', [F3L(1)], ['v_cmp_ne_u32 vcc, s81, v72'])
        k.wait_all(vm=False)
        k.barrier()
        if ps == 0 and FB >= 28:
            k.stamp(5)
            for _ in range(8): hload(1, nh[0]); nh[0] += 1
        if ps == 1: k.stamp4(14)
        rt_ = []
        for w_ in range(4):
            for q in range(2): t = k.ds('ds_read_b128 %s, v121 offset:%d' % (v(48 + 8 * w_ + 4 * q, 4), 32768 * ps + w_ * 8192 + q * 1024))
            rt_.append(t)
        while ps == 0 and nh[0] < E('HB1', 20): hload(1, nh[0]); nh[0] += 1
        k.wait(ds=rt_[1])
        for p in range(4): k('v_pk_add_f32 %s, %s, %s' % (v(48 + 2 * p, 2), v(48 + 2 * p, 2), v(56 + 2 * p, 2)))
        k.wait(ds=rt_[3])
        for p in range(4): k('v_pk_add_f32 %s, %s, %s' % (v(64 + 2 * p, 2), v(64 + 2 * p, 2), v(72 + 2 * p, 2)))
        k.wait(vm=trs[ps])
        for p in range(4):
            k('v_pk_add_f32 %s, %s, %s' % (v(48 + 2 * p, 2), v(48 + 2 * p, 2), v(64 + 2 * p, 2)))
            k('v_pk_fma_f32 %s, %s, %s, %s' % (v(48 + 2 * p, 2), v(48 + 2 * p, 2), v(96 + 2 * p, 2), v(80 + 8 * ps + 2 * p, 2)))
            k('v_cvt_pk_bf16_f32 v%d, v%d, v%d' % (104 + 4 * ps + p, 48 + 2 * p, 49 + 2 * p))
        b = 104 + 4 * ps
        k('v_permlane32_swap_b32 v%d, v%d' % (b, b + 2))
        k('v_permlane32_swap_b32 v%d, v%d' % (b + 1, b + 3))
        k.vm('global_store_dwordx4 v%d, %s, s[24:25]' % (118 + ps, v(b, 4)))

def build_single(path):
    k = Kern(NAME + '_kernel')
    phase0(k); conv_phase(k); mlp_phase(k)
    k.end()
    k('L_end:')
    k('s_endpgm')
    launch, (vg_, sg_, ac) = 'grid=(256,1,1) block=(256,1,1) lds=%d' % LDS_TOTAL, (512, 84, 256)
    out = [HEADER.rstrip(), '; @launch ' + launch, '.amdgcn_target "amdgcn-amd-amdhsa--gfx950"', k.text(vg_, sg_, ac), '.text\nL_text_end:\n    s_endpgm']
    print(k.name, k.stats)
    open(path, 'w').write('\n'.join(out) + '\n')

if __name__ == '__main__':
    build_single(sys.argv[1] if len(sys.argv) > 1 else ('diag.s' if DIAG else 'cdna_kernels/%s.s' % NAME))
```

```python
import os
from gen import *
E = lambda n, d: int(os.environ.get(n, str(d)))
WS_XG = 0x000000
WS_ST1 = 0x800000
WS_MODG = 0x820000
WS_FIN = 0x860000
WS_W1P = 0x1800000
WS_X1S = 0xB00000
WS_SYNC = 0xF00000
O_F2, O_F3 = 0x8000, 0xC000
L_T = 65536
L_CM = 98304; L_SC = 114688
L_STN = 118784; L_STX = 118784 + 8448 + 128
L_CV = 0; CHS = 21120
O_K1 = 4160; O_H = 8320; O_RED = 12928
L_X = 42240
L_W1 = 79872
NW1 = 16
L_SJ = L_W1 + NW1 * 4096
L_GS = L_SJ
LDS_TOTAL = L_SJ + 16384
O_FP = 0x6000
XS = E('XS', 16384 + 384)
SC = ' sc1'
LD_SC = os.environ.get('LD_SC', ' sc1')
W_SC = os.environ.get('W_SC', ' sc1')
TMO = 0x20000
SYNCW = 1
KSPLIT = E('KSPLIT', 1)

def raw(k, s_): k.lines.append('    ' + s_)

def retry_tail(k, name, loads, sleep=0):
    k('s_nop 0')
    k('s_cbranch_vccz L_%s_w' % name)
    k('s_add_u32 s80, s80, 1')
    k('s_cmp_gt_u32 s80, 0x%x' % TMO)
    k('s_cbranch_scc1 L_%s_w' % name)
    if sleep: k('s_sleep %d' % sleep)
    for l in loads: raw(k, l)
    k('s_branch L_%s_p' % name)
    k('L_%s_w:' % name)

def poll(k, name, loads, check):
    k('s_cmp_lg_u32 s50, %d' % SYNCW)
    k('s_cbranch_scc1 L_%s_w' % name)
    k('s_mov_b32 s80, 0')
    for l in loads: raw(k, l)
    k('L_%s_p:' % name)
    k('s_waitcnt vmcnt(0)')
    for c in check: k(c)
    retry_tail(k, name, loads, 1)
    k.barrier()

def signal(k, name, off, va, vd, nrep=8, sidx=None):
    k('s_cmp_lg_u32 s50, %d' % SYNCW)
    k('s_cbranch_scc1 L_%s_s' % name)
    if sidx is None:
        k('s_lshl_b32 s80, s2, 2')
        k('s_add_u32 s80, s80, 0x%x' % off)
    else:
        k('s_add_u32 s80, s%d, 0x%x' % (sidx, off))
    k('v_lshl_add_u32 v%d, v1, 10, s80' % va)
    k('v_mov_b32 v%d, s81' % vd)
    k('s_mov_b64 exec, %d' % ((1 << nrep) - 1))
    raw(k, 'global_store_dword v%d, v%d, s[14:15]%s' % (va, vd, SC))
    k('s_mov_b64 exec, -1')
    k('L_%s_s:' % name)

def chk_tags(regs, t):
    o = ['v_xor_b32 v%d, s81, v%d' % (t, regs[0])]
    for r in regs[1:]:
        o += ['v_xor_b32 v%d, s81, v%d' % (t + 1, r), 'v_or_b32 v%d, v%d, v%d' % (t, t, t + 1)]
    return o + ['v_cmp_ne_u32 vcc, 0, v%d' % t]

def phase0(k):
    load_ptrs(k)
    k('s_getpc_b64 s[82:83]')
    k('L_pf:')
    PFM = E('PFM', 1)
    if PFM == 0:
        k('v_lshlrev_b32 v255, 7, v0')
        k('v_min_u32 v255, L_text_end-L_pf-4, v255')
        raw(k, 'global_load_dword v255, v255, s[82:83]')
    else:
        N = E('PFN', 32)
        k('s_lshr_b32 s4, s2, 3')
        k('s_and_b32 s4, s4, %d' % (256 // N - 1))
        k('s_mul_i32 s4, s4, %d' % (N * 128))
        k('v_subrev_u32 v255, 192, v0')
        k('v_cmp_gt_u32 vcc, %d, v255' % N)
        k('v_lshl_add_u32 v255, v255, 7, s4')
        k('v_min_u32 v255, L_text_end-L_pf-4, v255')
        k('s_and_saveexec_b64 s[80:81], vcc')
        k('s_cbranch_execz L_pf2')
        raw(k, 'global_load_dword v255, v255, s[82:83]')
        k('L_pf2:')
        k('s_mov_b64 exec, -1')
    k('s_cmp_ge_u32 s2, 256')
    k('s_cbranch_scc1 L_end')
    k('s_memrealtime s[78:79]')
    wave_id(k, 50, 1)
    k('v_and_b32 v1, 63, v0')
    k('s_and_b32 s3, s2, 7')
    k('s_lshr_b32 s4, s2, 3')
    k('s_lshl_b32 s51, s3, 5')
    k('s_add_u32 s80, s51, s4')
    k('s_lshl_b32 s51, s80, 9')
    k('v_lshl_add_u32 v2, v0, 1, s51')
    for i in range(4, 11): k('v_mov_b32 v%d, 0' % i)
    k('s_lshr_b32 s52, s50, 1')
    k('s_lshl_b32 s53, s80, 1')
    k('s_add_u32 s53, s53, s52')
    k('s_lshl_b32 s54, s53, 1')
    k('v_mov_b32 v3, s54')
    k('v_lshrrev_b32 v77, 5, v0')
    k('v_and_b32 v78, 31, v0')
    k('v_lshlrev_b32 v78, 4, v78')
    k('v_lshl_add_u32 v79, v77, 10, v78')
    k('s_lshl_b32 s63, s2, 13')
    k('v_add_u32 v79, s63, v79')
    k.smem_wait()
    k('s_mov_b32 s34, s80')
    k('s_or_b32 s78, s78, 1')
    k('s_or_b32 s79, s2, s50')
    k('s_cmp_eq_u32 s79, 0')
    k('s_cbranch_scc0 L_nn')
    k('v_mov_b32 v250, s78')
    k('v_lshlrev_b32 v251, 6, v1')
    k('s_mov_b64 exec, 15')
    raw(k, 'global_store_dword v251, v250, s[%d:%d]%s' % (P_DBG, P_DBG + 1, SC))
    k('s_mov_b64 exec, -1')
    k('L_nn:')
    k.vm('global_load_short_d16_hi v10, v3, s[%d:%d]' % (P_LDT, P_LDT + 1))
    for i, p in enumerate((P_ARE, P_AIM, P_BRE, P_BIM, P_CRE, P_CIM)):
        tpar = k.vm('global_load_short_d16_hi v%d, v2, s[%d:%d]' % (4 + i, p, p + 1))
    k.vm('global_load_dwordx4 v[240:243], v79, s[%d:%d]' % (P_U, P_U + 1))
    tx = k.vm('global_load_dwordx4 v[244:247], v79, s[%d:%d] offset:512' % (P_U, P_U + 1))
    k('s_and_b32 s5, s4, 3')
    k('s_lshl_b32 s5, s5, 3')
    k('s_add_u32 s5, s5, s3')
    k('s_lshl_b32 s5, s5, 1')
    k('s_bfe_u32 s6, s4, 0x10002')
    k('s_add_u32 s5, s5, s6')
    k('s_lshr_b32 s6, s4, 3')
    k('s_cmp_ge_u32 s5, 48')
    k('s_cselect_b32 s7, 16, 0')
    k('s_add_u32 s7, s7, s5')
    k('s_lshl_b32 s7, s7, 6')
    k('s_lshl_b32 s8, s6, 2')
    k('s_add_u32 s8, s8, s50')
    k('s_mul_i32 s9, s8, %d' % (32 * 6144))
    k('s_add_u32 s7, s7, s9')
    k('v_lshrrev_b32 v250, 2, v1')
    k('v_mul_u32_u24 v254, 6144, v250')
    k('v_and_b32 v251, 3, v1')
    k('v_lshl_add_u32 v254, v251, 4, v254')
    k('s_lshl_b32 s9, s50, 12')
    k('s_add_u32 s9, s9, %d' % L_CM)
    k('v_mov_b32 v231, v254')
    k('s_lshl_b32 s8, s8, 6')
    k('s_and_b32 s64, s4, 1')
    k('s_lshl_b32 s64, s64, 3')
    k('s_add_u32 s64, s64, s3')
    k('s_lshl_b32 s64, s64, 1')
    k('s_bfe_u32 s65, s4, 0x10001')
    k('s_add_u32 s64, s64, s65')
    k('s_lshr_b32 s65, s4, 2')
    k('s_cmp_ge_u32 s64, 16')
    k('s_cselect_b32 s66, 64, 48')
    k('s_add_u32 s66, s66, s64')
    k('s_lshl_b32 s66, s66, 6')
    k('s_lshl_b32 s67, s65, 2')
    k('s_add_u32 s67, s67, s50')
    k('s_mul_i32 s68, s67, %d' % (16 * 6144))
    k('s_add_u32 s66, s66, s68')
    k('s_lshl_b32 s67, s67, 5')
    k('s_sub_u32 s67, s67, 64')
    k('v_min_u32 v248, 23, v1')
    k('v_cmp_gt_u32 vcc, 16, v248')
    k('v_mov_b32 v250, s67')
    k('v_mov_b32 v251, s8')
    k('v_cndmask_b32 v250, v250, v251, vcc')
    k('v_lshl_add_u32 v248, v248, 2, v250')
    tc = k.vm('global_load_dword v248, v248, s[%d:%d]' % (P_C, P_C + 1))
    k('s_lshl_b32 s60, s34, 2')
    k('s_load_dword s30, s[%d:%d], s60' % (P_DSK, P_DSK + 1))
    if E('W1T', 0):
        k('s_and_b32 s75, s3, 1')
        k('s_mul_i32 s75, s75, 7')
        k('s_lshr_b32 s76, s4, 2')
        k('s_add_u32 s75, s75, s76')
        k('s_min_u32 s75, s75, 13')
        k('s_lshl_b32 s75, s75, 8')
        k('s_and_b32 s76, s4, 3')
        k('s_mul_i32 s76, s76, %d' % (128 * 3584))
        k('s_add_u32 s75, s75, s76')
        k('v_lshrrev_b32 v237, 1, v0')
        k('v_mul_u32_u24 v237, 3584, v237')
        k('v_and_b32 v238, 1, v0')
        k('v_lshl_add_u32 v237, v238, 7, v237')
        k('v_add_u32 v237, s75, v237')
        k.vm('global_load_dword a200, v237, s[%d:%d]' % (P_W1, P_W1 + 1))
    if E('W2T', 0):
        k('s_min_u32 s75, s2, 111')
        k('s_lshl_b32 s75, s75, 14')
        k('v_and_b32 v238, 127, v0')
        k('v_lshl_add_u32 v238, v238, 7, s75')
        k.vm('global_load_dword a201, v238, s[%d:%d]' % (P_W2, P_W2 + 1))
    k('s_cmp_lt_u32 s2, 112')
    k('s_cbranch_scc0 L_pj_w1')
    k('s_lshl_b32 s76, s2, 14')
    k('s_lshl_b32 s70, s50, 12')
    k('s_add_u32 s76, s76, s70')
    add_ptr(k, 72, P_W2, 76)
    k('s_add_u32 s31, s70, %d' % L_SJ)
    k('s_movk_i32 s79, 1024')
    for r in range(4):
        k('v_xor_b32 v%d, %d, v1' % (224 + r, r << 2))
        k('v_lshlrev_b32 v%d, 4, v%d' % (224 + r, 224 + r))
        if r: k('v_add_u32 v%d, %d, v%d' % (224 + r, 1024 * r, 224 + r))
    k('s_branch L_pj_go')
    k('L_pj_w1:')
    k('s_sub_u32 s75, s2, 112')
    k('s_min_u32 s75, s75, 111')
    k('s_and_b32 s26, s75, 7')
    k('s_lshr_b32 s27, s75, 3')
    k('s_lshl_b32 s75, s26, 4')
    k('s_add_u32 s75, s75, s50')
    k('s_mul_i32 s75, s75, %d' % (4 * 3584))
    k('s_lshl_b32 s76, s27, 8')
    k('s_add_u32 s75, s75, s76')
    add_ptr(k, 72, P_W1, 75)
    k('s_lshl_b32 s31, s50, 10')
    k('s_add_u32 s31, s31, %d' % L_SJ)
    k('s_movk_i32 s79, 4096')
    k('v_lshrrev_b32 v228, 4, v1')
    k('v_and_b32 v229, 15, v1')
    k('v_lshlrev_b32 v230, 2, v228')
    k('v_xor_b32 v230, v230, v229')
    k('v_mul_u32_u24 v224, 3584, v228')
    k('v_lshl_add_u32 v224, v230, 4, v224')
    for r in range(1, 4): k('v_add_u32 v%d, %d, v224' % (224 + r, r * 16 * 3584))
    k('L_pj_go:')
    def pkdma(r):
        k('s_mov_b32 m0, s31')
        k.tpk = k.vm('global_load_lds_dwordx4 v%d, s[72:73]' % (224 + r))
        k('s_add_u32 s31, s31, s79')
    SNON = 0
    if SNON:
        add_ptr(k, 10, P_WMOD, 7)
        k('s_mov_b32 m0, s9')
        k.vm('global_load_lds_dwordx4 v231, s[10:11]')
        k('s_add_u32 s10, s10, %d' % (16 * 6144 - 1024))
        k('s_addc_u32 s11, s11, 0')
        k.vm('global_load_lds_dwordx4 v231, s[10:11] offset:1024')
        add_ptr(k, 10, P_WMOD, 66)
        k('s_add_u32 m0, s9, 2048')
        tcm = k.vm('global_load_lds_dwordx4 v231, s[10:11]')
        for r in range(4): pkdma(r)
    k('s_and_b32 s75, s5, 15')
    k('s_lshl_b32 s75, s75, 13')
    k('s_lshr_b32 s76, s5, 4')
    k('s_lshl_b32 s76, s76, 6')
    k('s_add_u32 s75, s75, s76')
    k('s_lshl_b32 s76, s6, 3')
    k('s_add_u32 s75, s75, s76')
    k('s_and_b32 s76, s64, 15')
    k('s_lshl_b32 s76, s76, 13')
    k('s_lshr_b32 s77, s64, 4')
    k('s_lshl_b32 s77, s77, 7')
    k('s_add_u32 s76, s76, s77')
    k('s_lshl_b32 s77, s65, 3')
    k('s_add_u32 s76, s76, s77')
    k('s_add_u32 s76, s76, 256')
    k('s_cmp_eq_u32 s50, 0')
    k('s_cselect_b32 s75, s75, s76')
    ws_ptr(k, 16, WS_MODG, 75)
    k('v_mov_b32 v12, 0\nv_mov_b32 v13, 0\nv_mov_b32 v14, 0\nv_mov_b32 v15, 0')
    ws_ptr(k, 14, WS_SYNC)
    tr_addr32(k, 254, 1, 250, 251, 6, 8)
    k('v_add_u32 v254, s9, v254')
    k('v_and_b32 v40, 31, v1')
    k('v_lshrrev_b32 v41, 5, v1')
    k('v_lshrrev_b32 v253, 1, v40')
    k('v_lshlrev_b32 v253, 9, v253')
    k('v_and_b32 v250, 1, v40')
    k('s_add_u32 s75, s50, 5')
    k('v_lshlrev_b32 v250, s75, v250')
    k('v_add_u32 v253, v253, v250')
    k('v_mul_u32_u24 v11, 1056, v77')
    k('v_add_u32 v11, v11, v78')
    k('v_add_u32 v11, %d, v11' % L_STN)
    k('v_bfe_u32 v56, v1, 2, 3')
    k('v_mul_u32_u24 v236, 1056, v56')
    k('v_and_b32 v57, 3, v1')
    k('v_lshl_add_u32 v236, v57, 3, v236')
    k('v_lshl_add_u32 v236, v41, 5, v236')
    k('s_lshl_b32 s75, s50, 8')
    k('s_add_u32 s75, s75, %d' % L_STN)
    k('v_add_u32 v236, s75, v236')
    k('v_and_b32 v57, 15, v1')
    k('v_lshl_add_u32 v57, v41, 4, v57')
    k('v_lshlrev_b32 v235, 5, v57')
    k('v_bfe_u32 v57, v1, 4, 1')
    k('v_lshl_add_u32 v235, v57, 4, v235')
    k('s_lshl_b32 s75, s2, 10')
    k('s_lshl_b32 s76, s50, 20')
    k('s_add_u32 s75, s75, s76')
    ws_ptr(k, 12, WS_XG, 75)
    k('s_lshl_b32 s75, s2, 6')
    k('s_lshl_b32 s76, s50, 4')
    k('s_add_u32 s75, s75, s76')
    ws_ptr(k, 24, WS_ST1, 75)
    k('s_mov_b32 s58, 0xffff0000')
    k('s_mov_b32 s63, 0x3f803f80')
    k('v_lshlrev_b32 v249, 2, v0')
    k('v_add_u32 v249, %d, v249' % L_SC)
    k('v_lshlrev_b32 v233, 4, v41')
    k('s_lshl_b32 s75, s50, 8')
    k('s_add_u32 s75, s75, %d' % L_SC)
    k('v_add_u32 v233, s75, v233')
    k('s_lshl_b32 s75, s50, 10')
    k('v_lshl_add_u32 v252, v1, 2, s75')
    k('v_add_u32 v252, %d, v252' % (L_SC + 1024))
    k('s_lshl_b32 s55, s50, 14')
    k('v_lshl_add_u32 v16, v1, 2, s55')
    for r in range(1, 16): k('v_xor_b32 v%d, %d, v16' % (16 + r, r << 4))
    k('v_and_b32 v42, 15, v1')
    k('v_xor_b32 v42, v42, v41')
    k('v_lshlrev_b32 v42, 4, v42')
    k('v_lshl_add_u32 v42, v40, 8, v42')
    k('v_add_u32 v32, s55, v42')
    for ks in range(1, 8): k('v_xor_b32 v%d, %d, v32' % (32 + ks, ks << 5))
    k('s_mul_i32 s56, s52, 6912')
    k('s_add_u32 s56, s56, %d' % (L_T - 0x3F00 * 4))
    k('v_lshlrev_b32 v42, 3, v40')
    k('v_cvt_f32_u32 v42, v42')
    k('v_cvt_f32_u32 v43, v41')
    c0 = [0, 1, 2, 3, 256, 258, 260, 262]
    c1 = [4, 5, 6, 7, 512, 516, 768, 772]
    for r in range(8):
        k('v_fmamk_f32 v56, v43, %s, v42' % f32(c1[r] - c0[r]))
        if c0[r]: k('v_add_f32 v56, %s, v56' % f32(c0[r]))
        else: k('v_max_f32 v56, 0.5, v56')
        k('v_cvt_pk_bf16_f32 v56, v56, 0')
        k('v_lshl_add_u32 v%d, v56, 2, s56' % (44 + r))
    k('v_cmp_eq_u32 vcc, 32, v1')
    k('v_fmaak_f32 v57, 4.0, v42, %s' % f32(4096.0))
    k('v_mov_b32 v58, %s' % f32(2048.0))
    k('v_cndmask_b32 v58, v57, v58, vcc')
    k('v_cmp_lt_u32 vcc, 31, v1')
    for r in range(8, 12):
        k('v_add_f32 v56, %s, v42' % f32(1024 + 256 * (r - 8)))
        k('v_cndmask_b32 v56, v56, v%d, vcc' % (58 if r == 8 else 57))
        k('v_cvt_pk_bf16_f32 v56, v56, 0')
        k('v_lshl_add_u32 v%d, v56, 2, s56' % (44 + r))
    k('v_and_b32 v59, 127, v0')
    k('v_lshlrev_b32 v56, 4, v59')
    k('v_sub_u32 v56, 2047, v56')
    k('v_cvt_f32_u32 v57, v56')
    for i in range(17):
        if i: k('v_add_f32 v56, %s, v57' % f32(-float(i)))
        else: k('v_mov_b32 v56, v57')
        if i >= 15: k('v_max_f32 v56, 0.5, v56')
        k('v_cvt_pk_bf16_f32 v56, v56, 0')
        k('v_lshl_add_u32 v%d, v56, 2, s56' % (60 + i))
    k('s_mov_b32 s57, 0x07060302')
    k('s_mov_b32 s59, %s' % f32(LOG2E))
    lo_log2e = LOG2E - struct.unpack('<f', struct.pack('<f', LOG2E))[0]
    inv2pi = 1.0 / (2 * math.pi)
    inv2pi_f = struct.unpack('<f', struct.pack('<f', inv2pi))[0]
    k('s_mov_b32 s60, %s' % f32(inv2pi_f))
    k('s_mov_b32 s61, %s' % f32(inv2pi - inv2pi_f))
    k('s_mov_b32 s62, %s' % f32(lo_log2e))
    k('s_lshl_b32 s75, s50, 6')
    k('v_mov_b32 v234, s75')
    NL = 'global_load_dword v232, v234, s[%d:%d]%s' % (P_DBG, P_DBG + 1, SC)
    if not SNON:
        tn = k.vm(NL)
        add_ptr(k, 10, P_WMOD, 7)
        k('s_mov_b32 m0, s9')
        k.vm('global_load_lds_dwordx4 v231, s[10:11]')
        k('s_add_u32 s10, s10, %d' % (16 * 6144 - 1024))
        k('s_addc_u32 s11, s11, 0')
        k.vm('global_load_lds_dwordx4 v231, s[10:11] offset:1024')
        add_ptr(k, 10, P_WMOD, 66)
        k('s_add_u32 m0, s9, 2048')
        tcm = k.vm('global_load_lds_dwordx4 v231, s[10:11]')
        for r in range(4): pkdma(r)
    k('s_cmp_lt_u32 s2, 112')
    k('s_cbranch_scc0 L_pa_w1')
    tr_addr32(k, 224, 1, 250, 251, 10, 4)
    k('s_lshl_b32 s76, s50, 8')
    k('s_add_u32 s76, s76, %d' % L_SJ)
    k('v_add_u32 v224, s76, v224')
    k('v_bfe_u32 v251, v1, 2, 2')
    k('v_lshlrev_b32 v251, 6, v251')
    k('v_xor_b32 v224, v224, v251')
    for q in range(1, 4): k('v_xor_b32 v%d, %d, v224' % (224 + q, q << 6))
    k('s_mul_i32 s76, s50, %d' % (4 * 114688))
    k('s_lshl_b32 s75, s2, 10')
    k('s_add_u32 s76, s76, s75')
    ws_ptr(k, 70, WS_W2P, 76)
    k('s_mov_b32 s75, 114688')
    k('s_movk_i32 s76, 8192')
    k('s_branch L_pa_go')
    k('L_pa_w1:')
    tr_addr32(k, 224, 1, 250, 251, 8, 8)
    k('v_bfe_u32 v251, v1, 2, 2')
    k('v_xor_b32 v251, s50, v251')
    k('v_lshl_add_u32 v224, v251, 6, v224')
    k('v_add_u32 v224, %d, v224' % L_SJ)
    for q in range(1, 4): k('v_add_u32 v%d, %d, v224' % (224 + q, q * 4096))
    k('s_lshl_b32 s76, s27, 2')
    k('s_add_u32 s76, s76, s50')
    k('s_lshl_b32 s76, s76, 15')
    k('s_lshl_b32 s75, s26, 12')
    k('s_add_u32 s76, s76, s75')
    ws_ptr(k, 70, WS_W1P, 76)
    k('s_movk_i32 s75, 1024')
    k('s_movk_i32 s76, 1024')
    k('L_pa_go:')
    for q in range(4): k('v_add_u32 v%d, s76, v%d' % (228 + q, 224 + q))
    k('v_lshlrev_b32 v223, 4, v1')
    k('v_add_u32 v237, s75, v223')
    k('v_add_u32 v238, s75, v237')
    k('v_add_u32 v239, s75, v238')
    k('s_lshr_b32 s5, s3, 1')
    k('s_lshl_b32 s5, s5, 2')
    k('s_and_b32 s75, s4, 3')
    k('s_add_u32 s5, s5, s75')
    k('s_and_b32 s7, s3, 1')
    k('s_mul_i32 s7, s7, 7')
    k('s_lshr_b32 s75, s4, 2')
    k('s_add_u32 s7, s7, s75')
    k('s_min_u32 s7, s7, 13')
    k('s_lshl_b32 s6, s7, 2')
    k('s_add_u32 s6, s6, s50')
    k.smem_wait()
    k.wait(vm=tpar)
    k('v_mov_b32 v255, v223')
    k.stamp(2); k.stamp3(1)
    if SNON: k('s_load_dword s81, s[%d:%d], 0 glc' % (P_DBG, P_DBG + 1))
    k('v_mul_f32 v78, s59, v10')
    k('v_fma_f32 v79, v10, s59, -v78')
    k('v_fma_f32 v79, v10, s62, v79')
    k('v_exp_f32 v78, v78')
    k('v_mul_f32 v79, %s, v79' % f32(math.log(2.0)))
    k('v_fma_f32 v78, v78, v79, v78')
    k('v_cvt_pk_bf16_f32 v78, v78, v78')
    k('v_and_b32 v78, s58, v78')
    k('v_mul_f32 v4, v78, v4')
    k('v_mul_f32 v5, v78, v5')
    k('v_mul_f32 v152, v78, v6')
    k('v_mul_f32 v154, v78, v7')
    E0 = 96
    cmul1(k, E0, 8, 152); cmul2(k, E0, 8, 152)
    k('v_mul_f32 v4, s59, v4')
    Z1, Z256, Z8, Z128 = 80, 84, 152, 156
    def zpow(dst, p, conj, t):
        pf = f32(float(p))
        return ['v_mul_f32 v%d, %s, v4' % (t, pf), 'v_mul_f32 v%d, %s, v5' % (t + 1, pf), 'v_exp_f32 v%d, v%d' % (t, t),
                'v_mul_f32 v%d, s60, v%d' % (t + 2, t + 1), 'v_fma_f32 v%d, v%d, s60, -v%d' % (t + 3, t + 1, t + 2),
                'v_fma_f32 v%d, v%d, s61, v%d' % (t + 3, t + 1, t + 3), 'v_fract_f32 v%d, v%d' % (t + 2, t + 2),
                'v_add_f32 v%d, v%d, v%d' % (t + 2, t + 2, t + 3), 'v_cos_f32 v%d, v%d' % (t + 3, t + 2), 'v_sin_f32 v%d, v%d' % (t + 2, t + 2),
                'v_mul_f32 v%d, v%d, v%d' % (dst, t, t + 3), 'v_mul_f32 v%d, v%d, %sv%d' % (dst + 2, t, '-' if conj else '', t + 2)]
    for p_, q_ in ((zpow(Z1, 1, False, 88), zpow(Z256, 256, False, 92)), (zpow(Z8, 8, True, 88), zpow(Z128, 128, True, 92))):
        for x, y in zip(p_, q_): k(x); k(y)
    T0 = 140
    def split_a(e, i):
        t = T0 + 6 * (i & 1)
        if not KSPLIT:
            k('v_cvt_pk_bf16_f32 v%d, v%d, v%d' % (t + 4, e, e + 1)); return
        k('v_perm_b32 v%d, v%d, v%d, s57' % (t + 4, e + 1, e))
        k('v_and_b32 v%d, s58, v%d' % (t, e))
        k('v_and_b32 v%d, s58, v%d' % (t + 1, e + 1))
    def split_b(e, i, row):
        t = T0 + 6 * (i & 1)
        if not KSPLIT: return k.ds('ds_write_b32 v%d, v%d offset:%d' % (16 + (row & 15), t + 4, row * 256))
        k('v_pk_add_f32 %s, %s, %s neg_lo:[0,1] neg_hi:[0,1]' % (v(t + 2, 2), v(e, 2), v(t, 2)))
        k('v_cvt_pk_bf16_f32 v%d, v%d, v%d' % (t + 5, t + 2, t + 3))
        return k.ds('ds_write2st64_b32 v%d, v%d, v%d offset0:%d offset1:%d' % (16 + (row & 15), t + 4, t + 5, row, 32 + row))
    hi = {r: (r - 1, Z1) for r in range(1, 8)}
    hi.update({8: (0, Z256), 9: (2, Z256), 10: (4, Z256), 11: (6, Z256), 12: (8, Z256), 13: (10, Z256), 14: (12, Z256), 15: (13, Z256),
               16: (14, Z256), 17: (16, Z256), 18: (17, Z256), 19: (18, Z256), 20: (19, Z256)})
    order = [0, 1, 8, 2, 12, 3, 14, 4, 16, 5, 17, 6, 18, 7, 19, 9, 20, 10, 11, 13, 15]
    for i, r in enumerate(order):
        nxt = order[i + 1] if i + 1 < len(order) else None
        if nxt is not None: cmul1(k, E0 + 2 * nxt, E0 + 2 * hi[nxt][0], hi[nxt][1])
        split_a(E0 + 2 * r, i)
        if nxt is not None: cmul2(k, E0 + 2 * nxt, E0 + 2 * hi[nxt][0], hi[nxt][1])
        split_b(E0 + 2 * r, i, r)
    AH, AL = 160, 192
    for ks in range(8):
        k.ds('ds_read_b128 %s, v%d' % (v(AH + 4 * ks, 4), 32 + ks))
        if KSPLIT: k.ds('ds_read_b128 %s, v%d offset:8192' % (v(AL + 4 * ks, 4), 32 + ks))
    for i in range(4): k('v_mov_b32 v%d, 0' % (96 + i))
    k.stamp3(2)
    k.wait(vm=tx)
    k.stamp3(3)
    for i in range(2): k.ds('ds_write_b128 v11, %s offset:%d' % (v(240 + 4 * i, 4), 512 * i))
    for j in range(8):
        k('v_dot2c_f32_bf16 v%d, s63, v%d' % (96 + (j & 1), 240 + j))
        k('v_dot2c_f32_bf16 v%d, v%d, v%d' % (98 + (j & 1), 240 + j, 240 + j))
    if SNON:
        k.wait(vm=tc)
        k.smem_wait()
        k('v_mov_b32 v232, s81')
    else: k.wait(vm=tn)
    k('s_mov_b32 s80, 0')
    k('L_non_p:')
    k('v_cmp_eq_u32 vcc, 0, v232')
    retry_tail(k, 'non', [NL, 's_waitcnt vmcnt(0)'])
    k('v_readfirstlane_b32 s81, v232')
    k.stamp3(4)
    GR = [100 + 4 * q for q in range(3)] + [120]
    for q in range(4): k('v_mov_b32 v%d, v232\nv_mov_b32 v%d, v232' % (GR[q] + 2, GR[q] + 3))
    k.wait_all(vm=False)
    k.barrier()
    tq = [k.ds('ds_read_b64_tr_b16 %s, v236 offset:%d' % (v(GR[q], 2), 64 * q)) for q in range(4)]
    k('v_lshlrev_b32 v116, 16, v248')
    k('v_and_b32 v117, s58, v248')
    k('v_add_f32 v96, v96, v97')
    k('v_add_f32 v98, v98, v99')
    nm = 'v_mul_f32 v%%d, %s, v%%d' % f32(-LOG2E)
    silu = [nm % (118, 116), nm % (119, 117), 'v_exp_f32 v118, v118', 'v_exp_f32 v119, v119', 'v_add_f32 v118, 1.0, v118', 'v_add_f32 v119, 1.0, v119',
            'v_rcp_f32 v118, v118', 'v_rcp_f32 v119, v119', 'v_mul_f32 v116, v116, v118', 'v_mul_f32 v117, v117, v119', 'v_cvt_pk_bf16_f32 v116, v116, v117']
    for pat in ('quad_perm:[1,0,3,2]', 'quad_perm:[2,3,0,1]', 'row_half_mirror', 'row_mirror'):
        k(silu.pop(0)); k(silu.pop(0))
        k('v_add_f32_dpp v96, v96, v96 %s row_mask:0xf bank_mask:0xf' % pat)
        k('v_add_f32_dpp v98, v98, v98 %s row_mask:0xf bank_mask:0xf' % pat)
    k('v_mov_b32 v97, v96')
    k('v_mov_b32 v99, v98')
    for q in range(4):
        k.wait(ds=tq[q])
        k.vm('global_store_dwordx4 v235, %s, s[12:13]%s' % (v(GR[q], 4), SC))
        if q < 3: k('s_add_u32 s12, s12, 0x40000'); k('s_addc_u32 s13, s13, 0')
    while silu: k(silu.pop(0))
    k.ds('ds_write_b32 v249, v116')
    k('v_permlane16_swap_b32 v96, v97')
    k('v_permlane16_swap_b32 v98, v99')
    for ks in range(3): k.ds('ds_read_b128 %s, v233 offset:%d' % (a(32 + 4 * ks, 4), 32 * ks))
    k('v_add_f32 v96, v96, v97')
    k('v_add_f32 v98, v98, v99')
    k('v_mul_f32 v96, %s, v96' % f32(1.0 / 512))
    k('v_mul_f32 v98, %s, v98' % f32(1.0 / 512))
    k('v_fma_f32 v98, -v96, v96, v98')
    k('v_max_f32 v98, 0, v98')
    k('v_add_f32 v98, %s, v98' % f32(1e-5))
    k('v_rsq_f32 v240, v98')
    k('v_mul_f32 v242, v96, v240')
    k('v_mov_b32 v241, v240')
    k('v_mov_b32 v243, v242')
    k('v_permlane32_swap_b32 v240, v241')
    k('v_permlane32_swap_b32 v242, v243')
    k('v_cvt_pk_bf16_f32 v242, v242, v243')
    k('v_mov_b32 v243, v232')
    k('s_mov_b64 exec, 1')
    k.vm('global_store_dwordx4 v12, v[240:243], s[24:25]' + SC)
    k('s_mov_b64 exec, -1')
    def mod_a():
        k.stamp3(6)
        k.wait(vm=tcm)
        k.stamp3(7)
        for ks in range(3):
            k.ds('ds_read_b64_tr_b16 %s, v254 offset:%d' % (a(48 + 4 * ks, 2), ks * 1024))
            k.tmr = k.ds('ds_read_b64_tr_b16 %s, v254 offset:%d' % (a(50 + 4 * ks, 2), ks * 1024 + 256))
    def mod_b():
        k.wait(ds=k.tmr)
        k('v_mfma_f32_32x32x16_bf16 a[64:79], a[32:35], a[48:51], 0')
        k('v_mfma_f32_32x32x16_bf16 a[80:95], a[40:43], a[56:59], 0')
        k('v_mfma_f32_32x32x16_bf16 a[64:79], a[36:39], a[52:55], a[64:79]')
    def mod_c():
        k.ds('ds_write_b32 v249, a80 offset:2048')
        k.ds('ds_write_b32 v249, a64 offset:1024')
        k.stamp3(8)
        k.wait_all(vm=False)
        k.barrier()
        k.stamp3(9)
        for i in range(4): k.tp = k.ds('ds_read_b32 v%d, v252 offset:%d' % (244 + i, 256 * i))
    def mod_d():
        k.wait(ds=k.tp)
        k('s_cmp_ge_u32 s50, 2')
        k('s_cbranch_scc1 L_cm2')
        k('v_add_f32 v244, v244, v245')
        k('v_add_f32 v246, v246, v247')
        k('v_add_f32 v244, v244, v246')
        k('v_mov_b32 v245, v232')
        raw(k, 'global_store_dwordx2 v253, v[244:245], s[16:17]' + SC)
        k('s_branch L_cm3')
        k('L_cm2:')
        k('v_and_b32 v246, 15, v1')
        k('s_lshl_b32 s75, s2, 6')
        k('v_lshl_add_u32 v246, v246, 2, s75')
        raw(k, 'global_store_dword v246, v12, s[14:15]' + SC)
        k('L_cm3:')
    def pack_out():
        for q in range(4):
            k.ds('ds_read_b64_tr_b16 %s, v%d' % (a(4 * q, 2), 224 + q))
            pt = k.ds('ds_read_b64_tr_b16 %s, v%d' % (a(4 * q + 2, 2), 228 + q))
        k.wait(ds=pt)
        k('s_cmp_ge_u32 s2, 224')
        k('s_cbranch_scc1 L_pk_no')
        for q in range(4): raw(k, 'global_store_dwordx4 v%d, %s, s[70:71]%s' % (255 if q == 0 else 236 + q, a(4 * q, 4), SC))
        k('L_pk_no:')
        k.tall = k.nvm
    k('s_nop 1')
    k.stamp(4); k.stamp3(5)
    eq = []
    L0 = 96
    k('v_mov_b32 v%d, 1.0' % L0)
    k('v_mov_b32 v%d, 0' % (L0 + 1))
    lo_order = []
    for m in range(16): lo_order += [m, 16 + m]
    def lreg(m): return L0 + 2 * m if m < 16 else 132 + 2 * (m & 1)
    def lsrc(m): return (lreg(m - 1), Z8) if m < 16 else (lreg(m - 16), Z128)
    for i, m in enumerate(lo_order):
        nxt = lo_order[i + 1] if i + 1 < len(lo_order) else None
        if nxt is not None: cmul1(k, lreg(nxt), *lsrc(nxt))
        split_a(lreg(m), i)
        if nxt is not None: cmul2(k, lreg(nxt), *lsrc(nxt))
        split_b(lreg(m), i, m)
        M0 = E('MODAT', 2)
        if i == M0: mod_a()
        if i == M0 + 2: mod_b()
        if i == M0 + 5: mod_c()
        if i == M0 + 7: mod_d()
        if i == E('PKO', 20):
            k.wait(vm=k.tpk); k.barrier(); pack_out()
    while eq: eq.pop(0)()
    if E('FPB', 1) == 3:
        k.wait_all(vm=True, ds=False)
        k.barrier()
        signal(k, 'fp', O_FP, 250, 251)
    k.stamp3(10)
    ACC = 224
    bt = []
    k.wait_all(vm=False, ds=True)
    for ks in range(8):
        t = k.ds('ds_read_b128 %s, v%d' % (v(96 + 8 * ks, 4), 32 + ks))
        if KSPLIT: t = k.ds('ds_read_b128 %s, v%d offset:8192' % (v(100 + 8 * ks, 4), 32 + ks))
        bt.append(t)
    fill = []
    F = lambda x: fill.append(x)
    F('v_lshrrev_b32 v7, 2, v1'); F('v_and_b32 v8, 3, v1'); F('v_lshlrev_b32 v16, 10, v7'); F('v_lshl_add_u32 v16, v8, 4, v16')
    F('s_lshl_b32 s60, s50, 16\ns_lshr_b32 s61, s34, 4\ns_lshl_b32 s61, s61, 18\ns_add_u32 s60, s60, s61')
    F('s_and_b32 s61, s34, 15\ns_lshl_b32 s61, s61, 6\ns_add_u32 s60, s60, s61\ns_add_u32 s62, s48, s60\ns_addc_u32 s63, s49, 0')
    assert WS_XG == 0
    for i in range(1, 4): F('v_add_u32 v%d, 0x%x, v16' % (16 + i, i * 16384))
    F('v_and_b32 v10, 1, v8'); F('v_lshlrev_b32 v24, 6, v7'); F('v_lshl_add_u32 v24, v10, 5, v24'); F('v_lshrrev_b32 v9, 1, v8'); F('v_lshl_add_u32 v24, v9, 4, v24')
    F('s_lshl_b32 s60, s50, 12\ns_add_u32 s60, s60, 0x%x\ns_add_u32 s24, s48, s60\ns_addc_u32 s25, s49, 0' % WS_ST1)
    F('v_lshlrev_b32 v21, 3, v1')
    F('s_lshl_b32 s60, s34, 9\ns_add_u32 s60, s60, 0x%x\ns_add_u32 s64, s48, s60\ns_addc_u32 s65, s49, 0' % WS_MODG)
    XD = [240, 244, 248, 252]
    k.XD = XD
    XL1 = ['global_load_dwordx4 %s, v%d, s[62:63]%s' % (v(XD[i], 4), 16 + i, SC) for i in range(4)] + ['global_load_dwordx2 v[22:23], v21, s[64:65]' + SC]
    XL2 = ['global_load_dwordx4 %s, v24, s[24:25] offset:%d%s' % (v(80 + 4 * i, 4), i * 1024, SC) for i in range(4)]
    k.XL = XL1 + XL2
    F('s_or_b32 s66, s55, 0x4000'); F('v_lshl_add_u32 v3, v1, 4, s66')
    F('s_mul_i32 s55, s52, %d\ns_add_u32 s55, s55, %d' % (CHS, L_CV)); F('v_lshl_add_u32 v2, v59, 5, s55')
    for x in XL1 + XL2: F('VM ' + x); F('s_nop 0')
    def emit_fill():
        x = fill.pop(0)
        if x.startswith('VM '): k.vm(x[3:])
        else: k(x)
    for ks in range(8):
        k.wait(ds=bt[ks])
        c = '0' if ks == 0 else v(ACC, 16)
        ms = [(AH + 4 * ks, 96 + 8 * ks)] + ([(AH + 4 * ks, 100 + 8 * ks), (AL + 4 * ks, 96 + 8 * ks)] if KSPLIT else [])
        for x, y in ms:
            k('v_mfma_f32_32x32x16_bf16 %s, %s, %s, %s' % (v(ACC, 16), v(x, 4), v(y, 4), c)); c = v(ACC, 16)
            for _ in range(2 if KSPLIT else 4):
                if fill: emit_fill()
    while fill: emit_fill()
    k.stamp3(11)
    k('s_nop 7\ns_nop 3')
    k('s_bitcmp1_b32 s50, 0')
    k('s_cbranch_scc0 L_kg_a')
    for i in range(3): k.ds('ds_write_b128 v3, %s offset:%d' % (v(ACC + 4 * i, 4), 1024 * i))
    k.wait_all(vm=False)
    k('L_kg_a:')
    if E('FPB', 1) == 2: k('s_waitcnt vmcnt(%d)' % (k.nvm - k.tall))
    k.barrier()
    k.stamp3(12)
    if E('FPB', 1) == 2:
        signal(k, 'fp', O_FP, 28, 29)
        k('s_bitcmp1_b32 s50, 0')
    k('s_cbranch_scc1 L_kg_b')
    for i in range(3): k.ds('ds_read_b128 %s, v3 offset:%d' % (v(96 + 4 * i, 4), 1024 * i))
    k.wait_all(vm=False)
    for i in range(6): k('v_pk_add_f32 %s, %s, %s' % (v(96 + 2 * i, 2), v(96 + 2 * i, 2), v(ACC + 2 * i, 2)))
    for r in range(12): k.ds('ds_write_b32 v%d, v%d' % (44 + r, 96 + r))
    k.wait_all(vm=False)
    k('L_kg_b:')
    if E('FPB', 1) == 1: k('s_waitcnt vmcnt(%d)' % (k.nvm - k.tall))
    k.barrier()
    k.stamp3(13)
    if E('FPB', 1) == 1: signal(k, 'fp', O_FP, 28, 29)
    k('v_cmp_eq_u32 vcc, 127, v59')
    G = 96
    gt = [k.ds('ds_read_b32 v%d, v%d' % (G + i, 60 + i)) for i in range(17)]
    conv_setup(k)
    k.wait(ds=gt[-1])
    k('v_cmp_eq_u32 vcc, 127, v59')
    k('v_cndmask_b32 v%d, v%d, v12, vcc' % (G + 16, G + 16))
    for i in range(8): k('v_cvt_pk_bf16_f32 v%d, v%d, v%d' % (120 + i, G + 2 * i, G + 2 * i + 1))
    for i in range(8): k('v_cvt_pk_bf16_f32 v%d, v%d, v%d' % (128 + i, G + 2 * i + 1, G + 2 * i + 2))
    k.ds('ds_write_b128 v2, v[120:123]')
    k.ds('ds_write_b128 v2, v[124:127] offset:16')
    k.ds('ds_write_b128 v2, v[128:131] offset:%d' % O_K1)
    k.ds('ds_write_b128 v2, v[132:135] offset:%d' % (O_K1 + 16))
    k('v_lshlrev_b32 v2, 4, v1')

def conv_setup(k):
    k('s_and_b32 s54, s50, 1')
    k('v_lshlrev_b32 v11, 4, v1')
    k('v_and_b32 v5, 15, v1')
    k('v_lshrrev_b32 v6, 4, v1')
    k('s_mul_i32 s59, s54, %d' % O_K1)
    k('s_add_u32 s59, s59, s55')
    k('v_lshl_add_u32 v14, v5, 2, s59')
    k.ds('ds_write_b32 v14, v12 offset:4096')
    k('v_lshl_add_u32 v14, v1, 3, s55')
    k.ds('ds_write_b64 v14, v[12:13] offset:%d' % O_H)
    k('v_lshlrev_b32 v15, 3, v10')
    k('v_lshl_add_u32 v15, v7, 4, v15')
    k('s_lshl_b32 s60, s50, 10')
    k('v_add_u32 v15, s60, v15')
    k('v_mul_u32_u24 v20, %d, v9' % CHS)
    k('v_add_u32 v20, v20, v15')
    k('v_lshl_add_u32 v25, v9, 12, v15')
    k('s_lshl_b32 s76, s54, 10')
    k('s_add_u32 s77, s76, s55')
    k('v_lshlrev_b32 v15, 5, v5')
    k('v_lshl_add_u32 v15, v6, 3, v15')
    k('v_add_u32 v193, s77, v15')
    k('s_lshl_b32 s77, s52, 12')
    k('s_add_u32 s76, s76, s77')
    k('v_add_u32 v202, s76, v15')
    k('v_lshlrev_b32 v15, 5, v5')
    k('v_lshl_add_u32 v15, v6, 4, v15')
    k('s_lshl_b32 s77, s54, 8')
    k('s_sub_u32 s77, s55, s77')
    k('s_add_u32 s78, s77, %d' % (O_H + 512 - 32 - 192))
    k('v_add_u32 v192, s78, v15')
    k('v_lshlrev_b32 v15, 3, v6')
    k('v_sub_u32 v15, v15, v5')
    k('v_add_u32 v15, 15, v15')
    k('v_and_b32 v194, 1, v15')
    k('v_mul_u32_u24 v194, %d, v194' % O_K1)
    k('v_and_b32 v15, -2, v15')
    k('v_lshl_add_u32 v15, v15, 1, v194')
    k('s_add_u32 s78, s77, %d' % (2 * (2016 - 256 - 96 - 1536)))
    k('v_add_u32 v197, s78, v15')
    for ip in range(3): k('v_add_u32 v%d, %d, v197' % (194 + ip, 1024 * (3 - ip)))
    k('s_lshl_b32 s77, s54, 12')
    k('s_add_u32 s78, s77, s55')
    k('v_add_u32 v198, s78, v11')
    k('s_xor_b32 s77, s77, 0x1000')
    k('s_add_u32 s78, s77, s55')
    k('v_add_u32 v199, s78, v11')
    k('v_and_b32 v15, 1, v6')
    k('v_lshlrev_b32 v15, 3, v15')
    k('v_lshrrev_b32 v200, 1, v5')
    k('v_add_u32 v15, v15, v200')
    k('v_lshlrev_b32 v200, 15, v15')
    k('v_and_b32 v15, 1, v5')
    k('v_lshl_add_u32 v200, v15, 5, v200')
    k('v_lshrrev_b32 v15, 1, v6')
    k('v_lshl_add_u32 v200, v15, 4, v200')
    k('v_add_u32 v201, 0x100000, v200')
    k('s_lshl_b32 s60, s54, 19')
    k('s_lshl_b32 s61, s53, 6')
    k('s_add_u32 s60, s60, s61')
    ws_ptr(k, 66, WS_X1T, 60)
    ws_ptr(k, 68, WS_X1S, 60)
    k('s_lshl_b32 s60, s6, 15')
    ws_ptr(k, 26, WS_W1P, 60)
    k('s_lshl_b32 s77, s30, 16')
    k('s_and_b32 s74, s30, 0xffff0000')
    k('s_cmp_eq_u32 s52, 0')
    k('s_cselect_b32 s74, s77, s74')
    k('v_bfe_u32 v4, v1, 3, 1')
    k('v_cvt_f32_u32 v4, v4')
    k('v_cmp_gt_u32 vcc, 32, v1')
    k('v_cndmask_b32 v4, 0, v4, vcc')
    k('s_lshl_b32 s60, s34, 4')
    ws_ptr(k, 18, WS_FIN, 60)
    k('s_and_b32 s60, s4, 7')
    k('s_mul_i32 s60, s60, %d' % (2 * 114688))
    k('s_mul_i32 s61, s50, %d' % (28 * 1024))
    k('s_add_u32 s60, s60, s61')
    ws_ptr(k, 32, WS_W2P, 60)
    k('v_add_u32 v219, 114688, v11')
    k.w2v = 219
    k('s_lshl_b32 s60, s3, 10')
    k('v_add_u32 v217, s60, v11')
    k('v_add_u32 v218, 0x%x, v217' % O_F2)
    k('v_add_u32 v217, 0x%x, v217' % O_FP)
    k('s_lshl_b32 s56, s54, 15')
    k('s_lshl_b32 s60, s52, 12')
    k('s_add_u32 s56, s56, s60')
    k('s_lshl_b32 s60, s5, 16')
    k('s_add_u32 s60, s60, s56')
    ws_ptr(k, 28, WS_X1S, 60)

def conv_phase(k):
    XD = k.XD
    k.tw1 = []
    def w1l():
        n = len(k.tw1)
        k.tw1.append(k.vm('global_load_dwordx4 %s, v2, s[26:27] offset:%d%s' % (a(4 * n, 4), (n & 3) * 1024, W_SC)) if not E('NOW1', 0) else k.nvm)
        if (n & 3) == 3 and n < 31: k('s_add_u32 s26, s26, 4096'); k('s_addc_u32 s27, s27, 0')
    k.w1l = w1l
    k.w2q = []
    for ks in range(28): k.w2q += w2_ops(k, ks)
    k.w2n0 = len(k.w2q)
    FPL = 'global_load_dwordx4 v[204:207], v217, s[14:15]' + SC
    if E('FP_AT', 2) < 0: sync_issue(k, 'fp', FPL)
    k.stamp(6); k.stamp3(14)
    k('s_mov_b32 s80, 0')
    k('L_xv_p:')
    k('s_waitcnt vmcnt(0)')
    for c in chk_tags([x + 2 for x in XD] + [23] + [83 + 4 * i for i in range(4)], 28): k(c)
    retry_tail(k, 'xv', k.XL)
    k.vm_done = k.nvm
    k.stamp(7)
    k('v_add_f32_dpp v22, v22, v22 quad_perm:[1,0,3,2] row_mask:0xf bank_mask:0xf')
    k('s_lshl_b32 s60, s52, 2')
    k('s_add_u32 s61, s60, 24')
    k('v_add_f32_dpp v22, v22, v22 quad_perm:[2,3,0,1] row_mask:0xf bank_mask:0xf')
    k('s_add_u32 s60, s60, 16')
    k('v_cmp_eq_u32 vcc, 1, v9')
    k('v_add_f32_dpp v22, v22, v22 row_half_mirror row_mask:0xc bank_mask:0xf')
    k('v_cvt_pk_bf16_f32 v22, v22, v22')
    k('v_and_b32 v22, s58, v22')
    k('v_add_f32 v22, v22, v4')
    k('v_cvt_pk_bf16_f32 v22, v22, v22')
    k('v_and_b32 v22, s58, v22')
    k('v_readlane_b32 s62, v22, 0')
    k('v_readlane_b32 s63, v22, 4')
    k('v_readlane_b32 s64, v22, 8')
    k('v_readlane_b32 s65, v22, 12')
    k('v_readlane_b32 s75, v22, s60')
    k('v_readlane_b32 s76, v22, s61')
    k('v_mov_b32 v27, s62')
    k('v_mov_b32 v29, s63')
    k('v_mov_b32 v26, s64')
    k('v_mov_b32 v28, s65')
    k('v_cndmask_b32 v27, v27, v29, vcc')
    k('v_cndmask_b32 v26, v26, v28, vcc')
    for i in range(4):
        k.ds('ds_write_b64 v25, %s offset:%d' % (v(XD[i], 2), L_X + 256 * i))
        for j in range(2):
            r = XD[i] + j
            g = 56 + 4 * j
            tt = 48 + 4 * (j & 1)
            for e in range(3): k('v_mov_b32_dpp v%d, v%d quad_perm:[%d,%d,%d,%d] row_mask:0xf bank_mask:0xf' % (g + e, 80 + 4 * i + e, 2 * j, 2 * j + 1, 2 * j, 2 * j + 1))
            k('v_lshlrev_b32 v%d, 16, v%d' % (tt, r))
            k('v_and_b32 v%d, s58, v%d' % (tt + 1, r))
            k('v_lshlrev_b32 v%d, 16, v%d' % (tt + 2, g + 2))
            k('v_and_b32 v%d, s58, v%d' % (tt + 3, g + 2))
            k('v_pk_fma_f32 %s, %s, %s, %s neg_lo:[0,0,1] neg_hi:[0,0,1]' % (v(tt, 2), v(tt, 2), v(g, 2), v(tt + 2, 2)))
            k('v_pk_fma_f32 %s, %s, v[26:27], v[26:27] op_sel:[0,0,1] op_sel_hi:[1,0,1]' % (v(tt, 2), v(tt, 2)))
            k('v_cvt_pk_bf16_f32 v%d, v%d, v%d' % (XD[i] + 2 + j, tt, tt + 1))
        k.ds('ds_write_b64 v20, %s offset:%d' % (v(XD[i] + 2, 2), L_CV + O_H + 512 + 256 * i))
    if E('FP_AT', 2) < 0: sync_check(k, 'fp', [FPL], chk_tags([204, 205, 206, 207], 210))
    k.wait_all(vm=False)
    k.barrier()
    if not E('FPB', 1): signal(k, 'fp', O_FP, 28, 29)
    k.stamp(9)
    ACC = 32
    def areg(st, p): return 64 + 64 * st + 4 * p
    def breg(st, q): return 96 + 64 * st + 4 * q
    def loads(cc, st, np_):
        L = []
        for p in range(np_):
            off = 128 * (1 - (p & 1)) + 16 * (3 - cc)
            L.append('ds_read2_b32 %s, v%d offset0:%d offset1:%d' % (v(areg(st, p), 2), 194 + (p >> 1), off, off + 1))
            L.append('ds_read2_b32 %s, v%d offset0:%d offset1:%d' % (v(areg(st, p) + 2, 2), 194 + (p >> 1), off + 2, off + 3))
            L.append('ds_read_b128 %s, v192 offset:%d' % (v(breg(st, p), 4), 512 * p + 64 * (3 - cc)))
        return L
    def lv_pairs(lo, hi_):
        P = []
        for lv in range(8):
            for p in range(lv + 1):
                for q in range(lv + 1):
                    if max(p, q) == lv and lo <= p + q <= hi_: P.append((p, q))
        return P
    def loadsA(cc):
        L = []
        st, o4 = cc >> 1, 4 * (cc & 1)
        for p in range(4):
            off = 128 * (1 - (p & 1)) + 16 * (3 - cc)
            L.append('ds_read2_b32 %s, v%d offset0:%d offset1:%d' % (v(areg(st, o4 + p), 2), 194 + (p >> 1), off, off + 1))
            L.append('ds_read2_b32 %s, v%d offset0:%d offset1:%d' % (v(areg(st, o4 + p) + 2, 2), 194 + (p >> 1), off + 2, off + 3))
            L.append('ds_read_b128 %s, v192 offset:%d' % (v(breg(st, o4 + p), 4), 512 * p + 64 * (3 - cc)))
        return L
    tA = {}
    for cc in range(2): tA[cc] = [k.ds(x) for x in loadsA(cc)]
    if E('FP_AT', 2) == 0: sync_issue(k, 'fp', 'global_load_dwordx4 v[204:207], v217, s[14:15]' + SC)
    k('s_cmp_lg_u32 s50, 3')
    k('s_cbranch_scc1 L_fin')
    for i, (l0, l1) in enumerate(((32, 40), (24, 28), (48, 56))):
        k('v_readlane_b32 s60, v22, %d' % l0)
        k('v_readlane_b32 s61, v22, %d' % l1)
        k('s_lshr_b32 s60, s60, 16')
        k('s_or_b32 s60, s60, s61')
        k('v_mov_b32 v%d, s60' % (220 + i))
    k('v_mov_b32 v223, s81')
    k('s_mov_b64 exec, 1')
    raw(k, 'global_store_dwordx4 v12, v[220:223], s[18:19]' + SC)
    k('s_mov_b64 exec, -1')
    k('L_fin:')
    seen = set()
    def mf(nt, ar, br):
        c = v(ACC + 4 * nt, 4) if nt in seen else '0'
        seen.add(nt)
        k('v_mfma_f32_16x16x32_bf16 %s, %s, %s, %s' % (v(ACC + 4 * nt, 4), v(ar, 4), v(br, 4), c))
    def hx_reads(ps):
        return (['ds_read_b64 %s, v193 offset:%d' % (v(16 + 2 * j, 2), O_H + 512 + 2048 * ps + 512 * j) for j in range(2)] +
                ['ds_read_b64 %s, v202 offset:%d' % (v(20 + 2 * j, 2), L_X + 2048 * ps + 512 * j) for j in range(2)])
    PA = lv_pairs(0, 3); PB = lv_pairs(4, 7)
    q2 = loadsA(2) + loadsA(3) + hx_reads(0)
    tq = []
    for cc in range(4):
        st, o4 = cc >> 1, 4 * (cc & 1)
        for n, (p, q) in enumerate(PA):
            if cc < 2: k.wait(ds=tA[cc][3 * max(p, q) + 2])
            else: k.wait(ds=tq[12 * (cc - 2) + 3 * max(p, q) + 2])
            mf(p + q, areg(st, o4 + p), breg(st, o4 + q))
            if E('FP_AT', 2) < 0 and n % E('W1A', 3) == 0 and cc < E('W1AC', 3): w1l()
            for _ in range(2):
                if q2 and (cc > 0 or n >= 2): tq.append(k.ds(q2.pop(0)))
            if cc == 2 and n == 2: qB = loads(0, 0, 8)
            if cc >= 2 and (cc > 2 or n >= 2):
                for _ in range(2):
                    if qB: k.ds(qB.pop(0))
    assert not q2 and not qB
    def exchange_and_store(ps, lab, mid):
        b = ACC + 16 * ps
        k('s_nop 7')
        k('s_cmp_eq_u32 s54, 0')
        k('s_cbranch_scc0 L_%s_1' % lab)
        for j in range(2): k.ds('ds_write_b128 v198, %s offset:%d' % (v(b + 8 + 4 * j, 4), O_RED + 2048 * ps + 1024 * j))
        for j in range(4): k('v_mov_b64 %s, %s' % (v(224 + 2 * j, 2), v(b + 2 * j, 2)))
        k('s_branch L_%s_2' % lab)
        k('L_%s_1:' % lab)
        k.nds -= 2
        for j in range(2): k.ds('ds_write_b128 v198, %s offset:%d' % (v(b + 4 * j, 4), O_RED + 2048 * ps + 1024 * j))
        for j in range(4): k('v_mov_b64 %s, %s' % (v(224 + 2 * j, 2), v(b + 8 + 2 * j, 2)))
        k('L_%s_2:' % lab)
        k.pre()
        k.wait_all(vm=False)
        k.barrier()
        mid()
        rt_ = [k.ds('ds_read_b128 %s, v199 offset:%d' % (v(232 + 4 * j, 4), O_RED + 2048 * ps + 1024 * j)) for j in range(2)]
        for i in range(4):
            k('v_lshlrev_b32 v%d, 16, v%d' % (240 + 2 * i, 16 + i))
            k('v_and_b32 v%d, s58, v%d' % (241 + 2 * i, 16 + i))
            k('v_pk_fma_f32 %s, %s, s[74:75], %s op_sel_hi:[1,0,1]' % (v(224 + 2 * i, 2), v(240 + 2 * i, 2), v(224 + 2 * i, 2)))
            k('v_lshlrev_b32 v%d, 16, v%d' % (248 + 2 * i, 20 + i))
            k('v_and_b32 v%d, s58, v%d' % (249 + 2 * i, 20 + i))
        k.wait(ds=rt_[1])
        for i in range(4):
            k('v_pk_add_f32 %s, %s, %s' % (v(224 + 2 * i, 2), v(224 + 2 * i, 2), v(232 + 2 * i, 2)))
            k('v_pk_fma_f32 %s, %s, s[74:75], %s op_sel:[0,1,0] op_sel_hi:[1,1,1]' % (v(224 + 2 * i, 2), v(224 + 2 * i, 2), v(248 + 2 * i, 2)))
            k('v_pk_mul_f32 %s, %s, s[76:77] op_sel_hi:[1,0]' % (v(240 + 2 * i, 2), v(224 + 2 * i, 2)))
            k('v_cvt_pk_bf16_f32 v%d, v%d, v%d' % (24 + i, 240 + 2 * i, 241 + 2 * i))
            k('v_cvt_pk_bf16_f32 v%d, v%d, v%d' % (28 + i, 224 + 2 * i, 225 + 2 * i))
        for b_, sp in ((24, 68), (28, 66)):
            k('v_permlane16_swap_b32 v%d, v%d' % (b_, b_ + 2))
            k('v_permlane16_swap_b32 v%d, v%d' % (b_ + 1, b_ + 3))
            t = k.vm('global_store_dwordx4 v%d, %s, s[%d:%d]%s' % (200 + ps, v(b_, 4), sp, sp + 1, SC))
        return t
    FPL = 'global_load_dwordx4 v[204:207], v217, s[14:15]' + SC
    FP_AT = E('FP_AT', 2)
    k.pre = (lambda: sync_check(k, 'fp', [FPL], chk_tags([204, 205, 206, 207], 210))) if FP_AT == 0 else (lambda: None)
    tsA = exchange_and_store(0, 'cvA', lambda: None)
    k.pre = lambda: None
    k.stamp(3)
    F2A_AT = E('F2A_AT', 2); W1D = E('W1D', 3)
    for cc in range(4):
        st = cc & 1
        nxt = loads(cc + 1, st ^ 1, 8) if cc < 3 else hx_reads(1)
        if cc > 0: k.wait_all(vm=False)
        if cc == FP_AT and cc: sync_check(k, 'fp', [FPL], chk_tags([204, 205, 206, 207], 210))
        if cc == F2A_AT: k.wait(vm=tsA)
        if cc == F2A_AT or (cc == FP_AT and cc): k.barrier()
        if cc == F2A_AT: signal(k, 'f2a', O_F2, 208, 209)
        for n, (p, q) in enumerate(PB):
            if cc == FP_AT - 2 and n == 10: sync_issue(k, 'fp', FPL)
            mf(p + q, areg(st, p), breg(st, q))
            if n >= 1 and nxt: k.ds(nxt.pop(0))
            if cc >= FP_AT and n % W1D == 0:
                if len(k.tw1) < 32: w1l()
                elif k.w2n0 - len(k.w2q) < E('W2C', 18) and cc < 3: k.w2q.pop(0)()
        assert not nxt
    k.stamp(10)
    k.PA = ['global_load_dwordx4 v[72:75], v218, s[14:15]' + SC]
    k.FL = 'global_load_dwordx4 v[164:167], v160, s[48:49]' + SC
    def mid():
        k('v_lshlrev_b32 v160, 4, v0')
        k('v_add_u32 v160, 0x%x, v160' % WS_FIN)
        k.tfin = k.vm(k.FL)
    k.tx1 = exchange_and_store(1, 'cvB', mid)
    if not E('C12POS', 0): sync_issue(k, 'f2a', *k.PA)
    while len(k.tw1) < 32: w1l()

ROT = E('ROT', 0)
def adv(k, p, c):
    if not ROT:
        k('s_add_u32 s%d, s%d, 4096\ns_addc_u32 s%d, s%d, 0' % (p, p, p + 1, p + 1)); return
    k('s_add_u32 s%d, s%d, 1' % (c, c))
    k('s_cmp_eq_u32 s%d, 7' % c)
    k('s_cselect_b32 s12, %d, s32' % (-24576))
    k('s_cselect_b32 s13, -1, 0')
    k('s_cselect_b32 s%d, 0, s%d' % (c, c))
    k('s_add_u32 s%d, s%d, s12' % (p, p))
    k('s_addc_u32 s%d, s%d, s13' % (p + 1, p + 1))

def w2reg(ks): return (a(128 + 8 * ks, 4), a(132 + 8 * ks, 4)) if ks < 16 else (v(160 + 8 * (ks - 16), 4), v(164 + 8 * (ks - 16), 4))
def w2_ops(k, ks):
    ops = []
    if E('NOW2', 0): return ops
    off = (ks & 3) * 1024
    ops.append(lambda: k.vm('global_load_dwordx4 %s, v2, s[32:33] offset:%d%s' % (w2reg(ks)[0], off, W_SC)))
    ops.append(lambda: k.vm('global_load_dwordx4 %s, v%d, s[32:33] offset:%d%s' % (w2reg(ks)[1], k.w2v, off, W_SC)))
    if (ks & 3) == 3 and ks < 27: ops.append(lambda: adv(k, 32, 35))
    return ops

def sync_issue(k, name, *loads):
    k('s_cmp_lg_u32 s50, %d' % SYNCW)
    k('s_cbranch_scc1 L_%s_i' % name)
    for l in loads: raw(k, l)
    k('L_%s_i:' % name)
    k.__dict__.setdefault('pollmark', {})[name] = k.nvm

def sync_check(k, name, loads, check, extra=0):
    k('s_cmp_lg_u32 s50, %d' % SYNCW)
    k('s_cbranch_scc1 L_%s_w' % name)
    k('s_mov_b32 s80, 0')
    k('s_waitcnt vmcnt(%d)' % min(63, k.nvm - k.pollmark[name] + extra))
    k('L_%s_p:' % name)
    for c in check: k(c)
    retry_tail(k, name, list(loads) + ['s_waitcnt vmcnt(0)'], 1)

L_RD = 0

def mlp_phase(k):
    k('v_add_u32 v126, 0x2000, v218')
    PL = lambda r: 'global_load_dwordx4 v[72:75], v%d, s[14:15]%s' % (r, SC)
    k('s_lshl_b32 s8, s3, 2')
    k('s_lshr_b32 s9, s4, 3')
    k('s_add_u32 s8, s8, s9')
    k('s_and_b32 s9, s4, 7')
    k('v_add_u32 v113, 114688, v2')
    k('s_mul_i32 s51, s50, %d' % (28 * 1024))
    if ROT:
        k('s_lshr_b32 s35, s4, 3')
        k('s_lshl_b32 s35, s35, 1')
        k('s_add_u32 s35, s35, s9')
        k('s_cmp_ge_u32 s35, 7')
        k('s_cselect_b32 s60, 7, 0')
        k('s_sub_u32 s35, s35, s60')
        k('s_mov_b32 s33, s35')
        k('s_movk_i32 s32, 4096')
        k('s_lshl_b32 s60, s35, 12')
        k('s_add_u32 s51, s51, s60')
    k.w2v = 113
    k('s_mul_i32 s60, s8, 114688')
    k('s_add_u32 s60, s60, s51')
    ws_ptr(k, 22, WS_HID, 60)
    tr_addr32(k, 4, 1, 8, 9, 6, 8)
    k('v_add_u32 v5, 0x10000, v4')
    k('v_and_b32 v6, 31, v1')
    k('v_lshlrev_b32 v6, 3, v6')
    k('s_mul_i32 s62, s5, %d' % (2 * 114688))
    k('s_lshl_b32 s63, s6, 11')
    k('s_add_u32 s62, s62, s63')
    ws_ptr(k, 68, WS_HID, 62)
    k('s_lshl_b32 s62, s5, 9')
    add_ptr(k, 70, 14, 62)
    k('v_bfe_u32 v16, v1, 4, 1')
    k('v_xor_b32 v16, 1, v16')
    k('v_lshlrev_b32 v16, 10, v16')
    k('v_lshrrev_b32 v17, 5, v1')
    k('v_lshl_add_u32 v16, v17, 4, v16')
    k('v_add_u32 v16, %d, v16' % L_GS)
    k('v_lshlrev_b32 v17, 2, v0')
    k('v_add_u32 v17, %d, v17' % L_GS)
    k('v_lshlrev_b32 v18, 3, v0')
    k('v_add_u32 v18, %d, v18' % (L_GS + 2048))
    k('v_lshrrev_b32 v119, 5, v1')
    k('v_and_b32 v118, 31, v1')
    k('v_lshlrev_b32 v116, 8, v119')
    k('v_lshl_add_u32 v116, v118, 1, v116')
    k('v_lshlrev_b32 v117, 4, v119')
    k('v_lshl_add_u32 v118, v118, 10, v117')
    k('s_lshl_b32 s62, s9, 2')
    k('s_add_u32 s62, s62, s50')
    k('s_lshl_b32 s63, s8, 15')
    k('s_lshl_b32 s60, s62, 10')
    k('s_add_u32 s60, s60, s63')
    ws_ptr(k, 20, WS_X1T, 60)
    k('s_lshl_b32 s60, s62, 6')
    k('s_add_u32 s60, s60, %d' % (L_GS + 2048))
    k('v_add_u32 v117, s60, v117')
    k('s_lshl_b32 s60, s62, 5')
    k('s_add_u32 s60, s60, s63')
    add_ptr(k, 24, P_OUT, 60)
    k('s_lshl_b32 s60, s50, 13')
    k('v_add_u32 v120, s60, v2')
    k('s_lshl_b32 s60, s50, 11')
    k('v_add_u32 v121, s60, v2')
    k('s_lshr_b32 s60, s8, 1')
    k('s_lshl_b32 s60, s60, 6')
    k('s_add_u32 s60, s60, 0x%x' % O_F3)
    k('v_min_u32 v122, 13, v1')
    k('v_lshl_add_u32 v122, v122, 2, s60')
    k('s_lshl_b32 s10, s5, 6')
    k('s_lshl_b32 s61, s7, 2')
    k('s_add_u32 s10, s10, s61')
    k('s_mov_b32 s80, 0')
    k.wait(vm=k.tfin)
    k('L_fin_p:')
    k('v_cmp_ne_u32 vcc, s81, v167')
    retry_tail(k, 'fin', [k.FL, 's_waitcnt vmcnt(0)'])
    k('v_lshlrev_b32 v168, 16, v166')
    k('v_and_b32 v169, 0xffff0000, v166')
    k('v_mul_f32 v168, %s, v168' % f32(-math.log(2.0)))
    k('v_mul_f32 v169, %s, v169' % f32(-math.log(2.0)))
    k.ds('ds_write2st64_b32 v17, v164, v165 offset0:0 offset1:4')
    k.ds('ds_write_b64 v18, v[168:169]')
    C12POS = E('C12POS', 0)
    EARLYA = E('EARLYA', 0)
    def sigB(nm):
        k.wait(vm=k.tx1)
        k.barrier()
        signal(k, nm, O_F2 + 0x2000, 19, 20)
        k.stamp(11)
    k.wait_all(vm=False)
    if not EARLYA: sigB('f2b')
    xq = []
    w2q = k.w2q
    w2done = k.w2n0 - len(w2q)
    w2q0 = w2q if not C12POS else []
    def c12_block():
        gt = [None] * 32
        for s_ in range(8): gt[s_] = k.ds('ds_read_b128 %s, v16 offset:%d' % (v(80 + 4 * (s_ % 8), 4), 32 * s_))
        for s_ in range(32):
            if C12POS and s_ == E('PA_AT', 8): sync_issue(k, 'f2a', *k.PA)
            k.wait(ds=gt[s_], vm=k.tw1[s_])
            k('v_mfma_f32_32x32x16_bf16 v[128:143], %s, %s, %s' % (a(4 * s_, 4), v(80 + 4 * (s_ % 8), 4), '0' if s_ == 0 else 'v[128:143]'))
            if EARLYA and s_ == E('SIGB_AT', 6): sigB('f2b')
            if xq: xq.pop(0)()
            elif w2q0: w2q0.pop(0)()
            if s_ >= 1 and s_ + 7 < 32: gt[s_ + 7] = k.ds('ds_read_b128 %s, v16 offset:%d' % (v(80 + 4 * ((s_ + 7) % 8), 4), 32 * (s_ + 7)))
        k.stamp(8)
    if C12POS: c12_block()
    sync_check(k, 'f2a', k.PA, chk_tags([72, 73, 74, 75], 114), extra=0 if (C12POS or EARLYA) else 1)
    k.barrier()
    k.stamp(12); k.stamp2(1)
    ctok = {}
    def chunk_ops(ps, c):
        ops = [lambda: k('s_add_u32 m0, s56, %d' % (ps * 65536 + c * 8192))]
        def ld(i): ctok[ps, c] = k.vm('global_load_lds_dwordx4 v2, s[28:29] offset:%d%s' % (i * 1024, LD_SC))
        for i in range(4): ops.append(lambda i=i: ld(i))
        if c < 3: ops.append(lambda: k('s_add_u32 s28, s28, 8192\ns_addc_u32 s29, s29, 0'))
        elif ps == 0: ops.append(lambda: k('s_add_u32 s28, s28, %d\ns_addc_u32 s29, s29, 0' % (0x100000 - 3 * 8192)))
        return ops
    k('s_cmp_ge_u32 s4, 28')
    k('s_cbranch_scc1 L_st_a')
    for c in range(4): xq.extend(chunk_ops(0, c))
    for _ in range(len(xq) if C12POS else E('XPRE', 5)): xq.pop(0)()
    k('s_branch L_st_b')
    k('L_st_a:')
    k('s_sub_u32 s11, s4, 28')
    k('s_lshl_b32 s60, s3, 2')
    k('s_add_u32 s11, s11, s60')
    k('s_lshl_b32 s60, s11, 15')
    k('s_lshl_b32 s61, s50, 13')
    k('s_add_u32 s60, s60, s61')
    ws_ptr(k, 28, WS_X1T, 60)
    k('v_add_u32 v7, 0x1000, v2')
    STL = ['global_load_dwordx4 %s, v%d, s[28:29] offset:%d%s' % (v(80 + 4 * i, 4), 2 if i < 4 else 7, (i & 3) * 1024, LD_SC) for i in range(8)]
    for x in STL: raw(k, x)
    if EARLYA:
        k('s_waitcnt vmcnt(8)')
        k.barrier()
        signal(k, 'f2bs', O_F2 + 0x2000, 19, 20)
    k('s_branch L_stats')
    k('L_st_b:')
    if not C12POS: c12_block()
    fix = ['v_mov_b32 v%d, v%d' % (144 + r, 128 + r) for r in range(16)]
    fix += ['v_permlane16_swap_b32 v%d, v%d' % (128 + r, 144 + r) for r in range(16)]
    fix += ['v_mul_f32 v%d, %s, v%d' % (144 + r, f32(-LOG2E), 144 + r) for r in range(16)]
    ACC = 16
    for _ in range(E('W2E', 12) if C12POS else 0):
        if w2q: w2q.pop(0)()
    SL = lambda ps: ['global_load_dwordx2 %s, v6, s[70:71] offset:%d%s' % (v(8 + 2 * u, 2), 256 * u, SC) for u in range(2)]
    htok = {}
    def hload(ps, s_):
        htok[ps, s_] = k.vm('global_load_dwordx4 %s, v2, s[22:23] offset:%d%s' % (a(4 * s_, 4), (s_ & 3) * 1024, LD_SC))
        if (s_ & 3) == 3:
            if s_ < 27: adv(k, 22, 33)
            elif ps == 0:
                if ROT: adv(k, 22, 33); k('s_add_u32 s22, s22, %d\ns_addc_u32 s23, s23, 0' % (32 * 114688))
                else: k('s_add_u32 s22, s22, %d\ns_addc_u32 s23, s23, 0' % (32 * 114688 - 6 * 4096))
    k.hload, k.htok = hload, htok
    F3L = lambda ps: 'global_load_dword v72, v122, s[14:15] offset:%d%s' % (1024 * ps, SC)
    W2D = E('W2D', 2)
    lstA = [None]
    for ps in range(2):
        def breg(s_, u): return 48 + 8 * (s_ % 3) + 4 * u
        rtok = {}
        def rd(s_, u):
            off = u * 32768 + s_ * 1024
            k.ds('ds_read_b64_tr_b16 %s, v%d offset:%d' % (v(breg(s_, u), 2), 4 + ps, off))
            rtok[s_, u] = k.ds('ds_read_b64_tr_b16 %s, v%d offset:%d' % (v(breg(s_, u) + 2, 2), 4 + ps, off + 256))
        k.stamp2(2 + 5 * ps)
        k.wait(vm=ctok[ps, 0]); k.barrier()
        k.stamp2(3 + 5 * ps)
        for s_ in range(2):
            for u in range(2): rd(s_, u)
        pend = []
        gap = 0
        for s_ in range(32):
            if s_ % 8 == 6 and s_ < 30:
                c = s_ // 8 + 1
                if ps == 0 and c == E('F2B_AT', 2): sync_check(k, 'f2b', [PL(126)], chk_tags([72, 73, 74, 75], 80))
                if ps == 1 and c == E('F3A_SIG', 2): k.wait(vm=lstA[0])
                k.wait(vm=ctok[ps, c]); k.barrier()
                if ps == 0 and c == E('F2B_AT', 2):
                    for c2 in range(4): pend += chunk_ops(1, c2)
                if ps == 1 and c == E('F3A_SIG', 2): signal(k, 'f3a', O_F3, 73, 74, nrep=1, sidx=10)
            if ps == 0 and s_ == 8 * E('F2B_AT', 2) - 2 - E('POLLD', 12): sync_issue(k, 'f2b', PL(126))
            if s_ == 16: k.stamp2(4 + 5 * ps)
            if s_ == 22:
                def sl(x): ctok['st'] = k.vm(x)
                for x in SL(ps): pend.append(lambda x=x: sl(x))
            for u in range(2):
                k.wait(ds=rtok[s_, u])
                k('v_mfma_f32_32x32x16_bf16 %s, %s, %s, %s' % (v(ACC + 16 * u, 16), a(4 * s_, 4), v(breg(s_, u), 4), '0' if s_ == 0 else v(ACC + 16 * u, 16)))
                if s_ + 2 < 32: rd(s_ + 2, u)
                if fix and s_ >= 2:
                    for _ in range(2): k(fix.pop(0))
                if pend: pend.pop(0)()
                elif w2q and gap % W2D == 0: w2q.pop(0)()
                gap += 1
        while pend: pend.pop(0)()
        k.stamp(13 if ps == 0 else 14); k.stamp2(5 + 5 * ps)
        k.wait(vm=ctok['st'])
        k('s_mov_b32 s80, 0')
        k('L_chk%d_p:' % ps)
        k('v_min_u32 v80, v9, v11')
        k('v_cmp_eq_u32 vcc, 0, v80')
        retry_tail(k, 'chk%d' % ps, SL(ps) + ['s_waitcnt vmcnt(0)'], 2)
        if ps == 0: k('s_add_u32 s70, s70, 0x2000\ns_addc_u32 s71, s71, 0')
        k('s_nop 7')
        k.stamp2(6 + 5 * ps)
        for u in range(2):
            b = 8 + 2 * u
            A_ = ACC + 16 * u
            for p in range(8):
                x = v(A_ + 2 * p, 2)
                k('v_pk_fma_f32 %s, %s, %s, %s op_sel_hi:[1,0,1] neg_lo:[0,1,0] neg_hi:[0,1,0]' % (x, v(128 + 2 * p, 2), v(b, 2), x))
            for p in range(8):
                x = v(A_ + 2 * p, 2)
                k('v_pk_fma_f32 %s, %s, %s, %s op_sel:[1,0,0] op_sel_hi:[1,1,1]' % (x, v(b, 2), x, v(144 + 2 * p, 2)))
            if ps == 1 and u == E('F3A_U', 0): sync_issue(k, 'f3a', F3L(0))
            W2EP = E('W2EP', 4)
            def tick(r):
                if w2q and W2EP and r % W2EP == W2EP - 1 and (u == 0 or E('W2EU', 0)): w2q.pop(0)()
            for r in range(16):
                k('v_exp_f32 v%d, v%d' % (80 + r, A_ + r)); tick(r)
            for p in range(8): k('v_pk_add_f32 %s, %s, 1.0 op_sel_hi:[1,0]' % (v(80 + 2 * p, 2), v(80 + 2 * p, 2)))
            for r in range(16):
                k('v_rcp_f32 v%d, v%d' % (80 + r, 80 + r)); tick(r)
            for p in range(8): k('v_pk_mul_f32 %s, %s, %s' % (v(A_ + 2 * p, 2), v(A_ + 2 * p, 2), v(80 + 2 * p, 2)))
            O = 96 + 8 * u
            for p in range(8): k('v_cvt_pk_bf16_f32 v%d, v%d, v%d' % (O + p, A_ + 2 * p, A_ + 2 * p + 1))
            k.vm('global_store_dwordx4 v%d, %s, s[68:69]%s' % (2 if u == 0 else 113, v(O, 4), SC))
            lst = k.vm('global_store_dwordx4 v%d, %s, s[68:69] offset:1024%s' % (2 if u == 0 else 113, v(O + 4, 4), SC))
        if ps == 0:
            lstA[0] = lst
            k('s_add_u32 s68, s68, %d\ns_addc_u32 s69, s69, 0' % (32 * 114688))
    print('w2 leftover ops', len(w2q))
    while w2q: w2q.pop(0)()
    sync_check(k, 'f3a', [F3L(0)], ['v_cmp_ne_u32 vcc, s81, v72'])
    k.barrier()
    k('s_add_u32 s10, s10, 1024')
    k('s_branch L_join')
    k('L_stats:')
    k.reset_counters()
    k('s_movk_i32 s10, 2048')
    k('s_lshl_b32 s62, s11, 8')
    add_ptr(k, 70, 14, 62)
    k('s_mov_b32 s62, 0xffff0000')
    k('v_lshlrev_b32 v3, 6, v0')
    k('v_bfe_u32 v4, v1, 3, 2')
    k('v_lshlrev_b32 v4, 6, v4')
    k('v_and_b32 v5, 7, v1')
    k('v_lshl_add_u32 v4, v5, 2, v4')
    k('v_lshrrev_b32 v5, 5, v1')
    k('v_lshl_add_u32 v4, v5, 13, v4')
    for ps in range(2):
        if ps == 1:
            poll(k, 'sf2b', [PL(126)], chk_tags([72, 73, 74, 75], 80))
            k('s_add_u32 s28, s28, 0x100000\ns_addc_u32 s29, s29, 0')
            k('s_add_u32 s70, s70, 0x2000\ns_addc_u32 s71, s71, 0')
        if ps == 0:
            xt = list(range(1, 9)); k.nvm = 8
        else: xt = [k.vm(x) for x in STL]
        for r in range(16): k('v_mov_b32 v%d, 0' % (16 + r))
        for i in range(8):
            k.wait(vm=xt[i])
            for j in range(4):
                r = 80 + 4 * i + j
                tt = 32 + 2 * (j & 1)
                k('v_lshlrev_b32 v%d, 16, v%d' % (tt, r))
                k('v_and_b32 v%d, s62, v%d' % (tt + 1, r))
                k('v_pk_add_f32 %s, %s, %s' % (v(16 + 2 * j, 2), v(16 + 2 * j, 2), v(tt, 2)))
                k('v_pk_fma_f32 %s, %s, %s, %s' % (v(24 + 2 * j, 2), v(tt, 2), v(tt, 2), v(24 + 2 * j, 2)))
        for pat in ('row_ror:4', 'row_ror:8'):
            for r in range(16): k('v_add_f32_dpp v%d, v%d, v%d %s row_mask:0xf bank_mask:0xf' % (16 + r, 16 + r, 16 + r, pat))
        for i in range(4): k.ds('ds_write_b128 v3, %s offset:%d' % (v(16 + 4 * i, 4), 16384 * ps + 16 * i))
        k.wait_all(vm=False)
        k.barrier()
        k('s_cmp_lg_u32 s50, 0')
        k('s_cbranch_scc1 L_st%d' % ps)
        for q in range(8):
            raw(k, 'ds_read_b32 v%d, v4 offset:%d' % (16 + 2 * q, 16384 * ps + 1024 * q))
            raw(k, 'ds_read_b32 v%d, v4 offset:%d' % (17 + 2 * q, 16384 * ps + 1024 * q + 32))
        k('s_waitcnt lgkmcnt(0)')
        for q in range(1, 8): k('v_pk_add_f32 v[16:17], v[16:17], %s' % v(16 + 2 * q, 2))
        k('v_mov_b64 v[18:19], v[16:17]')
        k('v_permlane32_swap_b32 v16, v18')
        k('v_permlane32_swap_b32 v17, v19')
        k('v_pk_add_f32 v[16:17], v[16:17], v[18:19]')
        k('v_mul_f32 v16, %s, v16' % f32(1.0 / 512))
        k('v_mul_f32 v17, %s, v17' % f32(1.0 / 512))
        k('v_fma_f32 v17, -v16, v16, v17')
        k('v_max_f32 v17, 0, v17')
        k('v_add_f32 v17, %s, v17' % f32(1e-5))
        k('v_rsq_f32 v17, v17')
        k('v_mul_f32 v17, %s, v17' % f32(-LOG2E))
        raw(k, 'global_store_dwordx2 v6, v[16:17], s[70:71]' + SC)
        k('L_st%d:' % ps)
    sq = []
    for ks in range(28): sq += w2_ops(k, ks)
    for op in sq[w2done:]: op()
    poll(k, 'sf3a', [F3L(0)], ['v_cmp_ne_u32 vcc, s81, v72'])
    k('L_join:')
    k.stamp(1); k.stamp2(12); k.stamp4(1)
    k.reset_counters()
    htok.clear()
    HA0 = E('HA0', 16)
    for s_ in range(HA0): hload(0, s_)
    for q in range(2): k.ds('ds_read_b128 %s, v117 offset:%d' % (v(96 + 4 * q, 4), 32 * q))
    for r in range(16): k('v_mov_b32 v%d, 0' % (80 + r))
    k('v_add_u32 v115, 0x100000, v116')
    k('v_add_u32 v119, 0x100000, v118')
    k.stamp4(2)
    k('s_waitcnt vmcnt(%d)' % HA0)
    k.barrier()
    signal(k, 'f3b', O_F3, 73, 74, nrep=1, sidx=10)
    aq = [lambda s_=s_: hload(0, s_) for s_ in range(HA0, 28)]
    trs = {}
    def rl(ps, q, r): trs[ps] = k.vm('global_load_short_d16_hi v%d, v%d, s[20:21] offset:%d%s' % (80 + 8 * ps + 4 * q + r, 116 - ps, (8 * q + r) * 64, LD_SC))
    for q in range(2):
        for r in range(4): aq.append(lambda q=q, r=r: rl(0, q, r))
    bq = [lambda q=q, r=r: rl(1, q, r) for q in range(2) for r in range(4)]
    FB = E('F3B_AT', 24); nh = [0]
    for ps in range(2):
        for s_ in range(28):
            k.wait(vm=htok[ps, s_])
            if s_ == 0: k.stamp2(13 + ps)
            if s_ in (0, 8, 16, 24): k.stamp4(3 + 6 * ps + s_ // 8)
            if ps == 0 and s_ == max(0, FB - E('F3B_D', 8)): sync_issue(k, 'f3b', F3L(1))
            if ps == 0 and s_ == FB:
                sync_check(k, 'f3b', [F3L(1)], ['v_cmp_ne_u32 vcc, s81, v72'])
                k.barrier()
                k.stamp(5); k.stamp4(7)
            for j in range(2):
                k('v_mfma_f32_32x32x16_bf16 %s, %s, %s, %s' % (v(ACC + 16 * j, 16), w2reg(s_)[j], a(4 * s_, 4), '0' if s_ == 0 else v(ACC + 16 * j, 16)))
                if ps == 0 and aq and (j == 0 or E('HAJ', 0)): aq.pop(0)()
                if ps == 1 and nh[0] < 28 and (j == 0 or E('HBJ', 0)): hload(1, nh[0]); nh[0] += 1
                elif ps == 1 and bq and s_ >= 10 and j == 0: bq.pop(0)()
                if ps == 0 and s_ >= FB:
                    for _ in range(E('HBR', 1)):
                        if nh[0] < s_ + j: hload(1, nh[0]); nh[0] += 1
        k.stamp4(8 + 5 * ps)
        for q in range(8):
            k.ds('ds_write_b128 v120, %s offset:%d' % (v(ACC + 4 * q, 4), 32768 * ps + q * 1024))
            if ps == 0 and FB < 28 and q % 2 == 1 and nh[0] < 28: hload(1, nh[0]); nh[0] += 1
        if ps == 0 and FB >= 28: sync_check(k, 'f3b', [F3L(1)], ['v_cmp_ne_u32 vcc, s81, v72'])
        k.wait_all(vm=False)
        k.barrier()
        if ps == 0 and FB >= 28:
            k.stamp(5)
            for _ in range(8): hload(1, nh[0]); nh[0] += 1
        if ps == 1: k.stamp4(14)
        rt_ = []
        for w_ in range(4):
            for q in range(2): t = k.ds('ds_read_b128 %s, v121 offset:%d' % (v(48 + 8 * w_ + 4 * q, 4), 32768 * ps + w_ * 8192 + q * 1024))
            rt_.append(t)
        while ps == 0 and nh[0] < E('HB1', 20): hload(1, nh[0]); nh[0] += 1
        k.wait(ds=rt_[1])
        for p in range(4): k('v_pk_add_f32 %s, %s, %s' % (v(48 + 2 * p, 2), v(48 + 2 * p, 2), v(56 + 2 * p, 2)))
        k.wait(ds=rt_[3])
        for p in range(4): k('v_pk_add_f32 %s, %s, %s' % (v(64 + 2 * p, 2), v(64 + 2 * p, 2), v(72 + 2 * p, 2)))
        k.wait(vm=trs[ps])
        for p in range(4):
            k('v_pk_add_f32 %s, %s, %s' % (v(48 + 2 * p, 2), v(48 + 2 * p, 2), v(64 + 2 * p, 2)))
            k('v_pk_fma_f32 %s, %s, %s, %s' % (v(48 + 2 * p, 2), v(48 + 2 * p, 2), v(96 + 2 * p, 2), v(80 + 8 * ps + 2 * p, 2)))
            k('v_cvt_pk_bf16_f32 v%d, v%d, v%d' % (104 + 4 * ps + p, 48 + 2 * p, 49 + 2 * p))
        b = 104 + 4 * ps
        k('v_permlane32_swap_b32 v%d, v%d' % (b, b + 2))
        k('v_permlane32_swap_b32 v%d, v%d' % (b + 1, b + 3))
        k.vm('global_store_dwordx4 v%d, %s, s[24:25]' % (118 + ps, v(b, 4)))

def build_single(path):
    k = Kern(NAME + '_kernel')
    phase0(k); conv_phase(k); mlp_phase(k)
    k.end()
    k('L_end:')
    k('s_endpgm')
    launch, (vg_, sg_, ac) = 'grid=(256,1,1) block=(256,1,1) lds=%d' % LDS_TOTAL, (512, 84, 256)
    out = [HEADER.rstrip(), '; @launch ' + launch, '.amdgcn_target "amdgcn-amd-amdhsa--gfx950"', k.text(vg_, sg_, ac), '.text\nL_text_end:\n    s_endpgm']
    print(k.name, k.stats)
    open(path, 'w').write('\n'.join(out) + '\n')

if __name__ == '__main__':
    build_single(sys.argv[1] if len(sys.argv) > 1 else ('diag.s' if DIAG else 'cdna_kernels/%s.s' % NAME))
```

```python
import os
from gen import *
E = lambda n, d: int(os.environ.get(n, str(d)))
WS_XG = 0x000000
WS_ST1 = 0x800000
WS_MODG = 0x820000
WS_FIN = 0x860000
WS_W1P = 0x1800000
WS_X1S = 0xB00000
WS_SYNC = 0xF00000
O_F2, O_F3 = 0x8000, 0xC000
L_T = 65536
L_CM = 98304; L_SC = 114688
L_STN = 118784; L_STX = 118784 + 8448 + 128
L_CV = 0; CHS = 21120
O_K1 = 4160; O_H = 8320; O_RED = 12928
L_X = 42240
L_W1 = 79872
NW1 = 16
L_SJ = L_W1 + NW1 * 4096
L_GS = L_SJ
LDS_TOTAL = L_SJ + 16384
O_FP = 0x6000
XS = E('XS', 16384 + 384)
SC = ' sc1'
LD_SC = os.environ.get('LD_SC', ' sc1')
W_SC = os.environ.get('W_SC', ' sc1')
TMO = 0x80000
SYNCW = 1
KSPLIT = E('KSPLIT', 1)

def raw(k, s_): k.lines.append('    ' + s_)

def retry_tail(k, name, loads, sleep=0):
    k('s_nop 0')
    k('s_cbranch_vccz L_%s_w' % name)
    k('s_add_u32 s80, s80, 1')
    k('s_cmp_gt_u32 s80, 0x%x' % TMO)
    k('s_cbranch_scc1 L_%s_w' % name)
    if sleep: k('s_sleep %d' % sleep)
    for l in loads: raw(k, l)
    k('s_branch L_%s_p' % name)
    k('L_%s_w:' % name)

def poll(k, name, loads, check):
    k('s_cmp_lg_u32 s50, %d' % SYNCW)
    k('s_cbranch_scc1 L_%s_w' % name)
    k('s_mov_b32 s80, 0')
    for l in loads: raw(k, l)
    k('L_%s_p:' % name)
    k('s_waitcnt vmcnt(0)')
    for c in check: k(c)
    retry_tail(k, name, loads, 1)
    k.barrier()

def signal(k, name, off, va, vd, nrep=8, sidx=None):
    k('s_cmp_lg_u32 s50, %d' % SYNCW)
    k('s_cbranch_scc1 L_%s_s' % name)
    if sidx is None:
        k('s_lshl_b32 s80, s2, 2')
        k('s_add_u32 s80, s80, 0x%x' % off)
    else:
        k('s_add_u32 s80, s%d, 0x%x' % (sidx, off))
    k('v_lshl_add_u32 v%d, v1, 10, s80' % va)
    k('v_mov_b32 v%d, s81' % vd)
    k('s_mov_b64 exec, %d' % ((1 << nrep) - 1))
    raw(k, 'global_store_dword v%d, v%d, s[14:15]%s' % (va, vd, SC))
    k('s_mov_b64 exec, -1')
    k('L_%s_s:' % name)

def chk_tags(regs, t):
    o = ['v_xor_b32 v%d, s81, v%d' % (t, regs[0])]
    for r in regs[1:]:
        o += ['v_xor_b32 v%d, s81, v%d' % (t + 1, r), 'v_or_b32 v%d, v%d, v%d' % (t, t, t + 1)]
    return o + ['v_cmp_ne_u32 vcc, 0, v%d' % t]

def phase0(k):
    load_ptrs(k)
    k('s_getpc_b64 s[82:83]')
    k('L_pf:')
    PFM = E('PFM', 1)
    if PFM == 0:
        k('v_lshlrev_b32 v255, 7, v0')
        k('v_min_u32 v255, L_text_end-L_pf-4, v255')
        raw(k, 'global_load_dword v255, v255, s[82:83]')
    else:
        N = E('PFN', 32)
        k('s_lshr_b32 s4, s2, 3')
        k('s_and_b32 s4, s4, %d' % (256 // N - 1))
        k('s_mul_i32 s4, s4, %d' % (N * 128))
        k('v_subrev_u32 v255, 192, v0')
        k('v_cmp_gt_u32 vcc, %d, v255' % N)
        k('v_lshl_add_u32 v255, v255, 7, s4')
        k('v_min_u32 v255, L_text_end-L_pf-4, v255')
        k('s_and_saveexec_b64 s[80:81], vcc')
        k('s_cbranch_execz L_pf2')
        raw(k, 'global_load_dword v255, v255, s[82:83]')
        k('L_pf2:')
        k('s_mov_b64 exec, -1')
    k('s_cmp_ge_u32 s2, 256')
    k('s_cbranch_scc1 L_end')
    k('s_memrealtime s[78:79]')
    wave_id(k, 50, 1)
    k('v_and_b32 v1, 63, v0')
    k('s_and_b32 s3, s2, 7')
    k('s_lshr_b32 s4, s2, 3')
    k('s_lshl_b32 s51, s3, 5')
    k('s_add_u32 s80, s51, s4')
    k('s_lshl_b32 s51, s80, 9')
    k('v_lshl_add_u32 v2, v0, 1, s51')
    for i in range(4, 11): k('v_mov_b32 v%d, 0' % i)
    k('s_lshr_b32 s52, s50, 1')
    k('s_lshl_b32 s53, s80, 1')
    k('s_add_u32 s53, s53, s52')
    k('s_lshl_b32 s54, s53, 1')
    k('v_mov_b32 v3, s54')
    k('v_lshrrev_b32 v77, 5, v0')
    k('v_and_b32 v78, 31, v0')
    k('v_lshlrev_b32 v78, 4, v78')
    k('v_lshl_add_u32 v79, v77, 10, v78')
    k('s_lshl_b32 s63, s2, 13')
    k('v_add_u32 v79, s63, v79')
    k.smem_wait()
    k('s_mov_b32 s34, s80')
    k('s_or_b32 s78, s78, 1')
    k('s_or_b32 s79, s2, s50')
    k('s_cmp_eq_u32 s79, 0')
    k('s_cbranch_scc0 L_nn')
    k('v_mov_b32 v250, s78')
    k('v_lshlrev_b32 v251, 6, v1')
    k('s_mov_b64 exec, 15')
    raw(k, 'global_store_dword v251, v250, s[%d:%d]%s' % (P_DBG, P_DBG + 1, SC))
    k('s_mov_b64 exec, -1')
    k('L_nn:')
    k.vm('global_load_short_d16_hi v10, v3, s[%d:%d]' % (P_LDT, P_LDT + 1))
    for i, p in enumerate((P_ARE, P_AIM, P_BRE, P_BIM, P_CRE, P_CIM)):
        tpar = k.vm('global_load_short_d16_hi v%d, v2, s[%d:%d]' % (4 + i, p, p + 1))
    k.vm('global_load_dwordx4 v[240:243], v79, s[%d:%d]' % (P_U, P_U + 1))
    tx = k.vm('global_load_dwordx4 v[244:247], v79, s[%d:%d] offset:512' % (P_U, P_U + 1))
    k('s_and_b32 s5, s4, 3')
    k('s_lshl_b32 s5, s5, 3')
    k('s_add_u32 s5, s5, s3')
    k('s_lshl_b32 s5, s5, 1')
    k('s_bfe_u32 s6, s4, 0x10002')
    k('s_add_u32 s5, s5, s6')
    k('s_lshr_b32 s6, s4, 3')
    k('s_cmp_ge_u32 s5, 48')
    k('s_cselect_b32 s7, 16, 0')
    k('s_add_u32 s7, s7, s5')
    k('s_lshl_b32 s7, s7, 6')
    k('s_lshl_b32 s8, s6, 2')
    k('s_add_u32 s8, s8, s50')
    k('s_mul_i32 s9, s8, %d' % (32 * 6144))
    k('s_add_u32 s7, s7, s9')
    k('v_lshrrev_b32 v250, 2, v1')
    k('v_mul_u32_u24 v254, 6144, v250')
    k('v_and_b32 v251, 3, v1')
    k('v_lshl_add_u32 v254, v251, 4, v254')
    k('s_lshl_b32 s9, s50, 12')
    k('s_add_u32 s9, s9, %d' % L_CM)
    k('v_mov_b32 v231, v254')
    k('s_lshl_b32 s8, s8, 6')
    k('s_and_b32 s64, s4, 1')
    k('s_lshl_b32 s64, s64, 3')
    k('s_add_u32 s64, s64, s3')
    k('s_lshl_b32 s64, s64, 1')
    k('s_bfe_u32 s65, s4, 0x10001')
    k('s_add_u32 s64, s64, s65')
    k('s_lshr_b32 s65, s4, 2')
    k('s_cmp_ge_u32 s64, 16')
    k('s_cselect_b32 s66, 64, 48')
    k('s_add_u32 s66, s66, s64')
    k('s_lshl_b32 s66, s66, 6')
    k('s_lshl_b32 s67, s65, 2')
    k('s_add_u32 s67, s67, s50')
    k('s_mul_i32 s68, s67, %d' % (16 * 6144))
    k('s_add_u32 s66, s66, s68')
    k('s_lshl_b32 s67, s67, 5')
    k('s_sub_u32 s67, s67, 64')
    k('v_min_u32 v248, 23, v1')
    k('v_cmp_gt_u32 vcc, 16, v248')
    k('v_mov_b32 v250, s67')
    k('v_mov_b32 v251, s8')
    k('v_cndmask_b32 v250, v250, v251, vcc')
    k('v_lshl_add_u32 v248, v248, 2, v250')
    tc = k.vm('global_load_dword v248, v248, s[%d:%d]' % (P_C, P_C + 1))
    k('s_lshl_b32 s60, s34, 2')
    k('s_load_dword s30, s[%d:%d], s60' % (P_DSK, P_DSK + 1))
    if E('W1T', 0):
        k('s_and_b32 s75, s3, 1')
        k('s_mul_i32 s75, s75, 7')
        k('s_lshr_b32 s76, s4, 2')
        k('s_add_u32 s75, s75, s76')
        k('s_min_u32 s75, s75, 13')
        k('s_lshl_b32 s75, s75, 8')
        k('s_and_b32 s76, s4, 3')
        k('s_mul_i32 s76, s76, %d' % (128 * 3584))
        k('s_add_u32 s75, s75, s76')
        k('v_lshrrev_b32 v237, 1, v0')
        k('v_mul_u32_u24 v237, 3584, v237')
        k('v_and_b32 v238, 1, v0')
        k('v_lshl_add_u32 v237, v238, 7, v237')
        k('v_add_u32 v237, s75, v237')
        k.vm('global_load_dword a200, v237, s[%d:%d]' % (P_W1, P_W1 + 1))
    if E('W2T', 0):
        k('s_min_u32 s75, s2, 111')
        k('s_lshl_b32 s75, s75, 14')
        k('v_and_b32 v238, 127, v0')
        k('v_lshl_add_u32 v238, v238, 7, s75')
        k.vm('global_load_dword a201, v238, s[%d:%d]' % (P_W2, P_W2 + 1))
    k('s_cmp_lt_u32 s2, 112')
    k('s_cbranch_scc0 L_pj_w1')
    k('s_lshl_b32 s76, s2, 14')
    k('s_lshl_b32 s70, s50, 12')
    k('s_add_u32 s76, s76, s70')
    add_ptr(k, 72, P_W2, 76)
    k('s_add_u32 s31, s70, %d' % L_SJ)
    k('s_movk_i32 s79, 1024')
    for r in range(4):
        k('v_xor_b32 v%d, %d, v1' % (224 + r, r << 2))
        k('v_lshlrev_b32 v%d, 4, v%d' % (224 + r, 224 + r))
        if r: k('v_add_u32 v%d, %d, v%d' % (224 + r, 1024 * r, 224 + r))
    k('s_branch L_pj_go')
    k('L_pj_w1:')
    k('s_sub_u32 s75, s2, 112')
    k('s_min_u32 s75, s75, 111')
    k('s_and_b32 s26, s75, 7')
    k('s_lshr_b32 s27, s75, 3')
    k('s_lshl_b32 s75, s26, 4')
    k('s_add_u32 s75, s75, s50')
    k('s_mul_i32 s75, s75, %d' % (4 * 3584))
    k('s_lshl_b32 s76, s27, 8')
    k('s_add_u32 s75, s75, s76')
    add_ptr(k, 72, P_W1, 75)
    k('s_lshl_b32 s31, s50, 10')
    k('s_add_u32 s31, s31, %d' % L_SJ)
    k('s_movk_i32 s79, 4096')
    k('v_lshrrev_b32 v228, 4, v1')
    k('v_and_b32 v229, 15, v1')
    k('v_lshlrev_b32 v230, 2, v228')
    k('v_xor_b32 v230, v230, v229')
    k('v_mul_u32_u24 v224, 3584, v228')
    k('v_lshl_add_u32 v224, v230, 4, v224')
    for r in range(1, 4): k('v_add_u32 v%d, %d, v224' % (224 + r, r * 16 * 3584))
    k('L_pj_go:')
    def pkdma(r):
        k('s_mov_b32 m0, s31')
        k.tpk = k.vm('global_load_lds_dwordx4 v%d, s[72:73]' % (224 + r))
        k('s_add_u32 s31, s31, s79')
    SNON = 0
    if SNON:
        add_ptr(k, 10, P_WMOD, 7)
        k('s_mov_b32 m0, s9')
        k.vm('global_load_lds_dwordx4 v231, s[10:11]')
        k('s_add_u32 s10, s10, %d' % (16 * 6144 - 1024))
        k('s_addc_u32 s11, s11, 0')
        k.vm('global_load_lds_dwordx4 v231, s[10:11] offset:1024')
        add_ptr(k, 10, P_WMOD, 66)
        k('s_add_u32 m0, s9, 2048')
        tcm = k.vm('global_load_lds_dwordx4 v231, s[10:11]')
        for r in range(4): pkdma(r)
    k('s_and_b32 s75, s5, 15')
    k('s_lshl_b32 s75, s75, 13')
    k('s_lshr_b32 s76, s5, 4')
    k('s_lshl_b32 s76, s76, 6')
    k('s_add_u32 s75, s75, s76')
    k('s_lshl_b32 s76, s6, 3')
    k('s_add_u32 s75, s75, s76')
    k('s_and_b32 s76, s64, 15')
    k('s_lshl_b32 s76, s76, 13')
    k('s_lshr_b32 s77, s64, 4')
    k('s_lshl_b32 s77, s77, 7')
    k('s_add_u32 s76, s76, s77')
    k('s_lshl_b32 s77, s65, 3')
    k('s_add_u32 s76, s76, s77')
    k('s_add_u32 s76, s76, 256')
    k('s_cmp_eq_u32 s50, 0')
    k('s_cselect_b32 s75, s75, s76')
    ws_ptr(k, 16, WS_MODG, 75)
    k('v_mov_b32 v12, 0\nv_mov_b32 v13, 0\nv_mov_b32 v14, 0\nv_mov_b32 v15, 0')
    ws_ptr(k, 14, WS_SYNC)
    tr_addr32(k, 254, 1, 250, 251, 6, 8)
    k('v_add_u32 v254, s9, v254')
    k('v_and_b32 v40, 31, v1')
    k('v_lshrrev_b32 v41, 5, v1')
    k('v_lshrrev_b32 v253, 1, v40')
    k('v_lshlrev_b32 v253, 9, v253')
    k('v_and_b32 v250, 1, v40')
    k('s_add_u32 s75, s50, 5')
    k('v_lshlrev_b32 v250, s75, v250')
    k('v_add_u32 v253, v253, v250')
    k('v_mul_u32_u24 v11, 1056, v77')
    k('v_add_u32 v11, v11, v78')
    k('v_add_u32 v11, %d, v11' % L_STN)
    k('v_bfe_u32 v56, v1, 2, 3')
    k('v_mul_u32_u24 v236, 1056, v56')
    k('v_and_b32 v57, 3, v1')
    k('v_lshl_add_u32 v236, v57, 3, v236')
    k('v_lshl_add_u32 v236, v41, 5, v236')
    k('s_lshl_b32 s75, s50, 8')
    k('s_add_u32 s75, s75, %d' % L_STN)
    k('v_add_u32 v236, s75, v236')
    k('v_and_b32 v57, 15, v1')
    k('v_lshl_add_u32 v57, v41, 4, v57')
    k('v_lshlrev_b32 v235, 5, v57')
    k('v_bfe_u32 v57, v1, 4, 1')
    k('v_lshl_add_u32 v235, v57, 4, v235')
    k('s_lshl_b32 s75, s2, 10')
    k('s_lshl_b32 s76, s50, 20')
    k('s_add_u32 s75, s75, s76')
    ws_ptr(k, 12, WS_XG, 75)
    k('s_lshl_b32 s75, s2, 6')
    k('s_lshl_b32 s76, s50, 4')
    k('s_add_u32 s75, s75, s76')
    ws_ptr(k, 24, WS_ST1, 75)
    k('s_mov_b32 s58, 0xffff0000')
    k('s_mov_b32 s63, 0x3f803f80')
    k('v_lshlrev_b32 v249, 2, v0')
    k('v_add_u32 v249, %d, v249' % L_SC)
    k('v_lshlrev_b32 v233, 4, v41')
    k('s_lshl_b32 s75, s50, 8')
    k('s_add_u32 s75, s75, %d' % L_SC)
    k('v_add_u32 v233, s75, v233')
    k('s_lshl_b32 s75, s50, 10')
    k('v_lshl_add_u32 v252, v1, 2, s75')
    k('v_add_u32 v252, %d, v252' % (L_SC + 1024))
    k('s_lshl_b32 s55, s50, 14')
    k('v_lshl_add_u32 v16, v1, 2, s55')
    for r in range(1, 16): k('v_xor_b32 v%d, %d, v16' % (16 + r, r << 4))
    k('v_and_b32 v42, 15, v1')
    k('v_xor_b32 v42, v42, v41')
    k('v_lshlrev_b32 v42, 4, v42')
    k('v_lshl_add_u32 v42, v40, 8, v42')
    k('v_add_u32 v32, s55, v42')
    for ks in range(1, 8): k('v_xor_b32 v%d, %d, v32' % (32 + ks, ks << 5))
    TP = E('TPAD', 1)
    k('s_mul_i32 s56, s52, 7168')
    k('s_add_u32 s56, s56, %d' % ((L_T - (0x3F00 + (0x3F00 >> 5 if TP else 0)) * 4) & 0xffffffff))
    k('v_lshlrev_b32 v42, 3, v40')
    k('v_cvt_f32_u32 v42, v42')
    k('v_cvt_f32_u32 v43, v41')
    c0 = [0, 1, 2, 3, 256, 258, 260, 262]
    c1 = [4, 5, 6, 7, 512, 516, 768, 772]
    for r in range(8):
        k('v_fmamk_f32 v56, v43, %s, v42' % f32(c1[r] - c0[r]))
        if c0[r]: k('v_add_f32 v56, %s, v56' % f32(c0[r]))
        else: k('v_max_f32 v56, 0.5, v56')
        k('v_cvt_pk_bf16_f32 v56, v56, 0')
        if TP: k('v_lshrrev_b32 v77, 5, v56'); k('v_add_u32 v56, v56, v77')
        k('v_lshl_add_u32 v%d, v56, 2, s56' % (44 + r))
    k('v_cmp_eq_u32 vcc, 32, v1')
    k('v_fmaak_f32 v57, 4.0, v42, %s' % f32(4096.0))
    k('v_mov_b32 v58, %s' % f32(2048.0))
    k('v_cndmask_b32 v58, v57, v58, vcc')
    k('v_cmp_lt_u32 vcc, 31, v1')
    for r in range(8, 12):
        k('v_add_f32 v56, %s, v42' % f32(1024 + 256 * (r - 8)))
        k('v_cndmask_b32 v56, v56, v%d, vcc' % (58 if r == 8 else 57))
        k('v_cvt_pk_bf16_f32 v56, v56, 0')
        if TP: k('v_lshrrev_b32 v77, 5, v56'); k('v_add_u32 v56, v56, v77')
        k('v_lshl_add_u32 v%d, v56, 2, s56' % (44 + r))
    k('v_and_b32 v59, 127, v0')
    k('v_lshlrev_b32 v56, 4, v59')
    k('v_sub_u32 v56, 2047, v56')
    k('v_cvt_f32_u32 v57, v56')
    for i in range(17):
        if i: k('v_add_f32 v56, %s, v57' % f32(-float(i)))
        else: k('v_mov_b32 v56, v57')
        if i >= 15: k('v_max_f32 v56, 0.5, v56')
        k('v_cvt_pk_bf16_f32 v56, v56, 0')
        if TP: k('v_lshrrev_b32 v77, 5, v56'); k('v_add_u32 v56, v56, v77')
        k('v_lshl_add_u32 v%d, v56, 2, s56' % (60 + i))
    k('s_mov_b32 s57, 0x07060302')
    k('s_mov_b32 s59, %s' % f32(LOG2E))
    lo_log2e = LOG2E - struct.unpack('<f', struct.pack('<f', LOG2E))[0]
    inv2pi = 1.0 / (2 * math.pi)
    inv2pi_f = struct.unpack('<f', struct.pack('<f', inv2pi))[0]
    k('s_mov_b32 s60, %s' % f32(inv2pi_f))
    k('s_mov_b32 s61, %s' % f32(inv2pi - inv2pi_f))
    k('s_mov_b32 s62, %s' % f32(lo_log2e))
    k('s_lshl_b32 s75, s50, 6')
    k('v_mov_b32 v234, s75')
    NL = 'global_load_dword v232, v234, s[%d:%d]%s' % (P_DBG, P_DBG + 1, SC)
    if not SNON:
        tn = k.vm(NL)
        add_ptr(k, 10, P_WMOD, 7)
        k('s_mov_b32 m0, s9')
        k.vm('global_load_lds_dwordx4 v231, s[10:11]')
        k('s_add_u32 s10, s10, %d' % (16 * 6144 - 1024))
        k('s_addc_u32 s11, s11, 0')
        k.vm('global_load_lds_dwordx4 v231, s[10:11] offset:1024')
        add_ptr(k, 10, P_WMOD, 66)
        k('s_add_u32 m0, s9, 2048')
        tcm = k.vm('global_load_lds_dwordx4 v231, s[10:11]')
        for r in range(4): pkdma(r)
    k('s_cmp_lt_u32 s2, 112')
    k('s_cbranch_scc0 L_pa_w1')
    tr_addr32(k, 224, 1, 250, 251, 10, 4)
    k('s_lshl_b32 s76, s50, 8')
    k('s_add_u32 s76, s76, %d' % L_SJ)
    k('v_add_u32 v224, s76, v224')
    k('v_bfe_u32 v251, v1, 2, 2')
    k('v_lshlrev_b32 v251, 6, v251')
    k('v_xor_b32 v224, v224, v251')
    for q in range(1, 4): k('v_xor_b32 v%d, %d, v224' % (224 + q, q << 6))
    k('s_mul_i32 s76, s50, %d' % (4 * 114688))
    k('s_lshl_b32 s75, s2, 10')
    k('s_add_u32 s76, s76, s75')
    ws_ptr(k, 70, WS_W2P, 76)
    k('s_mov_b32 s75, 114688')
    k('s_movk_i32 s76, 8192')
    k('s_branch L_pa_go')
    k('L_pa_w1:')
    tr_addr32(k, 224, 1, 250, 251, 8, 8)
    k('v_bfe_u32 v251, v1, 2, 2')
    k('v_xor_b32 v251, s50, v251')
    k('v_lshl_add_u32 v224, v251, 6, v224')
    k('v_add_u32 v224, %d, v224' % L_SJ)
    for q in range(1, 4): k('v_add_u32 v%d, %d, v224' % (224 + q, q * 4096))
    k('s_lshl_b32 s76, s27, 2')
    k('s_add_u32 s76, s76, s50')
    k('s_lshl_b32 s76, s76, 15')
    k('s_lshl_b32 s75, s26, 12')
    k('s_add_u32 s76, s76, s75')
    ws_ptr(k, 70, WS_W1P, 76)
    k('s_movk_i32 s75, 1024')
    k('s_movk_i32 s76, 1024')
    k('L_pa_go:')
    for q in range(4): k('v_add_u32 v%d, s76, v%d' % (228 + q, 224 + q))
    k('v_lshlrev_b32 v223, 4, v1')
    k('v_add_u32 v237, s75, v223')
    k('v_add_u32 v238, s75, v237')
    k('v_add_u32 v239, s75, v238')
    k('s_lshr_b32 s5, s3, 1')
    k('s_lshl_b32 s5, s5, 2')
    k('s_and_b32 s75, s4, 3')
    k('s_add_u32 s5, s5, s75')
    k('s_and_b32 s7, s3, 1')
    k('s_mul_i32 s7, s7, 7')
    k('s_lshr_b32 s75, s4, 2')
    k('s_add_u32 s7, s7, s75')
    k('s_min_u32 s7, s7, 13')
    k('s_lshl_b32 s6, s7, 2')
    k('s_add_u32 s6, s6, s50')
    k.smem_wait()
    k.wait(vm=tpar)
    k('v_mov_b32 v255, v223')
    k.stamp(2); k.stamp3(1)
    if SNON: k('s_load_dword s81, s[%d:%d], 0 glc' % (P_DBG, P_DBG + 1))
    k('v_mul_f32 v78, s59, v10')
    k('v_fma_f32 v79, v10, s59, -v78')
    k('v_fma_f32 v79, v10, s62, v79')
    k('v_exp_f32 v78, v78')
    k('v_mul_f32 v79, %s, v79' % f32(math.log(2.0)))
    k('v_fma_f32 v78, v78, v79, v78')
    k('v_cvt_pk_bf16_f32 v78, v78, v78')
    k('v_and_b32 v78, s58, v78')
    k('v_mul_f32 v4, v78, v4')
    k('v_mul_f32 v5, v78, v5')
    k('v_mul_f32 v152, v78, v6')
    k('v_mul_f32 v154, v78, v7')
    E0 = 96
    cmul1(k, E0, 8, 152); cmul2(k, E0, 8, 152)
    k('v_mul_f32 v4, s59, v4')
    Z1, Z256, Z8, Z128 = 80, 84, 152, 156
    def zpow(dst, p, conj, t):
        pf = f32(float(p))
        return ['v_mul_f32 v%d, %s, v4' % (t, pf), 'v_mul_f32 v%d, %s, v5' % (t + 1, pf), 'v_exp_f32 v%d, v%d' % (t, t),
                'v_mul_f32 v%d, s60, v%d' % (t + 2, t + 1), 'v_fma_f32 v%d, v%d, s60, -v%d' % (t + 3, t + 1, t + 2),
                'v_fma_f32 v%d, v%d, s61, v%d' % (t + 3, t + 1, t + 3), 'v_fract_f32 v%d, v%d' % (t + 2, t + 2),
                'v_add_f32 v%d, v%d, v%d' % (t + 2, t + 2, t + 3), 'v_cos_f32 v%d, v%d' % (t + 3, t + 2), 'v_sin_f32 v%d, v%d' % (t + 2, t + 2),
                'v_mul_f32 v%d, v%d, v%d' % (dst, t, t + 3), 'v_mul_f32 v%d, v%d, %sv%d' % (dst + 2, t, '-' if conj else '', t + 2)]
    for p_, q_ in ((zpow(Z1, 1, False, 88), zpow(Z256, 256, False, 92)), (zpow(Z8, 8, True, 88), zpow(Z128, 128, True, 92))):
        for x, y in zip(p_, q_): k(x); k(y)
    T0 = 140
    def split_a(e, i):
        t = T0 + 6 * (i & 1)
        if not KSPLIT:
            k('v_cvt_pk_bf16_f32 v%d, v%d, v%d' % (t + 4, e, e + 1)); return
        k('v_perm_b32 v%d, v%d, v%d, s57' % (t + 4, e + 1, e))
        k('v_and_b32 v%d, s58, v%d' % (t, e))
        k('v_and_b32 v%d, s58, v%d' % (t + 1, e + 1))
    def split_b(e, i, row):
        t = T0 + 6 * (i & 1)
        if not KSPLIT: return k.ds('ds_write_b32 v%d, v%d offset:%d' % (16 + (row & 15), t + 4, row * 256))
        k('v_pk_add_f32 %s, %s, %s neg_lo:[0,1] neg_hi:[0,1]' % (v(t + 2, 2), v(e, 2), v(t, 2)))
        k('v_cvt_pk_bf16_f32 v%d, v%d, v%d' % (t + 5, t + 2, t + 3))
        return k.ds('ds_write2st64_b32 v%d, v%d, v%d offset0:%d offset1:%d' % (16 + (row & 15), t + 4, t + 5, row, 32 + row))
    hi = {r: (r - 1, Z1) for r in range(1, 8)}
    hi.update({8: (0, Z256), 9: (2, Z256), 10: (4, Z256), 11: (6, Z256), 12: (8, Z256), 13: (10, Z256), 14: (12, Z256), 15: (13, Z256),
               16: (14, Z256), 17: (16, Z256), 18: (17, Z256), 19: (18, Z256), 20: (19, Z256)})
    order = [0, 1, 8, 2, 12, 3, 14, 4, 16, 5, 17, 6, 18, 7, 19, 9, 20, 10, 11, 13, 15]
    for i, r in enumerate(order):
        nxt = order[i + 1] if i + 1 < len(order) else None
        if nxt is not None: cmul1(k, E0 + 2 * nxt, E0 + 2 * hi[nxt][0], hi[nxt][1])
        split_a(E0 + 2 * r, i)
        if nxt is not None: cmul2(k, E0 + 2 * nxt, E0 + 2 * hi[nxt][0], hi[nxt][1])
        split_b(E0 + 2 * r, i, r)
    AH, AL = 160, 192
    for ks in range(8):
        k.ds('ds_read_b128 %s, v%d' % (v(AH + 4 * ks, 4), 32 + ks))
        if KSPLIT: k.ds('ds_read_b128 %s, v%d offset:8192' % (v(AL + 4 * ks, 4), 32 + ks))
    for i in range(4): k('v_mov_b32 v%d, 0' % (96 + i))
    k.stamp3(2)
    k.wait(vm=tx)
    k.stamp3(3)
    for i in range(2): k.ds('ds_write_b128 v11, %s offset:%d' % (v(240 + 4 * i, 4), 512 * i))
    for j in range(8):
        k('v_dot2c_f32_bf16 v%d, s63, v%d' % (96 + (j & 1), 240 + j))
        k('v_dot2c_f32_bf16 v%d, v%d, v%d' % (98 + (j & 1), 240 + j, 240 + j))
    if SNON:
        k.wait(vm=tc)
        k.smem_wait()
        k('v_mov_b32 v232, s81')
    else: k.wait(vm=tn)
    k('s_mov_b32 s80, 0')
    k('L_non_p:')
    k('v_cmp_eq_u32 vcc, 0, v232')
    retry_tail(k, 'non', [NL, 's_waitcnt vmcnt(0)'])
    k('v_readfirstlane_b32 s81, v232')
    k.stamp3(4)
    GR = [100 + 4 * q for q in range(3)] + [120]
    for q in range(4): k('v_mov_b32 v%d, v232\nv_mov_b32 v%d, v232' % (GR[q] + 2, GR[q] + 3))
    k.wait_all(vm=False)
    k.barrier()
    tq = [k.ds('ds_read_b64_tr_b16 %s, v236 offset:%d' % (v(GR[q], 2), 64 * q)) for q in range(4)]
    k('v_lshlrev_b32 v116, 16, v248')
    k('v_and_b32 v117, s58, v248')
    k('v_add_f32 v96, v96, v97')
    k('v_add_f32 v98, v98, v99')
    nm = 'v_mul_f32 v%%d, %s, v%%d' % f32(-LOG2E)
    silu = [nm % (118, 116), nm % (119, 117), 'v_exp_f32 v118, v118', 'v_exp_f32 v119, v119', 'v_add_f32 v118, 1.0, v118', 'v_add_f32 v119, 1.0, v119',
            'v_rcp_f32 v118, v118', 'v_rcp_f32 v119, v119', 'v_mul_f32 v116, v116, v118', 'v_mul_f32 v117, v117, v119', 'v_cvt_pk_bf16_f32 v116, v116, v117']
    for pat in ('quad_perm:[1,0,3,2]', 'quad_perm:[2,3,0,1]', 'row_half_mirror', 'row_mirror'):
        k(silu.pop(0)); k(silu.pop(0))
        k('v_add_f32_dpp v96, v96, v96 %s row_mask:0xf bank_mask:0xf' % pat)
        k('v_add_f32_dpp v98, v98, v98 %s row_mask:0xf bank_mask:0xf' % pat)
    k('v_mov_b32 v97, v96')
    k('v_mov_b32 v99, v98')
    for q in range(4):
        k.wait(ds=tq[q])
        k.vm('global_store_dwordx4 v235, %s, s[12:13]%s' % (v(GR[q], 4), SC))
        if q < 3: k('s_add_u32 s12, s12, 0x40000'); k('s_addc_u32 s13, s13, 0')
    while silu: k(silu.pop(0))
    k.ds('ds_write_b32 v249, v116')
    k('v_permlane16_swap_b32 v96, v97')
    k('v_permlane16_swap_b32 v98, v99')
    for ks in range(3): k.ds('ds_read_b128 %s, v233 offset:%d' % (a(32 + 4 * ks, 4), 32 * ks))
    k('v_add_f32 v96, v96, v97')
    k('v_add_f32 v98, v98, v99')
    k('v_mul_f32 v96, %s, v96' % f32(1.0 / 512))
    k('v_mul_f32 v98, %s, v98' % f32(1.0 / 512))
    k('v_fma_f32 v98, -v96, v96, v98')
    k('v_max_f32 v98, 0, v98')
    k('v_add_f32 v98, %s, v98' % f32(1e-5))
    k('v_rsq_f32 v240, v98')
    k('v_mul_f32 v242, v96, v240')
    k('v_mov_b32 v241, v240')
    k('v_mov_b32 v243, v242')
    k('v_permlane32_swap_b32 v240, v241')
    k('v_permlane32_swap_b32 v242, v243')
    k('v_cvt_pk_bf16_f32 v242, v242, v243')
    k('v_mov_b32 v243, v232')
    k('s_mov_b64 exec, 1')
    k.vm('global_store_dwordx4 v12, v[240:243], s[24:25]' + SC)
    k('s_mov_b64 exec, -1')
    def mod_a():
        k.stamp3(6)
        k.wait(vm=tcm)
        k.stamp3(7)
        for ks in range(3):
            k.ds('ds_read_b64_tr_b16 %s, v254 offset:%d' % (a(48 + 4 * ks, 2), ks * 1024))
            k.tmr = k.ds('ds_read_b64_tr_b16 %s, v254 offset:%d' % (a(50 + 4 * ks, 2), ks * 1024 + 256))
    def mod_b():
        k.wait(ds=k.tmr)
        k('v_mfma_f32_32x32x16_bf16 a[64:79], a[32:35], a[48:51], 0')
        k('v_mfma_f32_32x32x16_bf16 a[80:95], a[40:43], a[56:59], 0')
        k('v_mfma_f32_32x32x16_bf16 a[64:79], a[36:39], a[52:55], a[64:79]')
    def mod_c():
        k.ds('ds_write_b32 v249, a80 offset:2048')
        k.ds('ds_write_b32 v249, a64 offset:1024')
        k.stamp3(8)
        k.wait_all(vm=False)
        k.barrier()
        k.stamp3(9)
        for i in range(4): k.tp = k.ds('ds_read_b32 v%d, v252 offset:%d' % (244 + i, 256 * i))
    def mod_d():
        k.wait(ds=k.tp)
        k('s_cmp_ge_u32 s50, 2')
        k('s_cbranch_scc1 L_cm2')
        k('v_add_f32 v244, v244, v245')
        k('v_add_f32 v246, v246, v247')
        k('v_add_f32 v244, v244, v246')
        k('v_mov_b32 v245, v232')
        raw(k, 'global_store_dwordx2 v253, v[244:245], s[16:17]' + SC)
        k('s_branch L_cm3')
        k('L_cm2:')
        k('v_and_b32 v246, 15, v1')
        k('s_lshl_b32 s75, s2, 6')
        k('v_lshl_add_u32 v246, v246, 2, s75')
        raw(k, 'global_store_dword v246, v12, s[14:15]' + SC)
        k('L_cm3:')
    def pack_out():
        for q in range(4):
            k.ds('ds_read_b64_tr_b16 %s, v%d' % (a(4 * q, 2), 224 + q))
            pt = k.ds('ds_read_b64_tr_b16 %s, v%d' % (a(4 * q + 2, 2), 228 + q))
        k.wait(ds=pt)
        k('s_cmp_ge_u32 s2, 224')
        k('s_cbranch_scc1 L_pk_no')
        for q in range(4): raw(k, 'global_store_dwordx4 v%d, %s, s[70:71]%s' % (255 if q == 0 else 236 + q, a(4 * q, 4), SC))
        k('L_pk_no:')
        k.tall = k.nvm
    k('s_nop 1')
    k.stamp(4); k.stamp3(5)
    eq = []
    L0 = 96
    k('v_mov_b32 v%d, 1.0' % L0)
    k('v_mov_b32 v%d, 0' % (L0 + 1))
    lo_order = []
    for m in range(16): lo_order += [m, 16 + m]
    def lreg(m): return L0 + 2 * m if m < 16 else 132 + 2 * (m & 1)
    def lsrc(m): return (lreg(m - 1), Z8) if m < 16 else (lreg(m - 16), Z128)
    for i, m in enumerate(lo_order):
        nxt = lo_order[i + 1] if i + 1 < len(lo_order) else None
        if nxt is not None: cmul1(k, lreg(nxt), *lsrc(nxt))
        split_a(lreg(m), i)
        if nxt is not None: cmul2(k, lreg(nxt), *lsrc(nxt))
        split_b(lreg(m), i, m)
        M0 = E('MODAT', 2)
        if i == M0: mod_a()
        if i == M0 + 2: mod_b()
        if i == M0 + 5: mod_c()
        if i == M0 + 7: mod_d()
        if i == E('PKO', 20):
            k.wait(vm=k.tpk); k.barrier(); pack_out()
    while eq: eq.pop(0)()
    if E('FPB', 1) == 3:
        k.wait_all(vm=True, ds=False)
        k.barrier()
        signal(k, 'fp', O_FP, 250, 251)
    k.stamp3(10)
    ACC = 224
    bt = []
    k.wait_all(vm=False, ds=True)
    for ks in range(8):
        t = k.ds('ds_read_b128 %s, v%d' % (v(96 + 8 * ks, 4), 32 + ks))
        if KSPLIT: t = k.ds('ds_read_b128 %s, v%d offset:8192' % (v(100 + 8 * ks, 4), 32 + ks))
        bt.append(t)
    fill = []
    F = lambda x: fill.append(x)
    F('v_lshrrev_b32 v7, 2, v1'); F('v_and_b32 v8, 3, v1'); F('v_lshlrev_b32 v16, 10, v7'); F('v_lshl_add_u32 v16, v8, 4, v16')
    F('s_lshl_b32 s60, s50, 16\ns_lshr_b32 s61, s34, 4\ns_lshl_b32 s61, s61, 18\ns_add_u32 s60, s60, s61')
    F('s_and_b32 s61, s34, 15\ns_lshl_b32 s61, s61, 6\ns_add_u32 s60, s60, s61\ns_add_u32 s62, s48, s60\ns_addc_u32 s63, s49, 0')
    assert WS_XG == 0
    for i in range(1, 4): F('v_add_u32 v%d, 0x%x, v16' % (16 + i, i * 16384))
    F('v_and_b32 v10, 1, v8'); F('v_lshlrev_b32 v24, 6, v7'); F('v_lshl_add_u32 v24, v10, 5, v24'); F('v_lshrrev_b32 v9, 1, v8'); F('v_lshl_add_u32 v24, v9, 4, v24')
    F('s_lshl_b32 s60, s50, 12\ns_add_u32 s60, s60, 0x%x\ns_add_u32 s24, s48, s60\ns_addc_u32 s25, s49, 0' % WS_ST1)
    F('v_lshlrev_b32 v21, 3, v1')
    F('s_lshl_b32 s60, s34, 9\ns_add_u32 s60, s60, 0x%x\ns_add_u32 s64, s48, s60\ns_addc_u32 s65, s49, 0' % WS_MODG)
    XD = [240, 244, 248, 252]
    k.XD = XD
    XL1 = ['global_load_dwordx4 %s, v%d, s[62:63]%s' % (v(XD[i], 4), 16 + i, SC) for i in range(4)] + ['global_load_dwordx2 v[22:23], v21, s[64:65]' + SC]
    XL2 = ['global_load_dwordx4 %s, v24, s[24:25] offset:%d%s' % (v(80 + 4 * i, 4), i * 1024, SC) for i in range(4)]
    k.XL = XL1 + XL2
    F('s_or_b32 s66, s55, 0x4000'); F('v_lshl_add_u32 v3, v1, 4, s66')
    F('s_mul_i32 s55, s52, %d\ns_add_u32 s55, s55, %d' % (CHS, L_CV)); F('v_lshl_add_u32 v2, v59, 5, s55')
    for x in XL1 + XL2: F('VM ' + x); F('s_nop 0')
    def emit_fill():
        x = fill.pop(0)
        if x.startswith('VM '): k.vm(x[3:])
        else: k(x)
    for ks in range(8):
        k.wait(ds=bt[ks])
        c = '0' if ks == 0 else v(ACC, 16)
        ms = [(AH + 4 * ks, 96 + 8 * ks)] + ([(AH + 4 * ks, 100 + 8 * ks), (AL + 4 * ks, 96 + 8 * ks)] if KSPLIT else [])
        for x, y in ms:
            k('v_mfma_f32_32x32x16_bf16 %s, %s, %s, %s' % (v(ACC, 16), v(x, 4), v(y, 4), c)); c = v(ACC, 16)
            for _ in range(2 if KSPLIT else 4):
                if fill: emit_fill()
    while fill: emit_fill()
    k.stamp3(11)
    k('s_nop 7\ns_nop 3')
    k('s_bitcmp1_b32 s50, 0')
    k('s_cbranch_scc0 L_kg_a')
    for i in range(3): k.ds('ds_write_b128 v3, %s offset:%d' % (v(ACC + 4 * i, 4), 1024 * i))
    k.wait_all(vm=False)
    k('L_kg_a:')
    if E('FPB', 1) == 2: k('s_waitcnt vmcnt(%d)' % (k.nvm - k.tall))
    k.barrier()
    k.stamp3(12)
    if E('FPB', 1) == 2:
        signal(k, 'fp', O_FP, 28, 29)
        k('s_bitcmp1_b32 s50, 0')
    k('s_cbranch_scc1 L_kg_b')
    for i in range(3): k.ds('ds_read_b128 %s, v3 offset:%d' % (v(96 + 4 * i, 4), 1024 * i))
    k.wait_all(vm=False)
    for i in range(6): k('v_pk_add_f32 %s, %s, %s' % (v(96 + 2 * i, 2), v(96 + 2 * i, 2), v(ACC + 2 * i, 2)))
    for r in range(12): k.ds('ds_write_b32 v%d, v%d' % (44 + r, 96 + r))
    k.wait_all(vm=False)
    k('L_kg_b:')
    if E('FPB', 1) == 1: k('s_waitcnt vmcnt(%d)' % (k.nvm - k.tall))
    k.barrier()
    k.stamp3(13)
    if E('FPB', 1) == 1: signal(k, 'fp', O_FP, 28, 29)
    k('v_cmp_eq_u32 vcc, 127, v59')
    G = 96
    gt = [k.ds('ds_read_b32 v%d, v%d' % (G + i, 60 + i)) for i in range(17)]
    conv_setup(k)
    k.wait(ds=gt[-1])
    k('v_cmp_eq_u32 vcc, 127, v59')
    k('v_cndmask_b32 v%d, v%d, v12, vcc' % (G + 16, G + 16))
    for i in range(8): k('v_cvt_pk_bf16_f32 v%d, v%d, v%d' % (120 + i, G + 2 * i, G + 2 * i + 1))
    for i in range(8): k('v_cvt_pk_bf16_f32 v%d, v%d, v%d' % (128 + i, G + 2 * i + 1, G + 2 * i + 2))
    k.ds('ds_write_b128 v2, v[120:123]')
    k.ds('ds_write_b128 v2, v[124:127] offset:16')
    k.ds('ds_write_b128 v2, v[128:131] offset:%d' % O_K1)
    k.ds('ds_write_b128 v2, v[132:135] offset:%d' % (O_K1 + 16))
    k('v_lshlrev_b32 v2, 4, v1')

def conv_setup(k):
    k('s_and_b32 s54, s50, 1')
    k('v_lshlrev_b32 v11, 4, v1')
    k('v_and_b32 v5, 15, v1')
    k('v_lshrrev_b32 v6, 4, v1')
    k('s_mul_i32 s59, s54, %d' % O_K1)
    k('s_add_u32 s59, s59, s55')
    k('v_lshl_add_u32 v14, v5, 2, s59')
    k.ds('ds_write_b32 v14, v12 offset:4096')
    k('v_lshl_add_u32 v14, v1, 3, s55')
    k.ds('ds_write_b64 v14, v[12:13] offset:%d' % O_H)
    k('v_lshlrev_b32 v15, 3, v10')
    k('v_lshl_add_u32 v15, v7, 4, v15')
    k('s_lshl_b32 s60, s50, 10')
    k('v_add_u32 v15, s60, v15')
    k('v_mul_u32_u24 v20, %d, v9' % CHS)
    k('v_add_u32 v20, v20, v15')
    k('v_lshl_add_u32 v25, v9, 12, v15')
    k('s_lshl_b32 s76, s54, 10')
    k('s_add_u32 s77, s76, s55')
    k('v_lshlrev_b32 v15, 5, v5')
    k('v_lshl_add_u32 v15, v6, 3, v15')
    k('v_add_u32 v193, s77, v15')
    k('s_lshl_b32 s77, s52, 12')
    k('s_add_u32 s76, s76, s77')
    k('v_add_u32 v202, s76, v15')
    k('v_lshlrev_b32 v15, 5, v5')
    k('v_lshl_add_u32 v15, v6, 4, v15')
    k('s_lshl_b32 s77, s54, 8')
    k('s_sub_u32 s77, s55, s77')
    k('s_add_u32 s78, s77, %d' % (O_H + 512 - 32 - 192))
    k('v_add_u32 v192, s78, v15')
    k('v_lshlrev_b32 v15, 3, v6')
    k('v_sub_u32 v15, v15, v5')
    k('v_add_u32 v15, 15, v15')
    k('v_and_b32 v194, 1, v15')
    k('v_mul_u32_u24 v194, %d, v194' % O_K1)
    k('v_and_b32 v15, -2, v15')
    k('v_lshl_add_u32 v15, v15, 1, v194')
    k('s_add_u32 s78, s77, %d' % (2 * (2016 - 256 - 96 - 1536)))
    k('v_add_u32 v197, s78, v15')
    for ip in range(3): k('v_add_u32 v%d, %d, v197' % (194 + ip, 1024 * (3 - ip)))
    k('s_lshl_b32 s77, s54, 12')
    k('s_add_u32 s78, s77, s55')
    k('v_add_u32 v198, s78, v11')
    k('s_xor_b32 s77, s77, 0x1000')
    k('s_add_u32 s78, s77, s55')
    k('v_add_u32 v199, s78, v11')
    k('v_and_b32 v15, 1, v6')
    k('v_lshlrev_b32 v15, 3, v15')
    k('v_lshrrev_b32 v200, 1, v5')
    k('v_add_u32 v15, v15, v200')
    k('v_lshlrev_b32 v200, 15, v15')
    k('v_and_b32 v15, 1, v5')
    k('v_lshl_add_u32 v200, v15, 5, v200')
    k('v_lshrrev_b32 v15, 1, v6')
    k('v_lshl_add_u32 v200, v15, 4, v200')
    k('v_add_u32 v201, 0x100000, v200')
    k('s_lshl_b32 s60, s54, 19')
    k('s_lshl_b32 s61, s53, 6')
    k('s_add_u32 s60, s60, s61')
    ws_ptr(k, 66, WS_X1T, 60)
    ws_ptr(k, 68, WS_X1S, 60)
    k('s_lshl_b32 s60, s6, 15')
    ws_ptr(k, 26, WS_W1P, 60)
    k('s_lshl_b32 s77, s30, 16')
    k('s_and_b32 s74, s30, 0xffff0000')
    k('s_cmp_eq_u32 s52, 0')
    k('s_cselect_b32 s74, s77, s74')
    k('v_bfe_u32 v4, v1, 3, 1')
    k('v_cvt_f32_u32 v4, v4')
    k('v_cmp_gt_u32 vcc, 32, v1')
    k('v_cndmask_b32 v4, 0, v4, vcc')
    k('s_lshl_b32 s60, s34, 4')
    ws_ptr(k, 18, WS_FIN, 60)
    k('s_and_b32 s60, s4, 7')
    k('s_mul_i32 s60, s60, %d' % (2 * 114688))
    k('s_mul_i32 s61, s50, %d' % (28 * 1024))
    k('s_add_u32 s60, s60, s61')
    ws_ptr(k, 32, WS_W2P, 60)
    k('v_add_u32 v219, 114688, v11')
    k.w2v = 219
    k('s_lshl_b32 s60, s3, 10')
    k('v_add_u32 v217, s60, v11')
    k('v_add_u32 v218, 0x%x, v217' % O_F2)
    k('s_lshl_b32 s61, s7, 5')
    k('s_add_u32 s60, s60, s61')
    k('s_add_u32 s60, s60, 0x%x' % (O_FP + 448))
    k('v_and_b32 v217, 7, v1')
    k('v_lshl_add_u32 v217, v217, 2, s60')
    k('s_lshl_b32 s56, s54, 15')
    k('s_lshl_b32 s60, s52, 12')
    k('s_add_u32 s56, s56, s60')
    k('s_lshl_b32 s60, s5, 16')
    k('s_add_u32 s60, s60, s56')
    ws_ptr(k, 28, WS_X1S, 60)

def conv_phase(k):
    XD = k.XD
    k.tw1 = []
    def w1l():
        n = len(k.tw1)
        k.tw1.append(k.vm('global_load_dwordx4 %s, v2, s[26:27] offset:%d%s' % (a(4 * n, 4), (n & 3) * 1024, W_SC)) if not E('NOW1', 0) else k.nvm)
        if (n & 3) == 3 and n < 31: k('s_add_u32 s26, s26, 4096'); k('s_addc_u32 s27, s27, 0')
    k.w1l = w1l
    k.w2q = []
    for ks in range(28): k.w2q += w2_ops(k, ks)
    k.w2n0 = len(k.w2q)
    FPL = 'global_load_dword v204, v217, s[14:15]' + SC
    if E('FP_AT', 2) < 0: sync_issue(k, 'fp', FPL)
    k.stamp(6); k.stamp3(14)
    k('s_mov_b32 s80, 0')
    k('L_xv_p:')
    k('s_waitcnt vmcnt(0)')
    for c in chk_tags([x + 2 for x in XD] + [23] + [83 + 4 * i for i in range(4)], 28): k(c)
    retry_tail(k, 'xv', k.XL)
    k.vm_done = k.nvm
    k.stamp(7)
    k('v_add_f32_dpp v22, v22, v22 quad_perm:[1,0,3,2] row_mask:0xf bank_mask:0xf')
    k('s_lshl_b32 s60, s52, 2')
    k('s_add_u32 s61, s60, 24')
    k('v_add_f32_dpp v22, v22, v22 quad_perm:[2,3,0,1] row_mask:0xf bank_mask:0xf')
    k('s_add_u32 s60, s60, 16')
    k('v_cmp_eq_u32 vcc, 1, v9')
    k('v_add_f32_dpp v22, v22, v22 row_half_mirror row_mask:0xc bank_mask:0xf')
    k('v_cvt_pk_bf16_f32 v22, v22, v22')
    k('v_and_b32 v22, s58, v22')
    k('v_add_f32 v22, v22, v4')
    k('v_cvt_pk_bf16_f32 v22, v22, v22')
    k('v_and_b32 v22, s58, v22')
    k('v_readlane_b32 s62, v22, 0')
    k('v_readlane_b32 s63, v22, 4')
    k('v_readlane_b32 s64, v22, 8')
    k('v_readlane_b32 s65, v22, 12')
    k('v_readlane_b32 s75, v22, s60')
    k('v_readlane_b32 s76, v22, s61')
    k('v_mov_b32 v27, s62')
    k('v_mov_b32 v29, s63')
    k('v_mov_b32 v26, s64')
    k('v_mov_b32 v28, s65')
    k('v_cndmask_b32 v27, v27, v29, vcc')
    k('v_cndmask_b32 v26, v26, v28, vcc')
    for i in range(4):
        k.ds('ds_write_b64 v25, %s offset:%d' % (v(XD[i], 2), L_X + 256 * i))
        for j in range(2):
            r = XD[i] + j
            g = 56 + 4 * j
            tt = 48 + 4 * (j & 1)
            for e in range(3): k('v_mov_b32_dpp v%d, v%d quad_perm:[%d,%d,%d,%d] row_mask:0xf bank_mask:0xf' % (g + e, 80 + 4 * i + e, 2 * j, 2 * j + 1, 2 * j, 2 * j + 1))
            k('v_lshlrev_b32 v%d, 16, v%d' % (tt, r))
            k('v_and_b32 v%d, s58, v%d' % (tt + 1, r))
            k('v_lshlrev_b32 v%d, 16, v%d' % (tt + 2, g + 2))
            k('v_and_b32 v%d, s58, v%d' % (tt + 3, g + 2))
            k('v_pk_fma_f32 %s, %s, %s, %s neg_lo:[0,0,1] neg_hi:[0,0,1]' % (v(tt, 2), v(tt, 2), v(g, 2), v(tt + 2, 2)))
            k('v_pk_fma_f32 %s, %s, v[26:27], v[26:27] op_sel:[0,0,1] op_sel_hi:[1,0,1]' % (v(tt, 2), v(tt, 2)))
            k('v_cvt_pk_bf16_f32 v%d, v%d, v%d' % (XD[i] + 2 + j, tt, tt + 1))
        k.ds('ds_write_b64 v20, %s offset:%d' % (v(XD[i] + 2, 2), L_CV + O_H + 512 + 256 * i))
    if E('FP_AT', 2) < 0: sync_check(k, 'fp', [FPL], chk_tags([204], 210))
    k.wait_all(vm=False)
    k.barrier()
    if not E('FPB', 1): signal(k, 'fp', O_FP, 28, 29)
    k.stamp(9)
    ACC = 32
    def areg(st, p): return 64 + 64 * st + 4 * p
    def breg(st, q): return 96 + 64 * st + 4 * q
    def loads(cc, st, np_):
        L = []
        for p in range(np_):
            off = 128 * (1 - (p & 1)) + 16 * (3 - cc)
            L.append('ds_read2_b32 %s, v%d offset0:%d offset1:%d' % (v(areg(st, p), 2), 194 + (p >> 1), off, off + 1))
            L.append('ds_read2_b32 %s, v%d offset0:%d offset1:%d' % (v(areg(st, p) + 2, 2), 194 + (p >> 1), off + 2, off + 3))
            L.append('ds_read_b128 %s, v192 offset:%d' % (v(breg(st, p), 4), 512 * p + 64 * (3 - cc)))
        return L
    def lv_pairs(lo, hi_):
        P = []
        for lv in range(8):
            for p in range(lv + 1):
                for q in range(lv + 1):
                    if max(p, q) == lv and lo <= p + q <= hi_: P.append((p, q))
        return P
    def loadsA(cc):
        L = []
        st, o4 = cc >> 1, 4 * (cc & 1)
        for p in range(4):
            off = 128 * (1 - (p & 1)) + 16 * (3 - cc)
            L.append('ds_read2_b32 %s, v%d offset0:%d offset1:%d' % (v(areg(st, o4 + p), 2), 194 + (p >> 1), off, off + 1))
            L.append('ds_read2_b32 %s, v%d offset0:%d offset1:%d' % (v(areg(st, o4 + p) + 2, 2), 194 + (p >> 1), off + 2, off + 3))
            L.append('ds_read_b128 %s, v192 offset:%d' % (v(breg(st, o4 + p), 4), 512 * p + 64 * (3 - cc)))
        return L
    tA = {}
    for cc in range(2): tA[cc] = [k.ds(x) for x in loadsA(cc)]
    if E('FP_AT', 2) == 0: sync_issue(k, 'fp', 'global_load_dword v204, v217, s[14:15]' + SC)
    k('s_cmp_lg_u32 s50, 3')
    k('s_cbranch_scc1 L_fin')
    for i, (l0, l1) in enumerate(((32, 40), (24, 28), (48, 56))):
        k('v_readlane_b32 s60, v22, %d' % l0)
        k('v_readlane_b32 s61, v22, %d' % l1)
        k('s_lshr_b32 s60, s60, 16')
        k('s_or_b32 s60, s60, s61')
        k('v_mov_b32 v%d, s60' % (220 + i))
    k('v_mov_b32 v223, s81')
    k('s_mov_b64 exec, 1')
    raw(k, 'global_store_dwordx4 v12, v[220:223], s[18:19]' + SC)
    k('s_mov_b64 exec, -1')
    k('L_fin:')
    seen = set()
    def mf(nt, ar, br):
        c = v(ACC + 4 * nt, 4) if nt in seen else '0'
        seen.add(nt)
        k('v_mfma_f32_16x16x32_bf16 %s, %s, %s, %s' % (v(ACC + 4 * nt, 4), v(ar, 4), v(br, 4), c))
    def hx_reads(ps):
        return (['ds_read_b64 %s, v193 offset:%d' % (v(16 + 2 * j, 2), O_H + 512 + 2048 * ps + 512 * j) for j in range(2)] +
                ['ds_read_b64 %s, v202 offset:%d' % (v(20 + 2 * j, 2), L_X + 2048 * ps + 512 * j) for j in range(2)])
    PA = lv_pairs(0, 3); PB = lv_pairs(4, 7)
    q2 = loadsA(2) + loadsA(3) + hx_reads(0)
    tq = []
    for cc in range(4):
        st, o4 = cc >> 1, 4 * (cc & 1)
        for n, (p, q) in enumerate(PA):
            if cc < 2: k.wait(ds=tA[cc][3 * max(p, q) + 2])
            else: k.wait(ds=tq[12 * (cc - 2) + 3 * max(p, q) + 2])
            mf(p + q, areg(st, o4 + p), breg(st, o4 + q))
            if E('FP_AT', 2) < 0 and n % E('W1A', 3) == 0 and cc < E('W1AC', 3): w1l()
            for _ in range(2):
                if q2 and (cc > 0 or n >= 2): tq.append(k.ds(q2.pop(0)))
            if cc == 2 and n == 2: qB = loads(0, 0, 8)
            if cc >= 2 and (cc > 2 or n >= 2):
                for _ in range(2):
                    if qB: k.ds(qB.pop(0))
    assert not q2 and not qB
    def exchange_and_store(ps, lab, mid):
        b = ACC + 16 * ps
        k('s_nop 7')
        k('s_cmp_eq_u32 s54, 0')
        k('s_cbranch_scc0 L_%s_1' % lab)
        for j in range(2): k.ds('ds_write_b128 v198, %s offset:%d' % (v(b + 8 + 4 * j, 4), O_RED + 2048 * ps + 1024 * j))
        for j in range(4): k('v_mov_b64 %s, %s' % (v(224 + 2 * j, 2), v(b + 2 * j, 2)))
        k('s_branch L_%s_2' % lab)
        k('L_%s_1:' % lab)
        k.nds -= 2
        for j in range(2): k.ds('ds_write_b128 v198, %s offset:%d' % (v(b + 4 * j, 4), O_RED + 2048 * ps + 1024 * j))
        for j in range(4): k('v_mov_b64 %s, %s' % (v(224 + 2 * j, 2), v(b + 8 + 2 * j, 2)))
        k('L_%s_2:' % lab)
        k.pre()
        k.wait_all(vm=False)
        k.barrier()
        mid()
        rt_ = [k.ds('ds_read_b128 %s, v199 offset:%d' % (v(232 + 4 * j, 4), O_RED + 2048 * ps + 1024 * j)) for j in range(2)]
        for i in range(4):
            k('v_lshlrev_b32 v%d, 16, v%d' % (240 + 2 * i, 16 + i))
            k('v_and_b32 v%d, s58, v%d' % (241 + 2 * i, 16 + i))
            k('v_pk_fma_f32 %s, %s, s[74:75], %s op_sel_hi:[1,0,1]' % (v(224 + 2 * i, 2), v(240 + 2 * i, 2), v(224 + 2 * i, 2)))
            k('v_lshlrev_b32 v%d, 16, v%d' % (248 + 2 * i, 20 + i))
            k('v_and_b32 v%d, s58, v%d' % (249 + 2 * i, 20 + i))
        k.wait(ds=rt_[1])
        for i in range(4):
            k('v_pk_add_f32 %s, %s, %s' % (v(224 + 2 * i, 2), v(224 + 2 * i, 2), v(232 + 2 * i, 2)))
            k('v_pk_fma_f32 %s, %s, s[74:75], %s op_sel:[0,1,0] op_sel_hi:[1,1,1]' % (v(224 + 2 * i, 2), v(224 + 2 * i, 2), v(248 + 2 * i, 2)))
            k('v_pk_mul_f32 %s, %s, s[76:77] op_sel_hi:[1,0]' % (v(240 + 2 * i, 2), v(224 + 2 * i, 2)))
            k('v_cvt_pk_bf16_f32 v%d, v%d, v%d' % (24 + i, 240 + 2 * i, 241 + 2 * i))
            k('v_cvt_pk_bf16_f32 v%d, v%d, v%d' % (28 + i, 224 + 2 * i, 225 + 2 * i))
        for b_, sp in ((24, 68), (28, 66)):
            k('v_permlane16_swap_b32 v%d, v%d' % (b_, b_ + 2))
            k('v_permlane16_swap_b32 v%d, v%d' % (b_ + 1, b_ + 3))
            t = k.vm('global_store_dwordx4 v%d, %s, s[%d:%d]%s' % (200 + ps, v(b_, 4), sp, sp + 1, SC))
        return t
    FPL = 'global_load_dword v204, v217, s[14:15]' + SC
    FP_AT = E('FP_AT', 2)
    k.pre = (lambda: sync_check(k, 'fp', [FPL], chk_tags([204], 210))) if FP_AT == 0 else (lambda: None)
    tsA = exchange_and_store(0, 'cvA', lambda: None)
    k.pre = lambda: None
    k.stamp(3)
    F2A_AT = E('F2A_AT', 2); W1D = E('W1D', 3)
    for cc in range(4):
        st = cc & 1
        nxt = loads(cc + 1, st ^ 1, 8) if cc < 3 else hx_reads(1)
        if cc > 0: k.wait_all(vm=False)
        if cc == FP_AT and cc: sync_check(k, 'fp', [FPL], chk_tags([204], 210))
        if cc == F2A_AT: k.wait(vm=tsA)
        if cc == F2A_AT or (cc == FP_AT and cc): k.barrier()
        if cc == F2A_AT: signal(k, 'f2a', O_F2, 208, 209)
        for n, (p, q) in enumerate(PB):
            if cc == FP_AT - 2 and n == 10: sync_issue(k, 'fp', FPL)
            mf(p + q, areg(st, p), breg(st, q))
            if n >= 1 and nxt: k.ds(nxt.pop(0))
            if cc >= FP_AT and n % W1D == 0:
                if len(k.tw1) < 32: w1l()
                elif k.w2n0 - len(k.w2q) < E('W2C', 0) and cc < 3: k.w2q.pop(0)()
        assert not nxt
    k.stamp(10)
    k.PA = ['global_load_dwordx4 v[72:75], v218, s[14:15]' + SC]
    k.FL = 'global_load_dwordx4 v[164:167], v160, s[48:49]' + SC
    def mid():
        k('v_lshlrev_b32 v160, 4, v0')
        k('v_add_u32 v160, 0x%x, v160' % WS_FIN)
        k.tfin = k.vm(k.FL)
    k.tx1 = exchange_and_store(1, 'cvB', mid)
    if not E('C12POS', 0): sync_issue(k, 'f2a', *k.PA)
    while len(k.tw1) < 32: w1l()

ROT = E('ROT', 0)
def adv(k, p, c):
    if not ROT:
        k('s_add_u32 s%d, s%d, 4096\ns_addc_u32 s%d, s%d, 0' % (p, p, p + 1, p + 1)); return
    k('s_add_u32 s%d, s%d, 1' % (c, c))
    k('s_cmp_eq_u32 s%d, 7' % c)
    k('s_cselect_b32 s12, %d, s32' % (-24576))
    k('s_cselect_b32 s13, -1, 0')
    k('s_cselect_b32 s%d, 0, s%d' % (c, c))
    k('s_add_u32 s%d, s%d, s12' % (p, p))
    k('s_addc_u32 s%d, s%d, s13' % (p + 1, p + 1))

def w2reg(ks): return (a(128 + 8 * ks, 4), a(132 + 8 * ks, 4)) if ks < 16 else (v(160 + 8 * (ks - 16), 4), v(164 + 8 * (ks - 16), 4))
def w2_ops(k, ks):
    ops = []
    if E('NOW2', 0): return ops
    off = (ks & 3) * 1024
    ops.append(lambda: k.vm('global_load_dwordx4 %s, v2, s[32:33] offset:%d%s' % (w2reg(ks)[0], off, W_SC)))
    ops.append(lambda: k.vm('global_load_dwordx4 %s, v%d, s[32:33] offset:%d%s' % (w2reg(ks)[1], k.w2v, off, W_SC)))
    if (ks & 3) == 3 and ks < 27: ops.append(lambda: adv(k, 32, 35))
    return ops

def sync_issue(k, name, *loads):
    k('s_cmp_lg_u32 s50, %d' % SYNCW)
    k('s_cbranch_scc1 L_%s_i' % name)
    for l in loads: raw(k, l)
    k('L_%s_i:' % name)
    k.__dict__.setdefault('pollmark', {})[name] = k.nvm

def sync_check(k, name, loads, check, extra=0):
    k('s_cmp_lg_u32 s50, %d' % SYNCW)
    k('s_cbranch_scc1 L_%s_w' % name)
    k('s_mov_b32 s80, 0')
    k('s_waitcnt vmcnt(%d)' % min(63, k.nvm - k.pollmark[name] + extra))
    k('L_%s_p:' % name)
    for c in check: k(c)
    retry_tail(k, name, list(loads) + ['s_waitcnt vmcnt(0)'], 1)

L_RD = 0

def mlp_phase(k):
    k('v_add_u32 v126, 0x2000, v218')
    PL = lambda r: 'global_load_dwordx4 v[72:75], v%d, s[14:15]%s' % (r, SC)
    k('s_lshl_b32 s8, s3, 2')
    k('s_lshr_b32 s9, s4, 3')
    k('s_add_u32 s8, s8, s9')
    k('s_and_b32 s9, s4, 7')
    k('v_add_u32 v113, 114688, v2')
    k('s_mul_i32 s51, s50, %d' % (28 * 1024))
    if ROT:
        k('s_lshr_b32 s35, s4, 3')
        k('s_lshl_b32 s35, s35, 1')
        k('s_add_u32 s35, s35, s9')
        k('s_cmp_ge_u32 s35, 7')
        k('s_cselect_b32 s60, 7, 0')
        k('s_sub_u32 s35, s35, s60')
        k('s_mov_b32 s33, s35')
        k('s_movk_i32 s32, 4096')
        k('s_lshl_b32 s60, s35, 12')
        k('s_add_u32 s51, s51, s60')
    k.w2v = 113
    k('s_mul_i32 s60, s8, 114688')
    k('s_add_u32 s60, s60, s51')
    ws_ptr(k, 22, WS_HID, 60)
    tr_addr32(k, 4, 1, 8, 9, 6, 8)
    k('v_add_u32 v5, 0x10000, v4')
    k('v_and_b32 v6, 31, v1')
    k('v_lshlrev_b32 v6, 3, v6')
    k('s_mul_i32 s62, s5, %d' % (2 * 114688))
    k('s_lshl_b32 s63, s6, 11')
    k('s_add_u32 s62, s62, s63')
    ws_ptr(k, 68, WS_HID, 62)
    k('s_lshl_b32 s62, s5, 9')
    add_ptr(k, 70, 14, 62)
    k('v_bfe_u32 v16, v1, 4, 1')
    k('v_xor_b32 v16, 1, v16')
    k('v_lshlrev_b32 v16, 10, v16')
    k('v_lshrrev_b32 v17, 5, v1')
    k('v_lshl_add_u32 v16, v17, 4, v16')
    k('v_add_u32 v16, %d, v16' % L_GS)
    k('v_lshlrev_b32 v17, 2, v0')
    k('v_add_u32 v17, %d, v17' % L_GS)
    k('v_lshlrev_b32 v18, 3, v0')
    k('v_add_u32 v18, %d, v18' % (L_GS + 2048))
    k('v_lshrrev_b32 v119, 5, v1')
    k('v_and_b32 v118, 31, v1')
    k('v_lshlrev_b32 v116, 8, v119')
    k('v_lshl_add_u32 v116, v118, 1, v116')
    k('v_lshlrev_b32 v117, 4, v119')
    k('v_lshl_add_u32 v118, v118, 10, v117')
    k('s_lshl_b32 s62, s9, 2')
    k('s_add_u32 s62, s62, s50')
    k('s_lshl_b32 s63, s8, 15')
    k('s_lshl_b32 s60, s62, 10')
    k('s_add_u32 s60, s60, s63')
    ws_ptr(k, 20, WS_X1T, 60)
    k('s_lshl_b32 s60, s62, 6')
    k('s_add_u32 s60, s60, %d' % (L_GS + 2048))
    k('v_add_u32 v117, s60, v117')
    k('s_lshl_b32 s60, s62, 5')
    k('s_add_u32 s60, s60, s63')
    add_ptr(k, 24, P_OUT, 60)
    k('s_lshl_b32 s60, s50, 13')
    k('v_add_u32 v120, s60, v2')
    k('s_lshl_b32 s60, s50, 11')
    k('v_add_u32 v121, s60, v2')
    k('s_lshr_b32 s60, s8, 1')
    k('s_lshl_b32 s60, s60, 6')
    k('s_add_u32 s60, s60, 0x%x' % O_F3)
    k('v_min_u32 v122, 13, v1')
    k('v_lshl_add_u32 v122, v122, 2, s60')
    k('s_lshl_b32 s10, s5, 6')
    k('s_lshl_b32 s61, s7, 2')
    k('s_add_u32 s10, s10, s61')
    k('s_mov_b32 s80, 0')
    k.wait(vm=k.tfin)
    k('L_fin_p:')
    k('v_cmp_ne_u32 vcc, s81, v167')
    retry_tail(k, 'fin', [k.FL, 's_waitcnt vmcnt(0)'])
    k('v_lshlrev_b32 v168, 16, v166')
    k('v_and_b32 v169, 0xffff0000, v166')
    k('v_mul_f32 v168, %s, v168' % f32(-math.log(2.0)))
    k('v_mul_f32 v169, %s, v169' % f32(-math.log(2.0)))
    k.ds('ds_write2st64_b32 v17, v164, v165 offset0:0 offset1:4')
    k.ds('ds_write_b64 v18, v[168:169]')
    C12POS = E('C12POS', 0)
    EARLYA = E('EARLYA', 0)
    def sigB(nm):
        k.wait(vm=k.tx1)
        k.barrier()
        signal(k, nm, O_F2 + 0x2000, 19, 20)
        k.stamp(11)
    k.wait_all(vm=False)
    if not EARLYA: sigB('f2b')
    xq = []
    w2q = k.w2q
    w2done = k.w2n0 - len(w2q)
    w2q0 = w2q if not C12POS else []
    def c12_block():
        gt = [None] * 32
        for s_ in range(8): gt[s_] = k.ds('ds_read_b128 %s, v16 offset:%d' % (v(80 + 4 * (s_ % 8), 4), 32 * s_))
        for s_ in range(32):
            if C12POS and s_ == E('PA_AT', 8): sync_issue(k, 'f2a', *k.PA)
            k.wait(ds=gt[s_], vm=k.tw1[s_])
            k('v_mfma_f32_32x32x16_bf16 v[128:143], %s, %s, %s' % (a(4 * s_, 4), v(80 + 4 * (s_ % 8), 4), '0' if s_ == 0 else 'v[128:143]'))
            if EARLYA and s_ == E('SIGB_AT', 6): sigB('f2b')
            if xq: xq.pop(0)()
            elif w2q0: w2q0.pop(0)()
            if s_ >= 1 and s_ + 7 < 32: gt[s_ + 7] = k.ds('ds_read_b128 %s, v16 offset:%d' % (v(80 + 4 * ((s_ + 7) % 8), 4), 32 * (s_ + 7)))
        k.stamp(8)
    if C12POS: c12_block()
    sync_check(k, 'f2a', k.PA, chk_tags([72, 73, 74, 75], 114), extra=0 if (C12POS or EARLYA) else 1)
    k.barrier()
    k.stamp(12); k.stamp2(1)
    ctok = {}
    def chunk_ops(ps, c):
        ops = [lambda: k('s_add_u32 m0, s56, %d' % (ps * 65536 + c * 8192))]
        def ld(i): ctok[ps, c] = k.vm('global_load_lds_dwordx4 v2, s[28:29] offset:%d%s' % (i * 1024, LD_SC))
        for i in range(4): ops.append(lambda i=i: ld(i))
        if c < 3: ops.append(lambda: k('s_add_u32 s28, s28, 8192\ns_addc_u32 s29, s29, 0'))
        elif ps == 0: ops.append(lambda: k('s_add_u32 s28, s28, %d\ns_addc_u32 s29, s29, 0' % (0x100000 - 3 * 8192)))
        return ops
    k('s_cmp_ge_u32 s4, 28')
    k('s_cbranch_scc1 L_st_a')
    for c in range(4): xq.extend(chunk_ops(0, c))
    for _ in range(len(xq) if C12POS else E('XPRE', 5)): xq.pop(0)()
    k('s_branch L_st_b')
    k('L_st_a:')
    k('s_sub_u32 s11, s4, 28')
    k('s_lshl_b32 s60, s3, 2')
    k('s_add_u32 s11, s11, s60')
    k('s_lshl_b32 s60, s11, 15')
    k('s_lshl_b32 s61, s50, 13')
    k('s_add_u32 s60, s60, s61')
    ws_ptr(k, 28, WS_X1T, 60)
    k('v_add_u32 v7, 0x1000, v2')
    STL = ['global_load_dwordx4 %s, v%d, s[28:29] offset:%d%s' % (v(80 + 4 * i, 4), 2 if i < 4 else 7, (i & 3) * 1024, LD_SC) for i in range(8)]
    for x in STL: raw(k, x)
    if EARLYA:
        k('s_waitcnt vmcnt(8)')
        k.barrier()
        signal(k, 'f2bs', O_F2 + 0x2000, 19, 20)
    k('s_branch L_stats')
    k('L_st_b:')
    if not C12POS: c12_block()
    fix = ['v_mov_b32 v%d, v%d' % (144 + r, 128 + r) for r in range(16)]
    fix += ['v_permlane16_swap_b32 v%d, v%d' % (128 + r, 144 + r) for r in range(16)]
    fix += ['v_mul_f32 v%d, %s, v%d' % (144 + r, f32(-LOG2E), 144 + r) for r in range(16)]
    ACC = 16
    for _ in range(E('W2E', 12) if C12POS else 0):
        if w2q: w2q.pop(0)()
    SL = lambda ps: ['global_load_dwordx2 %s, v6, s[70:71] offset:%d%s' % (v(8 + 2 * u, 2), 256 * u, SC) for u in range(2)]
    htok = {}
    def hload(ps, s_):
        htok[ps, s_] = k.vm('global_load_dwordx4 %s, v2, s[22:23] offset:%d%s' % (a(4 * s_, 4), (s_ & 3) * 1024, LD_SC))
        if (s_ & 3) == 3:
            if s_ < 27: adv(k, 22, 33)
            elif ps == 0:
                if ROT: adv(k, 22, 33); k('s_add_u32 s22, s22, %d\ns_addc_u32 s23, s23, 0' % (32 * 114688))
                else: k('s_add_u32 s22, s22, %d\ns_addc_u32 s23, s23, 0' % (32 * 114688 - 6 * 4096))
    k.hload, k.htok = hload, htok
    F3L = lambda ps: 'global_load_dword v72, v122, s[14:15] offset:%d%s' % (1024 * ps, SC)
    W2D = E('W2D', 2)
    lstA = [None]
    for ps in range(2):
        def breg(s_, u): return 48 + 8 * (s_ % 3) + 4 * u
        rtok = {}
        def rd(s_, u):
            off = u * 32768 + s_ * 1024
            k.ds('ds_read_b64_tr_b16 %s, v%d offset:%d' % (v(breg(s_, u), 2), 4 + ps, off))
            rtok[s_, u] = k.ds('ds_read_b64_tr_b16 %s, v%d offset:%d' % (v(breg(s_, u) + 2, 2), 4 + ps, off + 256))
        k.stamp2(2 + 5 * ps)
        k.wait(vm=ctok[ps, 0]); k.barrier()
        k.stamp2(3 + 5 * ps)
        for s_ in range(2):
            for u in range(2): rd(s_, u)
        pend = []
        gap = 0
        for s_ in range(32):
            if s_ % 8 == 6 and s_ < 30:
                c = s_ // 8 + 1
                if ps == 0 and c == E('F2B_AT', 2): sync_check(k, 'f2b', [PL(126)], chk_tags([72, 73, 74, 75], 80))
                if ps == 1 and c == E('F3A_SIG', 2): k.wait(vm=lstA[0])
                k.wait(vm=ctok[ps, c]); k.barrier()
                if ps == 0 and c == E('F2B_AT', 2):
                    for c2 in range(4): pend += chunk_ops(1, c2)
                if ps == 1 and c == E('F3A_SIG', 2): signal(k, 'f3a', O_F3, 73, 74, nrep=1, sidx=10)
            if ps == 0 and s_ == 8 * E('F2B_AT', 2) - 2 - E('POLLD', 12): sync_issue(k, 'f2b', PL(126))
            if s_ == 16: k.stamp2(4 + 5 * ps)
            if s_ == 22:
                def sl(x): ctok['st'] = k.vm(x)
                for x in SL(ps): pend.append(lambda x=x: sl(x))
            for u in range(2):
                k.wait(ds=rtok[s_, u])
                k('v_mfma_f32_32x32x16_bf16 %s, %s, %s, %s' % (v(ACC + 16 * u, 16), a(4 * s_, 4), v(breg(s_, u), 4), '0' if s_ == 0 else v(ACC + 16 * u, 16)))
                if s_ + 2 < 32: rd(s_ + 2, u)
                if fix and s_ >= 2:
                    for _ in range(2): k(fix.pop(0))
                if pend: pend.pop(0)()
                elif w2q and gap % W2D == 0: w2q.pop(0)()
                gap += 1
        while pend: pend.pop(0)()
        k.stamp(13 if ps == 0 else 14); k.stamp2(5 + 5 * ps)
        k.wait(vm=ctok['st'])
        k('s_mov_b32 s80, 0')
        k('L_chk%d_p:' % ps)
        k('v_min_u32 v80, v9, v11')
        k('v_cmp_eq_u32 vcc, 0, v80')
        retry_tail(k, 'chk%d' % ps, SL(ps) + ['s_waitcnt vmcnt(0)'], 2)
        if ps == 0: k('s_add_u32 s70, s70, 0x2000\ns_addc_u32 s71, s71, 0')
        k('s_nop 7')
        k.stamp2(6 + 5 * ps)
        for u in range(2):
            b = 8 + 2 * u
            A_ = ACC + 16 * u
            for p in range(8):
                x = v(A_ + 2 * p, 2)
                k('v_pk_fma_f32 %s, %s, %s, %s op_sel_hi:[1,0,1] neg_lo:[0,1,0] neg_hi:[0,1,0]' % (x, v(128 + 2 * p, 2), v(b, 2), x))
            for p in range(8):
                x = v(A_ + 2 * p, 2)
                k('v_pk_fma_f32 %s, %s, %s, %s op_sel:[1,0,0] op_sel_hi:[1,1,1]' % (x, v(b, 2), x, v(144 + 2 * p, 2)))
            if ps == 1 and u == E('F3A_U', 0): sync_issue(k, 'f3a', F3L(0))
            W2EP = E('W2EP', 4)
            def tick(r):
                if w2q and W2EP and r % W2EP == W2EP - 1 and (u == 0 or E('W2EU', 0)): w2q.pop(0)()
            for r in range(16):
                k('v_exp_f32 v%d, v%d' % (80 + r, A_ + r)); tick(r)
            for p in range(8): k('v_pk_add_f32 %s, %s, 1.0 op_sel_hi:[1,0]' % (v(80 + 2 * p, 2), v(80 + 2 * p, 2)))
            for r in range(16):
                k('v_rcp_f32 v%d, v%d' % (80 + r, 80 + r)); tick(r)
            for p in range(8): k('v_pk_mul_f32 %s, %s, %s' % (v(A_ + 2 * p, 2), v(A_ + 2 * p, 2), v(80 + 2 * p, 2)))
            O = 96 + 8 * u
            for p in range(8): k('v_cvt_pk_bf16_f32 v%d, v%d, v%d' % (O + p, A_ + 2 * p, A_ + 2 * p + 1))
            k.vm('global_store_dwordx4 v%d, %s, s[68:69]%s' % (2 if u == 0 else 113, v(O, 4), SC))
            lst = k.vm('global_store_dwordx4 v%d, %s, s[68:69] offset:1024%s' % (2 if u == 0 else 113, v(O + 4, 4), SC))
        if ps == 0:
            lstA[0] = lst
            k('s_add_u32 s68, s68, %d\ns_addc_u32 s69, s69, 0' % (32 * 114688))
    print('w2 leftover ops', len(w2q))
    while w2q: w2q.pop(0)()
    sync_check(k, 'f3a', [F3L(0)], ['v_cmp_ne_u32 vcc, s81, v72'])
    k.barrier()
    k('s_add_u32 s10, s10, 1024')
    k('s_branch L_join')
    k('L_stats:')
    k.reset_counters()
    k('s_movk_i32 s10, 2048')
    k('s_lshl_b32 s62, s11, 8')
    add_ptr(k, 70, 14, 62)
    k('s_mov_b32 s62, 0xffff0000')
    k('v_lshlrev_b32 v3, 6, v0')
    k('v_bfe_u32 v4, v1, 3, 2')
    k('v_lshlrev_b32 v4, 6, v4')
    k('v_and_b32 v5, 7, v1')
    k('v_lshl_add_u32 v4, v5, 2, v4')
    k('v_lshrrev_b32 v5, 5, v1')
    k('v_lshl_add_u32 v4, v5, 13, v4')
    for ps in range(2):
        if ps == 1:
            poll(k, 'sf2b', [PL(126)], chk_tags([72, 73, 74, 75], 80))
            k('s_add_u32 s28, s28, 0x100000\ns_addc_u32 s29, s29, 0')
            k('s_add_u32 s70, s70, 0x2000\ns_addc_u32 s71, s71, 0')
        if ps == 0:
            xt = list(range(1, 9)); k.nvm = 8
        else: xt = [k.vm(x) for x in STL]
        for r in range(16): k('v_mov_b32 v%d, 0' % (16 + r))
        for i in range(8):
            k.wait(vm=xt[i])
            for j in range(4):
                r = 80 + 4 * i + j
                tt = 32 + 2 * (j & 1)
                k('v_lshlrev_b32 v%d, 16, v%d' % (tt, r))
                k('v_and_b32 v%d, s62, v%d' % (tt + 1, r))
                k('v_pk_add_f32 %s, %s, %s' % (v(16 + 2 * j, 2), v(16 + 2 * j, 2), v(tt, 2)))
                k('v_pk_fma_f32 %s, %s, %s, %s' % (v(24 + 2 * j, 2), v(tt, 2), v(tt, 2), v(24 + 2 * j, 2)))
        for pat in ('row_ror:4', 'row_ror:8'):
            for r in range(16): k('v_add_f32_dpp v%d, v%d, v%d %s row_mask:0xf bank_mask:0xf' % (16 + r, 16 + r, 16 + r, pat))
        for i in range(4): k.ds('ds_write_b128 v3, %s offset:%d' % (v(16 + 4 * i, 4), 16384 * ps + 16 * i))
        k.wait_all(vm=False)
        k.barrier()
        k('s_cmp_lg_u32 s50, 0')
        k('s_cbranch_scc1 L_st%d' % ps)
        for q in range(8):
            raw(k, 'ds_read_b32 v%d, v4 offset:%d' % (16 + 2 * q, 16384 * ps + 1024 * q))
            raw(k, 'ds_read_b32 v%d, v4 offset:%d' % (17 + 2 * q, 16384 * ps + 1024 * q + 32))
        k('s_waitcnt lgkmcnt(0)')
        for q in range(1, 8): k('v_pk_add_f32 v[16:17], v[16:17], %s' % v(16 + 2 * q, 2))
        k('v_mov_b64 v[18:19], v[16:17]')
        k('v_permlane32_swap_b32 v16, v18')
        k('v_permlane32_swap_b32 v17, v19')
        k('v_pk_add_f32 v[16:17], v[16:17], v[18:19]')
        k('v_mul_f32 v16, %s, v16' % f32(1.0 / 512))
        k('v_mul_f32 v17, %s, v17' % f32(1.0 / 512))
        k('v_fma_f32 v17, -v16, v16, v17')
        k('v_max_f32 v17, 0, v17')
        k('v_add_f32 v17, %s, v17' % f32(1e-5))
        k('v_rsq_f32 v17, v17')
        k('v_mul_f32 v17, %s, v17' % f32(-LOG2E))
        raw(k, 'global_store_dwordx2 v6, v[16:17], s[70:71]' + SC)
        k('L_st%d:' % ps)
    sq = []
    for ks in range(28): sq += w2_ops(k, ks)
    for op in sq[w2done:]: op()
    poll(k, 'sf3a', [F3L(0)], ['v_cmp_ne_u32 vcc, s81, v72'])
    k('L_join:')
    k.stamp(1); k.stamp2(12); k.stamp4(1)
    k.reset_counters()
    htok.clear()
    HA0 = E('HA0', 16)
    for s_ in range(HA0): hload(0, s_)
    for q in range(2): k.ds('ds_read_b128 %s, v117 offset:%d' % (v(96 + 4 * q, 4), 32 * q))
    for r in range(16): k('v_mov_b32 v%d, 0' % (80 + r))
    k('v_add_u32 v115, 0x100000, v116')
    k('v_add_u32 v119, 0x100000, v118')
    k.stamp4(2)
    k('s_waitcnt vmcnt(%d)' % HA0)
    k.barrier()
    signal(k, 'f3b', O_F3, 73, 74, nrep=1, sidx=10)
    aq = [lambda s_=s_: hload(0, s_) for s_ in range(HA0, 28)]
    trs = {}
    def rl(ps, q, r): trs[ps] = k.vm('global_load_short_d16_hi v%d, v%d, s[20:21] offset:%d%s' % (80 + 8 * ps + 4 * q + r, 116 - ps, (8 * q + r) * 64, LD_SC))
    for q in range(2):
        for r in range(4): aq.append(lambda q=q, r=r: rl(0, q, r))
    bq = [lambda q=q, r=r: rl(1, q, r) for q in range(2) for r in range(4)]
    FB = E('F3B_AT', 24); nh = [0]
    for ps in range(2):
        for s_ in range(28):
            k.wait(vm=htok[ps, s_])
            if s_ == 0: k.stamp2(13 + ps)
            if s_ in (0, 8, 16, 24): k.stamp4(3 + 6 * ps + s_ // 8)
            if ps == 0 and s_ == max(0, FB - E('F3B_D', 8)): sync_issue(k, 'f3b', F3L(1))
            if ps == 0 and s_ == FB:
                sync_check(k, 'f3b', [F3L(1)], ['v_cmp_ne_u32 vcc, s81, v72'])
                k.barrier()
                k.stamp(5); k.stamp4(7)
            for j in range(2):
                k('v_mfma_f32_32x32x16_bf16 %s, %s, %s, %s' % (v(ACC + 16 * j, 16), w2reg(s_)[j], a(4 * s_, 4), '0' if s_ == 0 else v(ACC + 16 * j, 16)))
                if ps == 0 and aq and (j == 0 or E('HAJ', 0)): aq.pop(0)()
                if ps == 1 and nh[0] < 28 and (j == 0 or E('HBJ', 0)): hload(1, nh[0]); nh[0] += 1
                elif ps == 1 and bq and s_ >= 10 and j == 0: bq.pop(0)()
                if ps == 0 and s_ >= FB:
                    for _ in range(E('HBR', 1)):
                        if nh[0] < s_ + j: hload(1, nh[0]); nh[0] += 1
        k.stamp4(8 + 5 * ps)
        for q in range(8):
            k.ds('ds_write_b128 v120, %s offset:%d' % (v(ACC + 4 * q, 4), 32768 * ps + q * 1024))
            if ps == 0 and FB < 28 and q % 2 == 1 and nh[0] < 28: hload(1, nh[0]); nh[0] += 1
        if ps == 0 and FB >= 28: sync_check(k, 'f3b', [F3L(1)], ['v_cmp_ne_u32 vcc, s81, v72'])
        k.wait_all(vm=False)
        k.barrier()
        if ps == 0 and FB >= 28:
            k.stamp(5)
            for _ in range(8): hload(1, nh[0]); nh[0] += 1
        if ps == 1: k.stamp4(14)
        rt_ = []
        for w_ in range(4):
            for q in range(2): t = k.ds('ds_read_b128 %s, v121 offset:%d' % (v(48 + 8 * w_ + 4 * q, 4), 32768 * ps + w_ * 8192 + q * 1024))
            rt_.append(t)
        while ps == 0 and nh[0] < E('HB1', 20): hload(1, nh[0]); nh[0] += 1
        k.wait(ds=rt_[1])
        for p in range(4): k('v_pk_add_f32 %s, %s, %s' % (v(48 + 2 * p, 2), v(48 + 2 * p, 2), v(56 + 2 * p, 2)))
        k.wait(ds=rt_[3])
        for p in range(4): k('v_pk_add_f32 %s, %s, %s' % (v(64 + 2 * p, 2), v(64 + 2 * p, 2), v(72 + 2 * p, 2)))
        k.wait(vm=trs[ps])
        for p in range(4):
            k('v_pk_add_f32 %s, %s, %s' % (v(48 + 2 * p, 2), v(48 + 2 * p, 2), v(64 + 2 * p, 2)))
            k('v_pk_fma_f32 %s, %s, %s, %s' % (v(48 + 2 * p, 2), v(48 + 2 * p, 2), v(96 + 2 * p, 2), v(80 + 8 * ps + 2 * p, 2)))
            k('v_cvt_pk_bf16_f32 v%d, v%d, v%d' % (104 + 4 * ps + p, 48 + 2 * p, 49 + 2 * p))
        b = 104 + 4 * ps
        k('v_permlane32_swap_b32 v%d, v%d' % (b, b + 2))
        k('v_permlane32_swap_b32 v%d, v%d' % (b + 1, b + 3))
        k.vm('global_store_dwordx4 v%d, %s, s[24:25]%s' % (118 + ps, v(b, 4), os.environ.get('OUT_SC%d' % ps, '')))

def build_single(path):
    k = Kern(NAME + '_kernel')
    phase0(k); conv_phase(k); mlp_phase(k)
    k.end()
    k('L_end:')
    k('s_endpgm')
    launch, (vg_, sg_, ac) = 'grid=(256,1,1) block=(256,1,1) lds=%d' % LDS_TOTAL, (512, 84, 256)
    out = [HEADER.rstrip(), '; @launch ' + launch, '.amdgcn_target "amdgcn-amd-amdhsa--gfx950"', k.text(vg_, sg_, ac), '.text\nL_text_end:\n    s_endpgm']
    print(k.name, k.stats)
    open(path, 'w').write('\n'.join(out) + '\n')

if __name__ == '__main__':
    build_single(sys.argv[1] if len(sys.argv) > 1 else ('diag.s' if DIAG else 'cdna_kernels/%s.s' % NAME))
```

```python
import re, os
DIAG = int(os.environ.get('DIAG', '0'))
DIAGSET = int(os.environ.get('DIAGSET', '1'))

REG_RE = re.compile(r'^(-|abs\()?\|?([vas])(?:(\d+)|\[(\d+):(\d+)\])\|?\)?$')
TRANS = ('v_exp_f32', 'v_log_f32', 'v_rcp_f32', 'v_rsq_f32', 'v_sqrt_f32', 'v_sin_f32', 'v_cos_f32')

def regs_of(tok):
    tok = tok.strip()
    if tok in ('vcc',): return {('s', 106), ('s', 107)}
    if tok == 'vcc_lo': return {('s', 106)}
    if tok == 'exec': return {('s', 126), ('s', 127)}
    if tok == 'm0': return {('s', 124)}
    m = REG_RE.match(tok)
    if not m: return set()
    f = m.group(2)
    if m.group(3) is not None: return {(f, int(m.group(3)))}
    return {(f, i) for i in range(int(m.group(4)), int(m.group(5)) + 1)}

def split_ops(s):
    ops, depth, cur = [], 0, ''
    for ch in s:
        if ch in '[(': depth += 1
        if ch in '])': depth -= 1
        if ch == ',' and depth == 0:
            ops.append(cur.strip()); cur = ''
        else: cur += ch
    if cur.strip(): ops.append(cur.strip())
    return ops

class Ins:
    def __init__(self, text):
        self.text = text
        t = text.split(';')[0].strip()
        parts = t.split(None, 1)
        self.mn = parts[0]
        rest = parts[1] if len(parts) > 1 else ''
        ops = split_ops(rest)
        mods = ''
        if ops:
            lp = ops[-1].split(None, 1)
            if len(lp) > 1 and not lp[0].endswith(':'):
                ops[-1] = lp[0]; mods = lp[1]
        self.ops, self.mods = ops, mods
        mn = self.mn
        self.mfma = mn.startswith('v_mfma')
        self.valu = mn.startswith('v_') and not self.mfma
        self.trans = any(mn.startswith(x) for x in TRANS)
        self.dot = mn.startswith('v_dot')
        self.vmem = mn.startswith('buffer_') or mn.startswith('global_')
        self.ds = mn.startswith('ds_')
        self.salu = mn.startswith('s_')
        self.dpp = '_dpp' in mn or 'quad_perm' in mods or 'row_' in mods
        self.perml = mn.startswith('v_permlane')
        self.rdlane = mn.startswith('v_readfirstlane') or mn.startswith('v_readlane')
        self.ldsdma = self.vmem and (' lds' in (' ' + mods) or '_lds_' in mn)
        self.passes = 0
        R = [regs_of(o) for o in ops]
        w, r = set(), set()
        self.srcc = set(); self.ab = set()
        if self.mfma:
            self.passes = 8 if '32x32x16' in mn else 4 if '16x16x32' in mn else None
            assert self.passes, mn
            w = R[0]; self.ab = R[1] | R[2]; self.srcc = R[3]; r = self.ab | self.srcc
        elif self.valu:
            if self.perml and 'swap' in mn:
                w = R[0] | R[1]; r = R[0] | R[1]
            elif mn.startswith('v_cmp'):
                w = R[0]; r = set().union(*R[1:])
            elif mn.startswith(('v_add_co', 'v_sub_co', 'v_addc_co', 'v_subb_co', 'v_subrev_co')):
                w = R[0] | R[1]; r = set().union(*R[2:])
            else:
                w = R[0]; r = set().union(*R[1:]) if len(R) > 1 else set()
                if mn.startswith(('v_fmac', 'v_dot2c', 'v_pk_fmac', 'v_writelane')) or self.dpp or 'sdwa' in mn: r = r | R[0]
        elif self.ds:
            if mn.startswith(('ds_read', 'ds_bpermute', 'ds_permute', 'ds_swizzle')):
                w = R[0]; r = set().union(*R[1:])
            else:
                r = set().union(*R)
        elif self.vmem:
            if 'load' in mn and not self.ldsdma:
                w = R[0]; r = set().union(*R[1:])
            else:
                r = set().union(*R) if R else set()
            if self.ldsdma: r = r | {('s', 124)}
        elif self.salu:
            if mn.startswith(('s_cmp', 's_cbranch', 's_branch', 's_waitcnt', 's_barrier', 's_nop', 's_endpgm', 's_setprio', 's_sleep', 's_bitcmp')):
                r = set().union(*R) if R else set()
            else:
                w = R[0] if R else set(); r = set().union(*R[1:]) if len(R) > 1 else set()
                if 'saveexec' in mn: w = w | regs_of('exec')
        self.w, self.r = w, r
        if mn.startswith('v_pk_') and 'f32' in mn:
            m_ = re.search(r'op_sel:\[(\d),(\d)', mods)
            assert not (m_ and m_.group(2) == '1' and ops[2].startswith('v')), 'erratum: op_sel[1]=1 on VGPR src1: ' + text
        self.widestore = self.vmem and 'store' in mn and ('x4' in mn or 'x3' in mn)
        self.storedata = set()
        if self.widestore:
            self.storedata = R[0] if mn.startswith('buffer_') else R[1]
        self.states = 1
        if mn == 's_nop': self.states = int(ops[0], 0) + 1

def vg(s): return {x for x in s if x[0] in 'va'}
def sg(s): return {x for x in s if x[0] == 's'}

def need(p, c):
    n = 0
    pw, cw, cr = p.w, c.w, c.r
    if p.valu:
        if c.mfma and vg(pw) & cr: n = max(n, 2)
        if p.trans and (vg(pw) & cr) and not c.trans: n = max(n, 1)
        if sg(pw):
            if (c.valu or c.mfma) and sg(pw) & cr: n = max(n, 4 if c.rdlane else 2)
            if c.vmem and sg(pw) & cr: n = max(n, 5)
            if c.salu and sg(pw) & cr: n = max(n, 1)
        if c.rdlane and vg(pw) & cr: n = max(n, 1)
        if (c.dpp or c.perml) and vg(pw) & cr: n = max(n, 2)
        if p.dot and (vg(pw) & (cr | cw)):
            same = c.mn == p.mn
            if same:
                others = set()
                Rr = [regs_of(o) for o in c.ops]
                others = Rr[1] | Rr[2]
                if vg(pw) & others: n = max(n, 3)
            else: n = max(n, 3)
        if 'sdwa' in p.mn and c.valu and vg(pw) & (cr | cw): n = max(n, 1)
    if p.mfma:
        big = {4: 8, 8: 12}[p.passes]
        if c.mfma:
            if pw & c.ab: n = max(n, big)
            if pw & c.srcc:
                if not (c.srcc == pw and c.passes == p.passes): n = max(n, p.passes + 2)
            elif pw & cw and not (cw == pw and c.passes == p.passes): n = max(n, p.passes + 2)
        elif c.valu or c.vmem or c.ds:
            if pw & (cr | cw): n = max(n, big)
        if c.valu and p.srcc & cw: n = max(n, p.passes - 1)
        if (c.vmem or c.ds) and p.srcc & cw: n = max(n, p.passes - 1)
    if p.salu and ('s', 124) in pw and (c.ldsdma): n = max(n, 1)
    if p.widestore and p.storedata & cw: n = max(n, 2)
    return n

def fix_hazards(lines):
    out = []
    hist = []
    for ln in lines:
        s = ln.split(';')[0].strip()
        if not s or s.startswith('.') :
            out.append(ln); continue
        if s.endswith(':'):
            out.append(ln); continue
        c = Ins(ln)
        dist = 0; pad = 0
        for p in reversed(hist):
            nd = need(p, c)
            if nd > dist: pad = max(pad, nd - dist)
            dist += p.states
            if dist > 20: break
        while pad > 0:
            k = min(pad, 16)
            nop = Ins('s_nop %d' % (k - 1)); out.append('    s_nop %d' % (k - 1)); hist.append(nop); pad -= k
        out.append(ln); hist.append(c)
        if c.mn in ('s_endpgm', 's_branch'): hist = []
        if len(hist) > 40: hist = hist[-30:]
    return out

class Kern:
    def __init__(self, name):
        self.name = name; self.lines = []; self.kidx = int(name[1]) - 1 if name[1].isdigit() else 0
        self.nvm = 0; self.nds = 0; self.vm_done = 0; self.ds_done = 0
        if DIAG:
            for i in range(8): self.lines.append('    s_mov_b64 s[%d:%d], 0' % (84 + 2 * i, 85 + 2 * i))
            self.stamp(0)
        self.nvm = 0; self.nds = 0; self.vm_done = 0; self.ds_done = 0
    def __call__(self, s):
        for l in s.split('\n'):
            l = l.strip()
            if not l: continue
            if l.endswith(':') or l.startswith('.'): self.lines.append(l)
            else:
                mn = l.split()[0]
                assert not (mn.startswith('buffer_') or mn.startswith('global_') or mn.startswith('ds_')), 'use vm()/ds(): ' + l
                self.lines.append('    ' + l)
                h = self.__dict__.get('hook')
                if h and mn.startswith('v_') and not mn.startswith('v_mfma'):
                    h[2] += 1
                    if h[2] >= h[0]:
                        h[2] = 0; self.hook = None; h[1](); self.hook = h
    def stamp4(self, i):
        if DIAGSET == 4: self.stamp(i, True)
    def stamp3(self, i):
        if DIAGSET == 3: self.stamp(i, True)
    def stamp2(self, i):
        if DIAGSET == 2: self.stamp(i, True)
    def stamp(self, i, force=False):
        if DIAG and (force or DIAGSET == 1 or i in (0, 15)):
            self.lines.append('    s_memrealtime s[100:101]')
            self.lines.append('    s_waitcnt lgkmcnt(0)')
            self.lines.append('    s_mov_b32 s%d, s100' % (84 + i))
            self.ds_done = self.nds
    def end(self):
        if DIAG:
            L = self.lines
            L.append('    s_waitcnt vmcnt(0) lgkmcnt(0)')
            self.stamp(15)
            L.append('    s_mov_b64 exec, -1')
            if DIAG == 3:
                i = int(os.environ.get('DSTAMP', '15'))
                ref = os.environ.get('DREF', 's81')
                L.append('    s_sub_u32 s98, s%d, %s' % (84 + i, ref) if i >= 0 else '    s_sub_u32 s98, s81, s84')
                L.append('    s_lshl_b32 s98, s98, 1')
                L.append('    s_add_u32 s98, s98, s99')
                L.append('L_spin:')
                L.append('    s_memrealtime s[100:101]')
                L.append('    s_waitcnt lgkmcnt(0)')
                L.append('    s_sub_u32 s97, s98, s100')
                L.append('    s_cmp_gt_i32 s97, 0')
                L.append('    s_cbranch_scc1 L_spin')
                L.append('    s_endpgm')
                return
            if DIAG == 2:
                L.append('    s_mov_b64 exec, 1')
                L.append('    v_mov_b32 v1, 0')
                for n, i in enumerate([2, 4, 7, 9, 10, 11, 12, 13, 14, 1, 15]):
                    L.append('    s_sub_u32 s100, s%d, s81' % (84 + i))
                    L.append('    v_mov_b32 v2, s100')
                    L.append('    s_nop 1')
                    L.append('    global_atomic_umax v1, v2, s[46:47] offset:%d' % (4 * (n + 1)))
                    L.append('    s_nop 1')
                L.append('    s_endpgm')
                return
            L.append('    v_lshrrev_b32 v1, 6, v0')
            L.append('    v_lshl_add_u32 v1, s2, 3, v1')
            L.append('    v_lshlrev_b32 v1, 6, v1')
            L.append('    v_add_u32 v1, 0x%x, v1' % (0x4000000 + self.kidx * 0x100000))
            for i in range(16):
                L.append('    v_mov_b32 v2, s%d' % (84 + i))
                L.append('    s_nop 1')
                L.append('    global_store_dword v1, v2, s[48:49] offset:%d' % (4 * i))
                L.append('    s_nop 1')
        self.lines.append('    s_endpgm')
    def reset_counters(self):
        self.nvm = self.nds = self.vm_done = self.ds_done = 0
    def vm(self, s):
        self.lines.append('    ' + s); self.nvm += 1; return self.nvm
    def ds(self, s):
        self.lines.append('    ' + s); self.nds += 1; return self.nds
    def wait(self, vm=None, ds=None):
        parts = []
        if vm is not None and vm > self.vm_done:
            n = min(self.nvm - vm, 63); parts.append('vmcnt(%d)' % n); self.vm_done = self.nvm - n
        if ds is not None and ds > self.ds_done:
            n = min(self.nds - ds, 15); parts.append('lgkmcnt(%d)' % n); self.ds_done = self.nds - n
        if parts: self.lines.append('    s_waitcnt ' + ' '.join(parts))
    def wait_all(self, vm=True, ds=True):
        parts = []
        if vm: parts.append('vmcnt(0)'); self.vm_done = self.nvm
        if ds: parts.append('lgkmcnt(0)'); self.ds_done = self.nds
        self.lines.append('    s_waitcnt ' + ' '.join(parts))
    def smem_wait(self):
        self.lines.append('    s_waitcnt lgkmcnt(0)'); self.ds_done = self.nds
    def barrier(self):
        self.lines.append('    s_barrier')
    def text(self, vgpr, sgpr, accum):
        if DIAG: sgpr = 102
        body = fix_hazards(self.lines)
        if int(os.environ.get('ALIGN', '1')): body = align_pass(body)
        head = ['.text', '.globl %s' % self.name, '.p2align 8', '.type %s,@function' % self.name, '%s:' % self.name]
        desc = ['.section .rodata,"a"', '.p2align 6', '.amdhsa_kernel %s' % self.name,
                '  .amdhsa_next_free_vgpr %d' % vgpr, '  .amdhsa_next_free_sgpr %d' % sgpr, '  .amdhsa_accum_offset %d' % accum,
                '  .amdhsa_group_segment_fixed_size 0', '  .amdhsa_kernarg_size 136', '  .amdhsa_user_sgpr_count 2',
                '  .amdhsa_user_sgpr_kernarg_segment_ptr 1', '  .amdhsa_system_sgpr_workgroup_id_x 1', '.end_amdhsa_kernel']
        lastw = {}
        for ln in body:
            t_ = ln.split(';')[0].strip()
            if not t_ or t_.startswith('.') or t_.endswith(':'): continue
            i = Ins(ln)
            if i.vmem or i.mn.startswith('s_load'):
                for o in (i.ops if i.vmem else i.ops[1:2]):
                    m = re.match(r's\[(\d+):(\d+)\]$', o)
                    if m and int(m.group(1)) > 1:
                        lo, hi = int(m.group(1)), int(m.group(2))
                        whi, wlo = lastw.get(hi, '?'), lastw.get(lo, '?')
                        okh = whi.startswith(('s_addc_u32', 's_load', 's_getpc', 's_cselect', 's_mov'))
                        okl = wlo.startswith(('s_add_u32', 's_load', 's_getpc', 's_cselect', 's_mov'))
                        assert okh and okl, ('bad base', ln, wlo, whi)
            for f, n in i.w:
                if f == 's': lastw[n] = t_
        mv = ma = ms = -1
        for ln in body:
            s = ln.split(';')[0].strip()
            if not s or s.startswith('.') or s.endswith(':'): continue
            i = Ins(ln)
            for f, n in i.w | i.r:
                if f == 'v': mv = max(mv, n)
                elif f == 'a': ma = max(ma, n)
                elif n < 102: ms = max(ms, n)
        assert mv < accum, (self.name, mv, accum)
        assert accum + ma + 1 <= vgpr or ma < 0, (self.name, ma, accum, vgpr)
        assert mv < vgpr and ms < sgpr, (self.name, mv, ms)
        self.stats = (mv, ma, ms, len(body))
        return '\n'.join(head + body + desc)

def v(n, c=1): return 'v%d' % n if c == 1 else 'v[%d:%d]' % (n, n + c - 1)
def a(n, c=1): return 'a%d' % n if c == 1 else 'a[%d:%d]' % (n, n + c - 1)
def s(n, c=1): return 's%d' % n if c == 1 else 's[%d:%d]' % (n, n + c - 1)
import struct
def f32(x): return '0x%08x' % struct.unpack('<I', struct.pack('<f', x))[0]

import subprocess, tempfile
WIDEN = ('v_mov_b32', 'v_add_u32', 'v_sub_u32', 'v_and_b32', 'v_or_b32', 'v_xor_b32', 'v_lshlrev_b32', 'v_lshrrev_b32', 'v_add_f32', 'v_mul_f32',
         'v_max_f32', 'v_min_u32', 'v_exp_f32', 'v_rcp_f32', 'v_rsq_f32', 'v_cvt_f32_u32', 'v_fract_f32', 'v_sin_f32', 'v_cos_f32', 'v_mul_u32_u24',
         'v_fmac_f32', 'v_cndmask_b32', 'v_mov_b64', 'v_sub_f32')
def align_pass(lines, nopcost=4.0):
    src = '.amdgcn_target "amdgcn-amd-amdhsa--gfx950"\n.text\n' + '\n'.join(lines) + '\nL_text_end:\n s_endpgm\n'
    d = tempfile.mkdtemp()
    open(d + '/a.s', 'w').write(src)
    r = subprocess.run(['clang', '-x', 'assembler', '-target', 'amdgcn-amd-amdhsa', '-mcpu=gfx950', '-c', d + '/a.s', '-o', d + '/a.o'], capture_output=True, text=True)
    assert r.returncode == 0, r.stderr[:2000]
    o = subprocess.run(['llvm-objdump', '-d', '--mcpu=gfx950', d + '/a.o'], capture_output=True, text=True).stdout
    sizes = []
    for l in o.split('\n'):
        m = re.search(r'// [0-9A-F]{12}: ((?:[0-9A-F]{8} ?)+)', l)
        if m: sizes.append(4 * len(m.group(1).split()))
    idx = [i for i, l in enumerate(lines) if (lambda s_: s_ and not s_.startswith('.') and not s_.endswith(':'))(l.split(';')[0].strip())]
    assert len(sizes) == len(idx) + 1, (len(sizes), len(idx))
    n = len(idx)
    INF = 1e18
    cost = [[INF, INF] for _ in range(n + 1)]; back = [[None, None] for _ in range(n + 1)]
    cost[0][0] = 0
    for i in range(n):
        mn = lines[idx[i]].split()[0]
        sz = sizes[i]
        for p in (0, 1):
            c0 = cost[i][p]
            if c0 >= INF: continue
            opts = []
            for nop in (0, 1):
                q = p ^ nop; cn = c0 + nop * nopcost
                if sz == 4:
                    opts.append((q ^ 1, cn, nop, 0))
                    if mn in WIDEN: opts.append((q, cn + (1 if q else 0) + 0.01, nop, 1))
                else:
                    opts.append((q ^ ((sz // 4) & 1), cn + (1 if q else 0), nop, 0))
            for q2, c2, nop, wd in opts:
                if c2 < cost[i + 1][q2]: cost[i + 1][q2] = c2; back[i + 1][q2] = (p, nop, wd)
    p = 0 if cost[n][0] <= cost[n][1] else 1
    dec = [None] * n
    for i in range(n, 0, -1):
        pp, nop, wd = back[i][p]; dec[i - 1] = (nop, wd); p = pp
    out = []; j = 0
    for i, l in enumerate(lines):
        if j < n and idx[j] == i:
            nop, wd = dec[j]; j += 1
            if nop: out.append('    s_nop 0')
            if wd:
                mn = l.split()[0]; l = l.replace(mn, mn + '_e64', 1)
        out.append(l)
    print('align: cost before', sum(1 for i in range(n) if sizes[i] == 8 and (sum(sizes[:i]) & 4)) if n < 6000 else '?', 'after', min(cost[n]))
    return out
```

```python
import os
from gen import *
E = lambda n, d: int(os.environ.get(n, str(d)))
WS_XG = 0x000000
WS_ST1 = 0x800000
WS_MODG = 0x820000
WS_FIN = 0x860000
WS_W1P = 0x1800000
WS_X1S = 0xB00000
WS_SYNC = 0xF00000
O_F2, O_F3 = 0x8000, 0xC000
L_T = 65536
L_CM = 98304; L_SC = 114688
L_STN = 118784; L_STX = 118784 + 8448 + 128
L_CV = 0; CHS = 21120
O_K1 = 4160; O_H = 8320; O_RED = 12928
L_X = 42240
L_W1 = 79872
NW1 = 16
L_SJ = L_W1 + NW1 * 4096
L_GS = L_SJ
LDS_TOTAL = L_SJ + 16384
O_FP = 0x6000
XS = E('XS', 16384 + 384)
SC = ' sc1'
LD_SC = os.environ.get('LD_SC', ' sc1')
W_SC = os.environ.get('W_SC', ' sc1')
TMO = 0x80000
SYNCW = 1
KSPLIT = E('KSPLIT', 1)
EP = E('EP', 0)

def raw(k, s_): k.lines.append('    ' + s_)

def retry_tail(k, name, loads, sleep=0):
    k('s_nop 0')
    k('s_cbranch_vccz L_%s_w' % name)
    k('s_add_u32 s80, s80, 1')
    k('s_cmp_gt_u32 s80, 0x%x' % TMO)
    k('s_cbranch_scc1 L_%s_w' % name)
    if sleep: k('s_sleep %d' % sleep)
    for l in loads: raw(k, l)
    k('s_branch L_%s_p' % name)
    k('L_%s_w:' % name)

def poll(k, name, loads, check):
    k('s_cmp_lg_u32 s50, %d' % SYNCW)
    k('s_cbranch_scc1 L_%s_w' % name)
    k('s_mov_b32 s80, 0')
    for l in loads: raw(k, l)
    k('L_%s_p:' % name)
    k('s_waitcnt vmcnt(0)')
    for c in check: k(c)
    retry_tail(k, name, loads, 1)
    k.barrier()

def signal(k, name, off, va, vd, nrep=8, sidx=None):
    k('s_cmp_lg_u32 s50, %d' % SYNCW)
    k('s_cbranch_scc1 L_%s_s' % name)
    if sidx is None:
        k('s_lshl_b32 s80, s2, 2')
        k('s_add_u32 s80, s80, 0x%x' % off)
    else:
        k('s_add_u32 s80, s%d, 0x%x' % (sidx, off))
    k('v_lshl_add_u32 v%d, v1, 10, s80' % va)
    k('v_mov_b32 v%d, s81' % vd)
    k('s_mov_b64 exec, %d' % ((1 << nrep) - 1))
    raw(k, 'global_store_dword v%d, v%d, s[14:15]%s' % (va, vd, SC))
    k('s_mov_b64 exec, -1')
    k('L_%s_s:' % name)

def chk_tags(regs, t):
    o = ['v_xor_b32 v%d, s81, v%d' % (t, regs[0])]
    for r in regs[1:]:
        o += ['v_xor_b32 v%d, s81, v%d' % (t + 1, r), 'v_or_b32 v%d, v%d, v%d' % (t, t, t + 1)]
    return o + ['v_cmp_ne_u32 vcc, 0, v%d' % t]

def phase0(k):
    load_ptrs(k)
    k('s_getpc_b64 s[82:83]')
    k('L_pf:')
    PFM = E('PFM', 1)
    if PFM == 0:
        k('v_lshlrev_b32 v255, 7, v0')
        k('v_min_u32 v255, L_text_end-L_pf-4, v255')
        raw(k, 'global_load_dword v255, v255, s[82:83]')
    else:
        N = E('PFN', 32)
        k('s_lshr_b32 s4, s2, 3')
        k('s_and_b32 s4, s4, %d' % (256 // N - 1))
        k('s_mul_i32 s4, s4, %d' % (N * 128))
        k('v_subrev_u32 v255, 192, v0')
        k('v_cmp_gt_u32 vcc, %d, v255' % N)
        k('v_lshl_add_u32 v255, v255, 7, s4')
        k('v_min_u32 v255, L_text_end-L_pf-4, v255')
        k('s_and_saveexec_b64 s[80:81], vcc')
        k('s_cbranch_execz L_pf2')
        raw(k, 'global_load_dword v255, v255, s[82:83]')
        k('L_pf2:')
        k('s_mov_b64 exec, -1')
    k('s_cmp_ge_u32 s2, 256')
    k('s_cbranch_scc1 L_end')
    k('s_memrealtime s[78:79]')
    wave_id(k, 50, 1)
    k('v_and_b32 v1, 63, v0')
    k('s_and_b32 s3, s2, 7')
    k('s_lshr_b32 s4, s2, 3')
    k('s_lshl_b32 s51, s3, 5')
    k('s_add_u32 s80, s51, s4')
    k('s_lshl_b32 s51, s80, 9')
    k('v_lshl_add_u32 v2, v0, 1, s51')
    for i in range(4, 11): k('v_mov_b32 v%d, 0' % i)
    k('s_lshr_b32 s52, s50, 1')
    k('s_lshl_b32 s53, s80, 1')
    k('s_add_u32 s53, s53, s52')
    k('s_lshl_b32 s54, s53, 1')
    k('v_mov_b32 v3, s54')
    k('v_lshrrev_b32 v77, 5, v0')
    k('v_and_b32 v78, 31, v0')
    k('v_lshlrev_b32 v78, 4, v78')
    k('v_lshl_add_u32 v79, v77, 10, v78')
    k('s_lshl_b32 s63, s2, 13')
    k('v_add_u32 v79, s63, v79')
    k.smem_wait()
    k('s_mov_b32 s34, s80')
    k('s_or_b32 s78, s78, 1')
    k('s_or_b32 s79, s2, s50')
    k('s_cmp_eq_u32 s79, 0')
    k('s_cbranch_scc0 L_nn')
    k('v_mov_b32 v250, s78')
    k('v_lshlrev_b32 v251, 6, v1')
    k('s_mov_b64 exec, 15')
    raw(k, 'global_store_dword v251, v250, s[%d:%d]%s' % (P_DBG, P_DBG + 1, SC))
    k('s_mov_b64 exec, -1')
    k('L_nn:')
    k.vm('global_load_short_d16_hi v10, v3, s[%d:%d]' % (P_LDT, P_LDT + 1))
    for i, p in enumerate((P_ARE, P_AIM, P_BRE, P_BIM, P_CRE, P_CIM)):
        tpar = k.vm('global_load_short_d16_hi v%d, v2, s[%d:%d]' % (4 + i, p, p + 1))
    k.vm('global_load_dwordx4 v[240:243], v79, s[%d:%d]' % (P_U, P_U + 1))
    tx = k.vm('global_load_dwordx4 v[244:247], v79, s[%d:%d] offset:512' % (P_U, P_U + 1))
    k('s_and_b32 s5, s4, 3')
    k('s_lshl_b32 s5, s5, 3')
    k('s_add_u32 s5, s5, s3')
    k('s_lshl_b32 s5, s5, 1')
    k('s_bfe_u32 s6, s4, 0x10002')
    k('s_add_u32 s5, s5, s6')
    k('s_lshr_b32 s6, s4, 3')
    k('s_cmp_ge_u32 s5, 48')
    k('s_cselect_b32 s7, 16, 0')
    k('s_add_u32 s7, s7, s5')
    k('s_lshl_b32 s7, s7, 6')
    k('s_lshl_b32 s8, s6, 2')
    k('s_add_u32 s8, s8, s50')
    k('s_mul_i32 s9, s8, %d' % (32 * 6144))
    k('s_add_u32 s7, s7, s9')
    k('v_lshrrev_b32 v250, 2, v1')
    k('v_mul_u32_u24 v254, 6144, v250')
    k('v_and_b32 v251, 3, v1')
    k('v_lshl_add_u32 v254, v251, 4, v254')
    k('s_lshl_b32 s9, s50, 12')
    k('s_add_u32 s9, s9, %d' % L_CM)
    k('v_mov_b32 v231, v254')
    k('s_lshl_b32 s8, s8, 6')
    k('s_and_b32 s64, s4, 1')
    k('s_lshl_b32 s64, s64, 3')
    k('s_add_u32 s64, s64, s3')
    k('s_lshl_b32 s64, s64, 1')
    k('s_bfe_u32 s65, s4, 0x10001')
    k('s_add_u32 s64, s64, s65')
    k('s_lshr_b32 s65, s4, 2')
    k('s_cmp_ge_u32 s64, 16')
    k('s_cselect_b32 s66, 64, 48')
    k('s_add_u32 s66, s66, s64')
    k('s_lshl_b32 s66, s66, 6')
    k('s_lshl_b32 s67, s65, 2')
    k('s_add_u32 s67, s67, s50')
    k('s_mul_i32 s68, s67, %d' % (16 * 6144))
    k('s_add_u32 s66, s66, s68')
    k('s_lshl_b32 s67, s67, 5')
    k('s_sub_u32 s67, s67, 64')
    k('v_min_u32 v248, 23, v1')
    k('v_cmp_gt_u32 vcc, 16, v248')
    k('v_mov_b32 v250, s67')
    k('v_mov_b32 v251, s8')
    k('v_cndmask_b32 v250, v250, v251, vcc')
    k('v_lshl_add_u32 v248, v248, 2, v250')
    tc = k.vm('global_load_dword v248, v248, s[%d:%d]' % (P_C, P_C + 1))
    k('s_lshl_b32 s60, s34, 2')
    k('s_load_dword s30, s[%d:%d], s60' % (P_DSK, P_DSK + 1))
    if E('W1T', 0):
        k('s_and_b32 s75, s3, 1')
        k('s_mul_i32 s75, s75, 7')
        k('s_lshr_b32 s76, s4, 2')
        k('s_add_u32 s75, s75, s76')
        k('s_min_u32 s75, s75, 13')
        k('s_lshl_b32 s75, s75, 8')
        k('s_and_b32 s76, s4, 3')
        k('s_mul_i32 s76, s76, %d' % (128 * 3584))
        k('s_add_u32 s75, s75, s76')
        k('v_lshrrev_b32 v237, 1, v0')
        k('v_mul_u32_u24 v237, 3584, v237')
        k('v_and_b32 v238, 1, v0')
        k('v_lshl_add_u32 v237, v238, 7, v237')
        k('v_add_u32 v237, s75, v237')
        k.vm('global_load_dword a200, v237, s[%d:%d]' % (P_W1, P_W1 + 1))
    if E('W2T', 0):
        k('s_min_u32 s75, s2, 111')
        k('s_lshl_b32 s75, s75, 14')
        k('v_and_b32 v238, 127, v0')
        k('v_lshl_add_u32 v238, v238, 7, s75')
        k.vm('global_load_dword a201, v238, s[%d:%d]' % (P_W2, P_W2 + 1))
    k('s_cmp_lt_u32 s2, 112')
    k('s_cbranch_scc0 L_pj_w1')
    k('s_lshl_b32 s76, s2, 14')
    k('s_lshl_b32 s70, s50, 12')
    k('s_add_u32 s76, s76, s70')
    add_ptr(k, 72, P_W2, 76)
    k('s_add_u32 s31, s70, %d' % L_SJ)
    k('s_movk_i32 s79, 1024')
    for r in range(4):
        k('v_xor_b32 v%d, %d, v1' % (224 + r, r << 2))
        k('v_lshlrev_b32 v%d, 4, v%d' % (224 + r, 224 + r))
        if r: k('v_add_u32 v%d, %d, v%d' % (224 + r, 1024 * r, 224 + r))
    k('s_branch L_pj_go')
    k('L_pj_w1:')
    k('s_sub_u32 s75, s2, 112')
    k('s_min_u32 s75, s75, 111')
    k('s_and_b32 s26, s75, 7')
    k('s_lshr_b32 s27, s75, 3')
    k('s_lshl_b32 s75, s26, 4')
    k('s_add_u32 s75, s75, s50')
    k('s_mul_i32 s75, s75, %d' % (4 * 3584))
    k('s_lshl_b32 s76, s27, 8')
    k('s_add_u32 s75, s75, s76')
    add_ptr(k, 72, P_W1, 75)
    k('s_lshl_b32 s31, s50, 10')
    k('s_add_u32 s31, s31, %d' % L_SJ)
    k('s_movk_i32 s79, 4096')
    k('v_lshrrev_b32 v228, 4, v1')
    k('v_and_b32 v229, 15, v1')
    k('v_lshlrev_b32 v230, 2, v228')
    k('v_xor_b32 v230, v230, v229')
    k('v_mul_u32_u24 v224, 3584, v228')
    k('v_lshl_add_u32 v224, v230, 4, v224')
    for r in range(1, 4): k('v_add_u32 v%d, %d, v224' % (224 + r, r * 16 * 3584))
    k('L_pj_go:')
    def pkdma(r):
        k('s_mov_b32 m0, s31')
        k.tpk = k.vm('global_load_lds_dwordx4 v%d, s[72:73]' % (224 + r))
        k('s_add_u32 s31, s31, s79')
    SNON = 0
    if SNON:
        add_ptr(k, 10, P_WMOD, 7)
        k('s_mov_b32 m0, s9')
        k.vm('global_load_lds_dwordx4 v231, s[10:11]')
        k('s_add_u32 s10, s10, %d' % (16 * 6144 - 1024))
        k('s_addc_u32 s11, s11, 0')
        k.vm('global_load_lds_dwordx4 v231, s[10:11] offset:1024')
        add_ptr(k, 10, P_WMOD, 66)
        k('s_add_u32 m0, s9, 2048')
        tcm = k.vm('global_load_lds_dwordx4 v231, s[10:11]')
        for r in range(4): pkdma(r)
    k('s_and_b32 s75, s5, 15')
    k('s_lshl_b32 s75, s75, 13')
    k('s_lshr_b32 s76, s5, 4')
    k('s_lshl_b32 s76, s76, 6')
    k('s_add_u32 s75, s75, s76')
    k('s_lshl_b32 s76, s6, 3')
    k('s_add_u32 s75, s75, s76')
    k('s_and_b32 s76, s64, 15')
    k('s_lshl_b32 s76, s76, 13')
    k('s_lshr_b32 s77, s64, 4')
    k('s_lshl_b32 s77, s77, 7')
    k('s_add_u32 s76, s76, s77')
    k('s_lshl_b32 s77, s65, 3')
    k('s_add_u32 s76, s76, s77')
    k('s_add_u32 s76, s76, 256')
    k('s_cmp_eq_u32 s50, 0')
    k('s_cselect_b32 s75, s75, s76')
    ws_ptr(k, 16, WS_MODG, 75)
    k('v_mov_b32 v12, 0\nv_mov_b32 v13, 0\nv_mov_b32 v14, 0\nv_mov_b32 v15, 0')
    ws_ptr(k, 14, WS_SYNC)
    tr_addr32(k, 254, 1, 250, 251, 6, 8)
    k('v_add_u32 v254, s9, v254')
    k('v_and_b32 v40, 31, v1')
    k('v_lshrrev_b32 v41, 5, v1')
    k('v_lshrrev_b32 v253, 1, v40')
    k('v_lshlrev_b32 v253, 9, v253')
    k('v_and_b32 v250, 1, v40')
    k('s_add_u32 s75, s50, 5')
    k('v_lshlrev_b32 v250, s75, v250')
    k('v_add_u32 v253, v253, v250')
    k('v_mul_u32_u24 v11, 1056, v77')
    k('v_add_u32 v11, v11, v78')
    k('v_add_u32 v11, %d, v11' % L_STN)
    k('v_bfe_u32 v56, v1, 2, 3')
    k('v_mul_u32_u24 v236, 1056, v56')
    k('v_and_b32 v57, 3, v1')
    k('v_lshl_add_u32 v236, v57, 3, v236')
    k('v_lshl_add_u32 v236, v41, 5, v236')
    k('s_lshl_b32 s75, s50, 8')
    k('s_add_u32 s75, s75, %d' % L_STN)
    k('v_add_u32 v236, s75, v236')
    k('v_and_b32 v57, 15, v1')
    k('v_lshl_add_u32 v57, v41, 4, v57')
    k('v_lshlrev_b32 v235, 5, v57')
    k('v_bfe_u32 v57, v1, 4, 1')
    k('v_lshl_add_u32 v235, v57, 4, v235')
    k('s_lshl_b32 s75, s2, 10')
    k('s_lshl_b32 s76, s50, 20')
    k('s_add_u32 s75, s75, s76')
    ws_ptr(k, 12, WS_XG, 75)
    k('s_lshl_b32 s75, s2, 6')
    k('s_lshl_b32 s76, s50, 4')
    k('s_add_u32 s75, s75, s76')
    ws_ptr(k, 24, WS_ST1, 75)
    k('s_mov_b32 s58, 0xffff0000')
    k('s_mov_b32 s63, 0x3f803f80')
    k('v_lshlrev_b32 v249, 2, v0')
    k('v_add_u32 v249, %d, v249' % L_SC)
    k('v_lshlrev_b32 v233, 4, v41')
    k('s_lshl_b32 s75, s50, 8')
    k('s_add_u32 s75, s75, %d' % L_SC)
    k('v_add_u32 v233, s75, v233')
    k('s_lshl_b32 s75, s50, 10')
    k('v_lshl_add_u32 v252, v1, 2, s75')
    k('v_add_u32 v252, %d, v252' % (L_SC + 1024))
    k('s_lshl_b32 s55, s50, 14')
    k('v_lshl_add_u32 v16, v1, 2, s55')
    for r in range(1, 16): k('v_xor_b32 v%d, %d, v16' % (16 + r, r << 4))
    k('v_and_b32 v42, 15, v1')
    k('v_xor_b32 v42, v42, v41')
    k('v_lshlrev_b32 v42, 4, v42')
    k('v_lshl_add_u32 v42, v40, 8, v42')
    k('v_add_u32 v32, s55, v42')
    for ks in range(1, 8): k('v_xor_b32 v%d, %d, v32' % (32 + ks, ks << 5))
    TP = E('TPAD', 1)
    k('s_mul_i32 s56, s52, 7168')
    k('s_add_u32 s56, s56, %d' % ((L_T - (0x3F00 + (0x3F00 >> 5 if TP else 0)) * 4) & 0xffffffff))
    k('v_lshlrev_b32 v42, 3, v40')
    k('v_cvt_f32_u32 v42, v42')
    k('v_cvt_f32_u32 v43, v41')
    c0 = [0, 1, 2, 3, 256, 258, 260, 262]
    c1 = [4, 5, 6, 7, 512, 516, 768, 772]
    for r in range(8):
        k('v_fmamk_f32 v56, v43, %s, v42' % f32(c1[r] - c0[r]))
        if c0[r]: k('v_add_f32 v56, %s, v56' % f32(c0[r]))
        else: k('v_max_f32 v56, 0.5, v56')
        k('v_cvt_pk_bf16_f32 v56, v56, 0')
        if TP: k('v_lshrrev_b32 v77, 5, v56'); k('v_add_u32 v56, v56, v77')
        k('v_lshl_add_u32 v%d, v56, 2, s56' % (44 + r))
    k('v_cmp_eq_u32 vcc, 32, v1')
    k('v_fmaak_f32 v57, 4.0, v42, %s' % f32(4096.0))
    k('v_mov_b32 v58, %s' % f32(2048.0))
    k('v_cndmask_b32 v58, v57, v58, vcc')
    k('v_cmp_lt_u32 vcc, 31, v1')
    for r in range(8, 12):
        k('v_add_f32 v56, %s, v42' % f32(1024 + 256 * (r - 8)))
        k('v_cndmask_b32 v56, v56, v%d, vcc' % (58 if r == 8 else 57))
        k('v_cvt_pk_bf16_f32 v56, v56, 0')
        if TP: k('v_lshrrev_b32 v77, 5, v56'); k('v_add_u32 v56, v56, v77')
        k('v_lshl_add_u32 v%d, v56, 2, s56' % (44 + r))
    k('v_and_b32 v59, 127, v0')
    k('v_lshlrev_b32 v56, 4, v59')
    k('v_sub_u32 v56, 2047, v56')
    k('v_cvt_f32_u32 v57, v56')
    for i in range(17):
        if i: k('v_add_f32 v56, %s, v57' % f32(-float(i)))
        else: k('v_mov_b32 v56, v57')
        if i >= 15: k('v_max_f32 v56, 0.5, v56')
        k('v_cvt_pk_bf16_f32 v56, v56, 0')
        if TP: k('v_lshrrev_b32 v77, 5, v56'); k('v_add_u32 v56, v56, v77')
        k('v_lshl_add_u32 v%d, v56, 2, s56' % (60 + i))
    k('s_mov_b32 s57, 0x07060302')
    k('s_mov_b32 s59, %s' % f32(LOG2E))
    lo_log2e = LOG2E - struct.unpack('<f', struct.pack('<f', LOG2E))[0]
    inv2pi = 1.0 / (2 * math.pi)
    inv2pi_f = struct.unpack('<f', struct.pack('<f', inv2pi))[0]
    k('s_mov_b32 s60, %s' % f32(inv2pi_f))
    k('s_mov_b32 s61, %s' % f32(inv2pi - inv2pi_f))
    k('s_mov_b32 s62, %s' % f32(lo_log2e))
    k('s_lshl_b32 s75, s50, 6')
    k('v_mov_b32 v234, s75')
    NL = 'global_load_dword v232, v234, s[%d:%d]%s' % (P_DBG, P_DBG + 1, SC)
    if not SNON:
        tn = k.vm(NL)
        if EP:
            for r in range(4): pkdma(r)
        add_ptr(k, 10, P_WMOD, 7)
        k('s_mov_b32 m0, s9')
        k.vm('global_load_lds_dwordx4 v231, s[10:11]')
        k('s_add_u32 s10, s10, %d' % (16 * 6144 - 1024))
        k('s_addc_u32 s11, s11, 0')
        k.vm('global_load_lds_dwordx4 v231, s[10:11] offset:1024')
        add_ptr(k, 10, P_WMOD, 66)
        k('s_add_u32 m0, s9, 2048')
        tcm = k.vm('global_load_lds_dwordx4 v231, s[10:11]')
        if not EP:
            for r in range(4): pkdma(r)
    k('s_cmp_lt_u32 s2, 112')
    k('s_cbranch_scc0 L_pa_w1')
    tr_addr32(k, 224, 1, 250, 251, 10, 4)
    k('s_lshl_b32 s76, s50, 8')
    k('s_add_u32 s76, s76, %d' % L_SJ)
    k('v_add_u32 v224, s76, v224')
    k('v_bfe_u32 v251, v1, 2, 2')
    k('v_lshlrev_b32 v251, 6, v251')
    k('v_xor_b32 v224, v224, v251')
    for q in range(1, 4): k('v_xor_b32 v%d, %d, v224' % (224 + q, q << 6))
    k('s_mul_i32 s76, s50, %d' % (4 * 114688))
    k('s_lshl_b32 s75, s2, 10')
    k('s_add_u32 s76, s76, s75')
    ws_ptr(k, 70, WS_W2P, 76)
    k('s_mov_b32 s75, 114688')
    k('s_movk_i32 s76, 8192')
    k('s_branch L_pa_go')
    k('L_pa_w1:')
    tr_addr32(k, 224, 1, 250, 251, 8, 8)
    k('v_bfe_u32 v251, v1, 2, 2')
    k('v_xor_b32 v251, s50, v251')
    k('v_lshl_add_u32 v224, v251, 6, v224')
    k('v_add_u32 v224, %d, v224' % L_SJ)
    for q in range(1, 4): k('v_add_u32 v%d, %d, v224' % (224 + q, q * 4096))
    k('s_lshl_b32 s76, s27, 2')
    k('s_add_u32 s76, s76, s50')
    k('s_lshl_b32 s76, s76, 15')
    k('s_lshl_b32 s75, s26, 12')
    k('s_add_u32 s76, s76, s75')
    ws_ptr(k, 70, WS_W1P, 76)
    k('s_movk_i32 s75, 1024')
    k('s_movk_i32 s76, 1024')
    k('L_pa_go:')
    for q in range(4): k('v_add_u32 v%d, s76, v%d' % (228 + q, 224 + q))
    k('v_lshlrev_b32 v223, 4, v1')
    k('v_add_u32 v237, s75, v223')
    k('v_add_u32 v238, s75, v237')
    k('v_add_u32 v239, s75, v238')
    k('s_lshr_b32 s5, s3, 1')
    k('s_lshl_b32 s5, s5, 2')
    k('s_and_b32 s75, s4, 3')
    k('s_add_u32 s5, s5, s75')
    k('s_and_b32 s7, s3, 1')
    k('s_mul_i32 s7, s7, 7')
    k('s_lshr_b32 s75, s4, 2')
    k('s_add_u32 s7, s7, s75')
    k('s_min_u32 s7, s7, 13')
    k('s_lshl_b32 s6, s7, 2')
    k('s_add_u32 s6, s6, s50')
    k.smem_wait()
    k.wait(vm=tpar)
    k('v_mov_b32 v255, v223')
    k.stamp(2); k.stamp3(1)
    if SNON: k('s_load_dword s81, s[%d:%d], 0 glc' % (P_DBG, P_DBG + 1))
    k('v_mul_f32 v78, s59, v10')
    k('v_fma_f32 v79, v10, s59, -v78')
    k('v_fma_f32 v79, v10, s62, v79')
    k('v_exp_f32 v78, v78')
    k('v_mul_f32 v79, %s, v79' % f32(math.log(2.0)))
    k('v_fma_f32 v78, v78, v79, v78')
    k('v_cvt_pk_bf16_f32 v78, v78, v78')
    k('v_and_b32 v78, s58, v78')
    k('v_mul_f32 v4, v78, v4')
    k('v_mul_f32 v5, v78, v5')
    k('v_mul_f32 v152, v78, v6')
    k('v_mul_f32 v154, v78, v7')
    E0 = 96
    cmul1(k, E0, 8, 152); cmul2(k, E0, 8, 152)
    k('v_mul_f32 v4, s59, v4')
    Z1, Z256, Z8, Z128 = 80, 84, 152, 156
    def zpow(dst, p, conj, t):
        pf = f32(float(p))
        return ['v_mul_f32 v%d, %s, v4' % (t, pf), 'v_mul_f32 v%d, %s, v5' % (t + 1, pf), 'v_exp_f32 v%d, v%d' % (t, t),
                'v_mul_f32 v%d, s60, v%d' % (t + 2, t + 1), 'v_fma_f32 v%d, v%d, s60, -v%d' % (t + 3, t + 1, t + 2),
                'v_fma_f32 v%d, v%d, s61, v%d' % (t + 3, t + 1, t + 3), 'v_fract_f32 v%d, v%d' % (t + 2, t + 2),
                'v_add_f32 v%d, v%d, v%d' % (t + 2, t + 2, t + 3), 'v_cos_f32 v%d, v%d' % (t + 3, t + 2), 'v_sin_f32 v%d, v%d' % (t + 2, t + 2),
                'v_mul_f32 v%d, v%d, v%d' % (dst, t, t + 3), 'v_mul_f32 v%d, v%d, %sv%d' % (dst + 2, t, '-' if conj else '', t + 2)]
    for p_, q_ in ((zpow(Z1, 1, False, 88), zpow(Z256, 256, False, 92)), (zpow(Z8, 8, True, 88), zpow(Z128, 128, True, 92))):
        for x, y in zip(p_, q_): k(x); k(y)
    T0 = 140
    def split_a(e, i):
        t = T0 + 6 * (i & 1)
        if not KSPLIT:
            k('v_cvt_pk_bf16_f32 v%d, v%d, v%d' % (t + 4, e, e + 1)); return
        k('v_perm_b32 v%d, v%d, v%d, s57' % (t + 4, e + 1, e))
        k('v_and_b32 v%d, s58, v%d' % (t, e))
        k('v_and_b32 v%d, s58, v%d' % (t + 1, e + 1))
    def split_b(e, i, row):
        t = T0 + 6 * (i & 1)
        if not KSPLIT: return k.ds('ds_write_b32 v%d, v%d offset:%d' % (16 + (row & 15), t + 4, row * 256))
        k('v_pk_add_f32 %s, %s, %s neg_lo:[0,1] neg_hi:[0,1]' % (v(t + 2, 2), v(e, 2), v(t, 2)))
        k('v_cvt_pk_bf16_f32 v%d, v%d, v%d' % (t + 5, t + 2, t + 3))
        return k.ds('ds_write2st64_b32 v%d, v%d, v%d offset0:%d offset1:%d' % (16 + (row & 15), t + 4, t + 5, row, 32 + row))
    hi = {r: (r - 1, Z1) for r in range(1, 8)}
    hi.update({8: (0, Z256), 9: (2, Z256), 10: (4, Z256), 11: (6, Z256), 12: (8, Z256), 13: (10, Z256), 14: (12, Z256), 15: (13, Z256),
               16: (14, Z256), 17: (16, Z256), 18: (17, Z256), 19: (18, Z256), 20: (19, Z256)})
    order = [0, 1, 8, 2, 12, 3, 14, 4, 16, 5, 17, 6, 18, 7, 19, 9, 20, 10, 11, 13, 15]
    for i, r in enumerate(order):
        nxt = order[i + 1] if i + 1 < len(order) else None
        if nxt is not None: cmul1(k, E0 + 2 * nxt, E0 + 2 * hi[nxt][0], hi[nxt][1])
        split_a(E0 + 2 * r, i)
        if nxt is not None: cmul2(k, E0 + 2 * nxt, E0 + 2 * hi[nxt][0], hi[nxt][1])
        split_b(E0 + 2 * r, i, r)
    AH, AL = 160, 192
    for ks in range(8):
        k.ds('ds_read_b128 %s, v%d' % (v(AH + 4 * ks, 4), 32 + ks))
        if KSPLIT: k.ds('ds_read_b128 %s, v%d offset:8192' % (v(AL + 4 * ks, 4), 32 + ks))
    for i in range(4): k('v_mov_b32 v%d, 0' % (96 + i))
    k.stamp3(2)
    k.wait(vm=tx)
    k.stamp3(3)
    for i in range(2): k.ds('ds_write_b128 v11, %s offset:%d' % (v(240 + 4 * i, 4), 512 * i))
    for j in range(8):
        k('v_dot2c_f32_bf16 v%d, s63, v%d' % (96 + (j & 1), 240 + j))
        k('v_dot2c_f32_bf16 v%d, v%d, v%d' % (98 + (j & 1), 240 + j, 240 + j))
    if SNON:
        k.wait(vm=tc)
        k.smem_wait()
        k('v_mov_b32 v232, s81')
    else: k.wait(vm=tn)
    k('s_mov_b32 s80, 0')
    k('L_non_p:')
    k('v_cmp_eq_u32 vcc, 0, v232')
    retry_tail(k, 'non', [NL, 's_waitcnt vmcnt(0)'])
    k('v_readfirstlane_b32 s81, v232')
    k.stamp3(4)
    GR = [100 + 4 * q for q in range(3)] + [120]
    for q in range(4): k('v_mov_b32 v%d, v232\nv_mov_b32 v%d, v232' % (GR[q] + 2, GR[q] + 3))
    if EP: k.wait(vm=k.tpk)
    k.wait_all(vm=False)
    k.barrier()
    tq = [k.ds('ds_read_b64_tr_b16 %s, v236 offset:%d' % (v(GR[q], 2), 64 * q)) for q in range(4)]
    k('v_lshlrev_b32 v116, 16, v248')
    k('v_and_b32 v117, s58, v248')
    k('v_add_f32 v96, v96, v97')
    k('v_add_f32 v98, v98, v99')
    nm = 'v_mul_f32 v%%d, %s, v%%d' % f32(-LOG2E)
    silu = [nm % (118, 116), nm % (119, 117), 'v_exp_f32 v118, v118', 'v_exp_f32 v119, v119', 'v_add_f32 v118, 1.0, v118', 'v_add_f32 v119, 1.0, v119',
            'v_rcp_f32 v118, v118', 'v_rcp_f32 v119, v119', 'v_mul_f32 v116, v116, v118', 'v_mul_f32 v117, v117, v119', 'v_cvt_pk_bf16_f32 v116, v116, v117']
    for pat in ('quad_perm:[1,0,3,2]', 'quad_perm:[2,3,0,1]', 'row_half_mirror', 'row_mirror'):
        k(silu.pop(0)); k(silu.pop(0))
        k('v_add_f32_dpp v96, v96, v96 %s row_mask:0xf bank_mask:0xf' % pat)
        k('v_add_f32_dpp v98, v98, v98 %s row_mask:0xf bank_mask:0xf' % pat)
    k('v_mov_b32 v97, v96')
    k('v_mov_b32 v99, v98')
    for q in range(4):
        k.wait(ds=tq[q])
        k.vm('global_store_dwordx4 v235, %s, s[12:13]%s' % (v(GR[q], 4), SC))
        if q < 3: k('s_add_u32 s12, s12, 0x40000'); k('s_addc_u32 s13, s13, 0')
    while silu: k(silu.pop(0))
    k.ds('ds_write_b32 v249, v116')
    k('v_permlane16_swap_b32 v96, v97')
    k('v_permlane16_swap_b32 v98, v99')
    for ks in range(3): k.ds('ds_read_b128 %s, v233 offset:%d' % (a(32 + 4 * ks, 4), 32 * ks))
    k('v_add_f32 v96, v96, v97')
    k('v_add_f32 v98, v98, v99')
    k('v_mul_f32 v96, %s, v96' % f32(1.0 / 512))
    k('v_mul_f32 v98, %s, v98' % f32(1.0 / 512))
    k('v_fma_f32 v98, -v96, v96, v98')
    k('v_max_f32 v98, 0, v98')
    k('v_add_f32 v98, %s, v98' % f32(1e-5))
    k('v_rsq_f32 v240, v98')
    k('v_mul_f32 v242, v96, v240')
    k('v_mov_b32 v241, v240')
    k('v_mov_b32 v243, v242')
    k('v_permlane32_swap_b32 v240, v241')
    k('v_permlane32_swap_b32 v242, v243')
    k('v_cvt_pk_bf16_f32 v242, v242, v243')
    k('v_mov_b32 v243, v232')
    k('s_mov_b64 exec, 1')
    k.vm('global_store_dwordx4 v12, v[240:243], s[24:25]' + SC)
    k('s_mov_b64 exec, -1')
    def mod_a():
        k.stamp3(6)
        k.wait(vm=tcm)
        k.stamp3(7)
        for ks in range(3):
            k.ds('ds_read_b64_tr_b16 %s, v254 offset:%d' % (a(48 + 4 * ks, 2), ks * 1024))
            k.tmr = k.ds('ds_read_b64_tr_b16 %s, v254 offset:%d' % (a(50 + 4 * ks, 2), ks * 1024 + 256))
    def mod_b():
        k.wait(ds=k.tmr)
        k('v_mfma_f32_32x32x16_bf16 a[64:79], a[32:35], a[48:51], 0')
        k('v_mfma_f32_32x32x16_bf16 a[80:95], a[40:43], a[56:59], 0')
        k('v_mfma_f32_32x32x16_bf16 a[64:79], a[36:39], a[52:55], a[64:79]')
    def mod_c():
        k.ds('ds_write_b32 v249, a80 offset:2048')
        k.ds('ds_write_b32 v249, a64 offset:1024')
        k.stamp3(8)
        k.wait_all(vm=False)
        k.barrier()
        k.stamp3(9)
        for i in range(4): k.tp = k.ds('ds_read_b32 v%d, v252 offset:%d' % (244 + i, 256 * i))
    def mod_d():
        k.wait(ds=k.tp)
        k('s_cmp_ge_u32 s50, 2')
        k('s_cbranch_scc1 L_cm2')
        k('v_add_f32 v244, v244, v245')
        k('v_add_f32 v246, v246, v247')
        k('v_add_f32 v244, v244, v246')
        k('v_mov_b32 v245, v232')
        raw(k, 'global_store_dwordx2 v253, v[244:245], s[16:17]' + SC)
        k('s_branch L_cm3')
        k('L_cm2:')
        k('v_and_b32 v246, 15, v1')
        k('s_lshl_b32 s75, s2, 6')
        k('v_lshl_add_u32 v246, v246, 2, s75')
        raw(k, 'global_store_dword v246, v12, s[14:15]' + SC)
        k('L_cm3:')
        k.nvm += 1
    def pack_out():
        for q in range(4):
            k.ds('ds_read_b64_tr_b16 %s, v%d' % (a(4 * q, 2), 224 + q))
            pt = k.ds('ds_read_b64_tr_b16 %s, v%d' % (a(4 * q + 2, 2), 228 + q))
        k.wait(ds=pt)
        k('s_cmp_ge_u32 s2, 224')
        k('s_cbranch_scc1 L_pk_no')
        for q in range(4): raw(k, 'global_store_dwordx4 v%d, %s, s[70:71]%s' % (255 if q == 0 else 236 + q, a(4 * q, 4), SC))
        k('L_pk_no:')
        k.tall = k.nvm
    if EP: k.wait(vm=tcm); pack_out()
    k('s_nop 1')
    k.stamp(4); k.stamp3(5)
    eq = []
    L0 = 96
    k('v_mov_b32 v%d, 1.0' % L0)
    k('v_mov_b32 v%d, 0' % (L0 + 1))
    lo_order = []
    for m in range(16): lo_order += [m, 16 + m]
    def lreg(m): return L0 + 2 * m if m < 16 else 132 + 2 * (m & 1)
    def lsrc(m): return (lreg(m - 1), Z8) if m < 16 else (lreg(m - 16), Z128)
    for i, m in enumerate(lo_order):
        nxt = lo_order[i + 1] if i + 1 < len(lo_order) else None
        if nxt is not None: cmul1(k, lreg(nxt), *lsrc(nxt))
        split_a(lreg(m), i)
        if nxt is not None: cmul2(k, lreg(nxt), *lsrc(nxt))
        split_b(lreg(m), i, m)
        M0 = E('MODAT', 2)
        if i == M0: mod_a()
        if i == M0 + 2: mod_b()
        if i == M0 + 5: mod_c()
        if i == M0 + 7: mod_d()
        if i == E('PKO', 20) and not EP:
            k.wait(vm=k.tpk); k.barrier(); pack_out()
        if EP and i == E('FPE', 22):
            k('s_waitcnt vmcnt(%d)' % (k.nvm - k.tall))
            k.barrier()
            signal(k, 'fp', O_FP, 250, 251)
    while eq: eq.pop(0)()
    if (9 if EP else E('FPB', 1)) == 3:
        k.wait_all(vm=True, ds=False)
        k.barrier()
        signal(k, 'fp', O_FP, 250, 251)
    k.stamp3(10)
    ACC = 224
    bt = []
    k.wait_all(vm=False, ds=True)
    for ks in range(8):
        t = k.ds('ds_read_b128 %s, v%d' % (v(96 + 8 * ks, 4), 32 + ks))
        if KSPLIT: t = k.ds('ds_read_b128 %s, v%d offset:8192' % (v(100 + 8 * ks, 4), 32 + ks))
        bt.append(t)
    fill = []
    F = lambda x: fill.append(x)
    F('v_lshrrev_b32 v7, 2, v1'); F('v_and_b32 v8, 3, v1'); F('v_lshlrev_b32 v16, 10, v7'); F('v_lshl_add_u32 v16, v8, 4, v16')
    F('s_lshl_b32 s60, s50, 16\ns_lshr_b32 s61, s34, 4\ns_lshl_b32 s61, s61, 18\ns_add_u32 s60, s60, s61')
    F('s_and_b32 s61, s34, 15\ns_lshl_b32 s61, s61, 6\ns_add_u32 s60, s60, s61\ns_add_u32 s62, s48, s60\ns_addc_u32 s63, s49, 0')
    assert WS_XG == 0
    for i in range(1, 4): F('v_add_u32 v%d, 0x%x, v16' % (16 + i, i * 16384))
    F('v_and_b32 v10, 1, v8'); F('v_lshlrev_b32 v24, 6, v7'); F('v_lshl_add_u32 v24, v10, 5, v24'); F('v_lshrrev_b32 v9, 1, v8'); F('v_lshl_add_u32 v24, v9, 4, v24')
    F('s_lshl_b32 s60, s50, 12\ns_add_u32 s60, s60, 0x%x\ns_add_u32 s24, s48, s60\ns_addc_u32 s25, s49, 0' % WS_ST1)
    F('v_lshlrev_b32 v21, 3, v1')
    F('s_lshl_b32 s60, s34, 9\ns_add_u32 s60, s60, 0x%x\ns_add_u32 s64, s48, s60\ns_addc_u32 s65, s49, 0' % WS_MODG)
    XD = [240, 244, 248, 252]
    k.XD = XD
    XL1 = ['global_load_dwordx4 %s, v%d, s[62:63]%s' % (v(XD[i], 4), 16 + i, SC) for i in range(4)] + ['global_load_dwordx2 v[22:23], v21, s[64:65]' + SC]
    XL2 = ['global_load_dwordx4 %s, v24, s[24:25] offset:%d%s' % (v(80 + 4 * i, 4), i * 1024, SC) for i in range(4)]
    k.XL = XL1 + XL2
    F('s_or_b32 s66, s55, 0x4000'); F('v_lshl_add_u32 v3, v1, 4, s66')
    F('s_mul_i32 s55, s52, %d\ns_add_u32 s55, s55, %d' % (CHS, L_CV)); F('v_lshl_add_u32 v2, v59, 5, s55')
    for x in XL1 + XL2: F('VM ' + x); F('s_nop 0')
    k.tw1 = []
    def w1l():
        n = len(k.tw1)
        if n >= 32: return
        k.tw1.append(k.vm('global_load_dwordx4 %s, v%d, s[26:27] offset:%d%s' % (a(4 * n, 4), k.w1v, (n & 3) * 1024, W_SC)))
        if (n & 3) == 3 and n < 31: k('s_add_u32 s26, s26, 4096'); k('s_addc_u32 s27, s27, 0')
    k.w1l = w1l; k.w1v = 31
    FPL0 = 'global_load_dword v29, v30, s[14:15]' + SC
    if EP:
        F('s_lshl_b32 s60, s3, 10\ns_lshl_b32 s61, s7, 5\ns_add_u32 s60, s60, s61\ns_add_u32 s60, s60, 0x%x' % (O_FP + 448))
        F('v_and_b32 v30, 7, v1'); F('v_lshl_add_u32 v30, v30, 2, s60'); F('v_lshlrev_b32 v31, 4, v1')
        F('s_lshl_b32 s60, s6, 15\ns_add_u32 s60, s60, 0x%x\ns_add_u32 s26, s48, s60\ns_addc_u32 s27, s49, 0' % WS_W1P)
    def emit_fill():
        x = fill.pop(0)
        if x.startswith('VM '): k.vm(x[3:])
        else: k(x)
    for ks in range(8):
        k.wait(ds=bt[ks])
        c = '0' if ks == 0 else v(ACC, 16)
        ms = [(AH + 4 * ks, 96 + 8 * ks)] + ([(AH + 4 * ks, 100 + 8 * ks), (AL + 4 * ks, 96 + 8 * ks)] if KSPLIT else [])
        for x, y in ms:
            k('v_mfma_f32_32x32x16_bf16 %s, %s, %s, %s' % (v(ACC, 16), v(x, 4), v(y, 4), c)); c = v(ACC, 16)
            for _ in range(2 if KSPLIT else 4):
                if fill: emit_fill()
    while fill: emit_fill()
    k.stamp3(11)
    k.txl = k.nvm
    if EP: sync_issue(k, 'fp', FPL0)
    k('s_nop 7\ns_nop 3')
    k('s_bitcmp1_b32 s50, 0')
    k('s_cbranch_scc0 L_kg_a')
    for i in range(3): k.ds('ds_write_b128 v3, %s offset:%d' % (v(ACC + 4 * i, 4), 1024 * i))
    k.wait_all(vm=False)
    k('L_kg_a:')
    if (9 if EP else E('FPB', 1)) == 2: k('s_waitcnt vmcnt(%d)' % (k.nvm - k.tall))
    k.barrier()
    k.stamp3(12)
    if (9 if EP else E('FPB', 1)) == 2:
        signal(k, 'fp', O_FP, 28, 29)
        k('s_bitcmp1_b32 s50, 0')
    k('s_cbranch_scc1 L_kg_b')
    for i in range(3): k.ds('ds_read_b128 %s, v3 offset:%d' % (v(96 + 4 * i, 4), 1024 * i))
    k.wait_all(vm=False)
    for i in range(6): k('v_pk_add_f32 %s, %s, %s' % (v(96 + 2 * i, 2), v(96 + 2 * i, 2), v(ACC + 2 * i, 2)))
    for r in range(12): k.ds('ds_write_b32 v%d, v%d' % (44 + r, 96 + r))
    k.wait_all(vm=False)
    k('L_kg_b:')
    if EP: sync_check(k, 'fp', [FPL0], chk_tags([29], 27))
    if (9 if EP else E('FPB', 1)) == 1: k('s_waitcnt vmcnt(%d)' % (k.nvm - k.tall))
    k.barrier()
    k.stamp3(13)
    if (9 if EP else E('FPB', 1)) == 1: signal(k, 'fp', O_FP, 28, 29)
    k('v_cmp_eq_u32 vcc, 127, v59')
    G = 96
    gt = [k.ds('ds_read_b32 v%d, v%d' % (G + i, 60 + i)) for i in range(17)]
    if EP: k.hook = [E('HKN', 10), w1l, 0]
    conv_setup(k)
    k.wait(ds=gt[-1])
    k('v_cmp_eq_u32 vcc, 127, v59')
    k('v_cndmask_b32 v%d, v%d, v12, vcc' % (G + 16, G + 16))
    for i in range(8): k('v_cvt_pk_bf16_f32 v%d, v%d, v%d' % (120 + i, G + 2 * i, G + 2 * i + 1))
    for i in range(8): k('v_cvt_pk_bf16_f32 v%d, v%d, v%d' % (128 + i, G + 2 * i + 1, G + 2 * i + 2))
    k.ds('ds_write_b128 v2, v[120:123]')
    k.ds('ds_write_b128 v2, v[124:127] offset:16')
    k.ds('ds_write_b128 v2, v[128:131] offset:%d' % O_K1)
    k.ds('ds_write_b128 v2, v[132:135] offset:%d' % (O_K1 + 16))
    k.hook = None
    k('v_lshlrev_b32 v2, 4, v1')
    k.w1v = 2

def conv_setup(k):
    k('s_and_b32 s54, s50, 1')
    k('v_lshlrev_b32 v11, 4, v1')
    k('v_and_b32 v5, 15, v1')
    k('v_lshrrev_b32 v6, 4, v1')
    k('s_mul_i32 s59, s54, %d' % O_K1)
    k('s_add_u32 s59, s59, s55')
    k('v_lshl_add_u32 v14, v5, 2, s59')
    k.ds('ds_write_b32 v14, v12 offset:4096')
    k('v_lshl_add_u32 v14, v1, 3, s55')
    k.ds('ds_write_b64 v14, v[12:13] offset:%d' % O_H)
    k('v_lshlrev_b32 v15, 3, v10')
    k('v_lshl_add_u32 v15, v7, 4, v15')
    k('s_lshl_b32 s60, s50, 10')
    k('v_add_u32 v15, s60, v15')
    k('v_mul_u32_u24 v20, %d, v9' % CHS)
    k('v_add_u32 v20, v20, v15')
    k('v_lshl_add_u32 v25, v9, 12, v15')
    k('s_lshl_b32 s76, s54, 10')
    k('s_add_u32 s77, s76, s55')
    k('v_lshlrev_b32 v15, 5, v5')
    k('v_lshl_add_u32 v15, v6, 3, v15')
    k('v_add_u32 v193, s77, v15')
    k('s_lshl_b32 s77, s52, 12')
    k('s_add_u32 s76, s76, s77')
    k('v_add_u32 v202, s76, v15')
    k('v_lshlrev_b32 v15, 5, v5')
    k('v_lshl_add_u32 v15, v6, 4, v15')
    k('s_lshl_b32 s77, s54, 8')
    k('s_sub_u32 s77, s55, s77')
    k('s_add_u32 s78, s77, %d' % (O_H + 512 - 32 - 192))
    k('v_add_u32 v192, s78, v15')
    k('v_lshlrev_b32 v15, 3, v6')
    k('v_sub_u32 v15, v15, v5')
    k('v_add_u32 v15, 15, v15')
    k('v_and_b32 v194, 1, v15')
    k('v_mul_u32_u24 v194, %d, v194' % O_K1)
    k('v_and_b32 v15, -2, v15')
    k('v_lshl_add_u32 v15, v15, 1, v194')
    k('s_add_u32 s78, s77, %d' % (2 * (2016 - 256 - 96 - 1536)))
    k('v_add_u32 v197, s78, v15')
    for ip in range(3): k('v_add_u32 v%d, %d, v197' % (194 + ip, 1024 * (3 - ip)))
    k('s_lshl_b32 s77, s54, 12')
    k('s_add_u32 s78, s77, s55')
    k('v_add_u32 v198, s78, v11')
    k('s_xor_b32 s77, s77, 0x1000')
    k('s_add_u32 s78, s77, s55')
    k('v_add_u32 v199, s78, v11')
    k('v_and_b32 v15, 1, v6')
    k('v_lshlrev_b32 v15, 3, v15')
    k('v_lshrrev_b32 v200, 1, v5')
    k('v_add_u32 v15, v15, v200')
    k('v_lshlrev_b32 v200, 15, v15')
    k('v_and_b32 v15, 1, v5')
    k('v_lshl_add_u32 v200, v15, 5, v200')
    k('v_lshrrev_b32 v15, 1, v6')
    k('v_lshl_add_u32 v200, v15, 4, v200')
    k('v_add_u32 v201, 0x100000, v200')
    k('s_lshl_b32 s60, s54, 19')
    k('s_lshl_b32 s61, s53, 6')
    k('s_add_u32 s60, s60, s61')
    ws_ptr(k, 66, WS_X1T, 60)
    ws_ptr(k, 68, WS_X1S, 60)
    if not EP:
        k('s_lshl_b32 s60, s6, 15')
        ws_ptr(k, 26, WS_W1P, 60)
    k('s_lshl_b32 s77, s30, 16')
    k('s_and_b32 s74, s30, 0xffff0000')
    k('s_cmp_eq_u32 s52, 0')
    k('s_cselect_b32 s74, s77, s74')
    k('v_bfe_u32 v4, v1, 3, 1')
    k('v_cvt_f32_u32 v4, v4')
    k('v_cmp_gt_u32 vcc, 32, v1')
    k('v_cndmask_b32 v4, 0, v4, vcc')
    k('s_lshl_b32 s60, s34, 4')
    ws_ptr(k, 18, WS_FIN, 60)
    k('s_and_b32 s60, s4, 7')
    k('s_mul_i32 s60, s60, %d' % (2 * 114688))
    k('s_mul_i32 s61, s50, %d' % (28 * 1024))
    k('s_add_u32 s60, s60, s61')
    ws_ptr(k, 32, WS_W2P, 60)
    k('v_add_u32 v219, 114688, v11')
    k.w2v = 219
    k('s_lshl_b32 s60, s3, 10')
    k('v_add_u32 v217, s60, v11')
    k('v_add_u32 v218, 0x%x, v217' % O_F2)
    k('s_lshl_b32 s61, s7, 5')
    k('s_add_u32 s60, s60, s61')
    k('s_add_u32 s60, s60, 0x%x' % (O_FP + 448))
    k('v_and_b32 v217, 7, v1')
    k('v_lshl_add_u32 v217, v217, 2, s60')
    k('s_lshl_b32 s56, s54, 15')
    k('s_lshl_b32 s60, s52, 12')
    k('s_add_u32 s56, s56, s60')
    k('s_lshl_b32 s60, s5, 16')
    k('s_add_u32 s60, s60, s56')
    ws_ptr(k, 28, WS_X1S, 60)

def conv_phase(k):
    XD = k.XD
    w1l = k.w1l
    k.w2q = []
    for ks in range(28): k.w2q += w2_ops(k, ks)
    k.w2n0 = len(k.w2q)
    FPL = 'global_load_dword v204, v217, s[14:15]' + SC
    if E('FP_AT', 2) < 0 and not EP: sync_issue(k, 'fp', FPL)
    k.stamp(6); k.stamp3(14)
    k('s_mov_b32 s80, 0')
    k.wait(vm=k.txl)
    k('L_xv_p:')
    for c in chk_tags([x + 2 for x in XD] + [23] + [83 + 4 * i for i in range(4)], 28): k(c)
    retry_tail(k, 'xv', k.XL + ['s_waitcnt vmcnt(0)'])
    if EP: k.hook = [E('HKN', 10), w1l, 0]
    k.stamp(7)
    k('v_add_f32_dpp v22, v22, v22 quad_perm:[1,0,3,2] row_mask:0xf bank_mask:0xf')
    k('s_lshl_b32 s60, s52, 2')
    k('s_add_u32 s61, s60, 24')
    k('v_add_f32_dpp v22, v22, v22 quad_perm:[2,3,0,1] row_mask:0xf bank_mask:0xf')
    k('s_add_u32 s60, s60, 16')
    k('v_cmp_eq_u32 vcc, 1, v9')
    k('v_add_f32_dpp v22, v22, v22 row_half_mirror row_mask:0xc bank_mask:0xf')
    k('v_cvt_pk_bf16_f32 v22, v22, v22')
    k('v_and_b32 v22, s58, v22')
    k('v_add_f32 v22, v22, v4')
    k('v_cvt_pk_bf16_f32 v22, v22, v22')
    k('v_and_b32 v22, s58, v22')
    k('v_readlane_b32 s62, v22, 0')
    k('v_readlane_b32 s63, v22, 4')
    k('v_readlane_b32 s64, v22, 8')
    k('v_readlane_b32 s65, v22, 12')
    k('v_readlane_b32 s75, v22, s60')
    k('v_readlane_b32 s76, v22, s61')
    k('v_mov_b32 v27, s62')
    k('v_mov_b32 v29, s63')
    k('v_mov_b32 v26, s64')
    k('v_mov_b32 v28, s65')
    k('v_cndmask_b32 v27, v27, v29, vcc')
    k('v_cndmask_b32 v26, v26, v28, vcc')
    for i in range(4):
        k.ds('ds_write_b64 v25, %s offset:%d' % (v(XD[i], 2), L_X + 256 * i))
        for j in range(2):
            r = XD[i] + j
            g = 56 + 4 * j
            tt = 48 + 4 * (j & 1)
            for e in range(3): k('v_mov_b32_dpp v%d, v%d quad_perm:[%d,%d,%d,%d] row_mask:0xf bank_mask:0xf' % (g + e, 80 + 4 * i + e, 2 * j, 2 * j + 1, 2 * j, 2 * j + 1))
            k('v_lshlrev_b32 v%d, 16, v%d' % (tt, r))
            k('v_and_b32 v%d, s58, v%d' % (tt + 1, r))
            k('v_lshlrev_b32 v%d, 16, v%d' % (tt + 2, g + 2))
            k('v_and_b32 v%d, s58, v%d' % (tt + 3, g + 2))
            k('v_pk_fma_f32 %s, %s, %s, %s neg_lo:[0,0,1] neg_hi:[0,0,1]' % (v(tt, 2), v(tt, 2), v(g, 2), v(tt + 2, 2)))
            k('v_pk_fma_f32 %s, %s, v[26:27], v[26:27] op_sel:[0,0,1] op_sel_hi:[1,0,1]' % (v(tt, 2), v(tt, 2)))
            k('v_cvt_pk_bf16_f32 v%d, v%d, v%d' % (XD[i] + 2 + j, tt, tt + 1))
        k.ds('ds_write_b64 v20, %s offset:%d' % (v(XD[i] + 2, 2), L_CV + O_H + 512 + 256 * i))
    k.hook = None
    if E('FP_AT', 2) < 0 and not EP: sync_check(k, 'fp', [FPL], chk_tags([204], 210))
    k.wait_all(vm=False)
    k.barrier()
    if not (9 if EP else E('FPB', 1)): signal(k, 'fp', O_FP, 28, 29)
    k.stamp(9)
    ACC = 32
    def areg(st, p): return 64 + 64 * st + 4 * p
    def breg(st, q): return 96 + 64 * st + 4 * q
    def loads(cc, st, np_):
        L = []
        for p in range(np_):
            off = 128 * (1 - (p & 1)) + 16 * (3 - cc)
            L.append('ds_read2_b32 %s, v%d offset0:%d offset1:%d' % (v(areg(st, p), 2), 194 + (p >> 1), off, off + 1))
            L.append('ds_read2_b32 %s, v%d offset0:%d offset1:%d' % (v(areg(st, p) + 2, 2), 194 + (p >> 1), off + 2, off + 3))
            L.append('ds_read_b128 %s, v192 offset:%d' % (v(breg(st, p), 4), 512 * p + 64 * (3 - cc)))
        return L
    def lv_pairs(lo, hi_):
        P = []
        for lv in range(8):
            for p in range(lv + 1):
                for q in range(lv + 1):
                    if max(p, q) == lv and lo <= p + q <= hi_: P.append((p, q))
        return P
    def loadsA(cc):
        L = []
        st, o4 = cc >> 1, 4 * (cc & 1)
        for p in range(4):
            off = 128 * (1 - (p & 1)) + 16 * (3 - cc)
            L.append('ds_read2_b32 %s, v%d offset0:%d offset1:%d' % (v(areg(st, o4 + p), 2), 194 + (p >> 1), off, off + 1))
            L.append('ds_read2_b32 %s, v%d offset0:%d offset1:%d' % (v(areg(st, o4 + p) + 2, 2), 194 + (p >> 1), off + 2, off + 3))
            L.append('ds_read_b128 %s, v192 offset:%d' % (v(breg(st, o4 + p), 4), 512 * p + 64 * (3 - cc)))
        return L
    tA = {}
    for cc in range(2): tA[cc] = [k.ds(x) for x in loadsA(cc)]
    if E('FP_AT', 2) == 0: sync_issue(k, 'fp', 'global_load_dword v204, v217, s[14:15]' + SC)
    k('s_cmp_lg_u32 s50, 3')
    k('s_cbranch_scc1 L_fin')
    for i, (l0, l1) in enumerate(((32, 40), (24, 28), (48, 56))):
        k('v_readlane_b32 s60, v22, %d' % l0)
        k('v_readlane_b32 s61, v22, %d' % l1)
        k('s_lshr_b32 s60, s60, 16')
        k('s_or_b32 s60, s60, s61')
        k('v_mov_b32 v%d, s60' % (220 + i))
    k('v_mov_b32 v223, s81')
    k('s_mov_b64 exec, 1')
    raw(k, 'global_store_dwordx4 v12, v[220:223], s[18:19]' + SC)
    k('s_mov_b64 exec, -1')
    k('L_fin:')
    seen = set()
    def mf(nt, ar, br):
        c = v(ACC + 4 * nt, 4) if nt in seen else '0'
        seen.add(nt)
        k('v_mfma_f32_16x16x32_bf16 %s, %s, %s, %s' % (v(ACC + 4 * nt, 4), v(ar, 4), v(br, 4), c))
    def hx_reads(ps):
        return (['ds_read_b64 %s, v193 offset:%d' % (v(16 + 2 * j, 2), O_H + 512 + 2048 * ps + 512 * j) for j in range(2)] +
                ['ds_read_b64 %s, v202 offset:%d' % (v(20 + 2 * j, 2), L_X + 2048 * ps + 512 * j) for j in range(2)])
    PA = lv_pairs(0, 3); PB = lv_pairs(4, 7)
    q2 = loadsA(2) + loadsA(3) + hx_reads(0)
    tq = []
    for cc in range(4):
        st, o4 = cc >> 1, 4 * (cc & 1)
        for n, (p, q) in enumerate(PA):
            if cc < 2: k.wait(ds=tA[cc][3 * max(p, q) + 2])
            else: k.wait(ds=tq[12 * (cc - 2) + 3 * max(p, q) + 2])
            mf(p + q, areg(st, o4 + p), breg(st, o4 + q))
            if (E('FP_AT', 2) < 0 or EP) and n % E('W1A', 3) == 0 and cc < E('W1AC', 2): w1l()
            for _ in range(2):
                if q2 and (cc > 0 or n >= 2): tq.append(k.ds(q2.pop(0)))
            if cc == 2 and n == 2: qB = loads(0, 0, 8)
            if cc >= 2 and (cc > 2 or n >= 2):
                for _ in range(2):
                    if qB: k.ds(qB.pop(0))
    assert not q2 and not qB
    def exchange_and_store(ps, lab, mid):
        b = ACC + 16 * ps
        k('s_nop 7')
        k('s_cmp_eq_u32 s54, 0')
        k('s_cbranch_scc0 L_%s_1' % lab)
        for j in range(2): k.ds('ds_write_b128 v198, %s offset:%d' % (v(b + 8 + 4 * j, 4), O_RED + 2048 * ps + 1024 * j))
        for j in range(4): k('v_mov_b64 %s, %s' % (v(224 + 2 * j, 2), v(b + 2 * j, 2)))
        k('s_branch L_%s_2' % lab)
        k('L_%s_1:' % lab)
        k.nds -= 2
        for j in range(2): k.ds('ds_write_b128 v198, %s offset:%d' % (v(b + 4 * j, 4), O_RED + 2048 * ps + 1024 * j))
        for j in range(4): k('v_mov_b64 %s, %s' % (v(224 + 2 * j, 2), v(b + 8 + 2 * j, 2)))
        k('L_%s_2:' % lab)
        k.pre()
        k.wait_all(vm=False)
        k.barrier()
        mid()
        rt_ = [k.ds('ds_read_b128 %s, v199 offset:%d' % (v(232 + 4 * j, 4), O_RED + 2048 * ps + 1024 * j)) for j in range(2)]
        for i in range(4):
            k('v_lshlrev_b32 v%d, 16, v%d' % (240 + 2 * i, 16 + i))
            k('v_and_b32 v%d, s58, v%d' % (241 + 2 * i, 16 + i))
            k('v_pk_fma_f32 %s, %s, s[74:75], %s op_sel_hi:[1,0,1]' % (v(224 + 2 * i, 2), v(240 + 2 * i, 2), v(224 + 2 * i, 2)))
            k('v_lshlrev_b32 v%d, 16, v%d' % (248 + 2 * i, 20 + i))
            k('v_and_b32 v%d, s58, v%d' % (249 + 2 * i, 20 + i))
        k.wait(ds=rt_[1])
        for i in range(4):
            k('v_pk_add_f32 %s, %s, %s' % (v(224 + 2 * i, 2), v(224 + 2 * i, 2), v(232 + 2 * i, 2)))
            k('v_pk_fma_f32 %s, %s, s[74:75], %s op_sel:[0,1,0] op_sel_hi:[1,1,1]' % (v(224 + 2 * i, 2), v(224 + 2 * i, 2), v(248 + 2 * i, 2)))
            k('v_pk_mul_f32 %s, %s, s[76:77] op_sel_hi:[1,0]' % (v(240 + 2 * i, 2), v(224 + 2 * i, 2)))
            k('v_cvt_pk_bf16_f32 v%d, v%d, v%d' % (24 + i, 240 + 2 * i, 241 + 2 * i))
            k('v_cvt_pk_bf16_f32 v%d, v%d, v%d' % (28 + i, 224 + 2 * i, 225 + 2 * i))
        for b_, sp in ((24, 68), (28, 66)):
            k('v_permlane16_swap_b32 v%d, v%d' % (b_, b_ + 2))
            k('v_permlane16_swap_b32 v%d, v%d' % (b_ + 1, b_ + 3))
            t = k.vm('global_store_dwordx4 v%d, %s, s[%d:%d]%s' % (200 + ps, v(b_, 4), sp, sp + 1, SC))
        return t
    FPL = 'global_load_dword v204, v217, s[14:15]' + SC
    FP_AT = E('FP_AT', 2)
    k.pre = (lambda: sync_check(k, 'fp', [FPL], chk_tags([204], 210))) if FP_AT == 0 else (lambda: None)
    tsA = exchange_and_store(0, 'cvA', lambda: None)
    k.pre = lambda: None
    k.stamp(3)
    print('w1 loads before conv B:', len(k.tw1))
    F2A_AT = E('F2A_AT', 2); W1D = E('W1D', 3)
    for cc in range(4):
        st = cc & 1
        nxt = loads(cc + 1, st ^ 1, 8) if cc < 3 else hx_reads(1)
        if cc > 0: k.wait_all(vm=False)
        if cc == FP_AT and cc and not EP: sync_check(k, 'fp', [FPL], chk_tags([204], 210))
        if cc == F2A_AT: k.wait(vm=tsA)
        if cc == F2A_AT or (cc == FP_AT and cc): k.barrier()
        if cc == F2A_AT: signal(k, 'f2a', O_F2, 208, 209)
        for n, (p, q) in enumerate(PB):
            if cc == FP_AT - 2 and n == 10 and not EP: sync_issue(k, 'fp', FPL)
            mf(p + q, areg(st, p), breg(st, q))
            if n >= 1 and nxt: k.ds(nxt.pop(0))
            if cc >= FP_AT and n % W1D == 0:
                if len(k.tw1) < 32: w1l()
                elif k.w2n0 - len(k.w2q) < E('W2C', 0) and cc < 3: k.w2q.pop(0)()
        assert not nxt
    k.stamp(10)
    k.PA = ['global_load_dwordx4 v[72:75], v218, s[14:15]' + SC]
    k.FL = 'global_load_dwordx4 v[164:167], v160, s[48:49]' + SC
    def mid():
        k('v_lshlrev_b32 v160, 4, v0')
        k('v_add_u32 v160, 0x%x, v160' % WS_FIN)
        k.tfin = k.vm(k.FL)
    k.tx1 = exchange_and_store(1, 'cvB', mid)
    if not E('C12POS', 0): sync_issue(k, 'f2a', *k.PA)
    while len(k.tw1) < 32: w1l()

ROT = E('ROT', 0)
def adv(k, p, c):
    if not ROT:
        k('s_add_u32 s%d, s%d, 4096\ns_addc_u32 s%d, s%d, 0' % (p, p, p + 1, p + 1)); return
    k('s_add_u32 s%d, s%d, 1' % (c, c))
    k('s_cmp_eq_u32 s%d, 7' % c)
    k('s_cselect_b32 s12, %d, s32' % (-24576))
    k('s_cselect_b32 s13, -1, 0')
    k('s_cselect_b32 s%d, 0, s%d' % (c, c))
    k('s_add_u32 s%d, s%d, s12' % (p, p))
    k('s_addc_u32 s%d, s%d, s13' % (p + 1, p + 1))

def w2reg(ks): return (a(128 + 8 * ks, 4), a(132 + 8 * ks, 4)) if ks < 16 else (v(160 + 8 * (ks - 16), 4), v(164 + 8 * (ks - 16), 4))
def w2_ops(k, ks):
    ops = []
    if E('NOW2', 0): return ops
    off = (ks & 3) * 1024
    ops.append(lambda: k.vm('global_load_dwordx4 %s, v2, s[32:33] offset:%d%s' % (w2reg(ks)[0], off, W_SC)))
    ops.append(lambda: k.vm('global_load_dwordx4 %s, v%d, s[32:33] offset:%d%s' % (w2reg(ks)[1], k.w2v, off, W_SC)))
    if (ks & 3) == 3 and ks < 27: ops.append(lambda: adv(k, 32, 35))
    return ops

def sync_issue(k, name, *loads):
    k('s_cmp_lg_u32 s50, %d' % SYNCW)
    k('s_cbranch_scc1 L_%s_i' % name)
    for l in loads: raw(k, l)
    k('L_%s_i:' % name)
    k.__dict__.setdefault('pollmark', {})[name] = k.nvm

def sync_check(k, name, loads, check, extra=0):
    k('s_cmp_lg_u32 s50, %d' % SYNCW)
    k('s_cbranch_scc1 L_%s_w' % name)
    k('s_mov_b32 s80, 0')
    k('s_waitcnt vmcnt(%d)' % min(63, k.nvm - k.pollmark[name] + extra))
    k('L_%s_p:' % name)
    for c in check: k(c)
    retry_tail(k, name, list(loads) + ['s_waitcnt vmcnt(0)'], 1)

L_RD = 0

def mlp_phase(k):
    k('v_add_u32 v126, 0x2000, v218')
    PL = lambda r: 'global_load_dwordx4 v[72:75], v%d, s[14:15]%s' % (r, SC)
    k('s_lshl_b32 s8, s3, 2')
    k('s_lshr_b32 s9, s4, 3')
    k('s_add_u32 s8, s8, s9')
    k('s_and_b32 s9, s4, 7')
    k('v_add_u32 v113, 114688, v2')
    k('s_mul_i32 s51, s50, %d' % (28 * 1024))
    if ROT:
        k('s_lshr_b32 s35, s4, 3')
        k('s_lshl_b32 s35, s35, 1')
        k('s_add_u32 s35, s35, s9')
        k('s_cmp_ge_u32 s35, 7')
        k('s_cselect_b32 s60, 7, 0')
        k('s_sub_u32 s35, s35, s60')
        k('s_mov_b32 s33, s35')
        k('s_movk_i32 s32, 4096')
        k('s_lshl_b32 s60, s35, 12')
        k('s_add_u32 s51, s51, s60')
    k.w2v = 113
    k('s_mul_i32 s60, s8, 114688')
    k('s_add_u32 s60, s60, s51')
    ws_ptr(k, 22, WS_HID, 60)
    tr_addr32(k, 4, 1, 8, 9, 6, 8)
    k('v_add_u32 v5, 0x10000, v4')
    k('v_and_b32 v6, 31, v1')
    k('v_lshlrev_b32 v6, 3, v6')
    k('s_mul_i32 s62, s5, %d' % (2 * 114688))
    k('s_lshl_b32 s63, s6, 11')
    k('s_add_u32 s62, s62, s63')
    ws_ptr(k, 68, WS_HID, 62)
    k('s_lshl_b32 s62, s5, 9')
    add_ptr(k, 70, 14, 62)
    k('v_bfe_u32 v16, v1, 4, 1')
    k('v_xor_b32 v16, 1, v16')
    k('v_lshlrev_b32 v16, 10, v16')
    k('v_lshrrev_b32 v17, 5, v1')
    k('v_lshl_add_u32 v16, v17, 4, v16')
    k('v_add_u32 v16, %d, v16' % L_GS)
    k('v_lshlrev_b32 v17, 2, v0')
    k('v_add_u32 v17, %d, v17' % L_GS)
    k('v_lshlrev_b32 v18, 3, v0')
    k('v_add_u32 v18, %d, v18' % (L_GS + 2048))
    k('v_lshrrev_b32 v119, 5, v1')
    k('v_and_b32 v118, 31, v1')
    k('v_lshlrev_b32 v116, 8, v119')
    k('v_lshl_add_u32 v116, v118, 1, v116')
    k('v_lshlrev_b32 v117, 4, v119')
    k('v_lshl_add_u32 v118, v118, 10, v117')
    k('s_lshl_b32 s62, s9, 2')
    k('s_add_u32 s62, s62, s50')
    k('s_lshl_b32 s63, s8, 15')
    k('s_lshl_b32 s60, s62, 10')
    k('s_add_u32 s60, s60, s63')
    ws_ptr(k, 20, WS_X1T, 60)
    k('s_lshl_b32 s60, s62, 6')
    k('s_add_u32 s60, s60, %d' % (L_GS + 2048))
    k('v_add_u32 v117, s60, v117')
    k('s_lshl_b32 s60, s62, 5')
    k('s_add_u32 s60, s60, s63')
    add_ptr(k, 24, P_OUT, 60)
    k('s_lshl_b32 s60, s50, 13')
    k('v_add_u32 v120, s60, v2')
    k('s_lshl_b32 s60, s50, 11')
    k('v_add_u32 v121, s60, v2')
    k('s_lshr_b32 s60, s8, 1')
    k('s_lshl_b32 s60, s60, 6')
    k('s_add_u32 s60, s60, 0x%x' % O_F3)
    k('v_min_u32 v122, 13, v1')
    k('v_lshl_add_u32 v122, v122, 2, s60')
    k('s_lshl_b32 s10, s5, 6')
    k('s_lshl_b32 s61, s7, 2')
    k('s_add_u32 s10, s10, s61')
    k('s_mov_b32 s80, 0')
    k.wait(vm=k.tfin)
    k('L_fin_p:')
    k('v_cmp_ne_u32 vcc, s81, v167')
    retry_tail(k, 'fin', [k.FL, 's_waitcnt vmcnt(0)'])
    k('v_lshlrev_b32 v168, 16, v166')
    k('v_and_b32 v169, 0xffff0000, v166')
    k('v_mul_f32 v168, %s, v168' % f32(-math.log(2.0)))
    k('v_mul_f32 v169, %s, v169' % f32(-math.log(2.0)))
    k.ds('ds_write2st64_b32 v17, v164, v165 offset0:0 offset1:4')
    k.ds('ds_write_b64 v18, v[168:169]')
    C12POS = E('C12POS', 0)
    EARLYA = E('EARLYA', 0)
    def sigB(nm):
        k.wait(vm=k.tx1)
        k.barrier()
        signal(k, nm, O_F2 + 0x2000, 19, 20)
        k.stamp(11)
    k.wait_all(vm=False)
    if not EARLYA: sigB('f2b')
    xq = []
    w2q = k.w2q
    w2done = k.w2n0 - len(w2q)
    w2q0 = w2q if not C12POS else []
    def c12_block():
        gt = [None] * 32
        for s_ in range(8): gt[s_] = k.ds('ds_read_b128 %s, v16 offset:%d' % (v(80 + 4 * (s_ % 8), 4), 32 * s_))
        for s_ in range(32):
            if C12POS and s_ == E('PA_AT', 8): sync_issue(k, 'f2a', *k.PA)
            k.wait(ds=gt[s_], vm=k.tw1[s_])
            k('v_mfma_f32_32x32x16_bf16 v[128:143], %s, %s, %s' % (a(4 * s_, 4), v(80 + 4 * (s_ % 8), 4), '0' if s_ == 0 else 'v[128:143]'))
            if EARLYA and s_ == E('SIGB_AT', 6): sigB('f2b')
            if xq: xq.pop(0)()
            elif w2q0: w2q0.pop(0)()
            if s_ >= 1 and s_ + 7 < 32: gt[s_ + 7] = k.ds('ds_read_b128 %s, v16 offset:%d' % (v(80 + 4 * ((s_ + 7) % 8), 4), 32 * (s_ + 7)))
        k.stamp(8)
    if C12POS: c12_block()
    sync_check(k, 'f2a', k.PA, chk_tags([72, 73, 74, 75], 114), extra=0 if (C12POS or EARLYA) else 1)
    k.barrier()
    k.stamp(12); k.stamp2(1)
    ctok = {}
    def chunk_ops(ps, c):
        ops = [lambda: k('s_add_u32 m0, s56, %d' % (ps * 65536 + c * 8192))]
        def ld(i): ctok[ps, c] = k.vm('global_load_lds_dwordx4 v2, s[28:29] offset:%d%s' % (i * 1024, LD_SC))
        for i in range(4): ops.append(lambda i=i: ld(i))
        if c < 3: ops.append(lambda: k('s_add_u32 s28, s28, 8192\ns_addc_u32 s29, s29, 0'))
        elif ps == 0: ops.append(lambda: k('s_add_u32 s28, s28, %d\ns_addc_u32 s29, s29, 0' % (0x100000 - 3 * 8192)))
        return ops
    k('s_cmp_ge_u32 s4, 28')
    k('s_cbranch_scc1 L_st_a')
    for c in range(4): xq.extend(chunk_ops(0, c))
    for _ in range(len(xq) if C12POS else E('XPRE', 5)): xq.pop(0)()
    k('s_branch L_st_b')
    k('L_st_a:')
    k('s_sub_u32 s11, s4, 28')
    k('s_lshl_b32 s60, s3, 2')
    k('s_add_u32 s11, s11, s60')
    k('s_lshl_b32 s60, s11, 15')
    k('s_lshl_b32 s61, s50, 13')
    k('s_add_u32 s60, s60, s61')
    ws_ptr(k, 28, WS_X1T, 60)
    k('v_add_u32 v7, 0x1000, v2')
    STL = ['global_load_dwordx4 %s, v%d, s[28:29] offset:%d%s' % (v(80 + 4 * i, 4), 2 if i < 4 else 7, (i & 3) * 1024, LD_SC) for i in range(8)]
    for x in STL: raw(k, x)
    if EARLYA:
        k('s_waitcnt vmcnt(8)')
        k.barrier()
        signal(k, 'f2bs', O_F2 + 0x2000, 19, 20)
    k('s_branch L_stats')
    k('L_st_b:')
    if not C12POS: c12_block()
    fix = ['v_mov_b32 v%d, v%d' % (144 + r, 128 + r) for r in range(16)]
    fix += ['v_permlane16_swap_b32 v%d, v%d' % (128 + r, 144 + r) for r in range(16)]
    fix += ['v_mul_f32 v%d, %s, v%d' % (144 + r, f32(-LOG2E), 144 + r) for r in range(16)]
    ACC = 16
    for _ in range(E('W2E', 12) if C12POS else 0):
        if w2q: w2q.pop(0)()
    SL = lambda ps: ['global_load_dwordx2 %s, v6, s[70:71] offset:%d%s' % (v(8 + 2 * u, 2), 256 * u, SC) for u in range(2)]
    htok = {}
    def hload(ps, s_):
        htok[ps, s_] = k.vm('global_load_dwordx4 %s, v2, s[22:23] offset:%d%s' % (a(4 * s_, 4), (s_ & 3) * 1024, LD_SC))
        if (s_ & 3) == 3:
            if s_ < 27: adv(k, 22, 33)
            elif ps == 0:
                if ROT: adv(k, 22, 33); k('s_add_u32 s22, s22, %d\ns_addc_u32 s23, s23, 0' % (32 * 114688))
                else: k('s_add_u32 s22, s22, %d\ns_addc_u32 s23, s23, 0' % (32 * 114688 - 6 * 4096))
    k.hload, k.htok = hload, htok
    F3L = lambda ps: 'global_load_dword v72, v122, s[14:15] offset:%d%s' % (1024 * ps, SC)
    W2D = E('W2D', 2)
    lstA = [None]
    for ps in range(2):
        def breg(s_, u): return 48 + 8 * (s_ % 3) + 4 * u
        rtok = {}
        def rd(s_, u):
            off = u * 32768 + s_ * 1024
            k.ds('ds_read_b64_tr_b16 %s, v%d offset:%d' % (v(breg(s_, u), 2), 4 + ps, off))
            rtok[s_, u] = k.ds('ds_read_b64_tr_b16 %s, v%d offset:%d' % (v(breg(s_, u) + 2, 2), 4 + ps, off + 256))
        k.stamp2(2 + 5 * ps)
        k.wait(vm=ctok[ps, 0]); k.barrier()
        k.stamp2(3 + 5 * ps)
        for s_ in range(2):
            for u in range(2): rd(s_, u)
        pend = []
        gap = 0
        for s_ in range(32):
            if s_ % 8 == 6 and s_ < 30:
                c = s_ // 8 + 1
                if ps == 0 and c == E('F2B_AT', 2): sync_check(k, 'f2b', [PL(126)], chk_tags([72, 73, 74, 75], 80))
                if ps == 1 and c == E('F3A_SIG', 2): k.wait(vm=lstA[0])
                k.wait(vm=ctok[ps, c]); k.barrier()
                if ps == 0 and c == E('F2B_AT', 2):
                    for c2 in range(4): pend += chunk_ops(1, c2)
                if ps == 1 and c == E('F3A_SIG', 2): signal(k, 'f3a', O_F3, 73, 74, nrep=1, sidx=10)
            if ps == 0 and s_ == 8 * E('F2B_AT', 2) - 2 - E('POLLD', 12): sync_issue(k, 'f2b', PL(126))
            if s_ == 16: k.stamp2(4 + 5 * ps)
            if s_ == 22:
                def sl(x): ctok['st'] = k.vm(x)
                for x in SL(ps): pend.append(lambda x=x: sl(x))
            for u in range(2):
                k.wait(ds=rtok[s_, u])
                k('v_mfma_f32_32x32x16_bf16 %s, %s, %s, %s' % (v(ACC + 16 * u, 16), a(4 * s_, 4), v(breg(s_, u), 4), '0' if s_ == 0 else v(ACC + 16 * u, 16)))
                if s_ + 2 < 32: rd(s_ + 2, u)
                if fix and s_ >= 2:
                    for _ in range(2): k(fix.pop(0))
                if pend: pend.pop(0)()
                elif w2q and gap % W2D == 0: w2q.pop(0)()
                gap += 1
        while pend: pend.pop(0)()
        k.stamp(13 if ps == 0 else 14); k.stamp2(5 + 5 * ps)
        k.wait(vm=ctok['st'])
        k('s_mov_b32 s80, 0')
        k('L_chk%d_p:' % ps)
        k('v_min_u32 v80, v9, v11')
        k('v_cmp_eq_u32 vcc, 0, v80')
        retry_tail(k, 'chk%d' % ps, SL(ps) + ['s_waitcnt vmcnt(0)'], 2)
        if ps == 0: k('s_add_u32 s70, s70, 0x2000\ns_addc_u32 s71, s71, 0')
        k('s_nop 7')
        k.stamp2(6 + 5 * ps)
        for u in range(2):
            b = 8 + 2 * u
            A_ = ACC + 16 * u
            for p in range(8):
                x = v(A_ + 2 * p, 2)
                k('v_pk_fma_f32 %s, %s, %s, %s op_sel_hi:[1,0,1] neg_lo:[0,1,0] neg_hi:[0,1,0]' % (x, v(128 + 2 * p, 2), v(b, 2), x))
            for p in range(8):
                x = v(A_ + 2 * p, 2)
                k('v_pk_fma_f32 %s, %s, %s, %s op_sel:[1,0,0] op_sel_hi:[1,1,1]' % (x, v(b, 2), x, v(144 + 2 * p, 2)))
            if ps == 1 and u == E('F3A_U', 0): sync_issue(k, 'f3a', F3L(0))
            W2EP = E('W2EP', 4)
            def tick(r):
                if w2q and W2EP and r % W2EP == W2EP - 1 and (u == 0 or E('W2EU', 0)): w2q.pop(0)()
            for r in range(16):
                k('v_exp_f32 v%d, v%d' % (80 + r, A_ + r)); tick(r)
            for p in range(8): k('v_pk_add_f32 %s, %s, 1.0 op_sel_hi:[1,0]' % (v(80 + 2 * p, 2), v(80 + 2 * p, 2)))
            for r in range(16):
                k('v_rcp_f32 v%d, v%d' % (80 + r, 80 + r)); tick(r)
            for p in range(8): k('v_pk_mul_f32 %s, %s, %s' % (v(A_ + 2 * p, 2), v(A_ + 2 * p, 2), v(80 + 2 * p, 2)))
            O = 96 + 8 * u
            for p in range(8): k('v_cvt_pk_bf16_f32 v%d, v%d, v%d' % (O + p, A_ + 2 * p, A_ + 2 * p + 1))
            k.vm('global_store_dwordx4 v%d, %s, s[68:69]%s' % (2 if u == 0 else 113, v(O, 4), SC))
            lst = k.vm('global_store_dwordx4 v%d, %s, s[68:69] offset:1024%s' % (2 if u == 0 else 113, v(O + 4, 4), SC))
        if ps == 0:
            lstA[0] = lst
            k('s_add_u32 s68, s68, %d\ns_addc_u32 s69, s69, 0' % (32 * 114688))
    print('w2 leftover ops', len(w2q))
    while w2q: w2q.pop(0)()
    sync_check(k, 'f3a', [F3L(0)], ['v_cmp_ne_u32 vcc, s81, v72'])
    k.barrier()
    k('s_add_u32 s10, s10, 1024')
    k('s_branch L_join')
    k('L_stats:')
    k.reset_counters()
    k('s_movk_i32 s10, 2048')
    k('s_lshl_b32 s62, s11, 8')
    add_ptr(k, 70, 14, 62)
    k('s_mov_b32 s62, 0xffff0000')
    k('v_lshlrev_b32 v3, 6, v0')
    k('v_bfe_u32 v4, v1, 3, 2')
    k('v_lshlrev_b32 v4, 6, v4')
    k('v_and_b32 v5, 7, v1')
    k('v_lshl_add_u32 v4, v5, 2, v4')
    k('v_lshrrev_b32 v5, 5, v1')
    k('v_lshl_add_u32 v4, v5, 13, v4')
    for ps in range(2):
        if ps == 1:
            poll(k, 'sf2b', [PL(126)], chk_tags([72, 73, 74, 75], 80))
            k('s_add_u32 s28, s28, 0x100000\ns_addc_u32 s29, s29, 0')
            k('s_add_u32 s70, s70, 0x2000\ns_addc_u32 s71, s71, 0')
        if ps == 0:
            xt = list(range(1, 9)); k.nvm = 8
        else: xt = [k.vm(x) for x in STL]
        for r in range(16): k('v_mov_b32 v%d, 0' % (16 + r))
        for i in range(8):
            k.wait(vm=xt[i])
            for j in range(4):
                r = 80 + 4 * i + j
                tt = 32 + 2 * (j & 1)
                k('v_lshlrev_b32 v%d, 16, v%d' % (tt, r))
                k('v_and_b32 v%d, s62, v%d' % (tt + 1, r))
                k('v_pk_add_f32 %s, %s, %s' % (v(16 + 2 * j, 2), v(16 + 2 * j, 2), v(tt, 2)))
                k('v_pk_fma_f32 %s, %s, %s, %s' % (v(24 + 2 * j, 2), v(tt, 2), v(tt, 2), v(24 + 2 * j, 2)))
        for pat in ('row_ror:4', 'row_ror:8'):
            for r in range(16): k('v_add_f32_dpp v%d, v%d, v%d %s row_mask:0xf bank_mask:0xf' % (16 + r, 16 + r, 16 + r, pat))
        for i in range(4): k.ds('ds_write_b128 v3, %s offset:%d' % (v(16 + 4 * i, 4), 16384 * ps + 16 * i))
        k.wait_all(vm=False)
        k.barrier()
        k('s_cmp_lg_u32 s50, 0')
        k('s_cbranch_scc1 L_st%d' % ps)
        for q in range(8):
            raw(k, 'ds_read_b32 v%d, v4 offset:%d' % (16 + 2 * q, 16384 * ps + 1024 * q))
            raw(k, 'ds_read_b32 v%d, v4 offset:%d' % (17 + 2 * q, 16384 * ps + 1024 * q + 32))
        k('s_waitcnt lgkmcnt(0)')
        for q in range(1, 8): k('v_pk_add_f32 v[16:17], v[16:17], %s' % v(16 + 2 * q, 2))
        k('v_mov_b64 v[18:19], v[16:17]')
        k('v_permlane32_swap_b32 v16, v18')
        k('v_permlane32_swap_b32 v17, v19')
        k('v_pk_add_f32 v[16:17], v[16:17], v[18:19]')
        k('v_mul_f32 v16, %s, v16' % f32(1.0 / 512))
        k('v_mul_f32 v17, %s, v17' % f32(1.0 / 512))
        k('v_fma_f32 v17, -v16, v16, v17')
        k('v_max_f32 v17, 0, v17')
        k('v_add_f32 v17, %s, v17' % f32(1e-5))
        k('v_rsq_f32 v17, v17')
        k('v_mul_f32 v17, %s, v17' % f32(-LOG2E))
        raw(k, 'global_store_dwordx2 v6, v[16:17], s[70:71]' + SC)
        k('L_st%d:' % ps)
    sq = []
    for ks in range(28): sq += w2_ops(k, ks)
    for op in sq[w2done:]: op()
    poll(k, 'sf3a', [F3L(0)], ['v_cmp_ne_u32 vcc, s81, v72'])
    k('L_join:')
    k.stamp(1); k.stamp2(12); k.stamp4(1)
    k.reset_counters()
    htok.clear()
    HA0 = E('HA0', 16)
    for s_ in range(HA0): hload(0, s_)
    for q in range(2): k.ds('ds_read_b128 %s, v117 offset:%d' % (v(96 + 4 * q, 4), 32 * q))
    for r in range(16): k('v_mov_b32 v%d, 0' % (80 + r))
    k('v_add_u32 v115, 0x100000, v116')
    k('v_add_u32 v119, 0x100000, v118')
    k.stamp4(2)
    k('s_waitcnt vmcnt(%d)' % HA0)
    k.barrier()
    signal(k, 'f3b', O_F3, 73, 74, nrep=1, sidx=10)
    aq = [lambda s_=s_: hload(0, s_) for s_ in range(HA0, 28)]
    trs = {}
    def rl(ps, q, r): trs[ps] = k.vm('global_load_short_d16_hi v%d, v%d, s[20:21] offset:%d%s' % (80 + 8 * ps + 4 * q + r, 116 - ps, (8 * q + r) * 64, LD_SC))
    for q in range(2):
        for r in range(4): aq.append(lambda q=q, r=r: rl(0, q, r))
    bq = [lambda q=q, r=r: rl(1, q, r) for q in range(2) for r in range(4)]
    FB = E('F3B_AT', 24); nh = [0]
    for ps in range(2):
        for s_ in range(28):
            k.wait(vm=htok[ps, s_])
            if s_ == 0: k.stamp2(13 + ps)
            if s_ in (0, 8, 16, 24): k.stamp4(3 + 6 * ps + s_ // 8)
            if ps == 0 and s_ == max(0, FB - E('F3B_D', 8)): sync_issue(k, 'f3b', F3L(1))
            if ps == 0 and s_ == FB:
                sync_check(k, 'f3b', [F3L(1)], ['v_cmp_ne_u32 vcc, s81, v72'])
                k.barrier()
                k.stamp(5); k.stamp4(7)
            for j in range(2):
                k('v_mfma_f32_32x32x16_bf16 %s, %s, %s, %s' % (v(ACC + 16 * j, 16), w2reg(s_)[j], a(4 * s_, 4), '0' if s_ == 0 else v(ACC + 16 * j, 16)))
                if ps == 0 and aq and (j == 0 or E('HAJ', 0)): aq.pop(0)()
                if ps == 1 and nh[0] < 28 and (j == 0 or E('HBJ', 0)): hload(1, nh[0]); nh[0] += 1
                elif ps == 1 and bq and s_ >= 10 and j == 0: bq.pop(0)()
                if ps == 0 and s_ >= FB:
                    for _ in range(E('HBR', 1)):
                        if nh[0] < s_ + j: hload(1, nh[0]); nh[0] += 1
        k.stamp4(8 + 5 * ps)
        for q in range(8):
            k.ds('ds_write_b128 v120, %s offset:%d' % (v(ACC + 4 * q, 4), 32768 * ps + q * 1024))
            if ps == 0 and FB < 28 and q % 2 == 1 and nh[0] < 28: hload(1, nh[0]); nh[0] += 1
        if ps == 0 and FB >= 28: sync_check(k, 'f3b', [F3L(1)], ['v_cmp_ne_u32 vcc, s81, v72'])
        k.wait_all(vm=False)
        k.barrier()
        if ps == 0 and FB >= 28:
            k.stamp(5)
            for _ in range(8): hload(1, nh[0]); nh[0] += 1
        if ps == 1: k.stamp4(14)
        rt_ = []
        for w_ in range(4):
            for q in range(2): t = k.ds('ds_read_b128 %s, v121 offset:%d' % (v(48 + 8 * w_ + 4 * q, 4), 32768 * ps + w_ * 8192 + q * 1024))
            rt_.append(t)
        while ps == 0 and nh[0] < E('HB1', 20): hload(1, nh[0]); nh[0] += 1
        k.wait(ds=rt_[1])
        for p in range(4): k('v_pk_add_f32 %s, %s, %s' % (v(48 + 2 * p, 2), v(48 + 2 * p, 2), v(56 + 2 * p, 2)))
        k.wait(ds=rt_[3])
        for p in range(4): k('v_pk_add_f32 %s, %s, %s' % (v(64 + 2 * p, 2), v(64 + 2 * p, 2), v(72 + 2 * p, 2)))
        k.wait(vm=trs[ps])
        for p in range(4):
            k('v_pk_add_f32 %s, %s, %s' % (v(48 + 2 * p, 2), v(48 + 2 * p, 2), v(64 + 2 * p, 2)))
            k('v_pk_fma_f32 %s, %s, %s, %s' % (v(48 + 2 * p, 2), v(48 + 2 * p, 2), v(96 + 2 * p, 2), v(80 + 8 * ps + 2 * p, 2)))
            k('v_cvt_pk_bf16_f32 v%d, v%d, v%d' % (104 + 4 * ps + p, 48 + 2 * p, 49 + 2 * p))
        b = 104 + 4 * ps
        k('v_permlane32_swap_b32 v%d, v%d' % (b, b + 2))
        k('v_permlane32_swap_b32 v%d, v%d' % (b + 1, b + 3))
        k.vm('global_store_dwordx4 v%d, %s, s[24:25]%s' % (118 + ps, v(b, 4), os.environ.get('OUT_SC%d' % ps, '')))

def build_single(path):
    k = Kern(NAME + '_kernel')
    phase0(k); conv_phase(k); mlp_phase(k)
    k.end()
    k('L_end:')
    k('s_endpgm')
    launch, (vg_, sg_, ac) = 'grid=(256,1,1) block=(256,1,1) lds=%d' % LDS_TOTAL, (512, 84, 256)
    out = [HEADER.rstrip(), '; @launch ' + launch, '.amdgcn_target "amdgcn-amd-amdhsa--gfx950"', k.text(vg_, sg_, ac), '.text\nL_text_end:\n    s_endpgm']
    print(k.name, k.stats)
    open(path, 'w').write('\n'.join(out) + '\n')

if __name__ == '__main__':
    build_single(sys.argv[1] if len(sys.argv) > 1 else ('diag.s' if DIAG else 'cdna_kernels/%s.s' % NAME))
```

```python
import os
from gen import *
E = lambda n, d: int(os.environ.get(n, str(d)))
WS_XG = 0x000000
WS_ST1 = 0x800000
WS_MODG = 0x820000
WS_FIN = 0x860000
WS_W1P = 0x1800000
WS_X1S = 0xB00000
WS_SYNC = 0xF00000
O_F2, O_F3 = 0x8000, 0xC000
L_T = 65536
L_CM = 98304; L_SC = 114688
L_STN = 118784; L_STX = 118784 + 8448 + 128
L_CV = 0; CHS = 21120
O_K1 = 4160; O_H = 8320; O_RED = 12928
L_X = 42240
L_W1 = 79872
NW1 = 16
L_SJ = L_W1 + NW1 * 4096
L_GS = L_SJ
LDS_TOTAL = L_SJ + 16384
O_FP = 0x6000
XS = E('XS', 16384 + 384)
SC = ' sc1'
LD_SC = os.environ.get('LD_SC', ' sc1')
W_SC = os.environ.get('W_SC', ' sc1')
TMO = 0x80000
SYNCW = 1
KSPLIT = E('KSPLIT', 1)
EP = E('EP', 0)

def raw(k, s_): k.lines.append('    ' + s_)

def retry_tail(k, name, loads, sleep=0):
    k('s_nop 0')
    k('s_cbranch_vccz L_%s_w' % name)
    k('s_add_u32 s80, s80, 1')
    k('s_cmp_gt_u32 s80, 0x%x' % TMO)
    k('s_cbranch_scc1 L_%s_w' % name)
    if sleep: k('s_sleep %d' % sleep)
    for l in loads: raw(k, l)
    k('s_branch L_%s_p' % name)
    k('L_%s_w:' % name)

def poll(k, name, loads, check):
    k('s_cmp_lg_u32 s50, %d' % SYNCW)
    k('s_cbranch_scc1 L_%s_w' % name)
    k('s_mov_b32 s80, 0')
    for l in loads: raw(k, l)
    k('L_%s_p:' % name)
    k('s_waitcnt vmcnt(0)')
    for c in check: k(c)
    retry_tail(k, name, loads, 1)
    k.barrier()

def signal(k, name, off, va, vd, nrep=8, sidx=None):
    k('s_cmp_lg_u32 s50, %d' % SYNCW)
    k('s_cbranch_scc1 L_%s_s' % name)
    if sidx is None:
        k('s_lshl_b32 s80, s2, 2')
        k('s_add_u32 s80, s80, 0x%x' % off)
    else:
        k('s_add_u32 s80, s%d, 0x%x' % (sidx, off))
    k('v_lshl_add_u32 v%d, v1, 10, s80' % va)
    k('v_mov_b32 v%d, s81' % vd)
    k('s_mov_b64 exec, %d' % ((1 << nrep) - 1))
    raw(k, 'global_store_dword v%d, v%d, s[14:15]%s' % (va, vd, SC))
    k('s_mov_b64 exec, -1')
    k('L_%s_s:' % name)

def chk_tags(regs, t):
    o = ['v_xor_b32 v%d, s81, v%d' % (t, regs[0])]
    for r in regs[1:]:
        o += ['v_xor_b32 v%d, s81, v%d' % (t + 1, r), 'v_or_b32 v%d, v%d, v%d' % (t, t, t + 1)]
    return o + ['v_cmp_ne_u32 vcc, 0, v%d' % t]

def phase0(k):
    load_ptrs(k)
    k('s_getpc_b64 s[82:83]')
    k('L_pf:')
    PFM = E('PFM', 1)
    if PFM == 0:
        k('v_lshlrev_b32 v255, 7, v0')
        k('v_min_u32 v255, L_text_end-L_pf-4, v255')
        raw(k, 'global_load_dword v255, v255, s[82:83]')
    else:
        N = E('PFN', 32)
        k('s_lshr_b32 s4, s2, 3')
        k('s_and_b32 s4, s4, %d' % (256 // N - 1))
        k('s_mul_i32 s4, s4, %d' % (N * 128))
        k('v_subrev_u32 v255, 192, v0')
        k('v_cmp_gt_u32 vcc, %d, v255' % N)
        k('v_lshl_add_u32 v255, v255, 7, s4')
        k('v_min_u32 v255, L_text_end-L_pf-4, v255')
        k('s_and_saveexec_b64 s[80:81], vcc')
        k('s_cbranch_execz L_pf2')
        raw(k, 'global_load_dword v255, v255, s[82:83]')
        k('L_pf2:')
        k('s_mov_b64 exec, -1')
    k('s_cmp_ge_u32 s2, 256')
    k('s_cbranch_scc1 L_end')
    k('s_memrealtime s[78:79]')
    wave_id(k, 50, 1)
    k('v_and_b32 v1, 63, v0')
    k('s_and_b32 s3, s2, 7')
    k('s_lshr_b32 s4, s2, 3')
    k('s_lshl_b32 s51, s3, 5')
    k('s_add_u32 s80, s51, s4')
    k('s_lshl_b32 s51, s80, 9')
    k('v_lshl_add_u32 v2, v0, 1, s51')
    for i in range(4, 11): k('v_mov_b32 v%d, 0' % i)
    k('s_lshr_b32 s52, s50, 1')
    k('s_lshl_b32 s53, s80, 1')
    k('s_add_u32 s53, s53, s52')
    k('s_lshl_b32 s54, s53, 1')
    k('v_mov_b32 v3, s54')
    k('v_lshrrev_b32 v77, 5, v0')
    k('v_and_b32 v78, 31, v0')
    k('v_lshlrev_b32 v78, 4, v78')
    k('v_lshl_add_u32 v79, v77, 10, v78')
    k('s_lshl_b32 s63, s2, 13')
    k('v_add_u32 v79, s63, v79')
    k.smem_wait()
    k('s_mov_b32 s34, s80')
    k('s_or_b32 s78, s78, 1')
    k('s_or_b32 s79, s2, s50')
    k('s_cmp_eq_u32 s79, 0')
    k('s_cbranch_scc0 L_nn')
    k('v_mov_b32 v250, s78')
    k('v_lshlrev_b32 v251, 6, v1')
    k('s_mov_b64 exec, 15')
    raw(k, 'global_store_dword v251, v250, s[%d:%d]%s' % (P_DBG, P_DBG + 1, SC))
    k('s_mov_b64 exec, -1')
    k('L_nn:')
    k.vm('global_load_short_d16_hi v10, v3, s[%d:%d]' % (P_LDT, P_LDT + 1))
    for i, p in enumerate((P_ARE, P_AIM, P_BRE, P_BIM, P_CRE, P_CIM)):
        tpar = k.vm('global_load_short_d16_hi v%d, v2, s[%d:%d]' % (4 + i, p, p + 1))
    k.vm('global_load_dwordx4 v[240:243], v79, s[%d:%d]' % (P_U, P_U + 1))
    tx = k.vm('global_load_dwordx4 v[244:247], v79, s[%d:%d] offset:512' % (P_U, P_U + 1))
    k('s_and_b32 s5, s4, 3')
    k('s_lshl_b32 s5, s5, 3')
    k('s_add_u32 s5, s5, s3')
    k('s_lshl_b32 s5, s5, 1')
    k('s_bfe_u32 s6, s4, 0x10002')
    k('s_add_u32 s5, s5, s6')
    k('s_lshr_b32 s6, s4, 3')
    k('s_cmp_ge_u32 s5, 48')
    k('s_cselect_b32 s7, 16, 0')
    k('s_add_u32 s7, s7, s5')
    k('s_lshl_b32 s7, s7, 6')
    k('s_lshl_b32 s8, s6, 2')
    k('s_add_u32 s8, s8, s50')
    k('s_mul_i32 s9, s8, %d' % (32 * 6144))
    k('s_add_u32 s7, s7, s9')
    k('v_lshrrev_b32 v250, 2, v1')
    k('v_mul_u32_u24 v254, 6144, v250')
    k('v_and_b32 v251, 3, v1')
    k('v_lshl_add_u32 v254, v251, 4, v254')
    k('s_lshl_b32 s9, s50, 12')
    k('s_add_u32 s9, s9, %d' % L_CM)
    k('v_mov_b32 v231, v254')
    k('s_lshl_b32 s8, s8, 6')
    k('s_and_b32 s64, s4, 1')
    k('s_lshl_b32 s64, s64, 3')
    k('s_add_u32 s64, s64, s3')
    k('s_lshl_b32 s64, s64, 1')
    k('s_bfe_u32 s65, s4, 0x10001')
    k('s_add_u32 s64, s64, s65')
    k('s_lshr_b32 s65, s4, 2')
    k('s_cmp_ge_u32 s64, 16')
    k('s_cselect_b32 s66, 64, 48')
    k('s_add_u32 s66, s66, s64')
    k('s_lshl_b32 s66, s66, 6')
    k('s_lshl_b32 s67, s65, 2')
    k('s_add_u32 s67, s67, s50')
    k('s_mul_i32 s68, s67, %d' % (16 * 6144))
    k('s_add_u32 s66, s66, s68')
    k('s_lshl_b32 s67, s67, 5')
    k('s_sub_u32 s67, s67, 64')
    k('v_min_u32 v248, 23, v1')
    k('v_cmp_gt_u32 vcc, 16, v248')
    k('v_mov_b32 v250, s67')
    k('v_mov_b32 v251, s8')
    k('v_cndmask_b32 v250, v250, v251, vcc')
    k('v_lshl_add_u32 v248, v248, 2, v250')
    tc = k.vm('global_load_dword v248, v248, s[%d:%d]' % (P_C, P_C + 1))
    k('s_lshl_b32 s60, s34, 2')
    k('s_load_dword s30, s[%d:%d], s60' % (P_DSK, P_DSK + 1))
    if E('W1T', 0):
        k('s_and_b32 s75, s3, 1')
        k('s_mul_i32 s75, s75, 7')
        k('s_lshr_b32 s76, s4, 2')
        k('s_add_u32 s75, s75, s76')
        k('s_min_u32 s75, s75, 13')
        k('s_lshl_b32 s75, s75, 8')
        k('s_and_b32 s76, s4, 3')
        k('s_mul_i32 s76, s76, %d' % (128 * 3584))
        k('s_add_u32 s75, s75, s76')
        k('v_lshrrev_b32 v237, 1, v0')
        k('v_mul_u32_u24 v237, 3584, v237')
        k('v_and_b32 v238, 1, v0')
        k('v_lshl_add_u32 v237, v238, 7, v237')
        k('v_add_u32 v237, s75, v237')
        k.vm('global_load_dword a200, v237, s[%d:%d]' % (P_W1, P_W1 + 1))
    if E('W2T', 0):
        k('s_min_u32 s75, s2, 111')
        k('s_lshl_b32 s75, s75, 14')
        k('v_and_b32 v238, 127, v0')
        k('v_lshl_add_u32 v238, v238, 7, s75')
        k.vm('global_load_dword a201, v238, s[%d:%d]' % (P_W2, P_W2 + 1))
    k('s_cmp_lt_u32 s2, 112')
    k('s_cbranch_scc0 L_pj_w1')
    k('s_lshl_b32 s76, s2, 14')
    k('s_lshl_b32 s70, s50, 12')
    k('s_add_u32 s76, s76, s70')
    add_ptr(k, 72, P_W2, 76)
    k('s_add_u32 s31, s70, %d' % L_SJ)
    k('s_movk_i32 s79, 1024')
    for r in range(4):
        k('v_xor_b32 v%d, %d, v1' % (224 + r, r << 2))
        k('v_lshlrev_b32 v%d, 4, v%d' % (224 + r, 224 + r))
        if r: k('v_add_u32 v%d, %d, v%d' % (224 + r, 1024 * r, 224 + r))
    k('s_branch L_pj_go')
    k('L_pj_w1:')
    k('s_sub_u32 s75, s2, 112')
    k('s_min_u32 s75, s75, 111')
    k('s_and_b32 s26, s75, 7')
    k('s_lshr_b32 s27, s75, 3')
    k('s_lshl_b32 s75, s26, 4')
    k('s_add_u32 s75, s75, s50')
    k('s_mul_i32 s75, s75, %d' % (4 * 3584))
    k('s_lshl_b32 s76, s27, 8')
    k('s_add_u32 s75, s75, s76')
    add_ptr(k, 72, P_W1, 75)
    k('s_lshl_b32 s31, s50, 10')
    k('s_add_u32 s31, s31, %d' % L_SJ)
    k('s_movk_i32 s79, 4096')
    k('v_lshrrev_b32 v228, 4, v1')
    k('v_and_b32 v229, 15, v1')
    k('v_lshlrev_b32 v230, 2, v228')
    k('v_xor_b32 v230, v230, v229')
    k('v_mul_u32_u24 v224, 3584, v228')
    k('v_lshl_add_u32 v224, v230, 4, v224')
    for r in range(1, 4): k('v_add_u32 v%d, %d, v224' % (224 + r, r * 16 * 3584))
    k('L_pj_go:')
    def pkdma(r):
        k('s_mov_b32 m0, s31')
        k.tpk = k.vm('global_load_lds_dwordx4 v%d, s[72:73]' % (224 + r))
        k('s_add_u32 s31, s31, s79')
    SNON = 0
    if SNON:
        add_ptr(k, 10, P_WMOD, 7)
        k('s_mov_b32 m0, s9')
        k.vm('global_load_lds_dwordx4 v231, s[10:11]')
        k('s_add_u32 s10, s10, %d' % (16 * 6144 - 1024))
        k('s_addc_u32 s11, s11, 0')
        k.vm('global_load_lds_dwordx4 v231, s[10:11] offset:1024')
        add_ptr(k, 10, P_WMOD, 66)
        k('s_add_u32 m0, s9, 2048')
        tcm = k.vm('global_load_lds_dwordx4 v231, s[10:11]')
        for r in range(4): pkdma(r)
    k('s_and_b32 s75, s5, 15')
    k('s_lshl_b32 s75, s75, 13')
    k('s_lshr_b32 s76, s5, 4')
    k('s_lshl_b32 s76, s76, 6')
    k('s_add_u32 s75, s75, s76')
    k('s_lshl_b32 s76, s6, 3')
    k('s_add_u32 s75, s75, s76')
    k('s_and_b32 s76, s64, 15')
    k('s_lshl_b32 s76, s76, 13')
    k('s_lshr_b32 s77, s64, 4')
    k('s_lshl_b32 s77, s77, 7')
    k('s_add_u32 s76, s76, s77')
    k('s_lshl_b32 s77, s65, 3')
    k('s_add_u32 s76, s76, s77')
    k('s_add_u32 s76, s76, 256')
    k('s_cmp_eq_u32 s50, 0')
    k('s_cselect_b32 s75, s75, s76')
    ws_ptr(k, 16, WS_MODG, 75)
    k('v_mov_b32 v12, 0\nv_mov_b32 v13, 0\nv_mov_b32 v14, 0\nv_mov_b32 v15, 0')
    ws_ptr(k, 14, WS_SYNC)
    tr_addr32(k, 254, 1, 250, 251, 6, 8)
    k('v_add_u32 v254, s9, v254')
    k('v_and_b32 v40, 31, v1')
    k('v_lshrrev_b32 v41, 5, v1')
    k('v_lshrrev_b32 v253, 1, v40')
    k('v_lshlrev_b32 v253, 9, v253')
    k('v_and_b32 v250, 1, v40')
    k('s_add_u32 s75, s50, 5')
    k('v_lshlrev_b32 v250, s75, v250')
    k('v_add_u32 v253, v253, v250')
    k('v_mul_u32_u24 v11, 1056, v77')
    k('v_add_u32 v11, v11, v78')
    k('v_add_u32 v11, %d, v11' % L_STN)
    k('v_bfe_u32 v56, v1, 2, 3')
    k('v_mul_u32_u24 v236, 1056, v56')
    k('v_and_b32 v57, 3, v1')
    k('v_lshl_add_u32 v236, v57, 3, v236')
    k('v_lshl_add_u32 v236, v41, 5, v236')
    k('s_lshl_b32 s75, s50, 8')
    k('s_add_u32 s75, s75, %d' % L_STN)
    k('v_add_u32 v236, s75, v236')
    k('v_and_b32 v57, 15, v1')
    k('v_lshl_add_u32 v57, v41, 4, v57')
    k('v_lshlrev_b32 v235, 5, v57')
    k('v_bfe_u32 v57, v1, 4, 1')
    k('v_lshl_add_u32 v235, v57, 4, v235')
    k('s_lshl_b32 s75, s2, 10')
    k('s_lshl_b32 s76, s50, 20')
    k('s_add_u32 s75, s75, s76')
    ws_ptr(k, 12, WS_XG, 75)
    k('s_lshl_b32 s75, s2, 6')
    k('s_lshl_b32 s76, s50, 4')
    k('s_add_u32 s75, s75, s76')
    ws_ptr(k, 24, WS_ST1, 75)
    k('s_mov_b32 s58, 0xffff0000')
    k('s_mov_b32 s63, 0x3f803f80')
    k('v_lshlrev_b32 v249, 2, v0')
    k('v_add_u32 v249, %d, v249' % L_SC)
    k('v_lshlrev_b32 v233, 4, v41')
    k('s_lshl_b32 s75, s50, 8')
    k('s_add_u32 s75, s75, %d' % L_SC)
    k('v_add_u32 v233, s75, v233')
    k('s_lshl_b32 s75, s50, 10')
    k('v_lshl_add_u32 v252, v1, 2, s75')
    k('v_add_u32 v252, %d, v252' % (L_SC + 1024))
    k('s_lshl_b32 s55, s50, 14')
    k('v_lshl_add_u32 v16, v1, 2, s55')
    for r in range(1, 16): k('v_xor_b32 v%d, %d, v16' % (16 + r, r << 4))
    k('v_and_b32 v42, 15, v1')
    k('v_xor_b32 v42, v42, v41')
    k('v_lshlrev_b32 v42, 4, v42')
    k('v_lshl_add_u32 v42, v40, 8, v42')
    k('v_add_u32 v32, s55, v42')
    for ks in range(1, 8): k('v_xor_b32 v%d, %d, v32' % (32 + ks, ks << 5))
    TP = E('TPAD', 1)
    k('s_mul_i32 s56, s52, 7168')
    k('s_add_u32 s56, s56, %d' % ((L_T - (0x3F00 + (0x3F00 >> 5 if TP else 0)) * 4) & 0xffffffff))
    k('v_lshlrev_b32 v42, 3, v40')
    k('v_cvt_f32_u32 v42, v42')
    k('v_cvt_f32_u32 v43, v41')
    c0 = [0, 1, 2, 3, 256, 258, 260, 262]
    c1 = [4, 5, 6, 7, 512, 516, 768, 772]
    for r in range(8):
        k('v_fmamk_f32 v56, v43, %s, v42' % f32(c1[r] - c0[r]))
        if c0[r]: k('v_add_f32 v56, %s, v56' % f32(c0[r]))
        else: k('v_max_f32 v56, 0.5, v56')
        k('v_cvt_pk_bf16_f32 v56, v56, 0')
        if TP: k('v_lshrrev_b32 v77, 5, v56'); k('v_add_u32 v56, v56, v77')
        k('v_lshl_add_u32 v%d, v56, 2, s56' % (44 + r))
    k('v_cmp_eq_u32 vcc, 32, v1')
    k('v_fmaak_f32 v57, 4.0, v42, %s' % f32(4096.0))
    k('v_mov_b32 v58, %s' % f32(2048.0))
    k('v_cndmask_b32 v58, v57, v58, vcc')
    k('v_cmp_lt_u32 vcc, 31, v1')
    for r in range(8, 12):
        k('v_add_f32 v56, %s, v42' % f32(1024 + 256 * (r - 8)))
        k('v_cndmask_b32 v56, v56, v%d, vcc' % (58 if r == 8 else 57))
        k('v_cvt_pk_bf16_f32 v56, v56, 0')
        if TP: k('v_lshrrev_b32 v77, 5, v56'); k('v_add_u32 v56, v56, v77')
        k('v_lshl_add_u32 v%d, v56, 2, s56' % (44 + r))
    k('v_and_b32 v59, 127, v0')
    late = []
    Lx = (lambda x: late.append(x)) if E('LATEG', 1) else k
    Lx('v_lshlrev_b32 v56, 4, v59')
    Lx('v_sub_u32 v56, 2047, v56')
    Lx('v_cvt_f32_u32 v57, v56')
    for i in range(17):
        if i: Lx('v_add_f32 v56, %s, v57' % f32(-float(i)))
        else: Lx('v_mov_b32 v56, v57')
        if i >= 15: Lx('v_max_f32 v56, 0.5, v56')
        Lx('v_cvt_pk_bf16_f32 v56, v56, 0')
        if TP: Lx('v_lshrrev_b32 v77, 5, v56'); Lx('v_add_u32 v56, v56, v77')
        Lx('v_lshl_add_u32 v%d, v56, 2, s56' % (60 + i))
    k('s_mov_b32 s57, 0x07060302')
    k('s_mov_b32 s59, %s' % f32(LOG2E))
    lo_log2e = LOG2E - struct.unpack('<f', struct.pack('<f', LOG2E))[0]
    inv2pi = 1.0 / (2 * math.pi)
    inv2pi_f = struct.unpack('<f', struct.pack('<f', inv2pi))[0]
    k('s_mov_b32 s60, %s' % f32(inv2pi_f))
    k('s_mov_b32 s61, %s' % f32(inv2pi - inv2pi_f))
    k('s_mov_b32 s62, %s' % f32(lo_log2e))
    k('s_lshl_b32 s75, s50, 6')
    k('v_mov_b32 v234, s75')
    NL = 'global_load_dword v232, v234, s[%d:%d]%s' % (P_DBG, P_DBG + 1, SC)
    if not SNON:
        tn = k.vm(NL)
        if EP:
            for r in range(4): pkdma(r)
        add_ptr(k, 10, P_WMOD, 7)
        k('s_mov_b32 m0, s9')
        k.vm('global_load_lds_dwordx4 v231, s[10:11]')
        k('s_add_u32 s10, s10, %d' % (16 * 6144 - 1024))
        k('s_addc_u32 s11, s11, 0')
        k.vm('global_load_lds_dwordx4 v231, s[10:11] offset:1024')
        add_ptr(k, 10, P_WMOD, 66)
        k('s_add_u32 m0, s9, 2048')
        tcm = k.vm('global_load_lds_dwordx4 v231, s[10:11]')
        if not EP:
            for r in range(4): pkdma(r)
    k('s_cmp_lt_u32 s2, 112')
    k('s_cbranch_scc0 L_pa_w1')
    tr_addr32(k, 224, 1, 250, 251, 10, 4)
    k('s_lshl_b32 s76, s50, 8')
    k('s_add_u32 s76, s76, %d' % L_SJ)
    k('v_add_u32 v224, s76, v224')
    k('v_bfe_u32 v251, v1, 2, 2')
    k('v_lshlrev_b32 v251, 6, v251')
    k('v_xor_b32 v224, v224, v251')
    for q in range(1, 4): k('v_xor_b32 v%d, %d, v224' % (224 + q, q << 6))
    k('s_mul_i32 s76, s50, %d' % (4 * 114688))
    k('s_lshl_b32 s75, s2, 10')
    k('s_add_u32 s76, s76, s75')
    ws_ptr(k, 70, WS_W2P, 76)
    k('s_mov_b32 s75, 114688')
    k('s_movk_i32 s76, 8192')
    k('s_branch L_pa_go')
    k('L_pa_w1:')
    tr_addr32(k, 224, 1, 250, 251, 8, 8)
    k('v_bfe_u32 v251, v1, 2, 2')
    k('v_xor_b32 v251, s50, v251')
    k('v_lshl_add_u32 v224, v251, 6, v224')
    k('v_add_u32 v224, %d, v224' % L_SJ)
    for q in range(1, 4): k('v_add_u32 v%d, %d, v224' % (224 + q, q * 4096))
    k('s_lshl_b32 s76, s27, 2')
    k('s_add_u32 s76, s76, s50')
    k('s_lshl_b32 s76, s76, 15')
    k('s_lshl_b32 s75, s26, 12')
    k('s_add_u32 s76, s76, s75')
    ws_ptr(k, 70, WS_W1P, 76)
    k('s_movk_i32 s75, 1024')
    k('s_movk_i32 s76, 1024')
    k('L_pa_go:')
    for q in range(4): k('v_add_u32 v%d, s76, v%d' % (228 + q, 224 + q))
    k('v_lshlrev_b32 v223, 4, v1')
    k('v_add_u32 v237, s75, v223')
    k('v_add_u32 v238, s75, v237')
    k('v_add_u32 v239, s75, v238')
    k('s_lshr_b32 s5, s3, 1')
    k('s_lshl_b32 s5, s5, 2')
    k('s_and_b32 s75, s4, 3')
    k('s_add_u32 s5, s5, s75')
    k('s_and_b32 s7, s3, 1')
    k('s_mul_i32 s7, s7, 7')
    k('s_lshr_b32 s75, s4, 2')
    k('s_add_u32 s7, s7, s75')
    k('s_min_u32 s7, s7, 13')
    k('s_lshl_b32 s6, s7, 2')
    k('s_add_u32 s6, s6, s50')
    k.smem_wait()
    k.wait(vm=tpar)
    k('v_mov_b32 v255, v223')
    k.stamp(2); k.stamp3(1)
    if SNON: k('s_load_dword s81, s[%d:%d], 0 glc' % (P_DBG, P_DBG + 1))
    k('v_mul_f32 v78, s59, v10')
    k('v_fma_f32 v79, v10, s59, -v78')
    k('v_fma_f32 v79, v10, s62, v79')
    k('v_exp_f32 v78, v78')
    k('v_mul_f32 v79, %s, v79' % f32(math.log(2.0)))
    k('v_fma_f32 v78, v78, v79, v78')
    k('v_cvt_pk_bf16_f32 v78, v78, v78')
    k('v_and_b32 v78, s58, v78')
    k('v_mul_f32 v4, v78, v4')
    k('v_mul_f32 v5, v78, v5')
    k('v_mul_f32 v152, v78, v6')
    k('v_mul_f32 v154, v78, v7')
    E0 = 96
    cmul1(k, E0, 8, 152); cmul2(k, E0, 8, 152)
    k('v_mul_f32 v4, s59, v4')
    Z1, Z256, Z8, Z128 = 80, 84, 152, 156
    def zpow(dst, p, conj, t):
        pf = f32(float(p))
        return ['v_mul_f32 v%d, %s, v4' % (t, pf), 'v_mul_f32 v%d, %s, v5' % (t + 1, pf), 'v_exp_f32 v%d, v%d' % (t, t),
                'v_mul_f32 v%d, s60, v%d' % (t + 2, t + 1), 'v_fma_f32 v%d, v%d, s60, -v%d' % (t + 3, t + 1, t + 2),
                'v_fma_f32 v%d, v%d, s61, v%d' % (t + 3, t + 1, t + 3), 'v_fract_f32 v%d, v%d' % (t + 2, t + 2),
                'v_add_f32 v%d, v%d, v%d' % (t + 2, t + 2, t + 3), 'v_cos_f32 v%d, v%d' % (t + 3, t + 2), 'v_sin_f32 v%d, v%d' % (t + 2, t + 2),
                'v_mul_f32 v%d, v%d, v%d' % (dst, t, t + 3), 'v_mul_f32 v%d, v%d, %sv%d' % (dst + 2, t, '-' if conj else '', t + 2)]
    for p_, q_ in ((zpow(Z1, 1, False, 88), zpow(Z256, 256, False, 92)), (zpow(Z8, 8, True, 88), zpow(Z128, 128, True, 92))):
        for x, y in zip(p_, q_): k(x); k(y)
    T0 = 140
    def split_a(e, i):
        t = T0 + 6 * (i & 1)
        if not KSPLIT:
            k('v_cvt_pk_bf16_f32 v%d, v%d, v%d' % (t + 4, e, e + 1)); return
        k('v_perm_b32 v%d, v%d, v%d, s57' % (t + 4, e + 1, e))
        k('v_and_b32 v%d, s58, v%d' % (t, e))
        k('v_and_b32 v%d, s58, v%d' % (t + 1, e + 1))
    def split_b(e, i, row):
        t = T0 + 6 * (i & 1)
        if not KSPLIT: return k.ds('ds_write_b32 v%d, v%d offset:%d' % (16 + (row & 15), t + 4, row * 256))
        k('v_pk_add_f32 %s, %s, %s neg_lo:[0,1] neg_hi:[0,1]' % (v(t + 2, 2), v(e, 2), v(t, 2)))
        k('v_cvt_pk_bf16_f32 v%d, v%d, v%d' % (t + 5, t + 2, t + 3))
        return k.ds('ds_write2st64_b32 v%d, v%d, v%d offset0:%d offset1:%d' % (16 + (row & 15), t + 4, t + 5, row, 32 + row))
    hi = {r: (r - 1, Z1) for r in range(1, 8)}
    hi.update({8: (0, Z256), 9: (2, Z256), 10: (4, Z256), 11: (6, Z256), 12: (8, Z256), 13: (10, Z256), 14: (12, Z256), 15: (13, Z256),
               16: (14, Z256), 17: (16, Z256), 18: (17, Z256), 19: (18, Z256), 20: (19, Z256)})
    order = [0, 1, 8, 2, 12, 3, 14, 4, 16, 5, 17, 6, 18, 7, 19, 9, 20, 10, 11, 13, 15]
    for i, r in enumerate(order):
        nxt = order[i + 1] if i + 1 < len(order) else None
        if nxt is not None: cmul1(k, E0 + 2 * nxt, E0 + 2 * hi[nxt][0], hi[nxt][1])
        split_a(E0 + 2 * r, i)
        if nxt is not None: cmul2(k, E0 + 2 * nxt, E0 + 2 * hi[nxt][0], hi[nxt][1])
        split_b(E0 + 2 * r, i, r)
    AH, AL = 160, 192
    for ks in range(8):
        k.ds('ds_read_b128 %s, v%d' % (v(AH + 4 * ks, 4), 32 + ks))
        if KSPLIT: k.ds('ds_read_b128 %s, v%d offset:8192' % (v(AL + 4 * ks, 4), 32 + ks))
    for i in range(4): k('v_mov_b32 v%d, 0' % (96 + i))
    k.stamp3(2)
    k.wait(vm=tx)
    k.stamp3(3)
    for i in range(2): k.ds('ds_write_b128 v11, %s offset:%d' % (v(240 + 4 * i, 4), 512 * i))
    for j in range(8):
        k('v_dot2c_f32_bf16 v%d, s63, v%d' % (96 + (j & 1), 240 + j))
        k('v_dot2c_f32_bf16 v%d, v%d, v%d' % (98 + (j & 1), 240 + j, 240 + j))
    if SNON:
        k.wait(vm=tc)
        k.smem_wait()
        k('v_mov_b32 v232, s81')
    else: k.wait(vm=tn)
    k('s_mov_b32 s80, 0')
    k('L_non_p:')
    k('v_cmp_eq_u32 vcc, 0, v232')
    retry_tail(k, 'non', [NL, 's_waitcnt vmcnt(0)'])
    k('v_readfirstlane_b32 s81, v232')
    k.stamp3(4)
    GR = [100 + 4 * q for q in range(3)] + [120]
    for q in range(4): k('v_mov_b32 v%d, v232\nv_mov_b32 v%d, v232' % (GR[q] + 2, GR[q] + 3))
    if EP: k.wait(vm=k.tpk)
    k.wait_all(vm=False)
    k.barrier()
    tq = [k.ds('ds_read_b64_tr_b16 %s, v236 offset:%d' % (v(GR[q], 2), 64 * q)) for q in range(4)]
    k('v_lshlrev_b32 v116, 16, v248')
    k('v_and_b32 v117, s58, v248')
    k('v_add_f32 v96, v96, v97')
    k('v_add_f32 v98, v98, v99')
    nm = 'v_mul_f32 v%%d, %s, v%%d' % f32(-LOG2E)
    silu = [nm % (118, 116), nm % (119, 117), 'v_exp_f32 v118, v118', 'v_exp_f32 v119, v119', 'v_add_f32 v118, 1.0, v118', 'v_add_f32 v119, 1.0, v119',
            'v_rcp_f32 v118, v118', 'v_rcp_f32 v119, v119', 'v_mul_f32 v116, v116, v118', 'v_mul_f32 v117, v117, v119', 'v_cvt_pk_bf16_f32 v116, v116, v117']
    for pat in ('quad_perm:[1,0,3,2]', 'quad_perm:[2,3,0,1]', 'row_half_mirror', 'row_mirror'):
        k(silu.pop(0)); k(silu.pop(0))
        k('v_add_f32_dpp v96, v96, v96 %s row_mask:0xf bank_mask:0xf' % pat)
        k('v_add_f32_dpp v98, v98, v98 %s row_mask:0xf bank_mask:0xf' % pat)
    k('v_mov_b32 v97, v96')
    k('v_mov_b32 v99, v98')
    for q in range(4):
        k.wait(ds=tq[q])
        k.vm('global_store_dwordx4 v235, %s, s[12:13]%s' % (v(GR[q], 4), SC))
        if q < 3: k('s_add_u32 s12, s12, 0x40000'); k('s_addc_u32 s13, s13, 0')
    while silu: k(silu.pop(0))
    k.ds('ds_write_b32 v249, v116')
    k('v_permlane16_swap_b32 v96, v97')
    k('v_permlane16_swap_b32 v98, v99')
    for ks in range(3): k.ds('ds_read_b128 %s, v233 offset:%d' % (a(32 + 4 * ks, 4), 32 * ks))
    k('v_add_f32 v96, v96, v97')
    k('v_add_f32 v98, v98, v99')
    k('v_mul_f32 v96, %s, v96' % f32(1.0 / 512))
    k('v_mul_f32 v98, %s, v98' % f32(1.0 / 512))
    k('v_fma_f32 v98, -v96, v96, v98')
    k('v_max_f32 v98, 0, v98')
    k('v_add_f32 v98, %s, v98' % f32(1e-5))
    k('v_rsq_f32 v240, v98')
    k('v_mul_f32 v242, v96, v240')
    k('v_mov_b32 v241, v240')
    k('v_mov_b32 v243, v242')
    k('v_permlane32_swap_b32 v240, v241')
    k('v_permlane32_swap_b32 v242, v243')
    k('v_cvt_pk_bf16_f32 v242, v242, v243')
    k('v_mov_b32 v243, v232')
    k('s_mov_b64 exec, 1')
    k.vm('global_store_dwordx4 v12, v[240:243], s[24:25]' + SC)
    k('s_mov_b64 exec, -1')
    def mod_a():
        k.stamp3(6)
        k.wait(vm=tcm)
        k.stamp3(7)
        for ks in range(3):
            k.ds('ds_read_b64_tr_b16 %s, v254 offset:%d' % (a(48 + 4 * ks, 2), ks * 1024))
            k.tmr = k.ds('ds_read_b64_tr_b16 %s, v254 offset:%d' % (a(50 + 4 * ks, 2), ks * 1024 + 256))
    def mod_b():
        k.wait(ds=k.tmr)
        k('v_mfma_f32_32x32x16_bf16 a[64:79], a[32:35], a[48:51], 0')
        k('v_mfma_f32_32x32x16_bf16 a[80:95], a[40:43], a[56:59], 0')
        k('v_mfma_f32_32x32x16_bf16 a[64:79], a[36:39], a[52:55], a[64:79]')
    def mod_c():
        k.ds('ds_write_b32 v249, a80 offset:2048')
        k.ds('ds_write_b32 v249, a64 offset:1024')
        k.stamp3(8)
        k.wait_all(vm=False)
        k.barrier()
        k.stamp3(9)
        for i in range(4): k.tp = k.ds('ds_read_b32 v%d, v252 offset:%d' % (244 + i, 256 * i))
    def mod_d():
        k.wait(ds=k.tp)
        k('s_cmp_ge_u32 s50, 2')
        k('s_cbranch_scc1 L_cm2')
        k('v_add_f32 v244, v244, v245')
        k('v_add_f32 v246, v246, v247')
        k('v_add_f32 v244, v244, v246')
        k('v_mov_b32 v245, v232')
        raw(k, 'global_store_dwordx2 v253, v[244:245], s[16:17]' + SC)
        k('s_branch L_cm3')
        k('L_cm2:')
        k('v_and_b32 v246, 15, v1')
        k('s_lshl_b32 s75, s2, 6')
        k('v_lshl_add_u32 v246, v246, 2, s75')
        raw(k, 'global_store_dword v246, v12, s[14:15]' + SC)
        k('L_cm3:')
        k.nvm += 1
    def pack_out():
        for q in range(4):
            k.ds('ds_read_b64_tr_b16 %s, v%d' % (a(4 * q, 2), 224 + q))
            pt = k.ds('ds_read_b64_tr_b16 %s, v%d' % (a(4 * q + 2, 2), 228 + q))
        k.wait(ds=pt)
        k('s_cmp_ge_u32 s2, 224')
        k('s_cbranch_scc1 L_pk_no')
        for q in range(4): raw(k, 'global_store_dwordx4 v%d, %s, s[70:71]%s' % (255 if q == 0 else 236 + q, a(4 * q, 4), SC))
        k('L_pk_no:')
        k.tall = k.nvm
    if EP: k.wait(vm=tcm); pack_out()
    k('s_nop 1')
    k.stamp(4); k.stamp3(5)
    eq = []
    L0 = 96
    k('v_mov_b32 v%d, 1.0' % L0)
    k('v_mov_b32 v%d, 0' % (L0 + 1))
    lo_order = []
    for m in range(16): lo_order += [m, 16 + m]
    def lreg(m): return L0 + 2 * m if m < 16 else 132 + 2 * (m & 1)
    def lsrc(m): return (lreg(m - 1), Z8) if m < 16 else (lreg(m - 16), Z128)
    for i, m in enumerate(lo_order):
        nxt = lo_order[i + 1] if i + 1 < len(lo_order) else None
        if nxt is not None: cmul1(k, lreg(nxt), *lsrc(nxt))
        split_a(lreg(m), i)
        if nxt is not None: cmul2(k, lreg(nxt), *lsrc(nxt))
        split_b(lreg(m), i, m)
        M0 = E('MODAT', 2)
        if i == M0: mod_a()
        if i == M0 + 2: mod_b()
        if i == M0 + 5: mod_c()
        if i == M0 + 7: mod_d()
        if i == E('PKO', 20) and not EP:
            k.wait(vm=k.tpk); k.barrier(); pack_out()
        if EP and i == E('FPE', 22):
            k('s_waitcnt vmcnt(%d)' % (k.nvm - k.tall))
            k.barrier()
            signal(k, 'fp', O_FP, 250, 251)
    while eq: eq.pop(0)()
    if (9 if EP else E('FPB', 1)) == 3:
        k.wait_all(vm=True, ds=False)
        k.barrier()
        signal(k, 'fp', O_FP, 250, 251)
    k.stamp3(10)
    ACC = 224
    bt = []
    k.wait_all(vm=False, ds=True)
    for ks in range(8):
        t = k.ds('ds_read_b128 %s, v%d' % (v(96 + 8 * ks, 4), 32 + ks))
        if KSPLIT: t = k.ds('ds_read_b128 %s, v%d offset:8192' % (v(100 + 8 * ks, 4), 32 + ks))
        bt.append(t)
    fill = []
    F = lambda x: fill.append(x)
    F('v_lshrrev_b32 v7, 2, v1'); F('v_and_b32 v8, 3, v1'); F('v_lshlrev_b32 v16, 10, v7'); F('v_lshl_add_u32 v16, v8, 4, v16')
    F('s_lshl_b32 s60, s50, 16\ns_lshr_b32 s61, s34, 4\ns_lshl_b32 s61, s61, 18\ns_add_u32 s60, s60, s61')
    F('s_and_b32 s61, s34, 15\ns_lshl_b32 s61, s61, 6\ns_add_u32 s60, s60, s61\ns_add_u32 s62, s48, s60\ns_addc_u32 s63, s49, 0')
    assert WS_XG == 0
    for i in range(1, 4): F('v_add_u32 v%d, 0x%x, v16' % (16 + i, i * 16384))
    F('v_and_b32 v10, 1, v8'); F('v_lshlrev_b32 v24, 6, v7'); F('v_lshl_add_u32 v24, v10, 5, v24'); F('v_lshrrev_b32 v9, 1, v8'); F('v_lshl_add_u32 v24, v9, 4, v24')
    F('s_lshl_b32 s60, s50, 12\ns_add_u32 s60, s60, 0x%x\ns_add_u32 s24, s48, s60\ns_addc_u32 s25, s49, 0' % WS_ST1)
    F('v_lshlrev_b32 v21, 3, v1')
    F('s_lshl_b32 s60, s34, 9\ns_add_u32 s60, s60, 0x%x\ns_add_u32 s64, s48, s60\ns_addc_u32 s65, s49, 0' % WS_MODG)
    XD = [240, 244, 248, 252]
    k.XD = XD
    XL1 = ['global_load_dwordx4 %s, v%d, s[62:63]%s' % (v(XD[i], 4), 16 + i, SC) for i in range(4)] + ['global_load_dwordx2 v[22:23], v21, s[64:65]' + SC]
    XL2 = ['global_load_dwordx4 %s, v24, s[24:25] offset:%d%s' % (v(80 + 4 * i, 4), i * 1024, SC) for i in range(4)]
    k.XL = XL1 + XL2
    F('s_or_b32 s66, s55, 0x4000'); F('v_lshl_add_u32 v3, v1, 4, s66')
    F('s_mul_i32 s55, s52, %d\ns_add_u32 s55, s55, %d' % (CHS, L_CV)); F('v_lshl_add_u32 v2, v59, 5, s55')
    for x in XL1 + XL2: F('VM ' + x)
    k.tw1 = []
    def w1l():
        n = len(k.tw1)
        if n >= 32: return
        k.tw1.append(k.vm('global_load_dwordx4 %s, v%d, s[26:27] offset:%d%s' % (a(4 * n, 4), k.w1v, (n & 3) * 1024, W_SC)))
        if (n & 3) == 3 and n < 31: k('s_add_u32 s26, s26, 4096'); k('s_addc_u32 s27, s27, 0')
    k.w1l = w1l; k.w1v = 31
    FPL0 = 'global_load_dword v29, v30, s[14:15]' + SC
    if EP:
        F('s_lshl_b32 s60, s3, 10\ns_lshl_b32 s61, s7, 5\ns_add_u32 s60, s60, s61\ns_add_u32 s60, s60, 0x%x' % (O_FP + 448))
        F('v_and_b32 v30, 7, v1'); F('v_lshl_add_u32 v30, v30, 2, s60'); F('v_lshlrev_b32 v31, 4, v1')
        F('s_lshl_b32 s60, s6, 15\ns_add_u32 s60, s60, 0x%x\ns_add_u32 s26, s48, s60\ns_addc_u32 s27, s49, 0' % WS_W1P)
    def emit_fill():
        x = fill.pop(0)
        if x.startswith('VM '): k.vm(x[3:])
        else: k(x)
    for ks in range(8):
        k.wait(ds=bt[ks])
        c = '0' if ks == 0 else v(ACC, 16)
        ms = [(AH + 4 * ks, 96 + 8 * ks)] + ([(AH + 4 * ks, 100 + 8 * ks), (AL + 4 * ks, 96 + 8 * ks)] if KSPLIT else [])
        for x, y in ms:
            k('v_mfma_f32_32x32x16_bf16 %s, %s, %s, %s' % (v(ACC, 16), v(x, 4), v(y, 4), c)); c = v(ACC, 16)
            for _ in range(2 if KSPLIT else 4):
                if fill: emit_fill()
            for _ in range(4 if KSPLIT else 8):
                if late: k(late.pop(0))
    while fill: emit_fill()
    while late: k(late.pop(0))
    k.stamp3(11)
    k.txl = k.nvm
    if EP: sync_issue(k, 'fp', FPL0)
    k('s_nop 7\ns_nop 3')
    k('s_bitcmp1_b32 s50, 0')
    k('s_cbranch_scc0 L_kg_a')
    for i in range(3): k.ds('ds_write_b128 v3, %s offset:%d' % (v(ACC + 4 * i, 4), 1024 * i))
    k.wait_all(vm=False)
    k('L_kg_a:')
    if (9 if EP else E('FPB', 1)) == 2: k('s_waitcnt vmcnt(%d)' % (k.nvm - k.tall))
    k.barrier()
    k.stamp3(12)
    if (9 if EP else E('FPB', 1)) == 2:
        signal(k, 'fp', O_FP, 28, 29)
        k('s_bitcmp1_b32 s50, 0')
    k('s_cbranch_scc1 L_kg_b')
    for i in range(3): k.ds('ds_read_b128 %s, v3 offset:%d' % (v(96 + 4 * i, 4), 1024 * i))
    k.wait_all(vm=False)
    for i in range(6): k('v_pk_add_f32 %s, %s, %s' % (v(96 + 2 * i, 2), v(96 + 2 * i, 2), v(ACC + 2 * i, 2)))
    for r in range(12): k.ds('ds_write_b32 v%d, v%d' % (44 + r, 96 + r))
    k.wait_all(vm=False)
    k('L_kg_b:')
    if EP: sync_check(k, 'fp', [FPL0], chk_tags([29], 27))
    if (9 if EP else E('FPB', 1)) == 1: k('s_waitcnt vmcnt(%d)' % (k.nvm - k.tall))
    k.barrier()
    k.stamp3(13)
    if (9 if EP else E('FPB', 1)) == 1: signal(k, 'fp', O_FP, 28, 29)
    k('v_cmp_eq_u32 vcc, 127, v59')
    G = 96
    gt = [k.ds('ds_read_b32 v%d, v%d' % (G + i, 60 + i)) for i in range(17)]
    if EP: k.hook = [E('HKN', 10), w1l, 0]
    conv_setup(k)
    k.wait(ds=gt[-1])
    k('v_cmp_eq_u32 vcc, 127, v59')
    k('v_cndmask_b32 v%d, v%d, v12, vcc' % (G + 16, G + 16))
    for i in range(8): k('v_cvt_pk_bf16_f32 v%d, v%d, v%d' % (120 + i, G + 2 * i, G + 2 * i + 1))
    for i in range(8): k('v_cvt_pk_bf16_f32 v%d, v%d, v%d' % (128 + i, G + 2 * i + 1, G + 2 * i + 2))
    k.ds('ds_write_b128 v2, v[120:123]')
    k.ds('ds_write_b128 v2, v[124:127] offset:16')
    k.ds('ds_write_b128 v2, v[128:131] offset:%d' % O_K1)
    k.ds('ds_write_b128 v2, v[132:135] offset:%d' % (O_K1 + 16))
    k.hook = None
    k('v_lshlrev_b32 v2, 4, v1')
    k.w1v = 2

def conv_setup(k):
    k('s_and_b32 s54, s50, 1')
    k('v_lshlrev_b32 v11, 4, v1')
    k('v_and_b32 v5, 15, v1')
    k('v_lshrrev_b32 v6, 4, v1')
    k('s_mul_i32 s59, s54, %d' % O_K1)
    k('s_add_u32 s59, s59, s55')
    k('v_lshl_add_u32 v14, v5, 2, s59')
    k.ds('ds_write_b32 v14, v12 offset:4096')
    k('v_lshl_add_u32 v14, v1, 3, s55')
    k.ds('ds_write_b64 v14, v[12:13] offset:%d' % O_H)
    k('v_lshlrev_b32 v15, 3, v10')
    k('v_lshl_add_u32 v15, v7, 4, v15')
    k('s_lshl_b32 s60, s50, 10')
    k('v_add_u32 v15, s60, v15')
    k('v_mul_u32_u24 v20, %d, v9' % CHS)
    k('v_add_u32 v20, v20, v15')
    k('v_lshl_add_u32 v25, v9, 12, v15')
    k('s_lshl_b32 s76, s54, 10')
    k('s_add_u32 s77, s76, s55')
    k('v_lshlrev_b32 v15, 5, v5')
    k('v_lshl_add_u32 v15, v6, 3, v15')
    k('v_add_u32 v193, s77, v15')
    k('s_lshl_b32 s77, s52, 12')
    k('s_add_u32 s76, s76, s77')
    k('v_add_u32 v202, s76, v15')
    k('v_lshlrev_b32 v15, 5, v5')
    k('v_lshl_add_u32 v15, v6, 4, v15')
    k('s_lshl_b32 s77, s54, 8')
    k('s_sub_u32 s77, s55, s77')
    k('s_add_u32 s78, s77, %d' % (O_H + 512 - 32 - 192))
    k('v_add_u32 v192, s78, v15')
    k('v_lshlrev_b32 v15, 3, v6')
    k('v_sub_u32 v15, v15, v5')
    k('v_add_u32 v15, 15, v15')
    k('v_and_b32 v194, 1, v15')
    k('v_mul_u32_u24 v194, %d, v194' % O_K1)
    k('v_and_b32 v15, -2, v15')
    k('v_lshl_add_u32 v15, v15, 1, v194')
    k('s_add_u32 s78, s77, %d' % (2 * (2016 - 256 - 96 - 1536)))
    k('v_add_u32 v197, s78, v15')
    for ip in range(3): k('v_add_u32 v%d, %d, v197' % (194 + ip, 1024 * (3 - ip)))
    k('s_lshl_b32 s77, s54, 12')
    k('s_add_u32 s78, s77, s55')
    k('v_add_u32 v198, s78, v11')
    k('s_xor_b32 s77, s77, 0x1000')
    k('s_add_u32 s78, s77, s55')
    k('v_add_u32 v199, s78, v11')
    k('v_and_b32 v15, 1, v6')
    k('v_lshlrev_b32 v15, 3, v15')
    k('v_lshrrev_b32 v200, 1, v5')
    k('v_add_u32 v15, v15, v200')
    k('v_lshlrev_b32 v200, 15, v15')
    k('v_and_b32 v15, 1, v5')
    k('v_lshl_add_u32 v200, v15, 5, v200')
    k('v_lshrrev_b32 v15, 1, v6')
    k('v_lshl_add_u32 v200, v15, 4, v200')
    k('v_add_u32 v201, 0x100000, v200')
    k('s_lshl_b32 s60, s54, 19')
    k('s_lshl_b32 s61, s53, 6')
    k('s_add_u32 s60, s60, s61')
    ws_ptr(k, 66, WS_X1T, 60)
    ws_ptr(k, 68, WS_X1S, 60)
    if not EP:
        k('s_lshl_b32 s60, s6, 15')
        ws_ptr(k, 26, WS_W1P, 60)
    k('s_lshl_b32 s77, s30, 16')
    k('s_and_b32 s74, s30, 0xffff0000')
    k('s_cmp_eq_u32 s52, 0')
    k('s_cselect_b32 s74, s77, s74')
    k('v_bfe_u32 v4, v1, 3, 1')
    k('v_cvt_f32_u32 v4, v4')
    k('v_cmp_gt_u32 vcc, 32, v1')
    k('v_cndmask_b32 v4, 0, v4, vcc')
    k('s_lshl_b32 s60, s34, 4')
    ws_ptr(k, 18, WS_FIN, 60)
    k('s_and_b32 s60, s4, 7')
    k('s_mul_i32 s60, s60, %d' % (2 * 114688))
    k('s_mul_i32 s61, s50, %d' % (28 * 1024))
    k('s_add_u32 s60, s60, s61')
    ws_ptr(k, 32, WS_W2P, 60)
    k('v_add_u32 v219, 114688, v11')
    k.w2v = 219
    k('s_lshl_b32 s60, s3, 10')
    k('v_add_u32 v217, s60, v11')
    k('v_add_u32 v218, 0x%x, v217' % O_F2)
    if EP:
        k('s_add_u32 s60, s60, 0x%x' % O_FP)
        k('v_min_u32 v217, 27, v1')
        k('v_lshl_add_u32 v217, v217, 4, s60')
    else:
        k('s_lshl_b32 s61, s7, 5')
        k('s_add_u32 s60, s60, s61')
        k('s_add_u32 s60, s60, 0x%x' % (O_FP + 448))
        k('v_and_b32 v217, 7, v1')
        k('v_lshl_add_u32 v217, v217, 2, s60')
    k('s_lshl_b32 s56, s54, 15')
    k('s_lshl_b32 s60, s52, 12')
    k('s_add_u32 s56, s56, s60')
    k('s_lshl_b32 s60, s5, 16')
    k('s_add_u32 s60, s60, s56')
    ws_ptr(k, 28, WS_X1S, 60)

def conv_phase(k):
    XD = k.XD
    w1l = k.w1l
    k.w2q = []
    for ks in range(28): k.w2q += w2_ops(k, ks)
    k.w2n0 = len(k.w2q)
    FPL = 'global_load_dword v204, v217, s[14:15]' + SC
    if E('FP_AT', 2) < 0 and not EP: sync_issue(k, 'fp', FPL)
    k.stamp(6); k.stamp3(14)
    k('s_mov_b32 s80, 0')
    k.wait(vm=k.txl)
    k('L_xv_p:')
    for c in chk_tags([x + 2 for x in XD] + [23] + [83 + 4 * i for i in range(4)], 28): k(c)
    retry_tail(k, 'xv', k.XL + ['s_waitcnt vmcnt(0)'])
    if EP: k.hook = [E('HKN', 10), w1l, 0]
    k.stamp(7)
    k('v_add_f32_dpp v22, v22, v22 quad_perm:[1,0,3,2] row_mask:0xf bank_mask:0xf')
    k('s_lshl_b32 s60, s52, 2')
    k('s_add_u32 s61, s60, 24')
    k('v_add_f32_dpp v22, v22, v22 quad_perm:[2,3,0,1] row_mask:0xf bank_mask:0xf')
    k('s_add_u32 s60, s60, 16')
    k('v_cmp_eq_u32 vcc, 1, v9')
    k('v_add_f32_dpp v22, v22, v22 row_half_mirror row_mask:0xc bank_mask:0xf')
    k('v_cvt_pk_bf16_f32 v22, v22, v22')
    k('v_and_b32 v22, s58, v22')
    k('v_add_f32 v22, v22, v4')
    k('v_cvt_pk_bf16_f32 v22, v22, v22')
    k('v_and_b32 v22, s58, v22')
    k('v_readlane_b32 s62, v22, 0')
    k('v_readlane_b32 s63, v22, 4')
    k('v_readlane_b32 s64, v22, 8')
    k('v_readlane_b32 s65, v22, 12')
    k('v_readlane_b32 s75, v22, s60')
    k('v_readlane_b32 s76, v22, s61')
    k('v_mov_b32 v27, s62')
    k('v_mov_b32 v29, s63')
    k('v_mov_b32 v26, s64')
    k('v_mov_b32 v28, s65')
    k('v_cndmask_b32 v27, v27, v29, vcc')
    k('v_cndmask_b32 v26, v26, v28, vcc')
    for i in range(4):
        k.ds('ds_write_b64 v25, %s offset:%d' % (v(XD[i], 2), L_X + 256 * i))
        for j in range(2):
            r = XD[i] + j
            g = 56 + 4 * j
            tt = 48 + 4 * (j & 1)
            for e in range(3): k('v_mov_b32_dpp v%d, v%d quad_perm:[%d,%d,%d,%d] row_mask:0xf bank_mask:0xf' % (g + e, 80 + 4 * i + e, 2 * j, 2 * j + 1, 2 * j, 2 * j + 1))
            k('v_lshlrev_b32 v%d, 16, v%d' % (tt, r))
            k('v_and_b32 v%d, s58, v%d' % (tt + 1, r))
            k('v_lshlrev_b32 v%d, 16, v%d' % (tt + 2, g + 2))
            k('v_and_b32 v%d, s58, v%d' % (tt + 3, g + 2))
            k('v_pk_fma_f32 %s, %s, %s, %s neg_lo:[0,0,1] neg_hi:[0,0,1]' % (v(tt, 2), v(tt, 2), v(g, 2), v(tt + 2, 2)))
            k('v_pk_fma_f32 %s, %s, v[26:27], v[26:27] op_sel:[0,0,1] op_sel_hi:[1,0,1]' % (v(tt, 2), v(tt, 2)))
            k('v_cvt_pk_bf16_f32 v%d, v%d, v%d' % (XD[i] + 2 + j, tt, tt + 1))
        k.ds('ds_write_b64 v20, %s offset:%d' % (v(XD[i] + 2, 2), L_CV + O_H + 512 + 256 * i))
    k.hook = None
    if E('FP_AT', 2) < 0 and not EP: sync_check(k, 'fp', [FPL], chk_tags([204], 210))
    k.wait_all(vm=False)
    k.barrier()
    if not (9 if EP else E('FPB', 1)): signal(k, 'fp', O_FP, 28, 29)
    k.stamp(9)
    ACC = 32
    def areg(st, p): return 64 + 64 * st + 4 * p
    def breg(st, q): return 96 + 64 * st + 4 * q
    def loads(cc, st, np_):
        L = []
        for p in range(np_):
            off = 128 * (1 - (p & 1)) + 16 * (3 - cc)
            L.append('ds_read2_b32 %s, v%d offset0:%d offset1:%d' % (v(areg(st, p), 2), 194 + (p >> 1), off, off + 1))
            L.append('ds_read2_b32 %s, v%d offset0:%d offset1:%d' % (v(areg(st, p) + 2, 2), 194 + (p >> 1), off + 2, off + 3))
            L.append('ds_read_b128 %s, v192 offset:%d' % (v(breg(st, p), 4), 512 * p + 64 * (3 - cc)))
        return L
    def lv_pairs(lo, hi_):
        P = []
        for lv in range(8):
            for p in range(lv + 1):
                for q in range(lv + 1):
                    if max(p, q) == lv and lo <= p + q <= hi_: P.append((p, q))
        return P
    def loadsA(cc):
        L = []
        st, o4 = cc >> 1, 4 * (cc & 1)
        for p in range(4):
            off = 128 * (1 - (p & 1)) + 16 * (3 - cc)
            L.append('ds_read2_b32 %s, v%d offset0:%d offset1:%d' % (v(areg(st, o4 + p), 2), 194 + (p >> 1), off, off + 1))
            L.append('ds_read2_b32 %s, v%d offset0:%d offset1:%d' % (v(areg(st, o4 + p) + 2, 2), 194 + (p >> 1), off + 2, off + 3))
            L.append('ds_read_b128 %s, v192 offset:%d' % (v(breg(st, o4 + p), 4), 512 * p + 64 * (3 - cc)))
        return L
    tA = {}
    for cc in range(2): tA[cc] = [k.ds(x) for x in loadsA(cc)]
    if E('FP_AT', 2) == 0: sync_issue(k, 'fp', 'global_load_dword v204, v217, s[14:15]' + SC)
    k('s_cmp_lg_u32 s50, 3')
    k('s_cbranch_scc1 L_fin')
    for i, (l0, l1) in enumerate(((32, 40), (24, 28), (48, 56))):
        k('v_readlane_b32 s60, v22, %d' % l0)
        k('v_readlane_b32 s61, v22, %d' % l1)
        k('s_lshr_b32 s60, s60, 16')
        k('s_or_b32 s60, s60, s61')
        k('v_mov_b32 v%d, s60' % (220 + i))
    k('v_mov_b32 v223, s81')
    k('s_mov_b64 exec, 1')
    raw(k, 'global_store_dwordx4 v12, v[220:223], s[18:19]' + SC)
    k('s_mov_b64 exec, -1')
    k('L_fin:')
    seen = set()
    def mf(nt, ar, br):
        c = v(ACC + 4 * nt, 4) if nt in seen else '0'
        seen.add(nt)
        k('v_mfma_f32_16x16x32_bf16 %s, %s, %s, %s' % (v(ACC + 4 * nt, 4), v(ar, 4), v(br, 4), c))
    def hx_reads(ps):
        return (['ds_read_b64 %s, v193 offset:%d' % (v(16 + 2 * j, 2), O_H + 512 + 2048 * ps + 512 * j) for j in range(2)] +
                ['ds_read_b64 %s, v202 offset:%d' % (v(20 + 2 * j, 2), L_X + 2048 * ps + 512 * j) for j in range(2)])
    PA = lv_pairs(0, 3); PB = lv_pairs(4, 7)
    q2 = loadsA(2) + loadsA(3) + hx_reads(0)
    tq = []
    for cc in range(4):
        st, o4 = cc >> 1, 4 * (cc & 1)
        for n, (p, q) in enumerate(PA):
            if cc < 2: k.wait(ds=tA[cc][3 * max(p, q) + 2])
            else: k.wait(ds=tq[12 * (cc - 2) + 3 * max(p, q) + 2])
            mf(p + q, areg(st, o4 + p), breg(st, o4 + q))
            if (E('FP_AT', 2) < 0 or EP) and n % E('W1A', 3) == 0 and cc < E('W1AC', 2): w1l()
            for _ in range(2):
                if q2 and (cc > 0 or n >= 2): tq.append(k.ds(q2.pop(0)))
            if cc == 2 and n == 2: qB = loads(0, 0, 8)
            if cc >= 2 and (cc > 2 or n >= 2):
                for _ in range(2):
                    if qB: k.ds(qB.pop(0))
    assert not q2 and not qB
    def exchange_and_store(ps, lab, mid):
        b = ACC + 16 * ps
        k('s_nop 7')
        k('s_cmp_eq_u32 s54, 0')
        k('s_cbranch_scc0 L_%s_1' % lab)
        for j in range(2): k.ds('ds_write_b128 v198, %s offset:%d' % (v(b + 8 + 4 * j, 4), O_RED + 2048 * ps + 1024 * j))
        for j in range(4): k('v_mov_b64 %s, %s' % (v(224 + 2 * j, 2), v(b + 2 * j, 2)))
        k('s_branch L_%s_2' % lab)
        k('L_%s_1:' % lab)
        k.nds -= 2
        for j in range(2): k.ds('ds_write_b128 v198, %s offset:%d' % (v(b + 4 * j, 4), O_RED + 2048 * ps + 1024 * j))
        for j in range(4): k('v_mov_b64 %s, %s' % (v(224 + 2 * j, 2), v(b + 8 + 2 * j, 2)))
        k('L_%s_2:' % lab)
        k.pre()
        k.wait_all(vm=False)
        k.barrier()
        mid()
        rt_ = [k.ds('ds_read_b128 %s, v199 offset:%d' % (v(232 + 4 * j, 4), O_RED + 2048 * ps + 1024 * j)) for j in range(2)]
        for i in range(4):
            k('v_lshlrev_b32 v%d, 16, v%d' % (240 + 2 * i, 16 + i))
            k('v_and_b32 v%d, s58, v%d' % (241 + 2 * i, 16 + i))
            k('v_pk_fma_f32 %s, %s, s[74:75], %s op_sel_hi:[1,0,1]' % (v(224 + 2 * i, 2), v(240 + 2 * i, 2), v(224 + 2 * i, 2)))
            k('v_lshlrev_b32 v%d, 16, v%d' % (248 + 2 * i, 20 + i))
            k('v_and_b32 v%d, s58, v%d' % (249 + 2 * i, 20 + i))
        k.wait(ds=rt_[1])
        for i in range(4):
            k('v_pk_add_f32 %s, %s, %s' % (v(224 + 2 * i, 2), v(224 + 2 * i, 2), v(232 + 2 * i, 2)))
            k('v_pk_fma_f32 %s, %s, s[74:75], %s op_sel:[0,1,0] op_sel_hi:[1,1,1]' % (v(224 + 2 * i, 2), v(224 + 2 * i, 2), v(248 + 2 * i, 2)))
            k('v_pk_mul_f32 %s, %s, s[76:77] op_sel_hi:[1,0]' % (v(240 + 2 * i, 2), v(224 + 2 * i, 2)))
            k('v_cvt_pk_bf16_f32 v%d, v%d, v%d' % (24 + i, 240 + 2 * i, 241 + 2 * i))
            k('v_cvt_pk_bf16_f32 v%d, v%d, v%d' % (28 + i, 224 + 2 * i, 225 + 2 * i))
        for b_, sp in ((24, 68), (28, 66)):
            k('v_permlane16_swap_b32 v%d, v%d' % (b_, b_ + 2))
            k('v_permlane16_swap_b32 v%d, v%d' % (b_ + 1, b_ + 3))
            t = k.vm('global_store_dwordx4 v%d, %s, s[%d:%d]%s' % (200 + ps, v(b_, 4), sp, sp + 1, SC))
        return t
    FPL = 'global_load_dword v204, v217, s[14:15]' + SC
    FP_AT = E('FP_AT', 2)
    k.pre = (lambda: sync_check(k, 'fp', [FPL], chk_tags([204], 210))) if FP_AT == 0 else (lambda: None)
    tsA = exchange_and_store(0, 'cvA', lambda: None)
    k.pre = lambda: None
    k.stamp(3)
    print('w1 loads before conv B:', len(k.tw1))
    F2A_AT = E('F2A_AT', 2); W1D = E('W1D', 3)
    for cc in range(4):
        st = cc & 1
        nxt = loads(cc + 1, st ^ 1, 8) if cc < 3 else hx_reads(1)
        if cc > 0: k.wait_all(vm=False)
        if cc == FP_AT and cc and not EP: sync_check(k, 'fp', [FPL], chk_tags([204], 210))
        FP2 = 'global_load_dwordx4 v[204:207], v217, s[14:15]' + SC
        if EP and cc == F2A_AT: sync_check(k, 'fp2', [FP2], chk_tags([204, 205, 206, 207], 210))
        if cc == F2A_AT: k.wait(vm=tsA)
        if cc == F2A_AT or (cc == FP_AT and cc): k.barrier()
        if cc == F2A_AT: signal(k, 'f2a', O_F2, 208, 209)
        for n, (p, q) in enumerate(PB):
            if cc == FP_AT - 2 and n == 10 and not EP: sync_issue(k, 'fp', FPL)
            if EP and cc == 0 and n == 10: sync_issue(k, 'fp2', FP2)
            mf(p + q, areg(st, p), breg(st, q))
            if n >= 1 and nxt: k.ds(nxt.pop(0))
            if cc >= FP_AT and n % W1D == 0:
                if len(k.tw1) < 32: w1l()
                elif EP and k.w2n0 - len(k.w2q) < E('W2C', 30): k.w2q.pop(0)()
        assert not nxt
    k.stamp(10)
    k.PA = ['global_load_dwordx4 v[72:75], v218, s[14:15]' + SC]
    k.FL = 'global_load_dwordx4 v[164:167], v160, s[48:49]' + SC
    def mid():
        k('v_lshlrev_b32 v160, 4, v0')
        k('v_add_u32 v160, 0x%x, v160' % WS_FIN)
        k.tfin = k.vm(k.FL)
    k.tx1 = exchange_and_store(1, 'cvB', mid)
    if not E('C12POS', 0): sync_issue(k, 'f2a', *k.PA)
    while len(k.tw1) < 32: w1l()
    if EP:
        for _ in range(E('W2P', 14)): k.w2q.pop(0)()
    print('w2 ops before mlp', k.w2n0 - len(k.w2q))

ROT = E('ROT', 0)
def adv(k, p, c):
    if not ROT:
        k('s_add_u32 s%d, s%d, 4096\ns_addc_u32 s%d, s%d, 0' % (p, p, p + 1, p + 1)); return
    k('s_add_u32 s%d, s%d, 1' % (c, c))
    k('s_cmp_eq_u32 s%d, 7' % c)
    k('s_cselect_b32 s12, %d, s32' % (-24576))
    k('s_cselect_b32 s13, -1, 0')
    k('s_cselect_b32 s%d, 0, s%d' % (c, c))
    k('s_add_u32 s%d, s%d, s12' % (p, p))
    k('s_addc_u32 s%d, s%d, s13' % (p + 1, p + 1))

def w2reg(ks): return (a(128 + 8 * ks, 4), a(132 + 8 * ks, 4)) if ks < 16 else (v(160 + 8 * (ks - 16), 4), v(164 + 8 * (ks - 16), 4))
def w2_ops(k, ks):
    ops = []
    if E('NOW2', 0): return ops
    off = (ks & 3) * 1024
    ops.append(lambda: k.vm('global_load_dwordx4 %s, v2, s[32:33] offset:%d%s' % (w2reg(ks)[0], off, W_SC)))
    ops.append(lambda: k.vm('global_load_dwordx4 %s, v%d, s[32:33] offset:%d%s' % (w2reg(ks)[1], k.w2v, off, W_SC)))
    if (ks & 3) == 3 and ks < 27: ops.append(lambda: adv(k, 32, 35))
    return ops

def sync_issue(k, name, *loads):
    k('s_cmp_lg_u32 s50, %d' % SYNCW)
    k('s_cbranch_scc1 L_%s_i' % name)
    for l in loads: raw(k, l)
    k('L_%s_i:' % name)
    k.__dict__.setdefault('pollmark', {})[name] = k.nvm

def sync_check(k, name, loads, check, extra=0):
    k('s_cmp_lg_u32 s50, %d' % SYNCW)
    k('s_cbranch_scc1 L_%s_w' % name)
    k('s_mov_b32 s80, 0')
    k('s_waitcnt vmcnt(%d)' % min(63, k.nvm - k.pollmark[name] + extra))
    k('L_%s_p:' % name)
    for c in check: k(c)
    retry_tail(k, name, list(loads) + ['s_waitcnt vmcnt(0)'], 1)

L_RD = 0

def mlp_phase(k):
    k('v_add_u32 v126, 0x2000, v218')
    PL = lambda r: 'global_load_dwordx4 v[72:75], v%d, s[14:15]%s' % (r, SC)
    k('s_lshl_b32 s8, s3, 2')
    k('s_lshr_b32 s9, s4, 3')
    k('s_add_u32 s8, s8, s9')
    k('s_and_b32 s9, s4, 7')
    k('v_add_u32 v113, 114688, v2')
    k('s_mul_i32 s51, s50, %d' % (28 * 1024))
    if ROT:
        k('s_lshr_b32 s35, s4, 3')
        k('s_lshl_b32 s35, s35, 1')
        k('s_add_u32 s35, s35, s9')
        k('s_cmp_ge_u32 s35, 7')
        k('s_cselect_b32 s60, 7, 0')
        k('s_sub_u32 s35, s35, s60')
        k('s_mov_b32 s33, s35')
        k('s_movk_i32 s32, 4096')
        k('s_lshl_b32 s60, s35, 12')
        k('s_add_u32 s51, s51, s60')
    k.w2v = 113
    k('s_mul_i32 s60, s8, 114688')
    k('s_add_u32 s60, s60, s51')
    ws_ptr(k, 22, WS_HID, 60)
    tr_addr32(k, 4, 1, 8, 9, 6, 8)
    k('v_add_u32 v5, 0x10000, v4')
    k('v_and_b32 v6, 31, v1')
    k('v_lshlrev_b32 v6, 3, v6')
    k('s_mul_i32 s62, s5, %d' % (2 * 114688))
    k('s_lshl_b32 s63, s6, 11')
    k('s_add_u32 s62, s62, s63')
    ws_ptr(k, 68, WS_HID, 62)
    k('s_lshl_b32 s62, s5, 9')
    add_ptr(k, 70, 14, 62)
    k('v_bfe_u32 v16, v1, 4, 1')
    k('v_xor_b32 v16, 1, v16')
    k('v_lshlrev_b32 v16, 10, v16')
    k('v_lshrrev_b32 v17, 5, v1')
    k('v_lshl_add_u32 v16, v17, 4, v16')
    k('v_add_u32 v16, %d, v16' % L_GS)
    k('v_lshlrev_b32 v17, 2, v0')
    k('v_add_u32 v17, %d, v17' % L_GS)
    k('v_lshlrev_b32 v18, 3, v0')
    k('v_add_u32 v18, %d, v18' % (L_GS + 2048))
    k('v_lshrrev_b32 v119, 5, v1')
    k('v_and_b32 v118, 31, v1')
    k('v_lshlrev_b32 v116, 8, v119')
    k('v_lshl_add_u32 v116, v118, 1, v116')
    k('v_lshlrev_b32 v117, 4, v119')
    k('v_lshl_add_u32 v118, v118, 10, v117')
    k('s_lshl_b32 s62, s9, 2')
    k('s_add_u32 s62, s62, s50')
    k('s_lshl_b32 s63, s8, 15')
    k('s_lshl_b32 s60, s62, 10')
    k('s_add_u32 s60, s60, s63')
    ws_ptr(k, 20, WS_X1T, 60)
    k('s_lshl_b32 s60, s62, 6')
    k('s_add_u32 s60, s60, %d' % (L_GS + 2048))
    k('v_add_u32 v117, s60, v117')
    k('s_lshl_b32 s60, s62, 5')
    k('s_add_u32 s60, s60, s63')
    add_ptr(k, 24, P_OUT, 60)
    k('s_lshl_b32 s60, s50, 13')
    k('v_add_u32 v120, s60, v2')
    k('s_lshl_b32 s60, s50, 11')
    k('v_add_u32 v121, s60, v2')
    k('s_lshr_b32 s60, s8, 1')
    k('s_lshl_b32 s60, s60, 6')
    k('s_add_u32 s60, s60, 0x%x' % O_F3)
    k('v_min_u32 v122, 13, v1')
    k('v_lshl_add_u32 v122, v122, 2, s60')
    k('s_lshl_b32 s10, s5, 6')
    k('s_lshl_b32 s61, s7, 2')
    k('s_add_u32 s10, s10, s61')
    k('s_mov_b32 s80, 0')
    k.wait(vm=k.tfin)
    k('L_fin_p:')
    k('v_cmp_ne_u32 vcc, s81, v167')
    retry_tail(k, 'fin', [k.FL, 's_waitcnt vmcnt(0)'])
    k('v_lshlrev_b32 v168, 16, v166')
    k('v_and_b32 v169, 0xffff0000, v166')
    k('v_mul_f32 v168, %s, v168' % f32(-math.log(2.0)))
    k('v_mul_f32 v169, %s, v169' % f32(-math.log(2.0)))
    k.ds('ds_write2st64_b32 v17, v164, v165 offset0:0 offset1:4')
    k.ds('ds_write_b64 v18, v[168:169]')
    C12POS = E('C12POS', 0)
    EARLYA = E('EARLYA', 0)
    def sigB(nm):
        k.wait(vm=k.tx1)
        k.barrier()
        signal(k, nm, O_F2 + 0x2000, 19, 20)
        k.stamp(11)
    k.wait_all(vm=False)
    if not EARLYA: sigB('f2b')
    xq = []
    w2q = k.w2q
    w2done = k.w2n0 - len(w2q)
    w2q0 = w2q if not C12POS else []
    def c12_block():
        gt = [None] * 32
        for s_ in range(8): gt[s_] = k.ds('ds_read_b128 %s, v16 offset:%d' % (v(80 + 4 * (s_ % 8), 4), 32 * s_))
        for s_ in range(32):
            if C12POS and s_ == E('PA_AT', 8): sync_issue(k, 'f2a', *k.PA)
            k.wait(ds=gt[s_], vm=k.tw1[s_])
            k('v_mfma_f32_32x32x16_bf16 v[128:143], %s, %s, %s' % (a(4 * s_, 4), v(80 + 4 * (s_ % 8), 4), '0' if s_ == 0 else 'v[128:143]'))
            if EARLYA and s_ == E('SIGB_AT', 6): sigB('f2b')
            if xq: xq.pop(0)()
            elif w2q0: w2q0.pop(0)()
            if s_ >= 1 and s_ + 7 < 32: gt[s_ + 7] = k.ds('ds_read_b128 %s, v16 offset:%d' % (v(80 + 4 * ((s_ + 7) % 8), 4), 32 * (s_ + 7)))
        k.stamp(8)
    if C12POS: c12_block()
    sync_check(k, 'f2a', k.PA, chk_tags([72, 73, 74, 75], 114), extra=0 if (C12POS or EARLYA) else 1)
    k.barrier()
    k.stamp(12); k.stamp2(1)
    ctok = {}
    def chunk_ops(ps, c):
        ops = [lambda: k('s_add_u32 m0, s56, %d' % (ps * 65536 + c * 8192))]
        def ld(i): ctok[ps, c] = k.vm('global_load_lds_dwordx4 v2, s[28:29] offset:%d%s' % (i * 1024, LD_SC))
        for i in range(4): ops.append(lambda i=i: ld(i))
        if c < 3: ops.append(lambda: k('s_add_u32 s28, s28, 8192\ns_addc_u32 s29, s29, 0'))
        elif ps == 0: ops.append(lambda: k('s_add_u32 s28, s28, %d\ns_addc_u32 s29, s29, 0' % (0x100000 - 3 * 8192)))
        return ops
    k('s_cmp_ge_u32 s4, 28')
    k('s_cbranch_scc1 L_st_a')
    for c in range(4): xq.extend(chunk_ops(0, c))
    for _ in range(len(xq) if C12POS else E('XPRE', 5)): xq.pop(0)()
    k('s_branch L_st_b')
    k('L_st_a:')
    k('s_sub_u32 s11, s4, 28')
    k('s_lshl_b32 s60, s3, 2')
    k('s_add_u32 s11, s11, s60')
    k('s_lshl_b32 s60, s11, 15')
    k('s_lshl_b32 s61, s50, 13')
    k('s_add_u32 s60, s60, s61')
    ws_ptr(k, 28, WS_X1T, 60)
    k('v_add_u32 v7, 0x1000, v2')
    STL = ['global_load_dwordx4 %s, v%d, s[28:29] offset:%d%s' % (v(80 + 4 * i, 4), 2 if i < 4 else 7, (i & 3) * 1024, LD_SC) for i in range(8)]
    for x in STL: raw(k, x)
    if EARLYA:
        k('s_waitcnt vmcnt(8)')
        k.barrier()
        signal(k, 'f2bs', O_F2 + 0x2000, 19, 20)
    k('s_branch L_stats')
    k('L_st_b:')
    if not C12POS: c12_block()
    fix = ['v_mov_b32 v%d, v%d' % (144 + r, 128 + r) for r in range(16)]
    fix += ['v_permlane16_swap_b32 v%d, v%d' % (128 + r, 144 + r) for r in range(16)]
    fix += ['v_mul_f32 v%d, %s, v%d' % (144 + r, f32(-LOG2E), 144 + r) for r in range(16)]
    ACC = 16
    for _ in range(E('W2E', 12) if C12POS else 0):
        if w2q: w2q.pop(0)()
    SL = lambda ps: ['global_load_dwordx2 %s, v6, s[70:71] offset:%d%s' % (v(8 + 2 * u, 2), 256 * u, SC) for u in range(2)]
    htok = {}
    def hload(ps, s_):
        htok[ps, s_] = k.vm('global_load_dwordx4 %s, v2, s[22:23] offset:%d%s' % (a(4 * s_, 4), (s_ & 3) * 1024, LD_SC))
        if (s_ & 3) == 3:
            if s_ < 27: adv(k, 22, 33)
            elif ps == 0:
                if ROT: adv(k, 22, 33); k('s_add_u32 s22, s22, %d\ns_addc_u32 s23, s23, 0' % (32 * 114688))
                else: k('s_add_u32 s22, s22, %d\ns_addc_u32 s23, s23, 0' % (32 * 114688 - 6 * 4096))
    k.hload, k.htok = hload, htok
    F3L = lambda ps: 'global_load_dword v72, v122, s[14:15] offset:%d%s' % (1024 * ps, SC)
    W2D = E('W2D', 2)
    lstA = [None]
    for ps in range(2):
        def breg(s_, u): return 48 + 8 * (s_ % 3) + 4 * u
        rtok = {}
        def rd(s_, u):
            off = u * 32768 + s_ * 1024
            k.ds('ds_read_b64_tr_b16 %s, v%d offset:%d' % (v(breg(s_, u), 2), 4 + ps, off))
            rtok[s_, u] = k.ds('ds_read_b64_tr_b16 %s, v%d offset:%d' % (v(breg(s_, u) + 2, 2), 4 + ps, off + 256))
        k.stamp2(2 + 5 * ps)
        k.wait(vm=ctok[ps, 0]); k.barrier()
        k.stamp2(3 + 5 * ps)
        for s_ in range(2):
            for u in range(2): rd(s_, u)
        pend = []
        gap = 0
        for s_ in range(32):
            if s_ % 8 == 6 and s_ < 30:
                c = s_ // 8 + 1
                if ps == 0 and c == E('F2B_AT', 2): sync_check(k, 'f2b', [PL(126)], chk_tags([72, 73, 74, 75], 80))
                if ps == 1 and c == E('F3A_SIG', 2): k.wait(vm=lstA[0])
                k.wait(vm=ctok[ps, c]); k.barrier()
                if ps == 0 and c == E('F2B_AT', 2):
                    for c2 in range(4): pend += chunk_ops(1, c2)
                if ps == 1 and c == E('F3A_SIG', 2): signal(k, 'f3a', O_F3, 73, 74, nrep=1, sidx=10)
            if ps == 0 and s_ == 8 * E('F2B_AT', 2) - 2 - E('POLLD', 12): sync_issue(k, 'f2b', PL(126))
            if s_ == 16: k.stamp2(4 + 5 * ps)
            if s_ == 22:
                def sl(x): ctok['st'] = k.vm(x)
                for x in SL(ps): pend.append(lambda x=x: sl(x))
            for u in range(2):
                k.wait(ds=rtok[s_, u])
                k('v_mfma_f32_32x32x16_bf16 %s, %s, %s, %s' % (v(ACC + 16 * u, 16), a(4 * s_, 4), v(breg(s_, u), 4), '0' if s_ == 0 else v(ACC + 16 * u, 16)))
                if s_ + 2 < 32: rd(s_ + 2, u)
                if fix and s_ >= 2:
                    for _ in range(2): k(fix.pop(0))
                if pend: pend.pop(0)()
                elif w2q and gap % W2D == 0: w2q.pop(0)()
                gap += 1
        while pend: pend.pop(0)()
        k.stamp(13 if ps == 0 else 14); k.stamp2(5 + 5 * ps)
        k.wait(vm=ctok['st'])
        k('s_mov_b32 s80, 0')
        k('L_chk%d_p:' % ps)
        k('v_min_u32 v80, v9, v11')
        k('v_cmp_eq_u32 vcc, 0, v80')
        retry_tail(k, 'chk%d' % ps, SL(ps) + ['s_waitcnt vmcnt(0)'], 2)
        if ps == 0: k('s_add_u32 s70, s70, 0x2000\ns_addc_u32 s71, s71, 0')
        k('s_nop 7')
        k.stamp2(6 + 5 * ps)
        for u in range(2):
            b = 8 + 2 * u
            A_ = ACC + 16 * u
            for p in range(8):
                x = v(A_ + 2 * p, 2)
                k('v_pk_fma_f32 %s, %s, %s, %s op_sel_hi:[1,0,1] neg_lo:[0,1,0] neg_hi:[0,1,0]' % (x, v(128 + 2 * p, 2), v(b, 2), x))
            for p in range(8):
                x = v(A_ + 2 * p, 2)
                k('v_pk_fma_f32 %s, %s, %s, %s op_sel:[1,0,0] op_sel_hi:[1,1,1]' % (x, v(b, 2), x, v(144 + 2 * p, 2)))
            if ps == 1 and u == E('F3A_U', 0): sync_issue(k, 'f3a', F3L(0))
            W2EP = E('W2EP', 4)
            def tick(r):
                if w2q and W2EP and r % W2EP == W2EP - 1 and (u == 0 or E('W2EU', 0)): w2q.pop(0)()
            for r in range(16):
                k('v_exp_f32 v%d, v%d' % (80 + r, A_ + r)); tick(r)
            for p in range(8): k('v_pk_add_f32 %s, %s, 1.0 op_sel_hi:[1,0]' % (v(80 + 2 * p, 2), v(80 + 2 * p, 2)))
            for r in range(16):
                k('v_rcp_f32 v%d, v%d' % (80 + r, 80 + r)); tick(r)
            for p in range(8): k('v_pk_mul_f32 %s, %s, %s' % (v(A_ + 2 * p, 2), v(A_ + 2 * p, 2), v(80 + 2 * p, 2)))
            O = 96 + 8 * u
            for p in range(8): k('v_cvt_pk_bf16_f32 v%d, v%d, v%d' % (O + p, A_ + 2 * p, A_ + 2 * p + 1))
            k.vm('global_store_dwordx4 v%d, %s, s[68:69]%s' % (2 if u == 0 else 113, v(O, 4), SC))
            lst = k.vm('global_store_dwordx4 v%d, %s, s[68:69] offset:1024%s' % (2 if u == 0 else 113, v(O + 4, 4), SC))
        if ps == 0:
            lstA[0] = lst
            k('s_add_u32 s68, s68, %d\ns_addc_u32 s69, s69, 0' % (32 * 114688))
    print('w2 leftover ops', len(w2q))
    while w2q: w2q.pop(0)()
    sync_check(k, 'f3a', [F3L(0)], ['v_cmp_ne_u32 vcc, s81, v72'])
    k.barrier()
    k('s_add_u32 s10, s10, 1024')
    k('s_branch L_join')
    k('L_stats:')
    k.reset_counters()
    k('s_movk_i32 s10, 2048')
    k('s_lshl_b32 s62, s11, 8')
    add_ptr(k, 70, 14, 62)
    k('s_mov_b32 s62, 0xffff0000')
    k('v_lshlrev_b32 v3, 6, v0')
    k('v_bfe_u32 v4, v1, 3, 2')
    k('v_lshlrev_b32 v4, 6, v4')
    k('v_and_b32 v5, 7, v1')
    k('v_lshl_add_u32 v4, v5, 2, v4')
    k('v_lshrrev_b32 v5, 5, v1')
    k('v_lshl_add_u32 v4, v5, 13, v4')
    for ps in range(2):
        if ps == 1:
            poll(k, 'sf2b', [PL(126)], chk_tags([72, 73, 74, 75], 80))
            k('s_add_u32 s28, s28, 0x100000\ns_addc_u32 s29, s29, 0')
            k('s_add_u32 s70, s70, 0x2000\ns_addc_u32 s71, s71, 0')
        if ps == 0:
            xt = list(range(1, 9)); k.nvm = 8
        else: xt = [k.vm(x) for x in STL]
        for r in range(16): k('v_mov_b32 v%d, 0' % (16 + r))
        for i in range(8):
            k.wait(vm=xt[i])
            for j in range(4):
                r = 80 + 4 * i + j
                tt = 32 + 2 * (j & 1)
                k('v_lshlrev_b32 v%d, 16, v%d' % (tt, r))
                k('v_and_b32 v%d, s62, v%d' % (tt + 1, r))
                k('v_pk_add_f32 %s, %s, %s' % (v(16 + 2 * j, 2), v(16 + 2 * j, 2), v(tt, 2)))
                k('v_pk_fma_f32 %s, %s, %s, %s' % (v(24 + 2 * j, 2), v(tt, 2), v(tt, 2), v(24 + 2 * j, 2)))
        for pat in ('row_ror:4', 'row_ror:8'):
            for r in range(16): k('v_add_f32_dpp v%d, v%d, v%d %s row_mask:0xf bank_mask:0xf' % (16 + r, 16 + r, 16 + r, pat))
        for i in range(4): k.ds('ds_write_b128 v3, %s offset:%d' % (v(16 + 4 * i, 4), 16384 * ps + 16 * i))
        k.wait_all(vm=False)
        k.barrier()
        k('s_cmp_lg_u32 s50, 0')
        k('s_cbranch_scc1 L_st%d' % ps)
        for q in range(8):
            raw(k, 'ds_read_b32 v%d, v4 offset:%d' % (16 + 2 * q, 16384 * ps + 1024 * q))
            raw(k, 'ds_read_b32 v%d, v4 offset:%d' % (17 + 2 * q, 16384 * ps + 1024 * q + 32))
        k('s_waitcnt lgkmcnt(0)')
        for q in range(1, 8): k('v_pk_add_f32 v[16:17], v[16:17], %s' % v(16 + 2 * q, 2))
        k('v_mov_b64 v[18:19], v[16:17]')
        k('v_permlane32_swap_b32 v16, v18')
        k('v_permlane32_swap_b32 v17, v19')
        k('v_pk_add_f32 v[16:17], v[16:17], v[18:19]')
        k('v_mul_f32 v16, %s, v16' % f32(1.0 / 512))
        k('v_mul_f32 v17, %s, v17' % f32(1.0 / 512))
        k('v_fma_f32 v17, -v16, v16, v17')
        k('v_max_f32 v17, 0, v17')
        k('v_add_f32 v17, %s, v17' % f32(1e-5))
        k('v_rsq_f32 v17, v17')
        k('v_mul_f32 v17, %s, v17' % f32(-LOG2E))
        raw(k, 'global_store_dwordx2 v6, v[16:17], s[70:71]' + SC)
        k('L_st%d:' % ps)
    sq = []
    for ks in range(28): sq += w2_ops(k, ks)
    for op in sq[w2done:]: op()
    poll(k, 'sf3a', [F3L(0)], ['v_cmp_ne_u32 vcc, s81, v72'])
    k('L_join:')
    k.stamp(1); k.stamp2(12); k.stamp4(1)
    k.reset_counters()
    htok.clear()
    HA0 = E('HA0', 16)
    for s_ in range(HA0): hload(0, s_)
    for q in range(2): k.ds('ds_read_b128 %s, v117 offset:%d' % (v(96 + 4 * q, 4), 32 * q))
    for r in range(16): k('v_mov_b32 v%d, 0' % (80 + r))
    k('v_add_u32 v115, 0x100000, v116')
    k('v_add_u32 v119, 0x100000, v118')
    k.stamp4(2)
    k('s_waitcnt vmcnt(%d)' % HA0)
    k.barrier()
    signal(k, 'f3b', O_F3, 73, 74, nrep=1, sidx=10)
    aq = [lambda s_=s_: hload(0, s_) for s_ in range(HA0, 28)]
    trs = {}
    def rl(ps, q, r): trs[ps] = k.vm('global_load_short_d16_hi v%d, v%d, s[20:21] offset:%d%s' % (80 + 8 * ps + 4 * q + r, 116 - ps, (8 * q + r) * 64, LD_SC))
    for q in range(2):
        for r in range(4): aq.append(lambda q=q, r=r: rl(0, q, r))
    bq = [lambda q=q, r=r: rl(1, q, r) for q in range(2) for r in range(4)]
    FB = E('F3B_AT', 24); nh = [0]
    for ps in range(2):
        for s_ in range(28):
            k.wait(vm=htok[ps, s_])
            if s_ == 0: k.stamp2(13 + ps)
            if s_ in (0, 8, 16, 24): k.stamp4(3 + 6 * ps + s_ // 8)
            if ps == 0 and s_ == max(0, FB - E('F3B_D', 8)): sync_issue(k, 'f3b', F3L(1))
            if ps == 0 and s_ == FB:
                sync_check(k, 'f3b', [F3L(1)], ['v_cmp_ne_u32 vcc, s81, v72'])
                k.barrier()
                k.stamp(5); k.stamp4(7)
            for j in range(2):
                k('v_mfma_f32_32x32x16_bf16 %s, %s, %s, %s' % (v(ACC + 16 * j, 16), w2reg(s_)[j], a(4 * s_, 4), '0' if s_ == 0 else v(ACC + 16 * j, 16)))
                if ps == 0 and aq and (j == 0 or E('HAJ', 0)): aq.pop(0)()
                if ps == 1 and nh[0] < 28 and (j == 0 or E('HBJ', 0)): hload(1, nh[0]); nh[0] += 1
                elif ps == 1 and bq and s_ >= 10 and j == 0: bq.pop(0)()
                if ps == 0 and s_ >= FB:
                    for _ in range(E('HBR', 1)):
                        if nh[0] < s_ + j: hload(1, nh[0]); nh[0] += 1
        k.stamp4(8 + 5 * ps)
        for q in range(8):
            k.ds('ds_write_b128 v120, %s offset:%d' % (v(ACC + 4 * q, 4), 32768 * ps + q * 1024))
            if ps == 0 and FB < 28 and q % 2 == 1 and nh[0] < 28: hload(1, nh[0]); nh[0] += 1
        if ps == 0 and FB >= 28: sync_check(k, 'f3b', [F3L(1)], ['v_cmp_ne_u32 vcc, s81, v72'])
        k.wait_all(vm=False)
        k.barrier()
        if ps == 0 and FB >= 28:
            k.stamp(5)
            for _ in range(8): hload(1, nh[0]); nh[0] += 1
        if ps == 1: k.stamp4(14)
        rt_ = []
        for w_ in range(4):
            for q in range(2): t = k.ds('ds_read_b128 %s, v121 offset:%d' % (v(48 + 8 * w_ + 4 * q, 4), 32768 * ps + w_ * 8192 + q * 1024))
            rt_.append(t)
        while ps == 0 and nh[0] < E('HB1', 20): hload(1, nh[0]); nh[0] += 1
        k.wait(ds=rt_[1])
        for p in range(4): k('v_pk_add_f32 %s, %s, %s' % (v(48 + 2 * p, 2), v(48 + 2 * p, 2), v(56 + 2 * p, 2)))
        k.wait(ds=rt_[3])
        for p in range(4): k('v_pk_add_f32 %s, %s, %s' % (v(64 + 2 * p, 2), v(64 + 2 * p, 2), v(72 + 2 * p, 2)))
        k.wait(vm=trs[ps])
        for p in range(4):
            k('v_pk_add_f32 %s, %s, %s' % (v(48 + 2 * p, 2), v(48 + 2 * p, 2), v(64 + 2 * p, 2)))
            k('v_pk_fma_f32 %s, %s, %s, %s' % (v(48 + 2 * p, 2), v(48 + 2 * p, 2), v(96 + 2 * p, 2), v(80 + 8 * ps + 2 * p, 2)))
            k('v_cvt_pk_bf16_f32 v%d, v%d, v%d' % (104 + 4 * ps + p, 48 + 2 * p, 49 + 2 * p))
        b = 104 + 4 * ps
        k('v_permlane32_swap_b32 v%d, v%d' % (b, b + 2))
        k('v_permlane32_swap_b32 v%d, v%d' % (b + 1, b + 3))
        k.vm('global_store_dwordx4 v%d, %s, s[24:25]%s' % (118 + ps, v(b, 4), os.environ.get('OUT_SC%d' % ps, '')))

def build_single(path):
    k = Kern(NAME + '_kernel')
    phase0(k); conv_phase(k); mlp_phase(k)
    k.end()
    k('L_end:')
    k('s_endpgm')
    launch, (vg_, sg_, ac) = 'grid=(256,1,1) block=(256,1,1) lds=%d' % LDS_TOTAL, (512, 84, 256)
    out = [HEADER.rstrip(), '; @launch ' + launch, '.amdgcn_target "amdgcn-amd-amdhsa--gfx950"', k.text(vg_, sg_, ac), '.text\nL_text_end:\n    s_endpgm']
    print(k.name, k.stats)
    open(path, 'w').write('\n'.join(out) + '\n')

if __name__ == '__main__':
    build_single(sys.argv[1] if len(sys.argv) > 1 else ('diag.s' if DIAG else 'cdna_kernels/%s.s' % NAME))
```

```python
import os
from gen import *
E = lambda n, d: int(os.environ.get(n, str(d)))
WS_XG = 0x000000
WS_ST1 = 0x800000
WS_MODG = 0x820000
WS_FIN = 0x860000
WS_W1P = 0x1800000
WS_X1S = 0xB00000
WS_SYNC = 0xF00000
O_F2, O_F3 = 0x8000, 0xC000
L_T = 65536
L_CM = 98304; L_SC = 114688
L_STN = 118784; L_STX = 118784 + 8448 + 128
L_CV = 0; CHS = 21120
O_K1 = 4160; O_H = 8320; O_RED = 12928
L_X = 42240
L_W1 = 79872
NW1 = 16
L_SJ = L_W1 + NW1 * 4096
L_GS = L_SJ
LDS_TOTAL = L_SJ + 16384
O_FP = 0x6000
XS = E('XS', 16384 + 384)
SC = ' sc1'
LD_SC = os.environ.get('LD_SC', ' sc1')
W_SC = os.environ.get('W_SC', ' sc1')
TMO = 0x80000
SYNCW = 1
KSPLIT = E('KSPLIT', 1)
EP = E('EP', 0)

def raw(k, s_): k.lines.append('    ' + s_)

def retry_tail(k, name, loads, sleep=0):
    k('s_nop 0')
    k('s_cbranch_vccz L_%s_w' % name)
    k('s_add_u32 s80, s80, 1')
    k('s_cmp_gt_u32 s80, 0x%x' % TMO)
    k('s_cbranch_scc1 L_%s_w' % name)
    if sleep: k('s_sleep %d' % sleep)
    for l in loads: raw(k, l)
    k('s_branch L_%s_p' % name)
    k('L_%s_w:' % name)

def poll(k, name, loads, check):
    k('s_cmp_lg_u32 s50, %d' % SYNCW)
    k('s_cbranch_scc1 L_%s_w' % name)
    k('s_mov_b32 s80, 0')
    for l in loads: raw(k, l)
    k('L_%s_p:' % name)
    k('s_waitcnt vmcnt(0)')
    for c in check: k(c)
    retry_tail(k, name, loads, 1)
    k.barrier()

def signal(k, name, off, va, vd, nrep=8, sidx=None):
    k('s_cmp_lg_u32 s50, %d' % SYNCW)
    k('s_cbranch_scc1 L_%s_s' % name)
    if sidx is None:
        k('s_lshl_b32 s80, s2, 2')
        k('s_add_u32 s80, s80, 0x%x' % off)
    else:
        k('s_add_u32 s80, s%d, 0x%x' % (sidx, off))
    k('v_lshl_add_u32 v%d, v1, 10, s80' % va)
    k('v_mov_b32 v%d, s81' % vd)
    k('s_mov_b64 exec, %d' % ((1 << nrep) - 1))
    raw(k, 'global_store_dword v%d, v%d, s[14:15]%s' % (va, vd, SC))
    k('s_mov_b64 exec, -1')
    k('L_%s_s:' % name)

def chk_tags(regs, t):
    o = ['v_xor_b32 v%d, s81, v%d' % (t, regs[0])]
    for r in regs[1:]:
        o += ['v_xor_b32 v%d, s81, v%d' % (t + 1, r), 'v_or_b32 v%d, v%d, v%d' % (t, t, t + 1)]
    return o + ['v_cmp_ne_u32 vcc, 0, v%d' % t]

def phase0(k):
    load_ptrs(k)
    k('s_getpc_b64 s[82:83]')
    k('L_pf:')
    PFM = E('PFM', 1)
    if PFM == 0:
        k('v_lshlrev_b32 v255, 7, v0')
        k('v_min_u32 v255, L_text_end-L_pf-4, v255')
        raw(k, 'global_load_dword v255, v255, s[82:83]')
    else:
        N = E('PFN', 32)
        k('s_lshr_b32 s4, s2, 3')
        k('s_and_b32 s4, s4, %d' % (256 // N - 1))
        k('s_mul_i32 s4, s4, %d' % (N * 128))
        k('v_subrev_u32 v255, 192, v0')
        k('v_cmp_gt_u32 vcc, %d, v255' % N)
        k('v_lshl_add_u32 v255, v255, 7, s4')
        k('v_min_u32 v255, L_text_end-L_pf-4, v255')
        k('s_and_saveexec_b64 s[80:81], vcc')
        k('s_cbranch_execz L_pf2')
        raw(k, 'global_load_dword v255, v255, s[82:83]')
        k('L_pf2:')
        k('s_mov_b64 exec, -1')
    k('s_cmp_ge_u32 s2, 256')
    k('s_cbranch_scc1 L_end')
    k('s_memrealtime s[78:79]')
    wave_id(k, 50, 1)
    k('v_and_b32 v1, 63, v0')
    k('s_and_b32 s3, s2, 7')
    k('s_lshr_b32 s4, s2, 3')
    k('s_lshl_b32 s51, s3, 5')
    k('s_add_u32 s80, s51, s4')
    k('s_lshl_b32 s51, s80, 9')
    k('v_lshl_add_u32 v2, v0, 1, s51')
    for i in range(4, 11): k('v_mov_b32 v%d, 0' % i)
    k('s_lshr_b32 s52, s50, 1')
    k('s_lshl_b32 s53, s80, 1')
    k('s_add_u32 s53, s53, s52')
    k('s_lshl_b32 s54, s53, 1')
    k('v_mov_b32 v3, s54')
    k('v_lshrrev_b32 v77, 5, v0')
    k('v_and_b32 v78, 31, v0')
    k('v_lshlrev_b32 v78, 4, v78')
    k('v_lshl_add_u32 v79, v77, 10, v78')
    k('s_lshl_b32 s63, s2, 13')
    k('v_add_u32 v79, s63, v79')
    k.smem_wait()
    k('s_mov_b32 s34, s80')
    k('s_or_b32 s78, s78, 1')
    k('s_or_b32 s79, s2, s50')
    k('s_cmp_eq_u32 s79, 0')
    k('s_cbranch_scc0 L_nn')
    k('v_mov_b32 v250, s78')
    k('v_lshlrev_b32 v251, 6, v1')
    k('s_mov_b64 exec, 15')
    raw(k, 'global_store_dword v251, v250, s[%d:%d]%s' % (P_DBG, P_DBG + 1, SC))
    k('s_mov_b64 exec, -1')
    k('L_nn:')
    k.vm('global_load_short_d16_hi v10, v3, s[%d:%d]' % (P_LDT, P_LDT + 1))
    for i, p in enumerate((P_ARE, P_AIM, P_BRE, P_BIM, P_CRE, P_CIM)):
        tpar = k.vm('global_load_short_d16_hi v%d, v2, s[%d:%d]' % (4 + i, p, p + 1))
    k.vm('global_load_dwordx4 v[240:243], v79, s[%d:%d]' % (P_U, P_U + 1))
    tx = k.vm('global_load_dwordx4 v[244:247], v79, s[%d:%d] offset:512' % (P_U, P_U + 1))
    k('s_and_b32 s5, s4, 3')
    k('s_lshl_b32 s5, s5, 3')
    k('s_add_u32 s5, s5, s3')
    k('s_lshl_b32 s5, s5, 1')
    k('s_bfe_u32 s6, s4, 0x10002')
    k('s_add_u32 s5, s5, s6')
    k('s_lshr_b32 s6, s4, 3')
    k('s_cmp_ge_u32 s5, 48')
    k('s_cselect_b32 s7, 16, 0')
    k('s_add_u32 s7, s7, s5')
    k('s_lshl_b32 s7, s7, 6')
    k('s_lshl_b32 s8, s6, 2')
    k('s_add_u32 s8, s8, s50')
    k('s_mul_i32 s9, s8, %d' % (32 * 6144))
    k('s_add_u32 s7, s7, s9')
    k('v_lshrrev_b32 v250, 2, v1')
    k('v_mul_u32_u24 v254, 6144, v250')
    k('v_and_b32 v251, 3, v1')
    k('v_lshl_add_u32 v254, v251, 4, v254')
    k('s_lshl_b32 s9, s50, 12')
    k('s_add_u32 s9, s9, %d' % L_CM)
    k('v_mov_b32 v231, v254')
    k('s_lshl_b32 s8, s8, 6')
    k('s_and_b32 s64, s4, 1')
    k('s_lshl_b32 s64, s64, 3')
    k('s_add_u32 s64, s64, s3')
    k('s_lshl_b32 s64, s64, 1')
    k('s_bfe_u32 s65, s4, 0x10001')
    k('s_add_u32 s64, s64, s65')
    k('s_lshr_b32 s65, s4, 2')
    k('s_cmp_ge_u32 s64, 16')
    k('s_cselect_b32 s66, 64, 48')
    k('s_add_u32 s66, s66, s64')
    k('s_lshl_b32 s66, s66, 6')
    k('s_lshl_b32 s67, s65, 2')
    k('s_add_u32 s67, s67, s50')
    k('s_mul_i32 s68, s67, %d' % (16 * 6144))
    k('s_add_u32 s66, s66, s68')
    k('s_lshl_b32 s67, s67, 5')
    k('s_sub_u32 s67, s67, 64')
    k('v_min_u32 v248, 23, v1')
    k('v_cmp_gt_u32 vcc, 16, v248')
    k('v_mov_b32 v250, s67')
    k('v_mov_b32 v251, s8')
    k('v_cndmask_b32 v250, v250, v251, vcc')
    k('v_lshl_add_u32 v248, v248, 2, v250')
    tc = k.vm('global_load_dword v248, v248, s[%d:%d]' % (P_C, P_C + 1))
    k('s_lshl_b32 s60, s34, 2')
    k('s_load_dword s30, s[%d:%d], s60' % (P_DSK, P_DSK + 1))
    if E('W1T', 0):
        k('s_and_b32 s75, s3, 1')
        k('s_mul_i32 s75, s75, 7')
        k('s_lshr_b32 s76, s4, 2')
        k('s_add_u32 s75, s75, s76')
        k('s_min_u32 s75, s75, 13')
        k('s_lshl_b32 s75, s75, 8')
        k('s_and_b32 s76, s4, 3')
        k('s_mul_i32 s76, s76, %d' % (128 * 3584))
        k('s_add_u32 s75, s75, s76')
        k('v_lshrrev_b32 v237, 1, v0')
        k('v_mul_u32_u24 v237, 3584, v237')
        k('v_and_b32 v238, 1, v0')
        k('v_lshl_add_u32 v237, v238, 7, v237')
        k('v_add_u32 v237, s75, v237')
        k.vm('global_load_dword a200, v237, s[%d:%d]' % (P_W1, P_W1 + 1))
    if E('W2T', 0):
        k('s_min_u32 s75, s2, 111')
        k('s_lshl_b32 s75, s75, 14')
        k('v_and_b32 v238, 127, v0')
        k('v_lshl_add_u32 v238, v238, 7, s75')
        k.vm('global_load_dword a201, v238, s[%d:%d]' % (P_W2, P_W2 + 1))
    k('s_cmp_lt_u32 s2, 112')
    k('s_cbranch_scc0 L_pj_w1')
    k('s_lshl_b32 s76, s2, 14')
    k('s_lshl_b32 s70, s50, 12')
    k('s_add_u32 s76, s76, s70')
    add_ptr(k, 72, P_W2, 76)
    k('s_add_u32 s31, s70, %d' % L_SJ)
    k('s_movk_i32 s79, 1024')
    for r in range(4):
        k('v_xor_b32 v%d, %d, v1' % (224 + r, r << 2))
        k('v_lshlrev_b32 v%d, 4, v%d' % (224 + r, 224 + r))
        if r: k('v_add_u32 v%d, %d, v%d' % (224 + r, 1024 * r, 224 + r))
    k('s_branch L_pj_go')
    k('L_pj_w1:')
    k('s_sub_u32 s75, s2, 112')
    k('s_min_u32 s75, s75, 111')
    k('s_and_b32 s26, s75, 7')
    k('s_lshr_b32 s27, s75, 3')
    k('s_lshl_b32 s75, s26, 4')
    k('s_add_u32 s75, s75, s50')
    k('s_mul_i32 s75, s75, %d' % (4 * 3584))
    k('s_lshl_b32 s76, s27, 8')
    k('s_add_u32 s75, s75, s76')
    add_ptr(k, 72, P_W1, 75)
    k('s_lshl_b32 s31, s50, 10')
    k('s_add_u32 s31, s31, %d' % L_SJ)
    k('s_movk_i32 s79, 4096')
    k('v_lshrrev_b32 v228, 4, v1')
    k('v_and_b32 v229, 15, v1')
    k('v_lshlrev_b32 v230, 2, v228')
    k('v_xor_b32 v230, v230, v229')
    k('v_mul_u32_u24 v224, 3584, v228')
    k('v_lshl_add_u32 v224, v230, 4, v224')
    for r in range(1, 4): k('v_add_u32 v%d, %d, v224' % (224 + r, r * 16 * 3584))
    k('L_pj_go:')
    def pkdma(r):
        k('s_mov_b32 m0, s31')
        k.tpk = k.vm('global_load_lds_dwordx4 v%d, s[72:73]' % (224 + r))
        k('s_add_u32 s31, s31, s79')
    SNON = 0
    if SNON:
        add_ptr(k, 10, P_WMOD, 7)
        k('s_mov_b32 m0, s9')
        k.vm('global_load_lds_dwordx4 v231, s[10:11]')
        k('s_add_u32 s10, s10, %d' % (16 * 6144 - 1024))
        k('s_addc_u32 s11, s11, 0')
        k.vm('global_load_lds_dwordx4 v231, s[10:11] offset:1024')
        add_ptr(k, 10, P_WMOD, 66)
        k('s_add_u32 m0, s9, 2048')
        tcm = k.vm('global_load_lds_dwordx4 v231, s[10:11]')
        for r in range(4): pkdma(r)
    k('v_mov_b32 v12, 0\nv_mov_b32 v13, 0\nv_mov_b32 v14, 0\nv_mov_b32 v15, 0')
    k('s_mov_b32 s58, 0xffff0000')
    k('s_mov_b32 s63, 0x3f803f80')
    k('s_lshl_b32 s55, s50, 14')
    k('v_lshl_add_u32 v16, v1, 2, s55')
    for r in range(1, 16): k('v_xor_b32 v%d, %d, v16' % (16 + r, r << 4))
    TP = E('TPAD', 1)
    late = []
    Lx = (lambda x: late.append(x)) if E('LATEG', 1) else k
    Lx('v_lshlrev_b32 v56, 4, v59')
    Lx('v_sub_u32 v56, 2047, v56')
    Lx('v_cvt_f32_u32 v57, v56')
    for i in range(17):
        if i: Lx('v_add_f32 v56, %s, v57' % f32(-float(i)))
        else: Lx('v_mov_b32 v56, v57')
        if i >= 15: Lx('v_max_f32 v56, 0.5, v56')
        Lx('v_cvt_pk_bf16_f32 v56, v56, 0')
        if TP: Lx('v_lshrrev_b32 v77, 5, v56'); Lx('v_add_u32 v56, v56, v77')
        Lx('v_lshl_add_u32 v%d, v56, 2, s56' % (60 + i))
    k('s_mov_b32 s57, 0x07060302')
    k('s_mov_b32 s59, %s' % f32(LOG2E))
    lo_log2e = LOG2E - struct.unpack('<f', struct.pack('<f', LOG2E))[0]
    inv2pi = 1.0 / (2 * math.pi)
    inv2pi_f = struct.unpack('<f', struct.pack('<f', inv2pi))[0]
    k('s_mov_b32 s60, %s' % f32(inv2pi_f))
    k('s_mov_b32 s61, %s' % f32(inv2pi - inv2pi_f))
    k('s_mov_b32 s62, %s' % f32(lo_log2e))
    k('s_lshl_b32 s75, s50, 6')
    k('v_mov_b32 v234, s75')
    NL = 'global_load_dword v232, v234, s[%d:%d]%s' % (P_DBG, P_DBG + 1, SC)
    nd = {}
    def nonce_dmas():
        nd['tn'] = k.vm(NL)
        if EP:
            for r in range(4): pkdma(r)
        add_ptr(k, 10, P_WMOD, 7)
        k('s_mov_b32 m0, s9')
        k.vm('global_load_lds_dwordx4 v231, s[10:11]')
        k('s_add_u32 s10, s10, %d' % (16 * 6144 - 1024))
        k('s_addc_u32 s11, s11, 0')
        k.vm('global_load_lds_dwordx4 v231, s[10:11] offset:1024')
        add_ptr(k, 10, P_WMOD, 66)
        k('s_add_u32 m0, s9, 2048')
        nd['tcm'] = k.vm('global_load_lds_dwordx4 v231, s[10:11]')
        if not EP:
            for r in range(4): pkdma(r)
    NPOS = E('NPOS', 0)
    if NPOS == 0: nonce_dmas()
    k.smem_wait()
    k.wait(vm=tpar)
    k.stamp(2); k.stamp3(1)
    if NPOS == 1: nonce_dmas()
    if SNON: k('s_load_dword s81, s[%d:%d], 0 glc' % (P_DBG, P_DBG + 1))
    k('v_mul_f32 v78, s59, v10')
    k('v_fma_f32 v79, v10, s59, -v78')
    k('v_fma_f32 v79, v10, s62, v79')
    k('v_exp_f32 v78, v78')
    k('v_mul_f32 v79, %s, v79' % f32(math.log(2.0)))
    k('v_fma_f32 v78, v78, v79, v78')
    k('v_cvt_pk_bf16_f32 v78, v78, v78')
    k('v_and_b32 v78, s58, v78')
    k('v_mul_f32 v4, v78, v4')
    k('v_mul_f32 v5, v78, v5')
    k('v_mul_f32 v152, v78, v6')
    k('v_mul_f32 v154, v78, v7')
    E0 = 96
    cmul1(k, E0, 8, 152); cmul2(k, E0, 8, 152)
    k('v_mul_f32 v4, s59, v4')
    Z1, Z256, Z8, Z128 = 80, 84, 152, 156
    def zpow(dst, p, conj, t):
        pf = f32(float(p))
        return ['v_mul_f32 v%d, %s, v4' % (t, pf), 'v_mul_f32 v%d, %s, v5' % (t + 1, pf), 'v_exp_f32 v%d, v%d' % (t, t),
                'v_mul_f32 v%d, s60, v%d' % (t + 2, t + 1), 'v_fma_f32 v%d, v%d, s60, -v%d' % (t + 3, t + 1, t + 2),
                'v_fma_f32 v%d, v%d, s61, v%d' % (t + 3, t + 1, t + 3), 'v_fract_f32 v%d, v%d' % (t + 2, t + 2),
                'v_add_f32 v%d, v%d, v%d' % (t + 2, t + 2, t + 3), 'v_cos_f32 v%d, v%d' % (t + 3, t + 2), 'v_sin_f32 v%d, v%d' % (t + 2, t + 2),
                'v_mul_f32 v%d, v%d, v%d' % (dst, t, t + 3), 'v_mul_f32 v%d, v%d, %sv%d' % (dst + 2, t, '-' if conj else '', t + 2)]
    for p_, q_ in ((zpow(Z1, 1, False, 88), zpow(Z256, 256, False, 92)), (zpow(Z8, 8, True, 88), zpow(Z128, 128, True, 92))):
        for x, y in zip(p_, q_): k(x); k(y)
    if NPOS == 2: nonce_dmas()
    tn, tcm = nd['tn'], nd['tcm']
    T0 = 140
    def split_a(e, i):
        t = T0 + 6 * (i & 1)
        if not KSPLIT:
            k('v_cvt_pk_bf16_f32 v%d, v%d, v%d' % (t + 4, e, e + 1)); return
        k('v_perm_b32 v%d, v%d, v%d, s57' % (t + 4, e + 1, e))
        k('v_and_b32 v%d, s58, v%d' % (t, e))
        k('v_and_b32 v%d, s58, v%d' % (t + 1, e + 1))
    def split_b(e, i, row):
        t = T0 + 6 * (i & 1)
        if not KSPLIT: return k.ds('ds_write_b32 v%d, v%d offset:%d' % (16 + (row & 15), t + 4, row * 256))
        k('v_pk_add_f32 %s, %s, %s neg_lo:[0,1] neg_hi:[0,1]' % (v(t + 2, 2), v(e, 2), v(t, 2)))
        k('v_cvt_pk_bf16_f32 v%d, v%d, v%d' % (t + 5, t + 2, t + 3))
        return k.ds('ds_write2st64_b32 v%d, v%d, v%d offset0:%d offset1:%d' % (16 + (row & 15), t + 4, t + 5, row, 32 + row))
    hi = {r: (r - 1, Z1) for r in range(1, 8)}
    hi.update({8: (0, Z256), 9: (2, Z256), 10: (4, Z256), 11: (6, Z256), 12: (8, Z256), 13: (10, Z256), 14: (12, Z256), 15: (13, Z256),
               16: (14, Z256), 17: (16, Z256), 18: (17, Z256), 19: (18, Z256), 20: (19, Z256)})
    order = [0, 1, 8, 2, 12, 3, 14, 4, 16, 5, 17, 6, 18, 7, 19, 9, 20, 10, 11, 13, 15]
    for i, r in enumerate(order):
        nxt = order[i + 1] if i + 1 < len(order) else None
        if nxt is not None: cmul1(k, E0 + 2 * nxt, E0 + 2 * hi[nxt][0], hi[nxt][1])
        split_a(E0 + 2 * r, i)
        if nxt is not None: cmul2(k, E0 + 2 * nxt, E0 + 2 * hi[nxt][0], hi[nxt][1])
        split_b(E0 + 2 * r, i, r)
    k('s_and_b32 s75, s5, 15')
    k('s_lshl_b32 s75, s75, 13')
    k('s_lshr_b32 s76, s5, 4')
    k('s_lshl_b32 s76, s76, 6')
    k('s_add_u32 s75, s75, s76')
    k('s_lshl_b32 s76, s6, 3')
    k('s_add_u32 s75, s75, s76')
    k('s_and_b32 s76, s64, 15')
    k('s_lshl_b32 s76, s76, 13')
    k('s_lshr_b32 s77, s64, 4')
    k('s_lshl_b32 s77, s77, 7')
    k('s_add_u32 s76, s76, s77')
    k('s_lshl_b32 s77, s65, 3')
    k('s_add_u32 s76, s76, s77')
    k('s_add_u32 s76, s76, 256')
    k('s_cmp_eq_u32 s50, 0')
    k('s_cselect_b32 s75, s75, s76')
    ws_ptr(k, 16, WS_MODG, 75)
    ws_ptr(k, 14, WS_SYNC)
    tr_addr32(k, 254, 1, 250, 251, 6, 8)
    k('v_add_u32 v254, s9, v254')
    k('v_and_b32 v40, 31, v1')
    k('v_lshrrev_b32 v41, 5, v1')
    k('v_lshrrev_b32 v253, 1, v40')
    k('v_lshlrev_b32 v253, 9, v253')
    k('v_and_b32 v250, 1, v40')
    k('s_add_u32 s75, s50, 5')
    k('v_lshlrev_b32 v250, s75, v250')
    k('v_add_u32 v253, v253, v250')
    k('v_mul_u32_u24 v11, 1056, v77')
    k('v_lshl_add_u32 v11, v40, 4, v11')
    k('v_add_u32 v11, %d, v11' % L_STN)
    k('v_bfe_u32 v56, v1, 2, 3')
    k('v_mul_u32_u24 v236, 1056, v56')
    k('v_and_b32 v57, 3, v1')
    k('v_lshl_add_u32 v236, v57, 3, v236')
    k('v_lshl_add_u32 v236, v41, 5, v236')
    k('s_lshl_b32 s75, s50, 8')
    k('s_add_u32 s75, s75, %d' % L_STN)
    k('v_add_u32 v236, s75, v236')
    k('v_and_b32 v57, 15, v1')
    k('v_lshl_add_u32 v57, v41, 4, v57')
    k('v_lshlrev_b32 v235, 5, v57')
    k('v_bfe_u32 v57, v1, 4, 1')
    k('v_lshl_add_u32 v235, v57, 4, v235')
    k('s_lshl_b32 s75, s2, 10')
    k('s_lshl_b32 s76, s50, 20')
    k('s_add_u32 s75, s75, s76')
    ws_ptr(k, 12, WS_XG, 75)
    k('s_lshl_b32 s75, s2, 6')
    k('s_lshl_b32 s76, s50, 4')
    k('s_add_u32 s75, s75, s76')
    ws_ptr(k, 24, WS_ST1, 75)
    k('v_lshlrev_b32 v249, 2, v0')
    k('v_add_u32 v249, %d, v249' % L_SC)
    k('v_lshlrev_b32 v233, 4, v41')
    k('s_lshl_b32 s75, s50, 8')
    k('s_add_u32 s75, s75, %d' % L_SC)
    k('v_add_u32 v233, s75, v233')
    k('s_lshl_b32 s75, s50, 10')
    k('v_lshl_add_u32 v252, v1, 2, s75')
    k('v_add_u32 v252, %d, v252' % (L_SC + 1024))
    k('v_and_b32 v42, 15, v1')
    k('v_xor_b32 v42, v42, v41')
    k('v_lshlrev_b32 v42, 4, v42')
    k('v_lshl_add_u32 v42, v40, 8, v42')
    k('v_add_u32 v32, s55, v42')
    for ks in range(1, 8): k('v_xor_b32 v%d, %d, v32' % (32 + ks, ks << 5))
    AH, AL = 160, 192
    for ks in range(8):
        k.ds('ds_read_b128 %s, v%d' % (v(AH + 4 * ks, 4), 32 + ks))
        if KSPLIT: k.ds('ds_read_b128 %s, v%d offset:8192' % (v(AL + 4 * ks, 4), 32 + ks))
    for i in range(4): k('v_mov_b32 v%d, 0' % (96 + i))
    k.stamp3(2)
    k.wait(vm=tx)
    k.stamp3(3)
    for i in range(2): k.ds('ds_write_b128 v11, %s offset:%d' % (v(240 + 4 * i, 4), 512 * i))
    for j in range(8):
        k('v_dot2c_f32_bf16 v%d, s63, v%d' % (96 + (j & 1), 240 + j))
        k('v_dot2c_f32_bf16 v%d, v%d, v%d' % (98 + (j & 1), 240 + j, 240 + j))
    if SNON:
        k.wait(vm=tc)
        k.smem_wait()
        k('v_mov_b32 v232, s81')
    else: k.wait(vm=tn)
    k('s_mov_b32 s80, 0')
    k('L_non_p:')
    k('v_cmp_eq_u32 vcc, 0, v232')
    retry_tail(k, 'non', [NL, 's_waitcnt vmcnt(0)'])
    k('v_readfirstlane_b32 s81, v232')
    k.stamp3(4)
    GR = [100 + 4 * q for q in range(3)] + [120]
    for q in range(4): k('v_mov_b32 v%d, v232\nv_mov_b32 v%d, v232' % (GR[q] + 2, GR[q] + 3))
    if EP: k.wait(vm=k.tpk)
    k.wait_all(vm=False)
    k.barrier()
    tq = [k.ds('ds_read_b64_tr_b16 %s, v236 offset:%d' % (v(GR[q], 2), 64 * q)) for q in range(4)]
    k('v_lshlrev_b32 v116, 16, v248')
    k('v_and_b32 v117, s58, v248')
    k('v_add_f32 v96, v96, v97')
    k('v_add_f32 v98, v98, v99')
    nm = 'v_mul_f32 v%%d, %s, v%%d' % f32(-LOG2E)
    silu = [nm % (118, 116), nm % (119, 117), 'v_exp_f32 v118, v118', 'v_exp_f32 v119, v119', 'v_add_f32 v118, 1.0, v118', 'v_add_f32 v119, 1.0, v119',
            'v_rcp_f32 v118, v118', 'v_rcp_f32 v119, v119', 'v_mul_f32 v116, v116, v118', 'v_mul_f32 v117, v117, v119', 'v_cvt_pk_bf16_f32 v116, v116, v117']
    for pat in ('quad_perm:[1,0,3,2]', 'quad_perm:[2,3,0,1]', 'row_half_mirror', 'row_mirror'):
        k(silu.pop(0)); k(silu.pop(0))
        k('v_add_f32_dpp v96, v96, v96 %s row_mask:0xf bank_mask:0xf' % pat)
        k('v_add_f32_dpp v98, v98, v98 %s row_mask:0xf bank_mask:0xf' % pat)
    k('v_mov_b32 v97, v96')
    k('v_mov_b32 v99, v98')
    for q in range(4):
        k.wait(ds=tq[q])
        k.vm('global_store_dwordx4 v235, %s, s[12:13]%s' % (v(GR[q], 4), SC))
        if q < 3: k('s_add_u32 s12, s12, 0x40000'); k('s_addc_u32 s13, s13, 0')
    while silu: k(silu.pop(0))
    k.ds('ds_write_b32 v249, v116')
    k('v_permlane16_swap_b32 v96, v97')
    k('v_permlane16_swap_b32 v98, v99')
    for ks in range(3): k.ds('ds_read_b128 %s, v233 offset:%d' % (a(32 + 4 * ks, 4), 32 * ks))
    k('v_add_f32 v96, v96, v97')
    k('v_add_f32 v98, v98, v99')
    k('v_mul_f32 v96, %s, v96' % f32(1.0 / 512))
    k('v_mul_f32 v98, %s, v98' % f32(1.0 / 512))
    k('v_fma_f32 v98, -v96, v96, v98')
    k('v_max_f32 v98, 0, v98')
    k('v_add_f32 v98, %s, v98' % f32(1e-5))
    k('v_rsq_f32 v240, v98')
    k('v_mul_f32 v242, v96, v240')
    k('v_mov_b32 v241, v240')
    k('v_mov_b32 v243, v242')
    k('v_permlane32_swap_b32 v240, v241')
    k('v_permlane32_swap_b32 v242, v243')
    k('v_cvt_pk_bf16_f32 v242, v242, v243')
    k('v_mov_b32 v243, v232')
    k('s_mov_b64 exec, 1')
    k.vm('global_store_dwordx4 v12, v[240:243], s[24:25]' + SC)
    k('s_mov_b64 exec, -1')
    def mod_a():
        k.stamp3(6)
        k.wait(vm=tcm)
        k.stamp3(7)
        for ks in range(3):
            k.ds('ds_read_b64_tr_b16 %s, v254 offset:%d' % (a(48 + 4 * ks, 2), ks * 1024))
            k.tmr = k.ds('ds_read_b64_tr_b16 %s, v254 offset:%d' % (a(50 + 4 * ks, 2), ks * 1024 + 256))
    def mod_b():
        k.wait(ds=k.tmr)
        k('v_mfma_f32_32x32x16_bf16 a[64:79], a[32:35], a[48:51], 0')
        k('v_mfma_f32_32x32x16_bf16 a[80:95], a[40:43], a[56:59], 0')
        k('v_mfma_f32_32x32x16_bf16 a[64:79], a[36:39], a[52:55], a[64:79]')
    def mod_c():
        k.ds('ds_write_b32 v249, a80 offset:2048')
        k.ds('ds_write_b32 v249, a64 offset:1024')
        k.stamp3(8)
        k.wait_all(vm=False)
        k.barrier()
        k.stamp3(9)
        for i in range(4): k.tp = k.ds('ds_read_b32 v%d, v252 offset:%d' % (244 + i, 256 * i))
    def mod_d():
        k.wait(ds=k.tp)
        k('s_cmp_ge_u32 s50, 2')
        k('s_cbranch_scc1 L_cm2')
        k('v_add_f32 v244, v244, v245')
        k('v_add_f32 v246, v246, v247')
        k('v_add_f32 v244, v244, v246')
        k('v_mov_b32 v245, v232')
        raw(k, 'global_store_dwordx2 v253, v[244:245], s[16:17]' + SC)
        k('s_branch L_cm3')
        k('L_cm2:')
        k('v_and_b32 v246, 15, v1')
        k('s_lshl_b32 s75, s2, 6')
        k('v_lshl_add_u32 v246, v246, 2, s75')
        raw(k, 'global_store_dword v246, v12, s[14:15]' + SC)
        k('L_cm3:')
        k.nvm += 1
    def pack_out():
        for q in range(4):
            k.ds('ds_read_b64_tr_b16 %s, v%d' % (a(4 * q, 2), 224 + q))
            pt = k.ds('ds_read_b64_tr_b16 %s, v%d' % (a(4 * q + 2, 2), 228 + q))
        k.wait(ds=pt)
        k('s_cmp_ge_u32 s2, 224')
        k('s_cbranch_scc1 L_pk_no')
        for q in range(4): raw(k, 'global_store_dwordx4 v%d, %s, s[70:71]%s' % (255 if q == 0 else 236 + q, a(4 * q, 4), SC))
        k('L_pk_no:')
        k.tall = k.nvm
    if EP: k.wait(vm=tcm); pack_out()
    k('s_nop 1')
    k.stamp(4); k.stamp3(5)
    k('s_cmp_lt_u32 s2, 112')
    k('s_cbranch_scc0 L_pa_w1')
    tr_addr32(k, 224, 1, 250, 251, 10, 4)
    k('s_lshl_b32 s76, s50, 8')
    k('s_add_u32 s76, s76, %d' % L_SJ)
    k('v_add_u32 v224, s76, v224')
    k('v_bfe_u32 v251, v1, 2, 2')
    k('v_lshlrev_b32 v251, 6, v251')
    k('v_xor_b32 v224, v224, v251')
    for q in range(1, 4): k('v_xor_b32 v%d, %d, v224' % (224 + q, q << 6))
    k('s_mul_i32 s76, s50, %d' % (4 * 114688))
    k('s_lshl_b32 s75, s2, 10')
    k('s_add_u32 s76, s76, s75')
    ws_ptr(k, 70, WS_W2P, 76)
    k('s_mov_b32 s75, 114688')
    k('s_movk_i32 s76, 8192')
    k('s_branch L_pa_go')
    k('L_pa_w1:')
    tr_addr32(k, 224, 1, 250, 251, 8, 8)
    k('v_bfe_u32 v251, v1, 2, 2')
    k('v_xor_b32 v251, s50, v251')
    k('v_lshl_add_u32 v224, v251, 6, v224')
    k('v_add_u32 v224, %d, v224' % L_SJ)
    for q in range(1, 4): k('v_add_u32 v%d, %d, v224' % (224 + q, q * 4096))
    k('s_lshl_b32 s76, s27, 2')
    k('s_add_u32 s76, s76, s50')
    k('s_lshl_b32 s76, s76, 15')
    k('s_lshl_b32 s75, s26, 12')
    k('s_add_u32 s76, s76, s75')
    ws_ptr(k, 70, WS_W1P, 76)
    k('s_movk_i32 s75, 1024')
    k('s_movk_i32 s76, 1024')
    k('L_pa_go:')
    for q in range(4): k('v_add_u32 v%d, s76, v%d' % (228 + q, 224 + q))
    k('v_lshlrev_b32 v255, 4, v1')
    k('v_add_u32 v237, s75, v255')
    k('v_add_u32 v238, s75, v237')
    k('v_add_u32 v239, s75, v238')
    k('s_lshr_b32 s5, s3, 1')
    k('s_lshl_b32 s5, s5, 2')
    k('s_and_b32 s75, s4, 3')
    k('s_add_u32 s5, s5, s75')
    k('s_and_b32 s7, s3, 1')
    k('s_mul_i32 s7, s7, 7')
    k('s_lshr_b32 s75, s4, 2')
    k('s_add_u32 s7, s7, s75')
    k('s_min_u32 s7, s7, 13')
    k('s_lshl_b32 s6, s7, 2')
    k('s_add_u32 s6, s6, s50')
    k('s_mul_i32 s56, s52, 7168')
    k('s_add_u32 s56, s56, %d' % ((L_T - (0x3F00 + (0x3F00 >> 5 if TP else 0)) * 4) & 0xffffffff))
    k('v_lshlrev_b32 v42, 3, v40')
    k('v_cvt_f32_u32 v42, v42')
    k('v_cvt_f32_u32 v43, v41')
    c0 = [0, 1, 2, 3, 256, 258, 260, 262]
    c1 = [4, 5, 6, 7, 512, 516, 768, 772]
    for r in range(8):
        k('v_fmamk_f32 v56, v43, %s, v42' % f32(c1[r] - c0[r]))
        if c0[r]: k('v_add_f32 v56, %s, v56' % f32(c0[r]))
        else: k('v_max_f32 v56, 0.5, v56')
        k('v_cvt_pk_bf16_f32 v56, v56, 0')
        if TP: k('v_lshrrev_b32 v77, 5, v56'); k('v_add_u32 v56, v56, v77')
        k('v_lshl_add_u32 v%d, v56, 2, s56' % (44 + r))
    k('v_cmp_eq_u32 vcc, 32, v1')
    k('v_fmaak_f32 v57, 4.0, v42, %s' % f32(4096.0))
    k('v_mov_b32 v58, %s' % f32(2048.0))
    k('v_cndmask_b32 v58, v57, v58, vcc')
    k('v_cmp_lt_u32 vcc, 31, v1')
    for r in range(8, 12):
        k('v_add_f32 v56, %s, v42' % f32(1024 + 256 * (r - 8)))
        k('v_cndmask_b32 v56, v56, v%d, vcc' % (58 if r == 8 else 57))
        k('v_cvt_pk_bf16_f32 v56, v56, 0')
        if TP: k('v_lshrrev_b32 v77, 5, v56'); k('v_add_u32 v56, v56, v77')
        k('v_lshl_add_u32 v%d, v56, 2, s56' % (44 + r))
    k('v_and_b32 v59, 127, v0')
    eq = []
    L0 = 96
    k('v_mov_b32 v%d, 1.0' % L0)
    k('v_mov_b32 v%d, 0' % (L0 + 1))
    lo_order = []
    for m in range(16): lo_order += [m, 16 + m]
    def lreg(m): return L0 + 2 * m if m < 16 else 132 + 2 * (m & 1)
    def lsrc(m): return (lreg(m - 1), Z8) if m < 16 else (lreg(m - 16), Z128)
    for i, m in enumerate(lo_order):
        nxt = lo_order[i + 1] if i + 1 < len(lo_order) else None
        if nxt is not None: cmul1(k, lreg(nxt), *lsrc(nxt))
        split_a(lreg(m), i)
        if nxt is not None: cmul2(k, lreg(nxt), *lsrc(nxt))
        split_b(lreg(m), i, m)
        M0 = E('MODAT', 2)
        if i == M0: mod_a()
        if i == M0 + 2: mod_b()
        if i == M0 + 5: mod_c()
        if i == M0 + 7: mod_d()
        if i == E('PKO', 20) and not EP:
            k.wait(vm=k.tpk); k.barrier(); pack_out()
        if EP and i == E('FPE', 22):
            k('s_waitcnt vmcnt(%d)' % (k.nvm - k.tall))
            k.barrier()
            signal(k, 'fp', O_FP, 250, 251)
    while eq: eq.pop(0)()
    if (9 if EP else E('FPB', 1)) == 3:
        k.wait_all(vm=True, ds=False)
        k.barrier()
        signal(k, 'fp', O_FP, 250, 251)
    k.stamp3(10)
    ACC = 224
    bt = []
    k.wait_all(vm=False, ds=True)
    for ks in range(8):
        t = k.ds('ds_read_b128 %s, v%d' % (v(96 + 8 * ks, 4), 32 + ks))
        if KSPLIT: t = k.ds('ds_read_b128 %s, v%d offset:8192' % (v(100 + 8 * ks, 4), 32 + ks))
        bt.append(t)
    fill = []
    F = lambda x: fill.append(x)
    F('v_lshrrev_b32 v7, 2, v1'); F('v_and_b32 v8, 3, v1'); F('v_lshlrev_b32 v16, 10, v7'); F('v_lshl_add_u32 v16, v8, 4, v16')
    F('s_lshl_b32 s60, s50, 16\ns_lshr_b32 s61, s34, 4\ns_lshl_b32 s61, s61, 18\ns_add_u32 s60, s60, s61')
    F('s_and_b32 s61, s34, 15\ns_lshl_b32 s61, s61, 6\ns_add_u32 s60, s60, s61\ns_add_u32 s62, s48, s60\ns_addc_u32 s63, s49, 0')
    assert WS_XG == 0
    for i in range(1, 4): F('v_add_u32 v%d, 0x%x, v16' % (16 + i, i * 16384))
    F('v_and_b32 v10, 1, v8'); F('v_lshlrev_b32 v24, 6, v7'); F('v_lshl_add_u32 v24, v10, 5, v24'); F('v_lshrrev_b32 v9, 1, v8'); F('v_lshl_add_u32 v24, v9, 4, v24')
    F('s_lshl_b32 s60, s50, 12\ns_add_u32 s60, s60, 0x%x\ns_add_u32 s24, s48, s60\ns_addc_u32 s25, s49, 0' % WS_ST1)
    F('v_lshlrev_b32 v21, 3, v1')
    F('s_lshl_b32 s60, s34, 9\ns_add_u32 s60, s60, 0x%x\ns_add_u32 s64, s48, s60\ns_addc_u32 s65, s49, 0' % WS_MODG)
    XD = [240, 244, 248, 252]
    k.XD = XD
    XL1 = ['global_load_dwordx4 %s, v%d, s[62:63]%s' % (v(XD[i], 4), 16 + i, SC) for i in range(4)] + ['global_load_dwordx2 v[22:23], v21, s[64:65]' + SC]
    XL2 = ['global_load_dwordx4 %s, v24, s[24:25] offset:%d%s' % (v(80 + 4 * i, 4), i * 1024, SC) for i in range(4)]
    k.XL = XL1 + XL2
    F('s_or_b32 s66, s55, 0x4000'); F('v_lshl_add_u32 v3, v1, 4, s66')
    F('s_mul_i32 s55, s52, %d\ns_add_u32 s55, s55, %d' % (CHS, L_CV)); F('v_lshl_add_u32 v2, v59, 5, s55')
    for x in XL1 + XL2: F('VM ' + x)
    k.tw1 = []
    def w1l():
        n = len(k.tw1)
        if n >= 32: return
        k.tw1.append(k.vm('global_load_dwordx4 %s, v%d, s[26:27] offset:%d%s' % (a(4 * n, 4), k.w1v, (n & 3) * 1024, W_SC)))
        if (n & 3) == 3 and n < 31: k('s_add_u32 s26, s26, 4096'); k('s_addc_u32 s27, s27, 0')
    k.w1l = w1l; k.w1v = 31
    FPL0 = 'global_load_dword v29, v30, s[14:15]' + SC
    if EP:
        F('s_lshl_b32 s60, s3, 10\ns_lshl_b32 s61, s7, 5\ns_add_u32 s60, s60, s61\ns_add_u32 s60, s60, 0x%x' % (O_FP + 448))
        F('v_and_b32 v30, 7, v1'); F('v_lshl_add_u32 v30, v30, 2, s60'); F('v_lshlrev_b32 v31, 4, v1')
        F('s_lshl_b32 s60, s6, 15\ns_add_u32 s60, s60, 0x%x\ns_add_u32 s26, s48, s60\ns_addc_u32 s27, s49, 0' % WS_W1P)
    def emit_fill():
        x = fill.pop(0)
        if x.startswith('VM '): k.vm(x[3:])
        else: k(x)
    for ks in range(8):
        k.wait(ds=bt[ks])
        c = '0' if ks == 0 else v(ACC, 16)
        ms = [(AH + 4 * ks, 96 + 8 * ks)] + ([(AH + 4 * ks, 100 + 8 * ks), (AL + 4 * ks, 96 + 8 * ks)] if KSPLIT else [])
        for x, y in ms:
            k('v_mfma_f32_32x32x16_bf16 %s, %s, %s, %s' % (v(ACC, 16), v(x, 4), v(y, 4), c)); c = v(ACC, 16)
            for _ in range(2 if KSPLIT else 4):
                if fill: emit_fill()
            for _ in range(4 if KSPLIT else 8):
                if late: k(late.pop(0))
    while fill: emit_fill()
    while late: k(late.pop(0))
    k.stamp3(11)
    k.txl = k.nvm
    if EP: sync_issue(k, 'fp', FPL0)
    k('s_nop 7\ns_nop 3')
    k('s_bitcmp1_b32 s50, 0')
    k('s_cbranch_scc0 L_kg_a')
    for i in range(3): k.ds('ds_write_b128 v3, %s offset:%d' % (v(ACC + 4 * i, 4), 1024 * i))
    k.wait_all(vm=False)
    k('L_kg_a:')
    if (9 if EP else E('FPB', 1)) == 2: k('s_waitcnt vmcnt(%d)' % (k.nvm - k.tall))
    k.barrier()
    k.stamp3(12)
    if (9 if EP else E('FPB', 1)) == 2:
        signal(k, 'fp', O_FP, 28, 29)
        k('s_bitcmp1_b32 s50, 0')
    k('s_cbranch_scc1 L_kg_b')
    for i in range(3): k.ds('ds_read_b128 %s, v3 offset:%d' % (v(96 + 4 * i, 4), 1024 * i))
    k.wait_all(vm=False)
    for i in range(6): k('v_pk_add_f32 %s, %s, %s' % (v(96 + 2 * i, 2), v(96 + 2 * i, 2), v(ACC + 2 * i, 2)))
    for r in range(12): k.ds('ds_write_b32 v%d, v%d' % (44 + r, 96 + r))
    k.wait_all(vm=False)
    k('L_kg_b:')
    if EP: sync_check(k, 'fp', [FPL0], chk_tags([29], 27))
    if (9 if EP else E('FPB', 1)) == 1: k('s_waitcnt vmcnt(%d)' % (k.nvm - k.tall))
    k.barrier()
    k.stamp3(13)
    if (9 if EP else E('FPB', 1)) == 1: signal(k, 'fp', O_FP, 28, 29)
    k('v_cmp_eq_u32 vcc, 127, v59')
    G = 96
    gt = [k.ds('ds_read_b32 v%d, v%d' % (G + i, 60 + i)) for i in range(17)]
    if EP: k.hook = [E('HKN', 10), w1l, 0]
    conv_setup(k)
    k.wait(ds=gt[-1])
    k('v_cmp_eq_u32 vcc, 127, v59')
    k('v_cndmask_b32 v%d, v%d, v12, vcc' % (G + 16, G + 16))
    for i in range(8): k('v_cvt_pk_bf16_f32 v%d, v%d, v%d' % (120 + i, G + 2 * i, G + 2 * i + 1))
    for i in range(8): k('v_cvt_pk_bf16_f32 v%d, v%d, v%d' % (128 + i, G + 2 * i + 1, G + 2 * i + 2))
    k.ds('ds_write_b128 v2, v[120:123]')
    k.ds('ds_write_b128 v2, v[124:127] offset:16')
    k.ds('ds_write_b128 v2, v[128:131] offset:%d' % O_K1)
    k.ds('ds_write_b128 v2, v[132:135] offset:%d' % (O_K1 + 16))
    k.hook = None
    k('v_lshlrev_b32 v2, 4, v1')
    k.w1v = 2

def conv_setup(k):
    k('s_and_b32 s54, s50, 1')
    k('v_lshlrev_b32 v11, 4, v1')
    k('v_and_b32 v5, 15, v1')
    k('v_lshrrev_b32 v6, 4, v1')
    k('s_mul_i32 s59, s54, %d' % O_K1)
    k('s_add_u32 s59, s59, s55')
    k('v_lshl_add_u32 v14, v5, 2, s59')
    k.ds('ds_write_b32 v14, v12 offset:4096')
    k('v_lshl_add_u32 v14, v1, 3, s55')
    k.ds('ds_write_b64 v14, v[12:13] offset:%d' % O_H)
    k('v_lshlrev_b32 v15, 3, v10')
    k('v_lshl_add_u32 v15, v7, 4, v15')
    k('s_lshl_b32 s60, s50, 10')
    k('v_add_u32 v15, s60, v15')
    k('v_mul_u32_u24 v20, %d, v9' % CHS)
    k('v_add_u32 v20, v20, v15')
    k('v_lshl_add_u32 v25, v9, 12, v15')
    k('s_lshl_b32 s76, s54, 10')
    k('s_add_u32 s77, s76, s55')
    k('v_lshlrev_b32 v15, 5, v5')
    k('v_lshl_add_u32 v15, v6, 3, v15')
    k('v_add_u32 v193, s77, v15')
    k('s_lshl_b32 s77, s52, 12')
    k('s_add_u32 s76, s76, s77')
    k('v_add_u32 v202, s76, v15')
    k('v_lshlrev_b32 v15, 5, v5')
    k('v_lshl_add_u32 v15, v6, 4, v15')
    k('s_lshl_b32 s77, s54, 8')
    k('s_sub_u32 s77, s55, s77')
    k('s_add_u32 s78, s77, %d' % (O_H + 512 - 32 - 192))
    k('v_add_u32 v192, s78, v15')
    k('v_lshlrev_b32 v15, 3, v6')
    k('v_sub_u32 v15, v15, v5')
    k('v_add_u32 v15, 15, v15')
    k('v_and_b32 v194, 1, v15')
    k('v_mul_u32_u24 v194, %d, v194' % O_K1)
    k('v_and_b32 v15, -2, v15')
    k('v_lshl_add_u32 v15, v15, 1, v194')
    k('s_add_u32 s78, s77, %d' % (2 * (2016 - 256 - 96 - 1536)))
    k('v_add_u32 v197, s78, v15')
    for ip in range(3): k('v_add_u32 v%d, %d, v197' % (194 + ip, 1024 * (3 - ip)))
    k('s_lshl_b32 s77, s54, 12')
    k('s_add_u32 s78, s77, s55')
    k('v_add_u32 v198, s78, v11')
    k('s_xor_b32 s77, s77, 0x1000')
    k('s_add_u32 s78, s77, s55')
    k('v_add_u32 v199, s78, v11')
    k('v_and_b32 v15, 1, v6')
    k('v_lshlrev_b32 v15, 3, v15')
    k('v_lshrrev_b32 v200, 1, v5')
    k('v_add_u32 v15, v15, v200')
    k('v_lshlrev_b32 v200, 15, v15')
    k('v_and_b32 v15, 1, v5')
    k('v_lshl_add_u32 v200, v15, 5, v200')
    k('v_lshrrev_b32 v15, 1, v6')
    k('v_lshl_add_u32 v200, v15, 4, v200')
    k('v_add_u32 v201, 0x100000, v200')
    k('s_lshl_b32 s60, s54, 19')
    k('s_lshl_b32 s61, s53, 6')
    k('s_add_u32 s60, s60, s61')
    ws_ptr(k, 66, WS_X1T, 60)
    ws_ptr(k, 68, WS_X1S, 60)
    if not EP:
        k('s_lshl_b32 s60, s6, 15')
        ws_ptr(k, 26, WS_W1P, 60)
    k('s_lshl_b32 s77, s30, 16')
    k('s_and_b32 s74, s30, 0xffff0000')
    k('s_cmp_eq_u32 s52, 0')
    k('s_cselect_b32 s74, s77, s74')
    k('v_bfe_u32 v4, v1, 3, 1')
    k('v_cvt_f32_u32 v4, v4')
    k('v_cmp_gt_u32 vcc, 32, v1')
    k('v_cndmask_b32 v4, 0, v4, vcc')
    k('s_lshl_b32 s60, s34, 4')
    ws_ptr(k, 18, WS_FIN, 60)
    k('s_and_b32 s60, s4, 7')
    k('s_mul_i32 s60, s60, %d' % (2 * 114688))
    k('s_mul_i32 s61, s50, %d' % (28 * 1024))
    k('s_add_u32 s60, s60, s61')
    ws_ptr(k, 32, WS_W2P, 60)
    k('v_add_u32 v219, 114688, v11')
    k.w2v = 219
    k('s_lshl_b32 s60, s3, 10')
    k('v_add_u32 v217, s60, v11')
    k('v_add_u32 v218, 0x%x, v217' % O_F2)
    if EP:
        k('s_add_u32 s60, s60, 0x%x' % O_FP)
        k('v_min_u32 v217, 27, v1')
        k('v_lshl_add_u32 v217, v217, 4, s60')
    else:
        k('s_lshl_b32 s61, s7, 5')
        k('s_add_u32 s60, s60, s61')
        k('s_add_u32 s60, s60, 0x%x' % (O_FP + 448))
        k('v_and_b32 v217, 7, v1')
        k('v_lshl_add_u32 v217, v217, 2, s60')
    k('s_lshl_b32 s56, s54, 15')
    k('s_lshl_b32 s60, s52, 12')
    k('s_add_u32 s56, s56, s60')
    k('s_lshl_b32 s60, s5, 16')
    k('s_add_u32 s60, s60, s56')
    ws_ptr(k, 28, WS_X1S, 60)

def conv_phase(k):
    XD = k.XD
    w1l = k.w1l
    k.w2q = []
    for ks in range(28): k.w2q += w2_ops(k, ks)
    k.w2n0 = len(k.w2q)
    FPL = 'global_load_dword v204, v217, s[14:15]' + SC
    if E('FP_AT', 2) < 0 and not EP: sync_issue(k, 'fp', FPL)
    k.stamp(6); k.stamp3(14)
    k('s_mov_b32 s80, 0')
    k.wait(vm=k.txl)
    k('L_xv_p:')
    for c in chk_tags([x + 2 for x in XD] + [23] + [83 + 4 * i for i in range(4)], 28): k(c)
    retry_tail(k, 'xv', k.XL + ['s_waitcnt vmcnt(0)'])
    if EP: k.hook = [E('HKN', 10), w1l, 0]
    k.stamp(7)
    k('v_add_f32_dpp v22, v22, v22 quad_perm:[1,0,3,2] row_mask:0xf bank_mask:0xf')
    k('s_lshl_b32 s60, s52, 2')
    k('s_add_u32 s61, s60, 24')
    k('v_add_f32_dpp v22, v22, v22 quad_perm:[2,3,0,1] row_mask:0xf bank_mask:0xf')
    k('s_add_u32 s60, s60, 16')
    k('v_cmp_eq_u32 vcc, 1, v9')
    k('v_add_f32_dpp v22, v22, v22 row_half_mirror row_mask:0xc bank_mask:0xf')
    k('v_cvt_pk_bf16_f32 v22, v22, v22')
    k('v_and_b32 v22, s58, v22')
    k('v_add_f32 v22, v22, v4')
    k('v_cvt_pk_bf16_f32 v22, v22, v22')
    k('v_and_b32 v22, s58, v22')
    k('v_readlane_b32 s62, v22, 0')
    k('v_readlane_b32 s63, v22, 4')
    k('v_readlane_b32 s64, v22, 8')
    k('v_readlane_b32 s65, v22, 12')
    k('v_readlane_b32 s75, v22, s60')
    k('v_readlane_b32 s76, v22, s61')
    k('v_mov_b32 v27, s62')
    k('v_mov_b32 v29, s63')
    k('v_mov_b32 v26, s64')
    k('v_mov_b32 v28, s65')
    k('v_cndmask_b32 v27, v27, v29, vcc')
    k('v_cndmask_b32 v26, v26, v28, vcc')
    for i in range(4):
        k.ds('ds_write_b64 v25, %s offset:%d' % (v(XD[i], 2), L_X + 256 * i))
        for j in range(2):
            r = XD[i] + j
            g = 56 + 4 * j
            tt = 48 + 4 * (j & 1)
            for e in range(3): k('v_mov_b32_dpp v%d, v%d quad_perm:[%d,%d,%d,%d] row_mask:0xf bank_mask:0xf' % (g + e, 80 + 4 * i + e, 2 * j, 2 * j + 1, 2 * j, 2 * j + 1))
            k('v_lshlrev_b32 v%d, 16, v%d' % (tt, r))
            k('v_and_b32 v%d, s58, v%d' % (tt + 1, r))
            k('v_lshlrev_b32 v%d, 16, v%d' % (tt + 2, g + 2))
            k('v_and_b32 v%d, s58, v%d' % (tt + 3, g + 2))
            k('v_pk_fma_f32 %s, %s, %s, %s neg_lo:[0,0,1] neg_hi:[0,0,1]' % (v(tt, 2), v(tt, 2), v(g, 2), v(tt + 2, 2)))
            k('v_pk_fma_f32 %s, %s, v[26:27], v[26:27] op_sel:[0,0,1] op_sel_hi:[1,0,1]' % (v(tt, 2), v(tt, 2)))
            k('v_cvt_pk_bf16_f32 v%d, v%d, v%d' % (XD[i] + 2 + j, tt, tt + 1))
        k.ds('ds_write_b64 v20, %s offset:%d' % (v(XD[i] + 2, 2), L_CV + O_H + 512 + 256 * i))
    k.hook = None
    if E('FP_AT', 2) < 0 and not EP: sync_check(k, 'fp', [FPL], chk_tags([204], 210))
    k.wait_all(vm=False)
    k.barrier()
    if not (9 if EP else E('FPB', 1)): signal(k, 'fp', O_FP, 28, 29)
    k.stamp(9)
    ACC = 32
    def areg(st, p): return 64 + 64 * st + 4 * p
    def breg(st, q): return 96 + 64 * st + 4 * q
    def loads(cc, st, np_):
        L = []
        for p in range(np_):
            off = 128 * (1 - (p & 1)) + 16 * (3 - cc)
            L.append('ds_read2_b32 %s, v%d offset0:%d offset1:%d' % (v(areg(st, p), 2), 194 + (p >> 1), off, off + 1))
            L.append('ds_read2_b32 %s, v%d offset0:%d offset1:%d' % (v(areg(st, p) + 2, 2), 194 + (p >> 1), off + 2, off + 3))
            L.append('ds_read_b128 %s, v192 offset:%d' % (v(breg(st, p), 4), 512 * p + 64 * (3 - cc)))
        return L
    def lv_pairs(lo, hi_):
        P = []
        for lv in range(8):
            for p in range(lv + 1):
                for q in range(lv + 1):
                    if max(p, q) == lv and lo <= p + q <= hi_: P.append((p, q))
        return P
    def loadsA(cc):
        L = []
        st, o4 = cc >> 1, 4 * (cc & 1)
        for p in range(4):
            off = 128 * (1 - (p & 1)) + 16 * (3 - cc)
            L.append('ds_read2_b32 %s, v%d offset0:%d offset1:%d' % (v(areg(st, o4 + p), 2), 194 + (p >> 1), off, off + 1))
            L.append('ds_read2_b32 %s, v%d offset0:%d offset1:%d' % (v(areg(st, o4 + p) + 2, 2), 194 + (p >> 1), off + 2, off + 3))
            L.append('ds_read_b128 %s, v192 offset:%d' % (v(breg(st, o4 + p), 4), 512 * p + 64 * (3 - cc)))
        return L
    tA = {}
    for cc in range(2): tA[cc] = [k.ds(x) for x in loadsA(cc)]
    if E('FP_AT', 2) == 0: sync_issue(k, 'fp', 'global_load_dword v204, v217, s[14:15]' + SC)
    k('s_cmp_lg_u32 s50, 3')
    k('s_cbranch_scc1 L_fin')
    for i, (l0, l1) in enumerate(((32, 40), (24, 28), (48, 56))):
        k('v_readlane_b32 s60, v22, %d' % l0)
        k('v_readlane_b32 s61, v22, %d' % l1)
        k('s_lshr_b32 s60, s60, 16')
        k('s_or_b32 s60, s60, s61')
        k('v_mov_b32 v%d, s60' % (220 + i))
    k('v_mov_b32 v223, s81')
    k('s_mov_b64 exec, 1')
    raw(k, 'global_store_dwordx4 v12, v[220:223], s[18:19]' + SC)
    k('s_mov_b64 exec, -1')
    k('L_fin:')
    seen = set()
    def mf(nt, ar, br):
        c = v(ACC + 4 * nt, 4) if nt in seen else '0'
        seen.add(nt)
        k('v_mfma_f32_16x16x32_bf16 %s, %s, %s, %s' % (v(ACC + 4 * nt, 4), v(ar, 4), v(br, 4), c))
    def hx_reads(ps):
        return (['ds_read_b64 %s, v193 offset:%d' % (v(16 + 2 * j, 2), O_H + 512 + 2048 * ps + 512 * j) for j in range(2)] +
                ['ds_read_b64 %s, v202 offset:%d' % (v(20 + 2 * j, 2), L_X + 2048 * ps + 512 * j) for j in range(2)])
    PA = lv_pairs(0, 3); PB = lv_pairs(4, 7)
    q2 = loadsA(2) + loadsA(3) + hx_reads(0)
    tq = []
    for cc in range(4):
        st, o4 = cc >> 1, 4 * (cc & 1)
        for n, (p, q) in enumerate(PA):
            if cc < 2: k.wait(ds=tA[cc][3 * max(p, q) + 2])
            else: k.wait(ds=tq[12 * (cc - 2) + 3 * max(p, q) + 2])
            mf(p + q, areg(st, o4 + p), breg(st, o4 + q))
            if (E('FP_AT', 2) < 0 or EP) and n % E('W1A', 3) == 0 and cc < E('W1AC', 2): w1l()
            for _ in range(2):
                if q2 and (cc > 0 or n >= 2): tq.append(k.ds(q2.pop(0)))
            if cc == 2 and n == 2: qB = loads(0, 0, 8)
            if cc >= 2 and (cc > 2 or n >= 2):
                for _ in range(2):
                    if qB: k.ds(qB.pop(0))
    assert not q2 and not qB
    def exchange_and_store(ps, lab, mid):
        b = ACC + 16 * ps
        k('s_nop 7')
        k('s_cmp_eq_u32 s54, 0')
        k('s_cbranch_scc0 L_%s_1' % lab)
        for j in range(2): k.ds('ds_write_b128 v198, %s offset:%d' % (v(b + 8 + 4 * j, 4), O_RED + 2048 * ps + 1024 * j))
        for j in range(4): k('v_mov_b64 %s, %s' % (v(224 + 2 * j, 2), v(b + 2 * j, 2)))
        k('s_branch L_%s_2' % lab)
        k('L_%s_1:' % lab)
        k.nds -= 2
        for j in range(2): k.ds('ds_write_b128 v198, %s offset:%d' % (v(b + 4 * j, 4), O_RED + 2048 * ps + 1024 * j))
        for j in range(4): k('v_mov_b64 %s, %s' % (v(224 + 2 * j, 2), v(b + 8 + 2 * j, 2)))
        k('L_%s_2:' % lab)
        k.pre()
        k.wait_all(vm=False)
        k.barrier()
        mid()
        rt_ = [k.ds('ds_read_b128 %s, v199 offset:%d' % (v(232 + 4 * j, 4), O_RED + 2048 * ps + 1024 * j)) for j in range(2)]
        for i in range(4):
            k('v_lshlrev_b32 v%d, 16, v%d' % (240 + 2 * i, 16 + i))
            k('v_and_b32 v%d, s58, v%d' % (241 + 2 * i, 16 + i))
            k('v_pk_fma_f32 %s, %s, s[74:75], %s op_sel_hi:[1,0,1]' % (v(224 + 2 * i, 2), v(240 + 2 * i, 2), v(224 + 2 * i, 2)))
            k('v_lshlrev_b32 v%d, 16, v%d' % (248 + 2 * i, 20 + i))
            k('v_and_b32 v%d, s58, v%d' % (249 + 2 * i, 20 + i))
        k.wait(ds=rt_[1])
        for i in range(4):
            k('v_pk_add_f32 %s, %s, %s' % (v(224 + 2 * i, 2), v(224 + 2 * i, 2), v(232 + 2 * i, 2)))
            k('v_pk_fma_f32 %s, %s, s[74:75], %s op_sel:[0,1,0] op_sel_hi:[1,1,1]' % (v(224 + 2 * i, 2), v(224 + 2 * i, 2), v(248 + 2 * i, 2)))
            k('v_pk_mul_f32 %s, %s, s[76:77] op_sel_hi:[1,0]' % (v(240 + 2 * i, 2), v(224 + 2 * i, 2)))
            k('v_cvt_pk_bf16_f32 v%d, v%d, v%d' % (24 + i, 240 + 2 * i, 241 + 2 * i))
            k('v_cvt_pk_bf16_f32 v%d, v%d, v%d' % (28 + i, 224 + 2 * i, 225 + 2 * i))
        for b_, sp in ((24, 68), (28, 66)):
            k('v_permlane16_swap_b32 v%d, v%d' % (b_, b_ + 2))
            k('v_permlane16_swap_b32 v%d, v%d' % (b_ + 1, b_ + 3))
            t = k.vm('global_store_dwordx4 v%d, %s, s[%d:%d]%s' % (200 + ps, v(b_, 4), sp, sp + 1, SC))
        return t
    FPL = 'global_load_dword v204, v217, s[14:15]' + SC
    FP_AT = E('FP_AT', 2)
    k.pre = (lambda: sync_check(k, 'fp', [FPL], chk_tags([204], 210))) if FP_AT == 0 else (lambda: None)
    tsA = exchange_and_store(0, 'cvA', lambda: None)
    k.pre = lambda: None
    k.stamp(3)
    print('w1 loads before conv B:', len(k.tw1))
    F2A_AT = E('F2A_AT', 2); W1D = E('W1D', 3)
    for cc in range(4):
        st = cc & 1
        nxt = loads(cc + 1, st ^ 1, 8) if cc < 3 else hx_reads(1)
        if cc > 0: k.wait_all(vm=False)
        if cc == FP_AT and cc and not EP: sync_check(k, 'fp', [FPL], chk_tags([204], 210))
        FP2 = 'global_load_dwordx4 v[204:207], v217, s[14:15]' + SC
        if EP and cc == F2A_AT: sync_check(k, 'fp2', [FP2], chk_tags([204, 205, 206, 207], 210))
        if cc == F2A_AT: k.wait(vm=tsA)
        if cc == F2A_AT or (cc == FP_AT and cc): k.barrier()
        if cc == F2A_AT: signal(k, 'f2a', O_F2, 208, 209)
        for n, (p, q) in enumerate(PB):
            if cc == FP_AT - 2 and n == 10 and not EP: sync_issue(k, 'fp', FPL)
            if EP and cc == 0 and n == 10: sync_issue(k, 'fp2', FP2)
            mf(p + q, areg(st, p), breg(st, q))
            if n >= 1 and nxt: k.ds(nxt.pop(0))
            if cc >= FP_AT and n % W1D == 0:
                if len(k.tw1) < 32: w1l()
                elif EP and k.w2n0 - len(k.w2q) < E('W2C', 30): k.w2q.pop(0)()
        assert not nxt
    k.stamp(10)
    k.PA = ['global_load_dwordx4 v[72:75], v218, s[14:15]' + SC]
    k.FL = 'global_load_dwordx4 v[164:167], v160, s[48:49]' + SC
    def mid():
        k('v_lshlrev_b32 v160, 4, v0')
        k('v_add_u32 v160, 0x%x, v160' % WS_FIN)
        k.tfin = k.vm(k.FL)
    k.tx1 = exchange_and_store(1, 'cvB', mid)
    if not E('C12POS', 0): sync_issue(k, 'f2a', *k.PA)
    while len(k.tw1) < 32: w1l()
    if EP:
        for _ in range(E('W2P', 14)): k.w2q.pop(0)()
    print('w2 ops before mlp', k.w2n0 - len(k.w2q))

ROT = E('ROT', 0)
def adv(k, p, c):
    if not ROT:
        k('s_add_u32 s%d, s%d, 4096\ns_addc_u32 s%d, s%d, 0' % (p, p, p + 1, p + 1)); return
    k('s_add_u32 s%d, s%d, 1' % (c, c))
    k('s_cmp_eq_u32 s%d, 7' % c)
    k('s_cselect_b32 s12, %d, s32' % (-24576))
    k('s_cselect_b32 s13, -1, 0')
    k('s_cselect_b32 s%d, 0, s%d' % (c, c))
    k('s_add_u32 s%d, s%d, s12' % (p, p))
    k('s_addc_u32 s%d, s%d, s13' % (p + 1, p + 1))

def w2reg(ks): return (a(128 + 8 * ks, 4), a(132 + 8 * ks, 4)) if ks < 16 else (v(160 + 8 * (ks - 16), 4), v(164 + 8 * (ks - 16), 4))
def w2_ops(k, ks):
    ops = []
    if E('NOW2', 0): return ops
    off = (ks & 3) * 1024
    ops.append(lambda: k.vm('global_load_dwordx4 %s, v2, s[32:33] offset:%d%s' % (w2reg(ks)[0], off, W_SC)))
    ops.append(lambda: k.vm('global_load_dwordx4 %s, v%d, s[32:33] offset:%d%s' % (w2reg(ks)[1], k.w2v, off, W_SC)))
    if (ks & 3) == 3 and ks < 27: ops.append(lambda: adv(k, 32, 35))
    return ops

def sync_issue(k, name, *loads):
    k('s_cmp_lg_u32 s50, %d' % SYNCW)
    k('s_cbranch_scc1 L_%s_i' % name)
    for l in loads: raw(k, l)
    k('L_%s_i:' % name)
    k.__dict__.setdefault('pollmark', {})[name] = k.nvm

def sync_check(k, name, loads, check, extra=0):
    k('s_cmp_lg_u32 s50, %d' % SYNCW)
    k('s_cbranch_scc1 L_%s_w' % name)
    k('s_mov_b32 s80, 0')
    k('s_waitcnt vmcnt(%d)' % min(63, k.nvm - k.pollmark[name] + extra))
    k('L_%s_p:' % name)
    for c in check: k(c)
    retry_tail(k, name, list(loads) + ['s_waitcnt vmcnt(0)'], 1)

L_RD = 0

def mlp_phase(k):
    k('v_add_u32 v126, 0x2000, v218')
    PL = lambda r: 'global_load_dwordx4 v[72:75], v%d, s[14:15]%s' % (r, SC)
    k('s_lshl_b32 s8, s3, 2')
    k('s_lshr_b32 s9, s4, 3')
    k('s_add_u32 s8, s8, s9')
    k('s_and_b32 s9, s4, 7')
    k('v_add_u32 v113, 114688, v2')
    k('s_mul_i32 s51, s50, %d' % (28 * 1024))
    if ROT:
        k('s_lshr_b32 s35, s4, 3')
        k('s_lshl_b32 s35, s35, 1')
        k('s_add_u32 s35, s35, s9')
        k('s_cmp_ge_u32 s35, 7')
        k('s_cselect_b32 s60, 7, 0')
        k('s_sub_u32 s35, s35, s60')
        k('s_mov_b32 s33, s35')
        k('s_movk_i32 s32, 4096')
        k('s_lshl_b32 s60, s35, 12')
        k('s_add_u32 s51, s51, s60')
    k.w2v = 113
    k('s_mul_i32 s60, s8, 114688')
    k('s_add_u32 s60, s60, s51')
    ws_ptr(k, 22, WS_HID, 60)
    tr_addr32(k, 4, 1, 8, 9, 6, 8)
    k('v_add_u32 v5, 0x10000, v4')
    k('v_and_b32 v6, 31, v1')
    k('v_lshlrev_b32 v6, 3, v6')
    k('s_mul_i32 s62, s5, %d' % (2 * 114688))
    k('s_lshl_b32 s63, s6, 11')
    k('s_add_u32 s62, s62, s63')
    ws_ptr(k, 68, WS_HID, 62)
    k('s_lshl_b32 s62, s5, 9')
    add_ptr(k, 70, 14, 62)
    k('v_bfe_u32 v16, v1, 4, 1')
    k('v_xor_b32 v16, 1, v16')
    k('v_lshlrev_b32 v16, 10, v16')
    k('v_lshrrev_b32 v17, 5, v1')
    k('v_lshl_add_u32 v16, v17, 4, v16')
    k('v_add_u32 v16, %d, v16' % L_GS)
    k('v_lshlrev_b32 v17, 2, v0')
    k('v_add_u32 v17, %d, v17' % L_GS)
    k('v_lshlrev_b32 v18, 3, v0')
    k('v_add_u32 v18, %d, v18' % (L_GS + 2048))
    k('v_lshrrev_b32 v119, 5, v1')
    k('v_and_b32 v118, 31, v1')
    k('v_lshlrev_b32 v116, 8, v119')
    k('v_lshl_add_u32 v116, v118, 1, v116')
    k('v_lshlrev_b32 v117, 4, v119')
    k('v_lshl_add_u32 v118, v118, 10, v117')
    k('s_lshl_b32 s62, s9, 2')
    k('s_add_u32 s62, s62, s50')
    k('s_lshl_b32 s63, s8, 15')
    k('s_lshl_b32 s60, s62, 10')
    k('s_add_u32 s60, s60, s63')
    ws_ptr(k, 20, WS_X1T, 60)
    k('s_lshl_b32 s60, s62, 6')
    k('s_add_u32 s60, s60, %d' % (L_GS + 2048))
    k('v_add_u32 v117, s60, v117')
    k('s_lshl_b32 s60, s62, 5')
    k('s_add_u32 s60, s60, s63')
    add_ptr(k, 24, P_OUT, 60)
    k('s_lshl_b32 s60, s50, 13')
    k('v_add_u32 v120, s60, v2')
    k('s_lshl_b32 s60, s50, 11')
    k('v_add_u32 v121, s60, v2')
    k('s_lshr_b32 s60, s8, 1')
    k('s_lshl_b32 s60, s60, 6')
    k('s_add_u32 s60, s60, 0x%x' % O_F3)
    k('v_min_u32 v122, 13, v1')
    k('v_lshl_add_u32 v122, v122, 2, s60')
    k('s_lshl_b32 s10, s5, 6')
    k('s_lshl_b32 s61, s7, 2')
    k('s_add_u32 s10, s10, s61')
    k('s_mov_b32 s80, 0')
    k.wait(vm=k.tfin)
    k('L_fin_p:')
    k('v_cmp_ne_u32 vcc, s81, v167')
    retry_tail(k, 'fin', [k.FL, 's_waitcnt vmcnt(0)'])
    k('v_lshlrev_b32 v168, 16, v166')
    k('v_and_b32 v169, 0xffff0000, v166')
    k('v_mul_f32 v168, %s, v168' % f32(-math.log(2.0)))
    k('v_mul_f32 v169, %s, v169' % f32(-math.log(2.0)))
    k.ds('ds_write2st64_b32 v17, v164, v165 offset0:0 offset1:4')
    k.ds('ds_write_b64 v18, v[168:169]')
    C12POS = E('C12POS', 0)
    EARLYA = E('EARLYA', 0)
    def sigB(nm):
        k.wait(vm=k.tx1)
        k.barrier()
        signal(k, nm, O_F2 + 0x2000, 19, 20)
        k.stamp(11)
    k.wait_all(vm=False)
    if not EARLYA: sigB('f2b')
    xq = []
    w2q = k.w2q
    w2done = k.w2n0 - len(w2q)
    w2q0 = w2q if not C12POS else []
    def c12_block():
        gt = [None] * 32
        for s_ in range(8): gt[s_] = k.ds('ds_read_b128 %s, v16 offset:%d' % (v(80 + 4 * (s_ % 8), 4), 32 * s_))
        for s_ in range(32):
            if C12POS and s_ == E('PA_AT', 8): sync_issue(k, 'f2a', *k.PA)
            k.wait(ds=gt[s_], vm=k.tw1[s_])
            k('v_mfma_f32_32x32x16_bf16 v[128:143], %s, %s, %s' % (a(4 * s_, 4), v(80 + 4 * (s_ % 8), 4), '0' if s_ == 0 else 'v[128:143]'))
            if EARLYA and s_ == E('SIGB_AT', 6): sigB('f2b')
            if xq: xq.pop(0)()
            elif w2q0: w2q0.pop(0)()
            if s_ >= 1 and s_ + 7 < 32: gt[s_ + 7] = k.ds('ds_read_b128 %s, v16 offset:%d' % (v(80 + 4 * ((s_ + 7) % 8), 4), 32 * (s_ + 7)))
        k.stamp(8)
    if C12POS: c12_block()
    sync_check(k, 'f2a', k.PA, chk_tags([72, 73, 74, 75], 114), extra=0 if (C12POS or EARLYA) else 1)
    k.barrier()
    k.stamp(12); k.stamp2(1)
    ctok = {}
    def chunk_ops(ps, c):
        ops = [lambda: k('s_add_u32 m0, s56, %d' % (ps * 65536 + c * 8192))]
        def ld(i): ctok[ps, c] = k.vm('global_load_lds_dwordx4 v2, s[28:29] offset:%d%s' % (i * 1024, LD_SC))
        for i in range(4): ops.append(lambda i=i: ld(i))
        if c < 3: ops.append(lambda: k('s_add_u32 s28, s28, 8192\ns_addc_u32 s29, s29, 0'))
        elif ps == 0: ops.append(lambda: k('s_add_u32 s28, s28, %d\ns_addc_u32 s29, s29, 0' % (0x100000 - 3 * 8192)))
        return ops
    k('s_cmp_ge_u32 s4, 28')
    k('s_cbranch_scc1 L_st_a')
    for c in range(4): xq.extend(chunk_ops(0, c))
    for _ in range(len(xq) if C12POS else E('XPRE', 5)): xq.pop(0)()
    k('s_branch L_st_b')
    k('L_st_a:')
    k('s_sub_u32 s11, s4, 28')
    k('s_lshl_b32 s60, s3, 2')
    k('s_add_u32 s11, s11, s60')
    k('s_lshl_b32 s60, s11, 15')
    k('s_lshl_b32 s61, s50, 13')
    k('s_add_u32 s60, s60, s61')
    ws_ptr(k, 28, WS_X1T, 60)
    k('v_add_u32 v7, 0x1000, v2')
    STL = ['global_load_dwordx4 %s, v%d, s[28:29] offset:%d%s' % (v(80 + 4 * i, 4), 2 if i < 4 else 7, (i & 3) * 1024, LD_SC) for i in range(8)]
    for x in STL: raw(k, x)
    if EARLYA:
        k('s_waitcnt vmcnt(8)')
        k.barrier()
        signal(k, 'f2bs', O_F2 + 0x2000, 19, 20)
    k('s_branch L_stats')
    k('L_st_b:')
    if not C12POS: c12_block()
    fix = ['v_mov_b32 v%d, v%d' % (144 + r, 128 + r) for r in range(16)]
    fix += ['v_permlane16_swap_b32 v%d, v%d' % (128 + r, 144 + r) for r in range(16)]
    fix += ['v_mul_f32 v%d, %s, v%d' % (144 + r, f32(-LOG2E), 144 + r) for r in range(16)]
    ACC = 16
    for _ in range(E('W2E', 12) if C12POS else 0):
        if w2q: w2q.pop(0)()
    SL = lambda ps: ['global_load_dwordx2 %s, v6, s[70:71] offset:%d%s' % (v(8 + 2 * u, 2), 256 * u, SC) for u in range(2)]
    htok = {}
    def hload(ps, s_):
        htok[ps, s_] = k.vm('global_load_dwordx4 %s, v2, s[22:23] offset:%d%s' % (a(4 * s_, 4), (s_ & 3) * 1024, LD_SC))
        if (s_ & 3) == 3:
            if s_ < 27: adv(k, 22, 33)
            elif ps == 0:
                if ROT: adv(k, 22, 33); k('s_add_u32 s22, s22, %d\ns_addc_u32 s23, s23, 0' % (32 * 114688))
                else: k('s_add_u32 s22, s22, %d\ns_addc_u32 s23, s23, 0' % (32 * 114688 - 6 * 4096))
    k.hload, k.htok = hload, htok
    F3L = lambda ps: 'global_load_dword v72, v122, s[14:15] offset:%d%s' % (1024 * ps, SC)
    W2D = E('W2D', 2)
    lstA = [None]
    for ps in range(2):
        def breg(s_, u): return 48 + 8 * (s_ % 3) + 4 * u
        rtok = {}
        def rd(s_, u):
            off = u * 32768 + s_ * 1024
            k.ds('ds_read_b64_tr_b16 %s, v%d offset:%d' % (v(breg(s_, u), 2), 4 + ps, off))
            rtok[s_, u] = k.ds('ds_read_b64_tr_b16 %s, v%d offset:%d' % (v(breg(s_, u) + 2, 2), 4 + ps, off + 256))
        k.stamp2(2 + 5 * ps)
        k.wait(vm=ctok[ps, 0]); k.barrier()
        k.stamp2(3 + 5 * ps)
        for s_ in range(2):
            for u in range(2): rd(s_, u)
        pend = []
        gap = 0
        for s_ in range(32):
            if s_ % 8 == 6 and s_ < 30:
                c = s_ // 8 + 1
                if ps == 0 and c == E('F2B_AT', 2): sync_check(k, 'f2b', [PL(126)], chk_tags([72, 73, 74, 75], 80))
                if ps == 1 and c == E('F3A_SIG', 2): k.wait(vm=lstA[0])
                k.wait(vm=ctok[ps, c]); k.barrier()
                if ps == 0 and c == E('F2B_AT', 2):
                    for c2 in range(4): pend += chunk_ops(1, c2)
                if ps == 1 and c == E('F3A_SIG', 2): signal(k, 'f3a', O_F3, 73, 74, nrep=1, sidx=10)
            if ps == 0 and s_ == 8 * E('F2B_AT', 2) - 2 - E('POLLD', 12): sync_issue(k, 'f2b', PL(126))
            if s_ == 16: k.stamp2(4 + 5 * ps)
            if s_ == 22:
                def sl(x): ctok['st'] = k.vm(x)
                for x in SL(ps): pend.append(lambda x=x: sl(x))
            for u in range(2):
                k.wait(ds=rtok[s_, u])
                k('v_mfma_f32_32x32x16_bf16 %s, %s, %s, %s' % (v(ACC + 16 * u, 16), a(4 * s_, 4), v(breg(s_, u), 4), '0' if s_ == 0 else v(ACC + 16 * u, 16)))
                if s_ + 2 < 32: rd(s_ + 2, u)
                if fix and s_ >= 2:
                    for _ in range(2): k(fix.pop(0))
                if pend: pend.pop(0)()
                elif w2q and gap % W2D == 0: w2q.pop(0)()
                gap += 1
        while pend: pend.pop(0)()
        k.stamp(13 if ps == 0 else 14); k.stamp2(5 + 5 * ps)
        k.wait(vm=ctok['st'])
        k('s_mov_b32 s80, 0')
        k('L_chk%d_p:' % ps)
        k('v_min_u32 v80, v9, v11')
        k('v_cmp_eq_u32 vcc, 0, v80')
        retry_tail(k, 'chk%d' % ps, SL(ps) + ['s_waitcnt vmcnt(0)'], 2)
        if ps == 0: k('s_add_u32 s70, s70, 0x2000\ns_addc_u32 s71, s71, 0')
        k('s_nop 7')
        k.stamp2(6 + 5 * ps)
        for u in range(2):
            b = 8 + 2 * u
            A_ = ACC + 16 * u
            for p in range(8):
                x = v(A_ + 2 * p, 2)
                k('v_pk_fma_f32 %s, %s, %s, %s op_sel_hi:[1,0,1] neg_lo:[0,1,0] neg_hi:[0,1,0]' % (x, v(128 + 2 * p, 2), v(b, 2), x))
            for p in range(8):
                x = v(A_ + 2 * p, 2)
                k('v_pk_fma_f32 %s, %s, %s, %s op_sel:[1,0,0] op_sel_hi:[1,1,1]' % (x, v(b, 2), x, v(144 + 2 * p, 2)))
            if ps == 1 and u == E('F3A_U', 0): sync_issue(k, 'f3a', F3L(0))
            W2EP = E('W2EP', 4)
            def tick(r):
                if w2q and W2EP and r % W2EP == W2EP - 1 and (u == 0 or E('W2EU', 0)): w2q.pop(0)()
            for r in range(16):
                k('v_exp_f32 v%d, v%d' % (80 + r, A_ + r)); tick(r)
            for p in range(8): k('v_pk_add_f32 %s, %s, 1.0 op_sel_hi:[1,0]' % (v(80 + 2 * p, 2), v(80 + 2 * p, 2)))
            for r in range(16):
                k('v_rcp_f32 v%d, v%d' % (80 + r, 80 + r)); tick(r)
            for p in range(8): k('v_pk_mul_f32 %s, %s, %s' % (v(A_ + 2 * p, 2), v(A_ + 2 * p, 2), v(80 + 2 * p, 2)))
            O = 96 + 8 * u
            for p in range(8): k('v_cvt_pk_bf16_f32 v%d, v%d, v%d' % (O + p, A_ + 2 * p, A_ + 2 * p + 1))
            k.vm('global_store_dwordx4 v%d, %s, s[68:69]%s' % (2 if u == 0 else 113, v(O, 4), SC))
            lst = k.vm('global_store_dwordx4 v%d, %s, s[68:69] offset:1024%s' % (2 if u == 0 else 113, v(O + 4, 4), SC))
        if ps == 0:
            lstA[0] = lst
            k('s_add_u32 s68, s68, %d\ns_addc_u32 s69, s69, 0' % (32 * 114688))
    print('w2 leftover ops', len(w2q))
    while w2q: w2q.pop(0)()
    sync_check(k, 'f3a', [F3L(0)], ['v_cmp_ne_u32 vcc, s81, v72'])
    k.barrier()
    k('s_add_u32 s10, s10, 1024')
    k('s_branch L_join')
    k('L_stats:')
    k.reset_counters()
    k('s_movk_i32 s10, 2048')
    k('s_lshl_b32 s62, s11, 8')
    add_ptr(k, 70, 14, 62)
    k('s_mov_b32 s62, 0xffff0000')
    k('v_lshlrev_b32 v3, 6, v0')
    k('v_bfe_u32 v4, v1, 3, 2')
    k('v_lshlrev_b32 v4, 6, v4')
    k('v_and_b32 v5, 7, v1')
    k('v_lshl_add_u32 v4, v5, 2, v4')
    k('v_lshrrev_b32 v5, 5, v1')
    k('v_lshl_add_u32 v4, v5, 13, v4')
    for ps in range(2):
        if ps == 1:
            poll(k, 'sf2b', [PL(126)], chk_tags([72, 73, 74, 75], 80))
            k('s_add_u32 s28, s28, 0x100000\ns_addc_u32 s29, s29, 0')
            k('s_add_u32 s70, s70, 0x2000\ns_addc_u32 s71, s71, 0')
        if ps == 0:
            xt = list(range(1, 9)); k.nvm = 8
        else: xt = [k.vm(x) for x in STL]
        for r in range(16): k('v_mov_b32 v%d, 0' % (16 + r))
        for i in range(8):
            k.wait(vm=xt[i])
            for j in range(4):
                r = 80 + 4 * i + j
                tt = 32 + 2 * (j & 1)
                k('v_lshlrev_b32 v%d, 16, v%d' % (tt, r))
                k('v_and_b32 v%d, s62, v%d' % (tt + 1, r))
                k('v_pk_add_f32 %s, %s, %s' % (v(16 + 2 * j, 2), v(16 + 2 * j, 2), v(tt, 2)))
                k('v_pk_fma_f32 %s, %s, %s, %s' % (v(24 + 2 * j, 2), v(tt, 2), v(tt, 2), v(24 + 2 * j, 2)))
        for pat in ('row_ror:4', 'row_ror:8'):
            for r in range(16): k('v_add_f32_dpp v%d, v%d, v%d %s row_mask:0xf bank_mask:0xf' % (16 + r, 16 + r, 16 + r, pat))
        for i in range(4): k.ds('ds_write_b128 v3, %s offset:%d' % (v(16 + 4 * i, 4), 16384 * ps + 16 * i))
        k.wait_all(vm=False)
        k.barrier()
        k('s_cmp_lg_u32 s50, 0')
        k('s_cbranch_scc1 L_st%d' % ps)
        for q in range(8):
            raw(k, 'ds_read_b32 v%d, v4 offset:%d' % (16 + 2 * q, 16384 * ps + 1024 * q))
            raw(k, 'ds_read_b32 v%d, v4 offset:%d' % (17 + 2 * q, 16384 * ps + 1024 * q + 32))
        k('s_waitcnt lgkmcnt(0)')
        for q in range(1, 8): k('v_pk_add_f32 v[16:17], v[16:17], %s' % v(16 + 2 * q, 2))
        k('v_mov_b64 v[18:19], v[16:17]')
        k('v_permlane32_swap_b32 v16, v18')
        k('v_permlane32_swap_b32 v17, v19')
        k('v_pk_add_f32 v[16:17], v[16:17], v[18:19]')
        k('v_mul_f32 v16, %s, v16' % f32(1.0 / 512))
        k('v_mul_f32 v17, %s, v17' % f32(1.0 / 512))
        k('v_fma_f32 v17, -v16, v16, v17')
        k('v_max_f32 v17, 0, v17')
        k('v_add_f32 v17, %s, v17' % f32(1e-5))
        k('v_rsq_f32 v17, v17')
        k('v_mul_f32 v17, %s, v17' % f32(-LOG2E))
        raw(k, 'global_store_dwordx2 v6, v[16:17], s[70:71]' + SC)
        k('L_st%d:' % ps)
    sq = []
    for ks in range(28): sq += w2_ops(k, ks)
    for op in sq[w2done:]: op()
    poll(k, 'sf3a', [F3L(0)], ['v_cmp_ne_u32 vcc, s81, v72'])
    k('L_join:')
    k.stamp(1); k.stamp2(12); k.stamp4(1)
    k.reset_counters()
    htok.clear()
    HA0 = E('HA0', 16)
    for s_ in range(HA0): hload(0, s_)
    for q in range(2): k.ds('ds_read_b128 %s, v117 offset:%d' % (v(96 + 4 * q, 4), 32 * q))
    for r in range(16): k('v_mov_b32 v%d, 0' % (80 + r))
    k('v_add_u32 v115, 0x100000, v116')
    k('v_add_u32 v119, 0x100000, v118')
    k.stamp4(2)
    k('s_waitcnt vmcnt(%d)' % HA0)
    k.barrier()
    signal(k, 'f3b', O_F3, 73, 74, nrep=1, sidx=10)
    aq = [lambda s_=s_: hload(0, s_) for s_ in range(HA0, 28)]
    trs = {}
    def rl(ps, q, r): trs[ps] = k.vm('global_load_short_d16_hi v%d, v%d, s[20:21] offset:%d%s' % (80 + 8 * ps + 4 * q + r, 116 - ps, (8 * q + r) * 64, LD_SC))
    for q in range(2):
        for r in range(4): aq.append(lambda q=q, r=r: rl(0, q, r))
    bq = [lambda q=q, r=r: rl(1, q, r) for q in range(2) for r in range(4)]
    FB = E('F3B_AT', 24); nh = [0]
    for ps in range(2):
        for s_ in range(28):
            k.wait(vm=htok[ps, s_])
            if s_ == 0: k.stamp2(13 + ps)
            if s_ in (0, 8, 16, 24): k.stamp4(3 + 6 * ps + s_ // 8)
            if ps == 0 and s_ == max(0, FB - E('F3B_D', 8)): sync_issue(k, 'f3b', F3L(1))
            if ps == 0 and s_ == FB:
                sync_check(k, 'f3b', [F3L(1)], ['v_cmp_ne_u32 vcc, s81, v72'])
                k.barrier()
                k.stamp(5); k.stamp4(7)
            for j in range(2):
                k('v_mfma_f32_32x32x16_bf16 %s, %s, %s, %s' % (v(ACC + 16 * j, 16), w2reg(s_)[j], a(4 * s_, 4), '0' if s_ == 0 else v(ACC + 16 * j, 16)))
                if ps == 0 and aq and (j == 0 or E('HAJ', 0)): aq.pop(0)()
                if ps == 1 and nh[0] < 28 and (j == 0 or E('HBJ', 0)): hload(1, nh[0]); nh[0] += 1
                elif ps == 1 and bq and s_ >= 10 and j == 0: bq.pop(0)()
                if ps == 0 and s_ >= FB:
                    for _ in range(E('HBR', 1)):
                        if nh[0] < s_ + j: hload(1, nh[0]); nh[0] += 1
        k.stamp4(8 + 5 * ps)
        for q in range(8):
            k.ds('ds_write_b128 v120, %s offset:%d' % (v(ACC + 4 * q, 4), 32768 * ps + q * 1024))
            if ps == 0 and FB < 28 and q % 2 == 1 and nh[0] < 28: hload(1, nh[0]); nh[0] += 1
        if ps == 0 and FB >= 28: sync_check(k, 'f3b', [F3L(1)], ['v_cmp_ne_u32 vcc, s81, v72'])
        k.wait_all(vm=False)
        k.barrier()
        if ps == 0 and FB >= 28:
            k.stamp(5)
            for _ in range(8): hload(1, nh[0]); nh[0] += 1
        if ps == 1: k.stamp4(14)
        rt_ = []
        for w_ in range(4):
            for q in range(2): t = k.ds('ds_read_b128 %s, v121 offset:%d' % (v(48 + 8 * w_ + 4 * q, 4), 32768 * ps + w_ * 8192 + q * 1024))
            rt_.append(t)
        while ps == 0 and nh[0] < E('HB1', 20): hload(1, nh[0]); nh[0] += 1
        k.wait(ds=rt_[1])
        for p in range(4): k('v_pk_add_f32 %s, %s, %s' % (v(48 + 2 * p, 2), v(48 + 2 * p, 2), v(56 + 2 * p, 2)))
        k.wait(ds=rt_[3])
        for p in range(4): k('v_pk_add_f32 %s, %s, %s' % (v(64 + 2 * p, 2), v(64 + 2 * p, 2), v(72 + 2 * p, 2)))
        k.wait(vm=trs[ps])
        for p in range(4):
            k('v_pk_add_f32 %s, %s, %s' % (v(48 + 2 * p, 2), v(48 + 2 * p, 2), v(64 + 2 * p, 2)))
            k('v_pk_fma_f32 %s, %s, %s, %s' % (v(48 + 2 * p, 2), v(48 + 2 * p, 2), v(96 + 2 * p, 2), v(80 + 8 * ps + 2 * p, 2)))
            k('v_cvt_pk_bf16_f32 v%d, v%d, v%d' % (104 + 4 * ps + p, 48 + 2 * p, 49 + 2 * p))
        b = 104 + 4 * ps
        k('v_permlane32_swap_b32 v%d, v%d' % (b, b + 2))
        k('v_permlane32_swap_b32 v%d, v%d' % (b + 1, b + 3))
        k.vm('global_store_dwordx4 v%d, %s, s[24:25]%s' % (118 + ps, v(b, 4), os.environ.get('OUT_SC%d' % ps, '')))

def build_single(path):
    k = Kern(NAME + '_kernel')
    phase0(k); conv_phase(k); mlp_phase(k)
    k.end()
    k('L_end:')
    k('s_endpgm')
    launch, (vg_, sg_, ac) = 'grid=(256,1,1) block=(256,1,1) lds=%d' % LDS_TOTAL, (512, 84, 256)
    out = [HEADER.rstrip(), '; @launch ' + launch, '.amdgcn_target "amdgcn-amd-amdhsa--gfx950"', k.text(vg_, sg_, ac), '.text\nL_text_end:\n    s_endpgm']
    print(k.name, k.stats)
    open(path, 'w').write('\n'.join(out) + '\n')

if __name__ == '__main__':
    build_single(sys.argv[1] if len(sys.argv) > 1 else ('diag.s' if DIAG else 'cdna_kernels/%s.s' % NAME))
```
